```python
import torch

def _softmax(x, axis=-1):
    return torch.softmax(x, dim=axis)
def _gelu(x):
    return torch.nn.functional.gelu(x, approximate="tanh")
def _silu(x):
    return torch.nn.functional.silu(x)
def _sigmoid(x):
    return torch.sigmoid(x)
def _layernorm(x, axis=-1, eps=1e-5):
    m = x.mean(dim=axis, keepdim=True)
    v = x.var(dim=axis, keepdim=True, unbiased=False)
    return (x - m) / torch.sqrt(v + eps)
def _scatter_add(tgt, idx, src, axis=0):
    return tgt.clone().index_add_(axis, idx, src)
def _segment_sum(src, seg, n):
    out = torch.zeros((n,) + src.shape[1:], dtype=src.dtype)
    return out.index_add_(0, seg, src)
def _pad(x, pw):
    flat = tuple(v for pair in reversed(pw) for v in pair)
    return torch.nn.functional.pad(x, flat)

kernel_name = 'concat_heads__mha_block_cached__mha_block_cached__near_ridge'

def setup_inputs():

    _w = (lambda a: (lambda t: t.to(torch.bfloat16) if t.is_floating_point() else t)(torch.as_tensor(a)))
    def _A_setup():
        B, Sq, D = 8, 96, 640
        H, Sk, Dh = 32, 1024, 128
        return {
            "x": _w((lambda *s: torch.randn(*s, dtype=torch.bfloat16) * 0.8)(B, Sq, D)),
            "k_cache": _w((lambda *s: torch.randn(*s, dtype=torch.bfloat16) * 0.8)(B, H, Sk, Dh)),
            "v_cache": _w((lambda *s: torch.randn(*s, dtype=torch.bfloat16) * 0.05)(B, H, Sk, Dh)),
            "wq": _w((lambda *s: torch.randn(*s, dtype=torch.bfloat16) * 0.8)(D, H * Dh) * (D ** -0.5)),
            "wo": _w((lambda *s: torch.randn(*s, dtype=torch.bfloat16) * 0.05)(H * Dh, D) * ((H * Dh) ** -0.5)),
        }
    _A_in = _A_setup()

    def _B_setup():
        B, Sq, D = 8, 96, 640
        H, Sk, Dh = 32, 1024, 128
        return {
            "x": _w((lambda *s: torch.randn(*s, dtype=torch.bfloat16) * 0.8)(B, Sq, D)),
            "k_cache": _w((lambda *s: torch.randn(*s, dtype=torch.bfloat16) * 0.8)(B, H, Sk, Dh)),
            "v_cache": _w((lambda *s: torch.randn(*s, dtype=torch.bfloat16) * 0.05)(B, H, Sk, Dh)),
            "wq": _w((lambda *s: torch.randn(*s, dtype=torch.bfloat16) * 0.8)(D, H * Dh) * (D ** -0.5)),
            "wo": _w((lambda *s: torch.randn(*s, dtype=torch.bfloat16) * 0.05)(H * Dh, D) * ((H * Dh) ** -0.5)),
        }
    _B_in = _B_setup()

    return {
        "A_x": _A_in["x"],
        "A_k_cache": _A_in["k_cache"],
        "A_v_cache": _A_in["v_cache"],
        "A_wq": _A_in["wq"],
        "A_wo": _A_in["wo"],
        "B_x": _B_in["x"],
        "B_k_cache": _B_in["k_cache"],
        "B_v_cache": _B_in["v_cache"],
        "B_wq": _B_in["wq"],
        "B_wo": _B_in["wo"],
    }

def reference(A_x, A_k_cache, A_v_cache, A_wq, A_wo, B_x, B_k_cache, B_v_cache, B_wq, B_wo):
    def _A_ref(x, k_cache, v_cache, wq, wo):
        B, Sq, D = x.shape
        H, Dh = 32, 128
        q = (lambda x, *d: x.permute(*d))((x @ wq).reshape(B, Sq, H, Dh), 0, 2, 1, 3)
        scores = torch.einsum("bhqd,bhkd->bhqk", q, k_cache) * (Dh ** -0.5)
        p = _softmax(scores, axis=-1)
        o = torch.einsum("bhqk,bhkd->bhqd", p, v_cache)
        return (lambda x, *d: x.permute(*d))(o, 0, 2, 1, 3).reshape(B, Sq, H * Dh) @ wo

    def _B_ref(x, k_cache, v_cache, wq, wo):
        B, Sq, D = x.shape
        H, Dh = 32, 128
        q = (lambda x, *d: x.permute(*d))((x @ wq).reshape(B, Sq, H, Dh), 0, 2, 1, 3)
        scores = torch.einsum("bhqd,bhkd->bhqk", q, k_cache) * (Dh ** -0.5)
        p = _softmax(scores, axis=-1)
        o = torch.einsum("bhqk,bhkd->bhqd", p, v_cache)
        return (lambda x, *d: x.permute(*d))(o, 0, 2, 1, 3).reshape(B, Sq, H * Dh) @ wo

    a = _A_ref(A_x, A_k_cache, A_v_cache, A_wq, A_wo)
    b = _B_ref(B_x, B_k_cache, B_v_cache, B_wq, B_wo)
    return torch.concatenate([a, b], axis=-1)
```

```python
import sys, math
NAME = 'concat_heads__mha_block_cached__mha_block_cached__near_ridge'

class Opt:
    fused = False
    stamps = False
    kv_flags = 'nt'
    w_flags = ''
    look = 8

WS_FLAGS = 12582912
WS_STAMP = 13631488
SLOT = 16384
STAGE = 40960

S_X, S_K, S_V, S_WQ, S_WO, S_OUT, S_WS = 4, 8, 12, 16, 20, 24, 28
S_DBG = 32
S_WAVE, S_BR, S_H, S_BL = 34, 35, 36, 37
S_T0, S_T1, S_T2, S_T3 = 38, 39, 40, 41
S_KX = 42
S_XB = 43
S_XL = 44
S_KVB = 45
S_TICK = 46
S_KOFF, S_VOFF = 47, 48
S_THR, S_FLOOR = 49, 50
S_C = 51
S_OB = 52
S_WQB = 53
S_ST = 54
S_STB = 56
S_QT, S_NT = 57, 58
S_SAVE = 60
S_KARG = 64

V_LANE = 1
V_T0, V_T1, V_T2, V_T3 = 2, 3, 4, 5
V_L = 6
V_MX = 10
V_D = 11
V_DMA = 12
V_KA = 16
V_VA = 24
V_OST = 28
V_NEGM = 32
V_SA, V_SB, V_P = 48, 64, 80
V_TMP = 88
V_Q = 96
V_KF, V_VF = 128, 160
V_Q2 = 192

class Em:
    def __init__(self): self.L = []
    def __call__(self, s): self.L.append('    ' + s)
    def lab(self, s): self.L.append(s + ':')
    def raw(self, s): self.L.append(s)
    def text(self): return '\n'.join(self.L) + '\n'

def vr(b, n=1): return f'v{b}' if n == 1 else f'v[{b}:{b+n-1}]'
def ar(b, n=1): return f'a{b}' if n == 1 else f'a[{b}:{b+n-1}]'
def sr(b, n=1): return f's{b}' if n == 1 else f's[{b}:{b+n-1}]'
def mfma(d, a, b, c): return f'v_mfma_f32_32x32x16_bf16 {d}, {a}, {b}, {c}'

def cost(i):
    if i.startswith('v_exp') or i.startswith('v_rcp'): return 8
    if i.startswith('s_'): return 2
    return 4

def interleave(e, mf, fill, marks=None):
    total = sum(cost(f) for f in fill if not isinstance(f, tuple))
    per = total / len(mf)
    fi = 0; acc = 0.0
    deadline = {}
    idx = 0
    items = []
    for f in fill:
        if isinstance(f, tuple):
            if f[0] == 'M': deadline[f[1]] = len(items)
            elif f[0] == 'A':
                items.append(('A', f[1]))
        else: items.append(f)
    for k, m in enumerate(mf):
        need = deadline.get(k, 0)
        while fi < need:
            it = items[fi]; fi += 1
            if isinstance(it, tuple):
                assert it[1] < k, (it, k)
                continue
            e(it); acc += cost(it)
        if isinstance(m, (list, tuple)):
            for x in m: e(x)
        else: e(m)
        target = per * (k + 1)
        while fi < len(items) and (acc < target - 1.0 or k == len(mf) - 1):
            it = items[fi]
            if isinstance(it, tuple):
                if it[1] > k: break
                fi += 1; continue
            e(it); acc += cost(it); fi += 1
    assert fi == len(items)

def stamp(e, o, idx, wave_cond=None):
    if not o.stamps: return
    e(f's_memrealtime {sr(S_ST,2)}')
    e('s_waitcnt lgkmcnt(0)')
    e(f'v_mov_b32 v{V_T0}, s{S_ST}')
    e(f'v_mov_b32 v{V_T1}, s{S_STB}')
    e(f's_mov_b64 {sr(S_SAVE,2)}, exec')
    e('s_mov_b64 exec, 1')
    e(f'buffer_store_dword v{V_T0}, v{V_T1}, {sr(S_WS,4)}, 0 offen offset:{4*idx}')
    e(f's_mov_b64 exec, {sr(S_SAVE,2)}')

def prologue(e, o, limit):
    e(f's_cmp_ge_u32 s2, {limit}')
    e('s_cbranch_scc1 L_exit' + e.sfx)
    e(f's_load_dwordx16 {sr(S_KARG,16)}, s[0:1], 0')
    e(f's_load_dwordx8 {sr(S_KARG+16,8)}, s[0:1], 64')
    e(f's_load_dwordx2 {sr(S_KARG+24,2)}, s[0:1], 96')
    e(f'v_lshrrev_b32 v{V_T0}, 6, v0')
    e(f'v_and_b32 v{V_LANE}, 63, v0')
    e(f'v_readfirstlane_b32 s{S_WAVE}, v{V_T0}')
    e(f's_and_b32 s{S_T0}, s2, 7')
    e(f's_lshr_b32 s{S_T1}, s2, 3')
    e(f's_lshr_b32 s{S_BR}, s{S_T0}, 2')
    e(f's_and_b32 s{S_T2}, s{S_T0}, 3')
    e(f's_lshl_b32 s{S_H}, s{S_T2}, 3')
    e(f's_and_b32 s{S_T3}, s{S_T1}, 7')
    e(f's_add_u32 s{S_H}, s{S_H}, s{S_T3}')
    e(f's_lshr_b32 s{S_BL}, s{S_T1}, 3')
    e(f's_mul_i32 s{S_KX}, s{S_BL}, 5')
    e(f's_add_u32 s{S_KX}, s{S_KX}, 1')
    e(f's_lshr_b32 s{S_KX}, s{S_KX}, 1')
    e(f's_add_u32 s{S_KX}, s{S_KX}, s{S_T3}')
    e(f's_cmp_ge_u32 s{S_KX}, 10')
    e(f's_cselect_b32 s{S_T3}, 10, 0')
    e(f's_sub_u32 s{S_KX}, s{S_KX}, s{S_T3}')
    e(f's_mul_i32 s{S_QT}, s{S_T1}, 13')
    e(f's_lshr_b32 s{S_QT}, s{S_QT}, 6')
    e(f's_mul_i32 s{S_T3}, s{S_QT}, 5')
    e(f's_sub_u32 s{S_NT}, s{S_T1}, s{S_T3}')
    e(f's_and_b32 s{S_T3}, s{S_T2}, 1')
    e(f's_mul_i32 s{S_T3}, s{S_T3}, 5')
    e(f's_add_u32 s{S_NT}, s{S_NT}, s{S_T3}')
    e(f's_cmp_ge_u32 s{S_T1}, 30')
    e(f's_cselect_b32 s{S_NT}, 15, s{S_NT}')
    e(f's_lshr_b32 s{S_T3}, s{S_T2}, 1')
    e(f's_mul_i32 s{S_T3}, s{S_T3}, 6')
    e(f's_add_u32 s{S_QT}, s{S_QT}, s{S_T3}')
    e(f's_lshl_b32 s{S_STB}, s2, 2')
    e(f's_add_u32 s{S_STB}, s{S_STB}, s{S_WAVE}')
    e(f's_lshl_b32 s{S_STB}, s{S_STB}, 6')
    e(f's_add_u32 s{S_STB}, s{S_STB}, {WS_STAMP + e.stoff}')
    e('s_waitcnt lgkmcnt(0)')
    e(f's_cmp_eq_u32 s{S_BR}, 0')
    for srd, i, size in ((S_X, 0, 983040), (S_K, 1, 1 << 26), (S_V, 2, 1 << 26), (S_WQ, 3, 5242880), (S_WO, 4, 5242880)):
        e(f's_cselect_b64 {sr(srd,2)}, {sr(S_KARG+2*i,2)}, {sr(S_KARG+10+2*i,2)}')
        e(f's_mov_b32 s{srd+2}, {size}')
        e(f's_mov_b32 s{srd+3}, 0x20000')
    for srd, i, size in ((S_OUT, 10, 1966080), (S_WS, 12, 16777216)):
        e(f's_mov_b64 {sr(srd,2)}, {sr(S_KARG+2*i,2)}')
        e(f's_mov_b32 s{srd+2}, {size}')
        e(f's_mov_b32 s{srd+3}, 0x20000')
    e(f's_mov_b64 {sr(S_DBG,2)}, {sr(S_KARG+22,2)}')
    for srd in (S_X, S_K, S_V, S_WQ, S_WO, S_OUT, S_WS):
        e(f's_and_b32 s{srd+1}, s{srd+1}, 0xffff')

def next_kx(e):
    e(f's_add_u32 s{S_KX}, s{S_KX}, 1')
    e(f's_cmp_eq_u32 s{S_KX}, 10')
    e(f's_cselect_b32 s{S_KX}, 0, s{S_KX}')

def region(s): return ((s + 2) % 3) * STAGE
def slot_of(n): return ((8 + n) % 10) * SLOT

class Vm:
    def __init__(self, e): self.e = e; self.q = []
    def out(self): return sum(c for _, c in self.q)
    def wait(self, name):
        names = [n for n, _ in self.q]
        if name not in names: return
        i = names.index(name)
        rest = sum(c for _, c in self.q[i + 1:])
        assert rest <= 63
        self.e(f's_waitcnt vmcnt({rest})')
        self.q = self.q[i + 1:]
    def room(self, c):
        while self.out() + c > 63:
            self.wait(self.q[0][0])
    def add(self, name, c): self.q.append((name, c))

def loader(e, o):
    L = V_LANE
    VK, VV, VW = 12, 16, 20
    e(f'v_lshrrev_b32 v{V_T0}, 4, v{L}')
    e(f'v_and_b32 v{V_T1}, 15, v{L}')
    e(f'v_lshlrev_b32 v{V_T2}, 8, v{V_T0}')
    for i in range(4):
        e(f'v_add_u32 v{V_T3}, {4*i}, v{V_T0}')
        e(f'v_xor_b32 v{V_T3}, v{V_T3}, v{V_T1}')
        e(f'v_lshl_add_u32 v{VK+i}, v{V_T3}, 4, v{V_T2}')
    e(f'v_lshlrev_b32 v{V_T3}, 2, v{V_T0}')
    e(f'v_xor_b32 v{V_T3}, v{V_T3}, v{V_T1}')
    e(f'v_lshl_add_u32 v{VV}, v{V_T3}, 4, v{V_T2}')
    e(f'v_lshlrev_b32 v{V_T2}, 13, v{V_T0}')
    e(f'v_lshl_add_u32 v{VW}, v{V_T3}, 4, v{V_T2}')
    for i in range(1, 4):
        e(f'v_add_u32 v{VW+i}, {(32768-1024)*i}, v{VW}')
    e(f's_lshl_b32 s{S_WQB}, s{S_H}, 8')
    e(f's_lshl_b32 s{S_KVB}, s{S_BL}, 5')
    e(f's_add_u32 s{S_KVB}, s{S_KVB}, s{S_H}')
    e(f's_lshl_b32 s{S_KVB}, s{S_KVB}, 18')
    vm = Vm(e)
    def wq(s):
        vm.room(16)
        e(f's_lshl_b32 s{S_T0}, s{S_KX}, 19')
        e(f's_add_u32 s{S_T0}, s{S_T0}, s{S_WQB}')
        for g in range(4):
            e(f's_mov_b32 m0, {region(s) + 4096*g}')
            e(f's_add_u32 s{S_T1}, s{S_T0}, {g*4*32768}')
            for i in range(4):
                e(f'buffer_load_dwordx4 v{VW+i}, {sr(S_WQ,4)}, s{S_T1} offen offset:{1024*i} {o.w_flags} lds')
        next_kx(e)
        vm.add(f'wq{s}', 16)
    def kv(n):
        if n > 63:
            if n > 64: return
        if n == 0: isk, t = True, 0
        elif n % 2 == 1: isk, t = True, (n + 1) // 2
        else: isk, t = False, n // 2 - 1
        if t > 31: return
        vm.room(16)
        off = (t // 16) * (4 * 32 * 262144) + (t % 16) * SLOT
        for g in range(4):
            e(f's_mov_b32 m0, {slot_of(n) + 4096*g}')
            e(f's_add_u32 s{S_T1}, s{S_KVB}, {off + 4096*g}')
            for i in range(4):
                v = VK + i if isk else VV
                e(f'buffer_load_dwordx4 v{v}, {sr(S_K if isk else S_V,4)}, s{S_T1} offen offset:{1024*i} {o.kv_flags} lds')
        vm.add(f'n{n}', 16)
    def waitn(n):
        for m in range(n, -1, -1):
            if f'n{m}' in [x for x, _ in vm.q]:
                vm.wait(f'n{m}'); return
    if o.fused:
        e(f'v_lshlrev_b32 v{V_T0}, 9, v{L}')
    wq(0); wq(1); wq(2)
    stamp_l(e, o, vm, 0)
    for s in range(10):
        vm.wait(f'wq{s}')
        e('s_barrier')
        if s == 0: kv(0)
        if 1 <= s <= 7: wq(s + 2)
        if s == 2: kv(1)
        if s == 8: kv(2); kv(3)
        if s == 9: kv(4); kv(5); kv(6)
    waitn(0)
    e('s_barrier')
    issued = 6
    for k in range(32):
        waitn(min(2 * k + 2, 64))
        e('s_barrier')
        while issued < min(2 * k + o.look, 64):
            issued += 1
            kv(issued)
            if vm.out() > 32: vm.wait(vm.q[0][0])
    e('s_barrier')
    return vm

def stamp_l(e, o, vm, idx):
    if not o.stamps: return
    vm.room(1)
    stamp(e, o, idx)
    vm.add(f'st{idx}', 1)

def phase_a(e, o):
    L = V_LANE
    VA, VB = V_KA, V_KA + 4
    AF = [V_SA, V_SB]
    BF = [V_P, V_TMP]
    ACC = [128, 192]
    e(f'v_lshrrev_b32 v{V_T0}, 3, v{L}')
    e(f'v_mul_u32_u24 v{V_T0}, 1280, v{V_T0}')
    e(f'v_lshrrev_b32 v{V_T1}, 4, v{L}')
    e(f'v_and_b32 v{V_T2}, 7, v{L}')
    e(f'v_xor_b32 v{V_T1}, v{V_T1}, v{V_T2}')
    for i in range(4):
        e(f'v_xor_b32 v{V_T2}, {4*(i&1)}, v{V_T1}')
        e(f'v_lshl_add_u32 v{V_DMA+i}, v{V_T2}, 4, v{V_T0}')
        if i: e(f'v_add_u32 v{V_DMA+i}, {(10240-1024)*i}, v{V_DMA+i}')
    e(f's_mul_i32 s{S_XB}, s{S_BL}, 3')
    e(f's_add_u32 s{S_XB}, s{S_XB}, s{S_WAVE}')
    e(f's_mul_i32 s{S_OB}, s{S_BR}, 24')
    e(f's_add_u32 s{S_OB}, s{S_OB}, s{S_XB}')
    e(f's_lshl_b32 s{S_OB}, s{S_OB}, 5')
    e(f's_add_u32 s{S_OB}, s{S_OB}, s{S_H}')
    e(f's_lshl_b32 s{S_OB}, s{S_OB}, 13')
    e(f's_mul_i32 s{S_XB}, s{S_XB}, 40960')
    e(f's_lshl_b32 s{S_XL}, s{S_WAVE}, 13')
    e(f's_add_u32 s{S_XL}, s{S_XL}, 16384')
    def xload(s):
        r = []
        r.append(f's_lshl_b32 s{S_T0}, s{S_KX}, 7')
        r.append(f's_add_u32 s{S_T0}, s{S_T0}, s{S_XB}')
        for it in range(2):
            r.append(f's_add_u32 m0, s{S_XL}, {region(s) + 4096*it}')
            r.append(f's_add_u32 s{S_T1}, s{S_T0}, {491520*it}')
            for i in range(4):
                r.append(f'buffer_load_dwordx4 v{V_DMA+i}, {sr(S_X,4)}, s{S_T1} offen offset:{1024*i} {o.w_flags} lds')
        r.append(f's_add_u32 s{S_KX}, s{S_KX}, 1')
        r.append(f's_cmp_eq_u32 s{S_KX}, 10')
        r.append(f's_cselect_b32 s{S_KX}, 0, s{S_KX}')
        return r
    for s in range(3):
        for i in xload(s): e(i)
    e(f'v_lshrrev_b32 v{V_T0}, 5, v{L}')
    e(f'v_bfe_u32 v{V_T1}, v{L}, 2, 2')
    e(f'v_lshl_add_u32 v{V_T2}, v{V_T0}, 3, v{V_T1}')
    e(f'v_lshlrev_b32 v{V_T2}, 8, v{V_T2}')
    e(f'v_lshl_add_u32 v{V_T2}, v{V_T1}, 6, v{V_T2}')
    e(f'v_bfe_u32 v{V_T3}, v{L}, 4, 1')
    e(f'v_lshl_add_u32 v{V_T2}, v{V_T3}, 5, v{V_T2}')
    e(f'v_and_b32 v{V_T3}, 1, v{L}')
    e(f'v_lshl_add_u32 v{V_T2}, v{V_T3}, 4, v{V_T2}')
    e(f'v_bfe_u32 v{V_T3}, v{L}, 1, 1')
    e(f'v_lshl_add_u32 v{V_T2}, v{V_T3}, 3, v{V_T2}')
    for t in range(4):
        e(f'v_xor_b32 v{VA+t}, {64*t}, v{V_T2}')
        e(f'v_add_u32 v{VA+t}, {region(0)}, v{VA+t}')
    e(f'v_and_b32 v{V_T1}, 31, v{L}')
    e(f'v_bfe_u32 v{V_T2}, v{L}, 1, 3')
    e(f'v_xor_b32 v{V_T2}, v{V_T2}, v{V_T0}')
    e(f'v_lshlrev_b32 v{V_T2}, 4, v{V_T2}')
    e(f'v_lshl_add_u32 v{V_T2}, v{V_T1}, 7, v{V_T2}')
    e(f's_add_u32 s{S_T0}, s{S_XL}, {region(0)}')
    for s4 in range(4):
        e(f'v_xor_b32 v{VB+s4}, {32*s4}, v{V_T2}')
        e(f'v_add_u32 v{VB+s4}, s{S_T0}, v{VB+s4}')
    stamp(e, o, 0)
    def reads(s4, buf):
        r = []
        for it in range(2):
            r.append(f'ds_read_b128 {vr(BF[buf]+4*it,4)}, v{VB+s4} offset:{4096*it}')
        for t in range(4):
            for u in range(2):
                r.append(f'ds_read_b64_tr_b16 {vr(AF[buf]+4*t+2*u,2)}, v{VA+t} offset:{(16*s4+4*u)*256}')
        return r
    def mf(buf, first):
        r = []
        for t in range(4):
            for it in range(2):
                d = vr(ACC[it] + 16 * t, 16)
                r.append(mfma(d, vr(AF[buf] + 4 * t, 4), vr(BF[buf] + 4 * it, 4), '0' if first else d))
        return r
    nst = 1 if o.stamps else 0
    e(f's_waitcnt vmcnt({16 + nst})')
    e('s_barrier')
    for i in reads(0, 0): e(i)
    step = 0
    for s in range(10):
        for s4 in range(4):
            buf = step & 1
            m = mf(buf, step == 0)
            if s4 < 3:
                e('s_waitcnt lgkmcnt(0)')
                interleave(e, m, reads(s4 + 1, buf ^ 1))
            else:
                e('s_waitcnt lgkmcnt(0)')
                fill = []
                if s < 9:
                    d = region(s + 1) - region(s)
                    for r in range(8): e(f'v_add_u32 v{VA+r}, {d}, v{VA+r}' if d > 0 else f'v_subrev_u32 v{VA+r}, {-d}, v{VA+r}')
                    if s + 3 <= 9:
                        for i in xload(s + 3): e(i)
                    outstanding = min(s + 3, 9) - (s + 1)
                    e(f's_waitcnt vmcnt({8*outstanding})')
                    e('s_barrier')
                    interleave(e, m, reads(0, buf ^ 1))
                else:
                    e('s_barrier')
                    for x in m: e(x)
            step += 1
    e(f'v_lshrrev_b32 v{V_T0}, 5, v{L}')
    e(f'v_and_b32 v{V_T1}, 31, v{L}')
    e(f'v_and_b32 v{V_T2}, 15, v{L}')
    e(f'v_xor_b32 v{V_T2}, v{V_T2}, v{V_T0}')
    e(f'v_lshlrev_b32 v{V_T2}, 4, v{V_T2}')
    e(f'v_lshl_add_u32 v{V_T2}, v{V_T1}, 8, v{V_T2}')
    for s in range(8):
        e(f'v_xor_b32 v{V_KA+s}, {32*s}, v{V_T2}')
        e(f'v_add_u32 v{V_KA+s}, {8*SLOT}, v{V_KA+s}')
    e(f'v_bfe_u32 v{V_T1}, v{L}, 2, 2')
    e(f'v_lshl_add_u32 v{V_T2}, v{V_T0}, 2, v{V_T1}')
    e(f'v_lshlrev_b32 v{V_T2}, 8, v{V_T2}')
    e(f'v_lshl_add_u32 v{V_T2}, v{V_T1}, 6, v{V_T2}')
    e(f'v_bfe_u32 v{V_T3}, v{L}, 4, 1')
    e(f'v_lshl_add_u32 v{V_T2}, v{V_T3}, 5, v{V_T2}')
    e(f'v_and_b32 v{V_T3}, 3, v{L}')
    e(f'v_lshl_add_u32 v{V_T2}, v{V_T3}, 3, v{V_T2}')
    for t in range(4):
        e(f'v_xor_b32 v{V_VA+t}, {64*t}, v{V_T2}')
    e(f'v_lshlrev_b32 v{V_OST}, 4, v{L}')
    c = math.log2(math.e) / math.sqrt(128.0)
    import struct
    e(f's_mov_b32 s{S_C}, {hex(struct.unpack("<I", struct.pack("<f", c))[0])}')
    e('s_nop 7')
    for it, dst in ((0, V_Q), (1, V_Q2)):
        for i in range(32):
            a = ACC[it] + 2 * i
            e(f'v_mul_f32 v{a}, s{S_C}, v{a}')
            e(f'v_mul_f32 v{a+1}, s{S_C}, v{a+1}')
            e(f'v_cvt_pk_bf16_f32 v{dst+i}, v{a}, v{a+1}')

def k_reads(half):
    return [f'ds_read_b128 {vr(V_KF+4*s,4)}, v{V_KA+s} offset:{8192*half}' for s in range(8)]
def v_reads(half):
    r = []
    for jj in range(2):
        for t in range(4):
            for u in range(2):
                r.append(f'ds_read_b64_tr_b16 {vr(V_VF+16*jj+4*t+2*u,2)}, v{V_VA+t} offset:{(32*half+16*jj+8*u)*256}')
    return r
def qk(S):
    return [mfma(vr(S, 16), vr(V_KF + 4 * s, 4), vr(V_Q + 4 * s, 4), vr(V_NEGM, 16) if s == 0 else vr(S, 16)) for s in range(8)]
def pv():
    return [mfma(ar(16 * t, 16), vr(V_VF + 16 * jj + 4 * t, 4), vr(V_P + 4 * jj, 4), ar(16 * t, 16)) for jj in range(2) for t in range(4)]
def maxes(S):
    r = [f'v_max3_f32 v{V_MX}, v{S}, v{S+1}, v{S+2}', f'v_max3_f32 v{V_D}, v{S+3}, v{S+4}, v{S+5}']
    r += [f'v_max3_f32 v{V_MX}, v{V_MX}, v{S+6}, v{S+7}', f'v_max3_f32 v{V_D}, v{V_D}, v{S+8}, v{S+9}']
    r += [f'v_max3_f32 v{V_MX}, v{V_MX}, v{S+10}, v{S+11}', f'v_max3_f32 v{V_D}, v{V_D}, v{S+12}, v{S+13}']
    r += [f'v_max3_f32 v{V_MX}, v{V_MX}, v{S+14}, v{S+15}', f'v_max_f32 v{V_MX}, v{V_MX}, v{V_D}']
    r += [f'v_cmp_lt_f32 vcc, s{S_THR}, v{V_MX}']
    return r

def half_tick(e, Snew, Sold, vhalf, khalf, extra_v=(), extra_k=()):
    ex = lambda i: f'v_exp_f32 v{Sold+i}, v{Sold+i}'
    cv = lambda i: f'v_cvt_pk_bf16_f32 v{V_P+i}, v{Sold+2*i}, v{Sold+2*i+1}'
    m = qk(Snew) + pv()
    m[8] = ['s_waitcnt lgkmcnt(0)', m[8]]
    fill = v_reads(vhalf) + [ex(i) for i in range(8)] + list(extra_v) + [cv(i) for i in range(4)] + [ex(i) for i in range(8, 12)]
    fill += [('M', 8), ('A', 8)] + k_reads(khalf) + [ex(i) for i in range(12, 16)] + [f'v_add_f32 v{V_L}, v{V_L}, v{Sold}']
    fill += [cv(i) for i in range(4, 8)] + [f'v_add_f32 v{V_L+(i&3)}, v{V_L+(i&3)}, v{Sold+i}' for i in (1, 2)]
    fill += [('M', 12)] + [f'v_add_f32 v{V_L+(i&3)}, v{V_L+(i&3)}, v{Sold+i}' for i in range(3, 16)]
    fill += list(extra_k) + maxes(Snew)
    e('s_waitcnt lgkmcnt(0)')
    interleave(e, m, fill)

def rare(e, S, back):
    e('s_nop 7')
    e(f'v_mov_b32 v{V_T0}, v{V_MX}')
    e('s_nop 1')
    e(f'v_permlane32_swap_b32 v{V_T0}, v{V_MX}')
    e('s_nop 1')
    e(f'v_max_f32 v{V_D}, v{V_T0}, v{V_MX}')
    e(f'v_max_f32 v{V_D}, s{S_FLOOR}, v{V_D}')
    e(f'v_sub_f32 v{V_T0}, 0, v{V_D}')
    e(f'v_min_f32 v{V_T0}, 0, v{V_T0}')
    e(f'v_exp_f32 v{V_T0}, v{V_T0}')
    for i in range(16): e(f'v_sub_f32 v{S+i}, v{S+i}, v{V_D}')
    for i in range(16): e(f'v_sub_f32 v{V_NEGM+i}, v{V_NEGM+i}, v{V_D}')
    for i in range(4): e(f'v_mul_f32 v{V_L+i}, v{V_L+i}, v{V_T0}')
    for i in range(0, 64, 4):
        for j in range(4): e(f'v_accvgpr_read_b32 v{V_TMP+j}, a{i+j}')
        for j in range(4): e(f'v_mul_f32 v{V_TMP+j}, v{V_TMP+j}, v{V_T0}')
        for j in range(4): e(f'v_accvgpr_write_b32 a{i+j}, v{V_TMP+j}')
    e(f's_mov_b32 s{S_THR}, 0x41000000')
    e(f's_mov_b32 s{S_FLOOR}, 0')
    e('s_nop 1')
    e(f's_branch {back}')

def phase_b(e, o):
    for i in range(64): e(f'v_accvgpr_write_b32 a{i}, 0')
    for i in range(16): e(f'v_mov_b32 v{V_NEGM+i}, 0')
    for i in range(4): e(f'v_mov_b32 v{V_L+i}, 0')
    e(f's_mov_b32 s{S_THR}, 0xff800000')
    e(f's_mov_b32 s{S_FLOOR}, 0xff800000')
    e(f's_mov_b32 s{S_TICK}, 0')
    e(f's_mov_b32 s{S_KOFF}, {9*SLOT}')
    e(f's_mov_b32 s{S_VOFF}, 0')
    stamp(e, o, 1)
    for i in k_reads(0): e(i)
    e('s_waitcnt lgkmcnt(0)')
    for i in qk(V_SA): e(i)
    for i in k_reads(1): e(i)
    for s in range(8): e(f'v_add_u32 v{V_KA+s}, {SLOT}, v{V_KA+s}')
    e('s_nop 7')
    for i in maxes(V_SA): e(i)
    e('s_branch L_rare_a')
    e.lab('L_tick')
    e('s_waitcnt lgkmcnt(0)')
    e('s_barrier')
    half_tick(e, V_SB, V_SA, 0, 0)
    e('s_cbranch_vccnz L_rare_b')
    e.lab('L_back_b')
    e(f's_cmp_eq_u32 s{S_TICK}, 15')
    e('s_cbranch_scc1 L_switch')
    e.lab('L_back_sw')
    def adv(soff, tmp, base, n):
        r = [f's_add_u32 s{tmp}, s{soff}, {2*SLOT}', f's_cmp_ge_u32 s{tmp}, {10*SLOT}',
             f's_cselect_b32 s{tmp}, {10*SLOT}, 0', f's_sub_u32 s{tmp}, {2*SLOT}, s{tmp}', f's_add_u32 s{soff}, s{soff}, s{tmp}']
        r += [f'v_add_u32 v{base+i}, s{tmp}, v{base+i}' for i in range(n)]
        return r
    half_tick(e, V_SA, V_SB, 1, 1, extra_v=adv(S_VOFF, S_T0, V_VA, 4), extra_k=adv(S_KOFF, S_T1, V_KA, 8))
    e('s_waitcnt vmcnt(0)')
    e(f's_and_b32 s{S_T0}, s{S_TICK}, 15')
    e(f's_add_u32 s{S_TICK}, s{S_TICK}, 1')
    e(f's_cmp_eq_u32 s{S_T0}, 15')
    e('s_cbranch_scc1 L_epi')
    e('s_cbranch_vccz L_tick')
    e.lab('L_rare_a')
    rare(e, V_SA, 'L_tick')
    e.lab('L_rare_b')
    rare(e, V_SB, 'L_back_b')
    e.lab('L_switch')
    for i in range(32): e(f'v_mov_b32 v{V_Q+i}, v{V_Q2+i}')
    for i in range(16): e(f'v_mov_b32 v{V_NEGM+i}, 0')
    e('s_nop 1')
    e('s_branch L_back_sw')
    e.lab('L_epi')
    e(f'v_add_f32 v{V_L}, v{V_L}, v{V_L+1}')
    e(f'v_add_f32 v{V_L+2}, v{V_L+2}, v{V_L+3}')
    e(f'v_add_f32 v{V_L}, v{V_L}, v{V_L+2}')
    e(f'v_mov_b32 v{V_T0}, v{V_L}')
    e('s_nop 1')
    e(f'v_permlane32_swap_b32 v{V_T0}, v{V_L}')
    e('s_nop 1')
    e(f'v_add_f32 v{V_L}, v{V_L}, v{V_T0}')
    e(f'v_rcp_f32 v{V_T0}, v{V_L}')
    e('s_nop 7')
    for f in range(8):
        t = V_VF + 8 * (f & 3)
        for j in range(8): e(f'v_accvgpr_read_b32 v{t+j}, a{8*f+j}')
        for j in range(8): e(f'v_mul_f32 v{t+j}, v{t+j}, v{V_T0}')
        d = V_TMP + 4 * (f & 1)
        for j in range(4): e(f'v_cvt_pk_bf16_f32 v{d+j}, v{t+2*j}, v{t+2*j+1}')
        fl = 'sc1' if o.fused else ''
        if f == 4: e(f's_add_u32 s{S_OB}, s{S_OB}, 4096')
        e(f'buffer_store_dwordx4 {vr(d,4)}, v{V_OST}, {sr(S_WS,4)}, s{S_OB} offen offset:{1024*(f&3)} {fl}')
    e(f's_add_u32 s{S_OB}, s{S_OB}, {12*32*8192 - 4096}')
    e(f's_cmp_eq_u32 s{S_TICK}, 32')
    e('s_cbranch_scc1 L_fin')
    for i in range(64): e(f'v_accvgpr_write_b32 a{i}, 0')
    for i in range(4): e(f'v_mov_b32 v{V_L+i}, 0')
    e(f's_mov_b32 s{S_FLOOR}, 0xff800000')
    stamp(e, o, 2)
    e('s_branch L_rare_a')
    e.lab('L_fin')
    stamp(e, o, 3)
    e('s_waitcnt vmcnt(0) lgkmcnt(0)')
    e('s_barrier')

def outproj(e, o):
    L = V_LANE
    VW = 12
    VR = 16
    VO = 18
    AF = [32, 64]
    OF = 96
    NB = 5
    S_WB, S_LB, S_O1 = S_KX, S_XB, S_XL
    e(f's_cmp_eq_u32 s{S_NT}, 15')
    e('s_cbranch_scc1 L_exit' + e.sfx)
    e(f'v_lshrrev_b32 v{V_T0}, 3, v{L}')
    e(f'v_mul_u32_u24 v{V_T0}, 1280, v{V_T0}')
    e(f'v_bfe_u32 v{V_T1}, v{L}, 4, 1')
    e(f'v_lshlrev_b32 v{V_T1}, 2, v{V_T1}')
    e(f'v_and_b32 v{V_T2}, 7, v{L}')
    e(f'v_xor_b32 v{V_T1}, v{V_T1}, v{V_T2}')
    e(f'v_lshl_add_u32 v{VW}, v{V_T1}, 4, v{V_T0}')
    for i in range(1, 4): e(f'v_add_u32 v{VW+i}, {(10240-1024)*i}, v{VW}')
    e(f's_mul_i32 s{S_WB}, s{S_WAVE}, {1024*1280}')
    e(f's_lshl_b32 s{S_T0}, s{S_NT}, 7')
    e(f's_add_u32 s{S_WB}, s{S_WB}, s{S_T0}')
    e(f's_mul_i32 s{S_LB}, s{S_WAVE}, 40960')
    e(f's_mul_i32 s{S_O1}, s{S_BR}, 24')
    e(f's_add_u32 s{S_O1}, s{S_O1}, s{S_QT}')
    e(f's_lshl_b32 s{S_O1}, s{S_O1}, 2')
    e(f's_add_u32 s{S_O1}, s{S_O1}, s{S_WAVE}')
    e(f's_lshl_b32 s{S_O1}, s{S_O1}, 16')
    e(f'v_lshlrev_b32 v{VO}, 4, v{L}')
    vm = Vm(e)
    def wo(c):
        for g in range(2):
            e(f's_add_u32 m0, s{S_LB}, {(c % 5)*8192 + 4096*g}')
            e(f's_add_u32 s{S_T1}, s{S_WB}, {(64*c + 32*g)*1280}')
            for i in range(4):
                e(f'buffer_load_dwordx4 v{VW+i}, {sr(S_WO,4)}, s{S_T1} offen offset:{1024*i} {o.w_flags} lds')
        vm.add(f'w{c}', 8)
    def of(c):
        fl = 'sc1' if o.fused else ''
        for rnd in range(2):
            e(f's_add_u32 s{S_T1}, s{S_O1}, {c*4096 + rnd*12*32*8192}')
            for s4 in range(4):
                d = OF + 32 * (c % NB) + 16 * rnd + 4 * s4
                e(f'buffer_load_dwordx4 {vr(d,4)}, v{VO}, {sr(S_WS,4)}, s{S_T1} offen offset:{1024*s4} {fl}')
        vm.add(f'o{c}', 8)
    for c in range(3): wo(c); of(c)
    wo(3)
    e(f'v_lshrrev_b32 v{V_T0}, 5, v{L}')
    e(f'v_bfe_u32 v{V_T1}, v{L}, 2, 2')
    e(f'v_lshl_add_u32 v{V_T2}, v{V_T0}, 2, v{V_T1}')
    e(f'v_lshlrev_b32 v{V_T2}, 7, v{V_T2}')
    e(f'v_bfe_u32 v{V_T3}, v{L}, 3, 1')
    e(f'v_lshl_add_u32 v{V_T2}, v{V_T3}, 6, v{V_T2}')
    e(f'v_bfe_u32 v{V_T3}, v{L}, 4, 1')
    e(f'v_lshl_add_u32 v{V_T2}, v{V_T3}, 5, v{V_T2}')
    e(f'v_and_b32 v{V_T3}, 3, v{L}')
    e(f'v_lshl_add_u32 v{V_T2}, v{V_T3}, 3, v{V_T2}')
    e(f'v_add_u32 v{VR}, s{S_LB}, v{V_T2}')
    e(f'v_xor_b32 v{V_T2}, 64, v{V_T2}')
    e(f'v_add_u32 v{VR+1}, s{S_LB}, v{V_T2}')
    def reads(c):
        r = []
        for s4 in range(4):
            for nt in range(2):
                for u in range(2):
                    r.append(f'ds_read_b64_tr_b16 {vr(AF[c&1]+8*s4+4*nt+2*u,2)}, v{VR+nt} offset:{(c%5)*8192+(16*s4+8*u)*128}')
        return r
    vm.wait('w0')
    for i in reads(0): e(i)
    for c in range(16):
        e('s_waitcnt lgkmcnt(0)')
        if c + 1 < 16: vm.wait(f'w{c+1}')
        vm.wait(f'o{c}')
        if c + 3 < 16: of(c + 3)
        if c + 4 < 16: wo(c + 4)
        assert vm.out() <= 63
        m = []
        for s4 in range(4):
            for nt in range(2):
                for rnd in range(2):
                    d = ar(32 * rnd + 16 * nt, 16)
                    m.append(mfma(d, vr(AF[c & 1] + 8 * s4 + 4 * nt, 4), vr(OF + 32 * (c % NB) + 16 * rnd + 4 * s4, 4), '0' if (c == 0 and s4 == 0) else d))
        interleave(e, m, reads(c + 1) if c + 1 < 16 else ['s_nop 0'])
    stamp(e, o, 5)
    e(f'v_and_b32 v{V_T0}, 31, v{L}')
    e(f'v_mul_u32_u24 v{V_T0}, 272, v{V_T0}')
    e(f'v_lshrrev_b32 v{V_T1}, 5, v{L}')
    e(f'v_lshl_add_u32 v{V_T0}, v{V_T1}, 4, v{V_T0}')
    e(f'v_add_u32 v{V_T0}, s{S_LB}, v{V_T0}')
    e('s_nop 7')
    e('s_nop 3')
    for rnd in range(2):
        for nt in range(2):
            for g in range(4):
                e(f'ds_write_b128 v{V_T0}, {ar(32*rnd+16*nt+4*g,4)} offset:{rnd*8704 + 128*nt + 32*g}')
    e(f's_lshr_b32 s{S_T0}, s{S_WAVE}, 1')
    e(f's_and_b32 s{S_T1}, s{S_WAVE}, 1')
    e(f's_mul_i32 s{S_T2}, s{S_T0}, 8704')
    e(f's_mul_i32 s{S_T3}, s{S_T1}, {16*272}')
    e(f's_add_u32 s{S_T2}, s{S_T2}, s{S_T3}')
    e(f'v_lshrrev_b32 v{V_T1}, 3, v{L}')
    e(f'v_mul_u32_u24 v{V_T2}, 272, v{V_T1}')
    e(f'v_and_b32 v{V_T3}, 7, v{L}')
    e(f'v_lshl_add_u32 v{V_T2}, v{V_T3}, 5, v{V_T2}')
    e(f'v_add_u32 v{V_T2}, s{S_T2}, v{V_T2}')
    e(f'v_add_u32 v{V_MX}, {2*40960}, v{V_T2}')
    e(f's_lshl_b32 s{S_T2}, s{S_QT}, 5')
    e(f's_mul_i32 s{S_T0}, s{S_T0}, 384')
    e(f's_add_u32 s{S_T2}, s{S_T2}, s{S_T0}')
    e(f's_lshl_b32 s{S_T1}, s{S_T1}, 4')
    e(f's_add_u32 s{S_T2}, s{S_T2}, s{S_T1}')
    e(f's_mul_i32 s{S_T2}, s{S_T2}, 2560')
    e(f's_mul_i32 s{S_T0}, s{S_BR}, 1280')
    e(f's_add_u32 s{S_T2}, s{S_T2}, s{S_T0}')
    e(f's_lshl_b32 s{S_T0}, s{S_NT}, 7')
    e(f's_add_u32 s{S_T2}, s{S_T2}, s{S_T0}')
    e(f'v_mul_u32_u24 v{V_T1}, 2560, v{V_T1}')
    e(f'v_lshl_add_u32 v{V_T1}, v{V_T3}, 4, v{V_T1}')
    e('s_waitcnt lgkmcnt(0)')
    e('s_barrier')
    for i in range(2):
        for p in range(4):
            base = V_T2 if p < 2 else V_MX
            for hh in range(2):
                e(f'ds_read_b128 {vr(32+32*i+8*p+4*hh,4)}, v{base} offset:{(p&1)*40960 + i*8*272 + 16*hh}')
    e('s_waitcnt lgkmcnt(0)')
    for i in range(2):
        b = 32 + 32 * i
        for j in range(8):
            e(f'v_add_f32 v{b+j}, v{b+j}, v{b+8+j}')
            e(f'v_add_f32 v{b+16+j}, v{b+16+j}, v{b+24+j}')
        for j in range(8): e(f'v_add_f32 v{b+j}, v{b+j}, v{b+16+j}')
        for j in range(4): e(f'v_cvt_pk_bf16_f32 v{b+8+j}, v{b+2*j}, v{b+2*j+1}')
        if i: e(f's_add_u32 s{S_T2}, s{S_T2}, {8*2560}')
        e(f'buffer_store_dwordx4 {vr(b+8,4)}, v{V_T1}, {sr(S_OUT,4)}, s{S_T2} offen')
    stamp(e, o, 6)

KD = '''.amdhsa_kernel {n}
  .amdhsa_next_free_vgpr 512
  .amdhsa_next_free_sgpr 102
  .amdhsa_accum_offset 256
  .amdhsa_group_segment_fixed_size 0
  .amdhsa_kernarg_size 104
  .amdhsa_user_sgpr_count 2
  .amdhsa_user_sgpr_kernarg_segment_ptr 1
  .amdhsa_system_sgpr_workgroup_id_x 1
.end_amdhsa_kernel
'''

def gen(o):
    e = Em()
    k1 = NAME + '_kernel'; k2 = 'oproj_kernel'
    if o.fused:
        e.raw('; @launch grid=(256,1,1) block=(256,1,1) lds=163840')
    else:
        e.raw(f'; @launch kernel={k1} grid=(256,1,1) block=(256,1,1) lds=163840')
        e.raw(f'; @launch kernel={k2} grid=(256,1,1) block=(256,1,1) lds=163840')
    e.raw('.amdgcn_target "amdgcn-amd-amdhsa--gfx950"')
    e.raw('.text')
    e.raw(f'.globl {k1}\n.p2align 8\n.type {k1},@function')
    e.lab(k1)
    e.sfx = ''; e.stoff = 0
    prologue(e, o, 256)
    e(f's_cmp_eq_u32 s{S_WAVE}, 3')
    e('s_cbranch_scc1 L_loader')
    phase_a(e, o)
    phase_b(e, o)
    e('s_branch L_join')
    e.lab('L_loader')
    loader(e, o)
    e.lab('L_join')
    e.lab('L_exit')
    e('s_endpgm')
    if not o.fused:
        e.raw(f'.globl {k2}\n.p2align 8\n.type {k2},@function')
        e.lab(k2)
        e.sfx = '2'
        prologue(e, o, 256)
        stamp(e, o, 4)
        outproj(e, o)
        e.lab('L_exit2')
        e('s_endpgm')
    e.raw('.section .rodata,"a"\n.p2align 6')
    e.raw(KD.format(n=k1))
    if not o.fused:
        e.raw('.p2align 6')
        e.raw(KD.format(n=k2))
    return e.text()

if __name__ == '__main__':
    o = Opt()
    out = sys.argv[1]
    for a in sys.argv[2:]:
        k, v = a.split('=', 1)
        cur = getattr(o, k)
        setattr(o, k, (v == '1') if isinstance(cur, bool) else int(v) if isinstance(cur, int) else v)
    open(out, 'w').write(gen(o))
```

```python
import sys, math, struct
NAME = 'concat_heads__mha_block_cached__mha_block_cached__near_ridge'

class Opt:
    stamps = False
    kv_flags = 'nt'
    w_flags = ''
    wo_flags = ''
    ost_flags = 'sc1'
    old_flags = 'sc1'
    look = 7
    rot = 3
    tickst = 0
    no_w = False
    no_w3 = False
    psleep = 4
    thr = 32
    blk = 0

WS_FLAGS = 12582912
WS_STAMP = 13631488
SLOT = 16384
STAGE = 40960
RND = 12 * 32 * 8192

S_X, S_K, S_V, S_WQ, S_WO, S_OUT, S_WS = 4, 8, 12, 16, 20, 24, 28
S_DBG = 32
S_WAVE, S_BR, S_H, S_BL = 34, 35, 36, 37
S_T0, S_T1, S_T2, S_T3 = 38, 39, 40, 41
S_KX, S_XB, S_XL, S_KVB, S_TICK = 42, 43, 44, 45, 46
S_KOFF, S_VOFF, S_THR, S_FLOOR, S_C, S_OB, S_WQB = 47, 48, 49, 50, 51, 52, 53
S_ST, S_STB, S_QT, S_NT = 54, 56, 57, 58
S_WOFF = 59
S_SAVE = 60
S_STEP, S_FL = 62, 63
S_KARG = 64
S_WOB, S_O1, S_QB, S_CNT, S_RHO, S_WC = 90, 91, 92, 93, 94, 95

V_LANE = 1
V_T0, V_T1, V_T2, V_T3 = 2, 3, 4, 5
V_L, V_MX, V_D = 6, 10, 11
V_DMA = 12
V_KA, V_VA, V_OST, V_WA = 16, 24, 28, 29
V_NEGM = 32
V_SA, V_SB, V_P, V_TMP = 48, 64, 80, 88
V_Q, V_KF, V_VF, V_Q2 = 96, 128, 160, 192

class Em:
    def __init__(self): self.L = []
    def __call__(self, s): self.L.append('    ' + s)
    def lab(self, s): self.L.append(s + ':')
    def raw(self, s): self.L.append(s)
    def many(self, l):
        for x in l: self(x)
    def text(self): return '\n'.join(self.L) + '\n'

def vr(b, n=1): return f'v{b}' if n == 1 else f'v[{b}:{b+n-1}]'
def ar(b, n=1): return f'a{b}' if n == 1 else f'a[{b}:{b+n-1}]'
def sr(b, n=1): return f's{b}' if n == 1 else f's[{b}:{b+n-1}]'
def mfma(d, a, b, c): return f'v_mfma_f32_32x32x16_bf16 {d}, {a}, {b}, {c}'
def hold(ci, off, n):
    return ar(64 + 32 * ci + off, n) if ci < 6 else vr(192 + 32 * (ci - 6) + off, n)

def cost(i):
    if i.startswith('v_exp') or i.startswith('v_rcp'): return 8
    if i.startswith('s_'): return 2
    return 4

def interleave(e, mf, fill):
    total = sum(cost(f) for f in fill if not isinstance(f, tuple))
    per = total / len(mf)
    fi = 0; acc = 0.0
    deadline = {}; items = []
    for f in fill:
        if isinstance(f, tuple):
            if f[0] == 'M': deadline[f[1]] = len(items)
            else: items.append(f)
        else: items.append(f)
    for k, m in enumerate(mf):
        need = deadline.get(k, 0)
        while fi < need:
            it = items[fi]; fi += 1
            if isinstance(it, tuple):
                assert it[1] < k, (it, k)
                continue
            e(it); acc += cost(it)
        if isinstance(m, (list, tuple)): e.many(m)
        else: e(m)
        target = per * (k + 1)
        while fi < len(items) and (acc < target - 1.0 or k == len(mf) - 1):
            it = items[fi]
            if isinstance(it, tuple):
                if it[1] > k: break
                fi += 1; continue
            e(it); acc += cost(it); fi += 1
    assert fi == len(items)

def gaps(e, mf, front, late=(), per=2, late_from=5):
    g = [[] for _ in mf]
    for i, f in enumerate(front): g[min(i // per, len(mf) - 1)].append(f)
    n = len(mf) - late_from
    for i, f in enumerate(late): g[late_from + (i * n) // len(late)].append(f)
    for m, x in zip(mf, g):
        e(m); e.many(x)

def stamp(e, o, idx, clk=False):
    if not o.stamps: return 0
    e(f's_memtime {sr(S_ST,2)}' if clk else f's_memrealtime {sr(S_ST,2)}')
    e('s_waitcnt lgkmcnt(0)')
    e(f'v_mov_b32 v{V_T0}, s{S_ST}')
    e(f'v_mov_b32 v{V_T1}, s{S_STB}')
    e('s_mov_b64 exec, 1')
    e(f'buffer_store_dword v{V_T0}, v{V_T1}, {sr(S_WS,4)}, 0 offen offset:{4*idx}')
    e('s_mov_b64 exec, -1')
    return 1

class Vm:
    def __init__(self, e): self.e = e; self.q = []
    def out(self): return sum(c for _, c in self.q)
    def has(self, name): return name in [n for n, _ in self.q]
    def wait(self, name):
        names = [n for n, _ in self.q]
        if name not in names: return
        i = names.index(name)
        rest = sum(c for _, c in self.q[i + 1:])
        assert rest <= 63
        self.e(f's_waitcnt vmcnt({rest})')
        self.q = self.q[i + 1:]
    def room(self, c):
        while self.out() + c > 63: self.wait(self.q[0][0])
    def add(self, name, c):
        self.q.append((name, c)); assert self.out() <= 63, self.q
    def stamp(self, o, idx, clk=False):
        if o.stamps:
            self.room(1); stamp(self.e, o, idx, clk); self.add(f'st{idx}', 1)

def prologue(e, o):
    e('s_cmp_ge_u32 s2, 256')
    e('s_cbranch_scc1 L_exit')
    e(f's_load_dwordx16 {sr(S_KARG,16)}, s[0:1], 0')
    e(f's_load_dwordx8 {sr(S_KARG+16,8)}, s[0:1], 64')
    e(f's_load_dwordx2 {sr(S_KARG+24,2)}, s[0:1], 96')
    e(f'v_lshrrev_b32 v{V_T0}, 6, v0')
    e(f'v_and_b32 v{V_LANE}, 63, v0')
    e(f'v_readfirstlane_b32 s{S_WAVE}, v{V_T0}')
    e(f's_and_b32 s{S_T0}, s2, 7')
    e(f's_lshr_b32 s{S_T1}, s2, 3')
    e(f's_lshr_b32 s{S_BR}, s{S_T0}, 2')
    e(f's_and_b32 s{S_T2}, s{S_T0}, 3')
    e(f's_lshl_b32 s{S_H}, s{S_T2}, 3')
    e(f's_and_b32 s{S_T3}, s{S_T1}, 7')
    e(f's_add_u32 s{S_H}, s{S_H}, s{S_T3}')
    e(f's_lshr_b32 s{S_BL}, s{S_T1}, 3')
    e(f's_mul_i32 s{S_KX}, s{S_BL}, 5')
    e(f's_add_u32 s{S_KX}, s{S_KX}, 1')
    e(f's_lshr_b32 s{S_KX}, s{S_KX}, 1')
    e(f's_add_u32 s{S_KX}, s{S_KX}, s{S_T3}')
    e(f's_cmp_ge_u32 s{S_KX}, 10')
    e(f's_cselect_b32 s{S_T3}, 10, 0')
    e(f's_sub_u32 s{S_KX}, s{S_KX}, s{S_T3}')
    if o.blk == 0:
        e(f's_mul_i32 s{S_QT}, s{S_T1}, 13')
        e(f's_lshr_b32 s{S_QT}, s{S_QT}, 6')
        e(f's_mul_i32 s{S_T3}, s{S_QT}, 5')
        e(f's_sub_u32 s{S_NT}, s{S_T1}, s{S_T3}')
        e(f's_and_b32 s{S_T3}, s{S_T2}, 1')
        e(f's_mul_i32 s{S_T3}, s{S_T3}, 5')
        e(f's_add_u32 s{S_NT}, s{S_NT}, s{S_T3}')
        e(f's_lshr_b32 s{S_T3}, s{S_T2}, 1')
        e(f's_mul_i32 s{S_T3}, s{S_T3}, 6')
        e(f's_add_u32 s{S_QT}, s{S_QT}, s{S_T3}')
    elif o.blk == 1:
        e(f's_mul_i32 s{S_QT}, s{S_T1}, 26')
        e(f's_lshr_b32 s{S_QT}, s{S_QT}, 8')
        e(f's_mul_i32 s{S_T3}, s{S_QT}, 10')
        e(f's_sub_u32 s{S_NT}, s{S_T1}, s{S_T3}')
        e(f's_mul_i32 s{S_T3}, s{S_T2}, 3')
        e(f's_add_u32 s{S_QT}, s{S_QT}, s{S_T3}')
    else:
        e(f's_mul_i32 s{S_T3}, s{S_T2}, 30')
        e(f's_add_u32 s{S_T3}, s{S_T3}, s{S_T1}')
        e(f's_mul_i32 s{S_NT}, s{S_T3}, 171')
        e(f's_lshr_b32 s{S_NT}, s{S_NT}, 11')
        e(f's_mul_i32 s{S_QT}, s{S_NT}, 12')
        e(f's_sub_u32 s{S_QT}, s{S_T3}, s{S_QT}')
    e(f's_cmp_ge_u32 s{S_T1}, 30')
    e(f's_cselect_b32 s{S_NT}, 15, s{S_NT}')
    e(f's_cselect_b32 s{S_QT}, 0, s{S_QT}')
    e(f's_mul_i32 s{S_QB}, s{S_QT}, 11')
    e(f's_lshr_b32 s{S_QB}, s{S_QB}, 5')
    e(f's_lshl_b32 s{S_STB}, s2, 2')
    e(f's_add_u32 s{S_STB}, s{S_STB}, s{S_WAVE}')
    e(f's_lshl_b32 s{S_STB}, s{S_STB}, 8')
    e(f's_add_u32 s{S_STB}, s{S_STB}, {WS_STAMP}')
    e('s_waitcnt lgkmcnt(0)')
    e(f's_cmp_eq_u32 s{S_BR}, 0')
    for srd, i, size in ((S_X, 0, 983040), (S_K, 1, 1 << 26), (S_V, 2, 1 << 26), (S_WQ, 3, 5242880), (S_WO, 4, 5242880)):
        e(f's_cselect_b64 {sr(srd,2)}, {sr(S_KARG+2*i,2)}, {sr(S_KARG+10+2*i,2)}')
        e(f's_mov_b32 s{srd+2}, {size}')
        e(f's_mov_b32 s{srd+3}, 0x20000')
    for srd, i, size in ((S_OUT, 10, 1966080), (S_WS, 12, 16777216)):
        e(f's_mov_b64 {sr(srd,2)}, {sr(S_KARG+2*i,2)}')
        e(f's_mov_b32 s{srd+2}, {size}')
        e(f's_mov_b32 s{srd+3}, 0x20000')
    e(f's_mov_b64 {sr(S_DBG,2)}, {sr(S_KARG+22,2)}')
    for srd in (S_X, S_K, S_V, S_WQ, S_WO, S_OUT, S_WS):
        e(f's_and_b32 s{srd+1}, s{srd+1}, 0xffff')
    e(f's_cmp_eq_u32 s{S_NT}, 15')
    e(f's_cselect_b32 s{S_WO+2}, 0, s{S_WO+2}')
    e(f's_lshl_b32 s{S_WOB}, s{S_NT}, 7')
    e(f's_cmp_ge_u32 s{S_NT}, 5')
    e(f's_cselect_b32 s{S_T0}, {5 if o.blk == 0 else 0}, 0')
    e(f's_sub_u32 s{S_RHO}, s{S_NT}, s{S_T0}')
    e(f's_mul_i32 s{S_RHO}, s{S_RHO}, {o.rot}')
    e(f's_and_b32 s{S_RHO}, s{S_RHO}, 15')
    e(f's_lshl_b32 s{S_XL}, s{S_WAVE}, 13')

RING = 32768
def reg_w(s): return (32768, 73728, 114688)[(s + 2) % 3]
def reg_x(s): return (49152, 90112, 0)[(s + 2) % 3]

SEQ = ['K0']
for k in range(32): SEQ += [f'K{k+1}', f'V{k}']
SEQ += [f'T{i}' for i in range(8)]
POS = {n: i for i, n in enumerate(SEQ)}
def slot(name): return (6 + POS[name]) % 8
def slot_addr(name): return RING + slot(name) * SLOT

def wo_dma(o, c, ldsbase_s, ldsoff, wob, vw, dyn=False):
    r = []
    if o.no_w and dyn: return ['s_nop 0']
    if dyn:
        r += [f's_mul_i32 s{S_T0}, s{S_WC}, {64*1280}', f's_add_u32 s{S_WC}, s{S_WC}, 1', f's_and_b32 s{S_WC}, s{S_WC}, 15']
    else:
        r += [f's_add_u32 s{S_T0}, s{S_RHO}, {c}', f's_and_b32 s{S_T0}, s{S_T0}, 15', f's_mul_i32 s{S_T0}, s{S_T0}, {64*1280}']
    r.append(f's_add_u32 s{S_T0}, s{S_T0}, {wob}')
    for g_ in range(2):
        r.append(f's_add_u32 m0, {ldsbase_s}, {ldsoff + 4096*g_}' if ldsbase_s else f's_mov_b32 m0, {ldsoff + 4096*g_}')
        r.append(f's_add_u32 s{S_T1}, s{S_T0}, {32*g_*1280}')
        for i in range(4):
            r.append(f'buffer_load_dwordx4 v{vw+i}, {sr(S_WO,4)}, s{S_T1} offen offset:{1024*i} {o.wo_flags} lds')
    return r

def wo_voffs(e, dst):
    L = V_LANE
    e(f'v_lshrrev_b32 v{V_T0}, 3, v{L}')
    e(f'v_mul_u32_u24 v{V_T0}, 1280, v{V_T0}')
    e(f'v_bfe_u32 v{V_T1}, v{L}, 4, 1')
    e(f'v_lshlrev_b32 v{V_T1}, 2, v{V_T1}')
    e(f'v_and_b32 v{V_T2}, 7, v{L}')
    e(f'v_xor_b32 v{V_T1}, v{V_T1}, v{V_T2}')
    e(f'v_lshl_add_u32 v{dst}, v{V_T1}, 4, v{V_T0}')
    for i in range(1, 4): e(f'v_add_u32 v{dst+i}, {(10240-1024)*i}, v{dst}')

def wo_lane_addr(e, dst):
    L = V_LANE
    e(f'v_lshrrev_b32 v{V_T0}, 5, v{L}')
    e(f'v_bfe_u32 v{V_T1}, v{L}, 2, 2')
    e(f'v_lshl_add_u32 v{dst}, v{V_T0}, 2, v{V_T1}')
    e(f'v_lshlrev_b32 v{dst}, 7, v{dst}')
    e(f'v_bfe_u32 v{V_T3}, v{L}, 3, 1')
    e(f'v_lshl_add_u32 v{dst}, v{V_T3}, 6, v{dst}')
    e(f'v_bfe_u32 v{V_T3}, v{L}, 4, 1')
    e(f'v_lshl_add_u32 v{dst}, v{V_T3}, 5, v{dst}')
    e(f'v_and_b32 v{V_T3}, 3, v{L}')
    e(f'v_lshl_add_u32 v{dst}, v{V_T3}, 3, v{dst}')

def wo_reads(dstf, a0, a1, off):
    r = []
    for s4 in range(4):
        for nt in range(2):
            for u in range(2):
                r.append(f'ds_read_b64_tr_b16 {dstf(8*s4+4*nt+2*u,2)}, v{(a0,a1)[nt]} offset:{off+(16*s4+8*u)*128}')
    return r

def poll(e, o, tag, load, cmpv):
    e(f's_mov_b32 s{S_CNT}, 0x400000')
    e.lab(f'L_poll_{tag}')
    e(load)
    e('s_waitcnt vmcnt(0)')
    e(f'v_and_b32 v{V_T2}, {cmpv}, v{V_T2}')
    e(f'v_cmp_eq_u32 vcc, {cmpv}, v{V_T2}')
    e('s_cmp_eq_u64 vcc, -1')
    e(f's_cbranch_scc1 L_polled_{tag}')
    e(f's_sleep {o.psleep}')
    e(f's_sub_u32 s{S_CNT}, s{S_CNT}, 1')
    e(f's_cmp_lg_u32 s{S_CNT}, 0')
    e(f's_cbranch_scc1 L_poll_{tag}')
    e.lab(f'L_polled_{tag}')

def loader(e, o):
    L = V_LANE
    VK, VV, VW, VWO, VF, VP = 24, 16, 20, 12, 17, 18
    vm = Vm(e)
    e(f'v_lshrrev_b32 v{V_T0}, 4, v{L}')
    e(f'v_and_b32 v{V_T1}, 15, v{L}')
    e(f'v_lshlrev_b32 v{V_T3}, 2, v{V_T0}')
    e(f'v_xor_b32 v{V_T3}, v{V_T3}, v{V_T1}')
    e(f'v_lshlrev_b32 v{V_T2}, 13, v{V_T0}')
    e(f'v_lshl_add_u32 v{VW}, v{V_T3}, 4, v{V_T2}')
    for i in range(1, 4): e(f'v_add_u32 v{VW+i}, {(32768-1024)*i}, v{VW}')
    e(f's_lshl_b32 s{S_WQB}, s{S_H}, 8')
    def wq(s):
        vm.room(16)
        e(f's_lshl_b32 s{S_T0}, s{S_KX}, 19')
        e(f's_add_u32 s{S_T0}, s{S_T0}, s{S_WQB}')
        for g in range(4):
            e(f's_mov_b32 m0, {reg_w(s) + 4096*g}')
            e(f's_add_u32 s{S_T1}, s{S_T0}, {g*4*32768}')
            for i in range(4):
                e(f'buffer_load_dwordx4 v{VW+i}, {sr(S_WQ,4)}, s{S_T1} offen offset:{1024*i} {o.w_flags} lds')
        e(f's_add_u32 s{S_KX}, s{S_KX}, 1')
        e(f's_cmp_eq_u32 s{S_KX}, 10')
        e(f's_cselect_b32 s{S_KX}, 0, s{S_KX}')
        vm.add(f'wq{s}', 16)
    wq(0); wq(1); wq(2)
    e(f'v_lshlrev_b32 v{V_T2}, 8, v{V_T0}')
    e(f'v_lshl_add_u32 v{VV}, v{V_T3}, 4, v{V_T2}')
    for i in range(4):
        e(f'v_add_u32 v{V_T3}, {4*i}, v{V_T0}')
        e(f'v_xor_b32 v{V_T3}, v{V_T3}, v{V_T1}')
        e(f'v_lshl_add_u32 v{VK+i}, v{V_T3}, 4, v{V_T2}')
    e(f's_lshl_b32 s{S_KVB}, s{S_BL}, 5')
    e(f's_add_u32 s{S_KVB}, s{S_KVB}, s{S_H}')
    e(f's_lshl_b32 s{S_KVB}, s{S_KVB}, 18')
    wo_voffs(e, VWO)
    wo_lane_addr(e, V_WA)
    e(f'v_add_u32 v{V_WA}, {3*8192}, v{V_WA}')
    e(f'v_xor_b32 v{V_WA+1}, 64, v{V_WA}')
    e(f'v_lshlrev_b32 v{V_OST}, 4, v{L}')
    e(f's_lshl_b32 s{S_T0}, s{S_BR}, 2')
    e(f's_add_u32 s{S_T1}, s{S_T0}, s{S_BL}')
    e(f's_lshl_b32 s{S_T1}, s{S_T1}, 5')
    e(f's_add_u32 s{S_T1}, s{S_T1}, s{S_H}')
    e(f'v_mov_b32 v{VF}, s{S_T1}')
    e(f's_add_u32 s{S_T0}, s{S_T0}, s{S_QB}')
    e(f's_lshl_b32 s{S_T0}, s{S_T0}, 5')
    e(f'v_and_b32 v{VP}, 7, v{L}')
    e(f'v_lshlrev_b32 v{VP}, 2, v{VP}')
    e(f'v_add_u32 v{VP}, s{S_T0}, v{VP}')
    e(f's_add_u32 s{S_WQB+0}, s{S_WQB}, 0')
    vm.stamp(o, 0)
    def issue(name):
        kind, t = name[0], int(name[1:])
        if kind == 'K' and t > 31: return
        base = slot_addr(name)
        if kind in 'KV':
            vm.room(16)
            off = (t // 16) * (4 * 32 * 262144) + (t % 16) * SLOT
            for g in range(4):
                e(f's_mov_b32 m0, {base + 4096*g}')
                e(f's_add_u32 s{S_T1}, s{S_KVB}, {off + 4096*g}')
                for i in range(4):
                    v = VK + i if kind == 'K' else VV
                    e(f'buffer_load_dwordx4 v{v}, {sr(S_K if kind == "K" else S_V,4)}, s{S_T1} offen offset:{1024*i} {o.kv_flags} lds')
        else:
            r = slot(name); j, hi = 1 + (r >> 1), r & 1
            if j == 4: return
            vm.room(16)
            for p in range(2):
                e(f's_add_u32 s{S_T2}, s{S_WOB}, {1024*1280*(2*hi+p)}')
                e.many(wo_dma(o, 8 + j, None, base + 8192 * p, f's{S_T2}', VWO))
        vm.add(name, 16)
    def own_w(c):
        if o.no_w3: return
        vm.room(8)
        e(f's_add_u32 s{S_T2}, s{S_WOB}, {1024*1280*3}')
        e.many(wo_dma(o, c, None, 3 * 8192, f's{S_T2}', VWO))
        vm.add(f'w{c}', 8)
    def wait_upto(n):
        for m in range(n, -1, -1):
            if vm.has(SEQ[m]): vm.wait(SEQ[m]); return
    def flag(val):
        e(f'v_mov_b32 v{V_T2}, {val}')
        e('s_mov_b64 exec, 1')
        e(f'global_store_byte v{VF}, v{V_T2}, {sr(S_DBG,2)} sc1')
        e('s_mov_b64 exec, -1')
    for s in range(10):
        vm.wait(f'wq{s}')
        e('s_barrier')
        vm.stamp(o, 16 + s)
        if 1 <= s <= 7: wq(s + 2)
        if s == 8: issue('V0'); issue('K2')
        if s == 9: issue('V1'); issue('K3'); issue('V2')
    e('s_barrier')
    issued = POS['V2']
    pl = f'global_load_dword v{V_T2}, v{VP}, {sr(S_DBG,2)} sc1'
    for k in range(32):
        wait_upto(POS[f'V{k}'])
        vm.stamp(o, 32 + k) if o.tickst == 1 else None
        e('s_barrier')
        vm.stamp(o, 32 + k) if o.tickst == 2 else None
        if k == 18:
            vm.room(1); flag(1); vm.add('f1', 1)
        if k == 15: own_w(0)
        if k >= 17 and (k & 1):
            ci = (k - 17) >> 1
            vm.wait(f'w{ci}')
            e.many(wo_reads(lambda off, n: hold(ci, off, n), V_WA, V_WA + 1, 0))
        if k == 27:
            vm.room(1)
            e(pl.replace(f'v{V_T2},', 'v19,'))
            vm.add('pl', 1)
        first = POS[f'K{k+1}']
        lim = min(first + o.look, first + 7, POS['T6'])
        if k == 31: lim = POS['T6']
        while issued < lim:
            issued += 1
            issue(SEQ[issued])
            while vm.out() > o.thr and k < 31: vm.wait(vm.q[0][0])
        if k == 27:
            vm.wait('pl')
            e(f'v_and_b32 v19, 0x01010101, v19')
            e(f'v_cmp_eq_u32 vcc, 0x01010101, v19')
            e('s_cmp_eq_u64 vcc, -1')
            e(f's_cbranch_scc1 L_ok{k}')
            poll(e, o, f'l{k}', pl, '0x01010101')
            e.lab(f'L_ok{k}')
        if k >= 17 and (k & 1):
            e('s_waitcnt lgkmcnt(0)')
            own_w(((k - 17) >> 1) + 1)
    e('s_barrier')
    flag(3)
    e('s_waitcnt vmcnt(1)')

def phase_a(e, o):
    L = V_LANE
    VA, VB = V_Q, V_Q + 4
    AF = [V_SA, V_SB]; BF = [V_P, V_TMP]; ACC = [128, 192]
    e(f'v_lshrrev_b32 v{V_T0}, 3, v{L}')
    e(f'v_mul_u32_u24 v{V_T0}, 1280, v{V_T0}')
    e(f'v_lshrrev_b32 v{V_T1}, 4, v{L}')
    e(f'v_and_b32 v{V_T2}, 7, v{L}')
    e(f'v_xor_b32 v{V_T1}, v{V_T1}, v{V_T2}')
    for i in range(4):
        e(f'v_xor_b32 v{V_T2}, {4*(i&1)}, v{V_T1}')
        e(f'v_lshl_add_u32 v{V_DMA+i}, v{V_T2}, 4, v{V_T0}')
        if i: e(f'v_add_u32 v{V_DMA+i}, {(10240-1024)*i}, v{V_DMA+i}')
    e(f's_mul_i32 s{S_XB}, s{S_BL}, 3')
    e(f's_add_u32 s{S_XB}, s{S_XB}, s{S_WAVE}')
    e(f's_mul_i32 s{S_OB}, s{S_BR}, 24')
    e(f's_add_u32 s{S_OB}, s{S_OB}, s{S_XB}')
    e(f's_mul_i32 s{S_XB}, s{S_XB}, 40960')
    def xload(s, it):
        r = []
        if it == 0:
            r.append(f's_lshl_b32 s{S_T0}, s{S_KX}, 7')
            r.append(f's_add_u32 s{S_T0}, s{S_T0}, s{S_XB}')
        r.append(f's_add_u32 m0, s{S_XL}, {reg_x(s) + 4096*it}')
        r.append(f's_add_u32 s{S_T1}, s{S_T0}, {491520*it}')
        for i in range(4):
            r.append(f'buffer_load_dwordx4 v{V_DMA+i}, {sr(S_X,4)}, s{S_T1} offen offset:{1024*i} {o.w_flags} lds')
        if it == 1:
            r.append(f's_add_u32 s{S_KX}, s{S_KX}, 1')
            r.append(f's_cmp_eq_u32 s{S_KX}, 10')
            r.append(f's_cselect_b32 s{S_KX}, 0, s{S_KX}')
        return r
    for s in range(3):
        e.many(xload(s, 0)); e.many(xload(s, 1))
    e(f's_lshl_b32 s{S_KVB}, s{S_BL}, 5')
    e(f's_add_u32 s{S_KVB}, s{S_KVB}, s{S_H}')
    e(f's_lshl_b32 s{S_KVB}, s{S_KVB}, 18')
    e(f's_mul_i32 s{S_T0}, s{S_WAVE}, 11')
    e(f'v_lshrrev_b32 v{V_T0}, 4, v{L}')
    e(f'v_and_b32 v{V_T1}, 15, v{L}')
    e(f'v_lshlrev_b32 v{V_T2}, 8, v{V_T0}')
    for t in range(4):
        e(f's_add_u32 s{S_T1}, s{S_T0}, {t}')
        e(f's_and_b32 s{S_T1}, s{S_T1}, 3')
        e(f's_lshl_b32 s{S_T1}, s{S_T1}, 2')
        e(f'v_add_u32 v{V_T3}, s{S_T1}, v{V_T0}')
        e(f'v_xor_b32 v{V_T3}, v{V_T3}, v{V_T1}')
        e(f'v_lshl_add_u32 v{V_KA+t}, v{V_T3}, 4, v{V_T2}')
    e(f's_lshl_b32 s{S_T0}, s{S_T0}, 10')
    e(f's_add_u32 s{S_T2}, s{S_T0}, s{S_KVB}')
    for t in range(11):
        if t % 4 == 0:
            e(f's_add_u32 m0, s{S_T0}, {slot_addr("K0") + 1024*t}')
            e(f's_add_u32 s{S_T1}, s{S_T2}, {1024*t}')
        e(f'buffer_load_dwordx4 v{V_KA+(t&3)}, {sr(S_K,4)}, s{S_T1} offen offset:{1024*(t&3)} {o.kv_flags} lds')
    e(f's_lshl_b32 s{S_OB}, s{S_OB}, 5')
    e(f's_add_u32 s{S_OB}, s{S_OB}, s{S_H}')
    e(f's_lshl_b32 s{S_OB}, s{S_OB}, 13')
    e(f'v_lshrrev_b32 v{V_T0}, 5, v{L}')
    e(f'v_bfe_u32 v{V_T1}, v{L}, 2, 2')
    e(f'v_lshl_add_u32 v{V_T2}, v{V_T0}, 3, v{V_T1}')
    e(f'v_lshlrev_b32 v{V_T2}, 8, v{V_T2}')
    e(f'v_lshl_add_u32 v{V_T2}, v{V_T1}, 6, v{V_T2}')
    e(f'v_bfe_u32 v{V_T3}, v{L}, 4, 1')
    e(f'v_lshl_add_u32 v{V_T2}, v{V_T3}, 5, v{V_T2}')
    e(f'v_and_b32 v{V_T3}, 1, v{L}')
    e(f'v_lshl_add_u32 v{V_T2}, v{V_T3}, 4, v{V_T2}')
    e(f'v_bfe_u32 v{V_T3}, v{L}, 1, 1')
    e(f'v_lshl_add_u32 v{V_T2}, v{V_T3}, 3, v{V_T2}')
    for t in range(4):
        e(f'v_xor_b32 v{VA+t}, {64*t}, v{V_T2}')
        e(f'v_add_u32 v{VA+t}, {reg_w(0)}, v{VA+t}')
    e(f'v_and_b32 v{V_T1}, 31, v{L}')
    e(f'v_bfe_u32 v{V_T2}, v{L}, 1, 3')
    e(f'v_xor_b32 v{V_T2}, v{V_T2}, v{V_T0}')
    e(f'v_lshlrev_b32 v{V_T2}, 4, v{V_T2}')
    e(f'v_lshl_add_u32 v{V_T2}, v{V_T1}, 7, v{V_T2}')
    e(f's_add_u32 s{S_T0}, s{S_XL}, {reg_x(0)}')
    for s4 in range(4):
        e(f'v_xor_b32 v{VB+s4}, {32*s4}, v{V_T2}')
        e(f'v_add_u32 v{VB+s4}, s{S_T0}, v{VB+s4}')
    e(f'v_and_b32 v{V_T2}, 15, v{L}')
    e(f'v_xor_b32 v{V_T2}, v{V_T2}, v{V_T0}')
    e(f'v_lshlrev_b32 v{V_T2}, 4, v{V_T2}')
    e(f'v_lshl_add_u32 v{V_T2}, v{V_T1}, 8, v{V_T2}')
    for s in range(8):
        e(f'v_xor_b32 v{V_KA+s}, {32*s}, v{V_T2}')
        e(f'v_add_u32 v{V_KA+s}, {slot_addr("K0")}, v{V_KA+s}')
    e(f'v_bfe_u32 v{V_T1}, v{L}, 2, 2')
    e(f'v_lshl_add_u32 v{V_T2}, v{V_T0}, 2, v{V_T1}')
    e(f'v_lshlrev_b32 v{V_T2}, 8, v{V_T2}')
    e(f'v_lshl_add_u32 v{V_T2}, v{V_T1}, 6, v{V_T2}')
    e(f'v_bfe_u32 v{V_T3}, v{L}, 4, 1')
    e(f'v_lshl_add_u32 v{V_T2}, v{V_T3}, 5, v{V_T2}')
    e(f'v_and_b32 v{V_T3}, 3, v{L}')
    e(f'v_lshl_add_u32 v{V_T2}, v{V_T3}, 3, v{V_T2}')
    e(f'v_add_u32 v{V_T2}, {RING}, v{V_T2}')
    for t in range(4): e(f'v_xor_b32 v{V_VA+t}, {64*t}, v{V_T2}')
    e(f'v_lshlrev_b32 v{V_OST}, 4, v{L}')
    wo_lane_addr(e, V_WA)
    e(f'v_add_u32 v{V_WA}, s{S_XL}, v{V_WA}')
    e(f'v_xor_b32 v{V_WA+1}, 64, v{V_WA}')
    e(f's_mul_i32 s{S_WQB}, s{S_WAVE}, {1024*1280}')
    e(f's_add_u32 s{S_WQB}, s{S_WQB}, s{S_WOB}')
    e(f's_mov_b32 s{S_WC}, s{S_RHO}')
    for i in range(64): e(f'v_accvgpr_write_b32 a{i}, 0')
    for i in range(16): e(f'v_mov_b32 v{V_NEGM+i}, 0')
    for i in range(4): e(f'v_mov_b32 v{V_L+i}, 0')
    c = math.log2(math.e) / math.sqrt(128.0)
    e(f's_mov_b32 s{S_C}, {hex(struct.unpack("<I", struct.pack("<f", c))[0])}')
    e(f's_mov_b32 s{S_THR}, 0xff800000')
    e(f's_mov_b32 s{S_FLOOR}, 0xff800000')
    e(f's_mov_b32 s{S_TICK}, 0')
    e(f's_mov_b32 s{S_KOFF}, {7*SLOT}')
    e(f's_mov_b32 s{S_VOFF}, 0')
    nst = stamp(e, o, 0) + stamp(e, o, 8, clk=True)
    def reads(s4, buf):
        r = [f'ds_read_b128 {vr(BF[buf]+4*it,4)}, v{VB+s4} offset:{4096*it}' for it in range(2)]
        for t in range(4):
            for u in range(2):
                r.append(f'ds_read_b64_tr_b16 {vr(AF[buf]+4*t+2*u,2)}, v{VA+t} offset:{(16*s4+4*u)*256}')
        return r
    def mf(buf, first):
        r = []
        for t in range(4):
            for it in range(2):
                d = vr(ACC[it] + 16 * t, 16)
                r.append(mfma(d, vr(AF[buf] + 4 * t, 4), vr(BF[buf] + 4 * it, 4), '0' if first else d))
        return r
    e(f's_waitcnt vmcnt({16 + 11 + nst})')
    e('s_barrier')
    e.many(reads(0, 0))
    for s in range(10):
        for s4 in range(4):
            step = 4 * s + s4; buf = step & 1
            m = mf(buf, step == 0)
            late = []
            e('s_waitcnt lgkmcnt(0)')
            if s4 == 3:
                if s < 9:
                    e(f's_waitcnt vmcnt({(8 if s + 2 <= 9 else 0) + ((11 + nst) if s < 2 else 0)})')
                e('s_barrier')
                if s + 3 <= 9: late = xload(s + 3, 0)
            if s4 == 0 and s >= 1 and s + 2 <= 9: late = xload(s + 2, 1)
            if s4 == 2 and s < 9:
                late = []
                for r in range(8):
                    d = reg_w(s + 1) - reg_w(s) if r < 4 else reg_x(s + 1) - reg_x(s)
                    late.append(f'v_add_u32 v{VA+r}, {d}, v{VA+r}' if d > 0 else f'v_subrev_u32 v{VA+r}, {-d}, v{VA+r}')
            front = reads((s4 + 1) & 3, buf ^ 1) if step < 39 else []
            gaps(e, m, front, late)
    wo_voffs(e, V_DMA)
    e('s_nop 4')
    def conv(i, src, dst):
        a = src + 2 * i
        return [f'v_mul_f32 v{a}, s{S_C}, v{a}', f'v_mul_f32 v{a+1}, s{S_C}, v{a+1}', f'v_cvt_pk_bf16_f32 v{dst+i}, v{a}, v{a+1}']
    e.conv = conv
    for i in range(16): e.many(conv(i, ACC[0], V_Q))
    e.many(k_reads(0))
    for i in range(16, 32): e.many(conv(i, ACC[0], V_Q))

def k_reads(half):
    return [f'ds_read_b128 {vr(V_KF+4*s,4)}, v{V_KA+s} offset:{8192*half}' for s in range(8)]
def v_reads(half):
    r = []
    for jj in range(2):
        for t in range(4):
            for u in range(2):
                r.append(f'ds_read_b64_tr_b16 {vr(V_VF+16*jj+4*t+2*u,2)}, v{V_VA+t} offset:{(32*half+16*jj+8*u)*256}')
    return r
def qk(S):
    return [mfma(vr(S, 16), vr(V_KF + 4 * s, 4), vr(V_Q + 4 * s, 4), vr(V_NEGM, 16) if s == 0 else vr(S, 16)) for s in range(8)]
def pv():
    return [mfma(ar(16 * t, 16), vr(V_VF + 16 * jj + 4 * t, 4), vr(V_P + 4 * jj, 4), ar(16 * t, 16)) for jj in range(2) for t in range(4)]
def maxes(S):
    r = [f'v_max3_f32 v{V_MX}, v{S}, v{S+1}, v{S+2}', f'v_max3_f32 v{V_D}, v{S+3}, v{S+4}, v{S+5}']
    r += [f'v_max3_f32 v{V_MX}, v{V_MX}, v{S+6}, v{S+7}', f'v_max3_f32 v{V_D}, v{V_D}, v{S+8}, v{S+9}']
    r += [f'v_max3_f32 v{V_MX}, v{V_MX}, v{S+10}, v{S+11}', f'v_max3_f32 v{V_D}, v{V_D}, v{S+12}, v{S+13}']
    r += [f'v_max3_f32 v{V_MX}, v{V_MX}, v{S+14}, v{S+15}', f'v_max_f32 v{V_MX}, v{V_MX}, v{V_D}']
    r += [f'v_cmp_lt_f32 vcc, s{S_THR}, v{V_MX}']
    return r

def half_tick(e, Snew, Sold, vhalf, khalf, extra_v=(), extra_k=()):
    ex = lambda i: f'v_exp_f32 v{Sold+i}, v{Sold+i}'
    cv = lambda i: f'v_cvt_pk_bf16_f32 v{V_P+i}, v{Sold+2*i}, v{Sold+2*i+1}'
    ad = lambda i: f'v_add_f32 v{V_L+(i&3)}, v{V_L+(i&3)}, v{Sold+i}'
    m = qk(Snew) + pv()
    m[8] = ['s_waitcnt lgkmcnt(0)', m[8]]
    fill = v_reads(vhalf) + [ex(i) for i in range(8)] + list(extra_v) + [cv(i) for i in range(4)] + [ex(i) for i in range(8, 12)]
    fill += [('M', 8), ('A', 8)] + (k_reads(khalf) if khalf is not None else []) + [ex(i) for i in range(12, 16)] + [ad(0)]
    fill += [cv(i) for i in range(4, 8)] + [ad(1), ad(2)]
    fill += [('M', 12)] + [ad(i) for i in range(3, 16)]
    fill += list(extra_k) + maxes(Snew)
    e('s_waitcnt lgkmcnt(0)')
    interleave(e, m, fill)

def last_half(e, Sold):
    ex = lambda i: f'v_exp_f32 v{Sold+i}, v{Sold+i}'
    cv = lambda i: f'v_cvt_pk_bf16_f32 v{V_P+i}, v{Sold+2*i}, v{Sold+2*i+1}'
    ad = lambda i: f'v_add_f32 v{V_L+(i&3)}, v{V_L+(i&3)}, v{Sold+i}'
    e.many(v_reads(1))
    e.many([ex(i) for i in range(8)] + [cv(i) for i in range(4)] + [ex(8), ex(9)])
    e('s_waitcnt lgkmcnt(0)')
    fill = [ex(i) for i in range(10, 16)] + [ad(0)] + [cv(i) for i in range(4, 8)] + [ad(1), ad(2), ('M', 4)] + [ad(i) for i in range(3, 16)]
    interleave(e, pv(), fill)

def rare(e, S, back):
    e('s_nop 7')
    e(f'v_mov_b32 v{V_T0}, v{V_MX}')
    e('s_nop 1')
    e(f'v_permlane32_swap_b32 v{V_T0}, v{V_MX}')
    e('s_nop 1')
    e(f'v_max_f32 v{V_D}, v{V_T0}, v{V_MX}')
    e(f'v_max_f32 v{V_D}, s{S_FLOOR}, v{V_D}')
    for i in range(16): e(f'v_sub_f32 v{S+i}, v{S+i}, v{V_D}')
    for i in range(16): e(f'v_sub_f32 v{V_NEGM+i}, v{V_NEGM+i}, v{V_D}')
    e(f's_cmp_lg_u32 s{S_FLOOR}, 0')
    e(f's_mov_b32 s{S_THR}, 0x41000000')
    e(f's_mov_b32 s{S_FLOOR}, 0')
    e(f's_cbranch_scc1 {back}')
    e(f'v_sub_f32 v{V_T0}, 0, v{V_D}')
    e(f'v_exp_f32 v{V_T0}, v{V_T0}')
    e('s_nop 0')
    for i in range(4): e(f'v_mul_f32 v{V_L+i}, v{V_L+i}, v{V_T0}')
    for i in range(0, 64, 4):
        for j in range(4): e(f'v_accvgpr_read_b32 v{V_TMP+j}, a{i+j}')
        for j in range(4): e(f'v_mul_f32 v{V_TMP+j}, v{V_TMP+j}, v{V_T0}')
        for j in range(4): e(f'v_accvgpr_write_b32 a{i+j}, v{V_TMP+j}')
    e('s_nop 1')
    e(f's_branch {back}')

def epilogue(e, o):
    e(f'v_add_f32 v{V_L}, v{V_L}, v{V_L+1}')
    e(f'v_add_f32 v{V_L+2}, v{V_L+2}, v{V_L+3}')
    e(f'v_add_f32 v{V_L}, v{V_L}, v{V_L+2}')
    e(f'v_mov_b32 v{V_T0}, v{V_L}')
    e('s_nop 1')
    e(f'v_permlane32_swap_b32 v{V_T0}, v{V_L}')
    e('s_nop 1')
    e(f'v_add_f32 v{V_L}, v{V_L}, v{V_T0}')
    e(f'v_rcp_f32 v{V_T0}, v{V_L}')
    e('s_nop 4')
    for f in range(8):
        t = V_VF + 8 * (f & 3)
        for j in range(8): e(f'v_accvgpr_read_b32 v{t+j}, a{8*f+j}')
        for j in range(8): e(f'v_mul_f32 v{t+j}, v{t+j}, v{V_T0}')
        d = V_TMP + 4 * (f & 1)
        for j in range(4): e(f'v_cvt_pk_bf16_f32 v{d+j}, v{t+2*j}, v{t+2*j+1}')
        if f == 4: e(f's_add_u32 s{S_OB}, s{S_OB}, 4096')
        e(f'buffer_store_dwordx4 {vr(d,4)}, v{V_OST}, {sr(S_WS,4)}, s{S_OB} offen offset:{1024*(f&3)} {o.ost_flags}')

def w_snippets(e, o, ret):
    e('s_waitcnt vmcnt(0)')
    def tree(lo, n):
        if n == 1:
            e.many(wo_reads(lambda off, nn: hold(lo, off, nn), V_WA, V_WA + 1, 0))
            e('s_branch L_sn_done')
            return
        h = (n + 1) // 2
        e(f's_cmp_ge_u32 s{S_T2}, {lo+h}')
        e(f's_cbranch_scc1 L_sn_{lo+h}')
        tree(lo, h)
        e.lab(f'L_sn_{lo+h}')
        tree(lo + h, n - h)
    tree(0, 7)
    e.lab('L_sn_done')
    e('s_waitcnt lgkmcnt(0)')
    e.many(wo_dma(o, 0, f's{S_XL}', 0, f's{S_WQB}', V_DMA, dyn=True))
    e(f's_branch {ret}')

def phase_b(e, o):
    stamp(e, o, 1); stamp(e, o, 9, clk=True)
    e('s_waitcnt lgkmcnt(0)')
    e.many(qk(V_SA))
    e.many(k_reads(1))
    for s in range(8): e(f'v_add_u32 v{V_KA+s}, {SLOT}, v{V_KA+s}')
    e('s_nop 3')
    e.many(maxes(V_SA))
    e('s_branch L_rare_a')
    def adv(soff, tmp, base, n):
        r = [f's_add_u32 s{tmp}, s{soff}, {2*SLOT}', f's_and_b32 s{tmp}, s{tmp}, {8*SLOT-1}',
             f's_sub_u32 s{S_T3}, s{tmp}, s{soff}', f's_mov_b32 s{soff}, s{tmp}']
        r += [f'v_add_u32 v{base+i}, s{S_T3}, v{base+i}' for i in range(n)]
        return r
    e.lab('L_tick')
    e('s_waitcnt lgkmcnt(0)')
    e('s_barrier')
    e(f's_cmp_eq_u32 s{S_TICK}, 31')
    e('s_cbranch_scc1 L_last')
    half_tick(e, V_SB, V_SA, 0, 0)
    e('s_cbranch_vccnz L_rare_b')
    e.lab('L_back_b')
    e(f's_cmp_eq_u32 s{S_TICK}, 15')
    e('s_cbranch_scc1 L_switch')
    e.lab('L_back_sw')
    half_tick(e, V_SA, V_SB, 1, 1, extra_v=adv(S_VOFF, S_T0, V_VA, 4), extra_k=adv(S_KOFF, S_T1, V_KA, 8))
    e(f's_add_u32 s{S_TICK}, s{S_TICK}, 1')
    e(f's_cmp_lt_u32 s{S_TICK}, 16')
    e('s_cbranch_scc0 L_item2')
    e.lab('L_snip_ret')
    e('s_cbranch_vccz L_tick')
    e.lab('L_rare_a')
    rare(e, V_SA, 'L_tick')
    e.lab('L_item2')
    e(f's_cmp_eq_u32 s{S_TICK}, 16')
    e('s_cbranch_scc1 L_epi1')
    e(f's_bitcmp1_b32 s{S_TICK}, 0')
    e('s_cbranch_scc1 L_snip_ret')
    e(f's_sub_u32 s{S_T2}, s{S_TICK}, 18')
    e(f's_lshr_b32 s{S_T2}, s{S_T2}, 1')
    w_snippets(e, o, 'L_snip_ret')
    e.lab('L_rare_b')
    rare(e, V_SB, 'L_back_b')
    e.lab('L_switch')
    for i in range(32): e.many(e.conv(i, V_Q2, V_Q))
    for i in range(16): e(f'v_mov_b32 v{V_NEGM+i}, 0')
    e('s_nop 1')
    e('s_branch L_back_sw')
    e.lab('L_epi1')
    epilogue(e, o)
    e(f's_add_u32 s{S_OB}, s{S_OB}, {RND - 4096}')
    e.many(wo_dma(o, 0, f's{S_XL}', 0, f's{S_WQB}', V_DMA, dyn=True))
    for i in range(64): e(f'v_accvgpr_write_b32 a{i}, 0')
    for i in range(4): e(f'v_mov_b32 v{V_L+i}, 0')
    e(f's_mov_b32 s{S_FLOOR}, 0xff800000')
    stamp(e, o, 2); stamp(e, o, 10, clk=True)
    e('s_branch L_rare_a')
    e.lab('L_rare_l')
    rare(e, V_SB, 'L_back_l')
    e.lab('L_last')
    e('s_waitcnt vmcnt(0)')
    e.many(wo_reads(lambda off, nn: hold(7, off, nn), V_WA, V_WA + 1, 0))
    half_tick(e, V_SB, V_SA, 0, None, extra_v=wo_dma(o, 0, f's{S_XL}', 0, f's{S_WQB}', V_DMA, dyn=True))
    e('s_cbranch_vccnz L_rare_l')
    e.lab('L_back_l')
    last_half(e, V_SB)
    epilogue(e, o)

def tail_setup(e, o):
    e(f's_mul_i32 s{S_O1}, s{S_BR}, 24')
    e(f's_add_u32 s{S_O1}, s{S_O1}, s{S_QT}')
    e(f's_lshl_b32 s{S_O1}, s{S_O1}, 2')
    e(f's_add_u32 s{S_O1}, s{S_O1}, s{S_WAVE}')
    e(f's_lshl_b32 s{S_O1}, s{S_O1}, 16')

POOL = [16, 20, 24, 32, 36, 40, 44, 80, 84] + list(range(96, 192, 4)) + [88, 92]
ORDER1 = [0, 1, 2, 8, 3, 9, 4, 10, 5, 11, 6, 12, 7]
ORDER2 = [8, 0, 9, 1, 10, 2, 11, 3, 12, 4, 5, 6, 7, 13, 14, 15]

class Tail:
    def __init__(self, e, o):
        self.e, self.o = e, o
        self.vm = Vm(e)
        self.free = list(POOL)
        self.where = {}
        self.todo = []
    def oload(self, rnd, c):
        e = self.e
        regs = [self.free.pop(0) for _ in range(4)]
        self.where[(rnd, c)] = regs
        r = [f's_add_u32 s{S_T1}, s{S_RHO}, {c}', f's_and_b32 s{S_T1}, s{S_T1}, 15', f's_lshl_b32 s{S_T1}, s{S_T1}, 12',
             f's_add_u32 s{S_T1}, s{S_T1}, s{S_O1}']
        if rnd: r.append(f's_add_u32 s{S_T1}, s{S_T1}, {RND}')
        for s4 in range(4):
            r.append(f'buffer_load_dwordx4 {vr(regs[s4],4)}, v{V_OST}, {sr(S_WS,4)}, s{S_T1} offen offset:{1024*s4} {self.o.old_flags}')
        self.vm.add(f'o{rnd}_{c}', 4)
        return r
    def pump(self):
        r = []
        while self.todo and len(self.free) >= 4 and self.vm.out() + 4 <= 63:
            r += self.oload(*self.todo.pop(0))
        return r

def tail_pre(e, o):
    T = Tail(e, o)
    tail_setup(e, o)
    T.todo = [(0, c) for c in ORDER1] + [(0, c) for c in (13, 14, 15)]
    return T

def tail(e, o, T):
    L = V_LANE
    vm = T.vm
    RA = 6
    TEMP = 48
    e(f's_cmp_eq_u32 s{S_NT}, 15')
    e('s_cbranch_scc1 L_exit')
    e(f's_mul_i32 s{S_WQB}, s{S_WAVE}, {1024*1280}')
    e(f's_add_u32 s{S_WQB}, s{S_WQB}, s{S_WOB}')
    vm.room(8)
    e.many(wo_dma(o, 12, f's{S_XL}', 4 * 32768, f's{S_WQB}', V_DMA))
    vm.add('late', 8)
    e.many(T.pump())
    for b in range(3):
        e(f'v_add_u32 v{RA+2*b}, {65536*b}, v{V_WA}')
        e(f'v_add_u32 v{RA+2*b+1}, {65536*b}, v{V_WA+1}')
    e(f's_lshl_b32 s{S_T0}, s{S_BR}, 2')
    e(f's_add_u32 s{S_T0}, s{S_T0}, s{S_QB}')
    e(f's_lshl_b32 s{S_T0}, s{S_T0}, 2')
    e(f's_add_u32 s{S_T0}, s{S_T0}, s{S_WAVE}')
    e(f's_lshl_b32 s{S_T0}, s{S_T0}, 3')
    e(f'v_and_b32 v31, 1, v{L}')
    e(f'v_lshlrev_b32 v31, 2, v31')
    e(f'v_add_u32 v31, s{S_T0}, v31')
    piece = {8: 0, 9: 1, 10: 2, 11: 3, 12: 4, 13: 0, 14: 1, 15: 2}
    tmp_of = {}
    def rd(c, dstf):
        j = piece[c]
        return wo_reads(dstf, RA + 2 * (j >> 1), RA + 2 * (j >> 1) + 1, 32768 * (j & 1))
    def afrag(c):
        if c < 8: return lambda off, n: hold(c, off, n)
        if c >= 13: return lambda off, n: hold(c - 13, off, n)
        return lambda off, n: vr(TEMP + off, n)
    first = {0: True, 1: True}
    def mms(c, rnds):
        m = []
        for s4 in range(4):
            for rnd in rnds:
                for nt in range(2):
                    d = ar(32 * rnd + 16 * nt, 16)
                    m.append(mfma(d, afrag(c)(8 * s4 + 4 * nt, 4), vr(T.where[(rnd, c)][s4], 4), '0' if (first[rnd] and s4 == 0) else d))
        for rnd in rnds: first[rnd] = False
        return m
    def wdma(c):
        vm.add(f'w{c}', 8)
        return wo_dma(o, c, f's{S_XL}', 32768 * piece[c], f's{S_WQB}', V_DMA)
    def run(order, rnd, second):
        pending_reads = False
        for i, c in enumerate(order):
            rnds = [0, 1] if c >= 13 else [rnd]
            nxt = order[i + 1] if i + 1 < len(order) else None
            if c >= 8: e('s_waitcnt lgkmcnt(0)')
            for r_ in rnds: vm.wait(f'o{r_}_{c}')
            front = []; late = []
            if second and c in (8, 9, 10):
                if vm.out() + 8 > 63: vm.room(8)
                late += wdma(c + 5)
            if nxt is not None and nxt >= 8 and not (c >= 8 and c < 13 and nxt < 13):
                if not second and nxt == 8:
                    e('s_barrier')
                if nxt == 12 and vm.has('late'): vm.wait('late')
                if nxt >= 13: vm.wait(f'w{nxt}')
                front = rd(nxt, afrag(nxt))
            m = mms(c, rnds)
            late += T.pump()
            gaps(e, m, front, late, per=3, late_from=0 if not front else 2)
            for r_ in rnds: T.free += T.where[(r_, c)]
    run(ORDER1, 0, False)
    e.many(T.pump())
    assert not T.todo
    vm.stamp(o, 5)
    e.many(rd(8, afrag(8)))
    poll(e, o, 'r2', f'global_load_dword v{V_T2}, v31, {sr(S_DBG,2)} sc1', '0x02020202')
    vm.q = []
    T.todo = [(1, c) for c in ORDER2]
    e.many(T.pump())
    vm.stamp(o, 6)
    run(ORDER2, 1, True)
    vm.stamp(o, 7)
    e(f'v_and_b32 v{V_T0}, 31, v{L}')
    e(f'v_lshrrev_b32 v{V_T1}, 5, v{L}')
    e(f'v_and_b32 v{V_T2}, 15, v{L}')
    e(f'v_xor_b32 v{V_T1}, v{V_T1}, v{V_T2}')
    e(f'v_lshlrev_b32 v{V_T1}, 4, v{V_T1}')
    e(f'v_lshl_add_u32 v{V_T0}, v{V_T0}, 8, v{V_T1}')
    e(f's_add_u32 s{S_T0}, s{S_XL}, {3*32768}')
    e(f'v_add_u32 v{V_T0}, s{S_T0}, v{V_T0}')
    for k in range(8): e(f'v_xor_b32 v{16+k}, {32*k}, v{V_T0}')
    e(f's_lshr_b32 s{S_T0}, s{S_WAVE}, 1')
    e(f's_and_b32 s{S_T1}, s{S_WAVE}, 1')
    for rnd in range(2):
        for nt in range(2):
            for g in range(4):
                e(f'ds_write_b128 v{16+4*nt+g}, {ar(32*rnd+16*nt+4*g,4)} offset:{rnd*32768}')
    e(f's_lshl_b32 s{S_T2}, s{S_T0}, 15')
    e(f's_lshl_b32 s{S_T3}, s{S_T1}, 12')
    e(f's_add_u32 s{S_T2}, s{S_T2}, s{S_T3}')
    e(f's_add_u32 s{S_T2}, s{S_T2}, {3*32768}')
    e(f'v_lshrrev_b32 v{V_T1}, 3, v{L}')
    e(f'v_and_b32 v{V_T3}, 7, v{L}')
    e(f'v_lshlrev_b32 v{V_T2}, 1, v{V_T3}')
    e(f'v_xor_b32 v{V_T2}, v{V_T2}, v{V_T1}')
    e(f'v_lshlrev_b32 v{V_T2}, 4, v{V_T2}')
    e(f'v_lshl_add_u32 v{V_T2}, v{V_T1}, 8, v{V_T2}')
    e(f'v_add_u32 v24, s{S_T2}, v{V_T2}')
    e(f'v_xor_b32 v25, 16, v24')
    e(f'v_xor_b32 v26, {2048+128}, v24')
    e(f'v_xor_b32 v27, 16, v26')
    e(f's_lshl_b32 s{S_T2}, s{S_QT}, 5')
    e(f's_mul_i32 s{S_T0}, s{S_T0}, 384')
    e(f's_add_u32 s{S_T2}, s{S_T2}, s{S_T0}')
    e(f's_lshl_b32 s{S_T1}, s{S_T1}, 4')
    e(f's_add_u32 s{S_T2}, s{S_T2}, s{S_T1}')
    e(f's_mul_i32 s{S_T2}, s{S_T2}, 2560')
    e(f's_mul_i32 s{S_T0}, s{S_BR}, 1280')
    e(f's_add_u32 s{S_T2}, s{S_T2}, s{S_T0}')
    e(f's_lshl_b32 s{S_T0}, s{S_NT}, 7')
    e(f's_add_u32 s{S_T2}, s{S_T2}, s{S_T0}')
    e(f'v_mul_u32_u24 v{V_T1}, 2560, v{V_T1}')
    e(f'v_lshl_add_u32 v{V_T1}, v{V_T3}, 4, v{V_T1}')
    e('s_waitcnt lgkmcnt(0)')
    e('s_barrier')
    for i in range(2):
        for p in range(4):
            for hh in range(2):
                e(f'ds_read_b128 {vr(32+32*i+8*p+4*hh,4)}, v{24+2*i+hh} offset:{8192*p}')
    for i in range(2):
        b = 32 + 32 * i
        e(f's_waitcnt lgkmcnt({8*(1-i)})')
        for j in range(8):
            e(f'v_add_f32 v{b+j}, v{b+j}, v{b+8+j}')
            e(f'v_add_f32 v{b+16+j}, v{b+16+j}, v{b+24+j}')
        for j in range(8): e(f'v_add_f32 v{b+j}, v{b+j}, v{b+16+j}')
        for j in range(4): e(f'v_cvt_pk_bf16_f32 v{b+8+j}, v{b+2*j}, v{b+2*j+1}')
        if i: e(f's_add_u32 s{S_T2}, s{S_T2}, {8*2560}')
        e(f'buffer_store_dwordx4 {vr(b+8,4)}, v{V_T1}, {sr(S_OUT,4)}, s{S_T2} offen')
    if o.stamps:
        e('s_waitcnt vmcnt(0)')
        stamp(e, o, 14)

KD = '''.amdhsa_kernel {n}
  .amdhsa_next_free_vgpr 512
  .amdhsa_next_free_sgpr 102
  .amdhsa_accum_offset 256
  .amdhsa_group_segment_fixed_size 0
  .amdhsa_kernarg_size 104
  .amdhsa_user_sgpr_count 2
  .amdhsa_user_sgpr_kernarg_segment_ptr 1
  .amdhsa_system_sgpr_workgroup_id_x 1
.end_amdhsa_kernel
'''

def gen(o):
    e = Em()
    k1 = NAME + '_kernel'
    e.raw('; @launch grid=(256,1,1) block=(256,1,1) lds=163840')
    e.raw('.amdgcn_target "amdgcn-amd-amdhsa--gfx950"')
    e.raw('.text')
    e.raw(f'.globl {k1}\n.p2align 8\n.type {k1},@function')
    e.lab(k1)
    prologue(e, o)
    e(f's_cmp_eq_u32 s{S_WAVE}, 3')
    e('s_cbranch_scc1 L_loader')
    phase_a(e, o)
    phase_b(e, o)
    T = tail_pre(e, o)
    pre = T.pump()
    npre = T.vm.out()
    e.many(pre)
    e(f's_waitcnt vmcnt({npre}) lgkmcnt(0)')
    e('s_barrier')
    if o.stamps:
        T.vm.stamp(o, 3); T.vm.stamp(o, 11, clk=True)
    e('s_branch L_join')
    e.lab('L_loader')
    loader(e, o)
    tail_setup(e, o)
    e.many(pre)
    if o.stamps:
        stamp(e, o, 3); stamp(e, o, 15)
    e.lab('L_join')
    tail(e, o, T)
    e.lab('L_exit')
    e('s_endpgm')
    e.raw('.section .rodata,"a"\n.p2align 6')
    e.raw(KD.format(n=k1))
    return e.text()

if __name__ == '__main__':
    o = Opt()
    out = sys.argv[1]
    for a in sys.argv[2:]:
        k, v = a.split('=', 1); v = v.replace('+', ' ')
        cur = getattr(o, k)
        setattr(o, k, (v == '1') if isinstance(cur, bool) else int(v) if isinstance(cur, int) else v)
    open(out, 'w').write(gen(o))
```

```python
import sys, math, struct
NAME = 'concat_heads__mha_block_cached__mha_block_cached__near_ridge'

class Opt:
    stamps = False
    kv_flags = 'nt'
    w_flags = ''
    wo_flags = ''
    ost_flags = 'sc1'
    old_flags = 'sc1'
    look = 7
    rot = 3
    tickst = 0
    no_w = False
    no_w3 = False
    t_now = False
    t_o1 = False
    t_noo = False
    c8late = True
    psleep = 4
    thr = 32
    blk = 0

WS_FLAGS = 12582912
WS_STAMP = 13631488
SLOT = 16384
STAGE = 40960
RND = 12 * 32 * 8192

S_X, S_K, S_V, S_WQ, S_WO, S_OUT, S_WS = 4, 8, 12, 16, 20, 24, 28
S_DBG = 32
S_WAVE, S_BR, S_H, S_BL = 34, 35, 36, 37
S_T0, S_T1, S_T2, S_T3 = 38, 39, 40, 41
S_KX, S_XB, S_XL, S_KVB, S_TICK = 42, 43, 44, 45, 46
S_KOFF, S_VOFF, S_THR, S_FLOOR, S_C, S_OB, S_WQB = 47, 48, 49, 50, 51, 52, 53
S_ST, S_STB, S_QT, S_NT = 54, 56, 57, 58
S_WOFF = 59
S_SAVE = 60
S_STEP, S_FL = 62, 63
S_KARG = 64
S_WOB, S_O1, S_QB, S_CNT, S_RHO, S_WC = 90, 91, 92, 93, 94, 95

V_LANE = 1
V_T0, V_T1, V_T2, V_T3 = 2, 3, 4, 5
V_L, V_MX, V_D = 6, 10, 11
V_DMA = 12
V_KA, V_VA, V_OST, V_WA = 16, 24, 28, 29
V_NEGM = 32
V_SA, V_SB, V_P, V_TMP = 48, 64, 80, 88
V_Q, V_KF, V_VF, V_Q2 = 96, 128, 160, 192

class Em:
    def __init__(self): self.L = []
    def __call__(self, s): self.L.append('    ' + s)
    def lab(self, s): self.L.append(s + ':')
    def raw(self, s): self.L.append(s)
    def many(self, l):
        for x in l: self(x)
    def text(self): return '\n'.join(self.L) + '\n'

def vr(b, n=1): return f'v{b}' if n == 1 else f'v[{b}:{b+n-1}]'
def ar(b, n=1): return f'a{b}' if n == 1 else f'a[{b}:{b+n-1}]'
def sr(b, n=1): return f's{b}' if n == 1 else f's[{b}:{b+n-1}]'
def mfma(d, a, b, c): return f'v_mfma_f32_32x32x16_bf16 {d}, {a}, {b}, {c}'
def hold(ci, off, n):
    return ar(64 + 32 * ci + off, n) if ci < 6 else vr(192 + 32 * (ci - 6) + off, n)

def cost(i):
    if i.startswith('v_exp') or i.startswith('v_rcp'): return 8
    if i.startswith('s_'): return 2
    return 4

def interleave(e, mf, fill):
    total = sum(cost(f) for f in fill if not isinstance(f, tuple))
    per = total / len(mf)
    fi = 0; acc = 0.0
    deadline = {}; items = []
    for f in fill:
        if isinstance(f, tuple):
            if f[0] == 'M': deadline[f[1]] = len(items)
            else: items.append(f)
        else: items.append(f)
    for k, m in enumerate(mf):
        need = deadline.get(k, 0)
        while fi < need:
            it = items[fi]; fi += 1
            if isinstance(it, tuple):
                assert it[1] < k, (it, k)
                continue
            e(it); acc += cost(it)
        if isinstance(m, (list, tuple)): e.many(m)
        else: e(m)
        target = per * (k + 1)
        while fi < len(items) and (acc < target - 1.0 or k == len(mf) - 1):
            it = items[fi]
            if isinstance(it, tuple):
                if it[1] > k: break
                fi += 1; continue
            e(it); acc += cost(it); fi += 1
    assert fi == len(items)

def gaps(e, mf, front, late=(), per=2, late_from=5):
    g = [[] for _ in mf]
    for i, f in enumerate(front): g[min(i // per, len(mf) - 1)].append(f)
    n = len(mf) - late_from
    for i, f in enumerate(late): g[late_from + (i * n) // len(late)].append(f)
    for m, x in zip(mf, g):
        e(m); e.many(x)

def stamp(e, o, idx, clk=False):
    if not o.stamps: return 0
    e(f's_memtime {sr(S_ST,2)}' if clk else f's_memrealtime {sr(S_ST,2)}')
    e('s_waitcnt lgkmcnt(0)')
    e(f'v_mov_b32 v{V_T0}, s{S_ST}')
    e(f'v_mov_b32 v{V_T1}, s{S_STB}')
    e('s_mov_b64 exec, 1')
    e(f'buffer_store_dword v{V_T0}, v{V_T1}, {sr(S_WS,4)}, 0 offen offset:{4*idx}')
    e('s_mov_b64 exec, -1')
    return 1

class Vm:
    def __init__(self, e): self.e = e; self.q = []
    def out(self): return sum(c for _, c in self.q)
    def has(self, name): return name in [n for n, _ in self.q]
    def wait(self, name):
        names = [n for n, _ in self.q]
        if name not in names: return
        i = names.index(name)
        rest = sum(c for _, c in self.q[i + 1:])
        assert rest <= 63
        self.e(f's_waitcnt vmcnt({rest})')
        self.q = self.q[i + 1:]
    def room(self, c):
        while self.out() + c > 63: self.wait(self.q[0][0])
    def add(self, name, c):
        self.q.append((name, c)); assert self.out() <= 63, self.q
    def stamp(self, o, idx, clk=False):
        if o.stamps:
            self.room(1); stamp(self.e, o, idx, clk); self.add(f'st{idx}', 1)

def prologue(e, o):
    e('s_cmp_ge_u32 s2, 256')
    e('s_cbranch_scc1 L_exit')
    e(f's_load_dwordx16 {sr(S_KARG,16)}, s[0:1], 0')
    e(f's_load_dwordx8 {sr(S_KARG+16,8)}, s[0:1], 64')
    e(f's_load_dwordx2 {sr(S_KARG+24,2)}, s[0:1], 96')
    e(f'v_lshrrev_b32 v{V_T0}, 6, v0')
    e(f'v_and_b32 v{V_LANE}, 63, v0')
    e(f'v_readfirstlane_b32 s{S_WAVE}, v{V_T0}')
    e(f's_and_b32 s{S_T0}, s2, 7')
    e(f's_lshr_b32 s{S_T1}, s2, 3')
    e(f's_lshr_b32 s{S_BR}, s{S_T0}, 2')
    e(f's_and_b32 s{S_T2}, s{S_T0}, 3')
    e(f's_lshl_b32 s{S_H}, s{S_T2}, 3')
    e(f's_and_b32 s{S_T3}, s{S_T1}, 7')
    e(f's_add_u32 s{S_H}, s{S_H}, s{S_T3}')
    e(f's_lshr_b32 s{S_BL}, s{S_T1}, 3')
    e(f's_mul_i32 s{S_KX}, s{S_BL}, 5')
    e(f's_add_u32 s{S_KX}, s{S_KX}, 1')
    e(f's_lshr_b32 s{S_KX}, s{S_KX}, 1')
    e(f's_add_u32 s{S_KX}, s{S_KX}, s{S_T3}')
    e(f's_cmp_ge_u32 s{S_KX}, 10')
    e(f's_cselect_b32 s{S_T3}, 10, 0')
    e(f's_sub_u32 s{S_KX}, s{S_KX}, s{S_T3}')
    if o.blk == 0:
        e(f's_mul_i32 s{S_QT}, s{S_T1}, 13')
        e(f's_lshr_b32 s{S_QT}, s{S_QT}, 6')
        e(f's_mul_i32 s{S_T3}, s{S_QT}, 5')
        e(f's_sub_u32 s{S_NT}, s{S_T1}, s{S_T3}')
        e(f's_and_b32 s{S_T3}, s{S_T2}, 1')
        e(f's_mul_i32 s{S_T3}, s{S_T3}, 5')
        e(f's_add_u32 s{S_NT}, s{S_NT}, s{S_T3}')
        e(f's_lshr_b32 s{S_T3}, s{S_T2}, 1')
        e(f's_mul_i32 s{S_T3}, s{S_T3}, 6')
        e(f's_add_u32 s{S_QT}, s{S_QT}, s{S_T3}')
    elif o.blk == 1:
        e(f's_mul_i32 s{S_QT}, s{S_T1}, 26')
        e(f's_lshr_b32 s{S_QT}, s{S_QT}, 8')
        e(f's_mul_i32 s{S_T3}, s{S_QT}, 10')
        e(f's_sub_u32 s{S_NT}, s{S_T1}, s{S_T3}')
        e(f's_mul_i32 s{S_T3}, s{S_T2}, 3')
        e(f's_add_u32 s{S_QT}, s{S_QT}, s{S_T3}')
    else:
        e(f's_mul_i32 s{S_T3}, s{S_T2}, 30')
        e(f's_add_u32 s{S_T3}, s{S_T3}, s{S_T1}')
        e(f's_mul_i32 s{S_NT}, s{S_T3}, 171')
        e(f's_lshr_b32 s{S_NT}, s{S_NT}, 11')
        e(f's_mul_i32 s{S_QT}, s{S_NT}, 12')
        e(f's_sub_u32 s{S_QT}, s{S_T3}, s{S_QT}')
    e(f's_cmp_ge_u32 s{S_T1}, 30')
    e(f's_cselect_b32 s{S_NT}, 15, s{S_NT}')
    e(f's_cselect_b32 s{S_QT}, 0, s{S_QT}')
    e(f's_mul_i32 s{S_QB}, s{S_QT}, 11')
    e(f's_lshr_b32 s{S_QB}, s{S_QB}, 5')
    e(f's_lshl_b32 s{S_STB}, s2, 2')
    e(f's_add_u32 s{S_STB}, s{S_STB}, s{S_WAVE}')
    e(f's_lshl_b32 s{S_STB}, s{S_STB}, 8')
    e(f's_add_u32 s{S_STB}, s{S_STB}, {WS_STAMP}')
    e('s_waitcnt lgkmcnt(0)')
    e(f's_cmp_eq_u32 s{S_BR}, 0')
    for srd, i, size in ((S_X, 0, 983040), (S_K, 1, 1 << 26), (S_V, 2, 1 << 26), (S_WQ, 3, 5242880), (S_WO, 4, 5242880)):
        e(f's_cselect_b64 {sr(srd,2)}, {sr(S_KARG+2*i,2)}, {sr(S_KARG+10+2*i,2)}')
        e(f's_mov_b32 s{srd+2}, {size}')
        e(f's_mov_b32 s{srd+3}, 0x20000')
    for srd, i, size in ((S_OUT, 10, 1966080), (S_WS, 12, 16777216)):
        e(f's_mov_b64 {sr(srd,2)}, {sr(S_KARG+2*i,2)}')
        e(f's_mov_b32 s{srd+2}, {size}')
        e(f's_mov_b32 s{srd+3}, 0x20000')
    e(f's_mov_b64 {sr(S_DBG,2)}, {sr(S_KARG+22,2)}')
    for srd in (S_X, S_K, S_V, S_WQ, S_WO, S_OUT, S_WS):
        e(f's_and_b32 s{srd+1}, s{srd+1}, 0xffff')
    e(f's_cmp_eq_u32 s{S_NT}, 15')
    e(f's_cselect_b32 s{S_WO+2}, 0, s{S_WO+2}')
    e(f's_lshl_b32 s{S_WOB}, s{S_NT}, 7')
    e(f's_cmp_ge_u32 s{S_NT}, 5')
    e(f's_cselect_b32 s{S_T0}, {5 if o.blk == 0 else 0}, 0')
    e(f's_sub_u32 s{S_RHO}, s{S_NT}, s{S_T0}')
    e(f's_mul_i32 s{S_RHO}, s{S_RHO}, {o.rot}')
    e(f's_and_b32 s{S_RHO}, s{S_RHO}, 15')
    e(f's_lshl_b32 s{S_XL}, s{S_WAVE}, 13')

RING = 32768
def reg_w(s): return (32768, 73728, 114688)[(s + 2) % 3]
def reg_x(s): return (49152, 90112, 0)[(s + 2) % 3]

SEQ = ['K0']
for k in range(32): SEQ += [f'K{k+1}', f'V{k}']
SEQ += [f'T{i}' for i in range(8)]
POS = {n: i for i, n in enumerate(SEQ)}
def slot(name): return (6 + POS[name]) % 8
def slot_addr(name): return RING + slot(name) * SLOT

def wo_dma(o, c, ldsbase_s, ldsoff, wob, vw, dyn=False):
    r = []
    if o.no_w and dyn: return ['s_nop 0']
    if dyn:
        r += [f's_mul_i32 s{S_T0}, s{S_WC}, {64*1280}', f's_add_u32 s{S_WC}, s{S_WC}, 1', f's_and_b32 s{S_WC}, s{S_WC}, 15']
    else:
        r += [f's_add_u32 s{S_T0}, s{S_RHO}, {c}', f's_and_b32 s{S_T0}, s{S_T0}, 15', f's_mul_i32 s{S_T0}, s{S_T0}, {64*1280}']
    r.append(f's_add_u32 s{S_T0}, s{S_T0}, {wob}')
    for g_ in range(2):
        r.append(f's_add_u32 m0, {ldsbase_s}, {ldsoff + 4096*g_}' if ldsbase_s else f's_mov_b32 m0, {ldsoff + 4096*g_}')
        r.append(f's_add_u32 s{S_T1}, s{S_T0}, {32*g_*1280}')
        for i in range(4):
            r.append(f'buffer_load_dwordx4 v{vw+i}, {sr(S_WO,4)}, s{S_T1} offen offset:{1024*i} {o.wo_flags} lds')
    return r

def wo_voffs(e, dst):
    L = V_LANE
    e(f'v_lshrrev_b32 v{V_T0}, 3, v{L}')
    e(f'v_mul_u32_u24 v{V_T0}, 1280, v{V_T0}')
    e(f'v_bfe_u32 v{V_T1}, v{L}, 4, 1')
    e(f'v_lshlrev_b32 v{V_T1}, 2, v{V_T1}')
    e(f'v_and_b32 v{V_T2}, 7, v{L}')
    e(f'v_xor_b32 v{V_T1}, v{V_T1}, v{V_T2}')
    e(f'v_lshl_add_u32 v{dst}, v{V_T1}, 4, v{V_T0}')
    for i in range(1, 4): e(f'v_add_u32 v{dst+i}, {(10240-1024)*i}, v{dst}')

def wo_lane_addr(e, dst):
    L = V_LANE
    e(f'v_lshrrev_b32 v{V_T0}, 5, v{L}')
    e(f'v_bfe_u32 v{V_T1}, v{L}, 2, 2')
    e(f'v_lshl_add_u32 v{dst}, v{V_T0}, 2, v{V_T1}')
    e(f'v_lshlrev_b32 v{dst}, 7, v{dst}')
    e(f'v_bfe_u32 v{V_T3}, v{L}, 3, 1')
    e(f'v_lshl_add_u32 v{dst}, v{V_T3}, 6, v{dst}')
    e(f'v_bfe_u32 v{V_T3}, v{L}, 4, 1')
    e(f'v_lshl_add_u32 v{dst}, v{V_T3}, 5, v{dst}')
    e(f'v_and_b32 v{V_T3}, 3, v{L}')
    e(f'v_lshl_add_u32 v{dst}, v{V_T3}, 3, v{dst}')

def wo_reads(dstf, a0, a1, off):
    r = []
    for s4 in range(4):
        for nt in range(2):
            for u in range(2):
                r.append(f'ds_read_b64_tr_b16 {dstf(8*s4+4*nt+2*u,2)}, v{(a0,a1)[nt]} offset:{off+(16*s4+8*u)*128}')
    return r

def poll(e, o, tag, load, cmpv):
    e(f's_mov_b32 s{S_CNT}, 0x400000')
    e.lab(f'L_poll_{tag}')
    e(load)
    e('s_waitcnt vmcnt(0)')
    e(f'v_and_b32 v{V_T2}, {cmpv}, v{V_T2}')
    e(f'v_cmp_eq_u32 vcc, {cmpv}, v{V_T2}')
    e('s_cmp_eq_u64 vcc, -1')
    e(f's_cbranch_scc1 L_polled_{tag}')
    e(f's_sleep {o.psleep}')
    e(f's_sub_u32 s{S_CNT}, s{S_CNT}, 1')
    e(f's_cmp_lg_u32 s{S_CNT}, 0')
    e(f's_cbranch_scc1 L_poll_{tag}')
    e.lab(f'L_polled_{tag}')

def loader(e, o):
    L = V_LANE
    VK, VV, VW, VWO, VF, VP = 24, 16, 20, 12, 17, 18
    vm = Vm(e)
    e(f'v_lshrrev_b32 v{V_T0}, 4, v{L}')
    e(f'v_and_b32 v{V_T1}, 15, v{L}')
    e(f'v_lshlrev_b32 v{V_T3}, 2, v{V_T0}')
    e(f'v_xor_b32 v{V_T3}, v{V_T3}, v{V_T1}')
    e(f'v_lshlrev_b32 v{V_T2}, 13, v{V_T0}')
    e(f'v_lshl_add_u32 v{VW}, v{V_T3}, 4, v{V_T2}')
    for i in range(1, 4): e(f'v_add_u32 v{VW+i}, {(32768-1024)*i}, v{VW}')
    e(f's_lshl_b32 s{S_WQB}, s{S_H}, 8')
    def wq(s):
        vm.room(16)
        e(f's_lshl_b32 s{S_T0}, s{S_KX}, 19')
        e(f's_add_u32 s{S_T0}, s{S_T0}, s{S_WQB}')
        for g in range(4):
            e(f's_mov_b32 m0, {reg_w(s) + 4096*g}')
            e(f's_add_u32 s{S_T1}, s{S_T0}, {g*4*32768}')
            for i in range(4):
                e(f'buffer_load_dwordx4 v{VW+i}, {sr(S_WQ,4)}, s{S_T1} offen offset:{1024*i} {o.w_flags} lds')
        e(f's_add_u32 s{S_KX}, s{S_KX}, 1')
        e(f's_cmp_eq_u32 s{S_KX}, 10')
        e(f's_cselect_b32 s{S_KX}, 0, s{S_KX}')
        vm.add(f'wq{s}', 16)
    wq(0); wq(1); wq(2)
    e(f'v_lshlrev_b32 v{V_T2}, 8, v{V_T0}')
    e(f'v_lshl_add_u32 v{VV}, v{V_T3}, 4, v{V_T2}')
    for i in range(4):
        e(f'v_add_u32 v{V_T3}, {4*i}, v{V_T0}')
        e(f'v_xor_b32 v{V_T3}, v{V_T3}, v{V_T1}')
        e(f'v_lshl_add_u32 v{VK+i}, v{V_T3}, 4, v{V_T2}')
    e(f's_lshl_b32 s{S_KVB}, s{S_BL}, 5')
    e(f's_add_u32 s{S_KVB}, s{S_KVB}, s{S_H}')
    e(f's_lshl_b32 s{S_KVB}, s{S_KVB}, 18')
    wo_voffs(e, VWO)
    wo_lane_addr(e, V_WA)
    e(f'v_add_u32 v{V_WA}, {3*8192}, v{V_WA}')
    e(f'v_xor_b32 v{V_WA+1}, 64, v{V_WA}')
    e(f'v_lshlrev_b32 v{V_OST}, 4, v{L}')
    e(f's_lshl_b32 s{S_T0}, s{S_BR}, 2')
    e(f's_add_u32 s{S_T1}, s{S_T0}, s{S_BL}')
    e(f's_lshl_b32 s{S_T1}, s{S_T1}, 5')
    e(f's_add_u32 s{S_T1}, s{S_T1}, s{S_H}')
    e(f'v_mov_b32 v{VF}, s{S_T1}')
    e(f's_add_u32 s{S_T0}, s{S_T0}, s{S_QB}')
    e(f's_lshl_b32 s{S_T0}, s{S_T0}, 5')
    e(f'v_and_b32 v{VP}, 7, v{L}')
    e(f'v_lshlrev_b32 v{VP}, 2, v{VP}')
    e(f'v_add_u32 v{VP}, s{S_T0}, v{VP}')
    e(f's_add_u32 s{S_WQB+0}, s{S_WQB}, 0')
    vm.stamp(o, 0)
    def issue(name):
        kind, t = name[0], int(name[1:])
        if kind == 'K' and t > 31: return
        base = slot_addr(name)
        if kind in 'KV':
            vm.room(16)
            off = (t // 16) * (4 * 32 * 262144) + (t % 16) * SLOT
            for g in range(4):
                e(f's_mov_b32 m0, {base + 4096*g}')
                e(f's_add_u32 s{S_T1}, s{S_KVB}, {off + 4096*g}')
                for i in range(4):
                    v = VK + i if kind == 'K' else VV
                    e(f'buffer_load_dwordx4 v{v}, {sr(S_K if kind == "K" else S_V,4)}, s{S_T1} offen offset:{1024*i} {o.kv_flags} lds')
        else:
            r = slot(name); j, hi = 1 + (r >> 1), r & 1
            if j == 4: return
            vm.room(16)
            for p in range(2):
                e(f's_add_u32 s{S_T2}, s{S_WOB}, {1024*1280*(2*hi+p)}')
                e.many(wo_dma(o, 8 + j, None, base + 8192 * p, f's{S_T2}', VWO))
        vm.add(name, 16)
    def own_w(c):
        if o.no_w3: return
        vm.room(8)
        e(f's_add_u32 s{S_T2}, s{S_WOB}, {1024*1280*3}')
        e.many(wo_dma(o, c, None, 3 * 8192, f's{S_T2}', VWO))
        vm.add(f'w{c}', 8)
    def wait_upto(n):
        for m in range(n, -1, -1):
            if vm.has(SEQ[m]): vm.wait(SEQ[m]); return
    def flag(val):
        e(f'v_mov_b32 v{V_T2}, {val}')
        e('s_mov_b64 exec, 1')
        e(f'global_store_byte v{VF}, v{V_T2}, {sr(S_DBG,2)} sc1')
        e('s_mov_b64 exec, -1')
    for s in range(10):
        vm.wait(f'wq{s}')
        e('s_barrier')
        vm.stamp(o, 16 + s)
        if 1 <= s <= 7: wq(s + 2)
        if s == 8: issue('V0'); issue('K2')
        if s == 9: issue('V1'); issue('K3'); issue('V2')
    e('s_barrier')
    issued = POS['V2']
    pl = f'global_load_dword v{V_T2}, v{VP}, {sr(S_DBG,2)} sc1'
    for k in range(32):
        wait_upto(POS[f'V{k}'])
        vm.stamp(o, 32 + k) if o.tickst == 1 else None
        e('s_barrier')
        vm.stamp(o, 32 + k) if o.tickst == 2 else None
        if k == 18:
            vm.room(1); flag(1); vm.add('f1', 1)
        if k == 15: own_w(0)
        if k >= 17 and (k & 1):
            ci = (k - 17) >> 1
            vm.wait(f'w{ci}')
            e.many(wo_reads(lambda off, n: hold(ci, off, n), V_WA, V_WA + 1, 0))
        if k == 27:
            vm.room(1)
            e(pl.replace(f'v{V_T2},', 'v19,'))
            vm.add('pl', 1)
        first = POS[f'K{k+1}']
        lim = min(first + o.look, first + 7, POS['T6'])
        if k == 31: lim = POS['T6']
        while issued < lim:
            issued += 1
            issue(SEQ[issued])
            while vm.out() > o.thr and k < 31: vm.wait(vm.q[0][0])
        if k == 27:
            vm.wait('pl')
            e(f'v_and_b32 v19, 0x01010101, v19')
            e(f'v_cmp_eq_u32 vcc, 0x01010101, v19')
            e('s_cmp_eq_u64 vcc, -1')
            e(f's_cbranch_scc1 L_ok{k}')
            poll(e, o, f'l{k}', pl, '0x01010101')
            e.lab(f'L_ok{k}')
        if k >= 17 and (k & 1):
            e('s_waitcnt lgkmcnt(0)')
            if k < 31 or not o.c8late: own_w(((k - 17) >> 1) + 1)
    e('s_barrier')
    flag(3)
    e('s_waitcnt vmcnt(1)')

def phase_a(e, o):
    L = V_LANE
    VA, VB = V_Q, V_Q + 4
    AF = [V_SA, V_SB]; BF = [V_P, V_TMP]; ACC = [128, 192]
    e(f'v_lshrrev_b32 v{V_T0}, 3, v{L}')
    e(f'v_mul_u32_u24 v{V_T0}, 1280, v{V_T0}')
    e(f'v_lshrrev_b32 v{V_T1}, 4, v{L}')
    e(f'v_and_b32 v{V_T2}, 7, v{L}')
    e(f'v_xor_b32 v{V_T1}, v{V_T1}, v{V_T2}')
    for i in range(4):
        e(f'v_xor_b32 v{V_T2}, {4*(i&1)}, v{V_T1}')
        e(f'v_lshl_add_u32 v{V_DMA+i}, v{V_T2}, 4, v{V_T0}')
        if i: e(f'v_add_u32 v{V_DMA+i}, {(10240-1024)*i}, v{V_DMA+i}')
    e(f's_mul_i32 s{S_XB}, s{S_BL}, 3')
    e(f's_add_u32 s{S_XB}, s{S_XB}, s{S_WAVE}')
    e(f's_mul_i32 s{S_OB}, s{S_BR}, 24')
    e(f's_add_u32 s{S_OB}, s{S_OB}, s{S_XB}')
    e(f's_mul_i32 s{S_XB}, s{S_XB}, 40960')
    def xload(s, it):
        r = []
        if it == 0:
            r.append(f's_lshl_b32 s{S_T0}, s{S_KX}, 7')
            r.append(f's_add_u32 s{S_T0}, s{S_T0}, s{S_XB}')
        r.append(f's_add_u32 m0, s{S_XL}, {reg_x(s) + 4096*it}')
        r.append(f's_add_u32 s{S_T1}, s{S_T0}, {491520*it}')
        for i in range(4):
            r.append(f'buffer_load_dwordx4 v{V_DMA+i}, {sr(S_X,4)}, s{S_T1} offen offset:{1024*i} {o.w_flags} lds')
        if it == 1:
            r.append(f's_add_u32 s{S_KX}, s{S_KX}, 1')
            r.append(f's_cmp_eq_u32 s{S_KX}, 10')
            r.append(f's_cselect_b32 s{S_KX}, 0, s{S_KX}')
        return r
    for s in range(3):
        e.many(xload(s, 0)); e.many(xload(s, 1))
    e(f's_lshl_b32 s{S_KVB}, s{S_BL}, 5')
    e(f's_add_u32 s{S_KVB}, s{S_KVB}, s{S_H}')
    e(f's_lshl_b32 s{S_KVB}, s{S_KVB}, 18')
    e(f's_mul_i32 s{S_T0}, s{S_WAVE}, 11')
    e(f'v_lshrrev_b32 v{V_T0}, 4, v{L}')
    e(f'v_and_b32 v{V_T1}, 15, v{L}')
    e(f'v_lshlrev_b32 v{V_T2}, 8, v{V_T0}')
    for t in range(4):
        e(f's_add_u32 s{S_T1}, s{S_T0}, {t}')
        e(f's_and_b32 s{S_T1}, s{S_T1}, 3')
        e(f's_lshl_b32 s{S_T1}, s{S_T1}, 2')
        e(f'v_add_u32 v{V_T3}, s{S_T1}, v{V_T0}')
        e(f'v_xor_b32 v{V_T3}, v{V_T3}, v{V_T1}')
        e(f'v_lshl_add_u32 v{V_KA+t}, v{V_T3}, 4, v{V_T2}')
    e(f's_lshl_b32 s{S_T0}, s{S_T0}, 10')
    e(f's_add_u32 s{S_T2}, s{S_T0}, s{S_KVB}')
    for t in range(11):
        if t % 4 == 0:
            e(f's_add_u32 m0, s{S_T0}, {slot_addr("K0") + 1024*t}')
            e(f's_add_u32 s{S_T1}, s{S_T2}, {1024*t}')
        e(f'buffer_load_dwordx4 v{V_KA+(t&3)}, {sr(S_K,4)}, s{S_T1} offen offset:{1024*(t&3)} {o.kv_flags} lds')
    e(f's_lshl_b32 s{S_OB}, s{S_OB}, 5')
    e(f's_add_u32 s{S_OB}, s{S_OB}, s{S_H}')
    e(f's_lshl_b32 s{S_OB}, s{S_OB}, 13')
    e(f'v_lshrrev_b32 v{V_T0}, 5, v{L}')
    e(f'v_bfe_u32 v{V_T1}, v{L}, 2, 2')
    e(f'v_lshl_add_u32 v{V_T2}, v{V_T0}, 3, v{V_T1}')
    e(f'v_lshlrev_b32 v{V_T2}, 8, v{V_T2}')
    e(f'v_lshl_add_u32 v{V_T2}, v{V_T1}, 6, v{V_T2}')
    e(f'v_bfe_u32 v{V_T3}, v{L}, 4, 1')
    e(f'v_lshl_add_u32 v{V_T2}, v{V_T3}, 5, v{V_T2}')
    e(f'v_and_b32 v{V_T3}, 1, v{L}')
    e(f'v_lshl_add_u32 v{V_T2}, v{V_T3}, 4, v{V_T2}')
    e(f'v_bfe_u32 v{V_T3}, v{L}, 1, 1')
    e(f'v_lshl_add_u32 v{V_T2}, v{V_T3}, 3, v{V_T2}')
    for t in range(4):
        e(f'v_xor_b32 v{VA+t}, {64*t}, v{V_T2}')
        e(f'v_add_u32 v{VA+t}, {reg_w(0)}, v{VA+t}')
    e(f'v_and_b32 v{V_T1}, 31, v{L}')
    e(f'v_bfe_u32 v{V_T2}, v{L}, 1, 3')
    e(f'v_xor_b32 v{V_T2}, v{V_T2}, v{V_T0}')
    e(f'v_lshlrev_b32 v{V_T2}, 4, v{V_T2}')
    e(f'v_lshl_add_u32 v{V_T2}, v{V_T1}, 7, v{V_T2}')
    e(f's_add_u32 s{S_T0}, s{S_XL}, {reg_x(0)}')
    for s4 in range(4):
        e(f'v_xor_b32 v{VB+s4}, {32*s4}, v{V_T2}')
        e(f'v_add_u32 v{VB+s4}, s{S_T0}, v{VB+s4}')
    e(f'v_and_b32 v{V_T2}, 15, v{L}')
    e(f'v_xor_b32 v{V_T2}, v{V_T2}, v{V_T0}')
    e(f'v_lshlrev_b32 v{V_T2}, 4, v{V_T2}')
    e(f'v_lshl_add_u32 v{V_T2}, v{V_T1}, 8, v{V_T2}')
    for s in range(8):
        e(f'v_xor_b32 v{V_KA+s}, {32*s}, v{V_T2}')
        e(f'v_add_u32 v{V_KA+s}, {slot_addr("K0")}, v{V_KA+s}')
    e(f'v_bfe_u32 v{V_T1}, v{L}, 2, 2')
    e(f'v_lshl_add_u32 v{V_T2}, v{V_T0}, 2, v{V_T1}')
    e(f'v_lshlrev_b32 v{V_T2}, 8, v{V_T2}')
    e(f'v_lshl_add_u32 v{V_T2}, v{V_T1}, 6, v{V_T2}')
    e(f'v_bfe_u32 v{V_T3}, v{L}, 4, 1')
    e(f'v_lshl_add_u32 v{V_T2}, v{V_T3}, 5, v{V_T2}')
    e(f'v_and_b32 v{V_T3}, 3, v{L}')
    e(f'v_lshl_add_u32 v{V_T2}, v{V_T3}, 3, v{V_T2}')
    e(f'v_add_u32 v{V_T2}, {RING}, v{V_T2}')
    for t in range(4): e(f'v_xor_b32 v{V_VA+t}, {64*t}, v{V_T2}')
    e(f'v_lshlrev_b32 v{V_OST}, 4, v{L}')
    wo_lane_addr(e, V_WA)
    e(f'v_add_u32 v{V_WA}, s{S_XL}, v{V_WA}')
    e(f'v_xor_b32 v{V_WA+1}, 64, v{V_WA}')
    e(f's_mul_i32 s{S_WQB}, s{S_WAVE}, {1024*1280}')
    e(f's_add_u32 s{S_WQB}, s{S_WQB}, s{S_WOB}')
    e(f's_mov_b32 s{S_WC}, s{S_RHO}')
    for i in range(64): e(f'v_accvgpr_write_b32 a{i}, 0')
    for i in range(16): e(f'v_mov_b32 v{V_NEGM+i}, 0')
    for i in range(4): e(f'v_mov_b32 v{V_L+i}, 0')
    c = math.log2(math.e) / math.sqrt(128.0)
    e(f's_mov_b32 s{S_C}, {hex(struct.unpack("<I", struct.pack("<f", c))[0])}')
    e(f's_mov_b32 s{S_THR}, 0xff800000')
    e(f's_mov_b32 s{S_FLOOR}, 0xff800000')
    e(f's_mov_b32 s{S_TICK}, 0')
    e(f's_mov_b32 s{S_KOFF}, {7*SLOT}')
    e(f's_mov_b32 s{S_VOFF}, 0')
    nst = stamp(e, o, 0) + stamp(e, o, 8, clk=True)
    def reads(s4, buf):
        r = [f'ds_read_b128 {vr(BF[buf]+4*it,4)}, v{VB+s4} offset:{4096*it}' for it in range(2)]
        for t in range(4):
            for u in range(2):
                r.append(f'ds_read_b64_tr_b16 {vr(AF[buf]+4*t+2*u,2)}, v{VA+t} offset:{(16*s4+4*u)*256}')
        return r
    def mf(buf, first):
        r = []
        for t in range(4):
            for it in range(2):
                d = vr(ACC[it] + 16 * t, 16)
                r.append(mfma(d, vr(AF[buf] + 4 * t, 4), vr(BF[buf] + 4 * it, 4), '0' if first else d))
        return r
    e(f's_waitcnt vmcnt({16 + 11 + nst})')
    e('s_barrier')
    e.many(reads(0, 0))
    for s in range(10):
        for s4 in range(4):
            step = 4 * s + s4; buf = step & 1
            m = mf(buf, step == 0)
            late = []
            e('s_waitcnt lgkmcnt(0)')
            if s4 == 3:
                if s < 9:
                    e(f's_waitcnt vmcnt({(8 if s + 2 <= 9 else 0) + ((11 + nst) if s < 2 else 0)})')
                e('s_barrier')
                if s + 3 <= 9: late = xload(s + 3, 0)
            if s4 == 0 and s >= 1 and s + 2 <= 9: late = xload(s + 2, 1)
            if s4 == 2 and s < 9:
                late = []
                for r in range(8):
                    d = reg_w(s + 1) - reg_w(s) if r < 4 else reg_x(s + 1) - reg_x(s)
                    late.append(f'v_add_u32 v{VA+r}, {d}, v{VA+r}' if d > 0 else f'v_subrev_u32 v{VA+r}, {-d}, v{VA+r}')
            front = reads((s4 + 1) & 3, buf ^ 1) if step < 39 else []
            gaps(e, m, front, late)
    wo_voffs(e, V_DMA)
    e('s_nop 4')
    def conv(i, src, dst):
        a = src + 2 * i
        return [f'v_mul_f32 v{a}, s{S_C}, v{a}', f'v_mul_f32 v{a+1}, s{S_C}, v{a+1}', f'v_cvt_pk_bf16_f32 v{dst+i}, v{a}, v{a+1}']
    e.conv = conv
    for i in range(16): e.many(conv(i, ACC[0], V_Q))
    e.many(k_reads(0))
    for i in range(16, 32): e.many(conv(i, ACC[0], V_Q))

def k_reads(half):
    return [f'ds_read_b128 {vr(V_KF+4*s,4)}, v{V_KA+s} offset:{8192*half}' for s in range(8)]
def v_reads(half):
    r = []
    for jj in range(2):
        for t in range(4):
            for u in range(2):
                r.append(f'ds_read_b64_tr_b16 {vr(V_VF+16*jj+4*t+2*u,2)}, v{V_VA+t} offset:{(32*half+16*jj+8*u)*256}')
    return r
def qk(S):
    return [mfma(vr(S, 16), vr(V_KF + 4 * s, 4), vr(V_Q + 4 * s, 4), vr(V_NEGM, 16) if s == 0 else vr(S, 16)) for s in range(8)]
def pv():
    return [mfma(ar(16 * t, 16), vr(V_VF + 16 * jj + 4 * t, 4), vr(V_P + 4 * jj, 4), ar(16 * t, 16)) for jj in range(2) for t in range(4)]
def maxes(S):
    r = [f'v_max3_f32 v{V_MX}, v{S}, v{S+1}, v{S+2}', f'v_max3_f32 v{V_D}, v{S+3}, v{S+4}, v{S+5}']
    r += [f'v_max3_f32 v{V_MX}, v{V_MX}, v{S+6}, v{S+7}', f'v_max3_f32 v{V_D}, v{V_D}, v{S+8}, v{S+9}']
    r += [f'v_max3_f32 v{V_MX}, v{V_MX}, v{S+10}, v{S+11}', f'v_max3_f32 v{V_D}, v{V_D}, v{S+12}, v{S+13}']
    r += [f'v_max3_f32 v{V_MX}, v{V_MX}, v{S+14}, v{S+15}', f'v_max_f32 v{V_MX}, v{V_MX}, v{V_D}']
    r += [f'v_cmp_lt_f32 vcc, s{S_THR}, v{V_MX}']
    return r

def half_tick(e, Snew, Sold, vhalf, khalf, extra_v=(), extra_k=()):
    ex = lambda i: f'v_exp_f32 v{Sold+i}, v{Sold+i}'
    cv = lambda i: f'v_cvt_pk_bf16_f32 v{V_P+i}, v{Sold+2*i}, v{Sold+2*i+1}'
    ad = lambda i: f'v_add_f32 v{V_L+(i&3)}, v{V_L+(i&3)}, v{Sold+i}'
    m = qk(Snew) + pv()
    m[8] = ['s_waitcnt lgkmcnt(0)', m[8]]
    fill = v_reads(vhalf) + [ex(i) for i in range(8)] + list(extra_v) + [cv(i) for i in range(4)] + [ex(i) for i in range(8, 12)]
    fill += [('M', 8), ('A', 8)] + (k_reads(khalf) if khalf is not None else []) + [ex(i) for i in range(12, 16)] + [ad(0)]
    fill += [cv(i) for i in range(4, 8)] + [ad(1), ad(2)]
    fill += [('M', 12)] + [ad(i) for i in range(3, 16)]
    fill += list(extra_k) + maxes(Snew)
    e('s_waitcnt lgkmcnt(0)')
    interleave(e, m, fill)

def last_half(e, Sold):
    ex = lambda i: f'v_exp_f32 v{Sold+i}, v{Sold+i}'
    cv = lambda i: f'v_cvt_pk_bf16_f32 v{V_P+i}, v{Sold+2*i}, v{Sold+2*i+1}'
    ad = lambda i: f'v_add_f32 v{V_L+(i&3)}, v{V_L+(i&3)}, v{Sold+i}'
    e.many(v_reads(1))
    e.many([ex(i) for i in range(8)] + [cv(i) for i in range(4)] + [ex(8), ex(9)])
    e('s_waitcnt lgkmcnt(0)')
    fill = [ex(i) for i in range(10, 16)] + [ad(0)] + [cv(i) for i in range(4, 8)] + [ad(1), ad(2), ('M', 4)] + [ad(i) for i in range(3, 16)]
    interleave(e, pv(), fill)

def rare(e, S, back):
    e('s_nop 7')
    e(f'v_mov_b32 v{V_T0}, v{V_MX}')
    e('s_nop 1')
    e(f'v_permlane32_swap_b32 v{V_T0}, v{V_MX}')
    e('s_nop 1')
    e(f'v_max_f32 v{V_D}, v{V_T0}, v{V_MX}')
    e(f'v_max_f32 v{V_D}, s{S_FLOOR}, v{V_D}')
    for i in range(16): e(f'v_sub_f32 v{S+i}, v{S+i}, v{V_D}')
    for i in range(16): e(f'v_sub_f32 v{V_NEGM+i}, v{V_NEGM+i}, v{V_D}')
    e(f's_cmp_lg_u32 s{S_FLOOR}, 0')
    e(f's_mov_b32 s{S_THR}, 0x41000000')
    e(f's_mov_b32 s{S_FLOOR}, 0')
    e(f's_cbranch_scc1 {back}')
    e(f'v_sub_f32 v{V_T0}, 0, v{V_D}')
    e(f'v_exp_f32 v{V_T0}, v{V_T0}')
    e('s_nop 0')
    for i in range(4): e(f'v_mul_f32 v{V_L+i}, v{V_L+i}, v{V_T0}')
    for i in range(0, 64, 4):
        for j in range(4): e(f'v_accvgpr_read_b32 v{V_TMP+j}, a{i+j}')
        for j in range(4): e(f'v_mul_f32 v{V_TMP+j}, v{V_TMP+j}, v{V_T0}')
        for j in range(4): e(f'v_accvgpr_write_b32 a{i+j}, v{V_TMP+j}')
    e('s_nop 1')
    e(f's_branch {back}')

def epilogue(e, o):
    e(f'v_add_f32 v{V_L}, v{V_L}, v{V_L+1}')
    e(f'v_add_f32 v{V_L+2}, v{V_L+2}, v{V_L+3}')
    e(f'v_add_f32 v{V_L}, v{V_L}, v{V_L+2}')
    e(f'v_mov_b32 v{V_T0}, v{V_L}')
    e('s_nop 1')
    e(f'v_permlane32_swap_b32 v{V_T0}, v{V_L}')
    e('s_nop 1')
    e(f'v_add_f32 v{V_L}, v{V_L}, v{V_T0}')
    e(f'v_rcp_f32 v{V_T0}, v{V_L}')
    e('s_nop 4')
    for f in range(8):
        t = V_VF + 8 * (f & 3)
        for j in range(8): e(f'v_accvgpr_read_b32 v{t+j}, a{8*f+j}')
        for j in range(8): e(f'v_mul_f32 v{t+j}, v{t+j}, v{V_T0}')
        d = V_TMP + 4 * (f & 1)
        for j in range(4): e(f'v_cvt_pk_bf16_f32 v{d+j}, v{t+2*j}, v{t+2*j+1}')
        if f == 4: e(f's_add_u32 s{S_OB}, s{S_OB}, 4096')
        e(f'buffer_store_dwordx4 {vr(d,4)}, v{V_OST}, {sr(S_WS,4)}, s{S_OB} offen offset:{1024*(f&3)} {o.ost_flags}')

def w_snippets(e, o, ret):
    e('s_waitcnt vmcnt(0)')
    def tree(lo, n):
        if n == 1:
            e.many(wo_reads(lambda off, nn: hold(lo, off, nn), V_WA, V_WA + 1, 0))
            e('s_branch L_sn_done')
            return
        h = (n + 1) // 2
        e(f's_cmp_ge_u32 s{S_T2}, {lo+h}')
        e(f's_cbranch_scc1 L_sn_{lo+h}')
        tree(lo, h)
        e.lab(f'L_sn_{lo+h}')
        tree(lo + h, n - h)
    tree(0, 7)
    e.lab('L_sn_done')
    e('s_waitcnt lgkmcnt(0)')
    e.many(wo_dma(o, 0, f's{S_XL}', 0, f's{S_WQB}', V_DMA, dyn=True))
    e(f's_branch {ret}')

def phase_b(e, o):
    stamp(e, o, 1); stamp(e, o, 9, clk=True)
    e('s_waitcnt lgkmcnt(0)')
    e.many(qk(V_SA))
    e.many(k_reads(1))
    for s in range(8): e(f'v_add_u32 v{V_KA+s}, {SLOT}, v{V_KA+s}')
    e('s_nop 3')
    e.many(maxes(V_SA))
    e('s_branch L_rare_a')
    def adv(soff, tmp, base, n):
        r = [f's_add_u32 s{tmp}, s{soff}, {2*SLOT}', f's_and_b32 s{tmp}, s{tmp}, {8*SLOT-1}',
             f's_sub_u32 s{S_T3}, s{tmp}, s{soff}', f's_mov_b32 s{soff}, s{tmp}']
        r += [f'v_add_u32 v{base+i}, s{S_T3}, v{base+i}' for i in range(n)]
        return r
    e.lab('L_tick')
    e('s_waitcnt lgkmcnt(0)')
    e('s_barrier')
    e(f's_cmp_eq_u32 s{S_TICK}, 31')
    e('s_cbranch_scc1 L_last')
    half_tick(e, V_SB, V_SA, 0, 0)
    e('s_cbranch_vccnz L_rare_b')
    e.lab('L_back_b')
    e(f's_cmp_eq_u32 s{S_TICK}, 15')
    e('s_cbranch_scc1 L_switch')
    e.lab('L_back_sw')
    half_tick(e, V_SA, V_SB, 1, 1, extra_v=adv(S_VOFF, S_T0, V_VA, 4), extra_k=adv(S_KOFF, S_T1, V_KA, 8))
    e(f's_add_u32 s{S_TICK}, s{S_TICK}, 1')
    e(f's_cmp_lt_u32 s{S_TICK}, 16')
    e('s_cbranch_scc0 L_item2')
    e.lab('L_snip_ret')
    e('s_cbranch_vccz L_tick')
    e.lab('L_rare_a')
    rare(e, V_SA, 'L_tick')
    e.lab('L_item2')
    e(f's_cmp_eq_u32 s{S_TICK}, 16')
    e('s_cbranch_scc1 L_epi1')
    e(f's_bitcmp1_b32 s{S_TICK}, 0')
    e('s_cbranch_scc1 L_snip_ret')
    e(f's_sub_u32 s{S_T2}, s{S_TICK}, 18')
    e(f's_lshr_b32 s{S_T2}, s{S_T2}, 1')
    w_snippets(e, o, 'L_snip_ret')
    e.lab('L_rare_b')
    rare(e, V_SB, 'L_back_b')
    e.lab('L_switch')
    for i in range(32): e.many(e.conv(i, V_Q2, V_Q))
    for i in range(16): e(f'v_mov_b32 v{V_NEGM+i}, 0')
    e('s_nop 1')
    e('s_branch L_back_sw')
    e.lab('L_epi1')
    epilogue(e, o)
    e(f's_add_u32 s{S_OB}, s{S_OB}, {RND - 4096}')
    e.many(wo_dma(o, 0, f's{S_XL}', 0, f's{S_WQB}', V_DMA, dyn=True))
    for i in range(64): e(f'v_accvgpr_write_b32 a{i}, 0')
    for i in range(4): e(f'v_mov_b32 v{V_L+i}, 0')
    e(f's_mov_b32 s{S_FLOOR}, 0xff800000')
    stamp(e, o, 2); stamp(e, o, 10, clk=True)
    e('s_branch L_rare_a')
    e.lab('L_rare_l')
    rare(e, V_SB, 'L_back_l')
    e.lab('L_last')
    e('s_waitcnt vmcnt(0)')
    e.many(wo_reads(lambda off, nn: hold(7, off, nn), V_WA, V_WA + 1, 0))
    half_tick(e, V_SB, V_SA, 0, None, extra_v=[] if o.c8late else wo_dma(o, 0, f's{S_XL}', 0, f's{S_WQB}', V_DMA, dyn=True))
    e('s_cbranch_vccnz L_rare_l')
    e.lab('L_back_l')
    last_half(e, V_SB)
    epilogue(e, o)

def tail_setup(e, o):
    e(f's_mul_i32 s{S_O1}, s{S_BR}, 24')
    e(f's_add_u32 s{S_O1}, s{S_O1}, s{S_QT}')
    e(f's_lshl_b32 s{S_O1}, s{S_O1}, 2')
    e(f's_add_u32 s{S_O1}, s{S_O1}, s{S_WAVE}')
    e(f's_lshl_b32 s{S_O1}, s{S_O1}, 16')

POOL = [16, 20, 24, 32, 36, 40, 44, 80, 84] + list(range(96, 192, 4)) + [88, 92]
ORDER1 = [0, 1, 2, 8, 3, 9, 4, 10, 5, 11, 6, 12, 7]
ORDER2 = [8, 0, 9, 1, 10, 2, 11, 3, 12, 4, 5, 6, 7, 13, 14, 15]

class Tail:
    def __init__(self, e, o):
        self.e, self.o = e, o
        self.vm = Vm(e)
        self.free = list(POOL)
        self.where = {}
        self.todo = []
    def oload(self, rnd, c):
        e = self.e
        regs = [self.free.pop(0) for _ in range(4)]
        self.where[(rnd, c)] = regs
        r = [f's_add_u32 s{S_T1}, s{S_RHO}, {c}', f's_and_b32 s{S_T1}, s{S_T1}, 15', f's_lshl_b32 s{S_T1}, s{S_T1}, 12',
             f's_add_u32 s{S_T1}, s{S_T1}, s{S_O1}']
        if rnd and not self.o.t_o1: r.append(f's_add_u32 s{S_T1}, s{S_T1}, {RND}')
        if rnd and self.o.t_noo: return []
        for s4 in range(4):
            r.append(f'buffer_load_dwordx4 {vr(regs[s4],4)}, v{V_OST}, {sr(S_WS,4)}, s{S_T1} offen offset:{1024*s4} {self.o.old_flags}')
        self.vm.add(f'o{rnd}_{c}', 4)
        return r
    def pump(self):
        r = []
        while self.todo and len(self.free) >= 4 and self.vm.out() + 4 <= 63:
            r += self.oload(*self.todo.pop(0))
        return r

def tail_pre(e, o):
    T = Tail(e, o)
    tail_setup(e, o)
    T.todo = [(0, c) for c in ORDER1] + [(0, c) for c in (13, 14, 15)]
    return T

def tail(e, o, T):
    L = V_LANE
    vm = T.vm
    RA = 6
    TEMP = 48
    e(f's_cmp_eq_u32 s{S_NT}, 15')
    e('s_cbranch_scc1 L_exit')
    e(f's_mul_i32 s{S_WQB}, s{S_WAVE}, {1024*1280}')
    e(f's_add_u32 s{S_WQB}, s{S_WQB}, s{S_WOB}')
    vm.room(8)
    e.many(wo_dma(o, 12, f's{S_XL}', 4 * 32768, f's{S_WQB}', V_DMA))
    vm.add('late', 8)
    e.many(T.pump())
    for b in range(3):
        e(f'v_add_u32 v{RA+2*b}, {65536*b}, v{V_WA}')
        e(f'v_add_u32 v{RA+2*b+1}, {65536*b}, v{V_WA+1}')
    e(f's_lshl_b32 s{S_T0}, s{S_BR}, 2')
    e(f's_add_u32 s{S_T0}, s{S_T0}, s{S_QB}')
    e(f's_lshl_b32 s{S_T0}, s{S_T0}, 2')
    e(f's_add_u32 s{S_T0}, s{S_T0}, s{S_WAVE}')
    e(f's_lshl_b32 s{S_T0}, s{S_T0}, 3')
    e(f'v_and_b32 v31, 1, v{L}')
    e(f'v_lshlrev_b32 v31, 2, v31')
    e(f'v_add_u32 v31, s{S_T0}, v31')
    piece = {8: 0, 9: 1, 10: 2, 11: 3, 12: 4, 13: 0, 14: 1, 15: 2}
    tmp_of = {}
    def rd(c, dstf):
        j = piece[c]
        return wo_reads(dstf, RA + 2 * (j >> 1), RA + 2 * (j >> 1) + 1, 32768 * (j & 1))
    def afrag(c):
        if c < 8: return lambda off, n: hold(c, off, n)
        if c >= 13: return lambda off, n: hold(c - 13, off, n)
        return lambda off, n: vr(TEMP + off, n)
    first = {0: True, 1: True}
    def mms(c, rnds):
        m = []
        for s4 in range(4):
            for rnd in rnds:
                for nt in range(2):
                    d = ar(32 * rnd + 16 * nt, 16)
                    m.append(mfma(d, afrag(c)(8 * s4 + 4 * nt, 4), vr(T.where[(rnd, c)][s4], 4), '0' if (first[rnd] and s4 == 0) else d))
        for rnd in rnds: first[rnd] = False
        return m
    def wdma(c):
        if o.t_now: return []
        vm.add(f'w{c}', 8)
        return wo_dma(o, c, f's{S_XL}', 32768 * piece[c], f's{S_WQB}', V_DMA)
    def run(order, rnd, second):
        pending_reads = False
        for i, c in enumerate(order):
            rnds = [0, 1] if c >= 13 else [rnd]
            nxt = order[i + 1] if i + 1 < len(order) else None
            if c >= 8: e('s_waitcnt lgkmcnt(0)')
            for r_ in rnds: vm.wait(f'o{r_}_{c}')
            front = []; late = []
            if second and c in (8, 9, 10):
                if vm.out() + 8 > 63: vm.room(8)
                late += wdma(c + 5)
            if nxt is not None and nxt >= 8 and not (c >= 8 and c < 13 and nxt < 13):
                if not second and nxt == 8:
                    vm.wait('w8')
                    e('s_barrier')
                if nxt == 12 and vm.has('late'): vm.wait('late')
                if nxt >= 13: vm.wait(f'w{nxt}')
                front = rd(nxt, afrag(nxt))
            m = mms(c, rnds)
            late += T.pump()
            gaps(e, m, front, late, per=3, late_from=0 if not front else 2)
            for r_ in rnds: T.free += T.where[(r_, c)]
    run(ORDER1, 0, False)
    e.many(T.pump())
    assert not T.todo
    vm.stamp(o, 5)
    e.many(rd(8, afrag(8)))
    poll(e, o, 'r2', f'global_load_dword v{V_T2}, v31, {sr(S_DBG,2)} sc1', '0x02020202')
    vm.q = []
    T.todo = [(1, c) for c in ORDER2]
    e.many(T.pump())
    vm.stamp(o, 6)
    run(ORDER2, 1, True)
    vm.stamp(o, 7)
    e(f'v_and_b32 v{V_T0}, 31, v{L}')
    e(f'v_lshrrev_b32 v{V_T1}, 5, v{L}')
    e(f'v_and_b32 v{V_T2}, 15, v{L}')
    e(f'v_xor_b32 v{V_T1}, v{V_T1}, v{V_T2}')
    e(f'v_lshlrev_b32 v{V_T1}, 4, v{V_T1}')
    e(f'v_lshl_add_u32 v{V_T0}, v{V_T0}, 8, v{V_T1}')
    e(f's_add_u32 s{S_T0}, s{S_XL}, {3*32768}')
    e(f'v_add_u32 v{V_T0}, s{S_T0}, v{V_T0}')
    for k in range(8): e(f'v_xor_b32 v{16+k}, {32*k}, v{V_T0}')
    e(f's_lshr_b32 s{S_T0}, s{S_WAVE}, 1')
    e(f's_and_b32 s{S_T1}, s{S_WAVE}, 1')
    for rnd in range(2):
        for nt in range(2):
            for g in range(4):
                e(f'ds_write_b128 v{16+4*nt+g}, {ar(32*rnd+16*nt+4*g,4)} offset:{rnd*32768}')
    e(f's_lshl_b32 s{S_T2}, s{S_T0}, 15')
    e(f's_lshl_b32 s{S_T3}, s{S_T1}, 12')
    e(f's_add_u32 s{S_T2}, s{S_T2}, s{S_T3}')
    e(f's_add_u32 s{S_T2}, s{S_T2}, {3*32768}')
    e(f'v_lshrrev_b32 v{V_T1}, 3, v{L}')
    e(f'v_and_b32 v{V_T3}, 7, v{L}')
    e(f'v_lshlrev_b32 v{V_T2}, 1, v{V_T3}')
    e(f'v_xor_b32 v{V_T2}, v{V_T2}, v{V_T1}')
    e(f'v_lshlrev_b32 v{V_T2}, 4, v{V_T2}')
    e(f'v_lshl_add_u32 v{V_T2}, v{V_T1}, 8, v{V_T2}')
    e(f'v_add_u32 v24, s{S_T2}, v{V_T2}')
    e(f'v_xor_b32 v25, 16, v24')
    e(f'v_xor_b32 v26, {2048+128}, v24')
    e(f'v_xor_b32 v27, 16, v26')
    e(f's_lshl_b32 s{S_T2}, s{S_QT}, 5')
    e(f's_mul_i32 s{S_T0}, s{S_T0}, 384')
    e(f's_add_u32 s{S_T2}, s{S_T2}, s{S_T0}')
    e(f's_lshl_b32 s{S_T1}, s{S_T1}, 4')
    e(f's_add_u32 s{S_T2}, s{S_T2}, s{S_T1}')
    e(f's_mul_i32 s{S_T2}, s{S_T2}, 2560')
    e(f's_mul_i32 s{S_T0}, s{S_BR}, 1280')
    e(f's_add_u32 s{S_T2}, s{S_T2}, s{S_T0}')
    e(f's_lshl_b32 s{S_T0}, s{S_NT}, 7')
    e(f's_add_u32 s{S_T2}, s{S_T2}, s{S_T0}')
    e(f'v_mul_u32_u24 v{V_T1}, 2560, v{V_T1}')
    e(f'v_lshl_add_u32 v{V_T1}, v{V_T3}, 4, v{V_T1}')
    e('s_waitcnt lgkmcnt(0)')
    e('s_barrier')
    for i in range(2):
        for p in range(4):
            for hh in range(2):
                e(f'ds_read_b128 {vr(32+32*i+8*p+4*hh,4)}, v{24+2*i+hh} offset:{8192*p}')
    for i in range(2):
        b = 32 + 32 * i
        e(f's_waitcnt lgkmcnt({8*(1-i)})')
        for j in range(8):
            e(f'v_add_f32 v{b+j}, v{b+j}, v{b+8+j}')
            e(f'v_add_f32 v{b+16+j}, v{b+16+j}, v{b+24+j}')
        for j in range(8): e(f'v_add_f32 v{b+j}, v{b+j}, v{b+16+j}')
        for j in range(4): e(f'v_cvt_pk_bf16_f32 v{b+8+j}, v{b+2*j}, v{b+2*j+1}')
        if i: e(f's_add_u32 s{S_T2}, s{S_T2}, {8*2560}')
        e(f'buffer_store_dwordx4 {vr(b+8,4)}, v{V_T1}, {sr(S_OUT,4)}, s{S_T2} offen')
    if o.stamps:
        e('s_waitcnt vmcnt(0)')
        stamp(e, o, 14)

KD = '''.amdhsa_kernel {n}
  .amdhsa_next_free_vgpr 512
  .amdhsa_next_free_sgpr 102
  .amdhsa_accum_offset 256
  .amdhsa_group_segment_fixed_size 0
  .amdhsa_kernarg_size 104
  .amdhsa_user_sgpr_count 2
  .amdhsa_user_sgpr_kernarg_segment_ptr 1
  .amdhsa_system_sgpr_workgroup_id_x 1
.end_amdhsa_kernel
'''

def gen(o):
    e = Em()
    k1 = NAME + '_kernel'
    e.raw('; @launch grid=(256,1,1) block=(256,1,1) lds=163840')
    e.raw('.amdgcn_target "amdgcn-amd-amdhsa--gfx950"')
    e.raw('.text')
    e.raw(f'.globl {k1}\n.p2align 8\n.type {k1},@function')
    e.lab(k1)
    prologue(e, o)
    e(f's_cmp_eq_u32 s{S_WAVE}, 3')
    e('s_cbranch_scc1 L_loader')
    phase_a(e, o)
    phase_b(e, o)
    T = tail_pre(e, o)
    pre = T.pump()
    npre = T.vm.out()
    e.many(pre)
    if o.c8late:
        e.many(wo_dma(o, 8, f's{S_XL}', 0, f's{S_WQB}', V_DMA))
        T.vm.add('w8', 8); npre += 8
    e(f's_waitcnt vmcnt({npre}) lgkmcnt(0)')
    e('s_barrier')
    if o.stamps:
        T.vm.stamp(o, 3); T.vm.stamp(o, 11, clk=True)
    e('s_branch L_join')
    e.lab('L_loader')
    loader(e, o)
    tail_setup(e, o)
    e.many(pre)
    if o.c8late:
        e(f's_add_u32 s{S_WQB}, s{S_WOB}, {3*1024*1280}')
        e.many(wo_dma(o, 8, f's{S_XL}', 0, f's{S_WQB}', V_DMA))
    if o.stamps:
        stamp(e, o, 3); stamp(e, o, 15)
    e.lab('L_join')
    tail(e, o, T)
    e.lab('L_exit')
    e('s_endpgm')
    e.raw('.section .rodata,"a"\n.p2align 6')
    e.raw(KD.format(n=k1))
    return e.text()

if __name__ == '__main__':
    o = Opt()
    out = sys.argv[1]
    for a in sys.argv[2:]:
        k, v = a.split('=', 1); v = v.replace('+', ' ')
        cur = getattr(o, k)
        setattr(o, k, (v == '1') if isinstance(cur, bool) else int(v) if isinstance(cur, int) else v)
    open(out, 'w').write(gen(o))
```

```python
import sys, math, struct
NAME = 'concat_heads__mha_block_cached__mha_block_cached__near_ridge'

class Opt:
    stamps = False
    kv_flags = 'nt'
    w_flags = ''
    wo_flags = ''
    ost_flags = 'sc1'
    old_flags = 'sc1'
    look = 7
    rot = 3
    tickst = 0
    no_w = False
    no_w3 = False
    t_now = False
    t_o1 = False
    t_noo = False
    c8late = True
    pf_kv = 0
    pf_wo = False
    pf_a = True
    pf_w = True
    pf_delay = 0
    pf_s0 = 2
    pf_mid = 0
    pf_flags = ''
    pf_tail = 0
    bal = 0
    k_first = True
    k_s0 = 1
    early = True
    chk = 8
    bal_k1 = 30
    psleep = 4
    thr = 32
    blk = 0

WS_FLAGS = 12582912
WS_STAMP = 13631488
SLOT = 16384
STAGE = 40960
RND = 12 * 32 * 8192

S_X, S_K, S_V, S_WQ, S_WO, S_OUT, S_WS = 4, 8, 12, 16, 20, 24, 28
S_DBG = 32
S_WAVE, S_BR, S_H, S_BL = 34, 35, 36, 37
S_T0, S_T1, S_T2, S_T3 = 38, 39, 40, 41
S_KX, S_XB, S_XL, S_KVB, S_TICK = 42, 43, 44, 45, 46
S_KOFF, S_VOFF, S_THR, S_FLOOR, S_C, S_OB, S_WQB = 47, 48, 49, 50, 51, 52, 53
S_ST, S_STB, S_QT, S_NT = 54, 56, 57, 58
S_SAVE = 60
S_WN, S_FL = 62, 63
S_EV = 59
S_KARG = 64
S_WOB, S_O1, S_QB, S_CNT, S_RHO, S_WC, S_N = 90, 91, 92, 93, 94, 95, 96

V_LANE = 1
V_T0, V_T1, V_T2, V_T3 = 2, 3, 4, 5
V_L, V_MX, V_D = 6, 10, 11
V_DMA = 12
V_KA, V_VA, V_OST, V_WA = 16, 24, 28, 29
V_NEGM = 32
V_SA, V_SB, V_P, V_TMP = 48, 64, 80, 88
V_Q, V_KF, V_VF, V_Q2 = 96, 128, 160, 192

class Em:
    def __init__(self): self.L = []
    def __call__(self, s): self.L.append('    ' + s)
    def lab(self, s): self.L.append(s + ':')
    def raw(self, s): self.L.append(s)
    def many(self, l):
        for x in l: self(x)
    def text(self): return '\n'.join(self.L) + '\n'

def vr(b, n=1): return f'v{b}' if n == 1 else f'v[{b}:{b+n-1}]'
def ar(b, n=1): return f'a{b}' if n == 1 else f'a[{b}:{b+n-1}]'
def sr(b, n=1): return f's{b}' if n == 1 else f's[{b}:{b+n-1}]'
def mfma(d, a, b, c): return f'v_mfma_f32_32x32x16_bf16 {d}, {a}, {b}, {c}'
def hold(ci, off, n):
    return ar(64 + 32 * ci + off, n) if ci < 6 else vr(192 + 32 * (ci - 6) + off, n)

def cost(i):
    if i.startswith('v_exp') or i.startswith('v_rcp'): return 8
    if i.startswith('s_'): return 2
    return 4

def interleave(e, mf, fill):
    total = sum(cost(f) for f in fill if not isinstance(f, tuple))
    per = total / len(mf)
    fi = 0; acc = 0.0
    deadline = {}; items = []
    for f in fill:
        if isinstance(f, tuple):
            if f[0] == 'M': deadline[f[1]] = len(items)
            else: items.append(f)
        else: items.append(f)
    for k, m in enumerate(mf):
        need = deadline.get(k, 0)
        while fi < need:
            it = items[fi]; fi += 1
            if isinstance(it, tuple):
                assert it[1] < k, (it, k)
                continue
            e(it); acc += cost(it)
        if isinstance(m, (list, tuple)): e.many(m)
        else: e(m)
        target = per * (k + 1)
        while fi < len(items) and (acc < target - 1.0 or k == len(mf) - 1):
            it = items[fi]
            if isinstance(it, tuple):
                if it[1] > k: break
                fi += 1; continue
            e(it); acc += cost(it); fi += 1
    assert fi == len(items)

def gaps(e, mf, front, late=(), per=2, late_from=5):
    g = [[] for _ in mf]
    for i, f in enumerate(front): g[min(i // per, len(mf) - 1)].append(f)
    n = len(mf) - late_from
    for i, f in enumerate(late): g[late_from + (i * n) // len(late)].append(f)
    for m, x in zip(mf, g):
        e(m); e.many(x)

def stamp(e, o, idx, clk=False):
    if not o.stamps: return 0
    e(f's_memtime {sr(S_ST,2)}' if clk else f's_memrealtime {sr(S_ST,2)}')
    e('s_waitcnt lgkmcnt(0)')
    e(f'v_mov_b32 v{V_T0}, s{S_ST}')
    e(f'v_mov_b32 v{V_T1}, s{S_STB}')
    e('s_mov_b64 exec, 1')
    e(f'buffer_store_dword v{V_T0}, v{V_T1}, {sr(S_WS,4)}, 0 offen offset:{4*idx}')
    e('s_mov_b64 exec, -1')
    return 1

class Vm:
    def __init__(self, e): self.e = e; self.q = []
    def out(self): return sum(c for _, c in self.q)
    def has(self, name): return name in [n for n, _ in self.q]
    def wait(self, name):
        names = [n for n, _ in self.q]
        if name not in names: return
        i = names.index(name)
        rest = sum(c for _, c in self.q[i + 1:])
        assert rest <= 63
        self.e(f's_waitcnt vmcnt({rest})')
        self.q = self.q[i + 1:]
    def room(self, c):
        while self.out() + c > 61: self.wait(self.q[0][0])
    def add(self, name, c):
        self.q.append((name, c)); assert self.out() <= 63, self.q
    def stamp(self, o, idx, clk=False):
        if o.stamps:
            self.room(1); stamp(self.e, o, idx, clk); self.add(f'st{idx}', 1)

def prologue(e, o):
    e('s_cmp_ge_u32 s2, 256')
    e('s_cbranch_scc1 L_exit')
    e(f's_load_dwordx16 {sr(S_KARG,16)}, s[0:1], 0')
    e(f's_load_dwordx8 {sr(S_KARG+16,8)}, s[0:1], 64')
    e(f's_load_dwordx2 {sr(S_KARG+24,2)}, s[0:1], 96')
    e(f'v_lshrrev_b32 v{V_T0}, 6, v0')
    e(f'v_and_b32 v{V_LANE}, 63, v0')
    e(f'v_readfirstlane_b32 s{S_WAVE}, v{V_T0}')
    e(f's_and_b32 s{S_T0}, s2, 7')
    e(f's_lshr_b32 s{S_T1}, s2, 3')
    e(f's_lshr_b32 s{S_BR}, s{S_T0}, 2')
    e(f's_and_b32 s{S_T2}, s{S_T0}, 3')
    e(f's_lshl_b32 s{S_H}, s{S_T2}, 3')
    e(f's_and_b32 s{S_T3}, s{S_T1}, 7')
    e(f's_add_u32 s{S_H}, s{S_H}, s{S_T3}')
    e(f's_lshr_b32 s{S_BL}, s{S_T1}, 3')
    e(f's_mul_i32 s{S_KX}, s{S_BL}, 5')
    e(f's_add_u32 s{S_KX}, s{S_KX}, 1')
    e(f's_lshr_b32 s{S_KX}, s{S_KX}, 1')
    e(f's_add_u32 s{S_KX}, s{S_KX}, s{S_T3}')
    e(f's_cmp_ge_u32 s{S_KX}, 10')
    e(f's_cselect_b32 s{S_T3}, 10, 0')
    e(f's_sub_u32 s{S_KX}, s{S_KX}, s{S_T3}')
    if o.blk == 0:
        e(f's_mul_i32 s{S_QT}, s{S_T1}, 13')
        e(f's_lshr_b32 s{S_QT}, s{S_QT}, 6')
        e(f's_mul_i32 s{S_T3}, s{S_QT}, 5')
        e(f's_sub_u32 s{S_NT}, s{S_T1}, s{S_T3}')
        e(f's_and_b32 s{S_T3}, s{S_T2}, 1')
        e(f's_mul_i32 s{S_T3}, s{S_T3}, 5')
        e(f's_add_u32 s{S_NT}, s{S_NT}, s{S_T3}')
        e(f's_lshr_b32 s{S_T3}, s{S_T2}, 1')
        e(f's_mul_i32 s{S_T3}, s{S_T3}, 6')
        e(f's_add_u32 s{S_QT}, s{S_QT}, s{S_T3}')
    elif o.blk == 1:
        e(f's_mul_i32 s{S_QT}, s{S_T1}, 26')
        e(f's_lshr_b32 s{S_QT}, s{S_QT}, 8')
        e(f's_mul_i32 s{S_T3}, s{S_QT}, 10')
        e(f's_sub_u32 s{S_NT}, s{S_T1}, s{S_T3}')
        e(f's_mul_i32 s{S_T3}, s{S_T2}, 3')
        e(f's_add_u32 s{S_QT}, s{S_QT}, s{S_T3}')
    else:
        e(f's_mul_i32 s{S_T3}, s{S_T2}, 30')
        e(f's_add_u32 s{S_T3}, s{S_T3}, s{S_T1}')
        e(f's_mul_i32 s{S_NT}, s{S_T3}, 171')
        e(f's_lshr_b32 s{S_NT}, s{S_NT}, 11')
        e(f's_mul_i32 s{S_QT}, s{S_NT}, 12')
        e(f's_sub_u32 s{S_QT}, s{S_T3}, s{S_QT}')
    e(f's_cmp_ge_u32 s{S_T1}, 30')
    e(f's_cselect_b32 s{S_NT}, 15, s{S_NT}')
    e(f's_cselect_b32 s{S_QT}, 0, s{S_QT}')
    e(f's_mul_i32 s{S_QB}, s{S_QT}, 11')
    e(f's_lshr_b32 s{S_QB}, s{S_QB}, 5')
    e(f's_lshl_b32 s{S_STB}, s2, 2')
    e(f's_add_u32 s{S_STB}, s{S_STB}, s{S_WAVE}')
    e(f's_lshl_b32 s{S_STB}, s{S_STB}, 8')
    e(f's_add_u32 s{S_STB}, s{S_STB}, {WS_STAMP}')
    e('s_waitcnt lgkmcnt(0)')
    e(f's_cmp_eq_u32 s{S_BR}, 0')
    for srd, i, size in ((S_X, 0, 983040), (S_K, 1, 1 << 26), (S_V, 2, 1 << 26), (S_WQ, 3, 5242880), (S_WO, 4, 5242880)):
        e(f's_cselect_b64 {sr(srd,2)}, {sr(S_KARG+2*i,2)}, {sr(S_KARG+10+2*i,2)}')
        e(f's_mov_b32 s{srd+2}, {size}')
        e(f's_mov_b32 s{srd+3}, 0x20000')
    for srd, i, size in ((S_OUT, 10, 1966080), (S_WS, 12, 16777216)):
        e(f's_mov_b64 {sr(srd,2)}, {sr(S_KARG+2*i,2)}')
        e(f's_mov_b32 s{srd+2}, {size}')
        e(f's_mov_b32 s{srd+3}, 0x20000')
    e(f's_mov_b64 {sr(S_DBG,2)}, {sr(S_KARG+22,2)}')
    for srd in (S_X, S_K, S_V, S_WQ, S_WO, S_OUT, S_WS):
        e(f's_and_b32 s{srd+1}, s{srd+1}, 0xffff')
    e(f's_cmp_eq_u32 s{S_NT}, 15')
    e(f's_cselect_b32 s{S_WO+2}, 0, s{S_WO+2}')
    e(f's_lshl_b32 s{S_WOB}, s{S_NT}, 7')
    e(f's_cmp_ge_u32 s{S_NT}, 5')
    e(f's_cselect_b32 s{S_T0}, {5 if o.blk == 0 else 0}, 0')
    e(f's_sub_u32 s{S_RHO}, s{S_NT}, s{S_T0}')
    e(f's_mul_i32 s{S_RHO}, s{S_RHO}, {o.rot}')
    e(f's_and_b32 s{S_RHO}, s{S_RHO}, 15')
    e(f's_lshl_b32 s{S_XL}, s{S_WAVE}, 13')

RING = 32768
PF_TICKS = [0, 1, 6, 10, 15, 19, 22, 24, 25, 26, 27]
def reg_w(s): return (32768, 73728, 114688)[(s + 2) % 3]
def reg_x(s): return (49152, 90112, 0)[(s + 2) % 3]

SEQ = ['K0']
for k in range(32): SEQ += [f'K{k+1}', f'V{k}']
SEQ += [f'T{i}' for i in range(8)]
POS = {n: i for i, n in enumerate(SEQ)}
def slot(name): return (6 + POS[name]) % 8
def slot_addr(name): return RING + slot(name) * SLOT

def wo_dma(o, c, ldsbase_s, ldsoff, wob, vw, dyn=False):
    r = []
    if o.no_w and dyn: return ['s_nop 0']
    if dyn:
        r += [f's_mul_i32 s{S_T0}, s{S_WC}, {64*1280}', f's_add_u32 s{S_WC}, s{S_WC}, 1', f's_and_b32 s{S_WC}, s{S_WC}, 15']
    else:
        r += [f's_add_u32 s{S_T0}, s{S_RHO}, {c}', f's_and_b32 s{S_T0}, s{S_T0}, 15', f's_mul_i32 s{S_T0}, s{S_T0}, {64*1280}']
    r.append(f's_add_u32 s{S_T0}, s{S_T0}, {wob}')
    for g_ in range(2):
        r.append(f's_add_u32 m0, {ldsbase_s}, {ldsoff + 4096*g_}' if ldsbase_s else f's_mov_b32 m0, {ldsoff + 4096*g_}')
        r.append(f's_add_u32 s{S_T1}, s{S_T0}, {32*g_*1280}')
        for i in range(4):
            r.append(f'buffer_load_dwordx4 v{vw+i}, {sr(S_WO,4)}, s{S_T1} offen offset:{1024*i} {o.wo_flags} lds')
    return r

def wo_voffs(e, dst):
    L = V_LANE
    e(f'v_lshrrev_b32 v{V_T0}, 3, v{L}')
    e(f'v_mul_u32_u24 v{V_T0}, 1280, v{V_T0}')
    e(f'v_bfe_u32 v{V_T1}, v{L}, 4, 1')
    e(f'v_lshlrev_b32 v{V_T1}, 2, v{V_T1}')
    e(f'v_and_b32 v{V_T2}, 7, v{L}')
    e(f'v_xor_b32 v{V_T1}, v{V_T1}, v{V_T2}')
    e(f'v_lshl_add_u32 v{dst}, v{V_T1}, 4, v{V_T0}')
    for i in range(1, 4): e(f'v_add_u32 v{dst+i}, {(10240-1024)*i}, v{dst}')

def wo_lane_addr(e, dst):
    L = V_LANE
    e(f'v_lshrrev_b32 v{V_T0}, 5, v{L}')
    e(f'v_bfe_u32 v{V_T1}, v{L}, 2, 2')
    e(f'v_lshl_add_u32 v{dst}, v{V_T0}, 2, v{V_T1}')
    e(f'v_lshlrev_b32 v{dst}, 7, v{dst}')
    e(f'v_bfe_u32 v{V_T3}, v{L}, 3, 1')
    e(f'v_lshl_add_u32 v{dst}, v{V_T3}, 6, v{dst}')
    e(f'v_bfe_u32 v{V_T3}, v{L}, 4, 1')
    e(f'v_lshl_add_u32 v{dst}, v{V_T3}, 5, v{dst}')
    e(f'v_and_b32 v{V_T3}, 3, v{L}')
    e(f'v_lshl_add_u32 v{dst}, v{V_T3}, 3, v{dst}')

def wo_reads(dstf, a0, a1, off):
    r = []
    for s4 in range(4):
        for nt in range(2):
            for u in range(2):
                r.append(f'ds_read_b64_tr_b16 {dstf(8*s4+4*nt+2*u,2)}, v{(a0,a1)[nt]} offset:{off+(16*s4+8*u)*128}')
    return r

def poll(e, o, tag, load, test):
    e.many(test)
    e('s_cmp_eq_u64 vcc, -1')
    e(f's_cbranch_scc1 L_polled_{tag}')
    e(f's_mov_b32 s{S_CNT}, 0x400000')
    e.lab(f'L_poll_{tag}')
    e(f's_sleep {o.psleep}')
    e(load)
    e('s_waitcnt vmcnt(0)')
    e.many(test)
    e('s_cmp_eq_u64 vcc, -1')
    e(f's_cbranch_scc1 L_polled_{tag}')
    e(f's_sub_u32 s{S_CNT}, s{S_CNT}, 1')
    e(f's_cmp_lg_u32 s{S_CNT}, 0')
    e(f's_cbranch_scc1 L_poll_{tag}')
    e.lab(f'L_polled_{tag}')

def loader(e, o):
    L = V_LANE
    VK, VV, VW, VWO, VF, VP, VZ = 24, 16, 20, 12, 17, 18, 19
    VA, VB = 96, 100
    AF = [48, 56]; BF = [64, 80]; ACC = 128
    vm = Vm(e)
    e(f'v_lshrrev_b32 v{V_T0}, 4, v{L}')
    e(f'v_and_b32 v{V_T1}, 15, v{L}')
    e(f'v_lshlrev_b32 v{V_T3}, 2, v{V_T0}')
    e(f'v_xor_b32 v{V_T3}, v{V_T3}, v{V_T1}')
    e(f'v_lshlrev_b32 v{V_T2}, 8, v{V_T0}')
    e(f'v_lshl_add_u32 v{VV}, v{V_T3}, 4, v{V_T2}')
    for i in range(4):
        e(f'v_add_u32 v{V_T3}, {4*i}, v{V_T0}')
        e(f'v_xor_b32 v{V_T3}, v{V_T3}, v{V_T1}')
        e(f'v_lshl_add_u32 v{VK+i}, v{V_T3}, 4, v{V_T2}')
    e(f's_lshl_b32 s{S_KVB}, s{S_BL}, 5')
    e(f's_add_u32 s{S_KVB}, s{S_KVB}, s{S_H}')
    e(f's_lshl_b32 s{S_KVB}, s{S_KVB}, 18')
    def issue_l(name):
        kind, t = name[0], int(name[1:])
        r = []
        if kind == 'K' and t > 31: return r
        base = slot_addr(name)
        if kind in 'KV':
            off = (t // 16) * (4 * 32 * 262144) + (t % 16) * SLOT
            for g in range(4):
                r.append(f's_mov_b32 m0, {base + 4096*g}')
                r.append(f's_add_u32 s{S_T1}, s{S_KVB}, {off + 4096*g}')
                for i in range(4):
                    v = VK + i if kind == 'K' else VV
                    r.append(f'buffer_load_dwordx4 v{v}, {sr(S_K if kind == "K" else S_V,4)}, s{S_T1} offen offset:{1024*i} {o.kv_flags} lds')
        else:
            rr = slot(name); j, hi = 1 + (rr >> 1), rr & 1
            if j == 4: return r
            for p in range(2):
                r.append(f's_add_u32 s{S_T2}, s{S_WOB}, {1024*1280*(2*hi+p)}')
                r += wo_dma(o, 8 + j, None, base + 8192 * p, f's{S_T2}', VWO)
        return r
    def issue(name):
        r = issue_l(name)
        if r:
            vm.room(16); e.many(r); vm.add(name, 16)
    def own_w(c):
        vm.room(8)
        e(f's_add_u32 s{S_T2}, s{S_WOB}, {1024*1280*3}')
        e.many(wo_dma(o, c, None, 3 * 8192, f's{S_T2}', VWO))
        vm.add(f'w{c}', 8)
    def wait_upto(n):
        for m in range(n, -1, -1):
            if vm.has(SEQ[m]): vm.wait(SEQ[m]); return
    def flag(val):
        return [f's_add_u32 s{S_T0}, s{S_N}, {val}', f'v_mov_b32 v{V_T2}, s{S_T0}', 's_mov_b64 exec, 1',
                f'buffer_store_dword v{V_T2}, v{VZ}, {sr(S_WS,4)}, s{S_FL} offen sc1', 's_mov_b64 exec, -1']
    if o.pf_a:
        if o.pf_delay: e(f's_sleep {o.pf_delay}')
        e(f'v_lshrrev_b32 v{VW}, 1, v{L}')
        e(f'v_lshlrev_b32 v{VW}, 13, v{VW}')
        e(f'v_and_b32 v{VW+1}, 1, v{L}')
        e(f'v_lshl_add_u32 v{VW}, v{VW+1}, 7, v{VW}')
        e(f's_mul_i32 s{S_T0}, s{S_BL}, {160*8192}')
        e(f's_lshl_b32 s{S_T1}, s{S_H}, 8')
        e(f's_add_u32 s{S_T0}, s{S_T0}, s{S_T1}')
        for i in range(5):
            e(f's_add_u32 s{S_T1}, s{S_T0}, {32*i*8192}')
            e(f'buffer_load_dword v{VW+2}, v{VW}, {sr(S_WQ,4)}, s{S_T1} offen {o.w_flags}')
        e(f'v_lshlrev_b32 v{VW+1}, 7, v{L}')
        e(f's_and_b32 s{S_T0}, s{S_H}, 7')
        e(f's_mul_i32 s{S_T0}, s{S_T0}, 15360')
        e(f's_mul_i32 s{S_T1}, s{S_BL}, 122880')
        e(f's_add_u32 s{S_T0}, s{S_T0}, s{S_T1}')
        for i in range(4):
            e(f's_add_u32 s{S_T1}, s{S_T0}, {(i >> 1) * 491520 + (i & 1) * 8192}')
            e(f'buffer_load_dword v{VW+2}, v{VW+1}, {sr(S_X,4)}, s{S_T1} offen {o.w_flags}')
        vm.add('pfa', 9)
    if o.k_first: issue('K0'); issue('K1')
    e(f's_lshl_b32 s{S_T0}, s{S_BR}, 2')
    e(f's_add_u32 s{S_FL}, s{S_T0}, s{S_BL}')
    e(f's_lshl_b32 s{S_FL}, s{S_FL}, 5')
    e(f's_add_u32 s{S_FL}, s{S_FL}, s{S_H}')
    e(f's_lshl_b32 s{S_FL}, s{S_FL}, 7')
    e(f's_add_u32 s{S_FL}, s{S_FL}, {WS_FLAGS}')
    e(f'v_mov_b32 v{VZ}, 0')
    e('s_cmp_lg_u32 s2, 0')
    e('s_cbranch_scc1 L_notag')
    e(f's_memrealtime {sr(S_ST,2)}')
    e('s_waitcnt lgkmcnt(0)')
    e(f's_mul_i32 s{S_ST+1}, s{S_ST+1}, 0x9e3779b1')
    e(f's_add_u32 s{S_ST}, s{S_ST}, s{S_ST+1}')
    e(f's_or_b32 s{S_ST}, s{S_ST}, 4')
    e(f's_and_b32 s{S_ST}, s{S_ST}, -4')
    e(f'v_mov_b32 v{V_T2}, s{S_ST}')
    e('s_mov_b64 exec, 1')
    e(f'global_store_dword v{VZ}, v{V_T2}, {sr(S_DBG,2)} sc1')
    e('s_mov_b64 exec, -1')
    e.lab('L_notag')
    e(f's_add_u32 s{S_T0}, s{S_T0}, s{S_QB}')
    e(f's_lshl_b32 s{S_T0}, s{S_T0}, 12')
    e(f's_add_u32 s{S_T0}, s{S_T0}, {WS_FLAGS}')
    e(f'v_and_b32 v{VP}, 31, v{L}')
    e(f'v_lshlrev_b32 v{VP}, 7, v{VP}')
    e(f'v_add_u32 v{VP}, s{S_T0}, v{VP}')
    a_addr(e, VA, VB, None)
    wo_voffs(e, VWO)
    wo_lane_addr(e, V_WA)
    e(f'v_lshlrev_b32 v{VW}, 7, v{L}')
    e(f'v_add_u32 v{V_WA}, {3*8192}, v{V_WA}')
    e(f'v_xor_b32 v{V_WA+1}, 64, v{V_WA}')
    e(f'v_lshlrev_b32 v{V_OST}, 4, v{L}')
    e(f's_mov_b32 s{S_C}, {SCALE}')
    vm.stamp(o, 0)
    pf = []
    for n in range(2, 2 + o.pf_kv):
        kind, t = SEQ[n][0], int(SEQ[n][1:])
        for hh in range(2):
            pf.append([f's_add_u32 s{S_T1}, s{S_KVB}, {t*SLOT + hh*8192}',
                       f'buffer_load_dword v{VW+1}, v{VW}, {sr(S_K if kind == "K" else S_V,4)}, s{S_T1} offen {o.pf_flags}'])
    if o.pf_wo:
        e(f's_lshl_b32 s{S_T2}, s{S_H}, 2')
        e(f's_add_u32 s{S_T2}, s{S_T2}, s{S_BL}')
        e(f's_mul_i32 s{S_T2}, s{S_T2}, 40960')
        e(f's_mov_b32 s{S_T3}, s{S_WO+2}')
        e(f's_mov_b32 s{S_WO+2}, 5242880')
        for i in range(5):
            pf.append([f's_add_u32 s{S_T1}, s{S_T2}, {i*8192}',
                       f'buffer_load_dword v{VW+1}, v{VW}, {sr(S_WO,4)}, s{S_T1} offen {o.pf_flags}'])
    def reads(s4, buf):
        r = []
        for t in (2, 3):
            for u in range(2):
                r.append(f'ds_read_b64_tr_b16 {vr(AF[buf]+4*(t-2)+2*u,2)}, v{VA+t} offset:{(16*s4+4*u)*256}')
        r += [f'ds_read_b128 {vr(BF[buf]+4*j,4)}, v{VB+s4} offset:{8192*j + 4096}' for j in range(3)]
        return r
    def mf(buf, first):
        r = []
        for j in range(3):
            for t in range(2):
                d = vr(ACC + 32 * j + 16 * t, 16)
                r.append(mfma(d, vr(AF[buf] + 4 * t, 4), vr(BF[buf] + 4 * j, 4), '0' if first else d))
        return r
    extra = {}
    def ride(step, name, ins, cnt):
        extra.setdefault(step, []).append((name, ins, cnt))
    if not o.k_first:
        for i, nm in enumerate(('K0', 'K1')):
            ins = issue_l(nm)
            for q in range(4): ride(4 * o.k_s0 + 4 * i + q, nm if q == 3 else None, ins[6 * q:6 * q + 6], 4)
    npf = 4 * (7 - o.pf_s0)
    for i, x in enumerate(pf): ride(4 * o.pf_s0 + (i * npf) // max(len(pf), 1), 'pf', x, 1)
    for i, nm in enumerate(('V0', 'K2')):
        ins = issue_l(nm)
        for q in range(2): ride(31 + 2 * i + q, nm if q == 1 else None, ins[12 * q:12 * q + 12], 8)
    ins = issue_l('V1')
    for q in range(2): ride(35 + q, 'V1' if q == 1 else None, ins[12 * q:12 * q + 12], 8)
    e('s_barrier')
    vm.stamp(o, 16)
    e.many(reads(0, 0))
    for s in range(10):
        for s4 in range(4):
            step = 4 * s + s4; buf = step & 1
            e('s_waitcnt lgkmcnt(0)')
            if step == 31 and o.pf_wo: e(f's_mov_b32 s{S_WO+2}, s{S_T3}')
            if s4 == 3:
                if s == 9: vm.wait('K1')
                e('s_barrier')
                if s < 9: vm.stamp(o, 17 + s)
            late = []
            for name, ins, cnt in extra.get(step, []):
                vm.room(cnt); late += ins; vm.add(name or 'part', cnt)
            if s4 == 2 and s < 9: late += a_step(s, VA)
            front = reads((s4 + 1) & 3, buf ^ 1) if step < 39 else []
            gaps(e, mf(buf, step == 0), front, late, per=3, late_from=(2 if s4 == 2 else 1))
    e('s_nop 7'); e('s_nop 3')
    for j in range(3):
        for i in range(16): e.many(conv(i, ACC + 32 * j, ACC + 32 * j))
        for f in range(4): e(f'ds_write_b128 v{V_OST}, {vr(ACC+32*j+4*f,4)} offset:{8192*j + 1024*f}')
    e('s_waitcnt lgkmcnt(0)')
    issue('K3'); issue('V2')
    issued = POS['V2']
    e(f's_lshr_b32 s{S_WC}, s2, 3')
    e(f's_mul_i32 s{S_KX}, s{S_WC}, 13')
    e(f's_lshr_b32 s{S_KX}, s{S_KX}, 6')
    vm.wait('pfa')
    e(f'v_mul_u32_u24 v{VW+2}, 1280, v{L}')
    ld_cnt = f'global_load_dword v23, v{VZ}, {sr(S_DBG,2)} sc1'
    ld_fl = f'buffer_load_dword v23, v{VP}, {sr(S_WS,4)}, 0 offen sc1'
    for k in range(32):
        wait_upto(POS[f'V{k}'])
        vm.stamp(o, 32 + k) if o.tickst == 1 else None
        e('s_barrier')
        vm.stamp(o, 32 + k) if o.tickst == 2 else None
        if k == 19:
            vm.room(1); e.many(flag(1)); vm.add('f1', 1)
        if o.pf_w and k in PF_TICKS:
            vm.room(1)
            e(f's_add_u32 s{S_T0}, s{S_KX}, {6 * PF_TICKS.index(k)}')
            e(f's_and_b32 s{S_T2}, s{S_T0}, 3')
            e(f's_lshl_b32 s{S_T2}, s{S_T2}, 4')
            e(f's_lshr_b32 s{S_T0}, s{S_T0}, 2')
            e(f's_add_u32 s{S_T0}, s{S_T0}, s{S_RHO}')
            e(f's_and_b32 s{S_T0}, s{S_T0}, 15')
            e(f's_add_u32 s{S_T0}, s{S_T0}, s{S_T2}')
            e(f's_mul_i32 s{S_T0}, s{S_T0}, {64*1280}')
            e(f's_add_u32 s{S_T0}, s{S_T0}, s{S_WOB}')
            e(f'buffer_load_dword v{VW+1}, v{VW+2}, {sr(S_WO,4)}, s{S_T0} offen {o.wo_flags}')
            vm.add('pft', 1)
        wev = (k - 2) // 3 if (k >= 2 and (k - 2) % 3 == 0 and k <= 26) else None
        if wev:
            vm.wait(f'w{wev-1}')
            e.many(wo_reads(lambda off, n: hold(wev - 1, off, n), V_WA, V_WA + 1, 0))
        if k in (10, 28):
            vm.room(1); e(ld_cnt if k == 10 else ld_fl); vm.add('pl', 1)
        first = POS[f'K{k+1}']
        lim = min(first + o.look, first + 7, POS['T6'])
        if k == 31: lim = POS['T6']
        while issued < lim:
            issued += 1
            issue(SEQ[issued])
            while vm.out() > o.thr and k < 31: vm.wait(vm.q[0][0])
        if k == 10:
            vm.wait('pl')
            poll(e, o, 'tag', ld_cnt, ['v_cmp_ne_u32 vcc, 0, v23'])
            e(f'v_readfirstlane_b32 s{S_N}, v23')
        if k == 28:
            vm.wait('pl')
            e(f's_add_u32 s{S_T3}, s{S_N}, 1')
            poll(e, o, 'r1', ld_fl, ['v_and_b32 v23, -3, v23', f'v_cmp_eq_u32 vcc, s{S_T3}, v23'])
        if wev is not None:
            e('s_waitcnt lgkmcnt(0)')
            own_w(wev)
    e('s_barrier')
    e.many(flag(3))
    e('s_waitcnt vmcnt(1)')

def a_addr(e, VA, VB, xl):
    L = V_LANE
    e(f'v_lshrrev_b32 v{V_T0}, 5, v{L}')
    e(f'v_bfe_u32 v{V_T1}, v{L}, 2, 2')
    e(f'v_lshl_add_u32 v{V_T2}, v{V_T0}, 3, v{V_T1}')
    e(f'v_lshlrev_b32 v{V_T2}, 8, v{V_T2}')
    e(f'v_lshl_add_u32 v{V_T2}, v{V_T1}, 6, v{V_T2}')
    e(f'v_bfe_u32 v{V_T3}, v{L}, 4, 1')
    e(f'v_lshl_add_u32 v{V_T2}, v{V_T3}, 5, v{V_T2}')
    e(f'v_and_b32 v{V_T3}, 1, v{L}')
    e(f'v_lshl_add_u32 v{V_T2}, v{V_T3}, 4, v{V_T2}')
    e(f'v_bfe_u32 v{V_T3}, v{L}, 1, 1')
    e(f'v_lshl_add_u32 v{V_T2}, v{V_T3}, 3, v{V_T2}')
    for t in range(4):
        e(f'v_xor_b32 v{VA+t}, {64*t}, v{V_T2}')
        e(f'v_add_u32 v{VA+t}, {reg_w(0)}, v{VA+t}')
    e(f'v_and_b32 v{V_T1}, 31, v{L}')
    e(f'v_bfe_u32 v{V_T2}, v{L}, 1, 3')
    e(f'v_xor_b32 v{V_T2}, v{V_T2}, v{V_T0}')
    e(f'v_lshlrev_b32 v{V_T2}, 4, v{V_T2}')
    e(f'v_lshl_add_u32 v{V_T2}, v{V_T1}, 7, v{V_T2}')
    if xl is not None:
        e(f's_add_u32 s{S_T0}, s{xl}, {reg_x(0)}')
    for s4 in range(4):
        e(f'v_xor_b32 v{VB+s4}, {32*s4}, v{V_T2}')
        e(f'v_add_u32 v{VB+s4}, s{S_T0}, v{VB+s4}' if xl is not None else f'v_add_u32 v{VB+s4}, {reg_x(0)}, v{VB+s4}')

def a_step(s, VA):
    r = []
    for i in range(8):
        d = reg_w(s + 1) - reg_w(s) if i < 4 else reg_x(s + 1) - reg_x(s)
        r.append(f'v_add_u32 v{VA+i}, {d}, v{VA+i}' if d > 0 else f'v_subrev_u32 v{VA+i}, {-d}, v{VA+i}')
    return r

SCALE = hex(struct.unpack("<I", struct.pack("<f", math.log2(math.e) / math.sqrt(128.0)))[0])
def conv(i, src, dst):
    a = src + 2 * i
    return [f'v_mul_f32 v{a}, s{S_C}, v{a}', f'v_mul_f32 v{a+1}, s{S_C}, v{a+1}', f'v_cvt_pk_bf16_f32 v{dst+i}, v{a}, v{a+1}']

def phase_a(e, o):
    L = V_LANE
    VA, VB = V_Q, V_Q + 4
    AF = [V_SA, V_SB]; BF = [V_P, V_TMP]; ACC = [128, 192]
    e(f'v_lshrrev_b32 v{V_T0}, 3, v{L}')
    e(f'v_mul_u32_u24 v{V_T0}, 1280, v{V_T0}')
    e(f'v_lshrrev_b32 v{V_T1}, 4, v{L}')
    e(f'v_and_b32 v{V_T2}, 7, v{L}')
    e(f'v_xor_b32 v{V_T1}, v{V_T1}, v{V_T2}')
    for i in range(4):
        e(f'v_xor_b32 v{V_T2}, {4*(i&1)}, v{V_T1}')
        e(f'v_lshl_add_u32 v{V_DMA+i}, v{V_T2}, 4, v{V_T0}')
        if i: e(f'v_add_u32 v{V_DMA+i}, {(10240-1024)*i}, v{V_DMA+i}')
    e(f's_mul_i32 s{S_XB}, s{S_BL}, 3')
    e(f's_add_u32 s{S_XB}, s{S_XB}, s{S_WAVE}')
    e(f's_mul_i32 s{S_OB}, s{S_BR}, 24')
    e(f's_add_u32 s{S_OB}, s{S_OB}, s{S_XB}')
    e(f's_mul_i32 s{S_XB}, s{S_XB}, 40960')
    def xload(s, it):
        r = []
        if it == 0:
            r.append(f's_lshl_b32 s{S_T0}, s{S_KX}, 7')
            r.append(f's_add_u32 s{S_T0}, s{S_T0}, s{S_XB}')
        r.append(f's_add_u32 m0, s{S_XL}, {reg_x(s) + 4096*it}')
        r.append(f's_add_u32 s{S_T1}, s{S_T0}, {491520*it}')
        for i in range(4):
            r.append(f'buffer_load_dwordx4 v{V_DMA+i}, {sr(S_X,4)}, s{S_T1} offen offset:{1024*i} {o.w_flags} lds')
        if it == 1:
            r.append(f's_add_u32 s{S_KX}, s{S_KX}, 1')
            r.append(f's_cmp_eq_u32 s{S_KX}, 10')
            r.append(f's_cselect_b32 s{S_KX}, 0, s{S_KX}')
        return r
    VWQ = V_Q + 8
    e(f'v_lshrrev_b32 v{V_T0}, 4, v{L}')
    e(f'v_and_b32 v{V_T1}, 15, v{L}')
    e(f'v_lshlrev_b32 v{V_T3}, 2, v{V_T0}')
    e(f'v_xor_b32 v{V_T3}, v{V_T3}, v{V_T1}')
    e(f'v_lshlrev_b32 v{V_T2}, 13, v{V_T0}')
    e(f'v_lshl_add_u32 v{VWQ}, v{V_T3}, 4, v{V_T2}')
    for i in range(1, 4): e(f'v_add_u32 v{VWQ+i}, {(32768-1024)*i}, v{VWQ}')
    e(f's_mul_i32 s{S_KVB}, s{S_WAVE}, {5*32768}')
    e(f's_lshl_b32 s{S_T0}, s{S_H}, 8')
    e(f's_add_u32 s{S_KVB}, s{S_KVB}, s{S_T0}')
    e(f's_mul_i32 s{S_FL}, s{S_WAVE}, {5*1024}')
    def wqload(s):
        r = [f's_lshl_b32 s{S_T2}, s{S_KX}, 19', f's_add_u32 s{S_T2}, s{S_T2}, s{S_KVB}']
        for t in range(6):
            if t % 4 == 0:
                r.append(f's_add_u32 m0, s{S_FL}, {reg_w(s) + 1024*t}')
                r.append(f's_add_u32 s{S_T1}, s{S_T2}, {32768*t}')
            r.append(f'buffer_load_dwordx4 v{VWQ+(t&3)}, {sr(S_WQ,4)}, s{S_T1} offen offset:{1024*(t&3)} {o.w_flags} lds')
        return r
    for s in range(3):
        e.many(wqload(s)); e.many(xload(s, 0)); e.many(xload(s, 1))
    e(f's_lshl_b32 s{S_OB}, s{S_OB}, 5')
    e(f's_add_u32 s{S_OB}, s{S_OB}, s{S_H}')
    e(f's_lshl_b32 s{S_OB}, s{S_OB}, 13')
    a_addr(e, VA, VB, S_XL)
    e(f'v_and_b32 v{V_T2}, 15, v{L}')
    e(f'v_xor_b32 v{V_T2}, v{V_T2}, v{V_T0}')
    e(f'v_lshlrev_b32 v{V_T2}, 4, v{V_T2}')
    e(f'v_lshl_add_u32 v{V_T2}, v{V_T1}, 8, v{V_T2}')
    for s in range(8):
        e(f'v_xor_b32 v{V_KA+s}, {32*s}, v{V_T2}')
        e(f'v_add_u32 v{V_KA+s}, {slot_addr("K0")}, v{V_KA+s}')
    e(f'v_bfe_u32 v{V_T1}, v{L}, 2, 2')
    e(f'v_lshl_add_u32 v{V_T2}, v{V_T0}, 2, v{V_T1}')
    e(f'v_lshlrev_b32 v{V_T2}, 8, v{V_T2}')
    e(f'v_lshl_add_u32 v{V_T2}, v{V_T1}, 6, v{V_T2}')
    e(f'v_bfe_u32 v{V_T3}, v{L}, 4, 1')
    e(f'v_lshl_add_u32 v{V_T2}, v{V_T3}, 5, v{V_T2}')
    e(f'v_and_b32 v{V_T3}, 3, v{L}')
    e(f'v_lshl_add_u32 v{V_T2}, v{V_T3}, 3, v{V_T2}')
    e(f'v_add_u32 v{V_T2}, {RING}, v{V_T2}')
    for t in range(4): e(f'v_xor_b32 v{V_VA+t}, {64*t}, v{V_T2}')
    e(f'v_lshlrev_b32 v{V_OST}, 4, v{L}')
    e(f'v_add_u32 v{V_OST+3}, s{S_XL}, v{V_OST}')
    wo_lane_addr(e, V_WA)
    e(f'v_add_u32 v{V_WA}, s{S_XL}, v{V_WA}')
    e(f'v_xor_b32 v{V_WA+1}, 64, v{V_WA}')
    e(f's_mul_i32 s{S_WQB}, s{S_WAVE}, {1024*1280}')
    e(f's_add_u32 s{S_WQB}, s{S_WQB}, s{S_WOB}')
    e(f's_mov_b32 s{S_WC}, s{S_RHO}')
    e(f's_add_u32 s{S_WN}, s{S_WAVE}, 4')
    e(f's_mov_b32 s{S_EV}, 0')
    for i in range(64): e(f'v_accvgpr_write_b32 a{i}, 0')
    for i in range(16): e(f'v_mov_b32 v{V_NEGM+i}, 0')
    for i in range(4): e(f'v_mov_b32 v{V_L+i}, 0')
    e(f's_mov_b32 s{S_C}, {SCALE}')
    e(f's_mov_b32 s{S_THR}, 0xff800000')
    e(f's_mov_b32 s{S_FLOOR}, 0xff800000')
    e(f's_mov_b32 s{S_TICK}, 0')
    e(f's_mov_b32 s{S_KOFF}, {7*SLOT}')
    e(f's_mov_b32 s{S_VOFF}, 0')
    nst = stamp(e, o, 0) + stamp(e, o, 8, clk=True)
    def reads(s4, buf):
        r = [f'ds_read_b128 {vr(BF[buf]+4*it,4)}, v{VB+s4} offset:{4096*it}' for it in range(2)]
        for t in range(4):
            for u in range(2):
                r.append(f'ds_read_b64_tr_b16 {vr(AF[buf]+4*t+2*u,2)}, v{VA+t} offset:{(16*s4+4*u)*256}')
        return r
    def mf(buf, first):
        r = []
        for t in range(4):
            for it in range(2):
                if it == 1 and t >= 2: continue
                d = vr(ACC[it] + 16 * t, 16)
                r.append(mfma(d, vr(AF[buf] + 4 * t, 4), vr(BF[buf] + 4 * it, 4), '0' if first else d))
        return r
    e(f's_waitcnt vmcnt({28 + nst})')
    e('s_barrier')
    e.many(reads(0, 0))
    for s in range(10):
        for s4 in range(4):
            step = 4 * s + s4; buf = step & 1
            m = mf(buf, step == 0)
            late = []
            e('s_waitcnt lgkmcnt(0)')
            if s4 == 3:
                if s < 9:
                    e(f's_waitcnt vmcnt({(14 if s + 2 <= 9 else 0) + (nst if s < 2 else 0)})')
                e('s_barrier')
                if s + 3 <= 9: late = wqload(s + 3)
            if s4 == 0 and s >= 1 and s + 2 <= 9: late = xload(s + 2, 0)
            if s4 == 1 and s >= 1 and s + 2 <= 9: late = xload(s + 2, 1)
            if s4 == 2 and s < 9: late = a_step(s, VA)
            front = reads((s4 + 1) & 3, buf ^ 1) if step < 39 else []
            gaps(e, m, front, late, per=3, late_from=(3 if s4 == 2 else 1))
    wo_voffs(e, V_DMA)
    e('s_nop 4')
    for i in range(16): e.many(conv(i, ACC[0], V_Q))
    e.many(k_reads(0))
    for i in range(16, 32): e.many(conv(i, ACC[0], V_Q))

def k_reads(half):
    return [f'ds_read_b128 {vr(V_KF+4*s,4)}, v{V_KA+s} offset:{8192*half}' for s in range(8)]
def v_reads(half):
    r = []
    for jj in range(2):
        for t in range(4):
            for u in range(2):
                r.append(f'ds_read_b64_tr_b16 {vr(V_VF+16*jj+4*t+2*u,2)}, v{V_VA+t} offset:{(32*half+16*jj+8*u)*256}')
    return r
def qk(S):
    return [mfma(vr(S, 16), vr(V_KF + 4 * s, 4), vr(V_Q + 4 * s, 4), vr(V_NEGM, 16) if s == 0 else vr(S, 16)) for s in range(8)]
def pv():
    return [mfma(ar(16 * t, 16), vr(V_VF + 16 * jj + 4 * t, 4), vr(V_P + 4 * jj, 4), ar(16 * t, 16)) for jj in range(2) for t in range(4)]
def maxes(S):
    r = [f'v_max3_f32 v{V_MX}, v{S}, v{S+1}, v{S+2}', f'v_max3_f32 v{V_D}, v{S+3}, v{S+4}, v{S+5}']
    r += [f'v_max3_f32 v{V_MX}, v{V_MX}, v{S+6}, v{S+7}', f'v_max3_f32 v{V_D}, v{V_D}, v{S+8}, v{S+9}']
    r += [f'v_max3_f32 v{V_MX}, v{V_MX}, v{S+10}, v{S+11}', f'v_max3_f32 v{V_D}, v{V_D}, v{S+12}, v{S+13}']
    r += [f'v_max3_f32 v{V_MX}, v{V_MX}, v{S+14}, v{S+15}', f'v_max_f32 v{V_MX}, v{V_MX}, v{V_D}']
    r += [f'v_cmp_lt_f32 vcc, s{S_THR}, v{V_MX}']
    return r

def half_tick(e, Snew, Sold, vhalf, khalf, extra_v=(), extra_k=()):
    ex = lambda i: f'v_exp_f32 v{Sold+i}, v{Sold+i}'
    cv = lambda i: f'v_cvt_pk_bf16_f32 v{V_P+i}, v{Sold+2*i}, v{Sold+2*i+1}'
    ad = lambda i: f'v_add_f32 v{V_L+(i&3)}, v{V_L+(i&3)}, v{Sold+i}'
    m = qk(Snew) + pv()
    m[8] = ['s_waitcnt lgkmcnt(0)', m[8]]
    fill = v_reads(vhalf) + [ex(i) for i in range(8)] + list(extra_v) + [cv(i) for i in range(4)] + [ex(i) for i in range(8, 12)]
    fill += [('M', 8), ('A', 8)] + (k_reads(khalf) if khalf is not None else []) + [ex(i) for i in range(12, 16)] + [ad(0)]
    fill += [cv(i) for i in range(4, 8)] + [ad(1), ad(2)]
    fill += [('M', 12)] + [ad(i) for i in range(3, 16)]
    fill += list(extra_k) + maxes(Snew)
    e('s_waitcnt lgkmcnt(0)')
    interleave(e, m, fill)

def last_half(e, Sold):
    ex = lambda i: f'v_exp_f32 v{Sold+i}, v{Sold+i}'
    cv = lambda i: f'v_cvt_pk_bf16_f32 v{V_P+i}, v{Sold+2*i}, v{Sold+2*i+1}'
    ad = lambda i: f'v_add_f32 v{V_L+(i&3)}, v{V_L+(i&3)}, v{Sold+i}'
    e.many(v_reads(1))
    e.many([ex(i) for i in range(8)] + [cv(i) for i in range(4)] + [ex(8), ex(9)])
    e('s_waitcnt lgkmcnt(0)')
    fill = [ex(i) for i in range(10, 16)] + [ad(0)] + [cv(i) for i in range(4, 8)] + [ad(1), ad(2), ('M', 4)] + [ad(i) for i in range(3, 16)]
    interleave(e, pv(), fill)

def rare(e, S, back):
    e('s_nop 7')
    e(f'v_mov_b32 v{V_T0}, v{V_MX}')
    e('s_nop 1')
    e(f'v_permlane32_swap_b32 v{V_T0}, v{V_MX}')
    e('s_nop 1')
    e(f'v_max_f32 v{V_D}, v{V_T0}, v{V_MX}')
    e(f'v_max_f32 v{V_D}, s{S_FLOOR}, v{V_D}')
    for i in range(16): e(f'v_sub_f32 v{S+i}, v{S+i}, v{V_D}')
    for i in range(16): e(f'v_sub_f32 v{V_NEGM+i}, v{V_NEGM+i}, v{V_D}')
    e(f's_cmp_lg_u32 s{S_FLOOR}, 0')
    e(f's_mov_b32 s{S_THR}, 0x41000000')
    e(f's_mov_b32 s{S_FLOOR}, 0')
    e(f's_cbranch_scc1 {back}')
    e(f'v_sub_f32 v{V_T0}, 0, v{V_D}')
    e(f'v_exp_f32 v{V_T0}, v{V_T0}')
    e('s_nop 0')
    for i in range(4): e(f'v_mul_f32 v{V_L+i}, v{V_L+i}, v{V_T0}')
    for i in range(0, 64, 4):
        for j in range(4): e(f'v_accvgpr_read_b32 v{V_TMP+j}, a{i+j}')
        for j in range(4): e(f'v_mul_f32 v{V_TMP+j}, v{V_TMP+j}, v{V_T0}')
        for j in range(4): e(f'v_accvgpr_write_b32 a{i+j}, v{V_TMP+j}')
    e('s_nop 1')
    e(f's_branch {back}')

def epilogue(e, o):
    e(f'v_add_f32 v{V_L}, v{V_L}, v{V_L+1}')
    e(f'v_add_f32 v{V_L+2}, v{V_L+2}, v{V_L+3}')
    e(f'v_add_f32 v{V_L}, v{V_L}, v{V_L+2}')
    e(f'v_mov_b32 v{V_T0}, v{V_L}')
    e('s_nop 1')
    e(f'v_permlane32_swap_b32 v{V_T0}, v{V_L}')
    e('s_nop 1')
    e(f'v_add_f32 v{V_L}, v{V_L}, v{V_T0}')
    e(f'v_rcp_f32 v{V_T0}, v{V_L}')
    e('s_nop 4')
    for f in range(8):
        t = V_VF + 8 * (f & 3)
        for j in range(8): e(f'v_accvgpr_read_b32 v{t+j}, a{8*f+j}')
        for j in range(8): e(f'v_mul_f32 v{t+j}, v{t+j}, v{V_T0}')
        d = V_TMP + 4 * (f & 1)
        for j in range(4): e(f'v_cvt_pk_bf16_f32 v{d+j}, v{t+2*j}, v{t+2*j+1}')
        if f == 4: e(f's_add_u32 s{S_OB}, s{S_OB}, 4096')
        e(f'buffer_store_dwordx4 {vr(d,4)}, v{V_OST}, {sr(S_WS,4)}, s{S_OB} offen offset:{1024*(f&3)} {o.ost_flags}')

def w_snippets(e, o, ret):
    e('s_waitcnt vmcnt(0)')
    def tree(lo, n):
        if n == 1:
            if lo == 0:
                for f in range(4): e(f'ds_read_b128 {vr(224+4*f,4)}, v{V_OST+3} offset:{1024*f}')
            else:
                e.many(wo_reads(lambda off, nn: hold(lo - 1, off, nn), V_WA, V_WA + 1, 0))
            e('s_branch L_sn_done')
            return
        h = (n + 1) // 2
        e(f's_cmp_ge_u32 s{S_EV}, {lo+h}')
        e(f's_cbranch_scc1 L_sn_{lo+h}')
        tree(lo, h)
        e.lab(f'L_sn_{lo+h}')
        tree(lo + h, n - h)
    tree(0, 9)
    e.lab('L_sn_done')
    e(f's_add_u32 s{S_EV}, s{S_EV}, 1')
    e(f's_cmp_eq_u32 s{S_EV}, 9')
    e(f's_cselect_b32 s{S_WN}, 64, 3')
    e('s_waitcnt lgkmcnt(0)')
    e.many(wo_dma(o, 0, f's{S_XL}', 0, f's{S_WQB}', V_DMA, dyn=True))
    e(f's_branch {ret}')

def phase_b(e, o):
    stamp(e, o, 1); stamp(e, o, 9, clk=True)
    e('s_waitcnt lgkmcnt(0)')
    e.many(qk(V_SA))
    e.many(k_reads(1))
    for s in range(8): e(f'v_add_u32 v{V_KA+s}, {SLOT}, v{V_KA+s}')
    e('s_nop 3')
    e.many(maxes(V_SA))
    e('s_branch L_rare_a')
    def adv(soff, tmp, base, n):
        r = [f's_add_u32 s{tmp}, s{soff}, {2*SLOT}', f's_and_b32 s{tmp}, s{tmp}, {8*SLOT-1}',
             f's_sub_u32 s{S_T3}, s{tmp}, s{soff}', f's_mov_b32 s{soff}, s{tmp}']
        r += [f'v_add_u32 v{base+i}, s{S_T3}, v{base+i}' for i in range(n)]
        return r
    e.lab('L_tick')
    e('s_waitcnt lgkmcnt(0)')
    e('s_barrier')
    e(f's_cmp_eq_u32 s{S_TICK}, 31')
    e('s_cbranch_scc1 L_last')
    half_tick(e, V_SB, V_SA, 0, 0)
    e('s_cbranch_vccnz L_rare_b')
    e.lab('L_back_b')
    e(f's_cmp_eq_u32 s{S_TICK}, 15')
    e('s_cbranch_scc1 L_switch')
    e.lab('L_back_sw')
    half_tick(e, V_SA, V_SB, 1, 1, extra_v=adv(S_VOFF, S_T0, V_VA, 4), extra_k=adv(S_KOFF, S_T1, V_KA, 8))
    e(f's_add_u32 s{S_TICK}, s{S_TICK}, 1')
    e(f's_sub_u32 s{S_WN}, s{S_WN}, 1')
    e(f's_cmp_eq_u32 s{S_WN}, 0')
    e('s_cbranch_scc1 L_snip')
    e.lab('L_snip_ret')
    e(f's_cmp_eq_u32 s{S_TICK}, 16')
    e('s_cbranch_scc1 L_epi1')
    e('s_cbranch_vccz L_tick')
    e.lab('L_rare_a')
    rare(e, V_SA, 'L_tick')
    e.lab('L_snip')
    w_snippets(e, o, 'L_snip_ret')
    e.lab('L_rare_b')
    rare(e, V_SB, 'L_back_b')
    e.lab('L_switch')
    for i in range(16): e(f'v_mov_b32 v{V_Q+16+i}, v{224+i}')
    for i in range(16): e.many(conv(i, V_Q2, V_Q))
    for i in range(16): e(f'v_mov_b32 v{V_NEGM+i}, 0')
    e('s_nop 1')
    e('s_branch L_back_sw')
    e.lab('L_epi1')
    epilogue(e, o)
    e(f's_add_u32 s{S_OB}, s{S_OB}, {RND - 4096}')
    for i in range(64): e(f'v_accvgpr_write_b32 a{i}, 0')
    for i in range(4): e(f'v_mov_b32 v{V_L+i}, 0')
    e(f's_mov_b32 s{S_FLOOR}, 0xff800000')
    stamp(e, o, 2); stamp(e, o, 10, clk=True)
    e('s_branch L_rare_a')
    e.lab('L_rare_l')
    rare(e, V_SB, 'L_back_l')
    e.lab('L_last')
    half_tick(e, V_SB, V_SA, 0, None)
    e('s_cbranch_vccnz L_rare_l')
    e.lab('L_back_l')
    last_half(e, V_SB)
    epilogue(e, o)

def tail_setup(e, o):
    e(f's_mul_i32 s{S_O1}, s{S_BR}, 24')
    e(f's_add_u32 s{S_O1}, s{S_O1}, s{S_QT}')
    e(f's_lshl_b32 s{S_O1}, s{S_O1}, 2')
    e(f's_add_u32 s{S_O1}, s{S_O1}, s{S_WAVE}')
    e(f's_lshl_b32 s{S_O1}, s{S_O1}, 16')

POOL = [16, 20, 24, 32, 36, 40, 44, 80, 84] + list(range(96, 192, 4)) + [88, 92]
ORDER1 = [0, 1, 2, 8, 3, 9, 4, 10, 5, 11, 6, 12, 7]
ORDER2 = [8, 0, 9, 1, 10, 2, 11, 3, 12, 4, 13, 14, 15, 5, 6, 7]

class Tail:
    def __init__(self, e, o):
        self.e, self.o = e, o
        self.vm = Vm(e)
        self.free = list(POOL)
        self.where = {}
        self.todo = []
    def oload(self, rnd, c):
        e = self.e
        regs = [self.free.pop(0) for _ in range(4)]
        self.where[(rnd, c)] = regs
        r = [f's_add_u32 s{S_T1}, s{S_RHO}, {c}', f's_and_b32 s{S_T1}, s{S_T1}, 15', f's_lshl_b32 s{S_T1}, s{S_T1}, 12',
             f's_add_u32 s{S_T1}, s{S_T1}, s{S_O1}']
        if rnd and not self.o.t_o1: r.append(f's_add_u32 s{S_T1}, s{S_T1}, {RND}')
        if rnd and self.o.t_noo: return []
        for s4 in range(4):
            r.append(f'buffer_load_dwordx4 {vr(regs[s4],4)}, v{V_OST}, {sr(S_WS,4)}, s{S_T1} offen offset:{1024*s4} {self.o.old_flags}')
        self.vm.add(f'o{rnd}_{c}', 4)
        return r
    def pump(self):
        r = []
        while self.todo and len(self.free) >= 4 and self.vm.out() + 4 <= 63:
            r += self.oload(*self.todo.pop(0))
        return r

def tail_pre(e, o):
    T = Tail(e, o)
    tail_setup(e, o)
    T.todo = [(0, c) for c in ORDER1]
    return T

def tail(e, o, T):
    L = V_LANE
    vm = T.vm
    RA = 6
    TEMP = 48
    e(f's_cmp_eq_u32 s{S_NT}, 15')
    e('s_cbranch_scc1 L_exit')
    e(f's_mul_i32 s{S_WQB}, s{S_WAVE}, {1024*1280}')
    e(f's_add_u32 s{S_WQB}, s{S_WQB}, s{S_WOB}')
    vm.room(8)
    e.many(wo_dma(o, 12, f's{S_XL}', 4 * 32768, f's{S_WQB}', V_DMA))
    vm.add('late', 8)
    e.many(T.pump())
    for b in range(3):
        e(f'v_add_u32 v{RA+2*b}, {65536*b}, v{V_WA}')
        e(f'v_add_u32 v{RA+2*b+1}, {65536*b}, v{V_WA+1}')
    e(f's_lshl_b32 s{S_T0}, s{S_BR}, 2')
    e(f's_add_u32 s{S_T0}, s{S_T0}, s{S_QB}')
    e(f's_lshl_b32 s{S_T0}, s{S_T0}, 2')
    e(f's_add_u32 s{S_T0}, s{S_T0}, s{S_WAVE}')
    e(f's_lshl_b32 s{S_T0}, s{S_T0}, 10')
    e(f's_add_u32 s{S_T0}, s{S_T0}, {WS_FLAGS}')
    e(f'v_and_b32 v31, 7, v{L}')
    e(f'v_lshlrev_b32 v31, 7, v31')
    e(f'v_add_u32 v31, s{S_T0}, v31')
    e('v_mov_b32 v0, 0')
    piece = {8: 0, 9: 1, 10: 2, 11: 3, 12: 4, 13: 0, 14: 1, 15: 2}
    tmp_of = {}
    def rd(c, dstf):
        j = piece[c]
        return wo_reads(dstf, RA + 2 * (j >> 1), RA + 2 * (j >> 1) + 1, 32768 * (j & 1))
    def afrag(c):
        if c < 8: return lambda off, n: hold(c, off, n)
        if c >= 13: return lambda off, n: hold(c - 13, off, n)
        return lambda off, n: vr(TEMP + off, n)
    first = {0: True, 1: True}
    def mms(c, rnds):
        m = []
        for s4 in range(4):
            for rnd in rnds:
                for nt in range(2):
                    d = ar(32 * rnd + 16 * nt, 16)
                    m.append(mfma(d, afrag(c)(8 * s4 + 4 * nt, 4), vr(T.where[(rnd, c)][s4], 4), '0' if (first[rnd] and s4 == 0) else d))
        for rnd in rnds: first[rnd] = False
        return m
    def wdma(c):
        if o.t_now: return []
        vm.add(f'w{c}', 8)
        return wo_dma(o, c, f's{S_XL}', 32768 * piece[c], f's{S_WQB}', V_DMA)
    ld_fl = f'buffer_load_dword v{V_T2}, v31, {sr(S_WS,4)}, 0 offen sc1'
    WA, RDA, VOUT = 48, 56, 60
    S_OO = S_KOFF
    fin = [f'v_and_b32 v{V_T0}, 31, v{L}', f'v_lshrrev_b32 v{V_T1}, 5, v{L}', f'v_and_b32 v{V_T3}, 15, v{L}',
           f'v_xor_b32 v{V_T1}, v{V_T1}, v{V_T3}', f'v_lshlrev_b32 v{V_T1}, 4, v{V_T1}',
           f'v_lshl_add_u32 v{V_T0}, v{V_T0}, 8, v{V_T1}', f's_add_u32 s{S_T3}, s{S_XL}, {3*32768}',
           f'v_add_u32 v{V_T0}, s{S_T3}, v{V_T0}']
    fin += [f'v_xor_b32 v{WA+k}, {32*k}, v{V_T0}' for k in range(8)]
    fin2 = [f's_lshr_b32 s{S_VOFF}, s{S_WAVE}, 1', f's_and_b32 s{S_THR}, s{S_WAVE}, 1',
            f's_lshl_b32 s{S_T2}, s{S_VOFF}, 15', f's_lshl_b32 s{S_T3}, s{S_THR}, 12',
            f's_add_u32 s{S_T2}, s{S_T2}, s{S_T3}', f's_add_u32 s{S_T2}, s{S_T2}, {3*32768}',
            f'v_lshrrev_b32 v{V_T1}, 3, v{L}', f'v_and_b32 v{V_T3}, 7, v{L}', f'v_lshlrev_b32 v{V_T0}, 1, v{V_T3}',
            f'v_xor_b32 v{V_T0}, v{V_T0}, v{V_T1}', f'v_lshlrev_b32 v{V_T0}, 4, v{V_T0}',
            f'v_lshl_add_u32 v{V_T0}, v{V_T1}, 8, v{V_T0}', f'v_add_u32 v{RDA}, s{S_T2}, v{V_T0}',
            f'v_xor_b32 v{RDA+1}, 16, v{RDA}', f'v_xor_b32 v{RDA+2}, {2048+128}, v{RDA}', f'v_xor_b32 v{RDA+3}, 16, v{RDA+2}',
            f's_lshl_b32 s{S_OO}, s{S_QT}, 5', f's_mul_i32 s{S_VOFF}, s{S_VOFF}, 384', f's_add_u32 s{S_OO}, s{S_OO}, s{S_VOFF}',
            f's_lshl_b32 s{S_THR}, s{S_THR}, 4', f's_add_u32 s{S_OO}, s{S_OO}, s{S_THR}', f's_mul_i32 s{S_OO}, s{S_OO}, 2560',
            f's_mul_i32 s{S_T3}, s{S_BR}, 1280', f's_add_u32 s{S_OO}, s{S_OO}, s{S_T3}', f's_add_u32 s{S_OO}, s{S_OO}, s{S_WOB}',
            f'v_mul_u32_u24 v{V_T1}, 2560, v{V_T1}', f'v_lshl_add_u32 v{VOUT}, v{V_T3}, 4, v{V_T1}']
    def pwrite(rnd):
        return [f'ds_write_b128 v{WA+4*nt+g}, {ar(32*rnd+16*nt+4*g,4)} offset:{rnd*32768}' for nt in range(2) for g in range(4)]
    seq = [(0, c) for c in ORDER1] + [(1, c) for c in ORDER2]
    todo2 = []
    for c in ORDER2: todo2 += ([(0, c)] if c >= 13 else []) + [(1, c)]
    for i, (rnd, c) in enumerate(seq):
        rnds = [0, 1] if c >= 13 else [rnd]
        nxt = seq[i + 1][1] if i + 1 < len(seq) else None
        if i == o.chk - 2:
            vm.room(2); e(f'global_load_dword v30, v0, {sr(S_DBG,2)} sc1'); e(ld_fl); vm.add('pl', 2)
        if i == o.chk:
            vm.stamp(o, 5)
            vm.wait('pl')
            e('v_add_u32 v30, 3, v30')
            poll(e, o, 'r2', ld_fl, [f'v_cmp_eq_u32 vcc, v30, v{V_T2}'])
            assert not T.todo
            T.todo = todo2
            e.many(T.pump())
            vm.stamp(o, 6)
        if c >= 8: e('s_waitcnt lgkmcnt(0)')
        for r_ in rnds: vm.wait(f'o{r_}_{c}')
        front = []; late = []
        if nxt is not None and nxt >= 8:
            assert not (8 <= c < 13 and nxt < 13)
            if rnd == 0 and nxt == 8 and i < 5: e('s_barrier')
            if nxt == 12 and vm.has('late'): vm.wait('late')
            if nxt >= 13: vm.wait(f'w{nxt}')
            front = rd(nxt, afrag(nxt))
        if rnd == 1 and c in (8, 9, 10):
            vm.room(8)
            late += wdma(c + 5)
        if rnd == 1 and c == 15: late += fin
        if rnd == 1 and c == 6: late += pwrite(0)
        if rnd == 1 and c == 5: late += fin2
        m = mms(c, rnds)
        late += T.pump()
        gaps(e, m, front, late, per=3, late_from=0 if not front else 2)
        for r_ in rnds: T.free += T.where[(r_, c)]
    assert not T.todo
    vm.stamp(o, 7)
    e('s_nop 7'); e('s_nop 3')
    e.many(pwrite(1))
    e('s_waitcnt lgkmcnt(0)')
    e('s_barrier')
    for i in range(2):
        for p in range(4):
            for hh in range(2):
                e(f'ds_read_b128 {vr(96+32*i+8*p+4*hh,4)}, v{RDA+2*i+hh} offset:{8192*p}')
    for i in range(2):
        b = 96 + 32 * i
        e(f's_waitcnt lgkmcnt({8*(1-i)})')
        for j in range(8):
            e(f'v_add_f32 v{b+j}, v{b+j}, v{b+8+j}')
            e(f'v_add_f32 v{b+16+j}, v{b+16+j}, v{b+24+j}')
        for j in range(8): e(f'v_add_f32 v{b+j}, v{b+j}, v{b+16+j}')
        for j in range(4): e(f'v_cvt_pk_bf16_f32 v{b+8+j}, v{b+2*j}, v{b+2*j+1}')
        if i: e(f's_add_u32 s{S_OO}, s{S_OO}, {8*2560}')
        e(f'buffer_store_dwordx4 {vr(b+8,4)}, v{VOUT}, {sr(S_OUT,4)}, s{S_OO} offen')
    if o.stamps:
        e('s_waitcnt vmcnt(0)')
        stamp(e, o, 14)

KD = '''.amdhsa_kernel {n}
  .amdhsa_next_free_vgpr 512
  .amdhsa_next_free_sgpr 102
  .amdhsa_accum_offset 256
  .amdhsa_group_segment_fixed_size 0
  .amdhsa_kernarg_size 104
  .amdhsa_user_sgpr_count 2
  .amdhsa_user_sgpr_kernarg_segment_ptr 1
  .amdhsa_system_sgpr_workgroup_id_x 1
.end_amdhsa_kernel
'''

def gen(o):
    e = Em()
    k1 = NAME + '_kernel'
    e.raw('; @launch grid=(256,1,1) block=(256,1,1) lds=163840')
    e.raw('.amdgcn_target "amdgcn-amd-amdhsa--gfx950"')
    e.raw('.text')
    e.raw(f'.globl {k1}\n.p2align 8\n.type {k1},@function')
    e.lab(k1)
    prologue(e, o)
    e(f's_cmp_eq_u32 s{S_WAVE}, 3')
    e('s_cbranch_scc1 L_loader')
    phase_a(e, o)
    phase_b(e, o)
    T = tail_pre(e, o)
    pre = T.pump()
    npre = T.vm.out()
    e.many(pre)
    e(f's_waitcnt vmcnt({npre}) lgkmcnt(0)')
    e('s_barrier')
    if o.stamps:
        T.vm.stamp(o, 3); T.vm.stamp(o, 11, clk=True)
    e('s_branch L_join')
    e.lab('L_loader')
    loader(e, o)
    tail_setup(e, o)
    e.many(pre)
    if o.stamps:
        stamp(e, o, 3); stamp(e, o, 15)
    e.lab('L_join')
    tail(e, o, T)
    e.lab('L_exit')
    e('s_endpgm')
    e.raw('.section .rodata,"a"\n.p2align 6')
    e.raw(KD.format(n=k1))
    return e.text()

if __name__ == '__main__':
    o = Opt()
    out = sys.argv[1]
    for a in sys.argv[2:]:
        k, v = a.split('=', 1); v = v.replace('+', ' ')
        cur = getattr(o, k)
        setattr(o, k, (v == '1') if isinstance(cur, bool) else int(v) if isinstance(cur, int) else v)
    open(out, 'w').write(gen(o))
```

```python
import sys, math, struct
NAME = 'concat_heads__mha_block_cached__mha_block_cached__near_ridge'

class Opt:
    stamps = False
    kv_flags = 'nt'
    w_flags = ''
    wo_flags = ''
    ost_flags = 'sc1'
    old_flags = 'sc1'
    look = 7
    rot = 3
    tickst = 0
    no_w = False
    no_w3 = False
    t_now = False
    t_o1 = False
    t_noo = False
    c8late = True
    pf_kv = 0
    pf_wo = True
    pf_a = False
    pf_w = False
    pf_delay = 0
    pf_s0 = 2
    pf_mid = 0
    pf_flags = ''
    pf_tail = 0
    bal = 0
    k_first = False
    k_s0 = 0
    tlb = True
    aper = 5
    v1_late = True
    look_lo = 4
    look_k0 = 9
    look_k1 = 17
    krot = False
    early = True
    chk = 8
    bal_k1 = 30
    psleep = 4
    thr = 16
    blk = 0

WS_FLAGS = 12582912
WS_STAMP = 13631488
SLOT = 16384
STAGE = 40960
RND = 12 * 32 * 8192

S_X, S_K, S_V, S_WQ, S_WO, S_OUT, S_WS = 4, 8, 12, 16, 20, 24, 28
S_DBG = 32
S_WAVE, S_BR, S_H, S_BL = 34, 35, 36, 37
S_T0, S_T1, S_T2, S_T3 = 38, 39, 40, 41
S_KX, S_XB, S_XL, S_KVB, S_TICK = 42, 43, 44, 45, 46
S_KOFF, S_VOFF, S_THR, S_FLOOR, S_C, S_OB, S_WQB = 47, 48, 49, 50, 51, 52, 53
S_ST, S_STB, S_QT, S_NT = 54, 56, 57, 58
S_SAVE = 60
S_WN, S_FL = 62, 63
S_EV = 59
S_KARG = 64
S_WOB, S_O1, S_QB, S_CNT, S_RHO, S_WC, S_N, S_KR = 90, 91, 92, 93, 94, 95, 96, 97

V_LANE = 1
V_T0, V_T1, V_T2, V_T3 = 2, 3, 4, 5
V_L, V_MX, V_D = 6, 10, 11
V_DMA = 12
V_KA, V_VA, V_OST, V_WA = 16, 24, 28, 29
V_NEGM = 32
V_SA, V_SB, V_P, V_TMP = 48, 64, 80, 88
V_Q, V_KF, V_VF, V_Q2 = 96, 128, 160, 192

class Em:
    def __init__(self): self.L = []
    def __call__(self, s): self.L.append('    ' + s)
    def lab(self, s): self.L.append(s + ':')
    def raw(self, s): self.L.append(s)
    def many(self, l):
        for x in l: self(x)
    def text(self): return '\n'.join(self.L) + '\n'

def vr(b, n=1): return f'v{b}' if n == 1 else f'v[{b}:{b+n-1}]'
def ar(b, n=1): return f'a{b}' if n == 1 else f'a[{b}:{b+n-1}]'
def sr(b, n=1): return f's{b}' if n == 1 else f's[{b}:{b+n-1}]'
def mfma(d, a, b, c): return f'v_mfma_f32_32x32x16_bf16 {d}, {a}, {b}, {c}'
def hold(ci, off, n):
    return ar(64 + 32 * ci + off, n) if ci < 6 else vr(192 + 32 * (ci - 6) + off, n)

def cost(i):
    if i.startswith('v_exp') or i.startswith('v_rcp'): return 8
    if i.startswith('s_'): return 2
    return 4

def interleave(e, mf, fill):
    total = sum(cost(f) for f in fill if not isinstance(f, tuple))
    per = total / len(mf)
    fi = 0; acc = 0.0
    deadline = {}; items = []
    for f in fill:
        if isinstance(f, tuple):
            if f[0] == 'M': deadline[f[1]] = len(items)
            else: items.append(f)
        else: items.append(f)
    for k, m in enumerate(mf):
        need = deadline.get(k, 0)
        while fi < need:
            it = items[fi]; fi += 1
            if isinstance(it, tuple):
                assert it[1] < k, (it, k)
                continue
            e(it); acc += cost(it)
        if isinstance(m, (list, tuple)): e.many(m)
        else: e(m)
        target = per * (k + 1)
        while fi < len(items) and (acc < target - 1.0 or k == len(mf) - 1):
            it = items[fi]
            if isinstance(it, tuple):
                if it[1] > k: break
                fi += 1; continue
            e(it); acc += cost(it); fi += 1
    assert fi == len(items)

def gaps(e, mf, front, late=(), per=2, late_from=5):
    g = [[] for _ in mf]
    for i, f in enumerate(front): g[min(i // per, len(mf) - 1)].append(f)
    n = len(mf) - late_from
    for i, f in enumerate(late): g[late_from + (i * n) // len(late)].append(f)
    for m, x in zip(mf, g):
        e(m); e.many(x)

def stamp(e, o, idx, clk=False):
    if not o.stamps: return 0
    e(f's_memtime {sr(S_ST,2)}' if clk else f's_memrealtime {sr(S_ST,2)}')
    e('s_waitcnt lgkmcnt(0)')
    e(f'v_mov_b32 v{V_T0}, s{S_ST}')
    e(f'v_mov_b32 v{V_T1}, s{S_STB}')
    e('s_mov_b64 exec, 1')
    e(f'buffer_store_dword v{V_T0}, v{V_T1}, {sr(S_WS,4)}, 0 offen offset:{4*idx}')
    e('s_mov_b64 exec, -1')
    return 1

LAZY = {0: 98, 1: 100}
for _i in range(2, 15): LAZY[_i] = 64 + 2 * (_i - 2)
def lazy(e, o, i):
    if o.stamps: e(f's_memrealtime s[{LAZY[i]}:{LAZY[i]+1}]')
def lazy_dump(e, o, ids):
    if not o.stamps: return 0
    e('s_waitcnt lgkmcnt(0)')
    e(f'v_mov_b32 v{V_T1}, s{S_STB}')
    e('s_mov_b64 exec, 1')
    for i in ids:
        e(f'v_mov_b32 v{V_T0}, s{LAZY[i]}')
        e(f'buffer_store_dword v{V_T0}, v{V_T1}, {sr(S_WS,4)}, 0 offen offset:{16 if i == 0 else 4*(16+i)}')
        e('s_nop 1')
    e('s_mov_b64 exec, -1')
    return len(ids)

class Vm:
    def __init__(self, e): self.e = e; self.q = []
    def out(self): return sum(c for _, c in self.q)
    def has(self, name): return name in [n for n, _ in self.q]
    def wait(self, name):
        names = [n for n, _ in self.q]
        if name not in names: return
        i = names.index(name)
        rest = sum(c for _, c in self.q[i + 1:])
        assert rest <= 63
        self.e(f's_waitcnt vmcnt({rest})')
        self.q = self.q[i + 1:]
    def room(self, c):
        while self.out() + c > 61: self.wait(self.q[0][0])
    def add(self, name, c):
        self.q.append((name, c)); assert self.out() <= 63, self.q
    def stamp(self, o, idx, clk=False):
        if o.stamps:
            self.room(1); stamp(self.e, o, idx, clk); self.add(f'st{idx}', 1)

def prologue(e, o):
    if o.stamps: e('s_memrealtime s[98:99]')
    e('s_cmp_ge_u32 s2, 256')
    e('s_cbranch_scc1 L_exit')
    e(f's_load_dwordx16 {sr(S_KARG,16)}, s[0:1], 0')
    e(f's_load_dwordx8 {sr(S_KARG+16,8)}, s[0:1], 64')
    e(f's_load_dwordx2 {sr(S_KARG+24,2)}, s[0:1], 96')
    e(f'v_lshrrev_b32 v{V_T0}, 6, v0')
    e(f'v_and_b32 v{V_LANE}, 63, v0')
    e(f'v_readfirstlane_b32 s{S_WAVE}, v{V_T0}')
    e(f's_and_b32 s{S_T0}, s2, 7')
    e(f's_lshr_b32 s{S_T1}, s2, 3')
    e(f's_lshr_b32 s{S_BR}, s{S_T0}, 2')
    e(f's_and_b32 s{S_T2}, s{S_T0}, 3')
    e(f's_lshl_b32 s{S_H}, s{S_T2}, 3')
    e(f's_and_b32 s{S_T3}, s{S_T1}, 7')
    e(f's_add_u32 s{S_H}, s{S_H}, s{S_T3}')
    e(f's_lshr_b32 s{S_BL}, s{S_T1}, 3')
    e(f's_mul_i32 s{S_KX}, s{S_BL}, 5')
    e(f's_add_u32 s{S_KX}, s{S_KX}, 1')
    e(f's_lshr_b32 s{S_KX}, s{S_KX}, 1')
    e(f's_add_u32 s{S_KX}, s{S_KX}, s{S_T3}')
    e(f's_cmp_ge_u32 s{S_KX}, 10')
    e(f's_cselect_b32 s{S_T3}, 10, 0')
    e(f's_sub_u32 s{S_KX}, s{S_KX}, s{S_T3}')
    if o.blk == 0:
        e(f's_mul_i32 s{S_QT}, s{S_T1}, 13')
        e(f's_lshr_b32 s{S_QT}, s{S_QT}, 6')
        e(f's_mul_i32 s{S_T3}, s{S_QT}, 5')
        e(f's_sub_u32 s{S_NT}, s{S_T1}, s{S_T3}')
        e(f's_and_b32 s{S_T3}, s{S_T2}, 1')
        e(f's_mul_i32 s{S_T3}, s{S_T3}, 5')
        e(f's_add_u32 s{S_NT}, s{S_NT}, s{S_T3}')
        e(f's_lshr_b32 s{S_T3}, s{S_T2}, 1')
        e(f's_mul_i32 s{S_T3}, s{S_T3}, 6')
        e(f's_add_u32 s{S_QT}, s{S_QT}, s{S_T3}')
    elif o.blk == 1:
        e(f's_mul_i32 s{S_QT}, s{S_T1}, 26')
        e(f's_lshr_b32 s{S_QT}, s{S_QT}, 8')
        e(f's_mul_i32 s{S_T3}, s{S_QT}, 10')
        e(f's_sub_u32 s{S_NT}, s{S_T1}, s{S_T3}')
        e(f's_mul_i32 s{S_T3}, s{S_T2}, 3')
        e(f's_add_u32 s{S_QT}, s{S_QT}, s{S_T3}')
    else:
        e(f's_mul_i32 s{S_T3}, s{S_T2}, 30')
        e(f's_add_u32 s{S_T3}, s{S_T3}, s{S_T1}')
        e(f's_mul_i32 s{S_NT}, s{S_T3}, 171')
        e(f's_lshr_b32 s{S_NT}, s{S_NT}, 11')
        e(f's_mul_i32 s{S_QT}, s{S_NT}, 12')
        e(f's_sub_u32 s{S_QT}, s{S_T3}, s{S_QT}')
    e(f's_cmp_ge_u32 s{S_T1}, 30')
    e(f's_cselect_b32 s{S_NT}, 15, s{S_NT}')
    e(f's_cselect_b32 s{S_QT}, 0, s{S_QT}')
    e(f's_mul_i32 s{S_QB}, s{S_QT}, 11')
    e(f's_lshr_b32 s{S_QB}, s{S_QB}, 5')
    e(f's_lshl_b32 s{S_STB}, s2, 2')
    e(f's_add_u32 s{S_STB}, s{S_STB}, s{S_WAVE}')
    e(f's_lshl_b32 s{S_STB}, s{S_STB}, 8')
    e(f's_add_u32 s{S_STB}, s{S_STB}, {WS_STAMP}')
    e(f's_lshl_b32 s{S_XL}, s{S_WAVE}, 13')
    e(f's_lshl_b32 s{S_WOB}, s{S_NT}, 7')
    e(f's_cmp_ge_u32 s{S_NT}, 5')
    e(f's_cselect_b32 s{S_T0}, {5 if o.blk == 0 else 0}, 0')
    e(f's_sub_u32 s{S_RHO}, s{S_NT}, s{S_T0}')
    e(f's_mul_i32 s{S_RHO}, s{S_RHO}, {o.rot}')
    e(f's_and_b32 s{S_RHO}, s{S_RHO}, 15')
    for srd, size in ((S_X, 983040), (S_K, 1 << 26), (S_V, 1 << 26), (S_WQ, 5242880), (S_WO, 5242880), (S_OUT, 1966080), (S_WS, 16777216)):
        e(f's_mov_b32 s{srd+2}, {size}')
        e(f's_mov_b32 s{srd+3}, 0x20000')

def srds(e, o):
    e('s_waitcnt lgkmcnt(0)')
    e(f's_cmp_eq_u32 s{S_BR}, 0')
    for srd, i in ((S_WQ, 3), (S_X, 0), (S_K, 1), (S_V, 2), (S_WO, 4)):
        e(f's_cselect_b64 {sr(srd,2)}, {sr(S_KARG+2*i,2)}, {sr(S_KARG+10+2*i,2)}')
    e(f's_mov_b64 {sr(S_OUT,2)}, {sr(S_KARG+20,2)}')
    e(f's_mov_b64 {sr(S_WS,2)}, {sr(S_KARG+24,2)}')
    e(f's_mov_b64 {sr(S_DBG,2)}, {sr(S_KARG+22,2)}')
    for srd in (S_WQ, S_X, S_K, S_V, S_WO, S_OUT, S_WS):
        e(f's_and_b32 s{srd+1}, s{srd+1}, 0xffff')
    lazy(e, o, 1)

def no_task_wo(e):
    e(f's_cmp_eq_u32 s{S_NT}, 15')
    e(f's_cselect_b32 s{S_WO+2}, 0, s{S_WO+2}')

RING = 32768
PF_TICKS = [0, 1, 6, 10, 15, 19, 22, 24, 25, 26, 27]
def reg_w(s): return (32768, 73728, 114688)[(s + 2) % 3]
def reg_x(s): return (49152, 90112, 0)[(s + 2) % 3]

SEQ = ['K0']
for k in range(32): SEQ += [f'K{k+1}', f'V{k}']
SEQ += [f'T{i}' for i in range(8)]
POS = {n: i for i, n in enumerate(SEQ)}
def slot(name): return (6 + POS[name]) % 8
def slot_addr(name): return RING + slot(name) * SLOT

def wo_dma(o, c, ldsbase_s, ldsoff, wob, vw, dyn=False):
    r = []
    if o.no_w and dyn: return ['s_nop 0']
    if dyn:
        r += [f's_mul_i32 s{S_T0}, s{S_WC}, {64*1280}', f's_add_u32 s{S_WC}, s{S_WC}, 1', f's_and_b32 s{S_WC}, s{S_WC}, 15']
    else:
        r += [f's_add_u32 s{S_T0}, s{S_RHO}, {c}', f's_and_b32 s{S_T0}, s{S_T0}, 15', f's_mul_i32 s{S_T0}, s{S_T0}, {64*1280}']
    r.append(f's_add_u32 s{S_T0}, s{S_T0}, {wob}')
    for g_ in range(2):
        r.append(f's_add_u32 m0, {ldsbase_s}, {ldsoff + 4096*g_}' if ldsbase_s else f's_mov_b32 m0, {ldsoff + 4096*g_}')
        r.append(f's_add_u32 s{S_T1}, s{S_T0}, {32*g_*1280}')
        for i in range(4):
            r.append(f'buffer_load_dwordx4 v{vw+i}, {sr(S_WO,4)}, s{S_T1} offen offset:{1024*i} {o.wo_flags} lds')
    return r

def wo_voffs(e, dst):
    L = V_LANE
    e(f'v_lshrrev_b32 v{V_T0}, 3, v{L}')
    e(f'v_mul_u32_u24 v{V_T0}, 1280, v{V_T0}')
    e(f'v_bfe_u32 v{V_T1}, v{L}, 4, 1')
    e(f'v_lshlrev_b32 v{V_T1}, 2, v{V_T1}')
    e(f'v_and_b32 v{V_T2}, 7, v{L}')
    e(f'v_xor_b32 v{V_T1}, v{V_T1}, v{V_T2}')
    e(f'v_lshl_add_u32 v{dst}, v{V_T1}, 4, v{V_T0}')
    for i in range(1, 4): e(f'v_add_u32 v{dst+i}, {(10240-1024)*i}, v{dst}')

def wo_lane_addr(e, dst):
    L = V_LANE
    e(f'v_lshrrev_b32 v{V_T0}, 5, v{L}')
    e(f'v_bfe_u32 v{V_T1}, v{L}, 2, 2')
    e(f'v_lshl_add_u32 v{dst}, v{V_T0}, 2, v{V_T1}')
    e(f'v_lshlrev_b32 v{dst}, 7, v{dst}')
    e(f'v_bfe_u32 v{V_T3}, v{L}, 3, 1')
    e(f'v_lshl_add_u32 v{dst}, v{V_T3}, 6, v{dst}')
    e(f'v_bfe_u32 v{V_T3}, v{L}, 4, 1')
    e(f'v_lshl_add_u32 v{dst}, v{V_T3}, 5, v{dst}')
    e(f'v_and_b32 v{V_T3}, 3, v{L}')
    e(f'v_lshl_add_u32 v{dst}, v{V_T3}, 3, v{dst}')

def wo_reads(dstf, a0, a1, off):
    r = []
    for s4 in range(4):
        for nt in range(2):
            for u in range(2):
                r.append(f'ds_read_b64_tr_b16 {dstf(8*s4+4*nt+2*u,2)}, v{(a0,a1)[nt]} offset:{off+(16*s4+8*u)*128}')
    return r

def poll(e, o, tag, load, test):
    e.many(test)
    e('s_cmp_eq_u64 vcc, -1')
    e(f's_cbranch_scc1 L_polled_{tag}')
    e(f's_mov_b32 s{S_CNT}, 0x400000')
    e.lab(f'L_poll_{tag}')
    e(f's_sleep {o.psleep}')
    e(load)
    e('s_waitcnt vmcnt(0)')
    e.many(test)
    e('s_cmp_eq_u64 vcc, -1')
    e(f's_cbranch_scc1 L_polled_{tag}')
    e(f's_sub_u32 s{S_CNT}, s{S_CNT}, 1')
    e(f's_cmp_lg_u32 s{S_CNT}, 0')
    e(f's_cbranch_scc1 L_poll_{tag}')
    e.lab(f'L_polled_{tag}')

def loader(e, o):
    L = V_LANE
    VK, VV, VW, VWO, VF, VP, VZ = 24, 16, 20, 12, 17, 18, 19
    VA, VB = 96, 100
    AF = [48, 56]; BF = [64, 80]; ACC = 128
    vm = Vm(e)
    e(f'v_lshrrev_b32 v{V_T0}, 4, v{L}')
    e(f'v_and_b32 v{V_T1}, 15, v{L}')
    e(f'v_lshlrev_b32 v{V_T3}, 2, v{V_T0}')
    e(f'v_xor_b32 v{V_T3}, v{V_T3}, v{V_T1}')
    e(f'v_lshlrev_b32 v{V_T2}, 8, v{V_T0}')
    e(f'v_lshl_add_u32 v{VV}, v{V_T3}, 4, v{V_T2}')
    for i in range(4):
        e(f'v_add_u32 v{V_T3}, {4*i}, v{V_T0}')
        e(f'v_xor_b32 v{V_T3}, v{V_T3}, v{V_T1}')
        e(f'v_lshl_add_u32 v{VK+i}, v{V_T3}, 4, v{V_T2}')
    e(f's_lshl_b32 s{S_KVB}, s{S_BL}, 5')
    e(f's_add_u32 s{S_KVB}, s{S_KVB}, s{S_H}')
    e(f's_lshl_b32 s{S_KVB}, s{S_KVB}, 18')
    e(f's_and_b32 s{S_KR}, s2, 7')
    e(f's_lshl_b32 s{S_KR}, s{S_KR}, 1')
    e(f's_lshr_b32 s{S_T0}, s2, 3')
    e(f's_add_u32 s{S_KR}, s{S_KR}, s{S_T0}')
    e(f's_and_b32 s{S_KR}, s{S_KR}, {15 if o.krot else 0}')
    e(f's_lshl_b32 s{S_KR}, s{S_KR}, 14')
    e(f'v_lshlrev_b32 v{VW}, 19, v{L}')
    e(f'v_lshlrev_b32 v{VW+1}, 25, v{L}')
    e(f'v_mov_b32 v{VZ}, 0')
    e(f'v_lshlrev_b32 v{VW+3}, 18, v{L}')
    e(f's_lshl_b32 s{S_T0}, s{S_BR}, 2')
    e(f's_add_u32 s{S_FL}, s{S_T0}, s{S_BL}')
    e(f's_lshl_b32 s{S_FL}, s{S_FL}, 5')
    e(f's_add_u32 s{S_FL}, s{S_FL}, s{S_H}')
    e(f's_lshl_b32 s{S_FL}, s{S_FL}, 7')
    e(f's_add_u32 s{S_FL}, s{S_FL}, {WS_FLAGS}')
    e(f's_mul_i32 s{S_T2}, s{S_BR}, 8')
    e(f's_add_u32 s{S_T2}, s{S_T2}, s{S_BL}')
    e(f's_mul_i32 s{S_T2}, s{S_T2}, 96')
    e(f's_add_u32 s{S_T2}, s{S_T2}, s{S_H}')
    e(f's_lshl_b32 s{S_T2}, s{S_T2}, 13')
    srds(e, o)
    if o.tlb:
        e('s_mov_b64 exec, 3')
        e(f'buffer_load_dword v{VW+2}, v{VW+1}, {sr(S_K,4)}, s{S_KVB} offen')
        e(f'buffer_load_dword v{VW+2}, v{VW+1}, {sr(S_V,4)}, s{S_KVB} offen')
        e('s_mov_b64 exec, 0x3ffffff')
        e(f'buffer_load_dword v{VW+2}, v{VW}, {sr(S_WO,4)}, 0 offen')
        e(f'buffer_load_dword v{VW+2}, v{VW}, {sr(S_OUT,4)}, 0 offen')
        e('s_mov_b64 exec, 0x7007')
        e(f'buffer_load_dword v{VW+2}, v{VW+3}, {sr(S_WS,4)}, s{S_T2} offen')
        e('s_mov_b64 exec, 1')
        e(f'buffer_load_dword v{VW+2}, v{VZ}, {sr(S_WS,4)}, s{S_FL} offen')
        e('s_mov_b64 exec, -1')
        vm.add('tlb', 6)
    def issue_l(name):
        kind, t = name[0], int(name[1:])
        r = []
        if kind == 'K' and t > 31: return r
        base = slot_addr(name)
        if kind in 'KV':
            off = (t // 16) * (4 * 32 * 262144)
            r.append(f's_add_u32 s{S_T0}, s{S_KR}, {(t % 16) * SLOT}')
            r.append(f's_and_b32 s{S_T0}, s{S_T0}, {16 * SLOT - 1}')
            r.append(f's_add_u32 s{S_T0}, s{S_T0}, s{S_KVB}')
            for g in range(4):
                r.append(f's_mov_b32 m0, {base + 4096*g}')
                r.append(f's_add_u32 s{S_T1}, s{S_T0}, {off + 4096*g}')
                for i in range(4):
                    v = VK + i if kind == 'K' else VV
                    r.append(f'buffer_load_dwordx4 v{v}, {sr(S_K if kind == "K" else S_V,4)}, s{S_T1} offen offset:{1024*i} {o.kv_flags} lds')
        else:
            rr = slot(name); j, hi = 1 + (rr >> 1), rr & 1
            if j == 4: return r
            for p in range(2):
                r.append(f's_add_u32 s{S_T2}, s{S_WOB}, {1024*1280*(2*hi+p)}')
                r += wo_dma(o, 8 + j, None, base + 8192 * p, f's{S_T2}', VWO)
        return r
    def issue(name):
        r = issue_l(name)
        if r:
            vm.room(16); e.many(r); vm.add(name, 16)
    def own_w(c):
        vm.room(8)
        e(f's_add_u32 s{S_T2}, s{S_WOB}, {1024*1280*3}')
        e.many(wo_dma(o, c, None, 3 * 8192, f's{S_T2}', VWO))
        vm.add(f'w{c}', 8)
    def wait_upto(n):
        for m in range(n, -1, -1):
            if vm.has(SEQ[m]): vm.wait(SEQ[m]); return
    def flag(val):
        return [f's_add_u32 s{S_T0}, s{S_N}, {val}', f'v_mov_b32 v{V_T2}, s{S_T0}', 's_mov_b64 exec, 1',
                f'buffer_store_dword v{V_T2}, v{VZ}, {sr(S_WS,4)}, s{S_FL} offen sc1', 's_mov_b64 exec, -1']
    if o.pf_a:
        if o.pf_delay: e(f's_sleep {o.pf_delay}')
        e(f'v_lshrrev_b32 v{VW}, 1, v{L}')
        e(f'v_lshlrev_b32 v{VW}, 13, v{VW}')
        e(f'v_and_b32 v{VW+1}, 1, v{L}')
        e(f'v_lshl_add_u32 v{VW}, v{VW+1}, 7, v{VW}')
        e(f's_mul_i32 s{S_T0}, s{S_BL}, {160*8192}')
        e(f's_lshl_b32 s{S_T1}, s{S_H}, 8')
        e(f's_add_u32 s{S_T0}, s{S_T0}, s{S_T1}')
        for i in range(5):
            e(f's_add_u32 s{S_T1}, s{S_T0}, {32*i*8192}')
            e(f'buffer_load_dword v{VW+2}, v{VW}, {sr(S_WQ,4)}, s{S_T1} offen {o.w_flags}')
        e(f'v_lshlrev_b32 v{VW+1}, 7, v{L}')
        e(f's_and_b32 s{S_T0}, s{S_H}, 7')
        e(f's_mul_i32 s{S_T0}, s{S_T0}, 15360')
        e(f's_mul_i32 s{S_T1}, s{S_BL}, 122880')
        e(f's_add_u32 s{S_T0}, s{S_T0}, s{S_T1}')
        for i in range(4):
            e(f's_add_u32 s{S_T1}, s{S_T0}, {(i >> 1) * 491520 + (i & 1) * 8192}')
            e(f'buffer_load_dword v{VW+2}, v{VW+1}, {sr(S_X,4)}, s{S_T1} offen {o.w_flags}')
        vm.add('pfa', 9)
    if o.k_first: issue('K0'); issue('K1')
    e('s_cmp_lg_u32 s2, 0')
    e('s_cbranch_scc1 L_notag')
    e(f's_memrealtime {sr(S_ST,2)}')
    e('s_waitcnt lgkmcnt(0)')
    e(f's_mul_i32 s{S_ST+1}, s{S_ST+1}, 0x9e3779b1')
    e(f's_add_u32 s{S_ST}, s{S_ST}, s{S_ST+1}')
    e(f's_or_b32 s{S_ST}, s{S_ST}, 4')
    e(f's_and_b32 s{S_ST}, s{S_ST}, -4')
    e(f'v_mov_b32 v{V_T2}, s{S_ST}')
    e('s_mov_b64 exec, 1')
    e(f'global_store_dword v{VZ}, v{V_T2}, {sr(S_DBG,2)} sc1')
    e('s_mov_b64 exec, -1')
    e.lab('L_notag')
    e(f's_lshl_b32 s{S_T0}, s{S_BR}, 2')
    e(f's_add_u32 s{S_T0}, s{S_T0}, s{S_QB}')
    e(f's_lshl_b32 s{S_T0}, s{S_T0}, 12')
    e(f's_add_u32 s{S_T0}, s{S_T0}, {WS_FLAGS}')
    e(f'v_and_b32 v{VP}, 31, v{L}')
    e(f'v_lshlrev_b32 v{VP}, 7, v{VP}')
    e(f'v_add_u32 v{VP}, s{S_T0}, v{VP}')
    a_addr(e, VA, VB, None)
    wo_voffs(e, VWO)
    wo_lane_addr(e, V_WA)
    e(f'v_lshlrev_b32 v{VW}, 7, v{L}')
    e(f'v_add_u32 v{V_WA}, {3*8192}, v{V_WA}')
    e(f'v_xor_b32 v{V_WA+1}, 64, v{V_WA}')
    e(f'v_lshlrev_b32 v{V_OST}, 4, v{L}')
    e(f's_mov_b32 s{S_C}, {SCALE}')
    pf = []
    for n in range(2, 2 + o.pf_kv):
        kind, t = SEQ[n][0], int(SEQ[n][1:])
        for hh in range(2):
            pf.append([f's_add_u32 s{S_T1}, s{S_KVB}, {t*SLOT + hh*8192}',
                       f'buffer_load_dword v{VW+1}, v{VW}, {sr(S_K if kind == "K" else S_V,4)}, s{S_T1} offen {o.pf_flags}'])
    if o.pf_wo:
        e(f's_lshl_b32 s{S_T2}, s{S_H}, 2')
        e(f's_add_u32 s{S_T2}, s{S_T2}, s{S_BL}')
        e(f's_mul_i32 s{S_T2}, s{S_T2}, 40960')
        for i in range(5):
            pf.append([f's_add_u32 s{S_T1}, s{S_T2}, {i*8192}',
                       f'buffer_load_dword v{VW+1}, v{VW}, {sr(S_WO,4)}, s{S_T1} offen {o.pf_flags}'])
    def reads(s4, buf):
        r = []
        for t in (2, 3):
            for u in range(2):
                r.append(f'ds_read_b64_tr_b16 {vr(AF[buf]+4*(t-2)+2*u,2)}, v{VA+t} offset:{(16*s4+4*u)*256}')
        r += [f'ds_read_b128 {vr(BF[buf]+4*j,4)}, v{VB+s4} offset:{8192*j + 4096}' for j in range(3)]
        return r
    def mf(buf, first):
        r = []
        for j in range(3):
            for t in range(2):
                d = vr(ACC + 32 * j + 16 * t, 16)
                r.append(mfma(d, vr(AF[buf] + 4 * t, 4), vr(BF[buf] + 4 * j, 4), '0' if first else d))
        return r
    extra = {}
    def ride(step, name, ins, cnt):
        extra.setdefault(step, []).append((name, ins, cnt))
    if not o.k_first:
        for i, nm in enumerate(('K0', 'K1')):
            ins = issue_l(nm)
            for q in range(4): ride(4 * o.k_s0 + 4 * i + q, nm if q == 3 else None, ins[(3 + 6 * q if q else 0):3 + 6 * q + 6], 4)
    npf = 4 * (7 - o.pf_s0)
    for i, x in enumerate(pf): ride(4 * o.pf_s0 + (i * npf) // max(len(pf), 1), 'pf', x, 1)
    for i, nm in enumerate(('V0', 'K2')):
        ins = issue_l(nm)
        for q in range(2): ride(31 + 2 * i + q, nm if q == 1 else None, ins[(15 if q else 0):3 + 12 * q + 12], 8)
    ins = issue_l('V1')
    for q in range(0 if o.v1_late else 2): ride(35 + q, 'V1' if q == 1 else None, ins[(15 if q else 0):3 + 12 * q + 12], 8)
    e('s_barrier')
    e.many(reads(0, 0))
    for s in range(10):
        for s4 in range(4):
            step = 4 * s + s4; buf = step & 1
            e('s_waitcnt lgkmcnt(0)')
            if step == 31: no_task_wo(e)
            if s4 == 3:
                if s == 9: vm.wait('K1')
                e('s_barrier')
            late = []
            for name, ins, cnt in extra.get(step, []):
                vm.room(cnt); late += ins; vm.add(name or 'part', cnt)
            if s4 == 2 and s < 9: late += a_step(s, VA)
            front = reads((s4 + 1) & 3, buf ^ 1) if step < 39 else []
            gaps(e, mf(buf, step == 0), front, late, per=max(o.aper - 1, 3), late_from=(2 if s4 == 2 else 1))
    if o.v1_late: issue('V1')
    e('s_nop 7'); e('s_nop 3')
    for j in range(3):
        for i in range(16): e.many(conv(i, ACC + 32 * j, ACC + 32 * j))
        for f in range(4): e(f'ds_write_b128 v{V_OST}, {vr(ACC+32*j+4*f,4)} offset:{8192*j + 1024*f}')
    e('s_waitcnt lgkmcnt(0)')
    issue('K3')
    issued = POS['K3']
    e(f's_lshr_b32 s{S_WC}, s2, 3')
    e(f's_mul_i32 s{S_KX}, s{S_WC}, 13')
    e(f's_lshr_b32 s{S_KX}, s{S_KX}, 6')
    vm.wait('pfa')
    e(f'v_mul_u32_u24 v{VW+2}, 1280, v{L}')
    ld_cnt = f'global_load_dword v23, v{VZ}, {sr(S_DBG,2)} sc1'
    ld_fl = f'buffer_load_dword v23, v{VP}, {sr(S_WS,4)}, 0 offen sc1'
    for k in range(32):
        wait_upto(POS[f'V{k}'])
        vm.stamp(o, 32 + k) if o.tickst == 1 else None
        e('s_barrier')
        vm.stamp(o, 32 + k) if o.tickst == 2 else None
        if k == 19:
            vm.room(1); e.many(flag(1)); vm.add('f1', 1)
        if o.pf_w and k in PF_TICKS:
            vm.room(1)
            e(f's_add_u32 s{S_T0}, s{S_KX}, {6 * PF_TICKS.index(k)}')
            e(f's_and_b32 s{S_T2}, s{S_T0}, 3')
            e(f's_lshl_b32 s{S_T2}, s{S_T2}, 4')
            e(f's_lshr_b32 s{S_T0}, s{S_T0}, 2')
            e(f's_add_u32 s{S_T0}, s{S_T0}, s{S_RHO}')
            e(f's_and_b32 s{S_T0}, s{S_T0}, 15')
            e(f's_add_u32 s{S_T0}, s{S_T0}, s{S_T2}')
            e(f's_mul_i32 s{S_T0}, s{S_T0}, {64*1280}')
            e(f's_add_u32 s{S_T0}, s{S_T0}, s{S_WOB}')
            e(f'buffer_load_dword v{VW+1}, v{VW+2}, {sr(S_WO,4)}, s{S_T0} offen {o.wo_flags}')
            vm.add('pft', 1)
        wev = (k - 2) // 3 if (k >= 2 and (k - 2) % 3 == 0 and k <= 26) else None
        if wev:
            vm.wait(f'w{wev-1}')
            e.many(wo_reads(lambda off, n: hold(wev - 1, off, n), V_WA, V_WA + 1, 0))
        if k in (10, 28):
            vm.room(1); e(ld_cnt if k == 10 else ld_fl); vm.add('pl', 1)
        first = POS[f'K{k+1}']
        lk = o.look if o.look_k0 <= k < o.look_k1 else o.look_lo
        if k >= 28: lk = 7 if first + o.look_lo >= POS['V31'] else lk
        lim = min(first + lk, first + 7, POS['T6'])
        if k == 31: lim = POS['T6']
        while issued < lim:
            issued += 1
            issue(SEQ[issued])
            while vm.out() > o.thr and k < 31: vm.wait(vm.q[0][0])
        if k == 10:
            vm.wait('pl')
            poll(e, o, 'tag', ld_cnt, ['v_cmp_ne_u32 vcc, 0, v23'])
            e(f'v_readfirstlane_b32 s{S_N}, v23')
        if k == 28:
            vm.wait('pl')
            e(f's_add_u32 s{S_T3}, s{S_N}, 1')
            poll(e, o, 'r1', ld_fl, ['v_and_b32 v23, -3, v23', f'v_cmp_eq_u32 vcc, s{S_T3}, v23'])
        if wev is not None:
            e('s_waitcnt lgkmcnt(0)')
            own_w(wev)
    e('s_barrier')
    e.many(flag(3))
    e('s_waitcnt vmcnt(1)')

def a_addr(e, VA, VB, xl):
    L = V_LANE
    e(f'v_lshrrev_b32 v{V_T0}, 5, v{L}')
    e(f'v_bfe_u32 v{V_T1}, v{L}, 2, 2')
    e(f'v_lshl_add_u32 v{V_T2}, v{V_T0}, 3, v{V_T1}')
    e(f'v_lshlrev_b32 v{V_T2}, 8, v{V_T2}')
    e(f'v_lshl_add_u32 v{V_T2}, v{V_T1}, 6, v{V_T2}')
    e(f'v_bfe_u32 v{V_T3}, v{L}, 4, 1')
    e(f'v_lshl_add_u32 v{V_T2}, v{V_T3}, 5, v{V_T2}')
    e(f'v_and_b32 v{V_T3}, 1, v{L}')
    e(f'v_lshl_add_u32 v{V_T2}, v{V_T3}, 4, v{V_T2}')
    e(f'v_bfe_u32 v{V_T3}, v{L}, 1, 1')
    e(f'v_lshl_add_u32 v{V_T2}, v{V_T3}, 3, v{V_T2}')
    for t in range(4):
        e(f'v_xor_b32 v{VA+t}, {64*t}, v{V_T2}')
        e(f'v_add_u32 v{VA+t}, {reg_w(0)}, v{VA+t}')
    e(f'v_and_b32 v{V_T1}, 31, v{L}')
    e(f'v_bfe_u32 v{V_T2}, v{L}, 1, 3')
    e(f'v_xor_b32 v{V_T2}, v{V_T2}, v{V_T0}')
    e(f'v_lshlrev_b32 v{V_T2}, 4, v{V_T2}')
    e(f'v_lshl_add_u32 v{V_T2}, v{V_T1}, 7, v{V_T2}')
    if xl is not None:
        e(f's_add_u32 s{S_T0}, s{xl}, {reg_x(0)}')
    for s4 in range(4):
        e(f'v_xor_b32 v{VB+s4}, {32*s4}, v{V_T2}')
        e(f'v_add_u32 v{VB+s4}, s{S_T0}, v{VB+s4}' if xl is not None else f'v_add_u32 v{VB+s4}, {reg_x(0)}, v{VB+s4}')

def a_step(s, VA):
    r = []
    for i in range(8):
        d = reg_w(s + 1) - reg_w(s) if i < 4 else reg_x(s + 1) - reg_x(s)
        r.append(f'v_add_u32 v{VA+i}, {d}, v{VA+i}' if d > 0 else f'v_subrev_u32 v{VA+i}, {-d}, v{VA+i}')
    return r

SCALE = hex(struct.unpack("<I", struct.pack("<f", math.log2(math.e) / math.sqrt(128.0)))[0])
def conv(i, src, dst):
    a = src + 2 * i
    return [f'v_mul_f32 v{a}, s{S_C}, v{a}', f'v_mul_f32 v{a+1}, s{S_C}, v{a+1}', f'v_cvt_pk_bf16_f32 v{dst+i}, v{a}, v{a+1}']

def phase_a(e, o):
    L = V_LANE
    VA, VB = V_Q, V_Q + 4
    AF = [V_SA, V_SB]; BF = [V_P, V_TMP]; ACC = [128, 192]
    e(f'v_lshrrev_b32 v{V_T0}, 3, v{L}')
    e(f'v_mul_u32_u24 v{V_T0}, 1280, v{V_T0}')
    e(f'v_lshrrev_b32 v{V_T1}, 4, v{L}')
    e(f'v_and_b32 v{V_T2}, 7, v{L}')
    e(f'v_xor_b32 v{V_T1}, v{V_T1}, v{V_T2}')
    for i in range(4):
        e(f'v_xor_b32 v{V_T2}, {4*(i&1)}, v{V_T1}')
        e(f'v_lshl_add_u32 v{V_DMA+i}, v{V_T2}, 4, v{V_T0}')
        if i: e(f'v_add_u32 v{V_DMA+i}, {(10240-1024)*i}, v{V_DMA+i}')
    e(f's_mul_i32 s{S_XB}, s{S_BL}, 3')
    e(f's_add_u32 s{S_XB}, s{S_XB}, s{S_WAVE}')
    e(f's_mul_i32 s{S_OB}, s{S_BR}, 24')
    e(f's_add_u32 s{S_OB}, s{S_OB}, s{S_XB}')
    e(f's_mul_i32 s{S_XB}, s{S_XB}, 40960')
    def xload(s, it):
        r = []
        if it == 0:
            r.append(f's_lshl_b32 s{S_T0}, s{S_KX}, 7')
            r.append(f's_add_u32 s{S_T0}, s{S_T0}, s{S_XB}')
        r.append(f's_add_u32 m0, s{S_XL}, {reg_x(s) + 4096*it}')
        r.append(f's_add_u32 s{S_T1}, s{S_T0}, {491520*it}')
        for i in range(4):
            r.append(f'buffer_load_dwordx4 v{V_DMA+i}, {sr(S_X,4)}, s{S_T1} offen offset:{1024*i} {o.w_flags} lds')
        if it == 1:
            r.append(f's_add_u32 s{S_KX}, s{S_KX}, 1')
            r.append(f's_cmp_eq_u32 s{S_KX}, 10')
            r.append(f's_cselect_b32 s{S_KX}, 0, s{S_KX}')
        return r
    VWQ = V_Q + 8
    e(f'v_lshrrev_b32 v{V_T0}, 4, v{L}')
    e(f'v_and_b32 v{V_T1}, 15, v{L}')
    e(f'v_lshlrev_b32 v{V_T3}, 2, v{V_T0}')
    e(f'v_xor_b32 v{V_T3}, v{V_T3}, v{V_T1}')
    e(f'v_lshlrev_b32 v{V_T2}, 13, v{V_T0}')
    e(f'v_lshl_add_u32 v{VWQ}, v{V_T3}, 4, v{V_T2}')
    for i in range(1, 4): e(f'v_add_u32 v{VWQ+i}, {(32768-1024)*i}, v{VWQ}')
    e(f's_mul_i32 s{S_KVB}, s{S_WAVE}, {5*32768}')
    e(f's_lshl_b32 s{S_T0}, s{S_H}, 8')
    e(f's_add_u32 s{S_KVB}, s{S_KVB}, s{S_T0}')
    e(f's_mul_i32 s{S_FL}, s{S_WAVE}, {5*1024}')
    def wqload(s):
        r = [f's_lshl_b32 s{S_T2}, s{S_KX}, 19', f's_add_u32 s{S_T2}, s{S_T2}, s{S_KVB}']
        for t in range(6):
            if t % 4 == 0:
                r.append(f's_add_u32 m0, s{S_FL}, {reg_w(s) + 1024*t}')
                r.append(f's_add_u32 s{S_T1}, s{S_T2}, {32768*t}')
            r.append(f'buffer_load_dwordx4 v{VWQ+(t&3)}, {sr(S_WQ,4)}, s{S_T1} offen offset:{1024*(t&3)} {o.w_flags} lds')
        return r
    srds(e, o)
    e.many(wqload(0)); e.many(xload(0, 0)); e.many(xload(0, 1))
    lazy(e, o, 2)
    no_task_wo(e)
    e(f's_lshl_b32 s{S_OB}, s{S_OB}, 5')
    e(f's_add_u32 s{S_OB}, s{S_OB}, s{S_H}')
    e(f's_lshl_b32 s{S_OB}, s{S_OB}, 13')
    a_addr(e, VA, VB, S_XL)
    e(f'v_and_b32 v{V_T2}, 15, v{L}')
    e(f'v_xor_b32 v{V_T2}, v{V_T2}, v{V_T0}')
    e(f'v_lshlrev_b32 v{V_T2}, 4, v{V_T2}')
    e(f'v_lshl_add_u32 v{V_T2}, v{V_T1}, 8, v{V_T2}')
    for s in range(8):
        e(f'v_xor_b32 v{V_KA+s}, {32*s}, v{V_T2}')
        e(f'v_add_u32 v{V_KA+s}, {slot_addr("K0")}, v{V_KA+s}')
    e(f'v_bfe_u32 v{V_T1}, v{L}, 2, 2')
    e(f'v_lshl_add_u32 v{V_T2}, v{V_T0}, 2, v{V_T1}')
    e(f'v_lshlrev_b32 v{V_T2}, 8, v{V_T2}')
    e(f'v_lshl_add_u32 v{V_T2}, v{V_T1}, 6, v{V_T2}')
    e(f'v_bfe_u32 v{V_T3}, v{L}, 4, 1')
    e(f'v_lshl_add_u32 v{V_T2}, v{V_T3}, 5, v{V_T2}')
    e(f'v_and_b32 v{V_T3}, 3, v{L}')
    e(f'v_lshl_add_u32 v{V_T2}, v{V_T3}, 3, v{V_T2}')
    e(f'v_add_u32 v{V_T2}, {RING}, v{V_T2}')
    for t in range(4): e(f'v_xor_b32 v{V_VA+t}, {64*t}, v{V_T2}')
    e(f'v_lshlrev_b32 v{V_OST}, 4, v{L}')
    e(f'v_add_u32 v{V_OST+3}, s{S_XL}, v{V_OST}')
    wo_lane_addr(e, V_WA)
    e(f'v_add_u32 v{V_WA}, s{S_XL}, v{V_WA}')
    e(f'v_xor_b32 v{V_WA+1}, 64, v{V_WA}')
    e(f's_mul_i32 s{S_WQB}, s{S_WAVE}, {1024*1280}')
    e(f's_add_u32 s{S_WQB}, s{S_WQB}, s{S_WOB}')
    e(f's_mov_b32 s{S_WC}, s{S_RHO}')
    e(f's_add_u32 s{S_WN}, s{S_WAVE}, 4')
    e(f's_mov_b32 s{S_EV}, 0')
    for i in range(64): e(f'v_accvgpr_write_b32 a{i}, 0')
    for i in range(16): e(f'v_mov_b32 v{V_NEGM+i}, 0')
    for i in range(4): e(f'v_mov_b32 v{V_L+i}, 0')
    e(f's_mov_b32 s{S_C}, {SCALE}')
    e(f's_mov_b32 s{S_THR}, 0xff800000')
    e(f's_mov_b32 s{S_FLOOR}, 0xff800000')
    e(f's_mov_b32 s{S_TICK}, 0')
    e(f's_mov_b32 s{S_KOFF}, {7*SLOT}')
    e(f's_mov_b32 s{S_VOFF}, 0')
    nst = 0
    lazy(e, o, 5)
    e.many(wqload(1)); e.many(xload(1, 0)); e.many(xload(1, 1))
    lazy(e, o, 6)
    def reads(s4, buf):
        r = [f'ds_read_b128 {vr(BF[buf]+4*it,4)}, v{VB+s4} offset:{4096*it}' for it in range(2)]
        for t in range(4):
            for u in range(2):
                r.append(f'ds_read_b64_tr_b16 {vr(AF[buf]+4*t+2*u,2)}, v{VA+t} offset:{(16*s4+4*u)*256}')
        return r
    def mf(buf, first):
        r = []
        for t in range(4):
            for it in range(2):
                if it == 1 and t >= 2: continue
                d = vr(ACC[it] + 16 * t, 16)
                r.append(mfma(d, vr(AF[buf] + 4 * t, 4), vr(BF[buf] + 4 * it, 4), '0' if first else d))
        return r
    e(f's_waitcnt vmcnt({14 + nst})')
    lazy(e, o, 7)
    e('s_barrier')
    lazy(e, o, 8)
    e.many(reads(0, 0))
    for s in range(10):
        for s4 in range(4):
            step = 4 * s + s4; buf = step & 1
            if step in (8, 16, 24, 32, 39): lazy(e, o, 9 + (8, 16, 24, 32, 39).index(step))
            if o.stamps and step in (8, 32): e(f's_memtime s[{LAZY[3 if step == 8 else 4]}:{LAZY[3 if step == 8 else 4]+1}]')
            m = mf(buf, step == 0)
            late = []
            e('s_waitcnt lgkmcnt(0)')
            if s4 == 3:
                if s < 9:
                    e(f's_waitcnt vmcnt({(14 if s + 2 <= 9 else 0) + (nst if s < 2 else 0)})')
                e('s_barrier')
                if s + 3 <= 9: late = wqload(s + 3)
            if s4 == 0 and s + 2 <= 9: late = (wqload(2) if s == 0 else []) + xload(s + 2, 0)
            if s4 == 1 and s + 2 <= 9: late = xload(s + 2, 1)
            if s4 == 2 and s < 9: late = a_step(s, VA)
            front = reads((s4 + 1) & 3, buf ^ 1) if step < 39 else []
            gaps(e, m, front, late, per=o.aper, late_from=(3 if o.aper == 3 and s4 == 2 else 2 if o.aper >= 4 else 1))
    wo_voffs(e, V_DMA)
    e('s_nop 4')
    for i in range(16): e.many(conv(i, ACC[0], V_Q))
    e.many(k_reads(0))
    for i in range(16, 32): e.many(conv(i, ACC[0], V_Q))

def k_reads(half):
    return [f'ds_read_b128 {vr(V_KF+4*s,4)}, v{V_KA+s} offset:{8192*half}' for s in range(8)]
def v_reads(half):
    r = []
    for jj in range(2):
        for t in range(4):
            for u in range(2):
                r.append(f'ds_read_b64_tr_b16 {vr(V_VF+16*jj+4*t+2*u,2)}, v{V_VA+t} offset:{(32*half+16*jj+8*u)*256}')
    return r
def qk(S):
    return [mfma(vr(S, 16), vr(V_KF + 4 * s, 4), vr(V_Q + 4 * s, 4), vr(V_NEGM, 16) if s == 0 else vr(S, 16)) for s in range(8)]
def pv():
    return [mfma(ar(16 * t, 16), vr(V_VF + 16 * jj + 4 * t, 4), vr(V_P + 4 * jj, 4), ar(16 * t, 16)) for jj in range(2) for t in range(4)]
def maxes(S):
    r = [f'v_max3_f32 v{V_MX}, v{S}, v{S+1}, v{S+2}', f'v_max3_f32 v{V_D}, v{S+3}, v{S+4}, v{S+5}']
    r += [f'v_max3_f32 v{V_MX}, v{V_MX}, v{S+6}, v{S+7}', f'v_max3_f32 v{V_D}, v{V_D}, v{S+8}, v{S+9}']
    r += [f'v_max3_f32 v{V_MX}, v{V_MX}, v{S+10}, v{S+11}', f'v_max3_f32 v{V_D}, v{V_D}, v{S+12}, v{S+13}']
    r += [f'v_max3_f32 v{V_MX}, v{V_MX}, v{S+14}, v{S+15}', f'v_max_f32 v{V_MX}, v{V_MX}, v{V_D}']
    r += [f'v_cmp_lt_f32 vcc, s{S_THR}, v{V_MX}']
    return r

def half_tick(e, Snew, Sold, vhalf, khalf, extra_v=(), extra_k=()):
    ex = lambda i: f'v_exp_f32 v{Sold+i}, v{Sold+i}'
    cv = lambda i: f'v_cvt_pk_bf16_f32 v{V_P+i}, v{Sold+2*i}, v{Sold+2*i+1}'
    ad = lambda i: f'v_add_f32 v{V_L+(i&3)}, v{V_L+(i&3)}, v{Sold+i}'
    m = qk(Snew) + pv()
    m[8] = ['s_waitcnt lgkmcnt(0)', m[8]]
    fill = v_reads(vhalf) + [ex(i) for i in range(8)] + list(extra_v) + [cv(i) for i in range(4)] + [ex(i) for i in range(8, 12)]
    fill += [('M', 8), ('A', 8)] + (k_reads(khalf) if khalf is not None else []) + [ex(i) for i in range(12, 16)] + [ad(0)]
    fill += [cv(i) for i in range(4, 8)] + [ad(1), ad(2)]
    fill += [('M', 12)] + [ad(i) for i in range(3, 16)]
    fill += list(extra_k) + maxes(Snew)
    e('s_waitcnt lgkmcnt(0)')
    interleave(e, m, fill)

def last_half(e, Sold):
    ex = lambda i: f'v_exp_f32 v{Sold+i}, v{Sold+i}'
    cv = lambda i: f'v_cvt_pk_bf16_f32 v{V_P+i}, v{Sold+2*i}, v{Sold+2*i+1}'
    ad = lambda i: f'v_add_f32 v{V_L+(i&3)}, v{V_L+(i&3)}, v{Sold+i}'
    e.many(v_reads(1))
    e.many([ex(i) for i in range(8)] + [cv(i) for i in range(4)] + [ex(8), ex(9)])
    e('s_waitcnt lgkmcnt(0)')
    fill = [ex(i) for i in range(10, 16)] + [ad(0)] + [cv(i) for i in range(4, 8)] + [ad(1), ad(2), ('M', 4)] + [ad(i) for i in range(3, 16)]
    interleave(e, pv(), fill)

def rare(e, S, back):
    e('s_nop 7')
    e(f'v_mov_b32 v{V_T0}, v{V_MX}')
    e('s_nop 1')
    e(f'v_permlane32_swap_b32 v{V_T0}, v{V_MX}')
    e('s_nop 1')
    e(f'v_max_f32 v{V_D}, v{V_T0}, v{V_MX}')
    e(f'v_max_f32 v{V_D}, s{S_FLOOR}, v{V_D}')
    for i in range(16): e(f'v_sub_f32 v{S+i}, v{S+i}, v{V_D}')
    for i in range(16): e(f'v_sub_f32 v{V_NEGM+i}, v{V_NEGM+i}, v{V_D}')
    e(f's_cmp_lg_u32 s{S_FLOOR}, 0')
    e(f's_mov_b32 s{S_THR}, 0x41000000')
    e(f's_mov_b32 s{S_FLOOR}, 0')
    e(f's_cbranch_scc1 {back}')
    e(f'v_sub_f32 v{V_T0}, 0, v{V_D}')
    e(f'v_exp_f32 v{V_T0}, v{V_T0}')
    e('s_nop 0')
    for i in range(4): e(f'v_mul_f32 v{V_L+i}, v{V_L+i}, v{V_T0}')
    for i in range(0, 64, 4):
        for j in range(4): e(f'v_accvgpr_read_b32 v{V_TMP+j}, a{i+j}')
        for j in range(4): e(f'v_mul_f32 v{V_TMP+j}, v{V_TMP+j}, v{V_T0}')
        for j in range(4): e(f'v_accvgpr_write_b32 a{i+j}, v{V_TMP+j}')
    e('s_nop 1')
    e(f's_branch {back}')

def epilogue(e, o):
    e(f'v_add_f32 v{V_L}, v{V_L}, v{V_L+1}')
    e(f'v_add_f32 v{V_L+2}, v{V_L+2}, v{V_L+3}')
    e(f'v_add_f32 v{V_L}, v{V_L}, v{V_L+2}')
    e(f'v_mov_b32 v{V_T0}, v{V_L}')
    e('s_nop 1')
    e(f'v_permlane32_swap_b32 v{V_T0}, v{V_L}')
    e('s_nop 1')
    e(f'v_add_f32 v{V_L}, v{V_L}, v{V_T0}')
    e(f'v_rcp_f32 v{V_T0}, v{V_L}')
    e('s_nop 4')
    for f in range(8):
        t = V_VF + 8 * (f & 3)
        for j in range(8): e(f'v_accvgpr_read_b32 v{t+j}, a{8*f+j}')
        for j in range(8): e(f'v_mul_f32 v{t+j}, v{t+j}, v{V_T0}')
        d = V_TMP + 4 * (f & 1)
        for j in range(4): e(f'v_cvt_pk_bf16_f32 v{d+j}, v{t+2*j}, v{t+2*j+1}')
        if f == 4: e(f's_add_u32 s{S_OB}, s{S_OB}, 4096')
        e(f'buffer_store_dwordx4 {vr(d,4)}, v{V_OST}, {sr(S_WS,4)}, s{S_OB} offen offset:{1024*(f&3)} {o.ost_flags}')

def w_snippets(e, o, ret):
    e('s_waitcnt vmcnt(0)')
    def tree(lo, n):
        if n == 1:
            if lo == 0:
                for f in range(4): e(f'ds_read_b128 {vr(224+4*f,4)}, v{V_OST+3} offset:{1024*f}')
            else:
                e.many(wo_reads(lambda off, nn: hold(lo - 1, off, nn), V_WA, V_WA + 1, 0))
            e('s_branch L_sn_done')
            return
        h = (n + 1) // 2
        e(f's_cmp_ge_u32 s{S_EV}, {lo+h}')
        e(f's_cbranch_scc1 L_sn_{lo+h}')
        tree(lo, h)
        e.lab(f'L_sn_{lo+h}')
        tree(lo + h, n - h)
    tree(0, 9)
    e.lab('L_sn_done')
    e(f's_add_u32 s{S_EV}, s{S_EV}, 1')
    e(f's_cmp_eq_u32 s{S_EV}, 9')
    e(f's_cselect_b32 s{S_WN}, 64, 3')
    e('s_waitcnt lgkmcnt(0)')
    e.many(wo_dma(o, 0, f's{S_XL}', 0, f's{S_WQB}', V_DMA, dyn=True))
    e(f's_branch {ret}')

def phase_b(e, o):
    lazy(e, o, 14)
    lazy_dump(e, o, range(15))
    stamp(e, o, 1)
    e('s_waitcnt lgkmcnt(0)')
    e.many(qk(V_SA))
    e.many(k_reads(1))
    for s in range(8): e(f'v_add_u32 v{V_KA+s}, {SLOT}, v{V_KA+s}')
    e('s_nop 3')
    e.many(maxes(V_SA))
    e('s_branch L_rare_a')
    def adv(soff, tmp, base, n):
        r = [f's_add_u32 s{tmp}, s{soff}, {2*SLOT}', f's_and_b32 s{tmp}, s{tmp}, {8*SLOT-1}',
             f's_sub_u32 s{S_T3}, s{tmp}, s{soff}', f's_mov_b32 s{soff}, s{tmp}']
        r += [f'v_add_u32 v{base+i}, s{S_T3}, v{base+i}' for i in range(n)]
        return r
    e.lab('L_tick')
    e('s_waitcnt lgkmcnt(0)')
    e('s_barrier')
    e(f's_cmp_eq_u32 s{S_TICK}, 31')
    e('s_cbranch_scc1 L_last')
    half_tick(e, V_SB, V_SA, 0, 0)
    e('s_cbranch_vccnz L_rare_b')
    e.lab('L_back_b')
    e(f's_cmp_eq_u32 s{S_TICK}, 15')
    e('s_cbranch_scc1 L_switch')
    e.lab('L_back_sw')
    half_tick(e, V_SA, V_SB, 1, 1, extra_v=adv(S_VOFF, S_T0, V_VA, 4), extra_k=adv(S_KOFF, S_T1, V_KA, 8))
    e(f's_add_u32 s{S_TICK}, s{S_TICK}, 1')
    e(f's_sub_u32 s{S_WN}, s{S_WN}, 1')
    e(f's_cmp_eq_u32 s{S_WN}, 0')
    e('s_cbranch_scc1 L_snip')
    e.lab('L_snip_ret')
    e(f's_cmp_eq_u32 s{S_TICK}, 16')
    e('s_cbranch_scc1 L_epi1')
    e('s_cbranch_vccz L_tick')
    e.lab('L_rare_a')
    rare(e, V_SA, 'L_tick')
    e.lab('L_snip')
    w_snippets(e, o, 'L_snip_ret')
    e.lab('L_rare_b')
    rare(e, V_SB, 'L_back_b')
    e.lab('L_switch')
    for i in range(16): e(f'v_mov_b32 v{V_Q+16+i}, v{224+i}')
    for i in range(16): e.many(conv(i, V_Q2, V_Q))
    for i in range(16): e(f'v_mov_b32 v{V_NEGM+i}, 0')
    e('s_nop 1')
    e('s_branch L_back_sw')
    e.lab('L_epi1')
    epilogue(e, o)
    e(f's_add_u32 s{S_OB}, s{S_OB}, {RND - 4096}')
    for i in range(64): e(f'v_accvgpr_write_b32 a{i}, 0')
    for i in range(4): e(f'v_mov_b32 v{V_L+i}, 0')
    e(f's_mov_b32 s{S_FLOOR}, 0xff800000')
    stamp(e, o, 2)
    e('s_branch L_rare_a')
    e.lab('L_rare_l')
    rare(e, V_SB, 'L_back_l')
    e.lab('L_last')
    half_tick(e, V_SB, V_SA, 0, None)
    e('s_cbranch_vccnz L_rare_l')
    e.lab('L_back_l')
    last_half(e, V_SB)
    epilogue(e, o)

def tail_setup(e, o):
    e(f's_mul_i32 s{S_O1}, s{S_BR}, 24')
    e(f's_add_u32 s{S_O1}, s{S_O1}, s{S_QT}')
    e(f's_lshl_b32 s{S_O1}, s{S_O1}, 2')
    e(f's_add_u32 s{S_O1}, s{S_O1}, s{S_WAVE}')
    e(f's_lshl_b32 s{S_O1}, s{S_O1}, 16')

POOL = [16, 20, 24, 32, 36, 40, 44, 80, 84] + list(range(96, 192, 4)) + [88, 92]
ORDER1 = [0, 1, 2, 8, 3, 9, 4, 10, 5, 11, 6, 12, 7]
ORDER2 = [8, 0, 9, 1, 10, 2, 11, 3, 12, 4, 13, 14, 15, 5, 6, 7]

class Tail:
    def __init__(self, e, o):
        self.e, self.o = e, o
        self.vm = Vm(e)
        self.free = list(POOL)
        self.where = {}
        self.todo = []
    def oload(self, rnd, c):
        e = self.e
        regs = [self.free.pop(0) for _ in range(4)]
        self.where[(rnd, c)] = regs
        r = [f's_add_u32 s{S_T1}, s{S_RHO}, {c}', f's_and_b32 s{S_T1}, s{S_T1}, 15', f's_lshl_b32 s{S_T1}, s{S_T1}, 12',
             f's_add_u32 s{S_T1}, s{S_T1}, s{S_O1}']
        if rnd and not self.o.t_o1: r.append(f's_add_u32 s{S_T1}, s{S_T1}, {RND}')
        if rnd and self.o.t_noo: return []
        for s4 in range(4):
            r.append(f'buffer_load_dwordx4 {vr(regs[s4],4)}, v{V_OST}, {sr(S_WS,4)}, s{S_T1} offen offset:{1024*s4} {self.o.old_flags}')
        self.vm.add(f'o{rnd}_{c}', 4)
        return r
    def pump(self):
        r = []
        while self.todo and len(self.free) >= 4 and self.vm.out() + 4 <= 63:
            r += self.oload(*self.todo.pop(0))
        return r

def tail_pre(e, o):
    T = Tail(e, o)
    tail_setup(e, o)
    T.todo = [(0, c) for c in ORDER1]
    return T

def tail(e, o, T):
    L = V_LANE
    vm = T.vm
    RA = 6
    TEMP = 48
    e(f's_cmp_eq_u32 s{S_NT}, 15')
    e('s_cbranch_scc1 L_exit')
    e(f's_mul_i32 s{S_WQB}, s{S_WAVE}, {1024*1280}')
    e(f's_add_u32 s{S_WQB}, s{S_WQB}, s{S_WOB}')
    vm.room(8)
    e.many(wo_dma(o, 12, f's{S_XL}', 4 * 32768, f's{S_WQB}', V_DMA))
    vm.add('late', 8)
    e.many(T.pump())
    for b in range(3):
        e(f'v_add_u32 v{RA+2*b}, {65536*b}, v{V_WA}')
        e(f'v_add_u32 v{RA+2*b+1}, {65536*b}, v{V_WA+1}')
    e(f's_lshl_b32 s{S_T0}, s{S_BR}, 2')
    e(f's_add_u32 s{S_T0}, s{S_T0}, s{S_QB}')
    e(f's_lshl_b32 s{S_T0}, s{S_T0}, 2')
    e(f's_add_u32 s{S_T0}, s{S_T0}, s{S_WAVE}')
    e(f's_lshl_b32 s{S_T0}, s{S_T0}, 10')
    e(f's_add_u32 s{S_T0}, s{S_T0}, {WS_FLAGS}')
    e(f'v_and_b32 v31, 7, v{L}')
    e(f'v_lshlrev_b32 v31, 7, v31')
    e(f'v_add_u32 v31, s{S_T0}, v31')
    e('v_mov_b32 v0, 0')
    piece = {8: 0, 9: 1, 10: 2, 11: 3, 12: 4, 13: 0, 14: 1, 15: 2}
    tmp_of = {}
    def rd(c, dstf):
        j = piece[c]
        return wo_reads(dstf, RA + 2 * (j >> 1), RA + 2 * (j >> 1) + 1, 32768 * (j & 1))
    def afrag(c):
        if c < 8: return lambda off, n: hold(c, off, n)
        if c >= 13: return lambda off, n: hold(c - 13, off, n)
        return lambda off, n: vr(TEMP + off, n)
    first = {0: True, 1: True}
    def mms(c, rnds):
        m = []
        for s4 in range(4):
            for rnd in rnds:
                for nt in range(2):
                    d = ar(32 * rnd + 16 * nt, 16)
                    m.append(mfma(d, afrag(c)(8 * s4 + 4 * nt, 4), vr(T.where[(rnd, c)][s4], 4), '0' if (first[rnd] and s4 == 0) else d))
        for rnd in rnds: first[rnd] = False
        return m
    def wdma(c):
        if o.t_now: return []
        vm.add(f'w{c}', 8)
        return wo_dma(o, c, f's{S_XL}', 32768 * piece[c], f's{S_WQB}', V_DMA)
    ld_fl = f'buffer_load_dword v{V_T2}, v31, {sr(S_WS,4)}, 0 offen sc1'
    WA, RDA, VOUT = 48, 56, 60
    S_OO = S_KOFF
    fin = [f'v_and_b32 v{V_T0}, 31, v{L}', f'v_lshrrev_b32 v{V_T1}, 5, v{L}', f'v_and_b32 v{V_T3}, 15, v{L}',
           f'v_xor_b32 v{V_T1}, v{V_T1}, v{V_T3}', f'v_lshlrev_b32 v{V_T1}, 4, v{V_T1}',
           f'v_lshl_add_u32 v{V_T0}, v{V_T0}, 8, v{V_T1}', f's_add_u32 s{S_T3}, s{S_XL}, {3*32768}',
           f'v_add_u32 v{V_T0}, s{S_T3}, v{V_T0}']
    fin += [f'v_xor_b32 v{WA+k}, {32*k}, v{V_T0}' for k in range(8)]
    fin2 = [f's_lshr_b32 s{S_VOFF}, s{S_WAVE}, 1', f's_and_b32 s{S_THR}, s{S_WAVE}, 1',
            f's_lshl_b32 s{S_T2}, s{S_VOFF}, 15', f's_lshl_b32 s{S_T3}, s{S_THR}, 12',
            f's_add_u32 s{S_T2}, s{S_T2}, s{S_T3}', f's_add_u32 s{S_T2}, s{S_T2}, {3*32768}',
            f'v_lshrrev_b32 v{V_T1}, 3, v{L}', f'v_and_b32 v{V_T3}, 7, v{L}', f'v_lshlrev_b32 v{V_T0}, 1, v{V_T3}',
            f'v_xor_b32 v{V_T0}, v{V_T0}, v{V_T1}', f'v_lshlrev_b32 v{V_T0}, 4, v{V_T0}',
            f'v_lshl_add_u32 v{V_T0}, v{V_T1}, 8, v{V_T0}', f'v_add_u32 v{RDA}, s{S_T2}, v{V_T0}',
            f'v_xor_b32 v{RDA+1}, 16, v{RDA}', f'v_xor_b32 v{RDA+2}, {2048+128}, v{RDA}', f'v_xor_b32 v{RDA+3}, 16, v{RDA+2}',
            f's_lshl_b32 s{S_OO}, s{S_QT}, 5', f's_mul_i32 s{S_VOFF}, s{S_VOFF}, 384', f's_add_u32 s{S_OO}, s{S_OO}, s{S_VOFF}',
            f's_lshl_b32 s{S_THR}, s{S_THR}, 4', f's_add_u32 s{S_OO}, s{S_OO}, s{S_THR}', f's_mul_i32 s{S_OO}, s{S_OO}, 2560',
            f's_mul_i32 s{S_T3}, s{S_BR}, 1280', f's_add_u32 s{S_OO}, s{S_OO}, s{S_T3}', f's_add_u32 s{S_OO}, s{S_OO}, s{S_WOB}',
            f'v_mul_u32_u24 v{V_T1}, 2560, v{V_T1}', f'v_lshl_add_u32 v{VOUT}, v{V_T3}, 4, v{V_T1}']
    def pwrite(rnd):
        return [f'ds_write_b128 v{WA+4*nt+g}, {ar(32*rnd+16*nt+4*g,4)} offset:{rnd*32768}' for nt in range(2) for g in range(4)]
    seq = [(0, c) for c in ORDER1] + [(1, c) for c in ORDER2]
    todo2 = []
    for c in ORDER2: todo2 += ([(0, c)] if c >= 13 else []) + [(1, c)]
    for i, (rnd, c) in enumerate(seq):
        rnds = [0, 1] if c >= 13 else [rnd]
        nxt = seq[i + 1][1] if i + 1 < len(seq) else None
        if i == o.chk - 2:
            vm.room(2); e(f'global_load_dword v30, v0, {sr(S_DBG,2)} sc1'); e(ld_fl); vm.add('pl', 2)
        if i == o.chk:
            vm.stamp(o, 5)
            vm.wait('pl')
            e('v_add_u32 v30, 3, v30')
            poll(e, o, 'r2', ld_fl, [f'v_cmp_eq_u32 vcc, v30, v{V_T2}'])
            assert not T.todo
            T.todo = todo2
            e.many(T.pump())
            vm.stamp(o, 6)
        if c >= 8: e('s_waitcnt lgkmcnt(0)')
        for r_ in rnds: vm.wait(f'o{r_}_{c}')
        front = []; late = []
        if nxt is not None and nxt >= 8:
            assert not (8 <= c < 13 and nxt < 13)
            if rnd == 0 and nxt == 8 and i < 5: e('s_barrier')
            if nxt == 12 and vm.has('late'): vm.wait('late')
            if nxt >= 13: vm.wait(f'w{nxt}')
            front = rd(nxt, afrag(nxt))
        if rnd == 1 and c in (8, 9, 10):
            vm.room(8)
            late += wdma(c + 5)
        if rnd == 1 and c == 15: late += fin
        if rnd == 1 and c == 6: late += pwrite(0)
        if rnd == 1 and c == 5: late += fin2
        m = mms(c, rnds)
        late += T.pump()
        gaps(e, m, front, late, per=3, late_from=0 if not front else 2)
        for r_ in rnds: T.free += T.where[(r_, c)]
    assert not T.todo
    vm.stamp(o, 7)
    e('s_nop 7'); e('s_nop 3')
    e.many(pwrite(1))
    e('s_waitcnt lgkmcnt(0)')
    e('s_barrier')
    for i in range(2):
        for p in range(4):
            for hh in range(2):
                e(f'ds_read_b128 {vr(96+32*i+8*p+4*hh,4)}, v{RDA+2*i+hh} offset:{8192*p}')
    for i in range(2):
        b = 96 + 32 * i
        e(f's_waitcnt lgkmcnt({8*(1-i)})')
        for j in range(8):
            e(f'v_add_f32 v{b+j}, v{b+j}, v{b+8+j}')
            e(f'v_add_f32 v{b+16+j}, v{b+16+j}, v{b+24+j}')
        for j in range(8): e(f'v_add_f32 v{b+j}, v{b+j}, v{b+16+j}')
        for j in range(4): e(f'v_cvt_pk_bf16_f32 v{b+8+j}, v{b+2*j}, v{b+2*j+1}')
        if i: e(f's_add_u32 s{S_OO}, s{S_OO}, {8*2560}')
        e(f'buffer_store_dwordx4 {vr(b+8,4)}, v{VOUT}, {sr(S_OUT,4)}, s{S_OO} offen')
    if o.stamps:
        e('s_waitcnt vmcnt(0)')
        stamp(e, o, 14)

KD = '''.amdhsa_kernel {n}
  .amdhsa_next_free_vgpr 512
  .amdhsa_next_free_sgpr 102
  .amdhsa_accum_offset 256
  .amdhsa_group_segment_fixed_size 0
  .amdhsa_kernarg_size 104
  .amdhsa_user_sgpr_count 2
  .amdhsa_user_sgpr_kernarg_segment_ptr 1
  .amdhsa_system_sgpr_workgroup_id_x 1
.end_amdhsa_kernel
'''

def gen(o):
    e = Em()
    k1 = NAME + '_kernel'
    e.raw('; @launch grid=(256,1,1) block=(256,1,1) lds=163840')
    e.raw('.amdgcn_target "amdgcn-amd-amdhsa--gfx950"')
    e.raw('.text')
    e.raw(f'.globl {k1}\n.p2align 8\n.type {k1},@function')
    e.lab(k1)
    prologue(e, o)
    e(f's_cmp_eq_u32 s{S_WAVE}, 3')
    e('s_cbranch_scc1 L_loader')
    phase_a(e, o)
    phase_b(e, o)
    T = tail_pre(e, o)
    pre = T.pump()
    npre = T.vm.out()
    e.many(pre)
    e(f's_waitcnt vmcnt({npre}) lgkmcnt(0)')
    e('s_barrier')
    if o.stamps:
        T.vm.stamp(o, 3)
    e('s_branch L_join')
    e.lab('L_loader')
    loader(e, o)
    tail_setup(e, o)
    e.many(pre)
    if o.stamps:
        stamp(e, o, 3)
    e.lab('L_join')
    tail(e, o, T)
    e.lab('L_exit')
    e('s_endpgm')
    e.raw('.section .rodata,"a"\n.p2align 6')
    e.raw(KD.format(n=k1))
    return e.text()

if __name__ == '__main__':
    o = Opt()
    out = sys.argv[1]
    for a in sys.argv[2:]:
        k, v = a.split('=', 1); v = v.replace('+', ' ')
        cur = getattr(o, k)
        setattr(o, k, (v == '1') if isinstance(cur, bool) else int(v) if isinstance(cur, int) else v)
    open(out, 'w').write(gen(o))
```

```python
import sys, math, struct
NAME = 'concat_heads__mha_block_cached__mha_block_cached__near_ridge'

class Opt:
    stamps = False
    kv_flags = 'nt'
    w_flags = ''
    wo_flags = ''
    ost_flags = 'sc1'
    old_flags = 'sc1'
    look = 7
    rot = 3
    tickst = 0
    no_w = False
    no_w3 = False
    t_now = False
    t_o1 = False
    t_noo = False
    c8late = True
    pf_kv = 0
    pf_wo = True
    pf_a = False
    pf_w = False
    pf_delay = 0
    pf_s0 = 2
    pf_mid = 0
    pf_flags = ''
    pf_tail = 0
    bal = 0
    bal_lag = 2
    bal_n = 1
    bal_sl = 0
    tagk = 10
    thr_end = 28
    k_first = False
    k_s0 = 0
    tlb = True
    aper = 4
    out_flags = ''
    tsched = 0
    fav = 0
    t15 = True
    nearly = 0
    npre = 3
    pk = True
    v1_late = True
    look_lo = 5
    look_k0 = 0
    look_k1 = 25
    krot = False
    early = True
    chk = 8
    bal_k1 = 30
    psleep = 4
    thr = 16
    blk = 0

WS_FLAGS = 12582912
WS_PROG = WS_FLAGS + 32768
WS_STAMP = 13631488
SLOT = 16384
STAGE = 40960
RND = 12 * 32 * 8192

S_X, S_K, S_V, S_WQ, S_WO, S_OUT, S_WS = 4, 8, 12, 16, 20, 24, 28
S_DBG = 32
S_WAVE, S_BR, S_H, S_BL = 34, 35, 36, 37
S_T0, S_T1, S_T2, S_T3 = 38, 39, 40, 41
S_KX, S_XB, S_XL, S_KVB, S_TICK = 42, 43, 44, 45, 46
S_KOFF, S_VOFF, S_THR, S_FLOOR, S_C, S_OB, S_WQB = 47, 48, 49, 50, 51, 52, 53
S_ST, S_STB, S_QT, S_NT = 54, 56, 57, 58
S_SAVE = 60
S_WN, S_FL = 62, 63
S_EV = 59
S_KARG = 64
S_WOB, S_O1, S_QB, S_CNT, S_RHO, S_WC, S_N, S_KR = 90, 91, 92, 93, 94, 95, 96, 97

V_LANE = 1
V_T0, V_T1, V_T2, V_T3 = 2, 3, 4, 5
V_L, V_MX, V_D = 6, 10, 11
V_DMA = 12
V_KA, V_VA, V_OST, V_WA = 16, 24, 28, 29
V_NEGM = 32
V_SA, V_SB, V_P, V_TMP = 48, 64, 80, 88
V_Q, V_KF, V_VF, V_Q2 = 96, 128, 160, 192

class Em:
    def __init__(self): self.L = []
    def __call__(self, s): self.L.append('    ' + s)
    def lab(self, s): self.L.append(s + ':')
    def raw(self, s): self.L.append(s)
    def many(self, l):
        for x in l: self(x)
    def text(self): return '\n'.join(self.L) + '\n'

def vr(b, n=1): return f'v{b}' if n == 1 else f'v[{b}:{b+n-1}]'
def ar(b, n=1): return f'a{b}' if n == 1 else f'a[{b}:{b+n-1}]'
def sr(b, n=1): return f's{b}' if n == 1 else f's[{b}:{b+n-1}]'
def mfma(d, a, b, c): return f'v_mfma_f32_32x32x16_bf16 {d}, {a}, {b}, {c}'
def hold(ci, off, n):
    return ar(64 + 32 * ci + off, n) if ci < 6 else vr(192 + 32 * (ci - 6) + off, n)

def cost(i):
    if i.startswith('v_exp') or i.startswith('v_rcp'): return 8
    if i.startswith('s_'): return 2
    return 4

def interleave(e, mf, fill):
    total = sum(cost(f) for f in fill if not isinstance(f, tuple))
    per = total / len(mf)
    fi = 0; acc = 0.0
    deadline = {}; items = []
    for f in fill:
        if isinstance(f, tuple):
            if f[0] == 'M': deadline[f[1]] = len(items)
            else: items.append(f)
        else: items.append(f)
    for k, m in enumerate(mf):
        need = deadline.get(k, 0)
        while fi < need:
            it = items[fi]; fi += 1
            if isinstance(it, tuple):
                assert it[1] < k, (it, k)
                continue
            e(it); acc += cost(it)
        if isinstance(m, (list, tuple)): e.many(m)
        else: e(m)
        target = per * (k + 1)
        while fi < len(items) and (acc < target - 1.0 or k == len(mf) - 1):
            it = items[fi]
            if isinstance(it, tuple):
                if it[1] > k: break
                fi += 1; continue
            e(it); acc += cost(it); fi += 1
    assert fi == len(items)

def gaps(e, mf, front, late=(), per=2, late_from=5):
    g = [[] for _ in mf]
    for i, f in enumerate(front): g[min(i // per, len(mf) - 1)].append(f)
    n = len(mf) - late_from
    for i, f in enumerate(late): g[late_from + (i * n) // len(late)].append(f)
    for m, x in zip(mf, g):
        e(m); e.many(x)

def stamp(e, o, idx, clk=False):
    if not o.stamps: return 0
    e(f's_memtime {sr(S_ST,2)}' if clk else f's_memrealtime {sr(S_ST,2)}')
    e('s_waitcnt lgkmcnt(0)')
    e(f'v_mov_b32 v{V_T0}, s{S_ST}')
    e(f'v_mov_b32 v{V_T1}, s{S_STB}')
    e('s_mov_b64 exec, 1')
    e(f'buffer_store_dword v{V_T0}, v{V_T1}, {sr(S_WS,4)}, 0 offen offset:{4*idx}')
    e('s_mov_b64 exec, -1')
    return 1

LAZY = {0: 98, 1: 100}
for _i in range(2, 15): LAZY[_i] = 64 + 2 * (_i - 2)
def lazy(e, o, i):
    if o.stamps: e(f's_memrealtime s[{LAZY[i]}:{LAZY[i]+1}]')
def lazy_dump(e, o, ids):
    if not o.stamps: return 0
    e('s_waitcnt lgkmcnt(0)')
    e(f'v_mov_b32 v{V_T1}, s{S_STB}')
    e('s_mov_b64 exec, 1')
    for i in ids:
        e(f'v_mov_b32 v{V_T0}, s{LAZY[i]}')
        e(f'buffer_store_dword v{V_T0}, v{V_T1}, {sr(S_WS,4)}, 0 offen offset:{16 if i == 0 else 4*(16+i)}')
        e('s_nop 1')
    e('s_mov_b64 exec, -1')
    return len(ids)

class Vm:
    def __init__(self, e): self.e = e; self.q = []
    def out(self): return sum(c for _, c in self.q)
    def has(self, name): return name in [n for n, _ in self.q]
    def wait(self, name):
        names = [n for n, _ in self.q]
        if name not in names: return
        i = names.index(name)
        rest = sum(c for _, c in self.q[i + 1:])
        assert rest <= 63
        self.e(f's_waitcnt vmcnt({rest})')
        self.q = self.q[i + 1:]
    def room(self, c):
        while self.out() + c > 61: self.wait(self.q[0][0])
    def add(self, name, c):
        self.q.append((name, c)); assert self.out() <= 63, self.q
    def stamp(self, o, idx, clk=False):
        if o.stamps:
            self.room(1); stamp(self.e, o, idx, clk); self.add(f'st{idx}', 1)

def prologue(e, o):
    if o.stamps: e('s_memrealtime s[98:99]')
    e('s_cmp_ge_u32 s2, 256')
    e('s_cbranch_scc1 L_exit')
    e(f's_load_dwordx16 {sr(S_KARG,16)}, s[0:1], 0')
    e(f's_load_dwordx8 {sr(S_KARG+16,8)}, s[0:1], 64')
    e(f's_load_dwordx2 {sr(S_KARG+24,2)}, s[0:1], 96')
    e(f'v_lshrrev_b32 v{V_T0}, 6, v0')
    e(f'v_and_b32 v{V_LANE}, 63, v0')
    e(f'v_readfirstlane_b32 s{S_WAVE}, v{V_T0}')
    e(f's_and_b32 s{S_T0}, s2, 7')
    e(f's_lshr_b32 s{S_T1}, s2, 3')
    e(f's_lshr_b32 s{S_BR}, s{S_T0}, 2')
    e(f's_and_b32 s{S_T2}, s{S_T0}, 3')
    e(f's_lshl_b32 s{S_H}, s{S_T2}, 3')
    e(f's_and_b32 s{S_T3}, s{S_T1}, 7')
    e(f's_add_u32 s{S_H}, s{S_H}, s{S_T3}')
    e(f's_lshr_b32 s{S_BL}, s{S_T1}, 3')
    e(f's_mul_i32 s{S_KX}, s{S_BL}, 5')
    e(f's_add_u32 s{S_KX}, s{S_KX}, 1')
    e(f's_lshr_b32 s{S_KX}, s{S_KX}, 1')
    e(f's_add_u32 s{S_KX}, s{S_KX}, s{S_T3}')
    e(f's_cmp_ge_u32 s{S_KX}, 10')
    e(f's_cselect_b32 s{S_T3}, 10, 0')
    e(f's_sub_u32 s{S_KX}, s{S_KX}, s{S_T3}')
    if o.blk == 0:
        e(f's_mul_i32 s{S_QT}, s{S_T1}, 13')
        e(f's_lshr_b32 s{S_QT}, s{S_QT}, 6')
        e(f's_mul_i32 s{S_T3}, s{S_QT}, 5')
        e(f's_sub_u32 s{S_NT}, s{S_T1}, s{S_T3}')
        e(f's_and_b32 s{S_T3}, s{S_T2}, 1')
        e(f's_mul_i32 s{S_T3}, s{S_T3}, 5')
        e(f's_add_u32 s{S_NT}, s{S_NT}, s{S_T3}')
        e(f's_lshr_b32 s{S_T3}, s{S_T2}, 1')
        e(f's_mul_i32 s{S_T3}, s{S_T3}, 6')
        e(f's_add_u32 s{S_QT}, s{S_QT}, s{S_T3}')
    elif o.blk == 1:
        e(f's_mul_i32 s{S_QT}, s{S_T1}, 26')
        e(f's_lshr_b32 s{S_QT}, s{S_QT}, 8')
        e(f's_mul_i32 s{S_T3}, s{S_QT}, 10')
        e(f's_sub_u32 s{S_NT}, s{S_T1}, s{S_T3}')
        e(f's_mul_i32 s{S_T3}, s{S_T2}, 3')
        e(f's_add_u32 s{S_QT}, s{S_QT}, s{S_T3}')
    else:
        e(f's_mul_i32 s{S_T3}, s{S_T2}, 30')
        e(f's_add_u32 s{S_T3}, s{S_T3}, s{S_T1}')
        e(f's_mul_i32 s{S_NT}, s{S_T3}, 171')
        e(f's_lshr_b32 s{S_NT}, s{S_NT}, 11')
        e(f's_mul_i32 s{S_QT}, s{S_NT}, 12')
        e(f's_sub_u32 s{S_QT}, s{S_T3}, s{S_QT}')
    e(f's_cmp_ge_u32 s{S_T1}, 30')
    e(f's_cselect_b32 s{S_NT}, 15, s{S_NT}')
    e(f's_cselect_b32 s{S_QT}, 0, s{S_QT}')
    e(f's_mul_i32 s{S_QB}, s{S_QT}, 11')
    e(f's_lshr_b32 s{S_QB}, s{S_QB}, 5')
    e(f's_lshl_b32 s{S_STB}, s2, 2')
    e(f's_add_u32 s{S_STB}, s{S_STB}, s{S_WAVE}')
    e(f's_lshl_b32 s{S_STB}, s{S_STB}, 8')
    e(f's_add_u32 s{S_STB}, s{S_STB}, {WS_STAMP}')
    e(f's_lshl_b32 s{S_XL}, s{S_WAVE}, 13')
    e(f's_lshl_b32 s{S_WOB}, s{S_NT}, 7')
    e(f's_cmp_ge_u32 s{S_NT}, 5')
    e(f's_cselect_b32 s{S_T0}, {5 if o.blk == 0 else 0}, 0')
    e(f's_sub_u32 s{S_RHO}, s{S_NT}, s{S_T0}')
    e(f's_mul_i32 s{S_RHO}, s{S_RHO}, {o.rot}')
    e(f's_and_b32 s{S_RHO}, s{S_RHO}, 15')
    for srd, size in ((S_X, 983040), (S_K, 1 << 26), (S_V, 1 << 26), (S_WQ, 5242880), (S_WO, 5242880), (S_OUT, 1966080), (S_WS, 16777216)):
        e(f's_mov_b32 s{srd+2}, {size}')
        e(f's_mov_b32 s{srd+3}, 0x20000')

def srds(e, o):
    e('s_waitcnt lgkmcnt(0)')
    e(f's_cmp_eq_u32 s{S_BR}, 0')
    for srd, i in ((S_WQ, 3), (S_X, 0), (S_K, 1), (S_V, 2), (S_WO, 4)):
        e(f's_cselect_b64 {sr(srd,2)}, {sr(S_KARG+2*i,2)}, {sr(S_KARG+10+2*i,2)}')
    e(f's_mov_b64 {sr(S_OUT,2)}, {sr(S_KARG+20,2)}')
    e(f's_mov_b64 {sr(S_WS,2)}, {sr(S_KARG+24,2)}')
    e(f's_mov_b64 {sr(S_DBG,2)}, {sr(S_KARG+22,2)}')
    for srd in (S_WQ, S_X, S_K, S_V, S_WO, S_OUT, S_WS):
        e(f's_and_b32 s{srd+1}, s{srd+1}, 0xffff')
    lazy(e, o, 1)

def no_task_wo(e):
    e(f's_cmp_eq_u32 s{S_NT}, 15')
    e(f's_cselect_b32 s{S_WO+2}, 0, s{S_WO+2}')

RING = 32768
PF_TICKS = [0, 1, 6, 10, 15, 19, 22, 24, 25, 26, 27]
def reg_w(s): return (32768, 73728, 114688)[(s + 2) % 3]
def reg_x(s): return (49152, 90112, 0)[(s + 2) % 3]

SEQ = ['K0']
for k in range(32): SEQ += [f'K{k+1}', f'V{k}']
SEQ += [f'T{i}' for i in range(8)]
POS = {n: i for i, n in enumerate(SEQ)}
def slot(name): return (6 + POS[name]) % 8
def slot_addr(name): return RING + slot(name) * SLOT

def wo_dma(o, c, ldsbase_s, ldsoff, wob, vw, dyn=False):
    r = []
    if o.no_w and dyn: return ['s_nop 0']
    if dyn:
        r += [f's_mul_i32 s{S_T0}, s{S_WC}, {64*1280}', f's_add_u32 s{S_WC}, s{S_WC}, 1', f's_and_b32 s{S_WC}, s{S_WC}, 15']
    else:
        r += [f's_add_u32 s{S_T0}, s{S_RHO}, {c}', f's_and_b32 s{S_T0}, s{S_T0}, 15', f's_mul_i32 s{S_T0}, s{S_T0}, {64*1280}']
    r.append(f's_add_u32 s{S_T0}, s{S_T0}, {wob}')
    for g_ in range(2):
        r.append(f's_add_u32 m0, {ldsbase_s}, {ldsoff + 4096*g_}' if ldsbase_s else f's_mov_b32 m0, {ldsoff + 4096*g_}')
        r.append(f's_add_u32 s{S_T1}, s{S_T0}, {32*g_*1280}')
        for i in range(4):
            r.append(f'buffer_load_dwordx4 v{vw+i}, {sr(S_WO,4)}, s{S_T1} offen offset:{1024*i} {o.wo_flags} lds')
    return r

def wo_voffs(e, dst):
    L = V_LANE
    e(f'v_lshrrev_b32 v{V_T0}, 3, v{L}')
    e(f'v_mul_u32_u24 v{V_T0}, 1280, v{V_T0}')
    e(f'v_bfe_u32 v{V_T1}, v{L}, 4, 1')
    e(f'v_lshlrev_b32 v{V_T1}, 2, v{V_T1}')
    e(f'v_and_b32 v{V_T2}, 7, v{L}')
    e(f'v_xor_b32 v{V_T1}, v{V_T1}, v{V_T2}')
    e(f'v_lshl_add_u32 v{dst}, v{V_T1}, 4, v{V_T0}')
    for i in range(1, 4): e(f'v_add_u32 v{dst+i}, {(10240-1024)*i}, v{dst}')

def wo_lane_addr(e, dst):
    L = V_LANE
    e(f'v_lshrrev_b32 v{V_T0}, 5, v{L}')
    e(f'v_bfe_u32 v{V_T1}, v{L}, 2, 2')
    e(f'v_lshl_add_u32 v{dst}, v{V_T0}, 2, v{V_T1}')
    e(f'v_lshlrev_b32 v{dst}, 7, v{dst}')
    e(f'v_bfe_u32 v{V_T3}, v{L}, 3, 1')
    e(f'v_lshl_add_u32 v{dst}, v{V_T3}, 6, v{dst}')
    e(f'v_bfe_u32 v{V_T3}, v{L}, 4, 1')
    e(f'v_lshl_add_u32 v{dst}, v{V_T3}, 5, v{dst}')
    e(f'v_and_b32 v{V_T3}, 3, v{L}')
    e(f'v_lshl_add_u32 v{dst}, v{V_T3}, 3, v{dst}')

def wo_reads(dstf, a0, a1, off):
    r = []
    for s4 in range(4):
        for nt in range(2):
            for u in range(2):
                r.append(f'ds_read_b64_tr_b16 {dstf(8*s4+4*nt+2*u,2)}, v{(a0,a1)[nt]} offset:{off+(16*s4+8*u)*128}')
    return r

def poll(e, o, tag, load, test):
    e.many(test)
    e('s_cmp_eq_u64 vcc, -1')
    e(f's_cbranch_scc1 L_polled_{tag}')
    e(f's_mov_b32 s{S_CNT}, 0x400000')
    e.lab(f'L_poll_{tag}')
    e(f's_sleep {o.psleep}')
    e(load)
    e('s_waitcnt vmcnt(0)')
    e.many(test)
    e('s_cmp_eq_u64 vcc, -1')
    e(f's_cbranch_scc1 L_polled_{tag}')
    e(f's_sub_u32 s{S_CNT}, s{S_CNT}, 1')
    e(f's_cmp_lg_u32 s{S_CNT}, 0')
    e(f's_cbranch_scc1 L_poll_{tag}')
    e.lab(f'L_polled_{tag}')

def loader(e, o):
    L = V_LANE
    VK, VV, VW, VWO, VF, VP, VZ = 24, 16, 20, 12, 17, 18, 19
    VA, VB = 96, 100
    AF = [48, 56]; BF = [64, 80]; ACC = 128
    vm = Vm(e)
    e(f'v_lshrrev_b32 v{V_T0}, 4, v{L}')
    e(f'v_and_b32 v{V_T1}, 15, v{L}')
    e(f'v_lshlrev_b32 v{V_T3}, 2, v{V_T0}')
    e(f'v_xor_b32 v{V_T3}, v{V_T3}, v{V_T1}')
    e(f'v_lshlrev_b32 v{V_T2}, 8, v{V_T0}')
    e(f'v_lshl_add_u32 v{VV}, v{V_T3}, 4, v{V_T2}')
    for i in range(4):
        e(f'v_add_u32 v{V_T3}, {4*i}, v{V_T0}')
        e(f'v_xor_b32 v{V_T3}, v{V_T3}, v{V_T1}')
        e(f'v_lshl_add_u32 v{VK+i}, v{V_T3}, 4, v{V_T2}')
    e(f's_lshl_b32 s{S_KVB}, s{S_BL}, 5')
    e(f's_add_u32 s{S_KVB}, s{S_KVB}, s{S_H}')
    e(f's_lshl_b32 s{S_KVB}, s{S_KVB}, 18')
    e(f's_and_b32 s{S_KR}, s2, 7')
    e(f's_lshl_b32 s{S_KR}, s{S_KR}, 1')
    e(f's_lshr_b32 s{S_T0}, s2, 3')
    e(f's_add_u32 s{S_KR}, s{S_KR}, s{S_T0}')
    e(f's_and_b32 s{S_KR}, s{S_KR}, {15 if o.krot else 0}')
    e(f's_lshl_b32 s{S_KR}, s{S_KR}, 14')
    e(f'v_lshlrev_b32 v{VW}, 19, v{L}')
    e(f'v_lshlrev_b32 v{VW+1}, 25, v{L}')
    e(f'v_mov_b32 v{VZ}, 0')
    e(f'v_lshlrev_b32 v{VW+3}, 18, v{L}')
    e(f's_lshl_b32 s{S_T0}, s{S_BR}, 2')
    e(f's_add_u32 s{S_FL}, s{S_T0}, s{S_BL}')
    e(f's_lshl_b32 s{S_FL}, s{S_FL}, 5')
    e(f's_add_u32 s{S_FL}, s{S_FL}, s{S_H}')
    e(f's_lshl_b32 s{S_FL}, s{S_FL}, 7')
    e(f's_add_u32 s{S_FL}, s{S_FL}, {WS_FLAGS}')
    e(f's_mul_i32 s{S_T2}, s{S_BR}, 8')
    e(f's_add_u32 s{S_T2}, s{S_T2}, s{S_BL}')
    e(f's_mul_i32 s{S_T2}, s{S_T2}, 96')
    e(f's_add_u32 s{S_T2}, s{S_T2}, s{S_H}')
    e(f's_lshl_b32 s{S_T2}, s{S_T2}, 13')
    srds(e, o)
    if o.tlb:
        e('s_mov_b64 exec, 3')
        e(f'buffer_load_dword v{VW+2}, v{VW+1}, {sr(S_K,4)}, s{S_KVB} offen')
        e(f'buffer_load_dword v{VW+2}, v{VW+1}, {sr(S_V,4)}, s{S_KVB} offen')
        e('s_mov_b64 exec, 0x3ffffff')
        e(f'buffer_load_dword v{VW+2}, v{VW}, {sr(S_WO,4)}, 0 offen')
        e(f'buffer_load_dword v{VW+2}, v{VW}, {sr(S_OUT,4)}, 0 offen')
        e('s_mov_b64 exec, 0x7007')
        e(f'buffer_load_dword v{VW+2}, v{VW+3}, {sr(S_WS,4)}, s{S_T2} offen')
        e('s_mov_b64 exec, 1')
        e(f'buffer_load_dword v{VW+2}, v{VZ}, {sr(S_WS,4)}, s{S_FL} offen')
        e('s_mov_b64 exec, -1')
        vm.add('tlb', 6)
    def issue_l(name):
        kind, t = name[0], int(name[1:])
        r = []
        if kind == 'K' and t > 31: return r
        base = slot_addr(name)
        if kind in 'KV':
            off = (t // 16) * (4 * 32 * 262144)
            r.append(f's_add_u32 s{S_T0}, s{S_KR}, {(t % 16) * SLOT}')
            r.append(f's_and_b32 s{S_T0}, s{S_T0}, {16 * SLOT - 1}')
            r.append(f's_add_u32 s{S_T0}, s{S_T0}, s{S_KVB}')
            for g in range(4):
                r.append(f's_mov_b32 m0, {base + 4096*g}')
                r.append(f's_add_u32 s{S_T1}, s{S_T0}, {off + 4096*g}')
                for i in range(4):
                    v = VK + i if kind == 'K' else VV
                    r.append(f'buffer_load_dwordx4 v{v}, {sr(S_K if kind == "K" else S_V,4)}, s{S_T1} offen offset:{1024*i} {o.kv_flags} lds')
        else:
            rr = slot(name); j, hi = 1 + (rr >> 1), rr & 1
            if j == 4: return r
            for p in range(2):
                r.append(f's_add_u32 s{S_T2}, s{S_WOB}, {1024*1280*(2*hi+p)}')
                r += wo_dma(o, 8 + j, None, base + 8192 * p, f's{S_T2}', VWO)
        return r
    def issue(name):
        r = issue_l(name)
        if r:
            vm.room(16); e.many(r); vm.add(name, 16)
    def own_w(c):
        vm.room(8)
        e(f's_add_u32 s{S_T2}, s{S_WOB}, {1024*1280*3}')
        e.many(wo_dma(o, c, None, 3 * 8192, f's{S_T2}', VWO))
        vm.add(f'w{c}', 8)
    def wait_upto(n):
        for m in range(n, -1, -1):
            if vm.has(SEQ[m]): vm.wait(SEQ[m]); return
    def flag(val):
        return [f's_add_u32 s{S_T0}, s{S_N}, {val}', f'v_mov_b32 v{V_T2}, s{S_T0}', 's_mov_b64 exec, 1',
                f'buffer_store_dword v{V_T2}, v{VZ}, {sr(S_WS,4)}, s{S_FL} offen sc1', 's_mov_b64 exec, -1']
    if o.pf_a:
        if o.pf_delay: e(f's_sleep {o.pf_delay}')
        e(f'v_lshrrev_b32 v{VW}, 1, v{L}')
        e(f'v_lshlrev_b32 v{VW}, 13, v{VW}')
        e(f'v_and_b32 v{VW+1}, 1, v{L}')
        e(f'v_lshl_add_u32 v{VW}, v{VW+1}, 7, v{VW}')
        e(f's_mul_i32 s{S_T0}, s{S_BL}, {160*8192}')
        e(f's_lshl_b32 s{S_T1}, s{S_H}, 8')
        e(f's_add_u32 s{S_T0}, s{S_T0}, s{S_T1}')
        for i in range(5):
            e(f's_add_u32 s{S_T1}, s{S_T0}, {32*i*8192}')
            e(f'buffer_load_dword v{VW+2}, v{VW}, {sr(S_WQ,4)}, s{S_T1} offen {o.w_flags}')
        e(f'v_lshlrev_b32 v{VW+1}, 7, v{L}')
        e(f's_and_b32 s{S_T0}, s{S_H}, 7')
        e(f's_mul_i32 s{S_T0}, s{S_T0}, 15360')
        e(f's_mul_i32 s{S_T1}, s{S_BL}, 122880')
        e(f's_add_u32 s{S_T0}, s{S_T0}, s{S_T1}')
        for i in range(4):
            e(f's_add_u32 s{S_T1}, s{S_T0}, {(i >> 1) * 491520 + (i & 1) * 8192}')
            e(f'buffer_load_dword v{VW+2}, v{VW+1}, {sr(S_X,4)}, s{S_T1} offen {o.w_flags}')
        vm.add('pfa', 9)
    if o.k_first: issue('K0'); issue('K1')
    e('s_cmp_lg_u32 s2, 0')
    e('s_cbranch_scc1 L_notag')
    e(f's_memrealtime {sr(S_ST,2)}')
    e('s_waitcnt lgkmcnt(0)')
    e(f's_mul_i32 s{S_ST+1}, s{S_ST+1}, 0x9e3779b1')
    e(f's_add_u32 s{S_ST}, s{S_ST}, s{S_ST+1}')
    e(f's_or_b32 s{S_ST}, s{S_ST}, 4')
    e(f's_and_b32 s{S_ST}, s{S_ST}, -4')
    e(f'v_mov_b32 v{V_T2}, s{S_ST}')
    e('s_mov_b64 exec, 1')
    e(f'global_store_dword v{VZ}, v{V_T2}, {sr(S_DBG,2)} sc1')
    e('s_mov_b64 exec, -1')
    e.lab('L_notag')
    e(f's_lshl_b32 s{S_T0}, s{S_BR}, 2')
    e(f's_add_u32 s{S_T0}, s{S_T0}, s{S_QB}')
    e(f's_lshl_b32 s{S_T0}, s{S_T0}, 12')
    e(f's_add_u32 s{S_T0}, s{S_T0}, {WS_FLAGS}')
    e(f'v_and_b32 v{VP}, 31, v{L}')
    e(f'v_lshlrev_b32 v{VP}, 7, v{VP}')
    e(f'v_add_u32 v{VP}, s{S_T0}, v{VP}')
    a_addr(e, VA, VB, None)
    wo_voffs(e, VWO)
    wo_lane_addr(e, V_WA)
    e(f'v_lshlrev_b32 v{VW}, 7, v{L}')
    e(f'v_add_u32 v{V_WA}, {3*8192}, v{V_WA}')
    e(f'v_xor_b32 v{V_WA+1}, 64, v{V_WA}')
    e(f'v_lshlrev_b32 v{V_OST}, 4, v{L}')
    e(f's_mov_b32 s{S_C}, {SCALE}')
    pf = []
    for n in range(2, 2 + o.pf_kv):
        kind, t = SEQ[n][0], int(SEQ[n][1:])
        for hh in range(2):
            pf.append([f's_add_u32 s{S_T1}, s{S_KVB}, {t*SLOT + hh*8192}',
                       f'buffer_load_dword v{VW+1}, v{VW}, {sr(S_K if kind == "K" else S_V,4)}, s{S_T1} offen {o.pf_flags}'])
    if o.pf_wo:
        e(f's_lshl_b32 s{S_T2}, s{S_H}, 2')
        e(f's_add_u32 s{S_T2}, s{S_T2}, s{S_BL}')
        e(f's_mul_i32 s{S_T2}, s{S_T2}, 40960')
        for i in range(5):
            pf.append([f's_add_u32 s{S_T1}, s{S_T2}, {i*8192}',
                       f'buffer_load_dword v{VW+1}, v{VW}, {sr(S_WO,4)}, s{S_T1} offen {o.pf_flags}'])
    def reads(s4, buf):
        r = []
        for t in (2, 3):
            for u in range(2):
                r.append(f'ds_read_b64_tr_b16 {vr(AF[buf]+4*(t-2)+2*u,2)}, v{VA+t} offset:{(16*s4+4*u)*256}')
        r += [f'ds_read_b128 {vr(BF[buf]+4*j,4)}, v{VB+s4} offset:{8192*j + 4096}' for j in range(3)]
        return r
    def mf(buf, first):
        r = []
        for j in range(3):
            for t in range(2):
                d = vr(ACC + 32 * j + 16 * t, 16)
                r.append(mfma(d, vr(AF[buf] + 4 * t, 4), vr(BF[buf] + 4 * j, 4), '0' if first else d))
        return r
    extra = {}
    def ride(step, name, ins, cnt):
        extra.setdefault(step, []).append((name, ins, cnt))
    if not o.k_first:
        for i, nm in enumerate(('K0', 'K1')):
            ins = issue_l(nm)
            for q in range(4): ride(4 * o.k_s0 + 4 * i + q, nm if q == 3 else None, ins[(3 + 6 * q if q else 0):3 + 6 * q + 6], 4)
    npf = 4 * (7 - o.pf_s0)
    for i, x in enumerate(pf): ride(4 * o.pf_s0 + (i * npf) // max(len(pf), 1), 'pf', x, 1)
    for i, nm in enumerate(('V0', 'K2')):
        ins = issue_l(nm)
        for q in range(2): ride(31 + 2 * i + q, nm if q == 1 else None, ins[(15 if q else 0):3 + 12 * q + 12], 8)
    ins = issue_l('V1')
    for q in range(0 if o.v1_late else 2): ride(35 + q, 'V1' if q == 1 else None, ins[(15 if q else 0):3 + 12 * q + 12], 8)
    e('s_barrier')
    e.many(reads(0, 0))
    for s in range(10):
        for s4 in range(4):
            step = 4 * s + s4; buf = step & 1
            e('s_waitcnt lgkmcnt(0)')
            if step == 31: no_task_wo(e)
            if s4 == 3:
                if s == 9: vm.wait('K1')
                e('s_barrier')
            late = []
            for name, ins, cnt in extra.get(step, []):
                vm.room(cnt); late += ins; vm.add(name or 'part', cnt)
            if s4 == 2 and s < 9: late += a_step(s, VA)
            front = reads((s4 + 1) & 3, buf ^ 1) if step < 39 else []
            gaps(e, mf(buf, step == 0), front, late, per=max(o.aper - 1, 3), late_from=(2 if s4 == 2 else 1))
    if o.v1_late: issue('V1')
    e('s_nop 7'); e('s_nop 3')
    for j in range(3):
        for i in range(16): e.many(conv(i, ACC + 32 * j, ACC + 32 * j))
        for f in range(4): e(f'ds_write_b128 v{V_OST}, {vr(ACC+32*j+4*f,4)} offset:{8192*j + 1024*f}')
    e('s_waitcnt lgkmcnt(0)')
    issue('K3')
    issued = POS['K3']
    e(f's_lshr_b32 s{S_WC}, s2, 3')
    e(f's_mul_i32 s{S_KX}, s{S_WC}, 13')
    e(f's_lshr_b32 s{S_KX}, s{S_KX}, 6')
    vm.wait('pfa')
    e(f'v_mul_u32_u24 v{VW+2}, 1280, v{L}')
    vm_pg = [None]
    ld_cnt = f'global_load_dword v23, v{VZ}, {sr(S_DBG,2)} sc1'
    ld_fl = f'buffer_load_dword v23, v{VP}, {sr(S_WS,4)}, 0 offen sc1'
    for k in range(32):
        wait_upto(POS[f'V{k}'])
        vm.stamp(o, 32 + k) if o.tickst == 1 else None
        e('s_barrier')
        vm.stamp(o, 32 + k) if o.tickst == 2 else None
        if k == 19:
            vm.room(1); e.many(flag(1)); vm.add('f1', 1)
        if o.pf_w and k in PF_TICKS:
            vm.room(1)
            e(f's_add_u32 s{S_T0}, s{S_KX}, {6 * PF_TICKS.index(k)}')
            e(f's_and_b32 s{S_T2}, s{S_T0}, 3')
            e(f's_lshl_b32 s{S_T2}, s{S_T2}, 4')
            e(f's_lshr_b32 s{S_T0}, s{S_T0}, 2')
            e(f's_add_u32 s{S_T0}, s{S_T0}, s{S_RHO}')
            e(f's_and_b32 s{S_T0}, s{S_T0}, 15')
            e(f's_add_u32 s{S_T0}, s{S_T0}, s{S_T2}')
            e(f's_mul_i32 s{S_T0}, s{S_T0}, {64*1280}')
            e(f's_add_u32 s{S_T0}, s{S_T0}, s{S_WOB}')
            e(f'buffer_load_dword v{VW+1}, v{VW+2}, {sr(S_WO,4)}, s{S_T0} offen {o.wo_flags}')
            vm.add('pft', 1)
        wev = (k - 2) // 3 if (k >= 2 and (k - 2) % 3 == 0 and k <= 26) else None
        if wev:
            vm.wait(f'w{wev-1}')
            e.many(wo_reads(lambda off, n: hold(wev - 1, off, n), V_WA, V_WA + 1, 0))
        if o.bal and k == o.tagk + 1:
            e(f's_and_b32 s{S_T0}, s2, 7')
            e(f'v_and_b32 v34, 7, v{L}')
            e(f's_lshl_b32 s{S_T2}, s{S_T0}, 10')
            e(f's_add_u32 s{S_T2}, s{S_T2}, {WS_PROG}')
            e(f'v_lshlrev_b32 v32, 7, v34')
            e(f'v_add_u32 v32, s{S_T2}, v32')
            e(f's_lshl_b32 s{S_T2}, s{S_T0}, 7')
            e(f's_add_u32 s{S_T2}, s{S_T2}, {WS_PROG}')
            e(f'v_lshlrev_b32 v33, 10, v34')
            e(f'v_add_u32 v33, s{S_T2}, v33')
        if o.bal and o.tagk + 1 <= k <= 29:
            e('s_cmp_lt_u32 s2, 8')
            e(f's_cbranch_scc0 L_norep{k}')
            e(f's_add_u32 s{S_T0}, s{S_N}, {4 * k}')
            e(f'v_mov_b32 v35, s{S_T0}')
            e('s_mov_b64 exec, 0xff')
            e(f'buffer_store_dword v35, v32, {sr(S_WS,4)}, 0 offen sc1')
            e('s_mov_b64 exec, -1')
            e.lab(f'L_norep{k}')
        thr_now = False
        if o.bal and vm_pg[0] is not None and vm_pg[0] + 1 == k:
            vm.wait('pg')
            e(f'v_subrev_u32 v34, s{S_N}, v34')
            e(f'v_cmp_ge_u32 vcc, {4 * (k - o.bal_lag)}, v34')
            e(f's_and_b32 s{S_T0}, vcc_lo, 0xff')
            e(f's_bcnt1_i32_b32 s{S_T0}, s{S_T0}')
            e(f's_cmp_ge_u32 s{S_T0}, {o.bal}')
            e(f's_cbranch_scc0 L_go{k}')
            e('s_waitcnt vmcnt(0)')
            if o.bal_sl: e(f's_sleep {o.bal_sl}')
            e.lab(f'L_go{k}')
        if k in (o.tagk, 28):
            vm.room(1); e(ld_cnt if k == o.tagk else ld_fl); vm.add('pl', 1)
        if k == 30:
            tail_setup(e, o)
            vm.room(4 * o.nearly); e.many(e.early); vm.add('early', 4 * o.nearly)
        first = POS[f'K{k+1}']
        lk = o.look if o.look_k0 <= k < o.look_k1 else o.look_lo
        if k >= 28: lk = 7 if first + o.look_lo >= POS['V31'] else lk
        lim = min(first + lk, first + 7, POS['T6'])
        if k == 31: lim = POS['T6']
        if o.tsched == 1 and k in (29, 30): lim = min(lim, POS['T1'] + (k - 29))
        if o.tsched == 2 and k < 31: lim = min(lim, POS['V31'])
        if o.tsched == 3 and k == 29: lim = min(lim, POS['V31'])
        while issued < lim:
            issued += 1
            if o.bal and o.tagk + 2 <= k <= 28 and k % o.bal_n == 0 and issued == lim:
                vm.room(17)
                e(f'buffer_load_dword v34, v33, {sr(S_WS,4)}, 0 offen sc1')
                vm.add('pg', 1); vm_pg[0] = k
            issue(SEQ[issued])
            while vm.out() > o.thr and k < o.thr_end: vm.wait(vm.q[0][0])
            if o.fav and k < o.thr_end and (issued & 1):
                e(f's_cmp_eq_u32 s{S_BR}, {o.fav - 1}')
                e(f's_cbranch_scc1 L_fav{issued}')
                e('s_waitcnt vmcnt(4)')
                e.lab(f'L_fav{issued}')
        if k == o.tagk:
            vm.wait('pl')
            poll(e, o, 'tag', ld_cnt, ['v_cmp_ne_u32 vcc, 0, v23'])
            e(f'v_readfirstlane_b32 s{S_N}, v23')
        if k == 28:
            vm.wait('pl')
            e(f's_add_u32 s{S_T3}, s{S_N}, 1')
            poll(e, o, 'r1', ld_fl, ['v_and_b32 v23, -3, v23', f'v_cmp_eq_u32 vcc, s{S_T3}, v23'])
        if wev is not None:
            e('s_waitcnt lgkmcnt(0)')
            own_w(wev)
    e('s_barrier')
    e.many(flag(3))
    e('s_waitcnt vmcnt(1)')

def a_addr(e, VA, VB, xl):
    L = V_LANE
    e(f'v_lshrrev_b32 v{V_T0}, 5, v{L}')
    e(f'v_bfe_u32 v{V_T1}, v{L}, 2, 2')
    e(f'v_lshl_add_u32 v{V_T2}, v{V_T0}, 3, v{V_T1}')
    e(f'v_lshlrev_b32 v{V_T2}, 8, v{V_T2}')
    e(f'v_lshl_add_u32 v{V_T2}, v{V_T1}, 6, v{V_T2}')
    e(f'v_bfe_u32 v{V_T3}, v{L}, 4, 1')
    e(f'v_lshl_add_u32 v{V_T2}, v{V_T3}, 5, v{V_T2}')
    e(f'v_and_b32 v{V_T3}, 1, v{L}')
    e(f'v_lshl_add_u32 v{V_T2}, v{V_T3}, 4, v{V_T2}')
    e(f'v_bfe_u32 v{V_T3}, v{L}, 1, 1')
    e(f'v_lshl_add_u32 v{V_T2}, v{V_T3}, 3, v{V_T2}')
    for t in range(4):
        e(f'v_xor_b32 v{VA+t}, {64*t}, v{V_T2}')
        e(f'v_add_u32 v{VA+t}, {reg_w(0)}, v{VA+t}')
    e(f'v_and_b32 v{V_T1}, 31, v{L}')
    e(f'v_bfe_u32 v{V_T2}, v{L}, 1, 3')
    e(f'v_xor_b32 v{V_T2}, v{V_T2}, v{V_T0}')
    e(f'v_lshlrev_b32 v{V_T2}, 4, v{V_T2}')
    e(f'v_lshl_add_u32 v{V_T2}, v{V_T1}, 7, v{V_T2}')
    if xl is not None:
        e(f's_add_u32 s{S_T0}, s{xl}, {reg_x(0)}')
    for s4 in range(4):
        e(f'v_xor_b32 v{VB+s4}, {32*s4}, v{V_T2}')
        e(f'v_add_u32 v{VB+s4}, s{S_T0}, v{VB+s4}' if xl is not None else f'v_add_u32 v{VB+s4}, {reg_x(0)}, v{VB+s4}')

def a_step(s, VA):
    r = []
    for i in range(8):
        d = reg_w(s + 1) - reg_w(s) if i < 4 else reg_x(s + 1) - reg_x(s)
        r.append(f'v_add_u32 v{VA+i}, {d}, v{VA+i}' if d > 0 else f'v_subrev_u32 v{VA+i}, {-d}, v{VA+i}')
    return r

SCALE = hex(struct.unpack("<I", struct.pack("<f", math.log2(math.e) / math.sqrt(128.0)))[0])
def conv(i, src, dst):
    a = src + 2 * i
    return [f'v_mul_f32 v{a}, s{S_C}, v{a}', f'v_mul_f32 v{a+1}, s{S_C}, v{a+1}', f'v_cvt_pk_bf16_f32 v{dst+i}, v{a}, v{a+1}']

def phase_a(e, o):
    L = V_LANE
    VA, VB = V_Q, V_Q + 4
    AF = [V_SA, V_SB]; BF = [V_P, V_TMP]; ACC = [128, 192]
    e(f'v_lshrrev_b32 v{V_T0}, 3, v{L}')
    e(f'v_mul_u32_u24 v{V_T0}, 1280, v{V_T0}')
    e(f'v_lshrrev_b32 v{V_T1}, 4, v{L}')
    e(f'v_and_b32 v{V_T2}, 7, v{L}')
    e(f'v_xor_b32 v{V_T1}, v{V_T1}, v{V_T2}')
    for i in range(4):
        e(f'v_xor_b32 v{V_T2}, {4*(i&1)}, v{V_T1}')
        e(f'v_lshl_add_u32 v{V_DMA+i}, v{V_T2}, 4, v{V_T0}')
        if i: e(f'v_add_u32 v{V_DMA+i}, {(10240-1024)*i}, v{V_DMA+i}')
    e(f's_mul_i32 s{S_XB}, s{S_BL}, 3')
    e(f's_add_u32 s{S_XB}, s{S_XB}, s{S_WAVE}')
    e(f's_mul_i32 s{S_OB}, s{S_BR}, 24')
    e(f's_add_u32 s{S_OB}, s{S_OB}, s{S_XB}')
    e(f's_mul_i32 s{S_XB}, s{S_XB}, 40960')
    def xload(s, it):
        r = []
        if it == 0:
            r.append(f's_lshl_b32 s{S_T0}, s{S_KX}, 7')
            r.append(f's_add_u32 s{S_T0}, s{S_T0}, s{S_XB}')
        r.append(f's_add_u32 m0, s{S_XL}, {reg_x(s) + 4096*it}')
        r.append(f's_add_u32 s{S_T1}, s{S_T0}, {491520*it}')
        for i in range(4):
            r.append(f'buffer_load_dwordx4 v{V_DMA+i}, {sr(S_X,4)}, s{S_T1} offen offset:{1024*i} {o.w_flags} lds')
        if it == 1:
            r.append(f's_add_u32 s{S_KX}, s{S_KX}, 1')
            r.append(f's_cmp_eq_u32 s{S_KX}, 10')
            r.append(f's_cselect_b32 s{S_KX}, 0, s{S_KX}')
        return r
    VWQ = V_Q + 8
    e(f'v_lshrrev_b32 v{V_T0}, 4, v{L}')
    e(f'v_and_b32 v{V_T1}, 15, v{L}')
    e(f'v_lshlrev_b32 v{V_T3}, 2, v{V_T0}')
    e(f'v_xor_b32 v{V_T3}, v{V_T3}, v{V_T1}')
    e(f'v_lshlrev_b32 v{V_T2}, 13, v{V_T0}')
    e(f'v_lshl_add_u32 v{VWQ}, v{V_T3}, 4, v{V_T2}')
    for i in range(1, 4): e(f'v_add_u32 v{VWQ+i}, {(32768-1024)*i}, v{VWQ}')
    e(f's_mul_i32 s{S_KVB}, s{S_WAVE}, {5*32768}')
    e(f's_lshl_b32 s{S_T0}, s{S_H}, 8')
    e(f's_add_u32 s{S_KVB}, s{S_KVB}, s{S_T0}')
    e(f's_mul_i32 s{S_FL}, s{S_WAVE}, {5*1024}')
    def wqload(s):
        r = [f's_lshl_b32 s{S_T2}, s{S_KX}, 19', f's_add_u32 s{S_T2}, s{S_T2}, s{S_KVB}']
        for t in range(6):
            if t % 4 == 0:
                r.append(f's_add_u32 m0, s{S_FL}, {reg_w(s) + 1024*t}')
                r.append(f's_add_u32 s{S_T1}, s{S_T2}, {32768*t}')
            r.append(f'buffer_load_dwordx4 v{VWQ+(t&3)}, {sr(S_WQ,4)}, s{S_T1} offen offset:{1024*(t&3)} {o.w_flags} lds')
        return r
    srds(e, o)
    e.many(wqload(0)); e.many(xload(0, 0)); e.many(xload(0, 1))
    lazy(e, o, 2)
    no_task_wo(e)
    e(f's_lshl_b32 s{S_OB}, s{S_OB}, 5')
    e(f's_add_u32 s{S_OB}, s{S_OB}, s{S_H}')
    e(f's_lshl_b32 s{S_OB}, s{S_OB}, 13')
    a_addr(e, VA, VB, S_XL)
    e(f'v_and_b32 v{V_T2}, 15, v{L}')
    e(f'v_xor_b32 v{V_T2}, v{V_T2}, v{V_T0}')
    e(f'v_lshlrev_b32 v{V_T2}, 4, v{V_T2}')
    e(f'v_lshl_add_u32 v{V_T2}, v{V_T1}, 8, v{V_T2}')
    for s in range(8):
        e(f'v_xor_b32 v{V_KA+s}, {32*s}, v{V_T2}')
        e(f'v_add_u32 v{V_KA+s}, {slot_addr("K0")}, v{V_KA+s}')
    e(f'v_bfe_u32 v{V_T1}, v{L}, 2, 2')
    e(f'v_lshl_add_u32 v{V_T2}, v{V_T0}, 2, v{V_T1}')
    e(f'v_lshlrev_b32 v{V_T2}, 8, v{V_T2}')
    e(f'v_lshl_add_u32 v{V_T2}, v{V_T1}, 6, v{V_T2}')
    e(f'v_bfe_u32 v{V_T3}, v{L}, 4, 1')
    e(f'v_lshl_add_u32 v{V_T2}, v{V_T3}, 5, v{V_T2}')
    e(f'v_and_b32 v{V_T3}, 3, v{L}')
    e(f'v_lshl_add_u32 v{V_T2}, v{V_T3}, 3, v{V_T2}')
    e(f'v_add_u32 v{V_T2}, {RING}, v{V_T2}')
    for t in range(4): e(f'v_xor_b32 v{V_VA+t}, {64*t}, v{V_T2}')
    e(f'v_lshlrev_b32 v{V_OST}, 4, v{L}')
    e(f'v_add_u32 v{V_OST+3}, s{S_XL}, v{V_OST}')
    wo_lane_addr(e, V_WA)
    e(f'v_add_u32 v{V_WA}, s{S_XL}, v{V_WA}')
    e(f'v_xor_b32 v{V_WA+1}, 64, v{V_WA}')
    e(f's_mul_i32 s{S_WQB}, s{S_WAVE}, {1024*1280}')
    e(f's_add_u32 s{S_WQB}, s{S_WQB}, s{S_WOB}')
    e(f's_mov_b32 s{S_WC}, s{S_RHO}')
    e(f's_add_u32 s{S_WN}, s{S_WAVE}, 4')
    e(f's_mov_b32 s{S_EV}, 0')
    for i in range(64): e(f'v_accvgpr_write_b32 a{i}, 0')
    for i in range(16): e(f'v_mov_b32 v{V_NEGM+i}, 0')
    for i in range(4): e(f'v_mov_b32 v{V_L+i}, 0')
    e(f's_mov_b32 s{S_C}, {SCALE}')
    e(f's_mov_b32 s{S_THR}, 0xff800000')
    e(f's_mov_b32 s{S_FLOOR}, 0xff800000')
    e(f's_mov_b32 s{S_TICK}, 0')
    e(f's_mov_b32 s{S_KOFF}, {7*SLOT}')
    e(f's_mov_b32 s{S_VOFF}, 0')
    nst = 0
    lazy(e, o, 5)
    e.many(wqload(1)); e.many(xload(1, 0)); e.many(xload(1, 1))
    lazy(e, o, 6)
    def reads(s4, buf):
        r = [f'ds_read_b128 {vr(BF[buf]+4*it,4)}, v{VB+s4} offset:{4096*it}' for it in range(2)]
        for t in range(4):
            for u in range(2):
                r.append(f'ds_read_b64_tr_b16 {vr(AF[buf]+4*t+2*u,2)}, v{VA+t} offset:{(16*s4+4*u)*256}')
        return r
    def mf(buf, first):
        r = []
        for t in range(4):
            for it in range(2):
                if it == 1 and t >= 2: continue
                d = vr(ACC[it] + 16 * t, 16)
                r.append(mfma(d, vr(AF[buf] + 4 * t, 4), vr(BF[buf] + 4 * it, 4), '0' if first else d))
        return r
    e(f's_waitcnt vmcnt({14 + nst})')
    lazy(e, o, 7)
    e('s_barrier')
    lazy(e, o, 8)
    e.many(reads(0, 0))
    for s in range(10):
        for s4 in range(4):
            step = 4 * s + s4; buf = step & 1
            if step in (8, 16, 24, 32, 39): lazy(e, o, 9 + (8, 16, 24, 32, 39).index(step))
            if o.stamps and step in (8, 32): e(f's_memtime s[{LAZY[3 if step == 8 else 4]}:{LAZY[3 if step == 8 else 4]+1}]')
            m = mf(buf, step == 0)
            late = []
            e('s_waitcnt lgkmcnt(0)')
            if s4 == 3:
                if s < 9:
                    e(f's_waitcnt vmcnt({(14 if s + 2 <= 9 else 0) + (nst if s < 2 else 0)})')
                e('s_barrier')
                if s + 3 <= 9: late = wqload(s + 3)
            if s4 == 0 and s + 2 <= 9: late = (wqload(2) if s == 0 else []) + xload(s + 2, 0)
            if s4 == 1 and s + 2 <= 9: late = xload(s + 2, 1)
            if s4 == 2 and s < 9: late = a_step(s, VA)
            front = reads((s4 + 1) & 3, buf ^ 1) if step < 39 else []
            gaps(e, m, front, late, per=o.aper, late_from=(3 if o.aper == 3 and s4 == 2 else 2 if o.aper >= 4 else 1))
    wo_voffs(e, V_DMA)
    e('s_nop 4')
    for i in range(16): e.many(conv(i, ACC[0], V_Q))
    e.many(k_reads(0))
    for i in range(16, 32): e.many(conv(i, ACC[0], V_Q))

def k_reads(half):
    return [f'ds_read_b128 {vr(V_KF+4*s,4)}, v{V_KA+s} offset:{8192*half}' for s in range(8)]
def v_reads(half):
    r = []
    for jj in range(2):
        for t in range(4):
            for u in range(2):
                r.append(f'ds_read_b64_tr_b16 {vr(V_VF+16*jj+4*t+2*u,2)}, v{V_VA+t} offset:{(32*half+16*jj+8*u)*256}')
    return r
def qk(S):
    return [mfma(vr(S, 16), vr(V_KF + 4 * s, 4), vr(V_Q + 4 * s, 4), vr(V_NEGM, 16) if s == 0 else vr(S, 16)) for s in range(8)]
def pv():
    return [mfma(ar(16 * t, 16), vr(V_VF + 16 * jj + 4 * t, 4), vr(V_P + 4 * jj, 4), ar(16 * t, 16)) for jj in range(2) for t in range(4)]
def maxes(S):
    r = [f'v_max3_f32 v{V_MX}, v{S}, v{S+1}, v{S+2}', f'v_max3_f32 v{V_D}, v{S+3}, v{S+4}, v{S+5}']
    r += [f'v_max3_f32 v{V_MX}, v{V_MX}, v{S+6}, v{S+7}', f'v_max3_f32 v{V_D}, v{V_D}, v{S+8}, v{S+9}']
    r += [f'v_max3_f32 v{V_MX}, v{V_MX}, v{S+10}, v{S+11}', f'v_max3_f32 v{V_D}, v{V_D}, v{S+12}, v{S+13}']
    r += [f'v_max3_f32 v{V_MX}, v{V_MX}, v{S+14}, v{S+15}', f'v_max_f32 v{V_MX}, v{V_MX}, v{V_D}']
    r += [f'v_cmp_lt_f32 vcc, s{S_THR}, v{V_MX}']
    return r

def half_tick(e, Snew, Sold, vhalf, khalf, extra_v=(), extra_k=(), extra_8=()):
    ex = lambda i: f'v_exp_f32 v{Sold+i}, v{Sold+i}'
    cv = lambda i: f'v_cvt_pk_bf16_f32 v{V_P+i}, v{Sold+2*i}, v{Sold+2*i+1}'
    ad = lambda i: f'v_add_f32 v{V_L+(i&3)}, v{V_L+(i&3)}, v{Sold+i}'
    m = qk(Snew) + pv()
    m[8] = ['s_waitcnt lgkmcnt(0)', m[8]]
    fill = v_reads(vhalf) + [ex(i) for i in range(8)] + list(extra_v) + [cv(i) for i in range(4)] + [ex(i) for i in range(8, 12)]
    fill += [('M', 8), ('A', 8)] + (k_reads(khalf) if khalf is not None else []) + [ex(i) for i in range(12, 16)] + [ad(0)]
    fill += [cv(i) for i in range(4, 8)] + [ad(1), ad(2)]
    rest = [ad(i) for i in range(3, 16)]
    x8 = list(extra_8)
    fill += [('M', 12)]
    while rest or x8:
        if rest: fill.append(rest.pop(0))
        fill += x8[:3]; x8 = x8[3:]
    fill += list(extra_k) + maxes(Snew)
    e('s_waitcnt lgkmcnt(0)')
    interleave(e, m, fill)

def last_half(e, Sold, extra=()):
    ex = lambda i: f'v_exp_f32 v{Sold+i}, v{Sold+i}'
    cv = lambda i: f'v_cvt_pk_bf16_f32 v{V_P+i}, v{Sold+2*i}, v{Sold+2*i+1}'
    ad = lambda i: f'v_add_f32 v{V_L+(i&3)}, v{V_L+(i&3)}, v{Sold+i}'
    e.many(v_reads(1))
    e.many(extra)
    e.many([ex(i) for i in range(8)] + [cv(i) for i in range(4)] + [ex(8), ex(9)])
    e('s_waitcnt lgkmcnt(0)')
    fill = [ex(i) for i in range(10, 16)] + [ad(0)] + [cv(i) for i in range(4, 8)] + [ad(1), ad(2), ('M', 4)] + [ad(i) for i in range(3, 16)]
    interleave(e, pv(), fill)

def rare(e, S, back):
    e('s_nop 7')
    e(f'v_mov_b32 v{V_T0}, v{V_MX}')
    e('s_nop 1')
    e(f'v_permlane32_swap_b32 v{V_T0}, v{V_MX}')
    e('s_nop 1')
    e(f'v_max_f32 v{V_D}, v{V_T0}, v{V_MX}')
    e(f'v_max_f32 v{V_D}, s{S_FLOOR}, v{V_D}')
    for i in range(16): e(f'v_sub_f32 v{S+i}, v{S+i}, v{V_D}')
    for i in range(16): e(f'v_sub_f32 v{V_NEGM+i}, v{V_NEGM+i}, v{V_D}')
    e(f's_cmp_lg_u32 s{S_FLOOR}, 0')
    e(f's_mov_b32 s{S_THR}, 0x41000000')
    e(f's_mov_b32 s{S_FLOOR}, 0')
    e(f's_cbranch_scc1 {back}')
    e(f'v_sub_f32 v{V_T0}, 0, v{V_D}')
    e(f'v_exp_f32 v{V_T0}, v{V_T0}')
    e('s_nop 0')
    for i in range(4): e(f'v_mul_f32 v{V_L+i}, v{V_L+i}, v{V_T0}')
    for i in range(0, 64, 4):
        for j in range(4): e(f'v_accvgpr_read_b32 v{V_TMP+j}, a{i+j}')
        for j in range(4): e(f'v_mul_f32 v{V_TMP+j}, v{V_TMP+j}, v{V_T0}')
        for j in range(4): e(f'v_accvgpr_write_b32 a{i+j}, v{V_TMP+j}')
    e('s_nop 1')
    e(f's_branch {back}')

def epilogue(e, o):
    e(f'v_add_f32 v{V_L}, v{V_L}, v{V_L+1}')
    e(f'v_add_f32 v{V_L+2}, v{V_L+2}, v{V_L+3}')
    e(f'v_add_f32 v{V_L}, v{V_L}, v{V_L+2}')
    e(f'v_mov_b32 v{V_T0}, v{V_L}')
    e('s_nop 1')
    e(f'v_permlane32_swap_b32 v{V_T0}, v{V_L}')
    e('s_nop 1')
    e(f'v_add_f32 v{V_L}, v{V_L}, v{V_T0}')
    e(f'v_rcp_f32 v{V_T0}, v{V_L}')
    e('s_nop 4')
    for f in range(8):
        t = V_VF + 8 * (f & 3)
        for j in range(8): e(f'v_accvgpr_read_b32 v{t+j}, a{8*f+j}')
        if o.pk:
            for j in range(0, 8, 2): e(f'v_pk_mul_f32 {vr(t+j,2)}, {vr(t+j,2)}, {vr(V_T0,2)} op_sel_hi:[1,0]')
        else:
            for j in range(8): e(f'v_mul_f32 v{t+j}, v{t+j}, v{V_T0}')
        d = V_TMP + 4 * (f & 1)
        for j in range(4): e(f'v_cvt_pk_bf16_f32 v{d+j}, v{t+2*j}, v{t+2*j+1}')
        if f == 4: e(f's_add_u32 s{S_OB}, s{S_OB}, 4096')
        e(f'buffer_store_dwordx4 {vr(d,4)}, v{V_OST}, {sr(S_WS,4)}, s{S_OB} offen offset:{1024*(f&3)} {o.ost_flags}')

def w_snippets(e, o, ret):
    e('s_waitcnt vmcnt(0)')
    def tree(lo, n):
        if n == 1:
            if lo == 0:
                for f in range(4): e(f'ds_read_b128 {vr(224+4*f,4)}, v{V_OST+3} offset:{1024*f}')
                if o.t15:
                    for i in range(16): e.many(conv(i, V_Q2, V_Q2))
            else:
                e.many(wo_reads(lambda off, nn: hold(lo - 1, off, nn), V_WA, V_WA + 1, 0))
            e('s_branch L_sn_done')
            return
        h = (n + 1) // 2
        e(f's_cmp_ge_u32 s{S_EV}, {lo+h}')
        e(f's_cbranch_scc1 L_sn_{lo+h}')
        tree(lo, h)
        e.lab(f'L_sn_{lo+h}')
        tree(lo + h, n - h)
    tree(0, 9)
    e.lab('L_sn_done')
    e(f's_add_u32 s{S_EV}, s{S_EV}, 1')
    e(f's_cmp_eq_u32 s{S_EV}, 9')
    e(f's_cselect_b32 s{S_WN}, 64, 3')
    if o.t15:
        e(f's_cmp_eq_u32 s{S_TICK}, 13')
        e(f's_cselect_b32 s{S_WN}, 4, s{S_WN}')
    e('s_waitcnt lgkmcnt(0)')
    e.many(wo_dma(o, 0, f's{S_XL}', 0, f's{S_WQB}', V_DMA, dyn=True))
    e(f's_branch {ret}')

def phase_b(e, o):
    lazy(e, o, 14)
    lazy_dump(e, o, range(15))
    stamp(e, o, 1)
    e('s_waitcnt lgkmcnt(0)')
    e.many(qk(V_SA))
    e.many(k_reads(1))
    for s in range(8): e(f'v_add_u32 v{V_KA+s}, {SLOT}, v{V_KA+s}')
    e('s_nop 3')
    e.many(maxes(V_SA))
    e('s_branch L_rare_a')
    def adv(soff, tmp, base, n):
        r = [f's_add_u32 s{tmp}, s{soff}, {2*SLOT}', f's_and_b32 s{tmp}, s{tmp}, {8*SLOT-1}',
             f's_sub_u32 s{S_T3}, s{tmp}, s{soff}', f's_mov_b32 s{soff}, s{tmp}']
        r += [f'v_add_u32 v{base+i}, s{S_T3}, v{base+i}' for i in range(n)]
        return r
    e.lab('L_tick')
    e('s_waitcnt lgkmcnt(0)')
    e('s_barrier')
    e(f's_cmp_eq_u32 s{S_TICK}, 31')
    e('s_cbranch_scc1 L_last')
    half_tick(e, V_SB, V_SA, 0, 0)
    e('s_cbranch_vccnz L_rare_b')
    e.lab('L_back_b')
    e(f's_cmp_eq_u32 s{S_TICK}, 15')
    e('s_cbranch_scc1 L_switch')
    e.lab('L_back_sw')
    half_tick(e, V_SA, V_SB, 1, 1, extra_v=adv(S_VOFF, S_T0, V_VA, 4), extra_k=adv(S_KOFF, S_T1, V_KA, 8))
    e(f's_add_u32 s{S_TICK}, s{S_TICK}, 1')
    e(f's_sub_u32 s{S_WN}, s{S_WN}, 1')
    e(f's_cmp_eq_u32 s{S_WN}, 0')
    e('s_cbranch_scc1 L_snip')
    e.lab('L_snip_ret')
    e(f's_cmp_eq_u32 s{S_TICK}, 16')
    e('s_cbranch_scc1 L_epi1')
    e('s_cbranch_vccz L_tick')
    e.lab('L_rare_a')
    rare(e, V_SA, 'L_tick')
    e.lab('L_snip')
    w_snippets(e, o, 'L_snip_ret')
    e.lab('L_rare_b')
    rare(e, V_SB, 'L_back_b')
    e.lab('L_switch')
    for i in range(16): e(f'v_mov_b32 v{V_Q+16+i}, v{224+i}')
    for i in range(16): e.many([f'v_mov_b32 v{V_Q+i}, v{V_Q2+i}'] if o.t15 else conv(i, V_Q2, V_Q))
    for i in range(16): e(f'v_mov_b32 v{V_NEGM+i}, 0')
    e('s_nop 1')
    e('s_branch L_back_sw')
    e.lab('L_epi1')
    epilogue(e, o)
    e(f's_add_u32 s{S_OB}, s{S_OB}, {RND - 4096}')
    if o.t15:
        for t in range(4): e(mfma(ar(16 * t, 16), vr(V_NEGM, 4), vr(V_NEGM, 4), '0'))
    else:
        for i in range(64): e(f'v_accvgpr_write_b32 a{i}, 0')
    for i in range(4): e(f'v_mov_b32 v{V_L+i}, 0')
    e(f's_mov_b32 s{S_FLOOR}, 0xff800000')
    stamp(e, o, 2)
    e('s_branch L_rare_a')
    e.lab('L_rare_l')
    rare(e, V_SB, 'L_back_l')
    e.lab('L_last')
    T = tail_pre(e, o)
    e.early = T.pump(min(o.nearly, 4))
    half_tick(e, V_SB, V_SA, 0, None, extra_8=e.early)
    e('s_cbranch_vccnz L_rare_l')
    e.lab('L_back_l')
    x = T.pump(max(o.nearly - 4, 0))
    e.early += x
    last_half(e, V_SB, x)
    epilogue(e, o)
    return T

def tail_setup(e, o):
    e(f's_mul_i32 s{S_O1}, s{S_BR}, 24')
    e(f's_add_u32 s{S_O1}, s{S_O1}, s{S_QT}')
    e(f's_lshl_b32 s{S_O1}, s{S_O1}, 2')
    e(f's_add_u32 s{S_O1}, s{S_O1}, s{S_WAVE}')
    e(f's_lshl_b32 s{S_O1}, s{S_O1}, 16')

POOL = list(range(96, 160, 4)) + [32, 36, 40, 44, 16, 20, 24, 80, 84] + list(range(160, 192, 4)) + [88, 92]
ORDER1 = [0, 1, 2, 8, 3, 9, 4, 10, 5, 11, 6, 12, 7]
ORDER2 = [8, 0, 9, 1, 10, 2, 11, 3, 12, 4, 13, 14, 15, 5, 6, 7]

class Tail:
    def __init__(self, e, o):
        self.e, self.o = e, o
        self.vm = Vm(e)
        self.free = list(POOL)
        self.where = {}
        self.todo = []
    def oload(self, rnd, c):
        e = self.e
        regs = [self.free.pop(0) for _ in range(4)]
        self.where[(rnd, c)] = regs
        r = [f's_add_u32 s{S_T1}, s{S_RHO}, {c}', f's_and_b32 s{S_T1}, s{S_T1}, 15', f's_lshl_b32 s{S_T1}, s{S_T1}, 12',
             f's_add_u32 s{S_T1}, s{S_T1}, s{S_O1}']
        if rnd and not self.o.t_o1: r.append(f's_add_u32 s{S_T1}, s{S_T1}, {RND}')
        if rnd and self.o.t_noo: return []
        for s4 in range(4):
            r.append(f'buffer_load_dwordx4 {vr(regs[s4],4)}, v{V_OST}, {sr(S_WS,4)}, s{S_T1} offen offset:{1024*s4} {self.o.old_flags}')
        self.vm.add(f'o{rnd}_{c}', 4)
        return r
    def pump(self, lim=99):
        r = []
        while self.todo and len(self.free) >= 4 and self.vm.out() + 4 <= 61 and lim > 0:
            lim -= 1
            r += self.oload(*self.todo.pop(0))
        return r

def tail_pre(e, o):
    T = Tail(e, o)
    tail_setup(e, o)
    T.todo = [(0, c) for c in ORDER1]
    return T

def tail(e, o, T):
    L = V_LANE
    vm = T.vm
    RA = 6
    TEMP = 48
    e(f's_cmp_eq_u32 s{S_NT}, 15')
    e('s_cbranch_scc1 L_exit')
    e(f's_mul_i32 s{S_WQB}, s{S_WAVE}, {1024*1280}')
    e(f's_add_u32 s{S_WQB}, s{S_WQB}, s{S_WOB}')
    e.many(T.pump())
    vm.room(8)
    e.many(wo_dma(o, 12, f's{S_XL}', 4 * 32768, f's{S_WQB}', V_DMA))
    vm.add('late', 8)
    for b in range(3):
        e(f'v_add_u32 v{RA+2*b}, {65536*b}, v{V_WA}')
        e(f'v_add_u32 v{RA+2*b+1}, {65536*b}, v{V_WA+1}')
    e(f's_lshl_b32 s{S_T0}, s{S_BR}, 2')
    e(f's_add_u32 s{S_T0}, s{S_T0}, s{S_QB}')
    e(f's_lshl_b32 s{S_T0}, s{S_T0}, 2')
    e(f's_add_u32 s{S_T0}, s{S_T0}, s{S_WAVE}')
    e(f's_lshl_b32 s{S_T0}, s{S_T0}, 10')
    e(f's_add_u32 s{S_T0}, s{S_T0}, {WS_FLAGS}')
    e(f'v_and_b32 v31, 7, v{L}')
    e(f'v_lshlrev_b32 v31, 7, v31')
    e(f'v_add_u32 v31, s{S_T0}, v31')
    e('v_mov_b32 v0, 0')
    piece = {8: 0, 9: 1, 10: 2, 11: 3, 12: 4, 13: 0, 14: 1, 15: 2}
    tmp_of = {}
    def rd(c, dstf):
        j = piece[c]
        return wo_reads(dstf, RA + 2 * (j >> 1), RA + 2 * (j >> 1) + 1, 32768 * (j & 1))
    def afrag(c):
        if c < 8: return lambda off, n: hold(c, off, n)
        if c >= 13: return lambda off, n: hold(c - 13, off, n)
        return lambda off, n: vr(TEMP + off, n)
    first = {0: True, 1: True}
    def mms(c, rnds):
        m = []
        for s4 in range(4):
            for rnd in rnds:
                for nt in range(2):
                    d = ar(32 * rnd + 16 * nt, 16)
                    m.append(mfma(d, afrag(c)(8 * s4 + 4 * nt, 4), vr(T.where[(rnd, c)][s4], 4), '0' if (first[rnd] and s4 == 0) else d))
        for rnd in rnds: first[rnd] = False
        return m
    def wdma(c):
        if o.t_now: return []
        vm.add(f'w{c}', 8)
        return wo_dma(o, c, f's{S_XL}', 32768 * piece[c], f's{S_WQB}', V_DMA)
    ld_fl = f'buffer_load_dword v{V_T2}, v31, {sr(S_WS,4)}, 0 offen sc1'
    WA, RDA, VOUT = 48, 56, 60
    S_OO = S_KOFF
    fin = [f'v_and_b32 v{V_T0}, 31, v{L}', f'v_lshrrev_b32 v{V_T1}, 5, v{L}', f'v_and_b32 v{V_T3}, 15, v{L}',
           f'v_xor_b32 v{V_T1}, v{V_T1}, v{V_T3}', f'v_lshlrev_b32 v{V_T1}, 4, v{V_T1}',
           f'v_lshl_add_u32 v{V_T0}, v{V_T0}, 8, v{V_T1}', f's_add_u32 s{S_T3}, s{S_XL}, {3*32768}',
           f'v_add_u32 v{V_T0}, s{S_T3}, v{V_T0}']
    fin += [f'v_xor_b32 v{WA+k}, {32*k}, v{V_T0}' for k in range(8)]
    fin2 = [f's_lshr_b32 s{S_VOFF}, s{S_WAVE}, 1', f's_and_b32 s{S_THR}, s{S_WAVE}, 1',
            f's_lshl_b32 s{S_T2}, s{S_VOFF}, 15', f's_lshl_b32 s{S_T3}, s{S_THR}, 12',
            f's_add_u32 s{S_T2}, s{S_T2}, s{S_T3}', f's_add_u32 s{S_T2}, s{S_T2}, {3*32768}',
            f'v_lshrrev_b32 v{V_T1}, 3, v{L}', f'v_and_b32 v{V_T3}, 7, v{L}', f'v_lshlrev_b32 v{V_T0}, 1, v{V_T3}',
            f'v_xor_b32 v{V_T0}, v{V_T0}, v{V_T1}', f'v_lshlrev_b32 v{V_T0}, 4, v{V_T0}',
            f'v_lshl_add_u32 v{V_T0}, v{V_T1}, 8, v{V_T0}', f'v_add_u32 v{RDA}, s{S_T2}, v{V_T0}',
            f'v_xor_b32 v{RDA+1}, 16, v{RDA}', f'v_xor_b32 v{RDA+2}, {2048+128}, v{RDA}', f'v_xor_b32 v{RDA+3}, 16, v{RDA+2}',
            f's_lshl_b32 s{S_OO}, s{S_QT}, 5', f's_mul_i32 s{S_VOFF}, s{S_VOFF}, 384', f's_add_u32 s{S_OO}, s{S_OO}, s{S_VOFF}',
            f's_lshl_b32 s{S_THR}, s{S_THR}, 4', f's_add_u32 s{S_OO}, s{S_OO}, s{S_THR}', f's_mul_i32 s{S_OO}, s{S_OO}, 2560',
            f's_mul_i32 s{S_T3}, s{S_BR}, 1280', f's_add_u32 s{S_OO}, s{S_OO}, s{S_T3}', f's_add_u32 s{S_OO}, s{S_OO}, s{S_WOB}',
            f'v_mul_u32_u24 v{V_T1}, 2560, v{V_T1}', f'v_lshl_add_u32 v{VOUT}, v{V_T3}, 4, v{V_T1}']
    def pwrite(rnd):
        return [f'ds_write_b128 v{WA+4*nt+g}, {ar(32*rnd+16*nt+4*g,4)} offset:{rnd*32768}' for nt in range(2) for g in range(4)]
    seq = [(0, c) for c in ORDER1] + [(1, c) for c in ORDER2]
    todo2 = []
    for c in ORDER2: todo2 += ([(0, c)] if c >= 13 else []) + [(1, c)]
    for i, (rnd, c) in enumerate(seq):
        rnds = [0, 1] if c >= 13 else [rnd]
        nxt = seq[i + 1][1] if i + 1 < len(seq) else None
        if i == o.chk - 2:
            vm.room(2); e(f'global_load_dword v30, v0, {sr(S_DBG,2)} sc1'); e(ld_fl); vm.add('pl', 2)
        if i == o.chk:
            vm.stamp(o, 5)
            vm.wait('pl')
            e('v_add_u32 v30, 3, v30')
            poll(e, o, 'r2', ld_fl, [f'v_cmp_eq_u32 vcc, v30, v{V_T2}'])
            assert not T.todo
            T.todo = todo2
            e.many(T.pump())
            vm.stamp(o, 6)
        if c >= 8: e('s_waitcnt lgkmcnt(0)')
        for r_ in rnds: vm.wait(f'o{r_}_{c}')
        front = []; late = []
        if nxt is not None and nxt >= 8:
            assert not (8 <= c < 13 and nxt < 13)
            if rnd == 0 and nxt == 8 and i < 5: e('s_barrier')
            if nxt == 12 and vm.has('late'): vm.wait('late')
            if nxt >= 13: vm.wait(f'w{nxt}')
            front = rd(nxt, afrag(nxt))
        if rnd == 1 and c in (8, 9, 10):
            vm.room(8)
            late += wdma(c + 5)
        if rnd == 1 and c == 15: late += fin
        if rnd == 1 and c == 6: late += pwrite(0)
        if rnd == 1 and c == 5: late += fin2
        m = mms(c, rnds)
        late += T.pump()
        gaps(e, m, front, late, per=3, late_from=0 if not front else 2)
        for r_ in rnds: T.free += T.where[(r_, c)]
    assert not T.todo
    vm.stamp(o, 7)
    e('s_nop 7'); e('s_nop 3')
    e.many(pwrite(1))
    e('s_waitcnt lgkmcnt(0)')
    e('s_barrier')
    for i in range(2):
        for p in range(4):
            for hh in range(2):
                e(f'ds_read_b128 {vr(96+32*i+8*p+4*hh,4)}, v{RDA+2*i+hh} offset:{8192*p}')
    for i in range(2):
        b = 96 + 32 * i
        e(f's_waitcnt lgkmcnt({8*(1-i)})')
        for j in range(8):
            e(f'v_add_f32 v{b+j}, v{b+j}, v{b+8+j}')
            e(f'v_add_f32 v{b+16+j}, v{b+16+j}, v{b+24+j}')
        for j in range(8): e(f'v_add_f32 v{b+j}, v{b+j}, v{b+16+j}')
        for j in range(4): e(f'v_cvt_pk_bf16_f32 v{b+8+j}, v{b+2*j}, v{b+2*j+1}')
        if i: e(f's_add_u32 s{S_OO}, s{S_OO}, {8*2560}')
        e(f'buffer_store_dwordx4 {vr(b+8,4)}, v{VOUT}, {sr(S_OUT,4)}, s{S_OO} offen {o.out_flags}')
    if o.stamps:
        e('s_waitcnt vmcnt(0)')
        stamp(e, o, 14)

KD = '''.amdhsa_kernel {n}
  .amdhsa_next_free_vgpr 512
  .amdhsa_next_free_sgpr 102
  .amdhsa_accum_offset 256
  .amdhsa_group_segment_fixed_size 0
  .amdhsa_kernarg_size 104
  .amdhsa_user_sgpr_count 2
  .amdhsa_user_sgpr_kernarg_segment_ptr 1
  .amdhsa_system_sgpr_workgroup_id_x 1
.end_amdhsa_kernel
'''

def gen(o):
    e = Em()
    k1 = NAME + '_kernel'
    e.raw('; @launch grid=(256,1,1) block=(256,1,1) lds=163840')
    e.raw('.amdgcn_target "amdgcn-amd-amdhsa--gfx950"')
    e.raw('.text')
    e.raw(f'.globl {k1}\n.p2align 8\n.type {k1},@function')
    e.lab(k1)
    prologue(e, o)
    e(f's_cmp_eq_u32 s{S_WAVE}, 3')
    e('s_cbranch_scc1 L_loader')
    phase_a(e, o)
    T = phase_b(e, o)
    n0 = T.vm.out()
    pre = T.pump(o.npre)
    npre = T.vm.out() - n0
    e.many(pre)
    e(f's_waitcnt vmcnt({npre}) lgkmcnt(0)')
    e('s_barrier')
    if o.stamps:
        T.vm.stamp(o, 3)
    e('s_branch L_join')
    e.lab('L_loader')
    loader(e, o)
    e.many(pre)
    if o.stamps:
        stamp(e, o, 3)
    e.lab('L_join')
    tail(e, o, T)
    e.lab('L_exit')
    e('s_endpgm')
    e.raw('.section .rodata,"a"\n.p2align 6')
    e.raw(KD.format(n=k1))
    return e.text()

if __name__ == '__main__':
    o = Opt()
    out = sys.argv[1]
    for a in sys.argv[2:]:
        k, v = a.split('=', 1); v = v.replace('+', ' ')
        cur = getattr(o, k)
        setattr(o, k, (v == '1') if isinstance(cur, bool) else int(v) if isinstance(cur, int) else v)
    open(out, 'w').write(gen(o))
```

```python
import sys, math, struct
NAME = 'concat_heads__mha_block_cached__mha_block_cached__near_ridge'

class Opt:
    stamps = False
    kv_flags = 'nt'
    w_flags = ''
    wo_flags = ''
    ost_flags = 'sc1'
    old_flags = 'sc1'
    look = 7
    rot = 3
    tickst = 0
    no_w = False
    no_w3 = False
    t_now = False
    t_o1 = False
    t_noo = False
    c8late = True
    pf_kv = 0
    pf_wo = True
    pf_a = False
    pf_w = False
    pf_delay = 0
    pf_s0 = 2
    pf_mid = 0
    pf_flags = ''
    pf_tail = 0
    bal = 0
    bal_lag = 2
    bal_n = 1
    bal_sl = 0
    tagk = 10
    thr_end = 28
    k_first = False
    k_s0 = 0
    tlb = True
    aper = 4
    out_flags = ''
    tsched = 0
    park = True
    gran = 16
    a_skip = ''
    w3 = False
    w3k = 23
    pl_at = 3
    fav = 0
    t15 = True
    nearly = 0
    npre = 3
    pk = True
    v1_late = True
    look_lo = 5
    look_k0 = 0
    look_k1 = 0
    krot = False
    early = True
    chk = 7
    bal_k1 = 30
    psleep = 4
    thr = 16
    blk = 0

WS_FLAGS = 12582912
WS_PROG = WS_FLAGS + 32768
WS_STAMP = 13631488
SLOT = 16384
STAGE = 40960
RND = 12 * 32 * 8192

S_X, S_K, S_V, S_WQ, S_WO, S_OUT, S_WS = 4, 8, 12, 16, 20, 24, 28
S_DBG = 32
S_WAVE, S_BR, S_H, S_BL = 34, 35, 36, 37
S_T0, S_T1, S_T2, S_T3 = 38, 39, 40, 41
S_KX, S_XB, S_XL, S_KVB, S_TICK = 42, 43, 44, 45, 46
S_KOFF, S_VOFF, S_THR, S_FLOOR, S_C, S_OB, S_WQB = 47, 48, 49, 50, 51, 52, 53
S_ST, S_STB, S_QT, S_NT = 54, 56, 57, 58
S_SAVE = 60
S_WN, S_FL = 62, 63
S_EV = 59
S_KARG = 64
S_WOB, S_O1, S_QB, S_CNT, S_RHO, S_WC, S_N, S_KR = 90, 91, 92, 93, 94, 95, 96, 97

V_LANE = 1
V_T0, V_T1, V_T2, V_T3 = 2, 3, 4, 5
V_L, V_MX, V_D = 6, 10, 11
V_DMA = 12
V_KA, V_VA, V_OST, V_WA = 16, 24, 28, 29
V_NEGM = 32
V_SA, V_SB, V_P, V_TMP = 48, 64, 80, 88
V_Q, V_KF, V_VF, V_Q2 = 96, 128, 160, 192

class Em:
    def __init__(self): self.L = []
    def __call__(self, s): self.L.append('    ' + s)
    def lab(self, s): self.L.append(s + ':')
    def raw(self, s): self.L.append(s)
    def many(self, l):
        for x in l: self(x)
    def text(self): return '\n'.join(self.L) + '\n'

def vr(b, n=1): return f'v{b}' if n == 1 else f'v[{b}:{b+n-1}]'
def ar(b, n=1): return f'a{b}' if n == 1 else f'a[{b}:{b+n-1}]'
def sr(b, n=1): return f's{b}' if n == 1 else f's[{b}:{b+n-1}]'
def mfma(d, a, b, c): return f'v_mfma_f32_32x32x16_bf16 {d}, {a}, {b}, {c}'
def hold(ci, off, n):
    return ar(64 + 32 * ci + off, n) if ci < 6 else vr(192 + 32 * (ci - 6) + off, n)

def hold3(ci, off, n):
    return hold(ci, off, n) if ci < 8 else vr(64 + 32 * (ci - 8) + off, n)
def reg4(r): return ar(r - 1000, 4) if r >= 1000 else vr(r, 4)

def cost(i):
    if i.startswith('v_exp') or i.startswith('v_rcp'): return 8
    if i.startswith('s_'): return 2
    return 4

def interleave(e, mf, fill):
    total = sum(cost(f) for f in fill if not isinstance(f, tuple))
    per = total / len(mf)
    fi = 0; acc = 0.0
    deadline = {}; items = []
    for f in fill:
        if isinstance(f, tuple):
            if f[0] == 'M': deadline[f[1]] = len(items)
            else: items.append(f)
        else: items.append(f)
    for k, m in enumerate(mf):
        need = deadline.get(k, 0)
        while fi < need:
            it = items[fi]; fi += 1
            if isinstance(it, tuple):
                assert it[1] < k, (it, k)
                continue
            e(it); acc += cost(it)
        if isinstance(m, (list, tuple)): e.many(m)
        else: e(m)
        target = per * (k + 1)
        while fi < len(items) and (acc < target - 1.0 or k == len(mf) - 1):
            it = items[fi]
            if isinstance(it, tuple):
                if it[1] > k: break
                fi += 1; continue
            e(it); acc += cost(it); fi += 1
    assert fi == len(items)

def gaps(e, mf, front, late=(), per=2, late_from=5):
    g = [[] for _ in mf]
    for i, f in enumerate(front): g[min(i // per, len(mf) - 1)].append(f)
    n = len(mf) - late_from
    for i, f in enumerate(late): g[late_from + (i * n) // len(late)].append(f)
    for m, x in zip(mf, g):
        sk = getattr(e, 'skip', '')
        if 'm' not in sk: e(m)
        e.many([y for y in x if not (('r' in sk and y.startswith('ds_read')) or ('d' in sk and y.startswith('buffer_load_dwordx4 v') and ('s[4:7]' in y or 's[16:19]' in y)))])

def stamp(e, o, idx, clk=False):
    if not o.stamps: return 0
    e(f's_memtime {sr(S_ST,2)}' if clk else f's_memrealtime {sr(S_ST,2)}')
    e('s_waitcnt lgkmcnt(0)')
    e(f'v_mov_b32 v{V_T0}, s{S_ST}')
    e(f'v_mov_b32 v{V_T1}, s{S_STB}')
    e('s_mov_b64 exec, 1')
    e(f'buffer_store_dword v{V_T0}, v{V_T1}, {sr(S_WS,4)}, 0 offen offset:{4*idx}')
    e('s_mov_b64 exec, -1')
    return 1

LAZY = {0: 98, 1: 100}
for _i in range(2, 15): LAZY[_i] = 64 + 2 * (_i - 2)
def lazy(e, o, i):
    if o.stamps: e(f's_memrealtime s[{LAZY[i]}:{LAZY[i]+1}]')
def lazy_dump(e, o, ids):
    if not o.stamps: return 0
    e('s_waitcnt lgkmcnt(0)')
    e(f'v_mov_b32 v{V_T1}, s{S_STB}')
    e('s_mov_b64 exec, 1')
    for i in ids:
        e(f'v_mov_b32 v{V_T0}, s{LAZY[i]}')
        e(f'buffer_store_dword v{V_T0}, v{V_T1}, {sr(S_WS,4)}, 0 offen offset:{16 if i == 0 else 4*(16+i)}')
        e('s_nop 1')
    e('s_mov_b64 exec, -1')
    return len(ids)

class Vm:
    def __init__(self, e): self.e = e; self.q = []
    def out(self): return sum(c for _, c in self.q)
    def has(self, name): return name in [n for n, _ in self.q]
    def wait(self, name):
        names = [n for n, _ in self.q]
        if name not in names: return
        i = names.index(name)
        rest = sum(c for _, c in self.q[i + 1:])
        assert rest <= 63
        self.e(f's_waitcnt vmcnt({rest})')
        self.q = self.q[i + 1:]
    def room(self, c):
        while self.out() + c > 61: self.wait(self.q[0][0])
    def add(self, name, c):
        self.q.append((name, c)); assert self.out() <= 63, self.q
    def stamp(self, o, idx, clk=False):
        if o.stamps:
            self.room(1); stamp(self.e, o, idx, clk); self.add(f'st{idx}', 1)

def prologue(e, o):
    if o.stamps: e('s_memrealtime s[98:99]')
    e('s_cmp_ge_u32 s2, 256')
    e('s_cbranch_scc1 L_exit')
    e(f's_load_dwordx16 {sr(S_KARG,16)}, s[0:1], 0')
    e(f's_load_dwordx8 {sr(S_KARG+16,8)}, s[0:1], 64')
    e(f's_load_dwordx2 {sr(S_KARG+24,2)}, s[0:1], 96')
    e(f'v_lshrrev_b32 v{V_T0}, 6, v0')
    e(f'v_and_b32 v{V_LANE}, 63, v0')
    e(f'v_readfirstlane_b32 s{S_WAVE}, v{V_T0}')
    e(f's_and_b32 s{S_T0}, s2, 7')
    e(f's_lshr_b32 s{S_T1}, s2, 3')
    e(f's_lshr_b32 s{S_BR}, s{S_T0}, 2')
    e(f's_and_b32 s{S_T2}, s{S_T0}, 3')
    e(f's_lshl_b32 s{S_H}, s{S_T2}, 3')
    e(f's_and_b32 s{S_T3}, s{S_T1}, 7')
    e(f's_add_u32 s{S_H}, s{S_H}, s{S_T3}')
    e(f's_lshr_b32 s{S_BL}, s{S_T1}, 3')
    e(f's_mul_i32 s{S_KX}, s{S_BL}, 5')
    e(f's_add_u32 s{S_KX}, s{S_KX}, 1')
    e(f's_lshr_b32 s{S_KX}, s{S_KX}, 1')
    e(f's_add_u32 s{S_KX}, s{S_KX}, s{S_T3}')
    e(f's_cmp_ge_u32 s{S_KX}, 10')
    e(f's_cselect_b32 s{S_T3}, 10, 0')
    e(f's_sub_u32 s{S_KX}, s{S_KX}, s{S_T3}')
    if o.blk == 0:
        e(f's_mul_i32 s{S_QT}, s{S_T1}, 13')
        e(f's_lshr_b32 s{S_QT}, s{S_QT}, 6')
        e(f's_mul_i32 s{S_T3}, s{S_QT}, 5')
        e(f's_sub_u32 s{S_NT}, s{S_T1}, s{S_T3}')
        e(f's_and_b32 s{S_T3}, s{S_T2}, 1')
        e(f's_mul_i32 s{S_T3}, s{S_T3}, 5')
        e(f's_add_u32 s{S_NT}, s{S_NT}, s{S_T3}')
        e(f's_lshr_b32 s{S_T3}, s{S_T2}, 1')
        e(f's_mul_i32 s{S_T3}, s{S_T3}, 6')
        e(f's_add_u32 s{S_QT}, s{S_QT}, s{S_T3}')
    elif o.blk == 1:
        e(f's_mul_i32 s{S_QT}, s{S_T1}, 26')
        e(f's_lshr_b32 s{S_QT}, s{S_QT}, 8')
        e(f's_mul_i32 s{S_T3}, s{S_QT}, 10')
        e(f's_sub_u32 s{S_NT}, s{S_T1}, s{S_T3}')
        e(f's_mul_i32 s{S_T3}, s{S_T2}, 3')
        e(f's_add_u32 s{S_QT}, s{S_QT}, s{S_T3}')
    else:
        e(f's_mul_i32 s{S_T3}, s{S_T2}, 30')
        e(f's_add_u32 s{S_T3}, s{S_T3}, s{S_T1}')
        e(f's_mul_i32 s{S_NT}, s{S_T3}, 171')
        e(f's_lshr_b32 s{S_NT}, s{S_NT}, 11')
        e(f's_mul_i32 s{S_QT}, s{S_NT}, 12')
        e(f's_sub_u32 s{S_QT}, s{S_T3}, s{S_QT}')
    e(f's_cmp_ge_u32 s{S_T1}, 30')
    e(f's_cselect_b32 s{S_NT}, 15, s{S_NT}')
    e(f's_cselect_b32 s{S_QT}, 0, s{S_QT}')
    e(f's_mul_i32 s{S_QB}, s{S_QT}, 11')
    e(f's_lshr_b32 s{S_QB}, s{S_QB}, 5')
    e(f's_lshl_b32 s{S_STB}, s2, 2')
    e(f's_add_u32 s{S_STB}, s{S_STB}, s{S_WAVE}')
    e(f's_lshl_b32 s{S_STB}, s{S_STB}, 8')
    e(f's_add_u32 s{S_STB}, s{S_STB}, {WS_STAMP}')
    e(f's_lshl_b32 s{S_XL}, s{S_WAVE}, 13')
    e(f's_lshl_b32 s{S_WOB}, s{S_NT}, 7')
    e(f's_cmp_ge_u32 s{S_NT}, 5')
    e(f's_cselect_b32 s{S_T0}, {5 if o.blk == 0 else 0}, 0')
    e(f's_sub_u32 s{S_RHO}, s{S_NT}, s{S_T0}')
    e(f's_mul_i32 s{S_RHO}, s{S_RHO}, {o.rot}')
    e(f's_and_b32 s{S_RHO}, s{S_RHO}, 15')
    for srd, size in ((S_X, 983040), (S_K, 1 << 26), (S_V, 1 << 26), (S_WQ, 5242880), (S_WO, 5242880), (S_OUT, 1966080), (S_WS, 16777216)):
        e(f's_mov_b32 s{srd+2}, {size}')
        e(f's_mov_b32 s{srd+3}, 0x20000')

def srds(e, o):
    e('s_waitcnt lgkmcnt(0)')
    e(f's_cmp_eq_u32 s{S_BR}, 0')
    for srd, i in ((S_WQ, 3), (S_X, 0), (S_K, 1), (S_V, 2), (S_WO, 4)):
        e(f's_cselect_b64 {sr(srd,2)}, {sr(S_KARG+2*i,2)}, {sr(S_KARG+10+2*i,2)}')
    e(f's_mov_b64 {sr(S_OUT,2)}, {sr(S_KARG+20,2)}')
    e(f's_mov_b64 {sr(S_WS,2)}, {sr(S_KARG+24,2)}')
    e(f's_mov_b64 {sr(S_DBG,2)}, {sr(S_KARG+22,2)}')
    for srd in (S_WQ, S_X, S_K, S_V, S_WO, S_OUT, S_WS):
        e(f's_and_b32 s{srd+1}, s{srd+1}, 0xffff')
    lazy(e, o, 1)

def no_task_wo(e):
    e(f's_cmp_eq_u32 s{S_NT}, 15')
    e(f's_cselect_b32 s{S_WO+2}, 0, s{S_WO+2}')

RING = 32768
PF_TICKS = [0, 1, 6, 10, 15, 19, 22, 24, 25, 26, 27]
def reg_w(s): return (32768, 73728, 114688)[(s + 2) % 3]
def reg_x(s): return (49152, 90112, 0)[(s + 2) % 3]

SEQ = ['K0']
for k in range(32): SEQ += [f'K{k+1}', f'V{k}']
SEQ += [f'T{i}' for i in range(8)]
POS = {n: i for i, n in enumerate(SEQ)}
def slot(name): return (6 + POS[name]) % 8
def slot_addr(name): return RING + slot(name) * SLOT

def wo_dma(o, c, ldsbase_s, ldsoff, wob, vw, dyn=False):
    r = []
    if o.no_w and dyn: return ['s_nop 0']
    if dyn:
        r += [f's_mul_i32 s{S_T0}, s{S_WC}, {64*1280}', f's_add_u32 s{S_WC}, s{S_WC}, 1', f's_and_b32 s{S_WC}, s{S_WC}, 15']
    else:
        r += [f's_add_u32 s{S_T0}, s{S_RHO}, {c}', f's_and_b32 s{S_T0}, s{S_T0}, 15', f's_mul_i32 s{S_T0}, s{S_T0}, {64*1280}']
    r.append(f's_add_u32 s{S_T0}, s{S_T0}, {wob}')
    for g_ in range(2):
        r.append(f's_add_u32 m0, {ldsbase_s}, {ldsoff + 4096*g_}' if ldsbase_s else f's_mov_b32 m0, {ldsoff + 4096*g_}')
        r.append(f's_add_u32 s{S_T1}, s{S_T0}, {32*g_*1280}')
        for i in range(4):
            r.append(f'buffer_load_dwordx4 v{vw+i}, {sr(S_WO,4)}, s{S_T1} offen offset:{1024*i} {o.wo_flags} lds')
    return r

def wo_voffs(e, dst):
    L = V_LANE
    e(f'v_lshrrev_b32 v{V_T0}, 3, v{L}')
    e(f'v_mul_u32_u24 v{V_T0}, 1280, v{V_T0}')
    e(f'v_bfe_u32 v{V_T1}, v{L}, 4, 1')
    e(f'v_lshlrev_b32 v{V_T1}, 2, v{V_T1}')
    e(f'v_and_b32 v{V_T2}, 7, v{L}')
    e(f'v_xor_b32 v{V_T1}, v{V_T1}, v{V_T2}')
    e(f'v_lshl_add_u32 v{dst}, v{V_T1}, 4, v{V_T0}')
    for i in range(1, 4): e(f'v_add_u32 v{dst+i}, {(10240-1024)*i}, v{dst}')

def wo_lane_addr(e, dst):
    L = V_LANE
    e(f'v_lshrrev_b32 v{V_T0}, 5, v{L}')
    e(f'v_bfe_u32 v{V_T1}, v{L}, 2, 2')
    e(f'v_lshl_add_u32 v{dst}, v{V_T0}, 2, v{V_T1}')
    e(f'v_lshlrev_b32 v{dst}, 7, v{dst}')
    e(f'v_bfe_u32 v{V_T3}, v{L}, 3, 1')
    e(f'v_lshl_add_u32 v{dst}, v{V_T3}, 6, v{dst}')
    e(f'v_bfe_u32 v{V_T3}, v{L}, 4, 1')
    e(f'v_lshl_add_u32 v{dst}, v{V_T3}, 5, v{dst}')
    e(f'v_and_b32 v{V_T3}, 3, v{L}')
    e(f'v_lshl_add_u32 v{dst}, v{V_T3}, 3, v{dst}')

def wo_reads(dstf, a0, a1, off):
    r = []
    for s4 in range(4):
        for nt in range(2):
            for u in range(2):
                r.append(f'ds_read_b64_tr_b16 {dstf(8*s4+4*nt+2*u,2)}, v{(a0,a1)[nt]} offset:{off+(16*s4+8*u)*128}')
    return r

def poll(e, o, tag, load, test):
    e.many(test)
    e('s_cmp_eq_u64 vcc, -1')
    e(f's_cbranch_scc1 L_polled_{tag}')
    e(f's_mov_b32 s{S_CNT}, 0x400000')
    e.lab(f'L_poll_{tag}')
    e(f's_sleep {o.psleep}')
    e(load)
    e('s_waitcnt vmcnt(0)')
    e.many(test)
    e('s_cmp_eq_u64 vcc, -1')
    e(f's_cbranch_scc1 L_polled_{tag}')
    e(f's_sub_u32 s{S_CNT}, s{S_CNT}, 1')
    e(f's_cmp_lg_u32 s{S_CNT}, 0')
    e(f's_cbranch_scc1 L_poll_{tag}')
    e.lab(f'L_polled_{tag}')

def loader(e, o):
    L = V_LANE
    VK, VV, VW, VWO, VF, VP, VZ = 24, 16, 20, 12, 17, 18, 19
    VA, VB = 96, 100
    AF = [48, 56]; BF = [64, 80]; ACC = 128
    vm = Vm(e)
    e(f'v_lshrrev_b32 v{V_T0}, 4, v{L}')
    e(f'v_and_b32 v{V_T1}, 15, v{L}')
    e(f'v_lshlrev_b32 v{V_T3}, 2, v{V_T0}')
    e(f'v_xor_b32 v{V_T3}, v{V_T3}, v{V_T1}')
    e(f'v_lshlrev_b32 v{V_T2}, 8, v{V_T0}')
    e(f'v_lshl_add_u32 v{VV}, v{V_T3}, 4, v{V_T2}')
    for i in range(4):
        e(f'v_add_u32 v{V_T3}, {4*i}, v{V_T0}')
        e(f'v_xor_b32 v{V_T3}, v{V_T3}, v{V_T1}')
        e(f'v_lshl_add_u32 v{VK+i}, v{V_T3}, 4, v{V_T2}')
    e(f's_lshl_b32 s{S_KVB}, s{S_BL}, 5')
    e(f's_add_u32 s{S_KVB}, s{S_KVB}, s{S_H}')
    e(f's_lshl_b32 s{S_KVB}, s{S_KVB}, 18')
    e(f's_and_b32 s{S_KR}, s2, 7')
    e(f's_lshl_b32 s{S_KR}, s{S_KR}, 1')
    e(f's_lshr_b32 s{S_T0}, s2, 3')
    e(f's_add_u32 s{S_KR}, s{S_KR}, s{S_T0}')
    e(f's_and_b32 s{S_KR}, s{S_KR}, {15 if o.krot else 0}')
    e(f's_lshl_b32 s{S_KR}, s{S_KR}, 14')
    e(f'v_lshlrev_b32 v{VW}, 19, v{L}')
    e(f'v_lshlrev_b32 v{VW+1}, 25, v{L}')
    e(f'v_mov_b32 v{VZ}, 0')
    e(f'v_lshlrev_b32 v{VW+3}, 18, v{L}')
    e(f's_lshl_b32 s{S_T0}, s{S_BR}, 2')
    e(f's_add_u32 s{S_FL}, s{S_T0}, s{S_BL}')
    e(f's_lshl_b32 s{S_FL}, s{S_FL}, 5')
    e(f's_add_u32 s{S_FL}, s{S_FL}, s{S_H}')
    e(f's_lshl_b32 s{S_FL}, s{S_FL}, 7')
    e(f's_add_u32 s{S_FL}, s{S_FL}, {WS_FLAGS}')
    e(f's_mul_i32 s{S_T2}, s{S_BR}, 8')
    e(f's_add_u32 s{S_T2}, s{S_T2}, s{S_BL}')
    e(f's_mul_i32 s{S_T2}, s{S_T2}, 96')
    e(f's_add_u32 s{S_T2}, s{S_T2}, s{S_H}')
    e(f's_lshl_b32 s{S_T2}, s{S_T2}, 13')
    srds(e, o)
    if o.tlb:
        e('s_mov_b64 exec, 3')
        e(f'buffer_load_dword v{VW+2}, v{VW+1}, {sr(S_K,4)}, s{S_KVB} offen')
        e(f'buffer_load_dword v{VW+2}, v{VW+1}, {sr(S_V,4)}, s{S_KVB} offen')
        e('s_mov_b64 exec, 0x3ffffff')
        e(f'buffer_load_dword v{VW+2}, v{VW}, {sr(S_WO,4)}, 0 offen')
        e(f'buffer_load_dword v{VW+2}, v{VW}, {sr(S_OUT,4)}, 0 offen')
        e('s_mov_b64 exec, 0x7007')
        e(f'buffer_load_dword v{VW+2}, v{VW+3}, {sr(S_WS,4)}, s{S_T2} offen')
        e('s_mov_b64 exec, 1')
        e(f'buffer_load_dword v{VW+2}, v{VZ}, {sr(S_WS,4)}, s{S_FL} offen')
        e('s_mov_b64 exec, -1')
        vm.add('tlb', 6)
    def issue_l(name):
        kind, t = name[0], int(name[1:])
        r = []
        if kind == 'K' and t > 31: return r
        base = slot_addr(name)
        if kind in 'KV':
            off = (t // 16) * (4 * 32 * 262144)
            r.append(f's_add_u32 s{S_T0}, s{S_KR}, {(t % 16) * SLOT}')
            r.append(f's_and_b32 s{S_T0}, s{S_T0}, {16 * SLOT - 1}')
            r.append(f's_add_u32 s{S_T0}, s{S_T0}, s{S_KVB}')
            for g in range(4):
                r.append(f's_mov_b32 m0, {base + 4096*g}')
                r.append(f's_add_u32 s{S_T1}, s{S_T0}, {off + 4096*g}')
                for i in range(4):
                    v = VK + i if kind == 'K' else VV
                    r.append(f'buffer_load_dwordx4 v{v}, {sr(S_K if kind == "K" else S_V,4)}, s{S_T1} offen offset:{1024*i} {o.kv_flags} lds')
        else:
            rr = slot(name); j, hi = 1 + (rr >> 1), rr & 1
            if j == 4: return r
            for p in range(2):
                r.append(f's_add_u32 s{S_T2}, s{S_WOB}, {1024*1280*(2*hi+p)}')
                r += wo_dma(o, (12 if (o.w3 and hi and p) else 8) + j, None, base + 8192 * p, f's{S_T2}', VWO)
        return r
    def issue(name):
        r = issue_l(name)
        if r:
            vm.room(16); e.many(r); vm.add(name, 16)
    def own_w(c):
        vm.room(8)
        e(f's_add_u32 s{S_T2}, s{S_WOB}, {1024*1280*3}')
        e.many(wo_dma(o, c, None, 3 * 8192, f's{S_T2}', VWO))
        vm.add(f'w{c}', 8)
    def wait_upto(n):
        for m in range(n, -1, -1):
            if vm.has(SEQ[m]): vm.wait(SEQ[m]); return
    def flag(val):
        return [f's_add_u32 s{S_T0}, s{S_N}, {val}', f'v_mov_b32 v{V_T2}, s{S_T0}', 's_mov_b64 exec, 1',
                f'buffer_store_dword v{V_T2}, v{VZ}, {sr(S_WS,4)}, s{S_FL} offen sc1', 's_mov_b64 exec, -1']
    if o.pf_a:
        if o.pf_delay: e(f's_sleep {o.pf_delay}')
        e(f'v_lshrrev_b32 v{VW}, 1, v{L}')
        e(f'v_lshlrev_b32 v{VW}, 13, v{VW}')
        e(f'v_and_b32 v{VW+1}, 1, v{L}')
        e(f'v_lshl_add_u32 v{VW}, v{VW+1}, 7, v{VW}')
        e(f's_mul_i32 s{S_T0}, s{S_BL}, {160*8192}')
        e(f's_lshl_b32 s{S_T1}, s{S_H}, 8')
        e(f's_add_u32 s{S_T0}, s{S_T0}, s{S_T1}')
        for i in range(5):
            e(f's_add_u32 s{S_T1}, s{S_T0}, {32*i*8192}')
            e(f'buffer_load_dword v{VW+2}, v{VW}, {sr(S_WQ,4)}, s{S_T1} offen {o.w_flags}')
        e(f'v_lshlrev_b32 v{VW+1}, 7, v{L}')
        e(f's_and_b32 s{S_T0}, s{S_H}, 7')
        e(f's_mul_i32 s{S_T0}, s{S_T0}, 15360')
        e(f's_mul_i32 s{S_T1}, s{S_BL}, 122880')
        e(f's_add_u32 s{S_T0}, s{S_T0}, s{S_T1}')
        for i in range(4):
            e(f's_add_u32 s{S_T1}, s{S_T0}, {(i >> 1) * 491520 + (i & 1) * 8192}')
            e(f'buffer_load_dword v{VW+2}, v{VW+1}, {sr(S_X,4)}, s{S_T1} offen {o.w_flags}')
        vm.add('pfa', 9)
    if o.k_first: issue('K0'); issue('K1')
    e('s_cmp_lg_u32 s2, 0')
    e('s_cbranch_scc1 L_notag')
    e(f's_memrealtime {sr(S_ST,2)}')
    e('s_waitcnt lgkmcnt(0)')
    e(f's_mul_i32 s{S_ST+1}, s{S_ST+1}, 0x9e3779b1')
    e(f's_add_u32 s{S_ST}, s{S_ST}, s{S_ST+1}')
    e(f's_or_b32 s{S_ST}, s{S_ST}, 4')
    e(f's_and_b32 s{S_ST}, s{S_ST}, -4')
    e(f'v_mov_b32 v{V_T2}, s{S_ST}')
    e('s_mov_b64 exec, 1')
    e(f'global_store_dword v{VZ}, v{V_T2}, {sr(S_DBG,2)} sc1')
    e('s_mov_b64 exec, -1')
    e.lab('L_notag')
    e(f's_lshl_b32 s{S_T0}, s{S_BR}, 2')
    e(f's_add_u32 s{S_T0}, s{S_T0}, s{S_QB}')
    e(f's_lshl_b32 s{S_T0}, s{S_T0}, 12')
    e(f's_add_u32 s{S_T0}, s{S_T0}, {WS_FLAGS}')
    e(f'v_and_b32 v{VP}, 31, v{L}')
    e(f'v_lshlrev_b32 v{VP}, 7, v{VP}')
    e(f'v_add_u32 v{VP}, s{S_T0}, v{VP}')
    a_addr(e, VA, VB, None)
    wo_voffs(e, VWO)
    wo_lane_addr(e, V_WA)
    e(f'v_lshlrev_b32 v{VW}, 7, v{L}')
    e(f'v_add_u32 v{V_WA}, {3*8192}, v{V_WA}')
    e(f'v_xor_b32 v{V_WA+1}, 64, v{V_WA}')
    e(f'v_lshlrev_b32 v{V_OST}, 4, v{L}')
    e(f's_mov_b32 s{S_C}, {SCALE}')
    pf = []
    for n in range(2, 2 + o.pf_kv):
        kind, t = SEQ[n][0], int(SEQ[n][1:])
        for hh in range(2):
            pf.append([f's_add_u32 s{S_T1}, s{S_KVB}, {t*SLOT + hh*8192}',
                       f'buffer_load_dword v{VW+1}, v{VW}, {sr(S_K if kind == "K" else S_V,4)}, s{S_T1} offen {o.pf_flags}'])
    if o.pf_wo:
        e(f's_lshl_b32 s{S_T2}, s{S_H}, 2')
        e(f's_add_u32 s{S_T2}, s{S_T2}, s{S_BL}')
        e(f's_mul_i32 s{S_T2}, s{S_T2}, 40960')
        for i in range(5):
            pf.append([f's_add_u32 s{S_T1}, s{S_T2}, {i*8192}',
                       f'buffer_load_dword v{VW+1}, v{VW}, {sr(S_WO,4)}, s{S_T1} offen {o.pf_flags}'])
    def reads(s4, buf):
        r = []
        for t in (2, 3):
            for u in range(2):
                r.append(f'ds_read_b64_tr_b16 {vr(AF[buf]+4*(t-2)+2*u,2)}, v{VA+t} offset:{(16*s4+4*u)*256}')
        r += [f'ds_read_b128 {vr(BF[buf]+4*j,4)}, v{VB+s4} offset:{8192*j + 4096}' for j in range(3)]
        return r
    def mf(buf, first):
        r = []
        for j in range(3):
            for t in range(2):
                d = vr(ACC + 32 * j + 16 * t, 16)
                r.append(mfma(d, vr(AF[buf] + 4 * t, 4), vr(BF[buf] + 4 * j, 4), '0' if first else d))
        return r
    extra = {}
    def ride(step, name, ins, cnt):
        extra.setdefault(step, []).append((name, ins, cnt))
    if not o.k_first:
        for i, nm in enumerate(('K0', 'K1')):
            ins = issue_l(nm)
            for q in range(4): ride(4 * o.k_s0 + 4 * i + q, nm if q == 3 else None, ins[(3 + 6 * q if q else 0):3 + 6 * q + 6], 4)
    npf = 4 * (7 - o.pf_s0)
    for i, x in enumerate(pf): ride(4 * o.pf_s0 + (i * npf) // max(len(pf), 1), 'pf', x, 1)
    for i, nm in enumerate(('V0', 'K2')):
        ins = issue_l(nm)
        for q in range(2): ride(31 + 2 * i + q, nm if q == 1 else None, ins[(15 if q else 0):3 + 12 * q + 12], 8)
    ins = issue_l('V1')
    for q in range(0 if o.v1_late else 2): ride(35 + q, 'V1' if q == 1 else None, ins[(15 if q else 0):3 + 12 * q + 12], 8)
    e('s_barrier')
    e.many(reads(0, 0))
    e.skip = o.a_skip
    for s in range(10):
        for s4 in range(4):
            step = 4 * s + s4; buf = step & 1
            e('s_waitcnt lgkmcnt(0)')
            if step == 31: no_task_wo(e)
            if s4 == 3:
                if s == 9: vm.wait('K1')
                e('s_barrier')
            late = []
            for name, ins, cnt in extra.get(step, []):
                vm.room(cnt); late += ins; vm.add(name or 'part', cnt)
            if s4 == 2 and s < 9: late += a_step(s, VA)
            front = reads((s4 + 1) & 3, buf ^ 1) if step < 39 else []
            gaps(e, mf(buf, step == 0), front, late, per=max(o.aper - 1, 3), late_from=(2 if s4 == 2 else 1))
    e.skip = ''
    if o.v1_late: issue('V1')
    e('s_nop 7'); e('s_nop 3')
    for j in range(3):
        for i in range(16): e.many(conv(i, ACC + 32 * j, ACC + 32 * j))
        for f in range(4): e(f'ds_write_b128 v{V_OST}, {vr(ACC+32*j+4*f,4)} offset:{8192*j + 1024*f}')
    e('s_waitcnt lgkmcnt(0)')
    issue('K3')
    issued = POS['K3']
    e(f's_lshr_b32 s{S_WC}, s2, 3')
    e(f's_mul_i32 s{S_KX}, s{S_WC}, 13')
    e(f's_lshr_b32 s{S_KX}, s{S_KX}, 6')
    vm.wait('pfa')
    e(f'v_mul_u32_u24 v{VW+2}, 1280, v{L}')
    vm_pg = [None]
    ld_own = f'buffer_load_dword v23, v22, {sr(S_WS,4)}, 0 offen sc1'
    T3 = Tail(e, o); T3.vm = vm
    T3.free = [1000 + r for r in range(32, 64, 4)]
    e.T3 = T3
    def shadow_mm(c, first):
        m = []
        af = (lambda off, n: hold3(c, off, n)) if c < 12 else (lambda off, n: vr(32 + off, n))
        for s4 in range(4):
            for nt in range(2):
                d = ar(16 * nt, 16)
                m.append(mfma(d, af(8 * s4 + 4 * nt, 4), reg4(T3.where[(0, c)][s4]), '0' if (first and s4 == 0) else d))
        return m
    ld_cnt = f'global_load_dword v23, v{VZ}, {sr(S_DBG,2)} sc1'
    ld_fl = f'buffer_load_dword v23, v{VP}, {sr(S_WS,4)}, 0 offen sc1'
    for k in range(32):
        wait_upto(POS[f'V{k}'])
        vm.stamp(o, 32 + k) if o.tickst == 1 else None
        e('s_barrier')
        vm.stamp(o, 32 + k) if o.tickst == 2 else None
        if k == (18 if o.t15 else 19):
            vm.room(1); e.many(flag(1)); vm.add('f1', 1)
        if o.pf_w and k in PF_TICKS:
            vm.room(1)
            e(f's_add_u32 s{S_T0}, s{S_KX}, {6 * PF_TICKS.index(k)}')
            e(f's_and_b32 s{S_T2}, s{S_T0}, 3')
            e(f's_lshl_b32 s{S_T2}, s{S_T2}, 4')
            e(f's_lshr_b32 s{S_T0}, s{S_T0}, 2')
            e(f's_add_u32 s{S_T0}, s{S_T0}, s{S_RHO}')
            e(f's_and_b32 s{S_T0}, s{S_T0}, 15')
            e(f's_add_u32 s{S_T0}, s{S_T0}, s{S_T2}')
            e(f's_mul_i32 s{S_T0}, s{S_T0}, {64*1280}')
            e(f's_add_u32 s{S_T0}, s{S_T0}, s{S_WOB}')
            e(f'buffer_load_dword v{VW+1}, v{VW+2}, {sr(S_WO,4)}, s{S_T0} offen {o.wo_flags}')
            vm.add('pft', 1)
        wper = 2 if o.w3 else 3
        wev = (k - 2) // wper if (k >= 2 and (k - 2) % wper == 0 and k <= 26) else None
        if wev:
            vm.wait(f'w{wev-1}')
            e.many(wo_reads(lambda off, n: hold3(wev - 1, off, n), V_WA, V_WA + 1, 0))
        if o.w3 and k == o.w3k - 1:
            e(f'v_and_b32 v22, 7, v{L}')
            e(f'v_lshlrev_b32 v22, 7, v22')
            e(f'v_readfirstlane_b32 s{S_T0}, v{VP}')
            e(f's_add_u32 s{S_T0}, s{S_T0}, {24*128}')
            e(f'v_add_u32 v22, s{S_T0}, v22')
            vm.room(1); e(ld_own); vm.add('po', 1)
        if o.bal and k == o.tagk + 1:
            e(f's_and_b32 s{S_T0}, s2, 7')
            e(f'v_and_b32 v34, 7, v{L}')
            e(f's_lshl_b32 s{S_T2}, s{S_T0}, 10')
            e(f's_add_u32 s{S_T2}, s{S_T2}, {WS_PROG}')
            e(f'v_lshlrev_b32 v32, 7, v34')
            e(f'v_add_u32 v32, s{S_T2}, v32')
            e(f's_lshl_b32 s{S_T2}, s{S_T0}, 7')
            e(f's_add_u32 s{S_T2}, s{S_T2}, {WS_PROG}')
            e(f'v_lshlrev_b32 v33, 10, v34')
            e(f'v_add_u32 v33, s{S_T2}, v33')
        if o.bal and o.tagk + 1 <= k <= 29:
            e('s_cmp_lt_u32 s2, 8')
            e(f's_cbranch_scc0 L_norep{k}')
            e(f's_add_u32 s{S_T0}, s{S_N}, {4 * k}')
            e(f'v_mov_b32 v35, s{S_T0}')
            e('s_mov_b64 exec, 0xff')
            e(f'buffer_store_dword v35, v32, {sr(S_WS,4)}, 0 offen sc1')
            e('s_mov_b64 exec, -1')
            e.lab(f'L_norep{k}')
        thr_now = False
        if o.bal and vm_pg[0] is not None and vm_pg[0] + 1 == k:
            vm.wait('pg')
            e(f'v_subrev_u32 v34, s{S_N}, v34')
            e(f'v_cmp_ge_u32 vcc, {4 * (k - o.bal_lag)}, v34')
            e(f's_and_b32 s{S_T0}, vcc_lo, 0xff')
            e(f's_bcnt1_i32_b32 s{S_T0}, s{S_T0}')
            e(f's_cmp_ge_u32 s{S_T0}, {o.bal}')
            e(f's_cbranch_scc0 L_go{k}')
            e('s_waitcnt vmcnt(0)')
            if o.bal_sl: e(f's_sleep {o.bal_sl}')
            e.lab(f'L_go{k}')
        if k in (o.tagk, 28):
            vm.room(1); e(ld_cnt if k == o.tagk else ld_fl); vm.add('pl', 1)
        if k == 30 and not o.w3:
            tail_setup(e, o)
            vm.room(4 * o.nearly); e.many(e.early); vm.add('early', 4 * o.nearly)
        sh = []
        if o.w3 and o.w3k < k <= o.w3k + 6: sh = [2 * (k - o.w3k - 1), 2 * (k - o.w3k - 1) + 1]
        if o.w3 and k == o.w3k + 7: sh = [12]
        first = POS[f'K{k+1}']
        lk = o.look if o.look_k0 <= k < o.look_k1 else o.look_lo
        if k >= 28: lk = 7 if first + o.look_lo >= POS['V31'] else lk
        lim = min(first + lk, first + 7, POS['T6'])
        if k == 31: lim = POS['T6']
        if o.tsched == 1 and k in (29, 30): lim = min(lim, POS['T1'] + (k - 29))
        if o.tsched == 2 and k < 31: lim = min(lim, POS['V31'])
        if o.tsched == 3 and k == 29: lim = min(lim, POS['V31'])
        done_sh = False
        def do_shadow(fill):
            if sh == [12]:
                vm.wait('w12')
                e.many(wo_reads(lambda off, n: vr(32 + off, n), V_WA, V_WA + 1, 0))
                e('s_waitcnt lgkmcnt(0)')
            elif wev: e('s_waitcnt lgkmcnt(0)')
            for c in sh: vm.wait(f'o0_{c}')
            m = []
            for c in sh: m += shadow_mm(c, c == 0)
            gaps(e, m, fill(), per=3)
            for c in sh: T3.free += T3.where[(0, c)]
            vm.room(8); e.many(T3.pump(2))
        while issued < lim:
            issued += 1
            if sh and issued == lim and issue_l(SEQ[issued]):
                def fill():
                    vm.room(16); vm.add(SEQ[issued], 16)
                    return issue_l(SEQ[issued])
                do_shadow(fill); done_sh = True
            elif o.gran < 16 and SEQ[issued][0] in 'KV' and k < o.thr_end and issue_l(SEQ[issued]):
                ins = issue_l(SEQ[issued]); ng = o.gran // 4
                for q in range(0, 4, ng):
                    vm.room(o.gran)
                    e.many(ins[(3 + 6 * q if q else 0):3 + 6 * (q + ng)])
                    vm.add(SEQ[issued] if q + ng == 4 else 'part', o.gran)
                    while vm.out() > o.thr: vm.wait(vm.q[0][0])
            else:
                issue(SEQ[issued])
            while vm.out() > o.thr + (8 if done_sh else 0) and k < o.thr_end: vm.wait(vm.q[0][0])
        if sh and not done_sh: do_shadow(lambda: [])
        if o.w3 and k == o.w3k:
            vm.wait('po')
            e(f's_add_u32 s{S_T3}, s{S_N}, 1')
            poll(e, o, 'r1o', ld_own, ['v_and_b32 v23, -3, v23', f'v_cmp_eq_u32 vcc, s{S_T3}, v23'])
            tail_setup(e, o)
            T3.todo = [(0, c) for c in range(16)]
            vm.room(8); e.many(T3.pump(2))
        if k == o.tagk:
            vm.wait('pl')
            poll(e, o, 'tag', ld_cnt, ['v_cmp_ne_u32 vcc, 0, v23'])
            e(f'v_readfirstlane_b32 s{S_N}, v23')
        if k == 28:
            vm.wait('pl')
            e(f's_add_u32 s{S_T3}, s{S_N}, 1')
            poll(e, o, 'r1', ld_fl, ['v_and_b32 v23, -3, v23', f'v_cmp_eq_u32 vcc, s{S_T3}, v23'])
        if wev is not None:
            e('s_waitcnt lgkmcnt(0)')
            own_w(wev)
    e('s_barrier')
    e.many(flag(3))
    e('s_waitcnt vmcnt(1)')
    vm.q = []

def a_addr(e, VA, VB, xl):
    L = V_LANE
    e(f'v_lshrrev_b32 v{V_T0}, 5, v{L}')
    e(f'v_bfe_u32 v{V_T1}, v{L}, 2, 2')
    e(f'v_lshl_add_u32 v{V_T2}, v{V_T0}, 3, v{V_T1}')
    e(f'v_lshlrev_b32 v{V_T2}, 8, v{V_T2}')
    e(f'v_lshl_add_u32 v{V_T2}, v{V_T1}, 6, v{V_T2}')
    e(f'v_bfe_u32 v{V_T3}, v{L}, 4, 1')
    e(f'v_lshl_add_u32 v{V_T2}, v{V_T3}, 5, v{V_T2}')
    e(f'v_and_b32 v{V_T3}, 1, v{L}')
    e(f'v_lshl_add_u32 v{V_T2}, v{V_T3}, 4, v{V_T2}')
    e(f'v_bfe_u32 v{V_T3}, v{L}, 1, 1')
    e(f'v_lshl_add_u32 v{V_T2}, v{V_T3}, 3, v{V_T2}')
    for t in range(4):
        e(f'v_xor_b32 v{VA+t}, {64*t}, v{V_T2}')
        e(f'v_add_u32 v{VA+t}, {reg_w(0)}, v{VA+t}')
    e(f'v_and_b32 v{V_T1}, 31, v{L}')
    e(f'v_bfe_u32 v{V_T2}, v{L}, 1, 3')
    e(f'v_xor_b32 v{V_T2}, v{V_T2}, v{V_T0}')
    e(f'v_lshlrev_b32 v{V_T2}, 4, v{V_T2}')
    e(f'v_lshl_add_u32 v{V_T2}, v{V_T1}, 7, v{V_T2}')
    if xl is not None:
        e(f's_add_u32 s{S_T0}, s{xl}, {reg_x(0)}')
    for s4 in range(4):
        e(f'v_xor_b32 v{VB+s4}, {32*s4}, v{V_T2}')
        e(f'v_add_u32 v{VB+s4}, s{S_T0}, v{VB+s4}' if xl is not None else f'v_add_u32 v{VB+s4}, {reg_x(0)}, v{VB+s4}')

def a_step(s, VA):
    r = []
    for i in range(8):
        d = reg_w(s + 1) - reg_w(s) if i < 4 else reg_x(s + 1) - reg_x(s)
        r.append(f'v_add_u32 v{VA+i}, {d}, v{VA+i}' if d > 0 else f'v_subrev_u32 v{VA+i}, {-d}, v{VA+i}')
    return r

SCALE = hex(struct.unpack("<I", struct.pack("<f", math.log2(math.e) / math.sqrt(128.0)))[0])
def conv(i, src, dst):
    a = src + 2 * i
    return [f'v_mul_f32 v{a}, s{S_C}, v{a}', f'v_mul_f32 v{a+1}, s{S_C}, v{a+1}', f'v_cvt_pk_bf16_f32 v{dst+i}, v{a}, v{a+1}']

def phase_a(e, o):
    L = V_LANE
    VA, VB = V_Q, V_Q + 4
    AF = [V_SA, V_SB]; BF = [V_P, V_TMP]; ACC = [128, 192]
    e(f'v_lshrrev_b32 v{V_T0}, 3, v{L}')
    e(f'v_mul_u32_u24 v{V_T0}, 1280, v{V_T0}')
    e(f'v_lshrrev_b32 v{V_T1}, 4, v{L}')
    e(f'v_and_b32 v{V_T2}, 7, v{L}')
    e(f'v_xor_b32 v{V_T1}, v{V_T1}, v{V_T2}')
    for i in range(4):
        e(f'v_xor_b32 v{V_T2}, {4*(i&1)}, v{V_T1}')
        e(f'v_lshl_add_u32 v{V_DMA+i}, v{V_T2}, 4, v{V_T0}')
        if i: e(f'v_add_u32 v{V_DMA+i}, {(10240-1024)*i}, v{V_DMA+i}')
    e(f's_mul_i32 s{S_XB}, s{S_BL}, 3')
    e(f's_add_u32 s{S_XB}, s{S_XB}, s{S_WAVE}')
    e(f's_mul_i32 s{S_OB}, s{S_BR}, 24')
    e(f's_add_u32 s{S_OB}, s{S_OB}, s{S_XB}')
    e(f's_mul_i32 s{S_XB}, s{S_XB}, 40960')
    def xload(s, it):
        r = []
        if it == 0:
            r.append(f's_lshl_b32 s{S_T0}, s{S_KX}, 7')
            r.append(f's_add_u32 s{S_T0}, s{S_T0}, s{S_XB}')
        r.append(f's_add_u32 m0, s{S_XL}, {reg_x(s) + 4096*it}')
        r.append(f's_add_u32 s{S_T1}, s{S_T0}, {491520*it}')
        for i in range(4):
            r.append(f'buffer_load_dwordx4 v{V_DMA+i}, {sr(S_X,4)}, s{S_T1} offen offset:{1024*i} {o.w_flags} lds')
        if it == 1:
            r.append(f's_add_u32 s{S_KX}, s{S_KX}, 1')
            r.append(f's_cmp_eq_u32 s{S_KX}, 10')
            r.append(f's_cselect_b32 s{S_KX}, 0, s{S_KX}')
        return r
    VWQ = V_Q + 8
    e(f'v_lshrrev_b32 v{V_T0}, 4, v{L}')
    e(f'v_and_b32 v{V_T1}, 15, v{L}')
    e(f'v_lshlrev_b32 v{V_T3}, 2, v{V_T0}')
    e(f'v_xor_b32 v{V_T3}, v{V_T3}, v{V_T1}')
    e(f'v_lshlrev_b32 v{V_T2}, 13, v{V_T0}')
    e(f'v_lshl_add_u32 v{VWQ}, v{V_T3}, 4, v{V_T2}')
    for i in range(1, 4): e(f'v_add_u32 v{VWQ+i}, {(32768-1024)*i}, v{VWQ}')
    e(f's_mul_i32 s{S_KVB}, s{S_WAVE}, {5*32768}')
    e(f's_lshl_b32 s{S_T0}, s{S_H}, 8')
    e(f's_add_u32 s{S_KVB}, s{S_KVB}, s{S_T0}')
    e(f's_mul_i32 s{S_FL}, s{S_WAVE}, {5*1024}')
    def wqload(s):
        r = [f's_lshl_b32 s{S_T2}, s{S_KX}, 19', f's_add_u32 s{S_T2}, s{S_T2}, s{S_KVB}']
        for t in range(6):
            if t % 4 == 0:
                r.append(f's_add_u32 m0, s{S_FL}, {reg_w(s) + 1024*t}')
                r.append(f's_add_u32 s{S_T1}, s{S_T2}, {32768*t}')
            r.append(f'buffer_load_dwordx4 v{VWQ+(t&3)}, {sr(S_WQ,4)}, s{S_T1} offen offset:{1024*(t&3)} {o.w_flags} lds')
        return r
    srds(e, o)
    e.many(wqload(0)); e.many(xload(0, 0)); e.many(xload(0, 1))
    lazy(e, o, 2)
    no_task_wo(e)
    e(f's_lshl_b32 s{S_OB}, s{S_OB}, 5')
    e(f's_add_u32 s{S_OB}, s{S_OB}, s{S_H}')
    e(f's_lshl_b32 s{S_OB}, s{S_OB}, 13')
    a_addr(e, VA, VB, S_XL)
    e(f'v_and_b32 v{V_T2}, 15, v{L}')
    e(f'v_xor_b32 v{V_T2}, v{V_T2}, v{V_T0}')
    e(f'v_lshlrev_b32 v{V_T2}, 4, v{V_T2}')
    e(f'v_lshl_add_u32 v{V_T2}, v{V_T1}, 8, v{V_T2}')
    for s in range(8):
        e(f'v_xor_b32 v{V_KA+s}, {32*s}, v{V_T2}')
        e(f'v_add_u32 v{V_KA+s}, {slot_addr("K0")}, v{V_KA+s}')
    e(f'v_bfe_u32 v{V_T1}, v{L}, 2, 2')
    e(f'v_lshl_add_u32 v{V_T2}, v{V_T0}, 2, v{V_T1}')
    e(f'v_lshlrev_b32 v{V_T2}, 8, v{V_T2}')
    e(f'v_lshl_add_u32 v{V_T2}, v{V_T1}, 6, v{V_T2}')
    e(f'v_bfe_u32 v{V_T3}, v{L}, 4, 1')
    e(f'v_lshl_add_u32 v{V_T2}, v{V_T3}, 5, v{V_T2}')
    e(f'v_and_b32 v{V_T3}, 3, v{L}')
    e(f'v_lshl_add_u32 v{V_T2}, v{V_T3}, 3, v{V_T2}')
    e(f'v_add_u32 v{V_T2}, {RING}, v{V_T2}')
    for t in range(4): e(f'v_xor_b32 v{V_VA+t}, {64*t}, v{V_T2}')
    e(f'v_lshlrev_b32 v{V_OST}, 4, v{L}')
    e(f'v_add_u32 v{V_OST+3}, s{S_XL}, v{V_OST}')
    wo_lane_addr(e, V_WA)
    e(f'v_add_u32 v{V_WA}, s{S_XL}, v{V_WA}')
    e(f'v_xor_b32 v{V_WA+1}, 64, v{V_WA}')
    e(f's_mul_i32 s{S_WQB}, s{S_WAVE}, {1024*1280}')
    e(f's_add_u32 s{S_WQB}, s{S_WQB}, s{S_WOB}')
    e(f's_mov_b32 s{S_WC}, s{S_RHO}')
    e(f's_add_u32 s{S_WN}, s{S_WAVE}, 4')
    e(f's_mov_b32 s{S_EV}, 0')
    for i in range(64): e(f'v_accvgpr_write_b32 a{i}, 0')
    for i in range(16): e(f'v_mov_b32 v{V_NEGM+i}, 0')
    for i in range(4): e(f'v_mov_b32 v{V_L+i}, 0')
    e(f's_mov_b32 s{S_C}, {SCALE}')
    e(f's_mov_b32 s{S_THR}, 0xff800000')
    e(f's_mov_b32 s{S_FLOOR}, 0xff800000')
    e(f's_mov_b32 s{S_TICK}, 0')
    e(f's_mov_b32 s{S_KOFF}, {7*SLOT}')
    e(f's_mov_b32 s{S_VOFF}, 0')
    nst = 0
    lazy(e, o, 5)
    e.many(wqload(1)); e.many(xload(1, 0)); e.many(xload(1, 1))
    lazy(e, o, 6)
    def reads(s4, buf):
        r = [f'ds_read_b128 {vr(BF[buf]+4*it,4)}, v{VB+s4} offset:{4096*it}' for it in range(2)]
        for t in range(4):
            for u in range(2):
                r.append(f'ds_read_b64_tr_b16 {vr(AF[buf]+4*t+2*u,2)}, v{VA+t} offset:{(16*s4+4*u)*256}')
        return r
    def mf(buf, first):
        r = []
        for t in range(4):
            for it in range(2):
                if it == 1 and t >= 2: continue
                d = vr(ACC[it] + 16 * t, 16)
                r.append(mfma(d, vr(AF[buf] + 4 * t, 4), vr(BF[buf] + 4 * it, 4), '0' if first else d))
        return r
    e(f's_waitcnt vmcnt({14 + nst})')
    lazy(e, o, 7)
    e('s_barrier')
    lazy(e, o, 8)
    e.many(reads(0, 0))
    e.skip = o.a_skip
    for s in range(10):
        for s4 in range(4):
            step = 4 * s + s4; buf = step & 1
            if step in (8, 16, 24, 32, 39): lazy(e, o, 9 + (8, 16, 24, 32, 39).index(step))
            if o.stamps and step in (8, 32): e(f's_memtime s[{LAZY[3 if step == 8 else 4]}:{LAZY[3 if step == 8 else 4]+1}]')
            m = mf(buf, step == 0)
            late = []
            e('s_waitcnt lgkmcnt(0)')
            if s4 == 3:
                if s < 9:
                    e(f's_waitcnt vmcnt({(14 if s + 2 <= 9 else 0) + (nst if s < 2 else 0)})')
                e('s_barrier')
                if s + 3 <= 9: late = wqload(s + 3)
            if s4 == 0 and s + 2 <= 9: late = (wqload(2) if s == 0 else []) + xload(s + 2, 0)
            if s4 == 1 and s + 2 <= 9: late = xload(s + 2, 1)
            if s4 == 2 and s < 9: late = a_step(s, VA)
            front = reads((s4 + 1) & 3, buf ^ 1) if step < 39 else []
            gaps(e, m, front, late, per=o.aper, late_from=(3 if o.aper == 3 and s4 == 2 else 2 if o.aper >= 4 else 1))
    e.skip = ''
    wo_voffs(e, V_DMA)
    e('s_nop 4')
    for i in range(16): e.many(conv(i, ACC[0], V_Q))
    e.many(k_reads(0))
    for i in range(16, 32): e.many(conv(i, ACC[0], V_Q))

def k_reads(half):
    return [f'ds_read_b128 {vr(V_KF+4*s,4)}, v{V_KA+s} offset:{8192*half}' for s in range(8)]
def v_reads(half):
    r = []
    for jj in range(2):
        for t in range(4):
            for u in range(2):
                r.append(f'ds_read_b64_tr_b16 {vr(V_VF+16*jj+4*t+2*u,2)}, v{V_VA+t} offset:{(32*half+16*jj+8*u)*256}')
    return r
def qk(S):
    return [mfma(vr(S, 16), vr(V_KF + 4 * s, 4), vr(V_Q + 4 * s, 4), vr(V_NEGM, 16) if s == 0 else vr(S, 16)) for s in range(8)]
def pv():
    return [mfma(ar(16 * t, 16), vr(V_VF + 16 * jj + 4 * t, 4), vr(V_P + 4 * jj, 4), ar(16 * t, 16)) for jj in range(2) for t in range(4)]
def maxes(S):
    r = [f'v_max3_f32 v{V_MX}, v{S}, v{S+1}, v{S+2}', f'v_max3_f32 v{V_D}, v{S+3}, v{S+4}, v{S+5}']
    r += [f'v_max3_f32 v{V_MX}, v{V_MX}, v{S+6}, v{S+7}', f'v_max3_f32 v{V_D}, v{V_D}, v{S+8}, v{S+9}']
    r += [f'v_max3_f32 v{V_MX}, v{V_MX}, v{S+10}, v{S+11}', f'v_max3_f32 v{V_D}, v{V_D}, v{S+12}, v{S+13}']
    r += [f'v_max3_f32 v{V_MX}, v{V_MX}, v{S+14}, v{S+15}', f'v_max_f32 v{V_MX}, v{V_MX}, v{V_D}']
    r += [f'v_cmp_lt_f32 vcc, s{S_THR}, v{V_MX}']
    return r

def half_tick(e, Snew, Sold, vhalf, khalf, extra_v=(), extra_k=(), extra_8=()):
    ex = lambda i: f'v_exp_f32 v{Sold+i}, v{Sold+i}'
    cv = lambda i: f'v_cvt_pk_bf16_f32 v{V_P+i}, v{Sold+2*i}, v{Sold+2*i+1}'
    ad = lambda i: f'v_add_f32 v{V_L+(i&3)}, v{V_L+(i&3)}, v{Sold+i}'
    m = qk(Snew) + pv()
    m[8] = ['s_waitcnt lgkmcnt(0)', m[8]]
    fill = v_reads(vhalf) + [ex(i) for i in range(8)] + list(extra_v) + [cv(i) for i in range(4)] + [ex(i) for i in range(8, 12)]
    fill += [('M', 8), ('A', 8)] + (k_reads(khalf) if khalf is not None else []) + [ex(i) for i in range(12, 16)] + [ad(0)]
    fill += [cv(i) for i in range(4, 8)] + [ad(1), ad(2)]
    rest = [ad(i) for i in range(3, 16)]
    x8 = list(extra_8)
    fill += [('M', 12)]
    while rest or x8:
        if rest: fill.append(rest.pop(0))
        fill += x8[:3]; x8 = x8[3:]
    fill += list(extra_k) + maxes(Snew)
    e('s_waitcnt lgkmcnt(0)')
    interleave(e, m, fill)

def last_half(e, Sold, extra=()):
    ex = lambda i: f'v_exp_f32 v{Sold+i}, v{Sold+i}'
    cv = lambda i: f'v_cvt_pk_bf16_f32 v{V_P+i}, v{Sold+2*i}, v{Sold+2*i+1}'
    ad = lambda i: f'v_add_f32 v{V_L+(i&3)}, v{V_L+(i&3)}, v{Sold+i}'
    e.many(v_reads(1))
    e.many(extra)
    e.many([ex(i) for i in range(8)] + [cv(i) for i in range(4)] + [ex(8), ex(9)])
    e('s_waitcnt lgkmcnt(0)')
    fill = [ex(i) for i in range(10, 16)] + [ad(0)] + [cv(i) for i in range(4, 8)] + [ad(1), ad(2), ('M', 4)] + [ad(i) for i in range(3, 16)]
    interleave(e, pv(), fill)

def rare(e, S, back):
    e('s_nop 7')
    e(f'v_mov_b32 v{V_T0}, v{V_MX}')
    e('s_nop 1')
    e(f'v_permlane32_swap_b32 v{V_T0}, v{V_MX}')
    e('s_nop 1')
    e(f'v_max_f32 v{V_D}, v{V_T0}, v{V_MX}')
    e(f'v_max_f32 v{V_D}, s{S_FLOOR}, v{V_D}')
    for i in range(16): e(f'v_sub_f32 v{S+i}, v{S+i}, v{V_D}')
    for i in range(16): e(f'v_sub_f32 v{V_NEGM+i}, v{V_NEGM+i}, v{V_D}')
    e(f's_cmp_lg_u32 s{S_FLOOR}, 0')
    e(f's_mov_b32 s{S_THR}, 0x41000000')
    e(f's_mov_b32 s{S_FLOOR}, 0')
    e(f's_cbranch_scc1 {back}')
    e(f'v_sub_f32 v{V_T0}, 0, v{V_D}')
    e(f'v_exp_f32 v{V_T0}, v{V_T0}')
    e('s_nop 0')
    for i in range(4): e(f'v_mul_f32 v{V_L+i}, v{V_L+i}, v{V_T0}')
    for i in range(0, 64, 4):
        for j in range(4): e(f'v_accvgpr_read_b32 v{V_TMP+j}, a{i+j}')
        for j in range(4): e(f'v_mul_f32 v{V_TMP+j}, v{V_TMP+j}, v{V_T0}')
        for j in range(4): e(f'v_accvgpr_write_b32 a{i+j}, v{V_TMP+j}')
    e('s_nop 1')
    e(f's_branch {back}')

def epilogue(e, o):
    e(f'v_add_f32 v{V_L}, v{V_L}, v{V_L+1}')
    e(f'v_add_f32 v{V_L+2}, v{V_L+2}, v{V_L+3}')
    e(f'v_add_f32 v{V_L}, v{V_L}, v{V_L+2}')
    e(f'v_mov_b32 v{V_T0}, v{V_L}')
    e('s_nop 1')
    e(f'v_permlane32_swap_b32 v{V_T0}, v{V_L}')
    e('s_nop 1')
    e(f'v_add_f32 v{V_L}, v{V_L}, v{V_T0}')
    e(f'v_rcp_f32 v{V_T0}, v{V_L}')
    e('s_nop 4')
    for f in range(8):
        t = V_VF + 8 * (f & 3)
        for j in range(8): e(f'v_accvgpr_read_b32 v{t+j}, a{8*f+j}')
        if o.pk:
            for j in range(0, 8, 2): e(f'v_pk_mul_f32 {vr(t+j,2)}, {vr(t+j,2)}, {vr(V_T0,2)} op_sel_hi:[1,0]')
        else:
            for j in range(8): e(f'v_mul_f32 v{t+j}, v{t+j}, v{V_T0}')
        d = V_TMP + 4 * (f & 1)
        for j in range(4): e(f'v_cvt_pk_bf16_f32 v{d+j}, v{t+2*j}, v{t+2*j+1}')
        if f == 4: e(f's_add_u32 s{S_OB}, s{S_OB}, 4096')
        e(f'buffer_store_dwordx4 {vr(d,4)}, v{V_OST}, {sr(S_WS,4)}, s{S_OB} offen offset:{1024*(f&3)} {o.ost_flags}')

def w_snippets(e, o, ret):
    e('s_waitcnt vmcnt(0)')
    def tree(lo, n):
        if n == 1:
            if lo == 0:
                for f in range(4): e(f'ds_read_b128 {vr(224+4*f,4)}, v{V_OST+3} offset:{1024*f}')
                if o.t15:
                    for i in range(16): e.many(conv(i, V_Q2, V_Q2))
            else:
                e.many(wo_reads(lambda off, nn: hold(lo - 1, off, nn), V_WA, V_WA + 1, 0))
            e('s_branch L_sn_done')
            return
        h = (n + 1) // 2
        e(f's_cmp_ge_u32 s{S_EV}, {lo+h}')
        e(f's_cbranch_scc1 L_sn_{lo+h}')
        tree(lo, h)
        e.lab(f'L_sn_{lo+h}')
        tree(lo + h, n - h)
    tree(0, 9)
    e.lab('L_sn_done')
    e(f's_add_u32 s{S_EV}, s{S_EV}, 1')
    e(f's_cmp_eq_u32 s{S_EV}, 9')
    e(f's_cselect_b32 s{S_WN}, 64, 3')
    if o.t15:
        e(f's_cmp_eq_u32 s{S_TICK}, 13')
        e(f's_cselect_b32 s{S_WN}, 4, s{S_WN}')
    e('s_waitcnt lgkmcnt(0)')
    e.many(wo_dma(o, 0, f's{S_XL}', 0, f's{S_WQB}', V_DMA, dyn=True))
    e(f's_branch {ret}')

def phase_b(e, o):
    lazy(e, o, 14)
    lazy_dump(e, o, range(15))
    stamp(e, o, 1)
    e('s_waitcnt lgkmcnt(0)')
    e.many(qk(V_SA))
    e.many(k_reads(1))
    for s in range(8): e(f'v_add_u32 v{V_KA+s}, {SLOT}, v{V_KA+s}')
    e('s_nop 3')
    e.many(maxes(V_SA))
    e('s_branch L_rare_a')
    def adv(soff, tmp, base, n):
        r = [f's_add_u32 s{tmp}, s{soff}, {2*SLOT}', f's_and_b32 s{tmp}, s{tmp}, {8*SLOT-1}',
             f's_sub_u32 s{S_T3}, s{tmp}, s{soff}', f's_mov_b32 s{soff}, s{tmp}']
        r += [f'v_add_u32 v{base+i}, s{S_T3}, v{base+i}' for i in range(n)]
        return r
    e.lab('L_tick')
    e('s_waitcnt lgkmcnt(0)')
    e('s_barrier')
    e(f's_cmp_eq_u32 s{S_TICK}, 31')
    e('s_cbranch_scc1 L_last')
    half_tick(e, V_SB, V_SA, 0, 0)
    e('s_cbranch_vccnz L_rare_b')
    e.lab('L_back_b')
    e(f's_cmp_eq_u32 s{S_TICK}, 15')
    e('s_cbranch_scc1 L_switch')
    e.lab('L_back_sw')
    half_tick(e, V_SA, V_SB, 1, 1, extra_v=adv(S_VOFF, S_T0, V_VA, 4), extra_k=adv(S_KOFF, S_T1, V_KA, 8))
    e(f's_add_u32 s{S_TICK}, s{S_TICK}, 1')
    e(f's_sub_u32 s{S_WN}, s{S_WN}, 1')
    e(f's_cmp_eq_u32 s{S_WN}, 0')
    e('s_cbranch_scc1 L_snip')
    e.lab('L_snip_ret')
    e(f's_cmp_eq_u32 s{S_TICK}, 16')
    e('s_cbranch_scc1 L_epi1')
    e('s_cbranch_vccz L_tick')
    e.lab('L_rare_a')
    rare(e, V_SA, 'L_tick')
    e.lab('L_snip')
    w_snippets(e, o, 'L_snip_ret')
    e.lab('L_rare_b')
    rare(e, V_SB, 'L_back_b')
    e.lab('L_switch')
    for i in range(16): e(f'v_mov_b32 v{V_Q+16+i}, v{224+i}')
    for i in range(16): e.many([f'v_mov_b32 v{V_Q+i}, v{V_Q2+i}'] if o.t15 else conv(i, V_Q2, V_Q))
    for i in range(16): e(f'v_mov_b32 v{V_NEGM+i}, 0')
    e('s_nop 1')
    e('s_branch L_back_sw')
    e.lab('L_epi1')
    epilogue(e, o)
    e(f's_add_u32 s{S_OB}, s{S_OB}, {RND - 4096}')
    if o.t15:
        for t in range(4): e(mfma(ar(16 * t, 16), vr(V_NEGM, 4), vr(V_NEGM, 4), '0'))
    else:
        for i in range(64): e(f'v_accvgpr_write_b32 a{i}, 0')
    for i in range(4): e(f'v_mov_b32 v{V_L+i}, 0')
    e(f's_mov_b32 s{S_FLOOR}, 0xff800000')
    stamp(e, o, 2)
    e('s_branch L_rare_a')
    e.lab('L_rare_l')
    rare(e, V_SB, 'L_back_l')
    e.lab('L_last')
    T = tail_pre(e, o)
    e.early = T.pump(min(o.nearly, 4))
    half_tick(e, V_SB, V_SA, 0, None, extra_8=e.early)
    e('s_cbranch_vccnz L_rare_l')
    e.lab('L_back_l')
    x = T.pump(max(o.nearly - 4, 0))
    e.early += x
    last_half(e, V_SB, x)
    epilogue(e, o)
    return T

def tail_setup(e, o):
    e(f's_mul_i32 s{S_O1}, s{S_BR}, 24')
    e(f's_add_u32 s{S_O1}, s{S_O1}, s{S_QT}')
    e(f's_lshl_b32 s{S_O1}, s{S_O1}, 2')
    e(f's_add_u32 s{S_O1}, s{S_O1}, s{S_WAVE}')
    e(f's_lshl_b32 s{S_O1}, s{S_O1}, 16')

POOL = list(range(96, 160, 4)) + [32, 36, 40, 44, 16, 20, 24, 80, 84] + list(range(160, 192, 4)) + [88, 92]
ORDER1 = [0, 1, 2, 8, 3, 9, 4, 10, 5, 11, 6, 12, 7]
ORDER2 = [8, 0, 9, 1, 10, 2, 11, 3, 12, 4, 13, 14, 15, 5, 6, 7]

class Tail:
    def __init__(self, e, o):
        self.e, self.o = e, o
        self.vm = Vm(e)
        self.free = list(POOL)
        self.where = {}
        self.todo = []
    def oload(self, rnd, c):
        e = self.e
        regs = [self.free.pop(0) for _ in range(4)]
        self.where[(rnd, c)] = regs
        r = [f's_add_u32 s{S_T1}, s{S_RHO}, {c}', f's_and_b32 s{S_T1}, s{S_T1}, 15', f's_lshl_b32 s{S_T1}, s{S_T1}, 12',
             f's_add_u32 s{S_T1}, s{S_T1}, s{S_O1}']
        if rnd and not self.o.t_o1: r.append(f's_add_u32 s{S_T1}, s{S_T1}, {RND}')
        if rnd and self.o.t_noo: return []
        for s4 in range(4):
            r.append(f'buffer_load_dwordx4 {reg4(regs[s4])}, v{V_OST}, {sr(S_WS,4)}, s{S_T1} offen offset:{1024*s4} {self.o.old_flags}')
        self.vm.add(f'o{rnd}_{c}', 4)
        return r
    def pump(self, lim=99):
        r = []
        while self.todo and len(self.free) >= 4 and self.vm.out() + 4 <= 61 and lim > 0:
            lim -= 1
            r += self.oload(*self.todo.pop(0))
        return r

def tail_pre(e, o):
    T = Tail(e, o)
    tail_setup(e, o)
    T.todo = [(0, c) for c in ORDER1]
    return T

def tail(e, o, T, w3=False):
    L = V_LANE
    vm = T.vm
    sfx = '3' if w3 else ''
    RA = 6
    TEMP = 48
    e(f's_cmp_eq_u32 s{S_NT}, 15')
    e('s_cbranch_scc1 L_exit')
    e(f's_mul_i32 s{S_WQB}, s{S_WAVE}, {1024*1280}')
    e(f's_add_u32 s{S_WQB}, s{S_WQB}, s{S_WOB}')
    if w3:
        T.free += [12, 16, 20, 24]
        e('s_barrier')
    e.many(T.pump())
    if not w3:
        vm.room(8)
        e.many(wo_dma(o, 12, f's{S_XL}', 4 * 32768, f's{S_WQB}', V_DMA))
        vm.add('late', 8)
    for b in range(3):
        e(f'v_add_u32 v{RA+2*b}, {65536*b}, v{V_WA}')
        e(f'v_add_u32 v{RA+2*b+1}, {65536*b}, v{V_WA+1}')
    e(f's_lshl_b32 s{S_T0}, s{S_BR}, 2')
    e(f's_add_u32 s{S_T0}, s{S_T0}, s{S_QB}')
    e(f's_lshl_b32 s{S_T0}, s{S_T0}, 2')
    e(f's_add_u32 s{S_T0}, s{S_T0}, s{S_WAVE}')
    e(f's_lshl_b32 s{S_T0}, s{S_T0}, 10')
    e(f's_add_u32 s{S_T0}, s{S_T0}, {WS_FLAGS}')
    e(f'v_and_b32 v31, 7, v{L}')
    e(f'v_lshlrev_b32 v31, 7, v31')
    e(f'v_add_u32 v31, s{S_T0}, v31')
    e('v_mov_b32 v0, 0')
    piece = {8: 0, 9: 1, 10: 2, 11: 3, 12: 4, 13: 0, 14: 1, 15: 2}
    if w3: piece = {12: 0, 13: 1, 14: 2, 15: 3}
    tmp_of = {}
    def rd(c, dstf):
        j = piece[c]
        return wo_reads(dstf, RA + 2 * (j >> 1), RA + 2 * (j >> 1) + 1, 32768 * (j & 1))
    def afrag(c):
        if c < 8: return lambda off, n: hold(c, off, n)
        if c >= 13: return lambda off, n: hold(c - 13, off, n)
        return lambda off, n: vr(TEMP + off, n)
    first = {0: True, 1: True}
    def mms(c, rnds):
        m = []
        for s4 in range(4):
            for rnd in rnds:
                for nt in range(2):
                    d = ar(32 * rnd + 16 * nt, 16)
                    m.append(mfma(d, afrag(c)(8 * s4 + 4 * nt, 4), reg4(T.where[(rnd, c)][s4]), '0' if (first[rnd] and s4 == 0) else d))
        for rnd in rnds: first[rnd] = False
        return m
    def wdma(c):
        if o.t_now: return []
        vm.add(f'w{c}', 8)
        return wo_dma(o, c, f's{S_XL}', 32768 * piece[c], f's{S_WQB}', V_DMA)
    ld_fl = f'buffer_load_dword v{V_T2}, v31, {sr(S_WS,4)}, 0 offen sc1'
    WA, RDA, VOUT = 48, 56, 60
    S_OO = S_KOFF
    fin = [f'v_and_b32 v{V_T0}, 31, v{L}', f'v_lshrrev_b32 v{V_T1}, 5, v{L}', f'v_and_b32 v{V_T3}, 15, v{L}',
           f'v_xor_b32 v{V_T1}, v{V_T1}, v{V_T3}', f'v_lshlrev_b32 v{V_T1}, 4, v{V_T1}',
           f'v_lshl_add_u32 v{V_T0}, v{V_T0}, 8, v{V_T1}', f's_add_u32 s{S_T3}, s{S_XL}, {3*32768}',
           f'v_add_u32 v{V_T0}, s{S_T3}, v{V_T0}']
    fin += [f'v_xor_b32 v{WA+k}, {32*k}, v{V_T0}' for k in range(8)]
    fin2 = [f's_lshr_b32 s{S_VOFF}, s{S_WAVE}, 1', f's_and_b32 s{S_THR}, s{S_WAVE}, 1',
            f's_lshl_b32 s{S_T2}, s{S_VOFF}, 15', f's_lshl_b32 s{S_T3}, s{S_THR}, 12',
            f's_add_u32 s{S_T2}, s{S_T2}, s{S_T3}', f's_add_u32 s{S_T2}, s{S_T2}, {3*32768}',
            f'v_lshrrev_b32 v{V_T1}, 3, v{L}', f'v_and_b32 v{V_T3}, 7, v{L}', f'v_lshlrev_b32 v{V_T0}, 1, v{V_T3}',
            f'v_xor_b32 v{V_T0}, v{V_T0}, v{V_T1}', f'v_lshlrev_b32 v{V_T0}, 4, v{V_T0}',
            f'v_lshl_add_u32 v{V_T0}, v{V_T1}, 8, v{V_T0}', f'v_add_u32 v{RDA}, s{S_T2}, v{V_T0}',
            f'v_xor_b32 v{RDA+1}, 16, v{RDA}', f'v_xor_b32 v{RDA+2}, {2048+128}, v{RDA}', f'v_xor_b32 v{RDA+3}, 16, v{RDA+2}',
            f's_lshl_b32 s{S_OO}, s{S_QT}, 5', f's_mul_i32 s{S_VOFF}, s{S_VOFF}, 384', f's_add_u32 s{S_OO}, s{S_OO}, s{S_VOFF}',
            f's_lshl_b32 s{S_THR}, s{S_THR}, 4', f's_add_u32 s{S_OO}, s{S_OO}, s{S_THR}', f's_mul_i32 s{S_OO}, s{S_OO}, 2560',
            f's_mul_i32 s{S_T3}, s{S_BR}, 1280', f's_add_u32 s{S_OO}, s{S_OO}, s{S_T3}', f's_add_u32 s{S_OO}, s{S_OO}, s{S_WOB}',
            f'v_mul_u32_u24 v{V_T1}, 2560, v{V_T1}', f'v_lshl_add_u32 v{VOUT}, v{V_T3}, 4, v{V_T1}']
    def pwrite(rnd):
        return [f'ds_write_b128 v{WA+4*nt+g}, {ar(32*rnd+16*nt+4*g,4)} offset:{rnd*32768}' for nt in range(2) for g in range(4)]
    if w3:
        ld_tag = f'global_load_dword v30, v0, {sr(S_DBG,2)} sc1'
        first[0] = False
        def mm3(c, rnd, af):
            m = []
            for s4 in range(4):
                for nt in range(2):
                    d = ar(32 * rnd + 16 * nt, 16)
                    m.append(mfma(d, af(8 * s4 + 4 * nt, 4), reg4(T.where[(rnd, c)][s4]), '0' if (first[rnd] and s4 == 0) else d))
            first[rnd] = False
            return m
        t1 = lambda off, n: vr(32 + off, n)
        for c in (13, 14, 15):
            e.many(rd(c, t1))
            if c == 15:
                vm.room(2); e(ld_tag); e(ld_fl); vm.add('pl', 2)
            e('s_waitcnt lgkmcnt(0)')
            vm.wait(f'o0_{c}')
            gaps(e, mm3(c, 0, t1), T.pump(), per=2)
            T.free += T.where[(0, c)]
        assert not T.todo
        vm.wait('pl')
        e('v_add_u32 v30, 3, v30')
        poll(e, o, 'r23', ld_fl, [f'v_cmp_eq_u32 vcc, v30, v{V_T2}'])
        T.free = [48, 52, 56, 60, 12, 16, 20, 24, 32, 36, 40, 44]
        order = [8, 9, 15, 10, 14, 11, 13, 6, 12, 7, 0, 1, 2, 3, 4, 5]
        T.todo = [(1, c) for c in order]
        e.many(T.pump())
        t2 = lambda off, n: hold3(8, off, n)
        for i, c in enumerate(order):
            nxt = order[i + 1] if i + 1 < len(order) else None
            if c >= 12: e('s_waitcnt lgkmcnt(0)')
            vm.wait(f'o1_{c}')
            front = rd(nxt, t2) if (nxt is not None and nxt >= 12) else []
            late = []
            if c == 10: late += fin
            if c == 11: late += pwrite(0)
            if c == 0: late += fin2
            m = mm3(c, 1, t2 if c >= 12 else (lambda off, n: hold3(c, off, n)))
            late += T.pump()
            gaps(e, m, front, late, per=3, late_from=0 if not front else 2)
            if c != 8: T.free += T.where[(1, c)]
            if c in (9, 10, 11): T.free += list(range(64 + 32 * (c - 8), 64 + 32 * (c - 7), 4))
            if c in (6, 7): T.free += list(range(192 + 32 * (c - 6), 192 + 32 * (c - 5), 4))
        assert not T.todo
        e('s_nop 7'); e('s_nop 3')
        e.many(pwrite(1))
        e('s_branch L_red')
        return
    seq = [(0, c) for c in ORDER1] + [(1, c) for c in ORDER2]
    todo2 = []
    for c in ORDER2: todo2 += ([(0, c)] if (c >= 13 and not o.park) else []) + [(1, c)]
    for i, (rnd, c) in enumerate(seq):
        rnds = [0, 1] if c >= 13 else [rnd]
        nxt = seq[i + 1][1] if i + 1 < len(seq) else None
        if i == o.chk - o.pl_at:
            vm.room(2); e(f'global_load_dword v30, v0, {sr(S_DBG,2)} sc1'); e(ld_fl); vm.add('pl', 2)
            if o.park: T.todo += [(0, c) for c in (13, 14, 15)]
        if i == o.chk:
            vm.stamp(o, 5)
            vm.wait('pl')
            e('v_add_u32 v30, 3, v30')
            poll(e, o, 'r2', ld_fl, [f'v_cmp_eq_u32 vcc, v30, v{V_T2}'])
            T.todo += todo2
            e.many(T.pump())
            vm.stamp(o, 6)
        if c >= 8: e('s_waitcnt lgkmcnt(0)')
        for r_ in rnds: vm.wait(f'o{r_}_{c}')
        front = []; late = []
        if nxt is not None and nxt >= 8:
            assert not (8 <= c < 13 and nxt < 13)
            if rnd == 0 and nxt == 8 and i < 5: e('s_barrier')
            if nxt == 12 and vm.has('late'): vm.wait('late')
            if nxt >= 13: vm.wait(f'w{nxt}')
            front = rd(nxt, afrag(nxt))
        if rnd == 1 and c in (8, 9, 10):
            vm.room(8)
            late += wdma(c + 5)
        if rnd == 1 and c == 15: late += fin
        if rnd == 1 and c == 6: late += pwrite(0)
        if rnd == 1 and c == 5: late += fin2
        m = mms(c, rnds)
        late += T.pump()
        gaps(e, m, front, late, per=3, late_from=0 if not front else 2)
        for r_ in rnds: T.free += T.where[(r_, c)]
    assert not T.todo
    vm.stamp(o, 7)
    e('s_nop 7'); e('s_nop 3')
    e.many(pwrite(1))
    e.lab('L_red')
    e('s_waitcnt lgkmcnt(0)')
    e('s_barrier')
    for i in range(2):
        for p in range(4):
            for hh in range(2):
                e(f'ds_read_b128 {vr(96+32*i+8*p+4*hh,4)}, v{RDA+2*i+hh} offset:{8192*p}')
    for i in range(2):
        b = 96 + 32 * i
        e(f's_waitcnt lgkmcnt({8*(1-i)})')
        for j in range(8):
            e(f'v_add_f32 v{b+j}, v{b+j}, v{b+8+j}')
            e(f'v_add_f32 v{b+16+j}, v{b+16+j}, v{b+24+j}')
        for j in range(8): e(f'v_add_f32 v{b+j}, v{b+j}, v{b+16+j}')
        for j in range(4): e(f'v_cvt_pk_bf16_f32 v{b+8+j}, v{b+2*j}, v{b+2*j+1}')
        if i: e(f's_add_u32 s{S_OO}, s{S_OO}, {8*2560}')
        e(f'buffer_store_dwordx4 {vr(b+8,4)}, v{VOUT}, {sr(S_OUT,4)}, s{S_OO} offen {o.out_flags}')
    if o.stamps:
        e('s_waitcnt vmcnt(0)')
        stamp(e, o, 14)

KD = '''.amdhsa_kernel {n}
  .amdhsa_next_free_vgpr 512
  .amdhsa_next_free_sgpr 102
  .amdhsa_accum_offset 256
  .amdhsa_group_segment_fixed_size 0
  .amdhsa_kernarg_size 104
  .amdhsa_user_sgpr_count 2
  .amdhsa_user_sgpr_kernarg_segment_ptr 1
  .amdhsa_system_sgpr_workgroup_id_x 1
.end_amdhsa_kernel
'''

def gen(o):
    e = Em()
    k1 = NAME + '_kernel'
    e.raw('; @launch grid=(256,1,1) block=(256,1,1) lds=163840')
    e.raw('.amdgcn_target "amdgcn-amd-amdhsa--gfx950"')
    e.raw('.text')
    e.raw(f'.globl {k1}\n.p2align 8\n.type {k1},@function')
    e.lab(k1)
    prologue(e, o)
    e(f's_cmp_eq_u32 s{S_WAVE}, 3')
    e('s_cbranch_scc1 L_loader')
    phase_a(e, o)
    T = phase_b(e, o)
    n0 = T.vm.out()
    pre = T.pump(o.npre)
    npre = T.vm.out() - n0
    e.many(pre)
    e(f's_waitcnt vmcnt({npre}) lgkmcnt(0)')
    e('s_barrier')
    if o.stamps:
        T.vm.stamp(o, 3)
    e('s_branch L_join')
    e.lab('L_loader')
    loader(e, o)
    if o.w3:
        if o.stamps: e.T3.vm.stamp(o, 3)
        tail(e, o, e.T3, w3=True)
    else:
        e.many(pre)
        if o.stamps: stamp(e, o, 3)
    e.lab('L_join')
    tail(e, o, T)
    e.lab('L_exit')
    e('s_endpgm')
    e.raw('.section .rodata,"a"\n.p2align 6')
    e.raw(KD.format(n=k1))
    return e.text()

if __name__ == '__main__':
    o = Opt()
    out = sys.argv[1]
    for a in sys.argv[2:]:
        k, v = a.split('=', 1); v = v.replace('+', ' ')
        cur = getattr(o, k)
        setattr(o, k, (v == '1') if isinstance(cur, bool) else int(v) if isinstance(cur, int) else v)
    open(out, 'w').write(gen(o))
```

```python
import sys, math, struct
NAME = 'concat_heads__mha_block_cached__mha_block_cached__near_ridge'

class Opt:
    stamps = False
    kv_flags = 'nt'
    w_flags = ''
    wo_flags = ''
    ost_flags = 'sc1'
    old_flags = 'sc1'
    look = 7
    rot = 3
    tickst = 0
    no_w = False
    no_w3 = False
    t_now = False
    t_o1 = False
    t_noo = False
    c8late = True
    pf_kv = 0
    pf_wo = True
    pf_a = False
    pf_w = False
    pf_delay = 0
    pf_s0 = 2
    pf_mid = 0
    pf_flags = ''
    pf_tail = 0
    bal = 0
    bal_lag = 2
    bal_n = 1
    bal_sl = 0
    tagk = 10
    thr_end = 28
    k_first = False
    k_s0 = 0
    tlb = True
    aper = 4
    out_flags = ''
    tsched = 0
    park = True
    gran = 16
    a_skip = ''
    dbgt = False
    w3 = False
    w3k = 23
    pl_at = 3
    fav = 0
    t15 = True
    nearly = 0
    npre = 3
    pk = True
    v1_late = True
    look_lo = 5
    look_k0 = 0
    look_k1 = 0
    krot = False
    early = True
    chk = 7
    bal_k1 = 30
    psleep = 4
    thr = 16
    blk = 0

WS_FLAGS = 12582912
WS_PROG = WS_FLAGS + 32768
WS_STAMP = 13631488
SLOT = 16384
STAGE = 40960
RND = 12 * 32 * 8192

S_X, S_K, S_V, S_WQ, S_WO, S_OUT, S_WS = 4, 8, 12, 16, 20, 24, 28
S_DBG = 32
S_WAVE, S_BR, S_H, S_BL = 34, 35, 36, 37
S_T0, S_T1, S_T2, S_T3 = 38, 39, 40, 41
S_KX, S_XB, S_XL, S_KVB, S_TICK = 42, 43, 44, 45, 46
S_KOFF, S_VOFF, S_THR, S_FLOOR, S_C, S_OB, S_WQB = 47, 48, 49, 50, 51, 52, 53
S_ST, S_STB, S_QT, S_NT = 54, 56, 57, 58
S_SAVE = 60
S_WN, S_FL = 62, 63
S_EV = 59
S_KARG = 64
S_WOB, S_O1, S_QB, S_CNT, S_RHO, S_WC, S_N, S_KR = 90, 91, 92, 93, 94, 95, 96, 97

V_LANE = 1
V_T0, V_T1, V_T2, V_T3 = 2, 3, 4, 5
V_L, V_MX, V_D = 6, 10, 11
V_DMA = 12
V_KA, V_VA, V_OST, V_WA = 16, 24, 28, 29
V_NEGM = 32
V_SA, V_SB, V_P, V_TMP = 48, 64, 80, 88
V_Q, V_KF, V_VF, V_Q2 = 96, 128, 160, 192

class Em:
    def __init__(self): self.L = []
    def __call__(self, s): self.L.append('    ' + s)
    def lab(self, s): self.L.append(s + ':')
    def raw(self, s): self.L.append(s)
    def many(self, l):
        for x in l: self(x)
    def text(self): return '\n'.join(self.L) + '\n'

def vr(b, n=1): return f'v{b}' if n == 1 else f'v[{b}:{b+n-1}]'
def ar(b, n=1): return f'a{b}' if n == 1 else f'a[{b}:{b+n-1}]'
def sr(b, n=1): return f's{b}' if n == 1 else f's[{b}:{b+n-1}]'
def mfma(d, a, b, c): return f'v_mfma_f32_32x32x16_bf16 {d}, {a}, {b}, {c}'
def hold(ci, off, n):
    return ar(64 + 32 * ci + off, n) if ci < 6 else vr(192 + 32 * (ci - 6) + off, n)

def hold3(ci, off, n):
    return hold(ci, off, n) if ci < 8 else vr(64 + 32 * (ci - 8) + off, n)
def reg4(r): return ar(r - 1000, 4) if r >= 1000 else vr(r, 4)

def cost(i):
    if i.startswith('v_exp') or i.startswith('v_rcp'): return 8
    if i.startswith('s_'): return 2
    return 4

def interleave(e, mf, fill):
    total = sum(cost(f) for f in fill if not isinstance(f, tuple))
    per = total / len(mf)
    fi = 0; acc = 0.0
    deadline = {}; items = []
    for f in fill:
        if isinstance(f, tuple):
            if f[0] == 'M': deadline[f[1]] = len(items)
            else: items.append(f)
        else: items.append(f)
    for k, m in enumerate(mf):
        need = deadline.get(k, 0)
        while fi < need:
            it = items[fi]; fi += 1
            if isinstance(it, tuple):
                assert it[1] < k, (it, k)
                continue
            e(it); acc += cost(it)
        if isinstance(m, (list, tuple)): e.many(m)
        else: e(m)
        target = per * (k + 1)
        while fi < len(items) and (acc < target - 1.0 or k == len(mf) - 1):
            it = items[fi]
            if isinstance(it, tuple):
                if it[1] > k: break
                fi += 1; continue
            e(it); acc += cost(it); fi += 1
    assert fi == len(items)

def gaps(e, mf, front, late=(), per=2, late_from=5):
    g = [[] for _ in mf]
    for i, f in enumerate(front): g[min(i // per, len(mf) - 1)].append(f)
    n = len(mf) - late_from
    for i, f in enumerate(late): g[late_from + (i * n) // len(late)].append(f)
    for m, x in zip(mf, g):
        sk = getattr(e, 'skip', '')
        if 'm' not in sk: e(m)
        e.many([y for y in x if not (('r' in sk and y.startswith('ds_read')) or ('d' in sk and y.startswith('buffer_load_dwordx4 v') and ('s[4:7]' in y or 's[16:19]' in y)))])

def stamp(e, o, idx, clk=False):
    if not o.stamps: return 0
    e(f's_memtime {sr(S_ST,2)}' if clk else f's_memrealtime {sr(S_ST,2)}')
    e('s_waitcnt lgkmcnt(0)')
    e(f'v_mov_b32 v{V_T0}, s{S_ST}')
    e(f'v_mov_b32 v{V_T1}, s{S_STB}')
    e('s_mov_b64 exec, 1')
    e(f'buffer_store_dword v{V_T0}, v{V_T1}, {sr(S_WS,4)}, 0 offen offset:{4*idx}')
    e('s_mov_b64 exec, -1')
    return 1

LAZY = {0: 98, 1: 100}
for _i in range(2, 15): LAZY[_i] = 64 + 2 * (_i - 2)
def lazy(e, o, i):
    if o.stamps: e(f's_memrealtime s[{LAZY[i]}:{LAZY[i]+1}]')
def lazy_dump(e, o, ids):
    if not o.stamps: return 0
    e('s_waitcnt lgkmcnt(0)')
    e(f'v_mov_b32 v{V_T1}, s{S_STB}')
    e('s_mov_b64 exec, 1')
    for i in ids:
        e(f'v_mov_b32 v{V_T0}, s{LAZY[i]}')
        e(f'buffer_store_dword v{V_T0}, v{V_T1}, {sr(S_WS,4)}, 0 offen offset:{16 if i == 0 else 4*(16+i)}')
        e('s_nop 1')
    e('s_mov_b64 exec, -1')
    return len(ids)

def dmark(e, o, i):
    if o.dbgt: e(f's_memrealtime s[{64+2*i}:{65+2*i}]')
def ddump(e, o, n):
    if not o.dbgt: return
    e('s_waitcnt vmcnt(0)')
    dmark(e, o, n - 1)
    e('s_waitcnt lgkmcnt(0)')
    e(f's_cmp_lg_u32 s{S_WAVE}, 0')
    e('s_cbranch_scc1 L_exit')
    e('s_mov_b32 s3, 0')
    for j, w in enumerate((5, 130, 203)):
        e(f's_cmp_eq_u32 s2, {w}')
        e(f's_cselect_b32 s3, {4 + 20 * j}, s3')
    e('s_cmp_eq_u32 s3, 0')
    e('s_cbranch_scc1 L_exit')
    e('v_mov_b32 v2, s3')
    e('s_mov_b64 exec, 1')
    for i in range(n):
        e(f's_sub_u32 s{64+2*i}, s{64+2*i}, s98')
        e(f'v_mov_b32 v3, s{64+2*i}')
        e(f'global_store_dword v2, v3, {sr(S_DBG,2)} offset:{4*i}')
        e('s_nop 1')
    e('s_mov_b64 exec, -1')

class Vm:
    def __init__(self, e): self.e = e; self.q = []
    def out(self): return sum(c for _, c in self.q)
    def has(self, name): return name in [n for n, _ in self.q]
    def wait(self, name):
        names = [n for n, _ in self.q]
        if name not in names: return
        i = names.index(name)
        rest = sum(c for _, c in self.q[i + 1:])
        assert rest <= 63
        self.e(f's_waitcnt vmcnt({rest})')
        self.q = self.q[i + 1:]
    def room(self, c):
        while self.out() + c > 61: self.wait(self.q[0][0])
    def add(self, name, c):
        self.q.append((name, c)); assert self.out() <= 63, self.q
    def stamp(self, o, idx, clk=False):
        if o.stamps:
            self.room(1); stamp(self.e, o, idx, clk); self.add(f'st{idx}', 1)

def prologue(e, o):
    if o.stamps or o.dbgt: e('s_memrealtime s[98:99]')
    e('s_cmp_ge_u32 s2, 256')
    e('s_cbranch_scc1 L_exit')
    e(f's_load_dwordx16 {sr(S_KARG,16)}, s[0:1], 0')
    e(f's_load_dwordx8 {sr(S_KARG+16,8)}, s[0:1], 64')
    e(f's_load_dwordx2 {sr(S_KARG+24,2)}, s[0:1], 96')
    e(f'v_lshrrev_b32 v{V_T0}, 6, v0')
    e(f'v_and_b32 v{V_LANE}, 63, v0')
    e(f'v_readfirstlane_b32 s{S_WAVE}, v{V_T0}')
    e(f's_and_b32 s{S_T0}, s2, 7')
    e(f's_lshr_b32 s{S_T1}, s2, 3')
    e(f's_lshr_b32 s{S_BR}, s{S_T0}, 2')
    e(f's_and_b32 s{S_T2}, s{S_T0}, 3')
    e(f's_lshl_b32 s{S_H}, s{S_T2}, 3')
    e(f's_and_b32 s{S_T3}, s{S_T1}, 7')
    e(f's_add_u32 s{S_H}, s{S_H}, s{S_T3}')
    e(f's_lshr_b32 s{S_BL}, s{S_T1}, 3')
    e(f's_mul_i32 s{S_KX}, s{S_BL}, 5')
    e(f's_add_u32 s{S_KX}, s{S_KX}, 1')
    e(f's_lshr_b32 s{S_KX}, s{S_KX}, 1')
    e(f's_add_u32 s{S_KX}, s{S_KX}, s{S_T3}')
    e(f's_cmp_ge_u32 s{S_KX}, 10')
    e(f's_cselect_b32 s{S_T3}, 10, 0')
    e(f's_sub_u32 s{S_KX}, s{S_KX}, s{S_T3}')
    if o.blk == 0:
        e(f's_mul_i32 s{S_QT}, s{S_T1}, 13')
        e(f's_lshr_b32 s{S_QT}, s{S_QT}, 6')
        e(f's_mul_i32 s{S_T3}, s{S_QT}, 5')
        e(f's_sub_u32 s{S_NT}, s{S_T1}, s{S_T3}')
        e(f's_and_b32 s{S_T3}, s{S_T2}, 1')
        e(f's_mul_i32 s{S_T3}, s{S_T3}, 5')
        e(f's_add_u32 s{S_NT}, s{S_NT}, s{S_T3}')
        e(f's_lshr_b32 s{S_T3}, s{S_T2}, 1')
        e(f's_mul_i32 s{S_T3}, s{S_T3}, 6')
        e(f's_add_u32 s{S_QT}, s{S_QT}, s{S_T3}')
    elif o.blk == 1:
        e(f's_mul_i32 s{S_QT}, s{S_T1}, 26')
        e(f's_lshr_b32 s{S_QT}, s{S_QT}, 8')
        e(f's_mul_i32 s{S_T3}, s{S_QT}, 10')
        e(f's_sub_u32 s{S_NT}, s{S_T1}, s{S_T3}')
        e(f's_mul_i32 s{S_T3}, s{S_T2}, 3')
        e(f's_add_u32 s{S_QT}, s{S_QT}, s{S_T3}')
    else:
        e(f's_mul_i32 s{S_T3}, s{S_T2}, 30')
        e(f's_add_u32 s{S_T3}, s{S_T3}, s{S_T1}')
        e(f's_mul_i32 s{S_NT}, s{S_T3}, 171')
        e(f's_lshr_b32 s{S_NT}, s{S_NT}, 11')
        e(f's_mul_i32 s{S_QT}, s{S_NT}, 12')
        e(f's_sub_u32 s{S_QT}, s{S_T3}, s{S_QT}')
    e(f's_cmp_ge_u32 s{S_T1}, 30')
    e(f's_cselect_b32 s{S_NT}, 15, s{S_NT}')
    e(f's_cselect_b32 s{S_QT}, 0, s{S_QT}')
    e(f's_mul_i32 s{S_QB}, s{S_QT}, 11')
    e(f's_lshr_b32 s{S_QB}, s{S_QB}, 5')
    e(f's_lshl_b32 s{S_STB}, s2, 2')
    e(f's_add_u32 s{S_STB}, s{S_STB}, s{S_WAVE}')
    e(f's_lshl_b32 s{S_STB}, s{S_STB}, 8')
    e(f's_add_u32 s{S_STB}, s{S_STB}, {WS_STAMP}')
    e(f's_lshl_b32 s{S_XL}, s{S_WAVE}, 13')
    e(f's_lshl_b32 s{S_WOB}, s{S_NT}, 7')
    e(f's_cmp_ge_u32 s{S_NT}, 5')
    e(f's_cselect_b32 s{S_T0}, {5 if o.blk == 0 else 0}, 0')
    e(f's_sub_u32 s{S_RHO}, s{S_NT}, s{S_T0}')
    e(f's_mul_i32 s{S_RHO}, s{S_RHO}, {o.rot}')
    e(f's_and_b32 s{S_RHO}, s{S_RHO}, 15')
    for srd, size in ((S_X, 983040), (S_K, 1 << 26), (S_V, 1 << 26), (S_WQ, 5242880), (S_WO, 5242880), (S_OUT, 1966080), (S_WS, 16777216)):
        e(f's_mov_b32 s{srd+2}, {size}')
        e(f's_mov_b32 s{srd+3}, 0x20000')

def srds(e, o):
    e('s_waitcnt lgkmcnt(0)')
    e(f's_cmp_eq_u32 s{S_BR}, 0')
    for srd, i in ((S_WQ, 3), (S_X, 0), (S_K, 1), (S_V, 2), (S_WO, 4)):
        e(f's_cselect_b64 {sr(srd,2)}, {sr(S_KARG+2*i,2)}, {sr(S_KARG+10+2*i,2)}')
    e(f's_mov_b64 {sr(S_OUT,2)}, {sr(S_KARG+20,2)}')
    e(f's_mov_b64 {sr(S_WS,2)}, {sr(S_KARG+24,2)}')
    e(f's_mov_b64 {sr(S_DBG,2)}, {sr(S_KARG+22,2)}')
    for srd in (S_WQ, S_X, S_K, S_V, S_WO, S_OUT, S_WS):
        e(f's_and_b32 s{srd+1}, s{srd+1}, 0xffff')
    lazy(e, o, 1)

def no_task_wo(e):
    e(f's_cmp_eq_u32 s{S_NT}, 15')
    e(f's_cselect_b32 s{S_WO+2}, 0, s{S_WO+2}')

RING = 32768
PF_TICKS = [0, 1, 6, 10, 15, 19, 22, 24, 25, 26, 27]
def reg_w(s): return (32768, 73728, 114688)[(s + 2) % 3]
def reg_x(s): return (49152, 90112, 0)[(s + 2) % 3]

SEQ = ['K0']
for k in range(32): SEQ += [f'K{k+1}', f'V{k}']
SEQ += [f'T{i}' for i in range(8)]
POS = {n: i for i, n in enumerate(SEQ)}
def slot(name): return (6 + POS[name]) % 8
def slot_addr(name): return RING + slot(name) * SLOT

def wo_dma(o, c, ldsbase_s, ldsoff, wob, vw, dyn=False):
    r = []
    if o.no_w and dyn: return ['s_nop 0']
    if dyn:
        r += [f's_mul_i32 s{S_T0}, s{S_WC}, {64*1280}', f's_add_u32 s{S_WC}, s{S_WC}, 1', f's_and_b32 s{S_WC}, s{S_WC}, 15']
    else:
        r += [f's_add_u32 s{S_T0}, s{S_RHO}, {c}', f's_and_b32 s{S_T0}, s{S_T0}, 15', f's_mul_i32 s{S_T0}, s{S_T0}, {64*1280}']
    r.append(f's_add_u32 s{S_T0}, s{S_T0}, {wob}')
    for g_ in range(2):
        r.append(f's_add_u32 m0, {ldsbase_s}, {ldsoff + 4096*g_}' if ldsbase_s else f's_mov_b32 m0, {ldsoff + 4096*g_}')
        r.append(f's_add_u32 s{S_T1}, s{S_T0}, {32*g_*1280}')
        for i in range(4):
            r.append(f'buffer_load_dwordx4 v{vw+i}, {sr(S_WO,4)}, s{S_T1} offen offset:{1024*i} {o.wo_flags} lds')
    return r

def wo_voffs(e, dst):
    L = V_LANE
    e(f'v_lshrrev_b32 v{V_T0}, 3, v{L}')
    e(f'v_mul_u32_u24 v{V_T0}, 1280, v{V_T0}')
    e(f'v_bfe_u32 v{V_T1}, v{L}, 4, 1')
    e(f'v_lshlrev_b32 v{V_T1}, 2, v{V_T1}')
    e(f'v_and_b32 v{V_T2}, 7, v{L}')
    e(f'v_xor_b32 v{V_T1}, v{V_T1}, v{V_T2}')
    e(f'v_lshl_add_u32 v{dst}, v{V_T1}, 4, v{V_T0}')
    for i in range(1, 4): e(f'v_add_u32 v{dst+i}, {(10240-1024)*i}, v{dst}')

def wo_lane_addr(e, dst):
    L = V_LANE
    e(f'v_lshrrev_b32 v{V_T0}, 5, v{L}')
    e(f'v_bfe_u32 v{V_T1}, v{L}, 2, 2')
    e(f'v_lshl_add_u32 v{dst}, v{V_T0}, 2, v{V_T1}')
    e(f'v_lshlrev_b32 v{dst}, 7, v{dst}')
    e(f'v_bfe_u32 v{V_T3}, v{L}, 3, 1')
    e(f'v_lshl_add_u32 v{dst}, v{V_T3}, 6, v{dst}')
    e(f'v_bfe_u32 v{V_T3}, v{L}, 4, 1')
    e(f'v_lshl_add_u32 v{dst}, v{V_T3}, 5, v{dst}')
    e(f'v_and_b32 v{V_T3}, 3, v{L}')
    e(f'v_lshl_add_u32 v{dst}, v{V_T3}, 3, v{dst}')

def wo_reads(dstf, a0, a1, off):
    r = []
    for s4 in range(4):
        for nt in range(2):
            for u in range(2):
                r.append(f'ds_read_b64_tr_b16 {dstf(8*s4+4*nt+2*u,2)}, v{(a0,a1)[nt]} offset:{off+(16*s4+8*u)*128}')
    return r

def poll(e, o, tag, load, test):
    e.many(test)
    e('s_cmp_eq_u64 vcc, -1')
    e(f's_cbranch_scc1 L_polled_{tag}')
    e(f's_mov_b32 s{S_CNT}, 0x400000')
    e.lab(f'L_poll_{tag}')
    e(f's_sleep {o.psleep}')
    e(load)
    e('s_waitcnt vmcnt(0)')
    e.many(test)
    e('s_cmp_eq_u64 vcc, -1')
    e(f's_cbranch_scc1 L_polled_{tag}')
    e(f's_sub_u32 s{S_CNT}, s{S_CNT}, 1')
    e(f's_cmp_lg_u32 s{S_CNT}, 0')
    e(f's_cbranch_scc1 L_poll_{tag}')
    e.lab(f'L_polled_{tag}')

def loader(e, o):
    L = V_LANE
    VK, VV, VW, VWO, VF, VP, VZ = 24, 16, 20, 12, 17, 18, 19
    VA, VB = 96, 100
    AF = [48, 56]; BF = [64, 80]; ACC = 128
    vm = Vm(e)
    e(f'v_lshrrev_b32 v{V_T0}, 4, v{L}')
    e(f'v_and_b32 v{V_T1}, 15, v{L}')
    e(f'v_lshlrev_b32 v{V_T3}, 2, v{V_T0}')
    e(f'v_xor_b32 v{V_T3}, v{V_T3}, v{V_T1}')
    e(f'v_lshlrev_b32 v{V_T2}, 8, v{V_T0}')
    e(f'v_lshl_add_u32 v{VV}, v{V_T3}, 4, v{V_T2}')
    for i in range(4):
        e(f'v_add_u32 v{V_T3}, {4*i}, v{V_T0}')
        e(f'v_xor_b32 v{V_T3}, v{V_T3}, v{V_T1}')
        e(f'v_lshl_add_u32 v{VK+i}, v{V_T3}, 4, v{V_T2}')
    e(f's_lshl_b32 s{S_KVB}, s{S_BL}, 5')
    e(f's_add_u32 s{S_KVB}, s{S_KVB}, s{S_H}')
    e(f's_lshl_b32 s{S_KVB}, s{S_KVB}, 18')
    e(f's_and_b32 s{S_KR}, s2, 7')
    e(f's_lshl_b32 s{S_KR}, s{S_KR}, 1')
    e(f's_lshr_b32 s{S_T0}, s2, 3')
    e(f's_add_u32 s{S_KR}, s{S_KR}, s{S_T0}')
    e(f's_and_b32 s{S_KR}, s{S_KR}, {15 if o.krot else 0}')
    e(f's_lshl_b32 s{S_KR}, s{S_KR}, 14')
    e(f'v_lshlrev_b32 v{VW}, 19, v{L}')
    e(f'v_lshlrev_b32 v{VW+1}, 25, v{L}')
    e(f'v_mov_b32 v{VZ}, 0')
    e(f'v_lshlrev_b32 v{VW+3}, 18, v{L}')
    e(f's_lshl_b32 s{S_T0}, s{S_BR}, 2')
    e(f's_add_u32 s{S_FL}, s{S_T0}, s{S_BL}')
    e(f's_lshl_b32 s{S_FL}, s{S_FL}, 5')
    e(f's_add_u32 s{S_FL}, s{S_FL}, s{S_H}')
    e(f's_lshl_b32 s{S_FL}, s{S_FL}, 7')
    e(f's_add_u32 s{S_FL}, s{S_FL}, {WS_FLAGS}')
    e(f's_mul_i32 s{S_T2}, s{S_BR}, 8')
    e(f's_add_u32 s{S_T2}, s{S_T2}, s{S_BL}')
    e(f's_mul_i32 s{S_T2}, s{S_T2}, 96')
    e(f's_add_u32 s{S_T2}, s{S_T2}, s{S_H}')
    e(f's_lshl_b32 s{S_T2}, s{S_T2}, 13')
    srds(e, o)
    if o.tlb:
        e('s_mov_b64 exec, 3')
        e(f'buffer_load_dword v{VW+2}, v{VW+1}, {sr(S_K,4)}, s{S_KVB} offen')
        e(f'buffer_load_dword v{VW+2}, v{VW+1}, {sr(S_V,4)}, s{S_KVB} offen')
        e('s_mov_b64 exec, 0x3ffffff')
        e(f'buffer_load_dword v{VW+2}, v{VW}, {sr(S_WO,4)}, 0 offen')
        e(f'buffer_load_dword v{VW+2}, v{VW}, {sr(S_OUT,4)}, 0 offen')
        e('s_mov_b64 exec, 0x7007')
        e(f'buffer_load_dword v{VW+2}, v{VW+3}, {sr(S_WS,4)}, s{S_T2} offen')
        e('s_mov_b64 exec, 1')
        e(f'buffer_load_dword v{VW+2}, v{VZ}, {sr(S_WS,4)}, s{S_FL} offen')
        e('s_mov_b64 exec, -1')
        vm.add('tlb', 6)
    def issue_l(name):
        kind, t = name[0], int(name[1:])
        r = []
        if kind == 'K' and t > 31: return r
        base = slot_addr(name)
        if kind in 'KV':
            off = (t // 16) * (4 * 32 * 262144)
            r.append(f's_add_u32 s{S_T0}, s{S_KR}, {(t % 16) * SLOT}')
            r.append(f's_and_b32 s{S_T0}, s{S_T0}, {16 * SLOT - 1}')
            r.append(f's_add_u32 s{S_T0}, s{S_T0}, s{S_KVB}')
            for g in range(4):
                r.append(f's_mov_b32 m0, {base + 4096*g}')
                r.append(f's_add_u32 s{S_T1}, s{S_T0}, {off + 4096*g}')
                for i in range(4):
                    v = VK + i if kind == 'K' else VV
                    r.append(f'buffer_load_dwordx4 v{v}, {sr(S_K if kind == "K" else S_V,4)}, s{S_T1} offen offset:{1024*i} {o.kv_flags} lds')
        else:
            rr = slot(name); j, hi = 1 + (rr >> 1), rr & 1
            if j == 4: return r
            for p in range(2):
                r.append(f's_add_u32 s{S_T2}, s{S_WOB}, {1024*1280*(2*hi+p)}')
                r += wo_dma(o, (12 if (o.w3 and hi and p) else 8) + j, None, base + 8192 * p, f's{S_T2}', VWO)
        return r
    def issue(name):
        r = issue_l(name)
        if r:
            vm.room(16); e.many(r); vm.add(name, 16)
    def own_w(c):
        vm.room(8)
        e(f's_add_u32 s{S_T2}, s{S_WOB}, {1024*1280*3}')
        e.many(wo_dma(o, c, None, 3 * 8192, f's{S_T2}', VWO))
        vm.add(f'w{c}', 8)
    def wait_upto(n):
        for m in range(n, -1, -1):
            if vm.has(SEQ[m]): vm.wait(SEQ[m]); return
    def flag(val):
        return [f's_add_u32 s{S_T0}, s{S_N}, {val}', f'v_mov_b32 v{V_T2}, s{S_T0}', 's_mov_b64 exec, 1',
                f'buffer_store_dword v{V_T2}, v{VZ}, {sr(S_WS,4)}, s{S_FL} offen sc1', 's_mov_b64 exec, -1']
    if o.pf_a:
        if o.pf_delay: e(f's_sleep {o.pf_delay}')
        e(f'v_lshrrev_b32 v{VW}, 1, v{L}')
        e(f'v_lshlrev_b32 v{VW}, 13, v{VW}')
        e(f'v_and_b32 v{VW+1}, 1, v{L}')
        e(f'v_lshl_add_u32 v{VW}, v{VW+1}, 7, v{VW}')
        e(f's_mul_i32 s{S_T0}, s{S_BL}, {160*8192}')
        e(f's_lshl_b32 s{S_T1}, s{S_H}, 8')
        e(f's_add_u32 s{S_T0}, s{S_T0}, s{S_T1}')
        for i in range(5):
            e(f's_add_u32 s{S_T1}, s{S_T0}, {32*i*8192}')
            e(f'buffer_load_dword v{VW+2}, v{VW}, {sr(S_WQ,4)}, s{S_T1} offen {o.w_flags}')
        e(f'v_lshlrev_b32 v{VW+1}, 7, v{L}')
        e(f's_and_b32 s{S_T0}, s{S_H}, 7')
        e(f's_mul_i32 s{S_T0}, s{S_T0}, 15360')
        e(f's_mul_i32 s{S_T1}, s{S_BL}, 122880')
        e(f's_add_u32 s{S_T0}, s{S_T0}, s{S_T1}')
        for i in range(4):
            e(f's_add_u32 s{S_T1}, s{S_T0}, {(i >> 1) * 491520 + (i & 1) * 8192}')
            e(f'buffer_load_dword v{VW+2}, v{VW+1}, {sr(S_X,4)}, s{S_T1} offen {o.w_flags}')
        vm.add('pfa', 9)
    if o.k_first: issue('K0'); issue('K1')
    e('s_cmp_lg_u32 s2, 0')
    e('s_cbranch_scc1 L_notag')
    e(f's_memrealtime {sr(S_ST,2)}')
    e('s_waitcnt lgkmcnt(0)')
    e(f's_mul_i32 s{S_ST+1}, s{S_ST+1}, 0x9e3779b1')
    e(f's_add_u32 s{S_ST}, s{S_ST}, s{S_ST+1}')
    e(f's_or_b32 s{S_ST}, s{S_ST}, 4')
    e(f's_and_b32 s{S_ST}, s{S_ST}, -4')
    e(f'v_mov_b32 v{V_T2}, s{S_ST}')
    e('s_mov_b64 exec, 1')
    e(f'global_store_dword v{VZ}, v{V_T2}, {sr(S_DBG,2)} sc1')
    e('s_mov_b64 exec, -1')
    e.lab('L_notag')
    e(f's_lshl_b32 s{S_T0}, s{S_BR}, 2')
    e(f's_add_u32 s{S_T0}, s{S_T0}, s{S_QB}')
    e(f's_lshl_b32 s{S_T0}, s{S_T0}, 12')
    e(f's_add_u32 s{S_T0}, s{S_T0}, {WS_FLAGS}')
    e(f'v_and_b32 v{VP}, 31, v{L}')
    e(f'v_lshlrev_b32 v{VP}, 7, v{VP}')
    e(f'v_add_u32 v{VP}, s{S_T0}, v{VP}')
    a_addr(e, VA, VB, None)
    wo_voffs(e, VWO)
    wo_lane_addr(e, V_WA)
    e(f'v_lshlrev_b32 v{VW}, 7, v{L}')
    e(f'v_add_u32 v{V_WA}, {3*8192}, v{V_WA}')
    e(f'v_xor_b32 v{V_WA+1}, 64, v{V_WA}')
    e(f'v_lshlrev_b32 v{V_OST}, 4, v{L}')
    e(f's_mov_b32 s{S_C}, {SCALE}')
    pf = []
    for n in range(2, 2 + o.pf_kv):
        kind, t = SEQ[n][0], int(SEQ[n][1:])
        for hh in range(2):
            pf.append([f's_add_u32 s{S_T1}, s{S_KVB}, {t*SLOT + hh*8192}',
                       f'buffer_load_dword v{VW+1}, v{VW}, {sr(S_K if kind == "K" else S_V,4)}, s{S_T1} offen {o.pf_flags}'])
    if o.pf_wo:
        e(f's_lshl_b32 s{S_T2}, s{S_H}, 2')
        e(f's_add_u32 s{S_T2}, s{S_T2}, s{S_BL}')
        e(f's_mul_i32 s{S_T2}, s{S_T2}, 40960')
        for i in range(5):
            pf.append([f's_add_u32 s{S_T1}, s{S_T2}, {i*8192}',
                       f'buffer_load_dword v{VW+1}, v{VW}, {sr(S_WO,4)}, s{S_T1} offen {o.pf_flags}'])
    def reads(s4, buf):
        r = []
        for t in (2, 3):
            for u in range(2):
                r.append(f'ds_read_b64_tr_b16 {vr(AF[buf]+4*(t-2)+2*u,2)}, v{VA+t} offset:{(16*s4+4*u)*256}')
        r += [f'ds_read_b128 {vr(BF[buf]+4*j,4)}, v{VB+s4} offset:{8192*j + 4096}' for j in range(3)]
        return r
    def mf(buf, first):
        r = []
        for j in range(3):
            for t in range(2):
                d = vr(ACC + 32 * j + 16 * t, 16)
                r.append(mfma(d, vr(AF[buf] + 4 * t, 4), vr(BF[buf] + 4 * j, 4), '0' if first else d))
        return r
    extra = {}
    def ride(step, name, ins, cnt):
        extra.setdefault(step, []).append((name, ins, cnt))
    if not o.k_first:
        for i, nm in enumerate(('K0', 'K1')):
            ins = issue_l(nm)
            for q in range(4): ride(4 * o.k_s0 + 4 * i + q, nm if q == 3 else None, ins[(3 + 6 * q if q else 0):3 + 6 * q + 6], 4)
    npf = 4 * (7 - o.pf_s0)
    for i, x in enumerate(pf): ride(4 * o.pf_s0 + (i * npf) // max(len(pf), 1), 'pf', x, 1)
    for i, nm in enumerate(('V0', 'K2')):
        ins = issue_l(nm)
        for q in range(2): ride(31 + 2 * i + q, nm if q == 1 else None, ins[(15 if q else 0):3 + 12 * q + 12], 8)
    ins = issue_l('V1')
    for q in range(0 if o.v1_late else 2): ride(35 + q, 'V1' if q == 1 else None, ins[(15 if q else 0):3 + 12 * q + 12], 8)
    e('s_barrier')
    e.many(reads(0, 0))
    e.skip = o.a_skip
    for s in range(10):
        for s4 in range(4):
            step = 4 * s + s4; buf = step & 1
            e('s_waitcnt lgkmcnt(0)')
            if step == 31: no_task_wo(e)
            if s4 == 3:
                if s == 9: vm.wait('K1')
                e('s_barrier')
            late = []
            for name, ins, cnt in extra.get(step, []):
                vm.room(cnt); late += ins; vm.add(name or 'part', cnt)
            if s4 == 2 and s < 9: late += a_step(s, VA)
            front = reads((s4 + 1) & 3, buf ^ 1) if step < 39 else []
            gaps(e, mf(buf, step == 0), front, late, per=max(o.aper - 1, 3), late_from=(2 if s4 == 2 else 1))
    e.skip = ''
    if o.v1_late: issue('V1')
    e('s_nop 7'); e('s_nop 3')
    for j in range(3):
        for i in range(16): e.many(conv(i, ACC + 32 * j, ACC + 32 * j))
        for f in range(4): e(f'ds_write_b128 v{V_OST}, {vr(ACC+32*j+4*f,4)} offset:{8192*j + 1024*f}')
    e('s_waitcnt lgkmcnt(0)')
    issue('K3')
    issued = POS['K3']
    e(f's_lshr_b32 s{S_WC}, s2, 3')
    e(f's_mul_i32 s{S_KX}, s{S_WC}, 13')
    e(f's_lshr_b32 s{S_KX}, s{S_KX}, 6')
    vm.wait('pfa')
    e(f'v_mul_u32_u24 v{VW+2}, 1280, v{L}')
    vm_pg = [None]
    ld_own = f'buffer_load_dword v23, v22, {sr(S_WS,4)}, 0 offen sc1'
    T3 = Tail(e, o); T3.vm = vm
    T3.free = [1000 + r for r in range(32, 64, 4)]
    e.T3 = T3
    def shadow_mm(c, first):
        m = []
        af = (lambda off, n: hold3(c, off, n)) if c < 12 else (lambda off, n: vr(32 + off, n))
        for s4 in range(4):
            for nt in range(2):
                d = ar(16 * nt, 16)
                m.append(mfma(d, af(8 * s4 + 4 * nt, 4), reg4(T3.where[(0, c)][s4]), '0' if (first and s4 == 0) else d))
        return m
    ld_cnt = f'global_load_dword v23, v{VZ}, {sr(S_DBG,2)} sc1'
    ld_fl = f'buffer_load_dword v23, v{VP}, {sr(S_WS,4)}, 0 offen sc1'
    for k in range(32):
        wait_upto(POS[f'V{k}'])
        vm.stamp(o, 32 + k) if o.tickst == 1 else None
        e('s_barrier')
        vm.stamp(o, 32 + k) if o.tickst == 2 else None
        if k == (18 if o.t15 else 19):
            vm.room(1); e.many(flag(1)); vm.add('f1', 1)
        if o.pf_w and k in PF_TICKS:
            vm.room(1)
            e(f's_add_u32 s{S_T0}, s{S_KX}, {6 * PF_TICKS.index(k)}')
            e(f's_and_b32 s{S_T2}, s{S_T0}, 3')
            e(f's_lshl_b32 s{S_T2}, s{S_T2}, 4')
            e(f's_lshr_b32 s{S_T0}, s{S_T0}, 2')
            e(f's_add_u32 s{S_T0}, s{S_T0}, s{S_RHO}')
            e(f's_and_b32 s{S_T0}, s{S_T0}, 15')
            e(f's_add_u32 s{S_T0}, s{S_T0}, s{S_T2}')
            e(f's_mul_i32 s{S_T0}, s{S_T0}, {64*1280}')
            e(f's_add_u32 s{S_T0}, s{S_T0}, s{S_WOB}')
            e(f'buffer_load_dword v{VW+1}, v{VW+2}, {sr(S_WO,4)}, s{S_T0} offen {o.wo_flags}')
            vm.add('pft', 1)
        wper = 2 if o.w3 else 3
        wev = (k - 2) // wper if (k >= 2 and (k - 2) % wper == 0 and k <= 26) else None
        if wev:
            vm.wait(f'w{wev-1}')
            e.many(wo_reads(lambda off, n: hold3(wev - 1, off, n), V_WA, V_WA + 1, 0))
        if o.w3 and k == o.w3k - 1:
            e(f'v_and_b32 v22, 7, v{L}')
            e(f'v_lshlrev_b32 v22, 7, v22')
            e(f'v_readfirstlane_b32 s{S_T0}, v{VP}')
            e(f's_add_u32 s{S_T0}, s{S_T0}, {24*128}')
            e(f'v_add_u32 v22, s{S_T0}, v22')
            vm.room(1); e(ld_own); vm.add('po', 1)
        if o.bal and k == o.tagk + 1:
            e(f's_and_b32 s{S_T0}, s2, 7')
            e(f'v_and_b32 v34, 7, v{L}')
            e(f's_lshl_b32 s{S_T2}, s{S_T0}, 10')
            e(f's_add_u32 s{S_T2}, s{S_T2}, {WS_PROG}')
            e(f'v_lshlrev_b32 v32, 7, v34')
            e(f'v_add_u32 v32, s{S_T2}, v32')
            e(f's_lshl_b32 s{S_T2}, s{S_T0}, 7')
            e(f's_add_u32 s{S_T2}, s{S_T2}, {WS_PROG}')
            e(f'v_lshlrev_b32 v33, 10, v34')
            e(f'v_add_u32 v33, s{S_T2}, v33')
        if o.bal and o.tagk + 1 <= k <= 29:
            e('s_cmp_lt_u32 s2, 8')
            e(f's_cbranch_scc0 L_norep{k}')
            e(f's_add_u32 s{S_T0}, s{S_N}, {4 * k}')
            e(f'v_mov_b32 v35, s{S_T0}')
            e('s_mov_b64 exec, 0xff')
            e(f'buffer_store_dword v35, v32, {sr(S_WS,4)}, 0 offen sc1')
            e('s_mov_b64 exec, -1')
            e.lab(f'L_norep{k}')
        thr_now = False
        if o.bal and vm_pg[0] is not None and vm_pg[0] + 1 == k:
            vm.wait('pg')
            e(f'v_subrev_u32 v34, s{S_N}, v34')
            e(f'v_cmp_ge_u32 vcc, {4 * (k - o.bal_lag)}, v34')
            e(f's_and_b32 s{S_T0}, vcc_lo, 0xff')
            e(f's_bcnt1_i32_b32 s{S_T0}, s{S_T0}')
            e(f's_cmp_ge_u32 s{S_T0}, {o.bal}')
            e(f's_cbranch_scc0 L_go{k}')
            e('s_waitcnt vmcnt(0)')
            if o.bal_sl: e(f's_sleep {o.bal_sl}')
            e.lab(f'L_go{k}')
        if k in (o.tagk, 28):
            vm.room(1); e(ld_cnt if k == o.tagk else ld_fl); vm.add('pl', 1)
        if k == 30 and not o.w3:
            tail_setup(e, o)
            vm.room(4 * o.nearly); e.many(e.early); vm.add('early', 4 * o.nearly)
        sh = []
        if o.w3 and o.w3k < k <= o.w3k + 6: sh = [2 * (k - o.w3k - 1), 2 * (k - o.w3k - 1) + 1]
        if o.w3 and k == o.w3k + 7: sh = [12]
        first = POS[f'K{k+1}']
        lk = o.look if o.look_k0 <= k < o.look_k1 else o.look_lo
        if k >= 28: lk = 7 if first + o.look_lo >= POS['V31'] else lk
        lim = min(first + lk, first + 7, POS['T6'])
        if k == 31: lim = POS['T6']
        if o.tsched == 1 and k in (29, 30): lim = min(lim, POS['T1'] + (k - 29))
        if o.tsched == 2 and k < 31: lim = min(lim, POS['V31'])
        if o.tsched == 3 and k == 29: lim = min(lim, POS['V31'])
        done_sh = False
        def do_shadow(fill):
            if sh == [12]:
                vm.wait('w12')
                e.many(wo_reads(lambda off, n: vr(32 + off, n), V_WA, V_WA + 1, 0))
                e('s_waitcnt lgkmcnt(0)')
            elif wev: e('s_waitcnt lgkmcnt(0)')
            for c in sh: vm.wait(f'o0_{c}')
            m = []
            for c in sh: m += shadow_mm(c, c == 0)
            gaps(e, m, fill(), per=3)
            for c in sh: T3.free += T3.where[(0, c)]
            vm.room(8); e.many(T3.pump(2))
        while issued < lim:
            issued += 1
            if sh and issued == lim and issue_l(SEQ[issued]):
                def fill():
                    vm.room(16); vm.add(SEQ[issued], 16)
                    return issue_l(SEQ[issued])
                do_shadow(fill); done_sh = True
            elif o.gran < 16 and SEQ[issued][0] in 'KV' and k < o.thr_end and issue_l(SEQ[issued]):
                ins = issue_l(SEQ[issued]); ng = o.gran // 4
                for q in range(0, 4, ng):
                    vm.room(o.gran)
                    e.many(ins[(3 + 6 * q if q else 0):3 + 6 * (q + ng)])
                    vm.add(SEQ[issued] if q + ng == 4 else 'part', o.gran)
                    while vm.out() > o.thr: vm.wait(vm.q[0][0])
            else:
                issue(SEQ[issued])
            while vm.out() > o.thr + (8 if done_sh else 0) and k < o.thr_end: vm.wait(vm.q[0][0])
        if sh and not done_sh: do_shadow(lambda: [])
        if o.w3 and k == o.w3k:
            vm.wait('po')
            e(f's_add_u32 s{S_T3}, s{S_N}, 1')
            poll(e, o, 'r1o', ld_own, ['v_and_b32 v23, -3, v23', f'v_cmp_eq_u32 vcc, s{S_T3}, v23'])
            tail_setup(e, o)
            T3.todo = [(0, c) for c in range(16)]
            vm.room(8); e.many(T3.pump(2))
        if k == o.tagk:
            vm.wait('pl')
            poll(e, o, 'tag', ld_cnt, ['v_cmp_ne_u32 vcc, 0, v23'])
            e(f'v_readfirstlane_b32 s{S_N}, v23')
        if k == 28:
            vm.wait('pl')
            e(f's_add_u32 s{S_T3}, s{S_N}, 1')
            poll(e, o, 'r1', ld_fl, ['v_and_b32 v23, -3, v23', f'v_cmp_eq_u32 vcc, s{S_T3}, v23'])
        if wev is not None:
            e('s_waitcnt lgkmcnt(0)')
            own_w(wev)
    e('s_barrier')
    e.many(flag(3))
    e('s_waitcnt vmcnt(1)')
    vm.q = []

def a_addr(e, VA, VB, xl):
    L = V_LANE
    e(f'v_lshrrev_b32 v{V_T0}, 5, v{L}')
    e(f'v_bfe_u32 v{V_T1}, v{L}, 2, 2')
    e(f'v_lshl_add_u32 v{V_T2}, v{V_T0}, 3, v{V_T1}')
    e(f'v_lshlrev_b32 v{V_T2}, 8, v{V_T2}')
    e(f'v_lshl_add_u32 v{V_T2}, v{V_T1}, 6, v{V_T2}')
    e(f'v_bfe_u32 v{V_T3}, v{L}, 4, 1')
    e(f'v_lshl_add_u32 v{V_T2}, v{V_T3}, 5, v{V_T2}')
    e(f'v_and_b32 v{V_T3}, 1, v{L}')
    e(f'v_lshl_add_u32 v{V_T2}, v{V_T3}, 4, v{V_T2}')
    e(f'v_bfe_u32 v{V_T3}, v{L}, 1, 1')
    e(f'v_lshl_add_u32 v{V_T2}, v{V_T3}, 3, v{V_T2}')
    for t in range(4):
        e(f'v_xor_b32 v{VA+t}, {64*t}, v{V_T2}')
        e(f'v_add_u32 v{VA+t}, {reg_w(0)}, v{VA+t}')
    e(f'v_and_b32 v{V_T1}, 31, v{L}')
    e(f'v_bfe_u32 v{V_T2}, v{L}, 1, 3')
    e(f'v_xor_b32 v{V_T2}, v{V_T2}, v{V_T0}')
    e(f'v_lshlrev_b32 v{V_T2}, 4, v{V_T2}')
    e(f'v_lshl_add_u32 v{V_T2}, v{V_T1}, 7, v{V_T2}')
    if xl is not None:
        e(f's_add_u32 s{S_T0}, s{xl}, {reg_x(0)}')
    for s4 in range(4):
        e(f'v_xor_b32 v{VB+s4}, {32*s4}, v{V_T2}')
        e(f'v_add_u32 v{VB+s4}, s{S_T0}, v{VB+s4}' if xl is not None else f'v_add_u32 v{VB+s4}, {reg_x(0)}, v{VB+s4}')

def a_step(s, VA):
    r = []
    for i in range(8):
        d = reg_w(s + 1) - reg_w(s) if i < 4 else reg_x(s + 1) - reg_x(s)
        r.append(f'v_add_u32 v{VA+i}, {d}, v{VA+i}' if d > 0 else f'v_subrev_u32 v{VA+i}, {-d}, v{VA+i}')
    return r

SCALE = hex(struct.unpack("<I", struct.pack("<f", math.log2(math.e) / math.sqrt(128.0)))[0])
def conv(i, src, dst):
    a = src + 2 * i
    return [f'v_mul_f32 v{a}, s{S_C}, v{a}', f'v_mul_f32 v{a+1}, s{S_C}, v{a+1}', f'v_cvt_pk_bf16_f32 v{dst+i}, v{a}, v{a+1}']

def phase_a(e, o):
    L = V_LANE
    VA, VB = V_Q, V_Q + 4
    AF = [V_SA, V_SB]; BF = [V_P, V_TMP]; ACC = [128, 192]
    e(f'v_lshrrev_b32 v{V_T0}, 3, v{L}')
    e(f'v_mul_u32_u24 v{V_T0}, 1280, v{V_T0}')
    e(f'v_lshrrev_b32 v{V_T1}, 4, v{L}')
    e(f'v_and_b32 v{V_T2}, 7, v{L}')
    e(f'v_xor_b32 v{V_T1}, v{V_T1}, v{V_T2}')
    for i in range(4):
        e(f'v_xor_b32 v{V_T2}, {4*(i&1)}, v{V_T1}')
        e(f'v_lshl_add_u32 v{V_DMA+i}, v{V_T2}, 4, v{V_T0}')
        if i: e(f'v_add_u32 v{V_DMA+i}, {(10240-1024)*i}, v{V_DMA+i}')
    e(f's_mul_i32 s{S_XB}, s{S_BL}, 3')
    e(f's_add_u32 s{S_XB}, s{S_XB}, s{S_WAVE}')
    e(f's_mul_i32 s{S_OB}, s{S_BR}, 24')
    e(f's_add_u32 s{S_OB}, s{S_OB}, s{S_XB}')
    e(f's_mul_i32 s{S_XB}, s{S_XB}, 40960')
    def xload(s, it):
        r = []
        if it == 0:
            r.append(f's_lshl_b32 s{S_T0}, s{S_KX}, 7')
            r.append(f's_add_u32 s{S_T0}, s{S_T0}, s{S_XB}')
        r.append(f's_add_u32 m0, s{S_XL}, {reg_x(s) + 4096*it}')
        r.append(f's_add_u32 s{S_T1}, s{S_T0}, {491520*it}')
        for i in range(4):
            r.append(f'buffer_load_dwordx4 v{V_DMA+i}, {sr(S_X,4)}, s{S_T1} offen offset:{1024*i} {o.w_flags} lds')
        if it == 1:
            r.append(f's_add_u32 s{S_KX}, s{S_KX}, 1')
            r.append(f's_cmp_eq_u32 s{S_KX}, 10')
            r.append(f's_cselect_b32 s{S_KX}, 0, s{S_KX}')
        return r
    VWQ = V_Q + 8
    e(f'v_lshrrev_b32 v{V_T0}, 4, v{L}')
    e(f'v_and_b32 v{V_T1}, 15, v{L}')
    e(f'v_lshlrev_b32 v{V_T3}, 2, v{V_T0}')
    e(f'v_xor_b32 v{V_T3}, v{V_T3}, v{V_T1}')
    e(f'v_lshlrev_b32 v{V_T2}, 13, v{V_T0}')
    e(f'v_lshl_add_u32 v{VWQ}, v{V_T3}, 4, v{V_T2}')
    for i in range(1, 4): e(f'v_add_u32 v{VWQ+i}, {(32768-1024)*i}, v{VWQ}')
    e(f's_mul_i32 s{S_KVB}, s{S_WAVE}, {5*32768}')
    e(f's_lshl_b32 s{S_T0}, s{S_H}, 8')
    e(f's_add_u32 s{S_KVB}, s{S_KVB}, s{S_T0}')
    e(f's_mul_i32 s{S_FL}, s{S_WAVE}, {5*1024}')
    def wqload(s):
        r = [f's_lshl_b32 s{S_T2}, s{S_KX}, 19', f's_add_u32 s{S_T2}, s{S_T2}, s{S_KVB}']
        for t in range(6):
            if t % 4 == 0:
                r.append(f's_add_u32 m0, s{S_FL}, {reg_w(s) + 1024*t}')
                r.append(f's_add_u32 s{S_T1}, s{S_T2}, {32768*t}')
            r.append(f'buffer_load_dwordx4 v{VWQ+(t&3)}, {sr(S_WQ,4)}, s{S_T1} offen offset:{1024*(t&3)} {o.w_flags} lds')
        return r
    srds(e, o)
    e.many(wqload(0)); e.many(xload(0, 0)); e.many(xload(0, 1))
    lazy(e, o, 2)
    no_task_wo(e)
    e(f's_lshl_b32 s{S_OB}, s{S_OB}, 5')
    e(f's_add_u32 s{S_OB}, s{S_OB}, s{S_H}')
    e(f's_lshl_b32 s{S_OB}, s{S_OB}, 13')
    a_addr(e, VA, VB, S_XL)
    e(f'v_and_b32 v{V_T2}, 15, v{L}')
    e(f'v_xor_b32 v{V_T2}, v{V_T2}, v{V_T0}')
    e(f'v_lshlrev_b32 v{V_T2}, 4, v{V_T2}')
    e(f'v_lshl_add_u32 v{V_T2}, v{V_T1}, 8, v{V_T2}')
    for s in range(8):
        e(f'v_xor_b32 v{V_KA+s}, {32*s}, v{V_T2}')
        e(f'v_add_u32 v{V_KA+s}, {slot_addr("K0")}, v{V_KA+s}')
    e(f'v_bfe_u32 v{V_T1}, v{L}, 2, 2')
    e(f'v_lshl_add_u32 v{V_T2}, v{V_T0}, 2, v{V_T1}')
    e(f'v_lshlrev_b32 v{V_T2}, 8, v{V_T2}')
    e(f'v_lshl_add_u32 v{V_T2}, v{V_T1}, 6, v{V_T2}')
    e(f'v_bfe_u32 v{V_T3}, v{L}, 4, 1')
    e(f'v_lshl_add_u32 v{V_T2}, v{V_T3}, 5, v{V_T2}')
    e(f'v_and_b32 v{V_T3}, 3, v{L}')
    e(f'v_lshl_add_u32 v{V_T2}, v{V_T3}, 3, v{V_T2}')
    e(f'v_add_u32 v{V_T2}, {RING}, v{V_T2}')
    for t in range(4): e(f'v_xor_b32 v{V_VA+t}, {64*t}, v{V_T2}')
    e(f'v_lshlrev_b32 v{V_OST}, 4, v{L}')
    e(f'v_add_u32 v{V_OST+3}, s{S_XL}, v{V_OST}')
    wo_lane_addr(e, V_WA)
    e(f'v_add_u32 v{V_WA}, s{S_XL}, v{V_WA}')
    e(f'v_xor_b32 v{V_WA+1}, 64, v{V_WA}')
    e(f's_mul_i32 s{S_WQB}, s{S_WAVE}, {1024*1280}')
    e(f's_add_u32 s{S_WQB}, s{S_WQB}, s{S_WOB}')
    e(f's_mov_b32 s{S_WC}, s{S_RHO}')
    e(f's_add_u32 s{S_WN}, s{S_WAVE}, 4')
    e(f's_mov_b32 s{S_EV}, 0')
    for i in range(64): e(f'v_accvgpr_write_b32 a{i}, 0')
    for i in range(16): e(f'v_mov_b32 v{V_NEGM+i}, 0')
    for i in range(4): e(f'v_mov_b32 v{V_L+i}, 0')
    e(f's_mov_b32 s{S_C}, {SCALE}')
    e(f's_mov_b32 s{S_THR}, 0xff800000')
    e(f's_mov_b32 s{S_FLOOR}, 0xff800000')
    e(f's_mov_b32 s{S_TICK}, 0')
    e(f's_mov_b32 s{S_KOFF}, {7*SLOT}')
    e(f's_mov_b32 s{S_VOFF}, 0')
    nst = 0
    lazy(e, o, 5)
    e.many(wqload(1)); e.many(xload(1, 0)); e.many(xload(1, 1))
    lazy(e, o, 6)
    def reads(s4, buf):
        r = [f'ds_read_b128 {vr(BF[buf]+4*it,4)}, v{VB+s4} offset:{4096*it}' for it in range(2)]
        for t in range(4):
            for u in range(2):
                r.append(f'ds_read_b64_tr_b16 {vr(AF[buf]+4*t+2*u,2)}, v{VA+t} offset:{(16*s4+4*u)*256}')
        return r
    def mf(buf, first):
        r = []
        for t in range(4):
            for it in range(2):
                if it == 1 and t >= 2: continue
                d = vr(ACC[it] + 16 * t, 16)
                r.append(mfma(d, vr(AF[buf] + 4 * t, 4), vr(BF[buf] + 4 * it, 4), '0' if first else d))
        return r
    e(f's_waitcnt vmcnt({14 + nst})')
    lazy(e, o, 7)
    e('s_barrier')
    lazy(e, o, 8)
    dmark(e, o, 0)
    e.many(reads(0, 0))
    e.skip = o.a_skip
    for s in range(10):
        for s4 in range(4):
            step = 4 * s + s4; buf = step & 1
            if step in (8, 16, 24, 32, 39): lazy(e, o, 9 + (8, 16, 24, 32, 39).index(step))
            if o.stamps and step in (8, 32): e(f's_memtime s[{LAZY[3 if step == 8 else 4]}:{LAZY[3 if step == 8 else 4]+1}]')
            m = mf(buf, step == 0)
            late = []
            e('s_waitcnt lgkmcnt(0)')
            if s4 == 3:
                if s < 9:
                    e(f's_waitcnt vmcnt({(14 if s + 2 <= 9 else 0) + (nst if s < 2 else 0)})')
                e('s_barrier')
                if s + 3 <= 9: late = wqload(s + 3)
            if s4 == 0 and s + 2 <= 9: late = (wqload(2) if s == 0 else []) + xload(s + 2, 0)
            if s4 == 1 and s + 2 <= 9: late = xload(s + 2, 1)
            if s4 == 2 and s < 9: late = a_step(s, VA)
            front = reads((s4 + 1) & 3, buf ^ 1) if step < 39 else []
            gaps(e, m, front, late, per=o.aper, late_from=(3 if o.aper == 3 and s4 == 2 else 2 if o.aper >= 4 else 1))
    e.skip = ''
    wo_voffs(e, V_DMA)
    e('s_nop 4')
    for i in range(16): e.many(conv(i, ACC[0], V_Q))
    e.many(k_reads(0))
    for i in range(16, 32): e.many(conv(i, ACC[0], V_Q))

def k_reads(half):
    return [f'ds_read_b128 {vr(V_KF+4*s,4)}, v{V_KA+s} offset:{8192*half}' for s in range(8)]
def v_reads(half):
    r = []
    for jj in range(2):
        for t in range(4):
            for u in range(2):
                r.append(f'ds_read_b64_tr_b16 {vr(V_VF+16*jj+4*t+2*u,2)}, v{V_VA+t} offset:{(32*half+16*jj+8*u)*256}')
    return r
def qk(S):
    return [mfma(vr(S, 16), vr(V_KF + 4 * s, 4), vr(V_Q + 4 * s, 4), vr(V_NEGM, 16) if s == 0 else vr(S, 16)) for s in range(8)]
def pv():
    return [mfma(ar(16 * t, 16), vr(V_VF + 16 * jj + 4 * t, 4), vr(V_P + 4 * jj, 4), ar(16 * t, 16)) for jj in range(2) for t in range(4)]
def maxes(S):
    r = [f'v_max3_f32 v{V_MX}, v{S}, v{S+1}, v{S+2}', f'v_max3_f32 v{V_D}, v{S+3}, v{S+4}, v{S+5}']
    r += [f'v_max3_f32 v{V_MX}, v{V_MX}, v{S+6}, v{S+7}', f'v_max3_f32 v{V_D}, v{V_D}, v{S+8}, v{S+9}']
    r += [f'v_max3_f32 v{V_MX}, v{V_MX}, v{S+10}, v{S+11}', f'v_max3_f32 v{V_D}, v{V_D}, v{S+12}, v{S+13}']
    r += [f'v_max3_f32 v{V_MX}, v{V_MX}, v{S+14}, v{S+15}', f'v_max_f32 v{V_MX}, v{V_MX}, v{V_D}']
    r += [f'v_cmp_lt_f32 vcc, s{S_THR}, v{V_MX}']
    return r

def half_tick(e, Snew, Sold, vhalf, khalf, extra_v=(), extra_k=(), extra_8=()):
    ex = lambda i: f'v_exp_f32 v{Sold+i}, v{Sold+i}'
    cv = lambda i: f'v_cvt_pk_bf16_f32 v{V_P+i}, v{Sold+2*i}, v{Sold+2*i+1}'
    ad = lambda i: f'v_add_f32 v{V_L+(i&3)}, v{V_L+(i&3)}, v{Sold+i}'
    m = qk(Snew) + pv()
    m[8] = ['s_waitcnt lgkmcnt(0)', m[8]]
    fill = v_reads(vhalf) + [ex(i) for i in range(8)] + list(extra_v) + [cv(i) for i in range(4)] + [ex(i) for i in range(8, 12)]
    fill += [('M', 8), ('A', 8)] + (k_reads(khalf) if khalf is not None else []) + [ex(i) for i in range(12, 16)] + [ad(0)]
    fill += [cv(i) for i in range(4, 8)] + [ad(1), ad(2)]
    rest = [ad(i) for i in range(3, 16)]
    x8 = list(extra_8)
    fill += [('M', 12)]
    while rest or x8:
        if rest: fill.append(rest.pop(0))
        fill += x8[:3]; x8 = x8[3:]
    fill += list(extra_k) + maxes(Snew)
    e('s_waitcnt lgkmcnt(0)')
    interleave(e, m, fill)

def last_half(e, Sold, extra=()):
    ex = lambda i: f'v_exp_f32 v{Sold+i}, v{Sold+i}'
    cv = lambda i: f'v_cvt_pk_bf16_f32 v{V_P+i}, v{Sold+2*i}, v{Sold+2*i+1}'
    ad = lambda i: f'v_add_f32 v{V_L+(i&3)}, v{V_L+(i&3)}, v{Sold+i}'
    e.many(v_reads(1))
    e.many(extra)
    e.many([ex(i) for i in range(8)] + [cv(i) for i in range(4)] + [ex(8), ex(9)])
    e('s_waitcnt lgkmcnt(0)')
    fill = [ex(i) for i in range(10, 16)] + [ad(0)] + [cv(i) for i in range(4, 8)] + [ad(1), ad(2), ('M', 4)] + [ad(i) for i in range(3, 16)]
    interleave(e, pv(), fill)

def rare(e, S, back):
    e('s_nop 7')
    e(f'v_mov_b32 v{V_T0}, v{V_MX}')
    e('s_nop 1')
    e(f'v_permlane32_swap_b32 v{V_T0}, v{V_MX}')
    e('s_nop 1')
    e(f'v_max_f32 v{V_D}, v{V_T0}, v{V_MX}')
    e(f'v_max_f32 v{V_D}, s{S_FLOOR}, v{V_D}')
    for i in range(16): e(f'v_sub_f32 v{S+i}, v{S+i}, v{V_D}')
    for i in range(16): e(f'v_sub_f32 v{V_NEGM+i}, v{V_NEGM+i}, v{V_D}')
    e(f's_cmp_lg_u32 s{S_FLOOR}, 0')
    e(f's_mov_b32 s{S_THR}, 0x41000000')
    e(f's_mov_b32 s{S_FLOOR}, 0')
    e(f's_cbranch_scc1 {back}')
    e(f'v_sub_f32 v{V_T0}, 0, v{V_D}')
    e(f'v_exp_f32 v{V_T0}, v{V_T0}')
    e('s_nop 0')
    for i in range(4): e(f'v_mul_f32 v{V_L+i}, v{V_L+i}, v{V_T0}')
    for i in range(0, 64, 4):
        for j in range(4): e(f'v_accvgpr_read_b32 v{V_TMP+j}, a{i+j}')
        for j in range(4): e(f'v_mul_f32 v{V_TMP+j}, v{V_TMP+j}, v{V_T0}')
        for j in range(4): e(f'v_accvgpr_write_b32 a{i+j}, v{V_TMP+j}')
    e('s_nop 1')
    e(f's_branch {back}')

def epilogue(e, o):
    e(f'v_add_f32 v{V_L}, v{V_L}, v{V_L+1}')
    e(f'v_add_f32 v{V_L+2}, v{V_L+2}, v{V_L+3}')
    e(f'v_add_f32 v{V_L}, v{V_L}, v{V_L+2}')
    e(f'v_mov_b32 v{V_T0}, v{V_L}')
    e('s_nop 1')
    e(f'v_permlane32_swap_b32 v{V_T0}, v{V_L}')
    e('s_nop 1')
    e(f'v_add_f32 v{V_L}, v{V_L}, v{V_T0}')
    e(f'v_rcp_f32 v{V_T0}, v{V_L}')
    e('s_nop 4')
    for f in range(8):
        t = V_VF + 8 * (f & 3)
        for j in range(8): e(f'v_accvgpr_read_b32 v{t+j}, a{8*f+j}')
        if o.pk:
            for j in range(0, 8, 2): e(f'v_pk_mul_f32 {vr(t+j,2)}, {vr(t+j,2)}, {vr(V_T0,2)} op_sel_hi:[1,0]')
        else:
            for j in range(8): e(f'v_mul_f32 v{t+j}, v{t+j}, v{V_T0}')
        d = V_TMP + 4 * (f & 1)
        for j in range(4): e(f'v_cvt_pk_bf16_f32 v{d+j}, v{t+2*j}, v{t+2*j+1}')
        if f == 4: e(f's_add_u32 s{S_OB}, s{S_OB}, 4096')
        e(f'buffer_store_dwordx4 {vr(d,4)}, v{V_OST}, {sr(S_WS,4)}, s{S_OB} offen offset:{1024*(f&3)} {o.ost_flags}')

def w_snippets(e, o, ret):
    e('s_waitcnt vmcnt(0)')
    def tree(lo, n):
        if n == 1:
            if lo == 0:
                for f in range(4): e(f'ds_read_b128 {vr(224+4*f,4)}, v{V_OST+3} offset:{1024*f}')
                if o.t15:
                    for i in range(16): e.many(conv(i, V_Q2, V_Q2))
            else:
                e.many(wo_reads(lambda off, nn: hold(lo - 1, off, nn), V_WA, V_WA + 1, 0))
            e('s_branch L_sn_done')
            return
        h = (n + 1) // 2
        e(f's_cmp_ge_u32 s{S_EV}, {lo+h}')
        e(f's_cbranch_scc1 L_sn_{lo+h}')
        tree(lo, h)
        e.lab(f'L_sn_{lo+h}')
        tree(lo + h, n - h)
    tree(0, 9)
    e.lab('L_sn_done')
    e(f's_add_u32 s{S_EV}, s{S_EV}, 1')
    e(f's_cmp_eq_u32 s{S_EV}, 9')
    e(f's_cselect_b32 s{S_WN}, 64, 3')
    if o.t15:
        e(f's_cmp_eq_u32 s{S_TICK}, 13')
        e(f's_cselect_b32 s{S_WN}, 4, s{S_WN}')
    e('s_waitcnt lgkmcnt(0)')
    e.many(wo_dma(o, 0, f's{S_XL}', 0, f's{S_WQB}', V_DMA, dyn=True))
    e(f's_branch {ret}')

def phase_b(e, o):
    lazy(e, o, 14)
    dmark(e, o, 1)
    lazy_dump(e, o, range(15))
    stamp(e, o, 1)
    e('s_waitcnt lgkmcnt(0)')
    e.many(qk(V_SA))
    e.many(k_reads(1))
    for s in range(8): e(f'v_add_u32 v{V_KA+s}, {SLOT}, v{V_KA+s}')
    e('s_nop 3')
    e.many(maxes(V_SA))
    e('s_branch L_rare_a')
    def adv(soff, tmp, base, n):
        r = [f's_add_u32 s{tmp}, s{soff}, {2*SLOT}', f's_and_b32 s{tmp}, s{tmp}, {8*SLOT-1}',
             f's_sub_u32 s{S_T3}, s{tmp}, s{soff}', f's_mov_b32 s{soff}, s{tmp}']
        r += [f'v_add_u32 v{base+i}, s{S_T3}, v{base+i}' for i in range(n)]
        return r
    e.lab('L_tick')
    e('s_waitcnt lgkmcnt(0)')
    e('s_barrier')
    e(f's_cmp_eq_u32 s{S_TICK}, 31')
    e('s_cbranch_scc1 L_last')
    half_tick(e, V_SB, V_SA, 0, 0)
    e('s_cbranch_vccnz L_rare_b')
    e.lab('L_back_b')
    e(f's_cmp_eq_u32 s{S_TICK}, 15')
    e('s_cbranch_scc1 L_switch')
    e.lab('L_back_sw')
    half_tick(e, V_SA, V_SB, 1, 1, extra_v=adv(S_VOFF, S_T0, V_VA, 4), extra_k=adv(S_KOFF, S_T1, V_KA, 8))
    e(f's_add_u32 s{S_TICK}, s{S_TICK}, 1')
    e(f's_sub_u32 s{S_WN}, s{S_WN}, 1')
    e(f's_cmp_eq_u32 s{S_WN}, 0')
    e('s_cbranch_scc1 L_snip')
    e.lab('L_snip_ret')
    e(f's_cmp_eq_u32 s{S_TICK}, 16')
    e('s_cbranch_scc1 L_epi1')
    e('s_cbranch_vccz L_tick')
    e.lab('L_rare_a')
    rare(e, V_SA, 'L_tick')
    e.lab('L_snip')
    w_snippets(e, o, 'L_snip_ret')
    e.lab('L_rare_b')
    rare(e, V_SB, 'L_back_b')
    e.lab('L_switch')
    for i in range(16): e(f'v_mov_b32 v{V_Q+16+i}, v{224+i}')
    for i in range(16): e.many([f'v_mov_b32 v{V_Q+i}, v{V_Q2+i}'] if o.t15 else conv(i, V_Q2, V_Q))
    for i in range(16): e(f'v_mov_b32 v{V_NEGM+i}, 0')
    e('s_nop 1')
    e('s_branch L_back_sw')
    e.lab('L_epi1')
    epilogue(e, o)
    e(f's_add_u32 s{S_OB}, s{S_OB}, {RND - 4096}')
    if o.t15:
        for t in range(4): e(mfma(ar(16 * t, 16), vr(V_NEGM, 4), vr(V_NEGM, 4), '0'))
    else:
        for i in range(64): e(f'v_accvgpr_write_b32 a{i}, 0')
    for i in range(4): e(f'v_mov_b32 v{V_L+i}, 0')
    e(f's_mov_b32 s{S_FLOOR}, 0xff800000')
    stamp(e, o, 2)
    dmark(e, o, 2)
    e('s_branch L_rare_a')
    e.lab('L_rare_l')
    rare(e, V_SB, 'L_back_l')
    e.lab('L_last')
    T = tail_pre(e, o)
    e.early = T.pump(min(o.nearly, 4))
    half_tick(e, V_SB, V_SA, 0, None, extra_8=e.early)
    e('s_cbranch_vccnz L_rare_l')
    e.lab('L_back_l')
    x = T.pump(max(o.nearly - 4, 0))
    e.early += x
    last_half(e, V_SB, x)
    epilogue(e, o)
    return T

def tail_setup(e, o):
    e(f's_mul_i32 s{S_O1}, s{S_BR}, 24')
    e(f's_add_u32 s{S_O1}, s{S_O1}, s{S_QT}')
    e(f's_lshl_b32 s{S_O1}, s{S_O1}, 2')
    e(f's_add_u32 s{S_O1}, s{S_O1}, s{S_WAVE}')
    e(f's_lshl_b32 s{S_O1}, s{S_O1}, 16')

POOL = list(range(96, 160, 4)) + [32, 36, 40, 44, 16, 20, 24, 80, 84] + list(range(160, 192, 4)) + [88, 92]
ORDER1 = [0, 1, 2, 8, 3, 9, 4, 10, 5, 11, 6, 12, 7]
ORDER2 = [8, 0, 9, 1, 10, 2, 11, 3, 12, 4, 13, 14, 15, 5, 6, 7]

class Tail:
    def __init__(self, e, o):
        self.e, self.o = e, o
        self.vm = Vm(e)
        self.free = list(POOL)
        self.where = {}
        self.todo = []
    def oload(self, rnd, c):
        e = self.e
        regs = [self.free.pop(0) for _ in range(4)]
        self.where[(rnd, c)] = regs
        r = [f's_add_u32 s{S_T1}, s{S_RHO}, {c}', f's_and_b32 s{S_T1}, s{S_T1}, 15', f's_lshl_b32 s{S_T1}, s{S_T1}, 12',
             f's_add_u32 s{S_T1}, s{S_T1}, s{S_O1}']
        if rnd and not self.o.t_o1: r.append(f's_add_u32 s{S_T1}, s{S_T1}, {RND}')
        if rnd and self.o.t_noo: return []
        for s4 in range(4):
            r.append(f'buffer_load_dwordx4 {reg4(regs[s4])}, v{V_OST}, {sr(S_WS,4)}, s{S_T1} offen offset:{1024*s4} {self.o.old_flags}')
        self.vm.add(f'o{rnd}_{c}', 4)
        return r
    def pump(self, lim=99):
        r = []
        while self.todo and len(self.free) >= 4 and self.vm.out() + 4 <= 61 and lim > 0:
            lim -= 1
            r += self.oload(*self.todo.pop(0))
        return r

def tail_pre(e, o):
    T = Tail(e, o)
    tail_setup(e, o)
    T.todo = [(0, c) for c in ORDER1]
    return T

def tail(e, o, T, w3=False):
    L = V_LANE
    vm = T.vm
    sfx = '3' if w3 else ''
    RA = 6
    TEMP = 48
    e(f's_cmp_eq_u32 s{S_NT}, 15')
    e('s_cbranch_scc1 L_exit')
    e(f's_mul_i32 s{S_WQB}, s{S_WAVE}, {1024*1280}')
    e(f's_add_u32 s{S_WQB}, s{S_WQB}, s{S_WOB}')
    if w3:
        T.free += [12, 16, 20, 24]
        e('s_barrier')
    e.many(T.pump())
    if not w3:
        vm.room(8)
        e.many(wo_dma(o, 12, f's{S_XL}', 4 * 32768, f's{S_WQB}', V_DMA))
        vm.add('late', 8)
    for b in range(3):
        e(f'v_add_u32 v{RA+2*b}, {65536*b}, v{V_WA}')
        e(f'v_add_u32 v{RA+2*b+1}, {65536*b}, v{V_WA+1}')
    e(f's_lshl_b32 s{S_T0}, s{S_BR}, 2')
    e(f's_add_u32 s{S_T0}, s{S_T0}, s{S_QB}')
    e(f's_lshl_b32 s{S_T0}, s{S_T0}, 2')
    e(f's_add_u32 s{S_T0}, s{S_T0}, s{S_WAVE}')
    e(f's_lshl_b32 s{S_T0}, s{S_T0}, 10')
    e(f's_add_u32 s{S_T0}, s{S_T0}, {WS_FLAGS}')
    e(f'v_and_b32 v31, 7, v{L}')
    e(f'v_lshlrev_b32 v31, 7, v31')
    e(f'v_add_u32 v31, s{S_T0}, v31')
    e('v_mov_b32 v0, 0')
    piece = {8: 0, 9: 1, 10: 2, 11: 3, 12: 4, 13: 0, 14: 1, 15: 2}
    if w3: piece = {12: 0, 13: 1, 14: 2, 15: 3}
    tmp_of = {}
    def rd(c, dstf):
        j = piece[c]
        return wo_reads(dstf, RA + 2 * (j >> 1), RA + 2 * (j >> 1) + 1, 32768 * (j & 1))
    def afrag(c):
        if c < 8: return lambda off, n: hold(c, off, n)
        if c >= 13: return lambda off, n: hold(c - 13, off, n)
        return lambda off, n: vr(TEMP + off, n)
    first = {0: True, 1: True}
    def mms(c, rnds):
        m = []
        for s4 in range(4):
            for rnd in rnds:
                for nt in range(2):
                    d = ar(32 * rnd + 16 * nt, 16)
                    m.append(mfma(d, afrag(c)(8 * s4 + 4 * nt, 4), reg4(T.where[(rnd, c)][s4]), '0' if (first[rnd] and s4 == 0) else d))
        for rnd in rnds: first[rnd] = False
        return m
    def wdma(c):
        if o.t_now: return []
        vm.add(f'w{c}', 8)
        return wo_dma(o, c, f's{S_XL}', 32768 * piece[c], f's{S_WQB}', V_DMA)
    ld_fl = f'buffer_load_dword v{V_T2}, v31, {sr(S_WS,4)}, 0 offen sc1'
    WA, RDA, VOUT = 48, 56, 60
    S_OO = S_KOFF
    fin = [f'v_and_b32 v{V_T0}, 31, v{L}', f'v_lshrrev_b32 v{V_T1}, 5, v{L}', f'v_and_b32 v{V_T3}, 15, v{L}',
           f'v_xor_b32 v{V_T1}, v{V_T1}, v{V_T3}', f'v_lshlrev_b32 v{V_T1}, 4, v{V_T1}',
           f'v_lshl_add_u32 v{V_T0}, v{V_T0}, 8, v{V_T1}', f's_add_u32 s{S_T3}, s{S_XL}, {3*32768}',
           f'v_add_u32 v{V_T0}, s{S_T3}, v{V_T0}']
    fin += [f'v_xor_b32 v{WA+k}, {32*k}, v{V_T0}' for k in range(8)]
    fin2 = [f's_lshr_b32 s{S_VOFF}, s{S_WAVE}, 1', f's_and_b32 s{S_THR}, s{S_WAVE}, 1',
            f's_lshl_b32 s{S_T2}, s{S_VOFF}, 15', f's_lshl_b32 s{S_T3}, s{S_THR}, 12',
            f's_add_u32 s{S_T2}, s{S_T2}, s{S_T3}', f's_add_u32 s{S_T2}, s{S_T2}, {3*32768}',
            f'v_lshrrev_b32 v{V_T1}, 3, v{L}', f'v_and_b32 v{V_T3}, 7, v{L}', f'v_lshlrev_b32 v{V_T0}, 1, v{V_T3}',
            f'v_xor_b32 v{V_T0}, v{V_T0}, v{V_T1}', f'v_lshlrev_b32 v{V_T0}, 4, v{V_T0}',
            f'v_lshl_add_u32 v{V_T0}, v{V_T1}, 8, v{V_T0}', f'v_add_u32 v{RDA}, s{S_T2}, v{V_T0}',
            f'v_xor_b32 v{RDA+1}, 16, v{RDA}', f'v_xor_b32 v{RDA+2}, {2048+128}, v{RDA}', f'v_xor_b32 v{RDA+3}, 16, v{RDA+2}',
            f's_lshl_b32 s{S_OO}, s{S_QT}, 5', f's_mul_i32 s{S_VOFF}, s{S_VOFF}, 384', f's_add_u32 s{S_OO}, s{S_OO}, s{S_VOFF}',
            f's_lshl_b32 s{S_THR}, s{S_THR}, 4', f's_add_u32 s{S_OO}, s{S_OO}, s{S_THR}', f's_mul_i32 s{S_OO}, s{S_OO}, 2560',
            f's_mul_i32 s{S_T3}, s{S_BR}, 1280', f's_add_u32 s{S_OO}, s{S_OO}, s{S_T3}', f's_add_u32 s{S_OO}, s{S_OO}, s{S_WOB}',
            f'v_mul_u32_u24 v{V_T1}, 2560, v{V_T1}', f'v_lshl_add_u32 v{VOUT}, v{V_T3}, 4, v{V_T1}']
    def pwrite(rnd):
        return [f'ds_write_b128 v{WA+4*nt+g}, {ar(32*rnd+16*nt+4*g,4)} offset:{rnd*32768}' for nt in range(2) for g in range(4)]
    if w3:
        ld_tag = f'global_load_dword v30, v0, {sr(S_DBG,2)} sc1'
        first[0] = False
        def mm3(c, rnd, af):
            m = []
            for s4 in range(4):
                for nt in range(2):
                    d = ar(32 * rnd + 16 * nt, 16)
                    m.append(mfma(d, af(8 * s4 + 4 * nt, 4), reg4(T.where[(rnd, c)][s4]), '0' if (first[rnd] and s4 == 0) else d))
            first[rnd] = False
            return m
        t1 = lambda off, n: vr(32 + off, n)
        for c in (13, 14, 15):
            e.many(rd(c, t1))
            if c == 15:
                vm.room(2); e(ld_tag); e(ld_fl); vm.add('pl', 2)
            e('s_waitcnt lgkmcnt(0)')
            vm.wait(f'o0_{c}')
            gaps(e, mm3(c, 0, t1), T.pump(), per=2)
            T.free += T.where[(0, c)]
        assert not T.todo
        vm.wait('pl')
        e('v_add_u32 v30, 3, v30')
        poll(e, o, 'r23', ld_fl, [f'v_cmp_eq_u32 vcc, v30, v{V_T2}'])
        T.free = [48, 52, 56, 60, 12, 16, 20, 24, 32, 36, 40, 44]
        order = [8, 9, 15, 10, 14, 11, 13, 6, 12, 7, 0, 1, 2, 3, 4, 5]
        T.todo = [(1, c) for c in order]
        e.many(T.pump())
        t2 = lambda off, n: hold3(8, off, n)
        for i, c in enumerate(order):
            nxt = order[i + 1] if i + 1 < len(order) else None
            if c >= 12: e('s_waitcnt lgkmcnt(0)')
            vm.wait(f'o1_{c}')
            front = rd(nxt, t2) if (nxt is not None and nxt >= 12) else []
            late = []
            if c == 10: late += fin
            if c == 11: late += pwrite(0)
            if c == 0: late += fin2
            m = mm3(c, 1, t2 if c >= 12 else (lambda off, n: hold3(c, off, n)))
            late += T.pump()
            gaps(e, m, front, late, per=3, late_from=0 if not front else 2)
            if c != 8: T.free += T.where[(1, c)]
            if c in (9, 10, 11): T.free += list(range(64 + 32 * (c - 8), 64 + 32 * (c - 7), 4))
            if c in (6, 7): T.free += list(range(192 + 32 * (c - 6), 192 + 32 * (c - 5), 4))
        assert not T.todo
        e('s_nop 7'); e('s_nop 3')
        e.many(pwrite(1))
        e('s_branch L_red')
        return
    seq = [(0, c) for c in ORDER1] + [(1, c) for c in ORDER2]
    todo2 = []
    for c in ORDER2: todo2 += ([(0, c)] if (c >= 13 and not o.park) else []) + [(1, c)]
    for i, (rnd, c) in enumerate(seq):
        rnds = [0, 1] if c >= 13 else [rnd]
        nxt = seq[i + 1][1] if i + 1 < len(seq) else None
        if i == o.chk - o.pl_at:
            vm.room(2); e(f'global_load_dword v30, v0, {sr(S_DBG,2)} sc1'); e(ld_fl); vm.add('pl', 2)
            if o.park: T.todo += [(0, c) for c in (13, 14, 15)]
        if i == o.chk:
            vm.stamp(o, 5)
            vm.wait('pl')
            e('v_add_u32 v30, 3, v30')
            poll(e, o, 'r2', ld_fl, [f'v_cmp_eq_u32 vcc, v30, v{V_T2}'])
            T.todo += todo2
            e.many(T.pump())
            vm.stamp(o, 6)
        if c >= 8: e('s_waitcnt lgkmcnt(0)')
        for r_ in rnds: vm.wait(f'o{r_}_{c}')
        front = []; late = []
        if nxt is not None and nxt >= 8:
            assert not (8 <= c < 13 and nxt < 13)
            if rnd == 0 and nxt == 8 and i < 5: e('s_barrier')
            if nxt == 12 and vm.has('late'): vm.wait('late')
            if nxt >= 13: vm.wait(f'w{nxt}')
            front = rd(nxt, afrag(nxt))
        if rnd == 1 and c in (8, 9, 10):
            vm.room(8)
            late += wdma(c + 5)
        if rnd == 1 and c == 15: late += fin
        if rnd == 1 and c == 6: late += pwrite(0)
        if rnd == 1 and c == 5: late += fin2
        m = mms(c, rnds)
        late += T.pump()
        gaps(e, m, front, late, per=3, late_from=0 if not front else 2)
        for r_ in rnds: T.free += T.where[(r_, c)]
    assert not T.todo
    vm.stamp(o, 7)
    e('s_nop 7'); e('s_nop 3')
    e.many(pwrite(1))
    e.lab('L_red')
    e('s_waitcnt lgkmcnt(0)')
    e('s_barrier')
    for i in range(2):
        for p in range(4):
            for hh in range(2):
                e(f'ds_read_b128 {vr(96+32*i+8*p+4*hh,4)}, v{RDA+2*i+hh} offset:{8192*p}')
    for i in range(2):
        b = 96 + 32 * i
        e(f's_waitcnt lgkmcnt({8*(1-i)})')
        for j in range(8):
            e(f'v_add_f32 v{b+j}, v{b+j}, v{b+8+j}')
            e(f'v_add_f32 v{b+16+j}, v{b+16+j}, v{b+24+j}')
        for j in range(8): e(f'v_add_f32 v{b+j}, v{b+j}, v{b+16+j}')
        for j in range(4): e(f'v_cvt_pk_bf16_f32 v{b+8+j}, v{b+2*j}, v{b+2*j+1}')
        if i: e(f's_add_u32 s{S_OO}, s{S_OO}, {8*2560}')
        e(f'buffer_store_dwordx4 {vr(b+8,4)}, v{VOUT}, {sr(S_OUT,4)}, s{S_OO} offen {o.out_flags}')
    ddump(e, o, 5)
    if o.stamps:
        e('s_waitcnt vmcnt(0)')
        stamp(e, o, 14)

KD = '''.amdhsa_kernel {n}
  .amdhsa_next_free_vgpr 512
  .amdhsa_next_free_sgpr 102
  .amdhsa_accum_offset 256
  .amdhsa_group_segment_fixed_size 0
  .amdhsa_kernarg_size 104
  .amdhsa_user_sgpr_count 2
  .amdhsa_user_sgpr_kernarg_segment_ptr 1
  .amdhsa_system_sgpr_workgroup_id_x 1
.end_amdhsa_kernel
'''

def gen(o):
    e = Em()
    k1 = NAME + '_kernel'
    e.raw('; @launch grid=(256,1,1) block=(256,1,1) lds=163840')
    e.raw('.amdgcn_target "amdgcn-amd-amdhsa--gfx950"')
    e.raw('.text')
    e.raw(f'.globl {k1}\n.p2align 8\n.type {k1},@function')
    e.lab(k1)
    prologue(e, o)
    e(f's_cmp_eq_u32 s{S_WAVE}, 3')
    e('s_cbranch_scc1 L_loader')
    phase_a(e, o)
    T = phase_b(e, o)
    n0 = T.vm.out()
    pre = T.pump(o.npre)
    npre = T.vm.out() - n0
    e.many(pre)
    e(f's_waitcnt vmcnt({npre}) lgkmcnt(0)')
    e('s_barrier')
    dmark(e, o, 3)
    if o.stamps:
        T.vm.stamp(o, 3)
    e('s_branch L_join')
    e.lab('L_loader')
    loader(e, o)
    if o.w3:
        if o.stamps: e.T3.vm.stamp(o, 3)
        tail(e, o, e.T3, w3=True)
    else:
        e.many(pre)
        if o.stamps: stamp(e, o, 3)
    e.lab('L_join')
    tail(e, o, T)
    e.lab('L_exit')
    e('s_endpgm')
    e.raw('.section .rodata,"a"\n.p2align 6')
    e.raw(KD.format(n=k1))
    return e.text()

if __name__ == '__main__':
    o = Opt()
    out = sys.argv[1]
    for a in sys.argv[2:]:
        k, v = a.split('=', 1); v = v.replace('+', ' ')
        cur = getattr(o, k)
        setattr(o, k, (v == '1') if isinstance(cur, bool) else int(v) if isinstance(cur, int) else v)
    open(out, 'w').write(gen(o))
```

```python
import sys, math, struct
NAME = 'concat_heads__mha_block_cached__mha_block_cached__near_ridge'

class Opt:
    stamps = False
    kv_flags = 'nt'
    w_flags = ''
    wo_flags = ''
    ost_flags = 'sc1'
    old_flags = 'sc1'
    look = 7
    rot = 3
    tickst = 0
    no_w = False
    no_w3 = False
    t_now = False
    t_o1 = False
    t_noo = False
    c8late = True
    pf_kv = 0
    pf_wo = True
    pf_a = False
    pf_w = False
    pf_delay = 0
    pf_s0 = 2
    pf_mid = 0
    pf_flags = ''
    pf_tail = 0
    bal = 0
    bal_lag = 2
    bal_n = 1
    bal_sl = 0
    tagk = 10
    thr_end = 28
    k_first = False
    k_s0 = 0
    tlb = True
    aper = 4
    out_flags = ''
    tsched = 0
    park = True
    gran = 16
    a_skip = ''
    dbgt = False
    pfc = True
    w3 = False
    w3k = 23
    pl_at = 3
    fav = 0
    t15 = True
    nearly = 0
    npre = 3
    pk = True
    v1_late = True
    look_lo = 5
    look_k0 = 0
    look_k1 = 0
    krot = False
    early = True
    chk = 7
    bal_k1 = 30
    psleep = 4
    thr = 16
    blk = 0

WS_FLAGS = 12582912
WS_PROG = WS_FLAGS + 32768
WS_STAMP = 13631488
SLOT = 16384
STAGE = 40960
RND = 12 * 32 * 8192

S_X, S_K, S_V, S_WQ, S_WO, S_OUT, S_WS = 4, 8, 12, 16, 20, 24, 28
S_DBG = 32
S_WAVE, S_BR, S_H, S_BL = 34, 35, 36, 37
S_T0, S_T1, S_T2, S_T3 = 38, 39, 40, 41
S_KX, S_XB, S_XL, S_KVB, S_TICK = 42, 43, 44, 45, 46
S_KOFF, S_VOFF, S_THR, S_FLOOR, S_C, S_OB, S_WQB = 47, 48, 49, 50, 51, 52, 53
S_ST, S_STB, S_QT, S_NT = 54, 56, 57, 58
S_SAVE = 60
S_WN, S_FL = 62, 63
S_EV = 59
S_KARG = 64
S_WOB, S_O1, S_QB, S_CNT, S_RHO, S_WC, S_N, S_KR = 90, 91, 92, 93, 94, 95, 96, 97

V_LANE = 1
V_T0, V_T1, V_T2, V_T3 = 2, 3, 4, 5
V_L, V_MX, V_D = 6, 10, 11
V_DMA = 12
V_KA, V_VA, V_OST, V_WA = 16, 24, 28, 29
V_NEGM = 32
V_SA, V_SB, V_P, V_TMP = 48, 64, 80, 88
V_Q, V_KF, V_VF, V_Q2 = 96, 128, 160, 192

class Em:
    def __init__(self): self.L = []
    def __call__(self, s): self.L.append('    ' + s)
    def lab(self, s): self.L.append(s + ':')
    def raw(self, s): self.L.append(s)
    def many(self, l):
        for x in l: self(x)
    def text(self): return '\n'.join(self.L) + '\n'

def vr(b, n=1): return f'v{b}' if n == 1 else f'v[{b}:{b+n-1}]'
def ar(b, n=1): return f'a{b}' if n == 1 else f'a[{b}:{b+n-1}]'
def sr(b, n=1): return f's{b}' if n == 1 else f's[{b}:{b+n-1}]'
def mfma(d, a, b, c): return f'v_mfma_f32_32x32x16_bf16 {d}, {a}, {b}, {c}'
def hold(ci, off, n):
    return ar(64 + 32 * ci + off, n) if ci < 6 else vr(192 + 32 * (ci - 6) + off, n)

def hold3(ci, off, n):
    return hold(ci, off, n) if ci < 8 else vr(64 + 32 * (ci - 8) + off, n)
def reg4(r): return ar(r - 1000, 4) if r >= 1000 else vr(r, 4)

def cost(i):
    if i.startswith('v_exp') or i.startswith('v_rcp'): return 8
    if i.startswith('s_'): return 2
    return 4

def interleave(e, mf, fill):
    total = sum(cost(f) for f in fill if not isinstance(f, tuple))
    per = total / len(mf)
    fi = 0; acc = 0.0
    deadline = {}; items = []
    for f in fill:
        if isinstance(f, tuple):
            if f[0] == 'M': deadline[f[1]] = len(items)
            else: items.append(f)
        else: items.append(f)
    for k, m in enumerate(mf):
        need = deadline.get(k, 0)
        while fi < need:
            it = items[fi]; fi += 1
            if isinstance(it, tuple):
                assert it[1] < k, (it, k)
                continue
            e(it); acc += cost(it)
        if isinstance(m, (list, tuple)): e.many(m)
        else: e(m)
        target = per * (k + 1)
        while fi < len(items) and (acc < target - 1.0 or k == len(mf) - 1):
            it = items[fi]
            if isinstance(it, tuple):
                if it[1] > k: break
                fi += 1; continue
            e(it); acc += cost(it); fi += 1
    assert fi == len(items)

def gaps(e, mf, front, late=(), per=2, late_from=5):
    g = [[] for _ in mf]
    for i, f in enumerate(front): g[min(i // per, len(mf) - 1)].append(f)
    n = len(mf) - late_from
    for i, f in enumerate(late): g[late_from + (i * n) // len(late)].append(f)
    for m, x in zip(mf, g):
        sk = getattr(e, 'skip', '')
        if 'm' not in sk: e(m)
        e.many([y for y in x if not (('r' in sk and y.startswith('ds_read')) or ('d' in sk and y.startswith('buffer_load_dwordx4 v') and ('s[4:7]' in y or 's[16:19]' in y)))])

def stamp(e, o, idx, clk=False):
    if not o.stamps: return 0
    e(f's_memtime {sr(S_ST,2)}' if clk else f's_memrealtime {sr(S_ST,2)}')
    e('s_waitcnt lgkmcnt(0)')
    e(f'v_mov_b32 v{V_T0}, s{S_ST}')
    e(f'v_mov_b32 v{V_T1}, s{S_STB}')
    e('s_mov_b64 exec, 1')
    e(f'buffer_store_dword v{V_T0}, v{V_T1}, {sr(S_WS,4)}, 0 offen offset:{4*idx}')
    e('s_mov_b64 exec, -1')
    return 1

LAZY = {0: 98, 1: 100}
for _i in range(2, 15): LAZY[_i] = 64 + 2 * (_i - 2)
def lazy(e, o, i):
    if o.stamps: e(f's_memrealtime s[{LAZY[i]}:{LAZY[i]+1}]')
def lazy_dump(e, o, ids):
    if not o.stamps: return 0
    e('s_waitcnt lgkmcnt(0)')
    e(f'v_mov_b32 v{V_T1}, s{S_STB}')
    e('s_mov_b64 exec, 1')
    for i in ids:
        e(f'v_mov_b32 v{V_T0}, s{LAZY[i]}')
        e(f'buffer_store_dword v{V_T0}, v{V_T1}, {sr(S_WS,4)}, 0 offen offset:{16 if i == 0 else 4*(16+i)}')
        e('s_nop 1')
    e('s_mov_b64 exec, -1')
    return len(ids)

def dmark(e, o, i):
    if o.dbgt: e(f's_memrealtime s[{64+2*i}:{65+2*i}]')
def ddump(e, o, n):
    if not o.dbgt: return
    e('s_waitcnt vmcnt(0)')
    dmark(e, o, n - 1)
    e('s_waitcnt lgkmcnt(0)')
    e(f's_cmp_lg_u32 s{S_WAVE}, 0')
    e('s_cbranch_scc1 L_exit')
    e('s_mov_b32 s3, 0')
    for j, w in enumerate((5, 130, 203)):
        e(f's_cmp_eq_u32 s2, {w}')
        e(f's_cselect_b32 s3, {4 + 20 * j}, s3')
    e('s_cmp_eq_u32 s3, 0')
    e('s_cbranch_scc1 L_exit')
    e('v_mov_b32 v2, s3')
    e('s_mov_b64 exec, 1')
    for i in range(n):
        e(f's_sub_u32 s{64+2*i}, s{64+2*i}, s98')
        e(f'v_mov_b32 v3, s{64+2*i}')
        e(f'global_store_dword v2, v3, {sr(S_DBG,2)} offset:{4*i}')
        e('s_nop 1')
    e('s_mov_b64 exec, -1')

class Vm:
    def __init__(self, e): self.e = e; self.q = []
    def out(self): return sum(c for _, c in self.q)
    def has(self, name): return name in [n for n, _ in self.q]
    def wait(self, name):
        names = [n for n, _ in self.q]
        if name not in names: return
        i = names.index(name)
        rest = sum(c for _, c in self.q[i + 1:])
        assert rest <= 63
        self.e(f's_waitcnt vmcnt({rest})')
        self.q = self.q[i + 1:]
    def room(self, c):
        while self.out() + c > 61: self.wait(self.q[0][0])
    def add(self, name, c):
        self.q.append((name, c)); assert self.out() <= 63, self.q
    def stamp(self, o, idx, clk=False):
        if o.stamps:
            self.room(1); stamp(self.e, o, idx, clk); self.add(f'st{idx}', 1)

def prologue(e, o):
    if o.stamps or o.dbgt: e('s_memrealtime s[98:99]')
    e('s_cmp_ge_u32 s2, 256')
    e('s_cbranch_scc1 L_exit')
    e(f's_load_dwordx16 {sr(S_KARG,16)}, s[0:1], 0')
    e(f's_load_dwordx8 {sr(S_KARG+16,8)}, s[0:1], 64')
    e(f's_load_dwordx2 {sr(S_KARG+24,2)}, s[0:1], 96')
    e(f'v_lshrrev_b32 v{V_T0}, 6, v0')
    e(f'v_and_b32 v{V_LANE}, 63, v0')
    e(f'v_readfirstlane_b32 s{S_WAVE}, v{V_T0}')
    e(f's_and_b32 s{S_T0}, s2, 7')
    e(f's_lshr_b32 s{S_T1}, s2, 3')
    e(f's_lshr_b32 s{S_BR}, s{S_T0}, 2')
    e(f's_and_b32 s{S_T2}, s{S_T0}, 3')
    e(f's_lshl_b32 s{S_H}, s{S_T2}, 3')
    e(f's_and_b32 s{S_T3}, s{S_T1}, 7')
    e(f's_add_u32 s{S_H}, s{S_H}, s{S_T3}')
    e(f's_lshr_b32 s{S_BL}, s{S_T1}, 3')
    e(f's_mul_i32 s{S_KX}, s{S_BL}, 5')
    e(f's_add_u32 s{S_KX}, s{S_KX}, 1')
    e(f's_lshr_b32 s{S_KX}, s{S_KX}, 1')
    e(f's_add_u32 s{S_KX}, s{S_KX}, s{S_T3}')
    e(f's_cmp_ge_u32 s{S_KX}, 10')
    e(f's_cselect_b32 s{S_T3}, 10, 0')
    e(f's_sub_u32 s{S_KX}, s{S_KX}, s{S_T3}')
    if o.blk == 0:
        e(f's_mul_i32 s{S_QT}, s{S_T1}, 13')
        e(f's_lshr_b32 s{S_QT}, s{S_QT}, 6')
        e(f's_mul_i32 s{S_T3}, s{S_QT}, 5')
        e(f's_sub_u32 s{S_NT}, s{S_T1}, s{S_T3}')
        e(f's_and_b32 s{S_T3}, s{S_T2}, 1')
        e(f's_mul_i32 s{S_T3}, s{S_T3}, 5')
        e(f's_add_u32 s{S_NT}, s{S_NT}, s{S_T3}')
        e(f's_lshr_b32 s{S_T3}, s{S_T2}, 1')
        e(f's_mul_i32 s{S_T3}, s{S_T3}, 6')
        e(f's_add_u32 s{S_QT}, s{S_QT}, s{S_T3}')
    elif o.blk == 1:
        e(f's_mul_i32 s{S_QT}, s{S_T1}, 26')
        e(f's_lshr_b32 s{S_QT}, s{S_QT}, 8')
        e(f's_mul_i32 s{S_T3}, s{S_QT}, 10')
        e(f's_sub_u32 s{S_NT}, s{S_T1}, s{S_T3}')
        e(f's_mul_i32 s{S_T3}, s{S_T2}, 3')
        e(f's_add_u32 s{S_QT}, s{S_QT}, s{S_T3}')
    else:
        e(f's_mul_i32 s{S_T3}, s{S_T2}, 30')
        e(f's_add_u32 s{S_T3}, s{S_T3}, s{S_T1}')
        e(f's_mul_i32 s{S_NT}, s{S_T3}, 171')
        e(f's_lshr_b32 s{S_NT}, s{S_NT}, 11')
        e(f's_mul_i32 s{S_QT}, s{S_NT}, 12')
        e(f's_sub_u32 s{S_QT}, s{S_T3}, s{S_QT}')
    e(f's_cmp_ge_u32 s{S_T1}, 30')
    e(f's_cselect_b32 s{S_NT}, 15, s{S_NT}')
    e(f's_cselect_b32 s{S_QT}, 0, s{S_QT}')
    e(f's_mul_i32 s{S_QB}, s{S_QT}, 11')
    e(f's_lshr_b32 s{S_QB}, s{S_QB}, 5')
    e(f's_lshl_b32 s{S_STB}, s2, 2')
    e(f's_add_u32 s{S_STB}, s{S_STB}, s{S_WAVE}')
    e(f's_lshl_b32 s{S_STB}, s{S_STB}, 8')
    e(f's_add_u32 s{S_STB}, s{S_STB}, {WS_STAMP}')
    e(f's_lshl_b32 s{S_XL}, s{S_WAVE}, 13')
    e(f's_lshl_b32 s{S_WOB}, s{S_NT}, 7')
    e(f's_cmp_ge_u32 s{S_NT}, 5')
    e(f's_cselect_b32 s{S_T0}, {5 if o.blk == 0 else 0}, 0')
    e(f's_sub_u32 s{S_RHO}, s{S_NT}, s{S_T0}')
    e(f's_mul_i32 s{S_RHO}, s{S_RHO}, {o.rot}')
    e(f's_and_b32 s{S_RHO}, s{S_RHO}, 15')
    for srd, size in ((S_X, 983040), (S_K, 1 << 26), (S_V, 1 << 26), (S_WQ, 5242880), (S_WO, 5242880), (S_OUT, 1966080), (S_WS, 16777216)):
        e(f's_mov_b32 s{srd+2}, {size}')
        e(f's_mov_b32 s{srd+3}, 0x20000')

def srds(e, o):
    e('s_waitcnt lgkmcnt(0)')
    e(f's_cmp_eq_u32 s{S_BR}, 0')
    for srd, i in ((S_WQ, 3), (S_X, 0), (S_K, 1), (S_V, 2), (S_WO, 4)):
        e(f's_cselect_b64 {sr(srd,2)}, {sr(S_KARG+2*i,2)}, {sr(S_KARG+10+2*i,2)}')
    e(f's_mov_b64 {sr(S_OUT,2)}, {sr(S_KARG+20,2)}')
    e(f's_mov_b64 {sr(S_WS,2)}, {sr(S_KARG+24,2)}')
    e(f's_mov_b64 {sr(S_DBG,2)}, {sr(S_KARG+22,2)}')
    for srd in (S_WQ, S_X, S_K, S_V, S_WO, S_OUT, S_WS):
        e(f's_and_b32 s{srd+1}, s{srd+1}, 0xffff')
    lazy(e, o, 1)

def no_task_wo(e):
    e(f's_cmp_eq_u32 s{S_NT}, 15')
    e(f's_cselect_b32 s{S_WO+2}, 0, s{S_WO+2}')

RING = 32768
PF_TICKS = [0, 1, 6, 10, 15, 19, 22, 24, 25, 26, 27]
def reg_w(s): return (32768, 73728, 114688)[(s + 2) % 3]
def reg_x(s): return (49152, 90112, 0)[(s + 2) % 3]

SEQ = ['K0']
for k in range(32): SEQ += [f'K{k+1}', f'V{k}']
SEQ += [f'T{i}' for i in range(8)]
POS = {n: i for i, n in enumerate(SEQ)}
def slot(name): return (6 + POS[name]) % 8
def slot_addr(name): return RING + slot(name) * SLOT

def wo_dma(o, c, ldsbase_s, ldsoff, wob, vw, dyn=False):
    r = []
    if o.no_w and dyn: return ['s_nop 0']
    if dyn:
        r += [f's_mul_i32 s{S_T0}, s{S_WC}, {64*1280}', f's_add_u32 s{S_WC}, s{S_WC}, 1', f's_and_b32 s{S_WC}, s{S_WC}, 15']
    else:
        r += [f's_add_u32 s{S_T0}, s{S_RHO}, {c}', f's_and_b32 s{S_T0}, s{S_T0}, 15', f's_mul_i32 s{S_T0}, s{S_T0}, {64*1280}']
    r.append(f's_add_u32 s{S_T0}, s{S_T0}, {wob}')
    for g_ in range(2):
        r.append(f's_add_u32 m0, {ldsbase_s}, {ldsoff + 4096*g_}' if ldsbase_s else f's_mov_b32 m0, {ldsoff + 4096*g_}')
        r.append(f's_add_u32 s{S_T1}, s{S_T0}, {32*g_*1280}')
        for i in range(4):
            r.append(f'buffer_load_dwordx4 v{vw+i}, {sr(S_WO,4)}, s{S_T1} offen offset:{1024*i} {o.wo_flags} lds')
    return r

def wo_voffs(e, dst):
    L = V_LANE
    e(f'v_lshrrev_b32 v{V_T0}, 3, v{L}')
    e(f'v_mul_u32_u24 v{V_T0}, 1280, v{V_T0}')
    e(f'v_bfe_u32 v{V_T1}, v{L}, 4, 1')
    e(f'v_lshlrev_b32 v{V_T1}, 2, v{V_T1}')
    e(f'v_and_b32 v{V_T2}, 7, v{L}')
    e(f'v_xor_b32 v{V_T1}, v{V_T1}, v{V_T2}')
    e(f'v_lshl_add_u32 v{dst}, v{V_T1}, 4, v{V_T0}')
    for i in range(1, 4): e(f'v_add_u32 v{dst+i}, {(10240-1024)*i}, v{dst}')

def wo_lane_addr(e, dst):
    L = V_LANE
    e(f'v_lshrrev_b32 v{V_T0}, 5, v{L}')
    e(f'v_bfe_u32 v{V_T1}, v{L}, 2, 2')
    e(f'v_lshl_add_u32 v{dst}, v{V_T0}, 2, v{V_T1}')
    e(f'v_lshlrev_b32 v{dst}, 7, v{dst}')
    e(f'v_bfe_u32 v{V_T3}, v{L}, 3, 1')
    e(f'v_lshl_add_u32 v{dst}, v{V_T3}, 6, v{dst}')
    e(f'v_bfe_u32 v{V_T3}, v{L}, 4, 1')
    e(f'v_lshl_add_u32 v{dst}, v{V_T3}, 5, v{dst}')
    e(f'v_and_b32 v{V_T3}, 3, v{L}')
    e(f'v_lshl_add_u32 v{dst}, v{V_T3}, 3, v{dst}')

def wo_reads(dstf, a0, a1, off):
    r = []
    for s4 in range(4):
        for nt in range(2):
            for u in range(2):
                r.append(f'ds_read_b64_tr_b16 {dstf(8*s4+4*nt+2*u,2)}, v{(a0,a1)[nt]} offset:{off+(16*s4+8*u)*128}')
    return r

def poll(e, o, tag, load, test):
    e.many(test)
    e('s_cmp_eq_u64 vcc, -1')
    e(f's_cbranch_scc1 L_polled_{tag}')
    e(f's_mov_b32 s{S_CNT}, 0x400000')
    e.lab(f'L_poll_{tag}')
    e(f's_sleep {o.psleep}')
    e(load)
    e('s_waitcnt vmcnt(0)')
    e.many(test)
    e('s_cmp_eq_u64 vcc, -1')
    e(f's_cbranch_scc1 L_polled_{tag}')
    e(f's_sub_u32 s{S_CNT}, s{S_CNT}, 1')
    e(f's_cmp_lg_u32 s{S_CNT}, 0')
    e(f's_cbranch_scc1 L_poll_{tag}')
    e.lab(f'L_polled_{tag}')

def loader(e, o):
    L = V_LANE
    VK, VV, VW, VWO, VF, VP, VZ = 24, 16, 20, 12, 17, 18, 19
    VA, VB = 96, 100
    AF = [48, 56]; BF = [64, 80]; ACC = 128
    vm = Vm(e)
    e(f'v_lshrrev_b32 v{V_T0}, 4, v{L}')
    e(f'v_and_b32 v{V_T1}, 15, v{L}')
    e(f'v_lshlrev_b32 v{V_T3}, 2, v{V_T0}')
    e(f'v_xor_b32 v{V_T3}, v{V_T3}, v{V_T1}')
    e(f'v_lshlrev_b32 v{V_T2}, 8, v{V_T0}')
    e(f'v_lshl_add_u32 v{VV}, v{V_T3}, 4, v{V_T2}')
    for i in range(4):
        e(f'v_add_u32 v{V_T3}, {4*i}, v{V_T0}')
        e(f'v_xor_b32 v{V_T3}, v{V_T3}, v{V_T1}')
        e(f'v_lshl_add_u32 v{VK+i}, v{V_T3}, 4, v{V_T2}')
    e(f's_lshl_b32 s{S_KVB}, s{S_BL}, 5')
    e(f's_add_u32 s{S_KVB}, s{S_KVB}, s{S_H}')
    e(f's_lshl_b32 s{S_KVB}, s{S_KVB}, 18')
    e(f's_and_b32 s{S_KR}, s2, 7')
    e(f's_lshl_b32 s{S_KR}, s{S_KR}, 1')
    e(f's_lshr_b32 s{S_T0}, s2, 3')
    e(f's_add_u32 s{S_KR}, s{S_KR}, s{S_T0}')
    e(f's_and_b32 s{S_KR}, s{S_KR}, {15 if o.krot else 0}')
    e(f's_lshl_b32 s{S_KR}, s{S_KR}, 14')
    e(f'v_lshlrev_b32 v{VW}, 19, v{L}')
    e(f'v_lshlrev_b32 v{VW+1}, 25, v{L}')
    e(f'v_mov_b32 v{VZ}, 0')
    e(f'v_lshlrev_b32 v{VW+3}, 18, v{L}')
    e(f's_lshl_b32 s{S_T0}, s{S_BR}, 2')
    e(f's_add_u32 s{S_FL}, s{S_T0}, s{S_BL}')
    e(f's_lshl_b32 s{S_FL}, s{S_FL}, 5')
    e(f's_add_u32 s{S_FL}, s{S_FL}, s{S_H}')
    e(f's_lshl_b32 s{S_FL}, s{S_FL}, 7')
    e(f's_add_u32 s{S_FL}, s{S_FL}, {WS_FLAGS}')
    e(f's_mul_i32 s{S_T2}, s{S_BR}, 8')
    e(f's_add_u32 s{S_T2}, s{S_T2}, s{S_BL}')
    e(f's_mul_i32 s{S_T2}, s{S_T2}, 96')
    e(f's_add_u32 s{S_T2}, s{S_T2}, s{S_H}')
    e(f's_lshl_b32 s{S_T2}, s{S_T2}, 13')
    if o.pfc:
        e(f's_getpc_b64 {sr(S_ST,2)}')
        e.lab('L_pc')
        e(f's_sub_u32 s{S_ST}, s{S_ST}, L_pc-{NAME}_kernel')
        e(f's_subb_u32 s{S_ST+1}, s{S_ST+1}, 0')
        e(f's_lshr_b32 s{S_T0}, s2, 3')
        e(f's_lshl_b32 s{S_T0}, s{S_T0}, 11')
        e(f'v_lshlrev_b32 v{V_T0}, 7, v{L}')
        e(f'v_add_u32 v{V_T0}, s{S_T0}, v{V_T0}')
        e(f'v_min_u32 v{V_T0}, L_end-{NAME}_kernel-4, v{V_T0}')
        e('s_mov_b64 exec, 0xffff')
        e(f'global_load_dword v{VW+2}, v{V_T0}, {sr(S_ST,2)}')
        e('s_mov_b64 exec, -1')
        vm.add('pfc', 1)
    srds(e, o)
    if o.tlb:
        e('s_mov_b64 exec, 3')
        e(f'buffer_load_dword v{VW+2}, v{VW+1}, {sr(S_K,4)}, s{S_KVB} offen')
        e(f'buffer_load_dword v{VW+2}, v{VW+1}, {sr(S_V,4)}, s{S_KVB} offen')
        e('s_mov_b64 exec, 0x3ffffff')
        e(f'buffer_load_dword v{VW+2}, v{VW}, {sr(S_WO,4)}, 0 offen')
        e(f'buffer_load_dword v{VW+2}, v{VW}, {sr(S_OUT,4)}, 0 offen')
        e('s_mov_b64 exec, 0x7007')
        e(f'buffer_load_dword v{VW+2}, v{VW+3}, {sr(S_WS,4)}, s{S_T2} offen')
        e('s_mov_b64 exec, 1')
        e(f'buffer_load_dword v{VW+2}, v{VZ}, {sr(S_WS,4)}, s{S_FL} offen')
        e('s_mov_b64 exec, -1')
        vm.add('tlb', 6)
    def issue_l(name):
        kind, t = name[0], int(name[1:])
        r = []
        if kind == 'K' and t > 31: return r
        base = slot_addr(name)
        if kind in 'KV':
            off = (t // 16) * (4 * 32 * 262144)
            r.append(f's_add_u32 s{S_T0}, s{S_KR}, {(t % 16) * SLOT}')
            r.append(f's_and_b32 s{S_T0}, s{S_T0}, {16 * SLOT - 1}')
            r.append(f's_add_u32 s{S_T0}, s{S_T0}, s{S_KVB}')
            for g in range(4):
                r.append(f's_mov_b32 m0, {base + 4096*g}')
                r.append(f's_add_u32 s{S_T1}, s{S_T0}, {off + 4096*g}')
                for i in range(4):
                    v = VK + i if kind == 'K' else VV
                    r.append(f'buffer_load_dwordx4 v{v}, {sr(S_K if kind == "K" else S_V,4)}, s{S_T1} offen offset:{1024*i} {o.kv_flags} lds')
        else:
            rr = slot(name); j, hi = 1 + (rr >> 1), rr & 1
            if j == 4: return r
            for p in range(2):
                r.append(f's_add_u32 s{S_T2}, s{S_WOB}, {1024*1280*(2*hi+p)}')
                r += wo_dma(o, (12 if (o.w3 and hi and p) else 8) + j, None, base + 8192 * p, f's{S_T2}', VWO)
        return r
    def issue(name):
        r = issue_l(name)
        if r:
            vm.room(16); e.many(r); vm.add(name, 16)
    def own_w(c):
        vm.room(8)
        e(f's_add_u32 s{S_T2}, s{S_WOB}, {1024*1280*3}')
        e.many(wo_dma(o, c, None, 3 * 8192, f's{S_T2}', VWO))
        vm.add(f'w{c}', 8)
    def wait_upto(n):
        for m in range(n, -1, -1):
            if vm.has(SEQ[m]): vm.wait(SEQ[m]); return
    def flag(val):
        return [f's_add_u32 s{S_T0}, s{S_N}, {val}', f'v_mov_b32 v{V_T2}, s{S_T0}', 's_mov_b64 exec, 1',
                f'buffer_store_dword v{V_T2}, v{VZ}, {sr(S_WS,4)}, s{S_FL} offen sc1', 's_mov_b64 exec, -1']
    if o.pf_a:
        if o.pf_delay: e(f's_sleep {o.pf_delay}')
        e(f'v_lshrrev_b32 v{VW}, 1, v{L}')
        e(f'v_lshlrev_b32 v{VW}, 13, v{VW}')
        e(f'v_and_b32 v{VW+1}, 1, v{L}')
        e(f'v_lshl_add_u32 v{VW}, v{VW+1}, 7, v{VW}')
        e(f's_mul_i32 s{S_T0}, s{S_BL}, {160*8192}')
        e(f's_lshl_b32 s{S_T1}, s{S_H}, 8')
        e(f's_add_u32 s{S_T0}, s{S_T0}, s{S_T1}')
        for i in range(5):
            e(f's_add_u32 s{S_T1}, s{S_T0}, {32*i*8192}')
            e(f'buffer_load_dword v{VW+2}, v{VW}, {sr(S_WQ,4)}, s{S_T1} offen {o.w_flags}')
        e(f'v_lshlrev_b32 v{VW+1}, 7, v{L}')
        e(f's_and_b32 s{S_T0}, s{S_H}, 7')
        e(f's_mul_i32 s{S_T0}, s{S_T0}, 15360')
        e(f's_mul_i32 s{S_T1}, s{S_BL}, 122880')
        e(f's_add_u32 s{S_T0}, s{S_T0}, s{S_T1}')
        for i in range(4):
            e(f's_add_u32 s{S_T1}, s{S_T0}, {(i >> 1) * 491520 + (i & 1) * 8192}')
            e(f'buffer_load_dword v{VW+2}, v{VW+1}, {sr(S_X,4)}, s{S_T1} offen {o.w_flags}')
        vm.add('pfa', 9)
    if o.k_first: issue('K0'); issue('K1')
    e('s_cmp_lg_u32 s2, 0')
    e('s_cbranch_scc1 L_notag')
    e(f's_memrealtime {sr(S_ST,2)}')
    e('s_waitcnt lgkmcnt(0)')
    e(f's_mul_i32 s{S_ST+1}, s{S_ST+1}, 0x9e3779b1')
    e(f's_add_u32 s{S_ST}, s{S_ST}, s{S_ST+1}')
    e(f's_or_b32 s{S_ST}, s{S_ST}, 4')
    e(f's_and_b32 s{S_ST}, s{S_ST}, -4')
    e(f'v_mov_b32 v{V_T2}, s{S_ST}')
    e('s_mov_b64 exec, 1')
    e(f'global_store_dword v{VZ}, v{V_T2}, {sr(S_DBG,2)} sc1')
    e('s_mov_b64 exec, -1')
    e.lab('L_notag')
    e(f's_lshl_b32 s{S_T0}, s{S_BR}, 2')
    e(f's_add_u32 s{S_T0}, s{S_T0}, s{S_QB}')
    e(f's_lshl_b32 s{S_T0}, s{S_T0}, 12')
    e(f's_add_u32 s{S_T0}, s{S_T0}, {WS_FLAGS}')
    e(f'v_and_b32 v{VP}, 31, v{L}')
    e(f'v_lshlrev_b32 v{VP}, 7, v{VP}')
    e(f'v_add_u32 v{VP}, s{S_T0}, v{VP}')
    a_addr(e, VA, VB, None)
    wo_voffs(e, VWO)
    wo_lane_addr(e, V_WA)
    e(f'v_lshlrev_b32 v{VW}, 7, v{L}')
    e(f'v_add_u32 v{V_WA}, {3*8192}, v{V_WA}')
    e(f'v_xor_b32 v{V_WA+1}, 64, v{V_WA}')
    e(f'v_lshlrev_b32 v{V_OST}, 4, v{L}')
    e(f's_mov_b32 s{S_C}, {SCALE}')
    pf = []
    for n in range(2, 2 + o.pf_kv):
        kind, t = SEQ[n][0], int(SEQ[n][1:])
        for hh in range(2):
            pf.append([f's_add_u32 s{S_T1}, s{S_KVB}, {t*SLOT + hh*8192}',
                       f'buffer_load_dword v{VW+1}, v{VW}, {sr(S_K if kind == "K" else S_V,4)}, s{S_T1} offen {o.pf_flags}'])
    if o.pf_wo:
        e(f's_lshl_b32 s{S_T2}, s{S_H}, 2')
        e(f's_add_u32 s{S_T2}, s{S_T2}, s{S_BL}')
        e(f's_mul_i32 s{S_T2}, s{S_T2}, 40960')
        for i in range(5):
            pf.append([f's_add_u32 s{S_T1}, s{S_T2}, {i*8192}',
                       f'buffer_load_dword v{VW+1}, v{VW}, {sr(S_WO,4)}, s{S_T1} offen {o.pf_flags}'])
    def reads(s4, buf):
        r = []
        for t in (2, 3):
            for u in range(2):
                r.append(f'ds_read_b64_tr_b16 {vr(AF[buf]+4*(t-2)+2*u,2)}, v{VA+t} offset:{(16*s4+4*u)*256}')
        r += [f'ds_read_b128 {vr(BF[buf]+4*j,4)}, v{VB+s4} offset:{8192*j + 4096}' for j in range(3)]
        return r
    def mf(buf, first):
        r = []
        for j in range(3):
            for t in range(2):
                d = vr(ACC + 32 * j + 16 * t, 16)
                r.append(mfma(d, vr(AF[buf] + 4 * t, 4), vr(BF[buf] + 4 * j, 4), '0' if first else d))
        return r
    extra = {}
    def ride(step, name, ins, cnt):
        extra.setdefault(step, []).append((name, ins, cnt))
    if not o.k_first:
        for i, nm in enumerate(('K0', 'K1')):
            ins = issue_l(nm)
            for q in range(4): ride(4 * o.k_s0 + 4 * i + q, nm if q == 3 else None, ins[(3 + 6 * q if q else 0):3 + 6 * q + 6], 4)
    npf = 4 * (7 - o.pf_s0)
    for i, x in enumerate(pf): ride(4 * o.pf_s0 + (i * npf) // max(len(pf), 1), 'pf', x, 1)
    for i, nm in enumerate(('V0', 'K2')):
        ins = issue_l(nm)
        for q in range(2): ride(31 + 2 * i + q, nm if q == 1 else None, ins[(15 if q else 0):3 + 12 * q + 12], 8)
    ins = issue_l('V1')
    for q in range(0 if o.v1_late else 2): ride(35 + q, 'V1' if q == 1 else None, ins[(15 if q else 0):3 + 12 * q + 12], 8)
    e('s_barrier')
    e.many(reads(0, 0))
    e.skip = o.a_skip
    for s in range(10):
        for s4 in range(4):
            step = 4 * s + s4; buf = step & 1
            e('s_waitcnt lgkmcnt(0)')
            if step == 31: no_task_wo(e)
            if s4 == 3:
                if s == 9: vm.wait('K1')
                e('s_barrier')
            late = []
            for name, ins, cnt in extra.get(step, []):
                vm.room(cnt); late += ins; vm.add(name or 'part', cnt)
            if s4 == 2 and s < 9: late += a_step(s, VA)
            front = reads((s4 + 1) & 3, buf ^ 1) if step < 39 else []
            gaps(e, mf(buf, step == 0), front, late, per=max(o.aper - 1, 3), late_from=(2 if s4 == 2 else 1))
    e.skip = ''
    if o.v1_late: issue('V1')
    e('s_nop 7'); e('s_nop 3')
    for j in range(3):
        for i in range(16): e.many(conv(i, ACC + 32 * j, ACC + 32 * j))
        for f in range(4): e(f'ds_write_b128 v{V_OST}, {vr(ACC+32*j+4*f,4)} offset:{8192*j + 1024*f}')
    e('s_waitcnt lgkmcnt(0)')
    issue('K3')
    issued = POS['K3']
    e(f's_lshr_b32 s{S_WC}, s2, 3')
    e(f's_mul_i32 s{S_KX}, s{S_WC}, 13')
    e(f's_lshr_b32 s{S_KX}, s{S_KX}, 6')
    vm.wait('pfa')
    e(f'v_mul_u32_u24 v{VW+2}, 1280, v{L}')
    vm_pg = [None]
    ld_own = f'buffer_load_dword v23, v22, {sr(S_WS,4)}, 0 offen sc1'
    T3 = Tail(e, o); T3.vm = vm
    T3.free = [1000 + r for r in range(32, 64, 4)]
    e.T3 = T3
    def shadow_mm(c, first):
        m = []
        af = (lambda off, n: hold3(c, off, n)) if c < 12 else (lambda off, n: vr(32 + off, n))
        for s4 in range(4):
            for nt in range(2):
                d = ar(16 * nt, 16)
                m.append(mfma(d, af(8 * s4 + 4 * nt, 4), reg4(T3.where[(0, c)][s4]), '0' if (first and s4 == 0) else d))
        return m
    ld_cnt = f'global_load_dword v23, v{VZ}, {sr(S_DBG,2)} sc1'
    ld_fl = f'buffer_load_dword v23, v{VP}, {sr(S_WS,4)}, 0 offen sc1'
    for k in range(32):
        wait_upto(POS[f'V{k}'])
        vm.stamp(o, 32 + k) if o.tickst == 1 else None
        e('s_barrier')
        vm.stamp(o, 32 + k) if o.tickst == 2 else None
        if k == (18 if o.t15 else 19):
            vm.room(1); e.many(flag(1)); vm.add('f1', 1)
        if o.pf_w and k in PF_TICKS:
            vm.room(1)
            e(f's_add_u32 s{S_T0}, s{S_KX}, {6 * PF_TICKS.index(k)}')
            e(f's_and_b32 s{S_T2}, s{S_T0}, 3')
            e(f's_lshl_b32 s{S_T2}, s{S_T2}, 4')
            e(f's_lshr_b32 s{S_T0}, s{S_T0}, 2')
            e(f's_add_u32 s{S_T0}, s{S_T0}, s{S_RHO}')
            e(f's_and_b32 s{S_T0}, s{S_T0}, 15')
            e(f's_add_u32 s{S_T0}, s{S_T0}, s{S_T2}')
            e(f's_mul_i32 s{S_T0}, s{S_T0}, {64*1280}')
            e(f's_add_u32 s{S_T0}, s{S_T0}, s{S_WOB}')
            e(f'buffer_load_dword v{VW+1}, v{VW+2}, {sr(S_WO,4)}, s{S_T0} offen {o.wo_flags}')
            vm.add('pft', 1)
        wper = 2 if o.w3 else 3
        wev = (k - 2) // wper if (k >= 2 and (k - 2) % wper == 0 and k <= 26) else None
        if wev:
            vm.wait(f'w{wev-1}')
            e.many(wo_reads(lambda off, n: hold3(wev - 1, off, n), V_WA, V_WA + 1, 0))
        if o.w3 and k == o.w3k - 1:
            e(f'v_and_b32 v22, 7, v{L}')
            e(f'v_lshlrev_b32 v22, 7, v22')
            e(f'v_readfirstlane_b32 s{S_T0}, v{VP}')
            e(f's_add_u32 s{S_T0}, s{S_T0}, {24*128}')
            e(f'v_add_u32 v22, s{S_T0}, v22')
            vm.room(1); e(ld_own); vm.add('po', 1)
        if o.bal and k == o.tagk + 1:
            e(f's_and_b32 s{S_T0}, s2, 7')
            e(f'v_and_b32 v34, 7, v{L}')
            e(f's_lshl_b32 s{S_T2}, s{S_T0}, 10')
            e(f's_add_u32 s{S_T2}, s{S_T2}, {WS_PROG}')
            e(f'v_lshlrev_b32 v32, 7, v34')
            e(f'v_add_u32 v32, s{S_T2}, v32')
            e(f's_lshl_b32 s{S_T2}, s{S_T0}, 7')
            e(f's_add_u32 s{S_T2}, s{S_T2}, {WS_PROG}')
            e(f'v_lshlrev_b32 v33, 10, v34')
            e(f'v_add_u32 v33, s{S_T2}, v33')
        if o.bal and o.tagk + 1 <= k <= 29:
            e('s_cmp_lt_u32 s2, 8')
            e(f's_cbranch_scc0 L_norep{k}')
            e(f's_add_u32 s{S_T0}, s{S_N}, {4 * k}')
            e(f'v_mov_b32 v35, s{S_T0}')
            e('s_mov_b64 exec, 0xff')
            e(f'buffer_store_dword v35, v32, {sr(S_WS,4)}, 0 offen sc1')
            e('s_mov_b64 exec, -1')
            e.lab(f'L_norep{k}')
        thr_now = False
        if o.bal and vm_pg[0] is not None and vm_pg[0] + 1 == k:
            vm.wait('pg')
            e(f'v_subrev_u32 v34, s{S_N}, v34')
            e(f'v_cmp_ge_u32 vcc, {4 * (k - o.bal_lag)}, v34')
            e(f's_and_b32 s{S_T0}, vcc_lo, 0xff')
            e(f's_bcnt1_i32_b32 s{S_T0}, s{S_T0}')
            e(f's_cmp_ge_u32 s{S_T0}, {o.bal}')
            e(f's_cbranch_scc0 L_go{k}')
            e('s_waitcnt vmcnt(0)')
            if o.bal_sl: e(f's_sleep {o.bal_sl}')
            e.lab(f'L_go{k}')
        if k in (o.tagk, 28):
            vm.room(1); e(ld_cnt if k == o.tagk else ld_fl); vm.add('pl', 1)
        if k == 30 and not o.w3:
            tail_setup(e, o)
            vm.room(4 * o.nearly); e.many(e.early); vm.add('early', 4 * o.nearly)
        sh = []
        if o.w3 and o.w3k < k <= o.w3k + 6: sh = [2 * (k - o.w3k - 1), 2 * (k - o.w3k - 1) + 1]
        if o.w3 and k == o.w3k + 7: sh = [12]
        first = POS[f'K{k+1}']
        lk = o.look if o.look_k0 <= k < o.look_k1 else o.look_lo
        if k >= 28: lk = 7 if first + o.look_lo >= POS['V31'] else lk
        lim = min(first + lk, first + 7, POS['T6'])
        if k == 31: lim = POS['T6']
        if o.tsched == 1 and k in (29, 30): lim = min(lim, POS['T1'] + (k - 29))
        if o.tsched == 2 and k < 31: lim = min(lim, POS['V31'])
        if o.tsched == 3 and k == 29: lim = min(lim, POS['V31'])
        done_sh = False
        def do_shadow(fill):
            if sh == [12]:
                vm.wait('w12')
                e.many(wo_reads(lambda off, n: vr(32 + off, n), V_WA, V_WA + 1, 0))
                e('s_waitcnt lgkmcnt(0)')
            elif wev: e('s_waitcnt lgkmcnt(0)')
            for c in sh: vm.wait(f'o0_{c}')
            m = []
            for c in sh: m += shadow_mm(c, c == 0)
            gaps(e, m, fill(), per=3)
            for c in sh: T3.free += T3.where[(0, c)]
            vm.room(8); e.many(T3.pump(2))
        while issued < lim:
            issued += 1
            if sh and issued == lim and issue_l(SEQ[issued]):
                def fill():
                    vm.room(16); vm.add(SEQ[issued], 16)
                    return issue_l(SEQ[issued])
                do_shadow(fill); done_sh = True
            elif o.gran < 16 and SEQ[issued][0] in 'KV' and k < o.thr_end and issue_l(SEQ[issued]):
                ins = issue_l(SEQ[issued]); ng = o.gran // 4
                for q in range(0, 4, ng):
                    vm.room(o.gran)
                    e.many(ins[(3 + 6 * q if q else 0):3 + 6 * (q + ng)])
                    vm.add(SEQ[issued] if q + ng == 4 else 'part', o.gran)
                    while vm.out() > o.thr: vm.wait(vm.q[0][0])
            else:
                issue(SEQ[issued])
            while vm.out() > o.thr + (8 if done_sh else 0) and k < o.thr_end: vm.wait(vm.q[0][0])
        if sh and not done_sh: do_shadow(lambda: [])
        if o.w3 and k == o.w3k:
            vm.wait('po')
            e(f's_add_u32 s{S_T3}, s{S_N}, 1')
            poll(e, o, 'r1o', ld_own, ['v_and_b32 v23, -3, v23', f'v_cmp_eq_u32 vcc, s{S_T3}, v23'])
            tail_setup(e, o)
            T3.todo = [(0, c) for c in range(16)]
            vm.room(8); e.many(T3.pump(2))
        if k == o.tagk:
            vm.wait('pl')
            poll(e, o, 'tag', ld_cnt, ['v_cmp_ne_u32 vcc, 0, v23'])
            e(f'v_readfirstlane_b32 s{S_N}, v23')
        if k == 28:
            vm.wait('pl')
            e(f's_add_u32 s{S_T3}, s{S_N}, 1')
            poll(e, o, 'r1', ld_fl, ['v_and_b32 v23, -3, v23', f'v_cmp_eq_u32 vcc, s{S_T3}, v23'])
        if wev is not None:
            e('s_waitcnt lgkmcnt(0)')
            own_w(wev)
    e('s_barrier')
    e.many(flag(3))
    e('s_waitcnt vmcnt(1)')
    vm.q = []

def a_addr(e, VA, VB, xl):
    L = V_LANE
    e(f'v_lshrrev_b32 v{V_T0}, 5, v{L}')
    e(f'v_bfe_u32 v{V_T1}, v{L}, 2, 2')
    e(f'v_lshl_add_u32 v{V_T2}, v{V_T0}, 3, v{V_T1}')
    e(f'v_lshlrev_b32 v{V_T2}, 8, v{V_T2}')
    e(f'v_lshl_add_u32 v{V_T2}, v{V_T1}, 6, v{V_T2}')
    e(f'v_bfe_u32 v{V_T3}, v{L}, 4, 1')
    e(f'v_lshl_add_u32 v{V_T2}, v{V_T3}, 5, v{V_T2}')
    e(f'v_and_b32 v{V_T3}, 1, v{L}')
    e(f'v_lshl_add_u32 v{V_T2}, v{V_T3}, 4, v{V_T2}')
    e(f'v_bfe_u32 v{V_T3}, v{L}, 1, 1')
    e(f'v_lshl_add_u32 v{V_T2}, v{V_T3}, 3, v{V_T2}')
    for t in range(4):
        e(f'v_xor_b32 v{VA+t}, {64*t}, v{V_T2}')
        e(f'v_add_u32 v{VA+t}, {reg_w(0)}, v{VA+t}')
    e(f'v_and_b32 v{V_T1}, 31, v{L}')
    e(f'v_bfe_u32 v{V_T2}, v{L}, 1, 3')
    e(f'v_xor_b32 v{V_T2}, v{V_T2}, v{V_T0}')
    e(f'v_lshlrev_b32 v{V_T2}, 4, v{V_T2}')
    e(f'v_lshl_add_u32 v{V_T2}, v{V_T1}, 7, v{V_T2}')
    if xl is not None:
        e(f's_add_u32 s{S_T0}, s{xl}, {reg_x(0)}')
    for s4 in range(4):
        e(f'v_xor_b32 v{VB+s4}, {32*s4}, v{V_T2}')
        e(f'v_add_u32 v{VB+s4}, s{S_T0}, v{VB+s4}' if xl is not None else f'v_add_u32 v{VB+s4}, {reg_x(0)}, v{VB+s4}')

def a_step(s, VA):
    r = []
    for i in range(8):
        d = reg_w(s + 1) - reg_w(s) if i < 4 else reg_x(s + 1) - reg_x(s)
        r.append(f'v_add_u32 v{VA+i}, {d}, v{VA+i}' if d > 0 else f'v_subrev_u32 v{VA+i}, {-d}, v{VA+i}')
    return r

SCALE = hex(struct.unpack("<I", struct.pack("<f", math.log2(math.e) / math.sqrt(128.0)))[0])
def conv(i, src, dst):
    a = src + 2 * i
    return [f'v_mul_f32 v{a}, s{S_C}, v{a}', f'v_mul_f32 v{a+1}, s{S_C}, v{a+1}', f'v_cvt_pk_bf16_f32 v{dst+i}, v{a}, v{a+1}']

def phase_a(e, o):
    L = V_LANE
    VA, VB = V_Q, V_Q + 4
    AF = [V_SA, V_SB]; BF = [V_P, V_TMP]; ACC = [128, 192]
    e(f'v_lshrrev_b32 v{V_T0}, 3, v{L}')
    e(f'v_mul_u32_u24 v{V_T0}, 1280, v{V_T0}')
    e(f'v_lshrrev_b32 v{V_T1}, 4, v{L}')
    e(f'v_and_b32 v{V_T2}, 7, v{L}')
    e(f'v_xor_b32 v{V_T1}, v{V_T1}, v{V_T2}')
    for i in range(4):
        e(f'v_xor_b32 v{V_T2}, {4*(i&1)}, v{V_T1}')
        e(f'v_lshl_add_u32 v{V_DMA+i}, v{V_T2}, 4, v{V_T0}')
        if i: e(f'v_add_u32 v{V_DMA+i}, {(10240-1024)*i}, v{V_DMA+i}')
    e(f's_mul_i32 s{S_XB}, s{S_BL}, 3')
    e(f's_add_u32 s{S_XB}, s{S_XB}, s{S_WAVE}')
    e(f's_mul_i32 s{S_OB}, s{S_BR}, 24')
    e(f's_add_u32 s{S_OB}, s{S_OB}, s{S_XB}')
    e(f's_mul_i32 s{S_XB}, s{S_XB}, 40960')
    def xload(s, it):
        r = []
        if it == 0:
            r.append(f's_lshl_b32 s{S_T0}, s{S_KX}, 7')
            r.append(f's_add_u32 s{S_T0}, s{S_T0}, s{S_XB}')
        r.append(f's_add_u32 m0, s{S_XL}, {reg_x(s) + 4096*it}')
        r.append(f's_add_u32 s{S_T1}, s{S_T0}, {491520*it}')
        for i in range(4):
            r.append(f'buffer_load_dwordx4 v{V_DMA+i}, {sr(S_X,4)}, s{S_T1} offen offset:{1024*i} {o.w_flags} lds')
        if it == 1:
            r.append(f's_add_u32 s{S_KX}, s{S_KX}, 1')
            r.append(f's_cmp_eq_u32 s{S_KX}, 10')
            r.append(f's_cselect_b32 s{S_KX}, 0, s{S_KX}')
        return r
    VWQ = V_Q + 8
    e(f'v_lshrrev_b32 v{V_T0}, 4, v{L}')
    e(f'v_and_b32 v{V_T1}, 15, v{L}')
    e(f'v_lshlrev_b32 v{V_T3}, 2, v{V_T0}')
    e(f'v_xor_b32 v{V_T3}, v{V_T3}, v{V_T1}')
    e(f'v_lshlrev_b32 v{V_T2}, 13, v{V_T0}')
    e(f'v_lshl_add_u32 v{VWQ}, v{V_T3}, 4, v{V_T2}')
    for i in range(1, 4): e(f'v_add_u32 v{VWQ+i}, {(32768-1024)*i}, v{VWQ}')
    e(f's_mul_i32 s{S_KVB}, s{S_WAVE}, {5*32768}')
    e(f's_lshl_b32 s{S_T0}, s{S_H}, 8')
    e(f's_add_u32 s{S_KVB}, s{S_KVB}, s{S_T0}')
    e(f's_mul_i32 s{S_FL}, s{S_WAVE}, {5*1024}')
    def wqload(s):
        r = [f's_lshl_b32 s{S_T2}, s{S_KX}, 19', f's_add_u32 s{S_T2}, s{S_T2}, s{S_KVB}']
        for t in range(6):
            if t % 4 == 0:
                r.append(f's_add_u32 m0, s{S_FL}, {reg_w(s) + 1024*t}')
                r.append(f's_add_u32 s{S_T1}, s{S_T2}, {32768*t}')
            r.append(f'buffer_load_dwordx4 v{VWQ+(t&3)}, {sr(S_WQ,4)}, s{S_T1} offen offset:{1024*(t&3)} {o.w_flags} lds')
        return r
    srds(e, o)
    e.many(wqload(0)); e.many(xload(0, 0)); e.many(xload(0, 1))
    lazy(e, o, 2)
    no_task_wo(e)
    e(f's_lshl_b32 s{S_OB}, s{S_OB}, 5')
    e(f's_add_u32 s{S_OB}, s{S_OB}, s{S_H}')
    e(f's_lshl_b32 s{S_OB}, s{S_OB}, 13')
    a_addr(e, VA, VB, S_XL)
    e(f'v_and_b32 v{V_T2}, 15, v{L}')
    e(f'v_xor_b32 v{V_T2}, v{V_T2}, v{V_T0}')
    e(f'v_lshlrev_b32 v{V_T2}, 4, v{V_T2}')
    e(f'v_lshl_add_u32 v{V_T2}, v{V_T1}, 8, v{V_T2}')
    for s in range(8):
        e(f'v_xor_b32 v{V_KA+s}, {32*s}, v{V_T2}')
        e(f'v_add_u32 v{V_KA+s}, {slot_addr("K0")}, v{V_KA+s}')
    e(f'v_bfe_u32 v{V_T1}, v{L}, 2, 2')
    e(f'v_lshl_add_u32 v{V_T2}, v{V_T0}, 2, v{V_T1}')
    e(f'v_lshlrev_b32 v{V_T2}, 8, v{V_T2}')
    e(f'v_lshl_add_u32 v{V_T2}, v{V_T1}, 6, v{V_T2}')
    e(f'v_bfe_u32 v{V_T3}, v{L}, 4, 1')
    e(f'v_lshl_add_u32 v{V_T2}, v{V_T3}, 5, v{V_T2}')
    e(f'v_and_b32 v{V_T3}, 3, v{L}')
    e(f'v_lshl_add_u32 v{V_T2}, v{V_T3}, 3, v{V_T2}')
    e(f'v_add_u32 v{V_T2}, {RING}, v{V_T2}')
    for t in range(4): e(f'v_xor_b32 v{V_VA+t}, {64*t}, v{V_T2}')
    e(f'v_lshlrev_b32 v{V_OST}, 4, v{L}')
    e(f'v_add_u32 v{V_OST+3}, s{S_XL}, v{V_OST}')
    wo_lane_addr(e, V_WA)
    e(f'v_add_u32 v{V_WA}, s{S_XL}, v{V_WA}')
    e(f'v_xor_b32 v{V_WA+1}, 64, v{V_WA}')
    e(f's_mul_i32 s{S_WQB}, s{S_WAVE}, {1024*1280}')
    e(f's_add_u32 s{S_WQB}, s{S_WQB}, s{S_WOB}')
    e(f's_mov_b32 s{S_WC}, s{S_RHO}')
    e(f's_add_u32 s{S_WN}, s{S_WAVE}, 4')
    e(f's_mov_b32 s{S_EV}, 0')
    for i in range(64): e(f'v_accvgpr_write_b32 a{i}, 0')
    for i in range(16): e(f'v_mov_b32 v{V_NEGM+i}, 0')
    for i in range(4): e(f'v_mov_b32 v{V_L+i}, 0')
    e(f's_mov_b32 s{S_C}, {SCALE}')
    e(f's_mov_b32 s{S_THR}, 0xff800000')
    e(f's_mov_b32 s{S_FLOOR}, 0xff800000')
    e(f's_mov_b32 s{S_TICK}, 0')
    e(f's_mov_b32 s{S_KOFF}, {7*SLOT}')
    e(f's_mov_b32 s{S_VOFF}, 0')
    nst = 0
    lazy(e, o, 5)
    e.many(wqload(1)); e.many(xload(1, 0)); e.many(xload(1, 1))
    lazy(e, o, 6)
    def reads(s4, buf):
        r = [f'ds_read_b128 {vr(BF[buf]+4*it,4)}, v{VB+s4} offset:{4096*it}' for it in range(2)]
        for t in range(4):
            for u in range(2):
                r.append(f'ds_read_b64_tr_b16 {vr(AF[buf]+4*t+2*u,2)}, v{VA+t} offset:{(16*s4+4*u)*256}')
        return r
    def mf(buf, first):
        r = []
        for t in range(4):
            for it in range(2):
                if it == 1 and t >= 2: continue
                d = vr(ACC[it] + 16 * t, 16)
                r.append(mfma(d, vr(AF[buf] + 4 * t, 4), vr(BF[buf] + 4 * it, 4), '0' if first else d))
        return r
    e(f's_waitcnt vmcnt({14 + nst})')
    lazy(e, o, 7)
    e('s_barrier')
    lazy(e, o, 8)
    dmark(e, o, 0)
    e.many(reads(0, 0))
    e.skip = o.a_skip
    for s in range(10):
        for s4 in range(4):
            step = 4 * s + s4; buf = step & 1
            if step in (8, 16, 24, 32, 39): lazy(e, o, 9 + (8, 16, 24, 32, 39).index(step))
            if o.stamps and step in (8, 32): e(f's_memtime s[{LAZY[3 if step == 8 else 4]}:{LAZY[3 if step == 8 else 4]+1}]')
            m = mf(buf, step == 0)
            late = []
            e('s_waitcnt lgkmcnt(0)')
            if s4 == 3:
                if s < 9:
                    e(f's_waitcnt vmcnt({(14 if s + 2 <= 9 else 0) + (nst if s < 2 else 0)})')
                e('s_barrier')
                if s + 3 <= 9: late = wqload(s + 3)
            if s4 == 0 and s + 2 <= 9: late = (wqload(2) if s == 0 else []) + xload(s + 2, 0)
            if s4 == 1 and s + 2 <= 9: late = xload(s + 2, 1)
            if s4 == 2 and s < 9: late = a_step(s, VA)
            front = reads((s4 + 1) & 3, buf ^ 1) if step < 39 else []
            gaps(e, m, front, late, per=o.aper, late_from=(3 if o.aper == 3 and s4 == 2 else 2 if o.aper >= 4 else 1))
    e.skip = ''
    wo_voffs(e, V_DMA)
    e('s_nop 4')
    for i in range(16): e.many(conv(i, ACC[0], V_Q))
    e.many(k_reads(0))
    for i in range(16, 32): e.many(conv(i, ACC[0], V_Q))

def k_reads(half):
    return [f'ds_read_b128 {vr(V_KF+4*s,4)}, v{V_KA+s} offset:{8192*half}' for s in range(8)]
def v_reads(half):
    r = []
    for jj in range(2):
        for t in range(4):
            for u in range(2):
                r.append(f'ds_read_b64_tr_b16 {vr(V_VF+16*jj+4*t+2*u,2)}, v{V_VA+t} offset:{(32*half+16*jj+8*u)*256}')
    return r
def qk(S):
    return [mfma(vr(S, 16), vr(V_KF + 4 * s, 4), vr(V_Q + 4 * s, 4), vr(V_NEGM, 16) if s == 0 else vr(S, 16)) for s in range(8)]
def pv():
    return [mfma(ar(16 * t, 16), vr(V_VF + 16 * jj + 4 * t, 4), vr(V_P + 4 * jj, 4), ar(16 * t, 16)) for jj in range(2) for t in range(4)]
def maxes(S):
    r = [f'v_max3_f32 v{V_MX}, v{S}, v{S+1}, v{S+2}', f'v_max3_f32 v{V_D}, v{S+3}, v{S+4}, v{S+5}']
    r += [f'v_max3_f32 v{V_MX}, v{V_MX}, v{S+6}, v{S+7}', f'v_max3_f32 v{V_D}, v{V_D}, v{S+8}, v{S+9}']
    r += [f'v_max3_f32 v{V_MX}, v{V_MX}, v{S+10}, v{S+11}', f'v_max3_f32 v{V_D}, v{V_D}, v{S+12}, v{S+13}']
    r += [f'v_max3_f32 v{V_MX}, v{V_MX}, v{S+14}, v{S+15}', f'v_max_f32 v{V_MX}, v{V_MX}, v{V_D}']
    r += [f'v_cmp_lt_f32 vcc, s{S_THR}, v{V_MX}']
    return r

def half_tick(e, Snew, Sold, vhalf, khalf, extra_v=(), extra_k=(), extra_8=()):
    ex = lambda i: f'v_exp_f32 v{Sold+i}, v{Sold+i}'
    cv = lambda i: f'v_cvt_pk_bf16_f32 v{V_P+i}, v{Sold+2*i}, v{Sold+2*i+1}'
    ad = lambda i: f'v_add_f32 v{V_L+(i&3)}, v{V_L+(i&3)}, v{Sold+i}'
    m = qk(Snew) + pv()
    m[8] = ['s_waitcnt lgkmcnt(0)', m[8]]
    fill = v_reads(vhalf) + [ex(i) for i in range(8)] + list(extra_v) + [cv(i) for i in range(4)] + [ex(i) for i in range(8, 12)]
    fill += [('M', 8), ('A', 8)] + (k_reads(khalf) if khalf is not None else []) + [ex(i) for i in range(12, 16)] + [ad(0)]
    fill += [cv(i) for i in range(4, 8)] + [ad(1), ad(2)]
    rest = [ad(i) for i in range(3, 16)]
    x8 = list(extra_8)
    fill += [('M', 12)]
    while rest or x8:
        if rest: fill.append(rest.pop(0))
        fill += x8[:3]; x8 = x8[3:]
    fill += list(extra_k) + maxes(Snew)
    e('s_waitcnt lgkmcnt(0)')
    interleave(e, m, fill)

def last_half(e, Sold, extra=()):
    ex = lambda i: f'v_exp_f32 v{Sold+i}, v{Sold+i}'
    cv = lambda i: f'v_cvt_pk_bf16_f32 v{V_P+i}, v{Sold+2*i}, v{Sold+2*i+1}'
    ad = lambda i: f'v_add_f32 v{V_L+(i&3)}, v{V_L+(i&3)}, v{Sold+i}'
    e.many(v_reads(1))
    e.many(extra)
    e.many([ex(i) for i in range(8)] + [cv(i) for i in range(4)] + [ex(8), ex(9)])
    e('s_waitcnt lgkmcnt(0)')
    fill = [ex(i) for i in range(10, 16)] + [ad(0)] + [cv(i) for i in range(4, 8)] + [ad(1), ad(2), ('M', 4)] + [ad(i) for i in range(3, 16)]
    interleave(e, pv(), fill)

def rare(e, S, back):
    e('s_nop 7')
    e(f'v_mov_b32 v{V_T0}, v{V_MX}')
    e('s_nop 1')
    e(f'v_permlane32_swap_b32 v{V_T0}, v{V_MX}')
    e('s_nop 1')
    e(f'v_max_f32 v{V_D}, v{V_T0}, v{V_MX}')
    e(f'v_max_f32 v{V_D}, s{S_FLOOR}, v{V_D}')
    for i in range(16): e(f'v_sub_f32 v{S+i}, v{S+i}, v{V_D}')
    for i in range(16): e(f'v_sub_f32 v{V_NEGM+i}, v{V_NEGM+i}, v{V_D}')
    e(f's_cmp_lg_u32 s{S_FLOOR}, 0')
    e(f's_mov_b32 s{S_THR}, 0x41000000')
    e(f's_mov_b32 s{S_FLOOR}, 0')
    e(f's_cbranch_scc1 {back}')
    e(f'v_sub_f32 v{V_T0}, 0, v{V_D}')
    e(f'v_exp_f32 v{V_T0}, v{V_T0}')
    e('s_nop 0')
    for i in range(4): e(f'v_mul_f32 v{V_L+i}, v{V_L+i}, v{V_T0}')
    for i in range(0, 64, 4):
        for j in range(4): e(f'v_accvgpr_read_b32 v{V_TMP+j}, a{i+j}')
        for j in range(4): e(f'v_mul_f32 v{V_TMP+j}, v{V_TMP+j}, v{V_T0}')
        for j in range(4): e(f'v_accvgpr_write_b32 a{i+j}, v{V_TMP+j}')
    e('s_nop 1')
    e(f's_branch {back}')

def epilogue(e, o):
    e(f'v_add_f32 v{V_L}, v{V_L}, v{V_L+1}')
    e(f'v_add_f32 v{V_L+2}, v{V_L+2}, v{V_L+3}')
    e(f'v_add_f32 v{V_L}, v{V_L}, v{V_L+2}')
    e(f'v_mov_b32 v{V_T0}, v{V_L}')
    e('s_nop 1')
    e(f'v_permlane32_swap_b32 v{V_T0}, v{V_L}')
    e('s_nop 1')
    e(f'v_add_f32 v{V_L}, v{V_L}, v{V_T0}')
    e(f'v_rcp_f32 v{V_T0}, v{V_L}')
    e('s_nop 4')
    for f in range(8):
        t = V_VF + 8 * (f & 3)
        for j in range(8): e(f'v_accvgpr_read_b32 v{t+j}, a{8*f+j}')
        if o.pk:
            for j in range(0, 8, 2): e(f'v_pk_mul_f32 {vr(t+j,2)}, {vr(t+j,2)}, {vr(V_T0,2)} op_sel_hi:[1,0]')
        else:
            for j in range(8): e(f'v_mul_f32 v{t+j}, v{t+j}, v{V_T0}')
        d = V_TMP + 4 * (f & 1)
        for j in range(4): e(f'v_cvt_pk_bf16_f32 v{d+j}, v{t+2*j}, v{t+2*j+1}')
        if f == 4: e(f's_add_u32 s{S_OB}, s{S_OB}, 4096')
        e(f'buffer_store_dwordx4 {vr(d,4)}, v{V_OST}, {sr(S_WS,4)}, s{S_OB} offen offset:{1024*(f&3)} {o.ost_flags}')

def w_snippets(e, o, ret):
    e('s_waitcnt vmcnt(0)')
    def tree(lo, n):
        if n == 1:
            if lo == 0:
                for f in range(4): e(f'ds_read_b128 {vr(224+4*f,4)}, v{V_OST+3} offset:{1024*f}')
                if o.t15:
                    for i in range(16): e.many(conv(i, V_Q2, V_Q2))
            else:
                e.many(wo_reads(lambda off, nn: hold(lo - 1, off, nn), V_WA, V_WA + 1, 0))
            e('s_branch L_sn_done')
            return
        h = (n + 1) // 2
        e(f's_cmp_ge_u32 s{S_EV}, {lo+h}')
        e(f's_cbranch_scc1 L_sn_{lo+h}')
        tree(lo, h)
        e.lab(f'L_sn_{lo+h}')
        tree(lo + h, n - h)
    tree(0, 9)
    e.lab('L_sn_done')
    e(f's_add_u32 s{S_EV}, s{S_EV}, 1')
    e(f's_cmp_eq_u32 s{S_EV}, 9')
    e(f's_cselect_b32 s{S_WN}, 64, 3')
    if o.t15:
        e(f's_cmp_eq_u32 s{S_TICK}, 13')
        e(f's_cselect_b32 s{S_WN}, 4, s{S_WN}')
    e('s_waitcnt lgkmcnt(0)')
    e.many(wo_dma(o, 0, f's{S_XL}', 0, f's{S_WQB}', V_DMA, dyn=True))
    e(f's_branch {ret}')

def phase_b(e, o):
    lazy(e, o, 14)
    dmark(e, o, 1)
    lazy_dump(e, o, range(15))
    stamp(e, o, 1)
    e('s_waitcnt lgkmcnt(0)')
    e.many(qk(V_SA))
    e.many(k_reads(1))
    for s in range(8): e(f'v_add_u32 v{V_KA+s}, {SLOT}, v{V_KA+s}')
    e('s_nop 3')
    e.many(maxes(V_SA))
    e('s_branch L_rare_a')
    def adv(soff, tmp, base, n):
        r = [f's_add_u32 s{tmp}, s{soff}, {2*SLOT}', f's_and_b32 s{tmp}, s{tmp}, {8*SLOT-1}',
             f's_sub_u32 s{S_T3}, s{tmp}, s{soff}', f's_mov_b32 s{soff}, s{tmp}']
        r += [f'v_add_u32 v{base+i}, s{S_T3}, v{base+i}' for i in range(n)]
        return r
    e.lab('L_tick')
    e('s_waitcnt lgkmcnt(0)')
    e('s_barrier')
    e(f's_cmp_eq_u32 s{S_TICK}, 31')
    e('s_cbranch_scc1 L_last')
    half_tick(e, V_SB, V_SA, 0, 0)
    e('s_cbranch_vccnz L_rare_b')
    e.lab('L_back_b')
    e(f's_cmp_eq_u32 s{S_TICK}, 15')
    e('s_cbranch_scc1 L_switch')
    e.lab('L_back_sw')
    half_tick(e, V_SA, V_SB, 1, 1, extra_v=adv(S_VOFF, S_T0, V_VA, 4), extra_k=adv(S_KOFF, S_T1, V_KA, 8))
    e(f's_add_u32 s{S_TICK}, s{S_TICK}, 1')
    e(f's_sub_u32 s{S_WN}, s{S_WN}, 1')
    e(f's_cmp_eq_u32 s{S_WN}, 0')
    e('s_cbranch_scc1 L_snip')
    e.lab('L_snip_ret')
    e(f's_cmp_eq_u32 s{S_TICK}, 16')
    e('s_cbranch_scc1 L_epi1')
    e('s_cbranch_vccz L_tick')
    e.lab('L_rare_a')
    rare(e, V_SA, 'L_tick')
    e.lab('L_snip')
    w_snippets(e, o, 'L_snip_ret')
    e.lab('L_rare_b')
    rare(e, V_SB, 'L_back_b')
    e.lab('L_switch')
    for i in range(16): e(f'v_mov_b32 v{V_Q+16+i}, v{224+i}')
    for i in range(16): e.many([f'v_mov_b32 v{V_Q+i}, v{V_Q2+i}'] if o.t15 else conv(i, V_Q2, V_Q))
    for i in range(16): e(f'v_mov_b32 v{V_NEGM+i}, 0')
    e('s_nop 1')
    e('s_branch L_back_sw')
    e.lab('L_epi1')
    epilogue(e, o)
    e(f's_add_u32 s{S_OB}, s{S_OB}, {RND - 4096}')
    if o.t15:
        for t in range(4): e(mfma(ar(16 * t, 16), vr(V_NEGM, 4), vr(V_NEGM, 4), '0'))
    else:
        for i in range(64): e(f'v_accvgpr_write_b32 a{i}, 0')
    for i in range(4): e(f'v_mov_b32 v{V_L+i}, 0')
    e(f's_mov_b32 s{S_FLOOR}, 0xff800000')
    stamp(e, o, 2)
    dmark(e, o, 2)
    e('s_branch L_rare_a')
    e.lab('L_rare_l')
    rare(e, V_SB, 'L_back_l')
    e.lab('L_last')
    T = tail_pre(e, o)
    e.early = T.pump(min(o.nearly, 4))
    half_tick(e, V_SB, V_SA, 0, None, extra_8=e.early)
    e('s_cbranch_vccnz L_rare_l')
    e.lab('L_back_l')
    x = T.pump(max(o.nearly - 4, 0))
    e.early += x
    last_half(e, V_SB, x)
    epilogue(e, o)
    return T

def tail_setup(e, o):
    e(f's_mul_i32 s{S_O1}, s{S_BR}, 24')
    e(f's_add_u32 s{S_O1}, s{S_O1}, s{S_QT}')
    e(f's_lshl_b32 s{S_O1}, s{S_O1}, 2')
    e(f's_add_u32 s{S_O1}, s{S_O1}, s{S_WAVE}')
    e(f's_lshl_b32 s{S_O1}, s{S_O1}, 16')

POOL = list(range(96, 160, 4)) + [32, 36, 40, 44, 16, 20, 24, 80, 84] + list(range(160, 192, 4)) + [88, 92]
ORDER1 = [0, 1, 2, 8, 3, 9, 4, 10, 5, 11, 6, 12, 7]
ORDER2 = [8, 0, 9, 1, 10, 2, 11, 3, 12, 4, 13, 14, 15, 5, 6, 7]

class Tail:
    def __init__(self, e, o):
        self.e, self.o = e, o
        self.vm = Vm(e)
        self.free = list(POOL)
        self.where = {}
        self.todo = []
    def oload(self, rnd, c):
        e = self.e
        regs = [self.free.pop(0) for _ in range(4)]
        self.where[(rnd, c)] = regs
        r = [f's_add_u32 s{S_T1}, s{S_RHO}, {c}', f's_and_b32 s{S_T1}, s{S_T1}, 15', f's_lshl_b32 s{S_T1}, s{S_T1}, 12',
             f's_add_u32 s{S_T1}, s{S_T1}, s{S_O1}']
        if rnd and not self.o.t_o1: r.append(f's_add_u32 s{S_T1}, s{S_T1}, {RND}')
        if rnd and self.o.t_noo: return []
        for s4 in range(4):
            r.append(f'buffer_load_dwordx4 {reg4(regs[s4])}, v{V_OST}, {sr(S_WS,4)}, s{S_T1} offen offset:{1024*s4} {self.o.old_flags}')
        self.vm.add(f'o{rnd}_{c}', 4)
        return r
    def pump(self, lim=99):
        r = []
        while self.todo and len(self.free) >= 4 and self.vm.out() + 4 <= 61 and lim > 0:
            lim -= 1
            r += self.oload(*self.todo.pop(0))
        return r

def tail_pre(e, o):
    T = Tail(e, o)
    tail_setup(e, o)
    T.todo = [(0, c) for c in ORDER1]
    return T

def tail(e, o, T, w3=False):
    L = V_LANE
    vm = T.vm
    sfx = '3' if w3 else ''
    RA = 6
    TEMP = 48
    e(f's_cmp_eq_u32 s{S_NT}, 15')
    e('s_cbranch_scc1 L_exit')
    e(f's_mul_i32 s{S_WQB}, s{S_WAVE}, {1024*1280}')
    e(f's_add_u32 s{S_WQB}, s{S_WQB}, s{S_WOB}')
    if w3:
        T.free += [12, 16, 20, 24]
        e('s_barrier')
    e.many(T.pump())
    if not w3:
        vm.room(8)
        e.many(wo_dma(o, 12, f's{S_XL}', 4 * 32768, f's{S_WQB}', V_DMA))
        vm.add('late', 8)
    for b in range(3):
        e(f'v_add_u32 v{RA+2*b}, {65536*b}, v{V_WA}')
        e(f'v_add_u32 v{RA+2*b+1}, {65536*b}, v{V_WA+1}')
    e(f's_lshl_b32 s{S_T0}, s{S_BR}, 2')
    e(f's_add_u32 s{S_T0}, s{S_T0}, s{S_QB}')
    e(f's_lshl_b32 s{S_T0}, s{S_T0}, 2')
    e(f's_add_u32 s{S_T0}, s{S_T0}, s{S_WAVE}')
    e(f's_lshl_b32 s{S_T0}, s{S_T0}, 10')
    e(f's_add_u32 s{S_T0}, s{S_T0}, {WS_FLAGS}')
    e(f'v_and_b32 v31, 7, v{L}')
    e(f'v_lshlrev_b32 v31, 7, v31')
    e(f'v_add_u32 v31, s{S_T0}, v31')
    e('v_mov_b32 v0, 0')
    piece = {8: 0, 9: 1, 10: 2, 11: 3, 12: 4, 13: 0, 14: 1, 15: 2}
    if w3: piece = {12: 0, 13: 1, 14: 2, 15: 3}
    tmp_of = {}
    def rd(c, dstf):
        j = piece[c]
        return wo_reads(dstf, RA + 2 * (j >> 1), RA + 2 * (j >> 1) + 1, 32768 * (j & 1))
    def afrag(c):
        if c < 8: return lambda off, n: hold(c, off, n)
        if c >= 13: return lambda off, n: hold(c - 13, off, n)
        return lambda off, n: vr(TEMP + off, n)
    first = {0: True, 1: True}
    def mms(c, rnds):
        m = []
        for s4 in range(4):
            for rnd in rnds:
                for nt in range(2):
                    d = ar(32 * rnd + 16 * nt, 16)
                    m.append(mfma(d, afrag(c)(8 * s4 + 4 * nt, 4), reg4(T.where[(rnd, c)][s4]), '0' if (first[rnd] and s4 == 0) else d))
        for rnd in rnds: first[rnd] = False
        return m
    def wdma(c):
        if o.t_now: return []
        vm.add(f'w{c}', 8)
        return wo_dma(o, c, f's{S_XL}', 32768 * piece[c], f's{S_WQB}', V_DMA)
    ld_fl = f'buffer_load_dword v{V_T2}, v31, {sr(S_WS,4)}, 0 offen sc1'
    WA, RDA, VOUT = 48, 56, 60
    S_OO = S_KOFF
    fin = [f'v_and_b32 v{V_T0}, 31, v{L}', f'v_lshrrev_b32 v{V_T1}, 5, v{L}', f'v_and_b32 v{V_T3}, 15, v{L}',
           f'v_xor_b32 v{V_T1}, v{V_T1}, v{V_T3}', f'v_lshlrev_b32 v{V_T1}, 4, v{V_T1}',
           f'v_lshl_add_u32 v{V_T0}, v{V_T0}, 8, v{V_T1}', f's_add_u32 s{S_T3}, s{S_XL}, {3*32768}',
           f'v_add_u32 v{V_T0}, s{S_T3}, v{V_T0}']
    fin += [f'v_xor_b32 v{WA+k}, {32*k}, v{V_T0}' for k in range(8)]
    fin2 = [f's_lshr_b32 s{S_VOFF}, s{S_WAVE}, 1', f's_and_b32 s{S_THR}, s{S_WAVE}, 1',
            f's_lshl_b32 s{S_T2}, s{S_VOFF}, 15', f's_lshl_b32 s{S_T3}, s{S_THR}, 12',
            f's_add_u32 s{S_T2}, s{S_T2}, s{S_T3}', f's_add_u32 s{S_T2}, s{S_T2}, {3*32768}',
            f'v_lshrrev_b32 v{V_T1}, 3, v{L}', f'v_and_b32 v{V_T3}, 7, v{L}', f'v_lshlrev_b32 v{V_T0}, 1, v{V_T3}',
            f'v_xor_b32 v{V_T0}, v{V_T0}, v{V_T1}', f'v_lshlrev_b32 v{V_T0}, 4, v{V_T0}',
            f'v_lshl_add_u32 v{V_T0}, v{V_T1}, 8, v{V_T0}', f'v_add_u32 v{RDA}, s{S_T2}, v{V_T0}',
            f'v_xor_b32 v{RDA+1}, 16, v{RDA}', f'v_xor_b32 v{RDA+2}, {2048+128}, v{RDA}', f'v_xor_b32 v{RDA+3}, 16, v{RDA+2}',
            f's_lshl_b32 s{S_OO}, s{S_QT}, 5', f's_mul_i32 s{S_VOFF}, s{S_VOFF}, 384', f's_add_u32 s{S_OO}, s{S_OO}, s{S_VOFF}',
            f's_lshl_b32 s{S_THR}, s{S_THR}, 4', f's_add_u32 s{S_OO}, s{S_OO}, s{S_THR}', f's_mul_i32 s{S_OO}, s{S_OO}, 2560',
            f's_mul_i32 s{S_T3}, s{S_BR}, 1280', f's_add_u32 s{S_OO}, s{S_OO}, s{S_T3}', f's_add_u32 s{S_OO}, s{S_OO}, s{S_WOB}',
            f'v_mul_u32_u24 v{V_T1}, 2560, v{V_T1}', f'v_lshl_add_u32 v{VOUT}, v{V_T3}, 4, v{V_T1}']
    def pwrite(rnd):
        return [f'ds_write_b128 v{WA+4*nt+g}, {ar(32*rnd+16*nt+4*g,4)} offset:{rnd*32768}' for nt in range(2) for g in range(4)]
    if w3:
        ld_tag = f'global_load_dword v30, v0, {sr(S_DBG,2)} sc1'
        first[0] = False
        def mm3(c, rnd, af):
            m = []
            for s4 in range(4):
                for nt in range(2):
                    d = ar(32 * rnd + 16 * nt, 16)
                    m.append(mfma(d, af(8 * s4 + 4 * nt, 4), reg4(T.where[(rnd, c)][s4]), '0' if (first[rnd] and s4 == 0) else d))
            first[rnd] = False
            return m
        t1 = lambda off, n: vr(32 + off, n)
        for c in (13, 14, 15):
            e.many(rd(c, t1))
            if c == 15:
                vm.room(2); e(ld_tag); e(ld_fl); vm.add('pl', 2)
            e('s_waitcnt lgkmcnt(0)')
            vm.wait(f'o0_{c}')
            gaps(e, mm3(c, 0, t1), T.pump(), per=2)
            T.free += T.where[(0, c)]
        assert not T.todo
        vm.wait('pl')
        e('v_add_u32 v30, 3, v30')
        poll(e, o, 'r23', ld_fl, [f'v_cmp_eq_u32 vcc, v30, v{V_T2}'])
        T.free = [48, 52, 56, 60, 12, 16, 20, 24, 32, 36, 40, 44]
        order = [8, 9, 15, 10, 14, 11, 13, 6, 12, 7, 0, 1, 2, 3, 4, 5]
        T.todo = [(1, c) for c in order]
        e.many(T.pump())
        t2 = lambda off, n: hold3(8, off, n)
        for i, c in enumerate(order):
            nxt = order[i + 1] if i + 1 < len(order) else None
            if c >= 12: e('s_waitcnt lgkmcnt(0)')
            vm.wait(f'o1_{c}')
            front = rd(nxt, t2) if (nxt is not None and nxt >= 12) else []
            late = []
            if c == 10: late += fin
            if c == 11: late += pwrite(0)
            if c == 0: late += fin2
            m = mm3(c, 1, t2 if c >= 12 else (lambda off, n: hold3(c, off, n)))
            late += T.pump()
            gaps(e, m, front, late, per=3, late_from=0 if not front else 2)
            if c != 8: T.free += T.where[(1, c)]
            if c in (9, 10, 11): T.free += list(range(64 + 32 * (c - 8), 64 + 32 * (c - 7), 4))
            if c in (6, 7): T.free += list(range(192 + 32 * (c - 6), 192 + 32 * (c - 5), 4))
        assert not T.todo
        e('s_nop 7'); e('s_nop 3')
        e.many(pwrite(1))
        e('s_branch L_red')
        return
    seq = [(0, c) for c in ORDER1] + [(1, c) for c in ORDER2]
    todo2 = []
    for c in ORDER2: todo2 += ([(0, c)] if (c >= 13 and not o.park) else []) + [(1, c)]
    for i, (rnd, c) in enumerate(seq):
        rnds = [0, 1] if c >= 13 else [rnd]
        nxt = seq[i + 1][1] if i + 1 < len(seq) else None
        if i == o.chk - o.pl_at:
            vm.room(2); e(f'global_load_dword v30, v0, {sr(S_DBG,2)} sc1'); e(ld_fl); vm.add('pl', 2)
            if o.park: T.todo += [(0, c) for c in (13, 14, 15)]
        if i == o.chk:
            vm.stamp(o, 5)
            vm.wait('pl')
            e('v_add_u32 v30, 3, v30')
            poll(e, o, 'r2', ld_fl, [f'v_cmp_eq_u32 vcc, v30, v{V_T2}'])
            T.todo += todo2
            e.many(T.pump())
            vm.stamp(o, 6)
        if c >= 8: e('s_waitcnt lgkmcnt(0)')
        for r_ in rnds: vm.wait(f'o{r_}_{c}')
        front = []; late = []
        if nxt is not None and nxt >= 8:
            assert not (8 <= c < 13 and nxt < 13)
            if rnd == 0 and nxt == 8 and i < 5: e('s_barrier')
            if nxt == 12 and vm.has('late'): vm.wait('late')
            if nxt >= 13: vm.wait(f'w{nxt}')
            front = rd(nxt, afrag(nxt))
        if rnd == 1 and c in (8, 9, 10):
            vm.room(8)
            late += wdma(c + 5)
        if rnd == 1 and c == 15: late += fin
        if rnd == 1 and c == 6: late += pwrite(0)
        if rnd == 1 and c == 5: late += fin2
        m = mms(c, rnds)
        late += T.pump()
        gaps(e, m, front, late, per=3, late_from=0 if not front else 2)
        for r_ in rnds: T.free += T.where[(r_, c)]
    assert not T.todo
    vm.stamp(o, 7)
    e('s_nop 7'); e('s_nop 3')
    e.many(pwrite(1))
    e.lab('L_red')
    e('s_waitcnt lgkmcnt(0)')
    e('s_barrier')
    for i in range(2):
        for p in range(4):
            for hh in range(2):
                e(f'ds_read_b128 {vr(96+32*i+8*p+4*hh,4)}, v{RDA+2*i+hh} offset:{8192*p}')
    for i in range(2):
        b = 96 + 32 * i
        e(f's_waitcnt lgkmcnt({8*(1-i)})')
        for j in range(8):
            e(f'v_add_f32 v{b+j}, v{b+j}, v{b+8+j}')
            e(f'v_add_f32 v{b+16+j}, v{b+16+j}, v{b+24+j}')
        for j in range(8): e(f'v_add_f32 v{b+j}, v{b+j}, v{b+16+j}')
        for j in range(4): e(f'v_cvt_pk_bf16_f32 v{b+8+j}, v{b+2*j}, v{b+2*j+1}')
        if i: e(f's_add_u32 s{S_OO}, s{S_OO}, {8*2560}')
        e(f'buffer_store_dwordx4 {vr(b+8,4)}, v{VOUT}, {sr(S_OUT,4)}, s{S_OO} offen {o.out_flags}')
    ddump(e, o, 5)
    if o.stamps:
        e('s_waitcnt vmcnt(0)')
        stamp(e, o, 14)

KD = '''.amdhsa_kernel {n}
  .amdhsa_next_free_vgpr 512
  .amdhsa_next_free_sgpr 102
  .amdhsa_accum_offset 256
  .amdhsa_group_segment_fixed_size 0
  .amdhsa_kernarg_size 104
  .amdhsa_user_sgpr_count 2
  .amdhsa_user_sgpr_kernarg_segment_ptr 1
  .amdhsa_system_sgpr_workgroup_id_x 1
.end_amdhsa_kernel
'''

def gen(o):
    e = Em()
    k1 = NAME + '_kernel'
    e.raw('; @launch grid=(256,1,1) block=(256,1,1) lds=163840')
    e.raw('.amdgcn_target "amdgcn-amd-amdhsa--gfx950"')
    e.raw('.text')
    e.raw(f'.globl {k1}\n.p2align 8\n.type {k1},@function')
    e.lab(k1)
    prologue(e, o)
    e(f's_cmp_eq_u32 s{S_WAVE}, 3')
    e('s_cbranch_scc1 L_loader')
    phase_a(e, o)
    T = phase_b(e, o)
    n0 = T.vm.out()
    pre = T.pump(o.npre)
    npre = T.vm.out() - n0
    e.many(pre)
    e(f's_waitcnt vmcnt({npre}) lgkmcnt(0)')
    e('s_barrier')
    dmark(e, o, 3)
    if o.stamps:
        T.vm.stamp(o, 3)
    e('s_branch L_join')
    e.lab('L_loader')
    loader(e, o)
    if o.w3:
        if o.stamps: e.T3.vm.stamp(o, 3)
        tail(e, o, e.T3, w3=True)
    else:
        e.many(pre)
        if o.stamps: stamp(e, o, 3)
    e.lab('L_join')
    tail(e, o, T)
    e.lab('L_exit')
    e('s_endpgm')
    e.lab('L_end')
    e.raw('.section .rodata,"a"\n.p2align 6')
    e.raw(KD.format(n=k1))
    return e.text()

if __name__ == '__main__':
    o = Opt()
    out = sys.argv[1]
    for a in sys.argv[2:]:
        k, v = a.split('=', 1); v = v.replace('+', ' ')
        cur = getattr(o, k)
        setattr(o, k, (v == '1') if isinstance(cur, bool) else int(v) if isinstance(cur, int) else v)
    open(out, 'w').write(gen(o))
```

```python
import sys, math, struct
NAME = 'concat_heads__mha_block_cached__mha_block_cached__near_ridge'

class Opt:
    stamps = False
    kv_flags = 'nt'
    w_flags = ''
    wo_flags = ''
    ost_flags = 'sc1'
    old_flags = 'sc1'
    look = 7
    rot = 3
    tickst = 0
    no_w = False
    no_w3 = False
    t_now = False
    t_o1 = False
    t_noo = False
    c8late = True
    pf_kv = 0
    pf_wo = True
    pf_a = False
    pf_w = False
    pf_delay = 0
    pf_s0 = 2
    pf_mid = 0
    pf_flags = ''
    pf_tail = 0
    bal = 0
    bal_lag = 2
    bal_n = 1
    bal_sl = 0
    tagk = 1
    thr_end = 28
    k_first = False
    k_s0 = 0
    tlb = True
    aper = 4
    out_flags = ''
    tsched = 0
    park = True
    gran = 16
    a_skip = ''
    dbgt = False
    lb = 8
    lb_hi = 35
    lb_pos = 0
    lb_t = 0
    lb_lo = 8
    lb_ld = 'sc1'
    lb_st = ''
    pfc = False
    w3 = False
    w3k = 23
    pl_at = 3
    fav = 0
    t15 = True
    nearly = 0
    npre = 3
    pk = True
    v1_late = True
    look_lo = 5
    look_k0 = 0
    look_k1 = 0
    krot = False
    early = True
    chk = 7
    bal_k1 = 30
    psleep = 4
    thr = 16
    blk = 0

WS_FLAGS = 12582912
WS_PROG = WS_FLAGS + 32768
WS_STAMP = 13631488
SLOT = 16384
STAGE = 40960
RND = 12 * 32 * 8192

S_X, S_K, S_V, S_WQ, S_WO, S_OUT, S_WS = 4, 8, 12, 16, 20, 24, 28
S_DBG = 32
S_WAVE, S_BR, S_H, S_BL = 34, 35, 36, 37
S_T0, S_T1, S_T2, S_T3 = 38, 39, 40, 41
S_KX, S_XB, S_XL, S_KVB, S_TICK = 42, 43, 44, 45, 46
S_KOFF, S_VOFF, S_THR, S_FLOOR, S_C, S_OB, S_WQB = 47, 48, 49, 50, 51, 52, 53
S_ST, S_STB, S_QT, S_NT = 54, 56, 57, 58
S_SAVE = 60
S_WN, S_FL = 62, 63
S_EV = 59
S_KARG = 64
S_WOB, S_O1, S_QB, S_CNT, S_RHO, S_WC, S_N, S_KR = 90, 91, 92, 93, 94, 95, 96, 97

V_LANE = 1
V_T0, V_T1, V_T2, V_T3 = 2, 3, 4, 5
V_L, V_MX, V_D = 6, 10, 11
V_DMA = 12
V_KA, V_VA, V_OST, V_WA = 16, 24, 28, 29
V_NEGM = 32
V_SA, V_SB, V_P, V_TMP = 48, 64, 80, 88
V_Q, V_KF, V_VF, V_Q2 = 96, 128, 160, 192

class Em:
    def __init__(self): self.L = []
    def __call__(self, s): self.L.append('    ' + s)
    def lab(self, s): self.L.append(s + ':')
    def raw(self, s): self.L.append(s)
    def many(self, l):
        for x in l: self(x)
    def text(self): return '\n'.join(self.L) + '\n'

def vr(b, n=1): return f'v{b}' if n == 1 else f'v[{b}:{b+n-1}]'
def ar(b, n=1): return f'a{b}' if n == 1 else f'a[{b}:{b+n-1}]'
def sr(b, n=1): return f's{b}' if n == 1 else f's[{b}:{b+n-1}]'
def mfma(d, a, b, c): return f'v_mfma_f32_32x32x16_bf16 {d}, {a}, {b}, {c}'
def hold(ci, off, n):
    return ar(64 + 32 * ci + off, n) if ci < 6 else vr(192 + 32 * (ci - 6) + off, n)

def hold3(ci, off, n):
    return hold(ci, off, n) if ci < 8 else vr(64 + 32 * (ci - 8) + off, n)
def reg4(r): return ar(r - 1000, 4) if r >= 1000 else vr(r, 4)

def cost(i):
    if i.startswith('v_exp') or i.startswith('v_rcp'): return 8
    if i.startswith('s_'): return 2
    return 4

def interleave(e, mf, fill):
    total = sum(cost(f) for f in fill if not isinstance(f, tuple))
    per = total / len(mf)
    fi = 0; acc = 0.0
    deadline = {}; items = []
    for f in fill:
        if isinstance(f, tuple):
            if f[0] == 'M': deadline[f[1]] = len(items)
            else: items.append(f)
        else: items.append(f)
    for k, m in enumerate(mf):
        need = deadline.get(k, 0)
        while fi < need:
            it = items[fi]; fi += 1
            if isinstance(it, tuple):
                assert it[1] < k, (it, k)
                continue
            e(it); acc += cost(it)
        if isinstance(m, (list, tuple)): e.many(m)
        else: e(m)
        target = per * (k + 1)
        while fi < len(items) and (acc < target - 1.0 or k == len(mf) - 1):
            it = items[fi]
            if isinstance(it, tuple):
                if it[1] > k: break
                fi += 1; continue
            e(it); acc += cost(it); fi += 1
    assert fi == len(items)

def gaps(e, mf, front, late=(), per=2, late_from=5):
    g = [[] for _ in mf]
    for i, f in enumerate(front): g[min(i // per, len(mf) - 1)].append(f)
    n = len(mf) - late_from
    for i, f in enumerate(late): g[late_from + (i * n) // len(late)].append(f)
    for m, x in zip(mf, g):
        sk = getattr(e, 'skip', '')
        if 'm' not in sk: e(m)
        e.many([y for y in x if not (('r' in sk and y.startswith('ds_read')) or ('d' in sk and y.startswith('buffer_load_dwordx4 v') and ('s[4:7]' in y or 's[16:19]' in y)))])

def stamp(e, o, idx, clk=False):
    if not o.stamps: return 0
    e(f's_memtime {sr(S_ST,2)}' if clk else f's_memrealtime {sr(S_ST,2)}')
    e('s_waitcnt lgkmcnt(0)')
    e(f'v_mov_b32 v{V_T0}, s{S_ST}')
    e(f'v_mov_b32 v{V_T1}, s{S_STB}')
    e('s_mov_b64 exec, 1')
    e(f'buffer_store_dword v{V_T0}, v{V_T1}, {sr(S_WS,4)}, 0 offen offset:{4*idx}')
    e('s_mov_b64 exec, -1')
    return 1

LAZY = {0: 98, 1: 100}
for _i in range(2, 15): LAZY[_i] = 64 + 2 * (_i - 2)
def lazy(e, o, i):
    if o.stamps: e(f's_memrealtime s[{LAZY[i]}:{LAZY[i]+1}]')
def lazy_dump(e, o, ids):
    if not o.stamps: return 0
    e('s_waitcnt lgkmcnt(0)')
    e(f'v_mov_b32 v{V_T1}, s{S_STB}')
    e('s_mov_b64 exec, 1')
    for i in ids:
        e(f'v_mov_b32 v{V_T0}, s{LAZY[i]}')
        e(f'buffer_store_dword v{V_T0}, v{V_T1}, {sr(S_WS,4)}, 0 offen offset:{16 if i == 0 else 4*(16+i)}')
        e('s_nop 1')
    e('s_mov_b64 exec, -1')
    return len(ids)

def dmark(e, o, i):
    if o.dbgt: e(f's_memrealtime s[{64+2*i}:{65+2*i}]')
def ddump(e, o, n):
    if not o.dbgt: return
    e('s_waitcnt vmcnt(0)')
    dmark(e, o, n - 1)
    e('s_waitcnt lgkmcnt(0)')
    e(f's_cmp_lg_u32 s{S_WAVE}, 0')
    e('s_cbranch_scc1 L_exit')
    e('s_mov_b32 s3, 0')
    for j, w in enumerate((5, 130, 203)):
        e(f's_cmp_eq_u32 s2, {w}')
        e(f's_cselect_b32 s3, {4 + 20 * j}, s3')
    e('s_cmp_eq_u32 s3, 0')
    e('s_cbranch_scc1 L_exit')
    e('v_mov_b32 v2, s3')
    e('s_mov_b64 exec, 1')
    for i in range(n):
        e(f's_sub_u32 s{64+2*i}, s{64+2*i}, s98')
        e(f'v_mov_b32 v3, s{64+2*i}')
        e(f'global_store_dword v2, v3, {sr(S_DBG,2)} offset:{4*i}')
        e('s_nop 1')
    e('s_mov_b64 exec, -1')

class Vm:
    def __init__(self, e): self.e = e; self.q = []
    def out(self): return sum(c for _, c in self.q)
    def has(self, name): return name in [n for n, _ in self.q]
    def wait(self, name):
        names = [n for n, _ in self.q]
        if name not in names: return
        i = names.index(name)
        rest = sum(c for _, c in self.q[i + 1:])
        assert rest <= 63
        self.e(f's_waitcnt vmcnt({rest})')
        self.q = self.q[i + 1:]
    def room(self, c):
        while self.out() + c > 61: self.wait(self.q[0][0])
    def add(self, name, c):
        self.q.append((name, c)); assert self.out() <= 63, self.q
    def stamp(self, o, idx, clk=False):
        if o.stamps:
            self.room(1); stamp(self.e, o, idx, clk); self.add(f'st{idx}', 1)

def prologue(e, o):
    if o.stamps or o.dbgt: e('s_memrealtime s[98:99]')
    e('s_cmp_ge_u32 s2, 256')
    e('s_cbranch_scc1 L_exit')
    e(f's_load_dwordx16 {sr(S_KARG,16)}, s[0:1], 0')
    e(f's_load_dwordx8 {sr(S_KARG+16,8)}, s[0:1], 64')
    e(f's_load_dwordx2 {sr(S_KARG+24,2)}, s[0:1], 96')
    e(f'v_lshrrev_b32 v{V_T0}, 6, v0')
    e(f'v_and_b32 v{V_LANE}, 63, v0')
    e(f'v_readfirstlane_b32 s{S_WAVE}, v{V_T0}')
    e(f's_and_b32 s{S_T0}, s2, 7')
    e(f's_lshr_b32 s{S_T1}, s2, 3')
    e(f's_lshr_b32 s{S_BR}, s{S_T0}, 2')
    e(f's_and_b32 s{S_T2}, s{S_T0}, 3')
    e(f's_lshl_b32 s{S_H}, s{S_T2}, 3')
    e(f's_and_b32 s{S_T3}, s{S_T1}, 7')
    e(f's_add_u32 s{S_H}, s{S_H}, s{S_T3}')
    e(f's_lshr_b32 s{S_BL}, s{S_T1}, 3')
    e(f's_mul_i32 s{S_KX}, s{S_BL}, 5')
    e(f's_add_u32 s{S_KX}, s{S_KX}, 1')
    e(f's_lshr_b32 s{S_KX}, s{S_KX}, 1')
    e(f's_add_u32 s{S_KX}, s{S_KX}, s{S_T3}')
    e(f's_cmp_ge_u32 s{S_KX}, 10')
    e(f's_cselect_b32 s{S_T3}, 10, 0')
    e(f's_sub_u32 s{S_KX}, s{S_KX}, s{S_T3}')
    if o.blk == 0:
        e(f's_mul_i32 s{S_QT}, s{S_T1}, 13')
        e(f's_lshr_b32 s{S_QT}, s{S_QT}, 6')
        e(f's_mul_i32 s{S_T3}, s{S_QT}, 5')
        e(f's_sub_u32 s{S_NT}, s{S_T1}, s{S_T3}')
        e(f's_and_b32 s{S_T3}, s{S_T2}, 1')
        e(f's_mul_i32 s{S_T3}, s{S_T3}, 5')
        e(f's_add_u32 s{S_NT}, s{S_NT}, s{S_T3}')
        e(f's_lshr_b32 s{S_T3}, s{S_T2}, 1')
        e(f's_mul_i32 s{S_T3}, s{S_T3}, 6')
        e(f's_add_u32 s{S_QT}, s{S_QT}, s{S_T3}')
    elif o.blk == 1:
        e(f's_mul_i32 s{S_QT}, s{S_T1}, 26')
        e(f's_lshr_b32 s{S_QT}, s{S_QT}, 8')
        e(f's_mul_i32 s{S_T3}, s{S_QT}, 10')
        e(f's_sub_u32 s{S_NT}, s{S_T1}, s{S_T3}')
        e(f's_mul_i32 s{S_T3}, s{S_T2}, 3')
        e(f's_add_u32 s{S_QT}, s{S_QT}, s{S_T3}')
    else:
        e(f's_mul_i32 s{S_T3}, s{S_T2}, 30')
        e(f's_add_u32 s{S_T3}, s{S_T3}, s{S_T1}')
        e(f's_mul_i32 s{S_NT}, s{S_T3}, 171')
        e(f's_lshr_b32 s{S_NT}, s{S_NT}, 11')
        e(f's_mul_i32 s{S_QT}, s{S_NT}, 12')
        e(f's_sub_u32 s{S_QT}, s{S_T3}, s{S_QT}')
    e(f's_cmp_ge_u32 s{S_T1}, 30')
    e(f's_cselect_b32 s{S_NT}, 15, s{S_NT}')
    e(f's_cselect_b32 s{S_QT}, 0, s{S_QT}')
    e(f's_mul_i32 s{S_QB}, s{S_QT}, 11')
    e(f's_lshr_b32 s{S_QB}, s{S_QB}, 5')
    e(f's_lshl_b32 s{S_STB}, s2, 2')
    e(f's_add_u32 s{S_STB}, s{S_STB}, s{S_WAVE}')
    e(f's_lshl_b32 s{S_STB}, s{S_STB}, 8')
    e(f's_add_u32 s{S_STB}, s{S_STB}, {WS_STAMP}')
    e(f's_lshl_b32 s{S_XL}, s{S_WAVE}, 13')
    e(f's_lshl_b32 s{S_WOB}, s{S_NT}, 7')
    e(f's_cmp_ge_u32 s{S_NT}, 5')
    e(f's_cselect_b32 s{S_T0}, {5 if o.blk == 0 else 0}, 0')
    e(f's_sub_u32 s{S_RHO}, s{S_NT}, s{S_T0}')
    e(f's_mul_i32 s{S_RHO}, s{S_RHO}, {o.rot}')
    e(f's_and_b32 s{S_RHO}, s{S_RHO}, 15')
    for srd, size in ((S_X, 983040), (S_K, 1 << 26), (S_V, 1 << 26), (S_WQ, 5242880), (S_WO, 5242880), (S_OUT, 1966080), (S_WS, 16777216)):
        e(f's_mov_b32 s{srd+2}, {size}')
        e(f's_mov_b32 s{srd+3}, 0x20000')

def srds(e, o):
    e('s_waitcnt lgkmcnt(0)')
    e(f's_cmp_eq_u32 s{S_BR}, 0')
    for srd, i in ((S_WQ, 3), (S_X, 0), (S_K, 1), (S_V, 2), (S_WO, 4)):
        e(f's_cselect_b64 {sr(srd,2)}, {sr(S_KARG+2*i,2)}, {sr(S_KARG+10+2*i,2)}')
    e(f's_mov_b64 {sr(S_OUT,2)}, {sr(S_KARG+20,2)}')
    e(f's_mov_b64 {sr(S_WS,2)}, {sr(S_KARG+24,2)}')
    e(f's_mov_b64 {sr(S_DBG,2)}, {sr(S_KARG+22,2)}')
    for srd in (S_WQ, S_X, S_K, S_V, S_WO, S_OUT, S_WS):
        e(f's_and_b32 s{srd+1}, s{srd+1}, 0xffff')
    lazy(e, o, 1)

def no_task_wo(e):
    e(f's_cmp_eq_u32 s{S_NT}, 15')
    e(f's_cselect_b32 s{S_WO+2}, 0, s{S_WO+2}')

RING = 32768
PF_TICKS = [0, 1, 6, 10, 15, 19, 22, 24, 25, 26, 27]
def reg_w(s): return (32768, 73728, 114688)[(s + 2) % 3]
def reg_x(s): return (49152, 90112, 0)[(s + 2) % 3]

SEQ = ['K0']
for k in range(32): SEQ += [f'K{k+1}', f'V{k}']
SEQ += [f'T{i}' for i in range(8)]
POS = {n: i for i, n in enumerate(SEQ)}
def slot(name): return (6 + POS[name]) % 8
def slot_addr(name): return RING + slot(name) * SLOT

def wo_dma(o, c, ldsbase_s, ldsoff, wob, vw, dyn=False):
    r = []
    if o.no_w and dyn: return ['s_nop 0']
    if dyn:
        r += [f's_mul_i32 s{S_T0}, s{S_WC}, {64*1280}', f's_add_u32 s{S_WC}, s{S_WC}, 1', f's_and_b32 s{S_WC}, s{S_WC}, 15']
    else:
        r += [f's_add_u32 s{S_T0}, s{S_RHO}, {c}', f's_and_b32 s{S_T0}, s{S_T0}, 15', f's_mul_i32 s{S_T0}, s{S_T0}, {64*1280}']
    r.append(f's_add_u32 s{S_T0}, s{S_T0}, {wob}')
    for g_ in range(2):
        r.append(f's_add_u32 m0, {ldsbase_s}, {ldsoff + 4096*g_}' if ldsbase_s else f's_mov_b32 m0, {ldsoff + 4096*g_}')
        r.append(f's_add_u32 s{S_T1}, s{S_T0}, {32*g_*1280}')
        for i in range(4):
            r.append(f'buffer_load_dwordx4 v{vw+i}, {sr(S_WO,4)}, s{S_T1} offen offset:{1024*i} {o.wo_flags} lds')
    return r

def wo_voffs(e, dst):
    L = V_LANE
    e(f'v_lshrrev_b32 v{V_T0}, 3, v{L}')
    e(f'v_mul_u32_u24 v{V_T0}, 1280, v{V_T0}')
    e(f'v_bfe_u32 v{V_T1}, v{L}, 4, 1')
    e(f'v_lshlrev_b32 v{V_T1}, 2, v{V_T1}')
    e(f'v_and_b32 v{V_T2}, 7, v{L}')
    e(f'v_xor_b32 v{V_T1}, v{V_T1}, v{V_T2}')
    e(f'v_lshl_add_u32 v{dst}, v{V_T1}, 4, v{V_T0}')
    for i in range(1, 4): e(f'v_add_u32 v{dst+i}, {(10240-1024)*i}, v{dst}')

def wo_lane_addr(e, dst):
    L = V_LANE
    e(f'v_lshrrev_b32 v{V_T0}, 5, v{L}')
    e(f'v_bfe_u32 v{V_T1}, v{L}, 2, 2')
    e(f'v_lshl_add_u32 v{dst}, v{V_T0}, 2, v{V_T1}')
    e(f'v_lshlrev_b32 v{dst}, 7, v{dst}')
    e(f'v_bfe_u32 v{V_T3}, v{L}, 3, 1')
    e(f'v_lshl_add_u32 v{dst}, v{V_T3}, 6, v{dst}')
    e(f'v_bfe_u32 v{V_T3}, v{L}, 4, 1')
    e(f'v_lshl_add_u32 v{dst}, v{V_T3}, 5, v{dst}')
    e(f'v_and_b32 v{V_T3}, 3, v{L}')
    e(f'v_lshl_add_u32 v{dst}, v{V_T3}, 3, v{dst}')

def wo_reads(dstf, a0, a1, off):
    r = []
    for s4 in range(4):
        for nt in range(2):
            for u in range(2):
                r.append(f'ds_read_b64_tr_b16 {dstf(8*s4+4*nt+2*u,2)}, v{(a0,a1)[nt]} offset:{off+(16*s4+8*u)*128}')
    return r

def poll(e, o, tag, load, test):
    e.many(test)
    e('s_cmp_eq_u64 vcc, -1')
    e(f's_cbranch_scc1 L_polled_{tag}')
    e(f's_mov_b32 s{S_CNT}, 0x400000')
    e.lab(f'L_poll_{tag}')
    e(f's_sleep {o.psleep}')
    e(load)
    e('s_waitcnt vmcnt(0)')
    e.many(test)
    e('s_cmp_eq_u64 vcc, -1')
    e(f's_cbranch_scc1 L_polled_{tag}')
    e(f's_sub_u32 s{S_CNT}, s{S_CNT}, 1')
    e(f's_cmp_lg_u32 s{S_CNT}, 0')
    e(f's_cbranch_scc1 L_poll_{tag}')
    e.lab(f'L_polled_{tag}')

def loader(e, o):
    L = V_LANE
    VK, VV, VW, VWO, VF, VP, VZ = 24, 16, 20, 12, 17, 18, 19
    VA, VB = 96, 100
    AF = [48, 56]; BF = [64, 80]; ACC = 128
    vm = Vm(e)
    e(f'v_lshrrev_b32 v{V_T0}, 4, v{L}')
    e(f'v_and_b32 v{V_T1}, 15, v{L}')
    e(f'v_lshlrev_b32 v{V_T3}, 2, v{V_T0}')
    e(f'v_xor_b32 v{V_T3}, v{V_T3}, v{V_T1}')
    e(f'v_lshlrev_b32 v{V_T2}, 8, v{V_T0}')
    e(f'v_lshl_add_u32 v{VV}, v{V_T3}, 4, v{V_T2}')
    for i in range(4):
        e(f'v_add_u32 v{V_T3}, {4*i}, v{V_T0}')
        e(f'v_xor_b32 v{V_T3}, v{V_T3}, v{V_T1}')
        e(f'v_lshl_add_u32 v{VK+i}, v{V_T3}, 4, v{V_T2}')
    e(f's_lshl_b32 s{S_KVB}, s{S_BL}, 5')
    e(f's_add_u32 s{S_KVB}, s{S_KVB}, s{S_H}')
    e(f's_lshl_b32 s{S_KVB}, s{S_KVB}, 18')
    e(f's_and_b32 s{S_KR}, s2, 7')
    e(f's_lshl_b32 s{S_KR}, s{S_KR}, 1')
    e(f's_lshr_b32 s{S_T0}, s2, 3')
    e(f's_add_u32 s{S_KR}, s{S_KR}, s{S_T0}')
    e(f's_and_b32 s{S_KR}, s{S_KR}, {15 if o.krot else 0}')
    e(f's_lshl_b32 s{S_KR}, s{S_KR}, 14')
    e(f'v_lshlrev_b32 v{VW}, 19, v{L}')
    e(f'v_lshlrev_b32 v{VW+1}, 25, v{L}')
    e(f'v_mov_b32 v{VZ}, 0')
    e(f'v_lshlrev_b32 v{VW+3}, 18, v{L}')
    e(f's_lshl_b32 s{S_T0}, s{S_BR}, 2')
    e(f's_add_u32 s{S_FL}, s{S_T0}, s{S_BL}')
    e(f's_lshl_b32 s{S_FL}, s{S_FL}, 5')
    e(f's_add_u32 s{S_FL}, s{S_FL}, s{S_H}')
    e(f's_lshl_b32 s{S_FL}, s{S_FL}, 7')
    e(f's_add_u32 s{S_FL}, s{S_FL}, {WS_FLAGS}')
    e(f's_mul_i32 s{S_T2}, s{S_BR}, 8')
    e(f's_add_u32 s{S_T2}, s{S_T2}, s{S_BL}')
    e(f's_mul_i32 s{S_T2}, s{S_T2}, 96')
    e(f's_add_u32 s{S_T2}, s{S_T2}, s{S_H}')
    e(f's_lshl_b32 s{S_T2}, s{S_T2}, 13')
    if o.pfc:
        e(f's_getpc_b64 {sr(S_ST,2)}')
        e.lab('L_pc')
        e(f's_sub_u32 s{S_ST}, s{S_ST}, L_pc-{NAME}_kernel')
        e(f's_subb_u32 s{S_ST+1}, s{S_ST+1}, 0')
        e(f's_lshr_b32 s{S_T0}, s2, 3')
        e(f's_lshl_b32 s{S_T0}, s{S_T0}, 11')
        e(f'v_lshlrev_b32 v{V_T0}, 7, v{L}')
        e(f'v_add_u32 v{V_T0}, s{S_T0}, v{V_T0}')
        e(f'v_min_u32 v{V_T0}, L_end-{NAME}_kernel-4, v{V_T0}')
        e('s_mov_b64 exec, 0xffff')
        e(f'global_load_dword v{VW+2}, v{V_T0}, {sr(S_ST,2)}')
        e('s_mov_b64 exec, -1')
        vm.add('pfc', 1)
    srds(e, o)
    if o.tlb:
        e('s_mov_b64 exec, 3')
        e(f'buffer_load_dword v{VW+2}, v{VW+1}, {sr(S_K,4)}, s{S_KVB} offen')
        e(f'buffer_load_dword v{VW+2}, v{VW+1}, {sr(S_V,4)}, s{S_KVB} offen')
        e('s_mov_b64 exec, 0x3ffffff')
        e(f'buffer_load_dword v{VW+2}, v{VW}, {sr(S_WO,4)}, 0 offen')
        e(f'buffer_load_dword v{VW+2}, v{VW}, {sr(S_OUT,4)}, 0 offen')
        e('s_mov_b64 exec, 0x7007')
        e(f'buffer_load_dword v{VW+2}, v{VW+3}, {sr(S_WS,4)}, s{S_T2} offen')
        e('s_mov_b64 exec, 1')
        e(f'buffer_load_dword v{VW+2}, v{VZ}, {sr(S_WS,4)}, s{S_FL} offen')
        e('s_mov_b64 exec, -1')
        vm.add('tlb', 6)
    def issue_l(name):
        kind, t = name[0], int(name[1:])
        r = []
        if kind == 'K' and t > 31: return r
        base = slot_addr(name)
        if kind in 'KV':
            off = (t // 16) * (4 * 32 * 262144)
            r.append(f's_add_u32 s{S_T0}, s{S_KR}, {(t % 16) * SLOT}')
            r.append(f's_and_b32 s{S_T0}, s{S_T0}, {16 * SLOT - 1}')
            r.append(f's_add_u32 s{S_T0}, s{S_T0}, s{S_KVB}')
            for g in range(4):
                r.append(f's_mov_b32 m0, {base + 4096*g}')
                r.append(f's_add_u32 s{S_T1}, s{S_T0}, {off + 4096*g}')
                for i in range(4):
                    v = VK + i if kind == 'K' else VV
                    r.append(f'buffer_load_dwordx4 v{v}, {sr(S_K if kind == "K" else S_V,4)}, s{S_T1} offen offset:{1024*i} {o.kv_flags} lds')
        else:
            rr = slot(name); j, hi = 1 + (rr >> 1), rr & 1
            if j == 4: return r
            for p in range(2):
                r.append(f's_add_u32 s{S_T2}, s{S_WOB}, {1024*1280*(2*hi+p)}')
                r += wo_dma(o, (12 if (o.w3 and hi and p) else 8) + j, None, base + 8192 * p, f's{S_T2}', VWO)
        return r
    def issue(name):
        r = issue_l(name)
        if r:
            vm.room(16); e.many(r); vm.add(name, 16)
    def own_w(c):
        vm.room(8)
        e(f's_add_u32 s{S_T2}, s{S_WOB}, {1024*1280*3}')
        e.many(wo_dma(o, c, None, 3 * 8192, f's{S_T2}', VWO))
        vm.add(f'w{c}', 8)
    def wait_upto(n):
        for m in range(n, -1, -1):
            if vm.has(SEQ[m]): vm.wait(SEQ[m]); return
    def flag(val):
        return [f's_add_u32 s{S_T0}, s{S_N}, {val}', f'v_mov_b32 v{V_T2}, s{S_T0}', 's_mov_b64 exec, 1',
                f'buffer_store_dword v{V_T2}, v{VZ}, {sr(S_WS,4)}, s{S_FL} offen sc1', 's_mov_b64 exec, -1']
    if o.pf_a:
        if o.pf_delay: e(f's_sleep {o.pf_delay}')
        e(f'v_lshrrev_b32 v{VW}, 1, v{L}')
        e(f'v_lshlrev_b32 v{VW}, 13, v{VW}')
        e(f'v_and_b32 v{VW+1}, 1, v{L}')
        e(f'v_lshl_add_u32 v{VW}, v{VW+1}, 7, v{VW}')
        e(f's_mul_i32 s{S_T0}, s{S_BL}, {160*8192}')
        e(f's_lshl_b32 s{S_T1}, s{S_H}, 8')
        e(f's_add_u32 s{S_T0}, s{S_T0}, s{S_T1}')
        for i in range(5):
            e(f's_add_u32 s{S_T1}, s{S_T0}, {32*i*8192}')
            e(f'buffer_load_dword v{VW+2}, v{VW}, {sr(S_WQ,4)}, s{S_T1} offen {o.w_flags}')
        e(f'v_lshlrev_b32 v{VW+1}, 7, v{L}')
        e(f's_and_b32 s{S_T0}, s{S_H}, 7')
        e(f's_mul_i32 s{S_T0}, s{S_T0}, 15360')
        e(f's_mul_i32 s{S_T1}, s{S_BL}, 122880')
        e(f's_add_u32 s{S_T0}, s{S_T0}, s{S_T1}')
        for i in range(4):
            e(f's_add_u32 s{S_T1}, s{S_T0}, {(i >> 1) * 491520 + (i & 1) * 8192}')
            e(f'buffer_load_dword v{VW+2}, v{VW+1}, {sr(S_X,4)}, s{S_T1} offen {o.w_flags}')
        vm.add('pfa', 9)
    if o.k_first: issue('K0'); issue('K1')
    e('s_cmp_lg_u32 s2, 0')
    e('s_cbranch_scc1 L_notag')
    e(f's_memrealtime {sr(S_ST,2)}')
    e('s_waitcnt lgkmcnt(0)')
    e(f's_mul_i32 s{S_ST+1}, s{S_ST+1}, 0x9e3779b1')
    e(f's_add_u32 s{S_ST}, s{S_ST}, s{S_ST+1}')
    e(f's_or_b32 s{S_ST}, s{S_ST}, 4')
    e(f's_and_b32 s{S_ST}, s{S_ST}, -4')
    e(f'v_mov_b32 v{V_T2}, s{S_ST}')
    e('s_mov_b64 exec, 1')
    e(f'global_store_dword v{VZ}, v{V_T2}, {sr(S_DBG,2)} sc1')
    e('s_mov_b64 exec, -1')
    e.lab('L_notag')
    e(f's_lshl_b32 s{S_T0}, s{S_BR}, 2')
    e(f's_add_u32 s{S_T0}, s{S_T0}, s{S_QB}')
    e(f's_lshl_b32 s{S_T0}, s{S_T0}, 12')
    e(f's_add_u32 s{S_T0}, s{S_T0}, {WS_FLAGS}')
    e(f'v_and_b32 v{VP}, 31, v{L}')
    e(f'v_lshlrev_b32 v{VP}, 7, v{VP}')
    e(f'v_add_u32 v{VP}, s{S_T0}, v{VP}')
    a_addr(e, VA, VB, None)
    wo_voffs(e, VWO)
    wo_lane_addr(e, V_WA)
    e(f'v_lshlrev_b32 v{VW}, 7, v{L}')
    e(f'v_add_u32 v{V_WA}, {3*8192}, v{V_WA}')
    e(f'v_xor_b32 v{V_WA+1}, 64, v{V_WA}')
    e(f'v_lshlrev_b32 v{V_OST}, 4, v{L}')
    e(f's_mov_b32 s{S_C}, {SCALE}')
    pf = []
    for n in range(2, 2 + o.pf_kv):
        kind, t = SEQ[n][0], int(SEQ[n][1:])
        for hh in range(2):
            pf.append([f's_add_u32 s{S_T1}, s{S_KVB}, {t*SLOT + hh*8192}',
                       f'buffer_load_dword v{VW+1}, v{VW}, {sr(S_K if kind == "K" else S_V,4)}, s{S_T1} offen {o.pf_flags}'])
    if o.pf_wo:
        e(f's_lshl_b32 s{S_T2}, s{S_H}, 2')
        e(f's_add_u32 s{S_T2}, s{S_T2}, s{S_BL}')
        e(f's_mul_i32 s{S_T2}, s{S_T2}, 40960')
        for i in range(5):
            pf.append([f's_add_u32 s{S_T1}, s{S_T2}, {i*8192}',
                       f'buffer_load_dword v{VW+1}, v{VW}, {sr(S_WO,4)}, s{S_T1} offen {o.pf_flags}'])
    def reads(s4, buf):
        r = []
        for t in (2, 3):
            for u in range(2):
                r.append(f'ds_read_b64_tr_b16 {vr(AF[buf]+4*(t-2)+2*u,2)}, v{VA+t} offset:{(16*s4+4*u)*256}')
        r += [f'ds_read_b128 {vr(BF[buf]+4*j,4)}, v{VB+s4} offset:{8192*j + 4096}' for j in range(3)]
        return r
    def mf(buf, first):
        r = []
        for j in range(3):
            for t in range(2):
                d = vr(ACC + 32 * j + 16 * t, 16)
                r.append(mfma(d, vr(AF[buf] + 4 * t, 4), vr(BF[buf] + 4 * j, 4), '0' if first else d))
        return r
    extra = {}
    def ride(step, name, ins, cnt):
        extra.setdefault(step, []).append((name, ins, cnt))
    if not o.k_first:
        for i, nm in enumerate(('K0', 'K1')):
            ins = issue_l(nm)
            for q in range(4): ride(4 * o.k_s0 + 4 * i + q, nm if q == 3 else None, ins[(3 + 6 * q if q else 0):3 + 6 * q + 6], 4)
    npf = 4 * (7 - o.pf_s0)
    for i, x in enumerate(pf): ride(4 * o.pf_s0 + (i * npf) // max(len(pf), 1), 'pf', x, 1)
    for i, nm in enumerate(('V0', 'K2')):
        ins = issue_l(nm)
        for q in range(2): ride(31 + 2 * i + q, nm if q == 1 else None, ins[(15 if q else 0):3 + 12 * q + 12], 8)
    ins = issue_l('V1')
    for q in range(0 if o.v1_late else 2): ride(35 + q, 'V1' if q == 1 else None, ins[(15 if q else 0):3 + 12 * q + 12], 8)
    e('s_barrier')
    e.many(reads(0, 0))
    e.skip = o.a_skip
    for s in range(10):
        for s4 in range(4):
            step = 4 * s + s4; buf = step & 1
            e('s_waitcnt lgkmcnt(0)')
            if step == 31: no_task_wo(e)
            if s4 == 3:
                if s == 9: vm.wait('K1')
                e('s_barrier')
            late = []
            for name, ins, cnt in extra.get(step, []):
                vm.room(cnt); late += ins; vm.add(name or 'part', cnt)
            if s4 == 2 and s < 9: late += a_step(s, VA)
            front = reads((s4 + 1) & 3, buf ^ 1) if step < 39 else []
            gaps(e, mf(buf, step == 0), front, late, per=max(o.aper - 1, 3), late_from=(2 if s4 == 2 else 1))
    e.skip = ''
    if o.v1_late: issue('V1')
    e('s_nop 7'); e('s_nop 3')
    for j in range(3):
        for i in range(16): e.many(conv(i, ACC + 32 * j, ACC + 32 * j))
        for f in range(4): e(f'ds_write_b128 v{V_OST}, {vr(ACC+32*j+4*f,4)} offset:{8192*j + 1024*f}')
    e('s_waitcnt lgkmcnt(0)')
    issue('K3')
    issued = POS['K3']
    e(f's_lshr_b32 s{S_WC}, s2, 3')
    e(f's_mul_i32 s{S_KX}, s{S_WC}, 13')
    e(f's_lshr_b32 s{S_KX}, s{S_KX}, 6')
    vm.wait('pfa')
    e(f'v_mul_u32_u24 v{VW+2}, 1280, v{L}')
    vm_pg = [None]
    ld_own = f'buffer_load_dword v23, v22, {sr(S_WS,4)}, 0 offen sc1'
    T3 = Tail(e, o); T3.vm = vm
    T3.free = [1000 + r for r in range(32, 64, 4)]
    e.T3 = T3
    def shadow_mm(c, first):
        m = []
        af = (lambda off, n: hold3(c, off, n)) if c < 12 else (lambda off, n: vr(32 + off, n))
        for s4 in range(4):
            for nt in range(2):
                d = ar(16 * nt, 16)
                m.append(mfma(d, af(8 * s4 + 4 * nt, 4), reg4(T3.where[(0, c)][s4]), '0' if (first and s4 == 0) else d))
        return m
    ld_cnt = f'global_load_dword v23, v{VZ}, {sr(S_DBG,2)} sc1'
    ld_fl = f'buffer_load_dword v23, v{VP}, {sr(S_WS,4)}, 0 offen sc1'
    for k in range(32):
        wait_upto(POS[f'V{k}'])
        vm.stamp(o, 32 + k) if o.tickst == 1 else None
        e('s_barrier')
        vm.stamp(o, 32 + k) if o.tickst == 2 else None
        if k == (18 if o.t15 else 19):
            vm.room(1); e.many(flag(1)); vm.add('f1', 1)
        if o.pf_w and k in PF_TICKS:
            vm.room(1)
            e(f's_add_u32 s{S_T0}, s{S_KX}, {6 * PF_TICKS.index(k)}')
            e(f's_and_b32 s{S_T2}, s{S_T0}, 3')
            e(f's_lshl_b32 s{S_T2}, s{S_T2}, 4')
            e(f's_lshr_b32 s{S_T0}, s{S_T0}, 2')
            e(f's_add_u32 s{S_T0}, s{S_T0}, s{S_RHO}')
            e(f's_and_b32 s{S_T0}, s{S_T0}, 15')
            e(f's_add_u32 s{S_T0}, s{S_T0}, s{S_T2}')
            e(f's_mul_i32 s{S_T0}, s{S_T0}, {64*1280}')
            e(f's_add_u32 s{S_T0}, s{S_T0}, s{S_WOB}')
            e(f'buffer_load_dword v{VW+1}, v{VW+2}, {sr(S_WO,4)}, s{S_T0} offen {o.wo_flags}')
            vm.add('pft', 1)
        wper = 2 if o.w3 else 3
        wev = (k - 2) // wper if (k >= 2 and (k - 2) % wper == 0 and k <= 26) else None
        if wev:
            vm.wait(f'w{wev-1}')
            e.many(wo_reads(lambda off, n: hold3(wev - 1, off, n), V_WA, V_WA + 1, 0))
        if o.w3 and k == o.w3k - 1:
            e(f'v_and_b32 v22, 7, v{L}')
            e(f'v_lshlrev_b32 v22, 7, v22')
            e(f'v_readfirstlane_b32 s{S_T0}, v{VP}')
            e(f's_add_u32 s{S_T0}, s{S_T0}, {24*128}')
            e(f'v_add_u32 v22, s{S_T0}, v22')
            vm.room(1); e(ld_own); vm.add('po', 1)
        if o.lb and k == o.tagk + 1:
            e(f's_and_b32 s{S_T0}, s2, 7')
            e(f's_lshl_b32 s{S_T0}, s{S_T0}, 7')
            e(f's_add_u32 s{S_T0}, s{S_T0}, {WS_PROG}')
            e(f'v_and_b32 v33, 31, v{L}')
            e(f'v_lshlrev_b32 v33, 2, v33')
            e(f'v_add_u32 v33, s{S_T0}, v33')
            e(f's_lshr_b32 s{S_T2}, s2, 3')
            e(f's_lshl_b32 s{S_T2}, s{S_T2}, 2')
            e(f's_add_u32 s{S_T0}, s{S_T0}, s{S_T2}')
            e(f'v_mov_b32 v32, s{S_T0}')
            e(f's_mov_b32 s{S_WC}, 0')
            e(f's_mov_b32 s{S_KX}, 0')
        if o.lb and o.tagk + 1 <= k <= 28:
            vm.room(1)
            e(f's_add_u32 s{S_T0}, s{S_N}, {4 * k}')
            e(f'v_mov_b32 v35, s{S_T0}')
            e('s_mov_b64 exec, 1')
            e(f'buffer_store_dword v35, v32, {sr(S_WS,4)}, 0 offen {o.lb_st}')
            e('s_mov_b64 exec, -1')
            vm.add('ps', 1)
        if o.lb and vm_pg[0] is not None and vm_pg[0] + 1 == k:
            vm.wait('pg')
            e(f'v_subrev_u32 v34, s{S_N}, v34')
            if o.lb_t:
                e(f'v_cmp_ge_u32 vcc, {4 * (k - 2)}, v34')
                e(f's_bcnt1_i32_b32 s{S_KX}, vcc_lo')
            e(f'v_subrev_u32 v34, {4 * k}, v34')
            e(f'v_cmp_gt_u32 vcc, 64, v34')
            e(f's_bcnt1_i32_b32 s{S_WC}, vcc_lo')
        if k in (o.tagk, 28):
            vm.room(1); e(ld_cnt if k == o.tagk else ld_fl); vm.add('pl', 1)
        if k == 30 and not o.w3:
            tail_setup(e, o)
            vm.room(4 * o.nearly); e.many(e.early); vm.add('early', 4 * o.nearly)
        sh = []
        if o.w3 and o.w3k < k <= o.w3k + 6: sh = [2 * (k - o.w3k - 1), 2 * (k - o.w3k - 1) + 1]
        if o.w3 and k == o.w3k + 7: sh = [12]
        first = POS[f'K{k+1}']
        lk = o.look if o.look_k0 <= k < o.look_k1 else o.look_lo
        if k >= 28: lk = 7 if first + o.look_lo >= POS['V31'] else lk
        lim = min(first + lk, first + 7, POS['T6'])
        if k == 31: lim = POS['T6']
        if o.tsched == 1 and k in (29, 30): lim = min(lim, POS['T1'] + (k - 29))
        if o.tsched == 2 and k < 31: lim = min(lim, POS['V31'])
        if o.tsched == 3 and k == 29: lim = min(lim, POS['V31'])
        done_sh = False
        def do_shadow(fill):
            if sh == [12]:
                vm.wait('w12')
                e.many(wo_reads(lambda off, n: vr(32 + off, n), V_WA, V_WA + 1, 0))
                e('s_waitcnt lgkmcnt(0)')
            elif wev: e('s_waitcnt lgkmcnt(0)')
            for c in sh: vm.wait(f'o0_{c}')
            m = []
            for c in sh: m += shadow_mm(c, c == 0)
            gaps(e, m, fill(), per=3)
            for c in sh: T3.free += T3.where[(0, c)]
            vm.room(8); e.many(T3.pump(2))
        while issued < lim:
            issued += 1
            if o.lb and o.tagk + 1 <= k < 27 and issued == lim - 1 + o.lb_pos:
                vm.room(17)
                e(f'buffer_load_dword v34, v33, {sr(S_WS,4)}, 0 offen {o.lb_ld}')
                vm.add('pg', 1); vm_pg[0] = k
            if sh and issued == lim and issue_l(SEQ[issued]):
                def fill():
                    vm.room(16); vm.add(SEQ[issued], 16)
                    return issue_l(SEQ[issued])
                do_shadow(fill); done_sh = True
            elif o.gran < 16 and SEQ[issued][0] in 'KV' and k < o.thr_end and issue_l(SEQ[issued]):
                ins = issue_l(SEQ[issued]); ng = o.gran // 4
                for q in range(0, 4, ng):
                    vm.room(o.gran)
                    e.many(ins[(3 + 6 * q if q else 0):3 + 6 * (q + ng)])
                    vm.add(SEQ[issued] if q + ng == 4 else 'part', o.gran)
                    while vm.out() > o.thr: vm.wait(vm.q[0][0])
            else:
                issue(SEQ[issued])
            if o.lb and o.tagk + 2 <= k < o.thr_end:
                while vm.out() > o.lb_hi: vm.wait(vm.q[0][0])
                e(f's_cmp_ge_u32 s{S_WC}, {o.lb}')
                e(f's_cbranch_scc1 L_deep{issued}')
                e(f's_waitcnt vmcnt({o.thr})')
                if o.lb_t:
                    e(f's_cmp_lt_u32 s{S_KX}, {o.lb_t}')
                    e(f's_cbranch_scc1 L_deep{issued}')
                    e(f's_waitcnt vmcnt({o.lb_lo})')
                e.lab(f'L_deep{issued}')
            else:
                while vm.out() > o.thr + (8 if done_sh else 0) and k < o.thr_end: vm.wait(vm.q[0][0])
        if sh and not done_sh: do_shadow(lambda: [])
        if o.w3 and k == o.w3k:
            vm.wait('po')
            e(f's_add_u32 s{S_T3}, s{S_N}, 1')
            poll(e, o, 'r1o', ld_own, ['v_and_b32 v23, -3, v23', f'v_cmp_eq_u32 vcc, s{S_T3}, v23'])
            tail_setup(e, o)
            T3.todo = [(0, c) for c in range(16)]
            vm.room(8); e.many(T3.pump(2))
        if k == o.tagk:
            vm.wait('pl')
            poll(e, o, 'tag', ld_cnt, ['v_cmp_ne_u32 vcc, 0, v23'])
            e(f'v_readfirstlane_b32 s{S_N}, v23')
        if k == 28:
            vm.wait('pl')
            e(f's_add_u32 s{S_T3}, s{S_N}, 1')
            poll(e, o, 'r1', ld_fl, ['v_and_b32 v23, -3, v23', f'v_cmp_eq_u32 vcc, s{S_T3}, v23'])
        if wev is not None:
            e('s_waitcnt lgkmcnt(0)')
            own_w(wev)
    e('s_barrier')
    e.many(flag(3))
    e('s_waitcnt vmcnt(1)')
    vm.q = []

def a_addr(e, VA, VB, xl):
    L = V_LANE
    e(f'v_lshrrev_b32 v{V_T0}, 5, v{L}')
    e(f'v_bfe_u32 v{V_T1}, v{L}, 2, 2')
    e(f'v_lshl_add_u32 v{V_T2}, v{V_T0}, 3, v{V_T1}')
    e(f'v_lshlrev_b32 v{V_T2}, 8, v{V_T2}')
    e(f'v_lshl_add_u32 v{V_T2}, v{V_T1}, 6, v{V_T2}')
    e(f'v_bfe_u32 v{V_T3}, v{L}, 4, 1')
    e(f'v_lshl_add_u32 v{V_T2}, v{V_T3}, 5, v{V_T2}')
    e(f'v_and_b32 v{V_T3}, 1, v{L}')
    e(f'v_lshl_add_u32 v{V_T2}, v{V_T3}, 4, v{V_T2}')
    e(f'v_bfe_u32 v{V_T3}, v{L}, 1, 1')
    e(f'v_lshl_add_u32 v{V_T2}, v{V_T3}, 3, v{V_T2}')
    for t in range(4):
        e(f'v_xor_b32 v{VA+t}, {64*t}, v{V_T2}')
        e(f'v_add_u32 v{VA+t}, {reg_w(0)}, v{VA+t}')
    e(f'v_and_b32 v{V_T1}, 31, v{L}')
    e(f'v_bfe_u32 v{V_T2}, v{L}, 1, 3')
    e(f'v_xor_b32 v{V_T2}, v{V_T2}, v{V_T0}')
    e(f'v_lshlrev_b32 v{V_T2}, 4, v{V_T2}')
    e(f'v_lshl_add_u32 v{V_T2}, v{V_T1}, 7, v{V_T2}')
    if xl is not None:
        e(f's_add_u32 s{S_T0}, s{xl}, {reg_x(0)}')
    for s4 in range(4):
        e(f'v_xor_b32 v{VB+s4}, {32*s4}, v{V_T2}')
        e(f'v_add_u32 v{VB+s4}, s{S_T0}, v{VB+s4}' if xl is not None else f'v_add_u32 v{VB+s4}, {reg_x(0)}, v{VB+s4}')

def a_step(s, VA):
    r = []
    for i in range(8):
        d = reg_w(s + 1) - reg_w(s) if i < 4 else reg_x(s + 1) - reg_x(s)
        r.append(f'v_add_u32 v{VA+i}, {d}, v{VA+i}' if d > 0 else f'v_subrev_u32 v{VA+i}, {-d}, v{VA+i}')
    return r

SCALE = hex(struct.unpack("<I", struct.pack("<f", math.log2(math.e) / math.sqrt(128.0)))[0])
def conv(i, src, dst):
    a = src + 2 * i
    return [f'v_mul_f32 v{a}, s{S_C}, v{a}', f'v_mul_f32 v{a+1}, s{S_C}, v{a+1}', f'v_cvt_pk_bf16_f32 v{dst+i}, v{a}, v{a+1}']

def phase_a(e, o):
    L = V_LANE
    VA, VB = V_Q, V_Q + 4
    AF = [V_SA, V_SB]; BF = [V_P, V_TMP]; ACC = [128, 192]
    e(f'v_lshrrev_b32 v{V_T0}, 3, v{L}')
    e(f'v_mul_u32_u24 v{V_T0}, 1280, v{V_T0}')
    e(f'v_lshrrev_b32 v{V_T1}, 4, v{L}')
    e(f'v_and_b32 v{V_T2}, 7, v{L}')
    e(f'v_xor_b32 v{V_T1}, v{V_T1}, v{V_T2}')
    for i in range(4):
        e(f'v_xor_b32 v{V_T2}, {4*(i&1)}, v{V_T1}')
        e(f'v_lshl_add_u32 v{V_DMA+i}, v{V_T2}, 4, v{V_T0}')
        if i: e(f'v_add_u32 v{V_DMA+i}, {(10240-1024)*i}, v{V_DMA+i}')
    e(f's_mul_i32 s{S_XB}, s{S_BL}, 3')
    e(f's_add_u32 s{S_XB}, s{S_XB}, s{S_WAVE}')
    e(f's_mul_i32 s{S_OB}, s{S_BR}, 24')
    e(f's_add_u32 s{S_OB}, s{S_OB}, s{S_XB}')
    e(f's_mul_i32 s{S_XB}, s{S_XB}, 40960')
    def xload(s, it):
        r = []
        if it == 0:
            r.append(f's_lshl_b32 s{S_T0}, s{S_KX}, 7')
            r.append(f's_add_u32 s{S_T0}, s{S_T0}, s{S_XB}')
        r.append(f's_add_u32 m0, s{S_XL}, {reg_x(s) + 4096*it}')
        r.append(f's_add_u32 s{S_T1}, s{S_T0}, {491520*it}')
        for i in range(4):
            r.append(f'buffer_load_dwordx4 v{V_DMA+i}, {sr(S_X,4)}, s{S_T1} offen offset:{1024*i} {o.w_flags} lds')
        if it == 1:
            r.append(f's_add_u32 s{S_KX}, s{S_KX}, 1')
            r.append(f's_cmp_eq_u32 s{S_KX}, 10')
            r.append(f's_cselect_b32 s{S_KX}, 0, s{S_KX}')
        return r
    VWQ = V_Q + 8
    e(f'v_lshrrev_b32 v{V_T0}, 4, v{L}')
    e(f'v_and_b32 v{V_T1}, 15, v{L}')
    e(f'v_lshlrev_b32 v{V_T3}, 2, v{V_T0}')
    e(f'v_xor_b32 v{V_T3}, v{V_T3}, v{V_T1}')
    e(f'v_lshlrev_b32 v{V_T2}, 13, v{V_T0}')
    e(f'v_lshl_add_u32 v{VWQ}, v{V_T3}, 4, v{V_T2}')
    for i in range(1, 4): e(f'v_add_u32 v{VWQ+i}, {(32768-1024)*i}, v{VWQ}')
    e(f's_mul_i32 s{S_KVB}, s{S_WAVE}, {5*32768}')
    e(f's_lshl_b32 s{S_T0}, s{S_H}, 8')
    e(f's_add_u32 s{S_KVB}, s{S_KVB}, s{S_T0}')
    e(f's_mul_i32 s{S_FL}, s{S_WAVE}, {5*1024}')
    def wqload(s):
        r = [f's_lshl_b32 s{S_T2}, s{S_KX}, 19', f's_add_u32 s{S_T2}, s{S_T2}, s{S_KVB}']
        for t in range(6):
            if t % 4 == 0:
                r.append(f's_add_u32 m0, s{S_FL}, {reg_w(s) + 1024*t}')
                r.append(f's_add_u32 s{S_T1}, s{S_T2}, {32768*t}')
            r.append(f'buffer_load_dwordx4 v{VWQ+(t&3)}, {sr(S_WQ,4)}, s{S_T1} offen offset:{1024*(t&3)} {o.w_flags} lds')
        return r
    srds(e, o)
    e.many(wqload(0)); e.many(xload(0, 0)); e.many(xload(0, 1))
    lazy(e, o, 2)
    no_task_wo(e)
    e(f's_lshl_b32 s{S_OB}, s{S_OB}, 5')
    e(f's_add_u32 s{S_OB}, s{S_OB}, s{S_H}')
    e(f's_lshl_b32 s{S_OB}, s{S_OB}, 13')
    a_addr(e, VA, VB, S_XL)
    e(f'v_and_b32 v{V_T2}, 15, v{L}')
    e(f'v_xor_b32 v{V_T2}, v{V_T2}, v{V_T0}')
    e(f'v_lshlrev_b32 v{V_T2}, 4, v{V_T2}')
    e(f'v_lshl_add_u32 v{V_T2}, v{V_T1}, 8, v{V_T2}')
    for s in range(8):
        e(f'v_xor_b32 v{V_KA+s}, {32*s}, v{V_T2}')
        e(f'v_add_u32 v{V_KA+s}, {slot_addr("K0")}, v{V_KA+s}')
    e(f'v_bfe_u32 v{V_T1}, v{L}, 2, 2')
    e(f'v_lshl_add_u32 v{V_T2}, v{V_T0}, 2, v{V_T1}')
    e(f'v_lshlrev_b32 v{V_T2}, 8, v{V_T2}')
    e(f'v_lshl_add_u32 v{V_T2}, v{V_T1}, 6, v{V_T2}')
    e(f'v_bfe_u32 v{V_T3}, v{L}, 4, 1')
    e(f'v_lshl_add_u32 v{V_T2}, v{V_T3}, 5, v{V_T2}')
    e(f'v_and_b32 v{V_T3}, 3, v{L}')
    e(f'v_lshl_add_u32 v{V_T2}, v{V_T3}, 3, v{V_T2}')
    e(f'v_add_u32 v{V_T2}, {RING}, v{V_T2}')
    for t in range(4): e(f'v_xor_b32 v{V_VA+t}, {64*t}, v{V_T2}')
    e(f'v_lshlrev_b32 v{V_OST}, 4, v{L}')
    e(f'v_add_u32 v{V_OST+3}, s{S_XL}, v{V_OST}')
    wo_lane_addr(e, V_WA)
    e(f'v_add_u32 v{V_WA}, s{S_XL}, v{V_WA}')
    e(f'v_xor_b32 v{V_WA+1}, 64, v{V_WA}')
    e(f's_mul_i32 s{S_WQB}, s{S_WAVE}, {1024*1280}')
    e(f's_add_u32 s{S_WQB}, s{S_WQB}, s{S_WOB}')
    e(f's_mov_b32 s{S_WC}, s{S_RHO}')
    e(f's_add_u32 s{S_WN}, s{S_WAVE}, 4')
    e(f's_mov_b32 s{S_EV}, 0')
    for i in range(64): e(f'v_accvgpr_write_b32 a{i}, 0')
    for i in range(16): e(f'v_mov_b32 v{V_NEGM+i}, 0')
    for i in range(4): e(f'v_mov_b32 v{V_L+i}, 0')
    e(f's_mov_b32 s{S_C}, {SCALE}')
    e(f's_mov_b32 s{S_THR}, 0xff800000')
    e(f's_mov_b32 s{S_FLOOR}, 0xff800000')
    e(f's_mov_b32 s{S_TICK}, 0')
    e(f's_mov_b32 s{S_KOFF}, {7*SLOT}')
    e(f's_mov_b32 s{S_VOFF}, 0')
    nst = 0
    lazy(e, o, 5)
    e.many(wqload(1)); e.many(xload(1, 0)); e.many(xload(1, 1))
    lazy(e, o, 6)
    def reads(s4, buf):
        r = [f'ds_read_b128 {vr(BF[buf]+4*it,4)}, v{VB+s4} offset:{4096*it}' for it in range(2)]
        for t in range(4):
            for u in range(2):
                r.append(f'ds_read_b64_tr_b16 {vr(AF[buf]+4*t+2*u,2)}, v{VA+t} offset:{(16*s4+4*u)*256}')
        return r
    def mf(buf, first):
        r = []
        for t in range(4):
            for it in range(2):
                if it == 1 and t >= 2: continue
                d = vr(ACC[it] + 16 * t, 16)
                r.append(mfma(d, vr(AF[buf] + 4 * t, 4), vr(BF[buf] + 4 * it, 4), '0' if first else d))
        return r
    e(f's_waitcnt vmcnt({14 + nst})')
    lazy(e, o, 7)
    e('s_barrier')
    lazy(e, o, 8)
    dmark(e, o, 0)
    e.many(reads(0, 0))
    e.skip = o.a_skip
    for s in range(10):
        for s4 in range(4):
            step = 4 * s + s4; buf = step & 1
            if step in (8, 16, 24, 32, 39): lazy(e, o, 9 + (8, 16, 24, 32, 39).index(step))
            if o.stamps and step in (8, 32): e(f's_memtime s[{LAZY[3 if step == 8 else 4]}:{LAZY[3 if step == 8 else 4]+1}]')
            m = mf(buf, step == 0)
            late = []
            e('s_waitcnt lgkmcnt(0)')
            if s4 == 3:
                if s < 9:
                    e(f's_waitcnt vmcnt({(14 if s + 2 <= 9 else 0) + (nst if s < 2 else 0)})')
                e('s_barrier')
                if s + 3 <= 9: late = wqload(s + 3)
            if s4 == 0 and s + 2 <= 9: late = (wqload(2) if s == 0 else []) + xload(s + 2, 0)
            if s4 == 1 and s + 2 <= 9: late = xload(s + 2, 1)
            if s4 == 2 and s < 9: late = a_step(s, VA)
            front = reads((s4 + 1) & 3, buf ^ 1) if step < 39 else []
            gaps(e, m, front, late, per=o.aper, late_from=(3 if o.aper == 3 and s4 == 2 else 2 if o.aper >= 4 else 1))
    e.skip = ''
    wo_voffs(e, V_DMA)
    e('s_nop 4')
    for i in range(16): e.many(conv(i, ACC[0], V_Q))
    e.many(k_reads(0))
    for i in range(16, 32): e.many(conv(i, ACC[0], V_Q))

def k_reads(half):
    return [f'ds_read_b128 {vr(V_KF+4*s,4)}, v{V_KA+s} offset:{8192*half}' for s in range(8)]
def v_reads(half):
    r = []
    for jj in range(2):
        for t in range(4):
            for u in range(2):
                r.append(f'ds_read_b64_tr_b16 {vr(V_VF+16*jj+4*t+2*u,2)}, v{V_VA+t} offset:{(32*half+16*jj+8*u)*256}')
    return r
def qk(S):
    return [mfma(vr(S, 16), vr(V_KF + 4 * s, 4), vr(V_Q + 4 * s, 4), vr(V_NEGM, 16) if s == 0 else vr(S, 16)) for s in range(8)]
def pv():
    return [mfma(ar(16 * t, 16), vr(V_VF + 16 * jj + 4 * t, 4), vr(V_P + 4 * jj, 4), ar(16 * t, 16)) for jj in range(2) for t in range(4)]
def maxes(S):
    r = [f'v_max3_f32 v{V_MX}, v{S}, v{S+1}, v{S+2}', f'v_max3_f32 v{V_D}, v{S+3}, v{S+4}, v{S+5}']
    r += [f'v_max3_f32 v{V_MX}, v{V_MX}, v{S+6}, v{S+7}', f'v_max3_f32 v{V_D}, v{V_D}, v{S+8}, v{S+9}']
    r += [f'v_max3_f32 v{V_MX}, v{V_MX}, v{S+10}, v{S+11}', f'v_max3_f32 v{V_D}, v{V_D}, v{S+12}, v{S+13}']
    r += [f'v_max3_f32 v{V_MX}, v{V_MX}, v{S+14}, v{S+15}', f'v_max_f32 v{V_MX}, v{V_MX}, v{V_D}']
    r += [f'v_cmp_lt_f32 vcc, s{S_THR}, v{V_MX}']
    return r

def half_tick(e, Snew, Sold, vhalf, khalf, extra_v=(), extra_k=(), extra_8=()):
    ex = lambda i: f'v_exp_f32 v{Sold+i}, v{Sold+i}'
    cv = lambda i: f'v_cvt_pk_bf16_f32 v{V_P+i}, v{Sold+2*i}, v{Sold+2*i+1}'
    ad = lambda i: f'v_add_f32 v{V_L+(i&3)}, v{V_L+(i&3)}, v{Sold+i}'
    m = qk(Snew) + pv()
    m[8] = ['s_waitcnt lgkmcnt(0)', m[8]]
    fill = v_reads(vhalf) + [ex(i) for i in range(8)] + list(extra_v) + [cv(i) for i in range(4)] + [ex(i) for i in range(8, 12)]
    fill += [('M', 8), ('A', 8)] + (k_reads(khalf) if khalf is not None else []) + [ex(i) for i in range(12, 16)] + [ad(0)]
    fill += [cv(i) for i in range(4, 8)] + [ad(1), ad(2)]
    rest = [ad(i) for i in range(3, 16)]
    x8 = list(extra_8)
    fill += [('M', 12)]
    while rest or x8:
        if rest: fill.append(rest.pop(0))
        fill += x8[:3]; x8 = x8[3:]
    fill += list(extra_k) + maxes(Snew)
    e('s_waitcnt lgkmcnt(0)')
    interleave(e, m, fill)

def last_half(e, Sold, extra=()):
    ex = lambda i: f'v_exp_f32 v{Sold+i}, v{Sold+i}'
    cv = lambda i: f'v_cvt_pk_bf16_f32 v{V_P+i}, v{Sold+2*i}, v{Sold+2*i+1}'
    ad = lambda i: f'v_add_f32 v{V_L+(i&3)}, v{V_L+(i&3)}, v{Sold+i}'
    e.many(v_reads(1))
    e.many(extra)
    e.many([ex(i) for i in range(8)] + [cv(i) for i in range(4)] + [ex(8), ex(9)])
    e('s_waitcnt lgkmcnt(0)')
    fill = [ex(i) for i in range(10, 16)] + [ad(0)] + [cv(i) for i in range(4, 8)] + [ad(1), ad(2), ('M', 4)] + [ad(i) for i in range(3, 16)]
    interleave(e, pv(), fill)

def rare(e, S, back):
    e('s_nop 7')
    e(f'v_mov_b32 v{V_T0}, v{V_MX}')
    e('s_nop 1')
    e(f'v_permlane32_swap_b32 v{V_T0}, v{V_MX}')
    e('s_nop 1')
    e(f'v_max_f32 v{V_D}, v{V_T0}, v{V_MX}')
    e(f'v_max_f32 v{V_D}, s{S_FLOOR}, v{V_D}')
    for i in range(16): e(f'v_sub_f32 v{S+i}, v{S+i}, v{V_D}')
    for i in range(16): e(f'v_sub_f32 v{V_NEGM+i}, v{V_NEGM+i}, v{V_D}')
    e(f's_cmp_lg_u32 s{S_FLOOR}, 0')
    e(f's_mov_b32 s{S_THR}, 0x41000000')
    e(f's_mov_b32 s{S_FLOOR}, 0')
    e(f's_cbranch_scc1 {back}')
    e(f'v_sub_f32 v{V_T0}, 0, v{V_D}')
    e(f'v_exp_f32 v{V_T0}, v{V_T0}')
    e('s_nop 0')
    for i in range(4): e(f'v_mul_f32 v{V_L+i}, v{V_L+i}, v{V_T0}')
    for i in range(0, 64, 4):
        for j in range(4): e(f'v_accvgpr_read_b32 v{V_TMP+j}, a{i+j}')
        for j in range(4): e(f'v_mul_f32 v{V_TMP+j}, v{V_TMP+j}, v{V_T0}')
        for j in range(4): e(f'v_accvgpr_write_b32 a{i+j}, v{V_TMP+j}')
    e('s_nop 1')
    e(f's_branch {back}')

def epilogue(e, o):
    e(f'v_add_f32 v{V_L}, v{V_L}, v{V_L+1}')
    e(f'v_add_f32 v{V_L+2}, v{V_L+2}, v{V_L+3}')
    e(f'v_add_f32 v{V_L}, v{V_L}, v{V_L+2}')
    e(f'v_mov_b32 v{V_T0}, v{V_L}')
    e('s_nop 1')
    e(f'v_permlane32_swap_b32 v{V_T0}, v{V_L}')
    e('s_nop 1')
    e(f'v_add_f32 v{V_L}, v{V_L}, v{V_T0}')
    e(f'v_rcp_f32 v{V_T0}, v{V_L}')
    e('s_nop 4')
    for f in range(8):
        t = V_VF + 8 * (f & 3)
        for j in range(8): e(f'v_accvgpr_read_b32 v{t+j}, a{8*f+j}')
        if o.pk:
            for j in range(0, 8, 2): e(f'v_pk_mul_f32 {vr(t+j,2)}, {vr(t+j,2)}, {vr(V_T0,2)} op_sel_hi:[1,0]')
        else:
            for j in range(8): e(f'v_mul_f32 v{t+j}, v{t+j}, v{V_T0}')
        d = V_TMP + 4 * (f & 1)
        for j in range(4): e(f'v_cvt_pk_bf16_f32 v{d+j}, v{t+2*j}, v{t+2*j+1}')
        if f == 4: e(f's_add_u32 s{S_OB}, s{S_OB}, 4096')
        e(f'buffer_store_dwordx4 {vr(d,4)}, v{V_OST}, {sr(S_WS,4)}, s{S_OB} offen offset:{1024*(f&3)} {o.ost_flags}')

def w_snippets(e, o, ret):
    e('s_waitcnt vmcnt(0)')
    def tree(lo, n):
        if n == 1:
            if lo == 0:
                for f in range(4): e(f'ds_read_b128 {vr(224+4*f,4)}, v{V_OST+3} offset:{1024*f}')
                if o.t15:
                    for i in range(16): e.many(conv(i, V_Q2, V_Q2))
            else:
                e.many(wo_reads(lambda off, nn: hold(lo - 1, off, nn), V_WA, V_WA + 1, 0))
            e('s_branch L_sn_done')
            return
        h = (n + 1) // 2
        e(f's_cmp_ge_u32 s{S_EV}, {lo+h}')
        e(f's_cbranch_scc1 L_sn_{lo+h}')
        tree(lo, h)
        e.lab(f'L_sn_{lo+h}')
        tree(lo + h, n - h)
    tree(0, 9)
    e.lab('L_sn_done')
    e(f's_add_u32 s{S_EV}, s{S_EV}, 1')
    e(f's_cmp_eq_u32 s{S_EV}, 9')
    e(f's_cselect_b32 s{S_WN}, 64, 3')
    if o.t15:
        e(f's_cmp_eq_u32 s{S_TICK}, 13')
        e(f's_cselect_b32 s{S_WN}, 4, s{S_WN}')
    e('s_waitcnt lgkmcnt(0)')
    e.many(wo_dma(o, 0, f's{S_XL}', 0, f's{S_WQB}', V_DMA, dyn=True))
    e(f's_branch {ret}')

def phase_b(e, o):
    lazy(e, o, 14)
    dmark(e, o, 1)
    lazy_dump(e, o, range(15))
    stamp(e, o, 1)
    e('s_waitcnt lgkmcnt(0)')
    e.many(qk(V_SA))
    e.many(k_reads(1))
    for s in range(8): e(f'v_add_u32 v{V_KA+s}, {SLOT}, v{V_KA+s}')
    e('s_nop 3')
    e.many(maxes(V_SA))
    e('s_branch L_rare_a')
    def adv(soff, tmp, base, n):
        r = [f's_add_u32 s{tmp}, s{soff}, {2*SLOT}', f's_and_b32 s{tmp}, s{tmp}, {8*SLOT-1}',
             f's_sub_u32 s{S_T3}, s{tmp}, s{soff}', f's_mov_b32 s{soff}, s{tmp}']
        r += [f'v_add_u32 v{base+i}, s{S_T3}, v{base+i}' for i in range(n)]
        return r
    e.lab('L_tick')
    e('s_waitcnt lgkmcnt(0)')
    e('s_barrier')
    e(f's_cmp_eq_u32 s{S_TICK}, 31')
    e('s_cbranch_scc1 L_last')
    half_tick(e, V_SB, V_SA, 0, 0)
    e('s_cbranch_vccnz L_rare_b')
    e.lab('L_back_b')
    e(f's_cmp_eq_u32 s{S_TICK}, 15')
    e('s_cbranch_scc1 L_switch')
    e.lab('L_back_sw')
    half_tick(e, V_SA, V_SB, 1, 1, extra_v=adv(S_VOFF, S_T0, V_VA, 4), extra_k=adv(S_KOFF, S_T1, V_KA, 8))
    e(f's_add_u32 s{S_TICK}, s{S_TICK}, 1')
    e(f's_sub_u32 s{S_WN}, s{S_WN}, 1')
    e(f's_cmp_eq_u32 s{S_WN}, 0')
    e('s_cbranch_scc1 L_snip')
    e.lab('L_snip_ret')
    e(f's_cmp_eq_u32 s{S_TICK}, 16')
    e('s_cbranch_scc1 L_epi1')
    e('s_cbranch_vccz L_tick')
    e.lab('L_rare_a')
    rare(e, V_SA, 'L_tick')
    e.lab('L_snip')
    w_snippets(e, o, 'L_snip_ret')
    e.lab('L_rare_b')
    rare(e, V_SB, 'L_back_b')
    e.lab('L_switch')
    for i in range(16): e(f'v_mov_b32 v{V_Q+16+i}, v{224+i}')
    for i in range(16): e.many([f'v_mov_b32 v{V_Q+i}, v{V_Q2+i}'] if o.t15 else conv(i, V_Q2, V_Q))
    for i in range(16): e(f'v_mov_b32 v{V_NEGM+i}, 0')
    e('s_nop 1')
    e('s_branch L_back_sw')
    e.lab('L_epi1')
    epilogue(e, o)
    e(f's_add_u32 s{S_OB}, s{S_OB}, {RND - 4096}')
    if o.t15:
        for t in range(4): e(mfma(ar(16 * t, 16), vr(V_NEGM, 4), vr(V_NEGM, 4), '0'))
    else:
        for i in range(64): e(f'v_accvgpr_write_b32 a{i}, 0')
    for i in range(4): e(f'v_mov_b32 v{V_L+i}, 0')
    e(f's_mov_b32 s{S_FLOOR}, 0xff800000')
    stamp(e, o, 2)
    dmark(e, o, 2)
    e('s_branch L_rare_a')
    e.lab('L_rare_l')
    rare(e, V_SB, 'L_back_l')
    e.lab('L_last')
    T = tail_pre(e, o)
    e.early = T.pump(min(o.nearly, 4))
    half_tick(e, V_SB, V_SA, 0, None, extra_8=e.early)
    e('s_cbranch_vccnz L_rare_l')
    e.lab('L_back_l')
    x = T.pump(max(o.nearly - 4, 0))
    e.early += x
    last_half(e, V_SB, x)
    epilogue(e, o)
    return T

def tail_setup(e, o):
    e(f's_mul_i32 s{S_O1}, s{S_BR}, 24')
    e(f's_add_u32 s{S_O1}, s{S_O1}, s{S_QT}')
    e(f's_lshl_b32 s{S_O1}, s{S_O1}, 2')
    e(f's_add_u32 s{S_O1}, s{S_O1}, s{S_WAVE}')
    e(f's_lshl_b32 s{S_O1}, s{S_O1}, 16')

POOL = list(range(96, 160, 4)) + [32, 36, 40, 44, 16, 20, 24, 80, 84] + list(range(160, 192, 4)) + [88, 92]
ORDER1 = [0, 1, 2, 8, 3, 9, 4, 10, 5, 11, 6, 12, 7]
ORDER2 = [8, 0, 9, 1, 10, 2, 11, 3, 12, 4, 13, 14, 15, 5, 6, 7]

class Tail:
    def __init__(self, e, o):
        self.e, self.o = e, o
        self.vm = Vm(e)
        self.free = list(POOL)
        self.where = {}
        self.todo = []
    def oload(self, rnd, c):
        e = self.e
        regs = [self.free.pop(0) for _ in range(4)]
        self.where[(rnd, c)] = regs
        r = [f's_add_u32 s{S_T1}, s{S_RHO}, {c}', f's_and_b32 s{S_T1}, s{S_T1}, 15', f's_lshl_b32 s{S_T1}, s{S_T1}, 12',
             f's_add_u32 s{S_T1}, s{S_T1}, s{S_O1}']
        if rnd and not self.o.t_o1: r.append(f's_add_u32 s{S_T1}, s{S_T1}, {RND}')
        if rnd and self.o.t_noo: return []
        for s4 in range(4):
            r.append(f'buffer_load_dwordx4 {reg4(regs[s4])}, v{V_OST}, {sr(S_WS,4)}, s{S_T1} offen offset:{1024*s4} {self.o.old_flags}')
        self.vm.add(f'o{rnd}_{c}', 4)
        return r
    def pump(self, lim=99):
        r = []
        while self.todo and len(self.free) >= 4 and self.vm.out() + 4 <= 61 and lim > 0:
            lim -= 1
            r += self.oload(*self.todo.pop(0))
        return r

def tail_pre(e, o):
    T = Tail(e, o)
    tail_setup(e, o)
    T.todo = [(0, c) for c in ORDER1]
    return T

def tail(e, o, T, w3=False):
    L = V_LANE
    vm = T.vm
    sfx = '3' if w3 else ''
    RA = 6
    TEMP = 48
    e(f's_cmp_eq_u32 s{S_NT}, 15')
    e('s_cbranch_scc1 L_exit')
    e(f's_mul_i32 s{S_WQB}, s{S_WAVE}, {1024*1280}')
    e(f's_add_u32 s{S_WQB}, s{S_WQB}, s{S_WOB}')
    if w3:
        T.free += [12, 16, 20, 24]
        e('s_barrier')
    e.many(T.pump())
    if not w3:
        vm.room(8)
        e.many(wo_dma(o, 12, f's{S_XL}', 4 * 32768, f's{S_WQB}', V_DMA))
        vm.add('late', 8)
    for b in range(3):
        e(f'v_add_u32 v{RA+2*b}, {65536*b}, v{V_WA}')
        e(f'v_add_u32 v{RA+2*b+1}, {65536*b}, v{V_WA+1}')
    e(f's_lshl_b32 s{S_T0}, s{S_BR}, 2')
    e(f's_add_u32 s{S_T0}, s{S_T0}, s{S_QB}')
    e(f's_lshl_b32 s{S_T0}, s{S_T0}, 2')
    e(f's_add_u32 s{S_T0}, s{S_T0}, s{S_WAVE}')
    e(f's_lshl_b32 s{S_T0}, s{S_T0}, 10')
    e(f's_add_u32 s{S_T0}, s{S_T0}, {WS_FLAGS}')
    e(f'v_and_b32 v31, 7, v{L}')
    e(f'v_lshlrev_b32 v31, 7, v31')
    e(f'v_add_u32 v31, s{S_T0}, v31')
    e('v_mov_b32 v0, 0')
    piece = {8: 0, 9: 1, 10: 2, 11: 3, 12: 4, 13: 0, 14: 1, 15: 2}
    if w3: piece = {12: 0, 13: 1, 14: 2, 15: 3}
    tmp_of = {}
    def rd(c, dstf):
        j = piece[c]
        return wo_reads(dstf, RA + 2 * (j >> 1), RA + 2 * (j >> 1) + 1, 32768 * (j & 1))
    def afrag(c):
        if c < 8: return lambda off, n: hold(c, off, n)
        if c >= 13: return lambda off, n: hold(c - 13, off, n)
        return lambda off, n: vr(TEMP + off, n)
    first = {0: True, 1: True}
    def mms(c, rnds):
        m = []
        for s4 in range(4):
            for rnd in rnds:
                for nt in range(2):
                    d = ar(32 * rnd + 16 * nt, 16)
                    m.append(mfma(d, afrag(c)(8 * s4 + 4 * nt, 4), reg4(T.where[(rnd, c)][s4]), '0' if (first[rnd] and s4 == 0) else d))
        for rnd in rnds: first[rnd] = False
        return m
    def wdma(c):
        if o.t_now: return []
        vm.add(f'w{c}', 8)
        return wo_dma(o, c, f's{S_XL}', 32768 * piece[c], f's{S_WQB}', V_DMA)
    ld_fl = f'buffer_load_dword v{V_T2}, v31, {sr(S_WS,4)}, 0 offen sc1'
    WA, RDA, VOUT = 48, 56, 60
    S_OO = S_KOFF
    fin = [f'v_and_b32 v{V_T0}, 31, v{L}', f'v_lshrrev_b32 v{V_T1}, 5, v{L}', f'v_and_b32 v{V_T3}, 15, v{L}',
           f'v_xor_b32 v{V_T1}, v{V_T1}, v{V_T3}', f'v_lshlrev_b32 v{V_T1}, 4, v{V_T1}',
           f'v_lshl_add_u32 v{V_T0}, v{V_T0}, 8, v{V_T1}', f's_add_u32 s{S_T3}, s{S_XL}, {3*32768}',
           f'v_add_u32 v{V_T0}, s{S_T3}, v{V_T0}']
    fin += [f'v_xor_b32 v{WA+k}, {32*k}, v{V_T0}' for k in range(8)]
    fin2 = [f's_lshr_b32 s{S_VOFF}, s{S_WAVE}, 1', f's_and_b32 s{S_THR}, s{S_WAVE}, 1',
            f's_lshl_b32 s{S_T2}, s{S_VOFF}, 15', f's_lshl_b32 s{S_T3}, s{S_THR}, 12',
            f's_add_u32 s{S_T2}, s{S_T2}, s{S_T3}', f's_add_u32 s{S_T2}, s{S_T2}, {3*32768}',
            f'v_lshrrev_b32 v{V_T1}, 3, v{L}', f'v_and_b32 v{V_T3}, 7, v{L}', f'v_lshlrev_b32 v{V_T0}, 1, v{V_T3}',
            f'v_xor_b32 v{V_T0}, v{V_T0}, v{V_T1}', f'v_lshlrev_b32 v{V_T0}, 4, v{V_T0}',
            f'v_lshl_add_u32 v{V_T0}, v{V_T1}, 8, v{V_T0}', f'v_add_u32 v{RDA}, s{S_T2}, v{V_T0}',
            f'v_xor_b32 v{RDA+1}, 16, v{RDA}', f'v_xor_b32 v{RDA+2}, {2048+128}, v{RDA}', f'v_xor_b32 v{RDA+3}, 16, v{RDA+2}',
            f's_lshl_b32 s{S_OO}, s{S_QT}, 5', f's_mul_i32 s{S_VOFF}, s{S_VOFF}, 384', f's_add_u32 s{S_OO}, s{S_OO}, s{S_VOFF}',
            f's_lshl_b32 s{S_THR}, s{S_THR}, 4', f's_add_u32 s{S_OO}, s{S_OO}, s{S_THR}', f's_mul_i32 s{S_OO}, s{S_OO}, 2560',
            f's_mul_i32 s{S_T3}, s{S_BR}, 1280', f's_add_u32 s{S_OO}, s{S_OO}, s{S_T3}', f's_add_u32 s{S_OO}, s{S_OO}, s{S_WOB}',
            f'v_mul_u32_u24 v{V_T1}, 2560, v{V_T1}', f'v_lshl_add_u32 v{VOUT}, v{V_T3}, 4, v{V_T1}']
    def pwrite(rnd):
        return [f'ds_write_b128 v{WA+4*nt+g}, {ar(32*rnd+16*nt+4*g,4)} offset:{rnd*32768}' for nt in range(2) for g in range(4)]
    if w3:
        ld_tag = f'global_load_dword v30, v0, {sr(S_DBG,2)} sc1'
        first[0] = False
        def mm3(c, rnd, af):
            m = []
            for s4 in range(4):
                for nt in range(2):
                    d = ar(32 * rnd + 16 * nt, 16)
                    m.append(mfma(d, af(8 * s4 + 4 * nt, 4), reg4(T.where[(rnd, c)][s4]), '0' if (first[rnd] and s4 == 0) else d))
            first[rnd] = False
            return m
        t1 = lambda off, n: vr(32 + off, n)
        for c in (13, 14, 15):
            e.many(rd(c, t1))
            if c == 15:
                vm.room(2); e(ld_tag); e(ld_fl); vm.add('pl', 2)
            e('s_waitcnt lgkmcnt(0)')
            vm.wait(f'o0_{c}')
            gaps(e, mm3(c, 0, t1), T.pump(), per=2)
            T.free += T.where[(0, c)]
        assert not T.todo
        vm.wait('pl')
        e('v_add_u32 v30, 3, v30')
        poll(e, o, 'r23', ld_fl, [f'v_cmp_eq_u32 vcc, v30, v{V_T2}'])
        T.free = [48, 52, 56, 60, 12, 16, 20, 24, 32, 36, 40, 44]
        order = [8, 9, 15, 10, 14, 11, 13, 6, 12, 7, 0, 1, 2, 3, 4, 5]
        T.todo = [(1, c) for c in order]
        e.many(T.pump())
        t2 = lambda off, n: hold3(8, off, n)
        for i, c in enumerate(order):
            nxt = order[i + 1] if i + 1 < len(order) else None
            if c >= 12: e('s_waitcnt lgkmcnt(0)')
            vm.wait(f'o1_{c}')
            front = rd(nxt, t2) if (nxt is not None and nxt >= 12) else []
            late = []
            if c == 10: late += fin
            if c == 11: late += pwrite(0)
            if c == 0: late += fin2
            m = mm3(c, 1, t2 if c >= 12 else (lambda off, n: hold3(c, off, n)))
            late += T.pump()
            gaps(e, m, front, late, per=3, late_from=0 if not front else 2)
            if c != 8: T.free += T.where[(1, c)]
            if c in (9, 10, 11): T.free += list(range(64 + 32 * (c - 8), 64 + 32 * (c - 7), 4))
            if c in (6, 7): T.free += list(range(192 + 32 * (c - 6), 192 + 32 * (c - 5), 4))
        assert not T.todo
        e('s_nop 7'); e('s_nop 3')
        e.many(pwrite(1))
        e('s_branch L_red')
        return
    seq = [(0, c) for c in ORDER1] + [(1, c) for c in ORDER2]
    todo2 = []
    for c in ORDER2: todo2 += ([(0, c)] if (c >= 13 and not o.park) else []) + [(1, c)]
    for i, (rnd, c) in enumerate(seq):
        rnds = [0, 1] if c >= 13 else [rnd]
        nxt = seq[i + 1][1] if i + 1 < len(seq) else None
        if i == o.chk - o.pl_at:
            vm.room(2); e(f'global_load_dword v30, v0, {sr(S_DBG,2)} sc1'); e(ld_fl); vm.add('pl', 2)
            if o.park: T.todo += [(0, c) for c in (13, 14, 15)]
        if i == o.chk:
            vm.stamp(o, 5)
            vm.wait('pl')
            e('v_add_u32 v30, 3, v30')
            poll(e, o, 'r2', ld_fl, [f'v_cmp_eq_u32 vcc, v30, v{V_T2}'])
            T.todo += todo2
            e.many(T.pump())
            vm.stamp(o, 6)
        if c >= 8: e('s_waitcnt lgkmcnt(0)')
        for r_ in rnds: vm.wait(f'o{r_}_{c}')
        front = []; late = []
        if nxt is not None and nxt >= 8:
            assert not (8 <= c < 13 and nxt < 13)
            if rnd == 0 and nxt == 8 and i < 5: e('s_barrier')
            if nxt == 12 and vm.has('late'): vm.wait('late')
            if nxt >= 13: vm.wait(f'w{nxt}')
            front = rd(nxt, afrag(nxt))
        if rnd == 1 and c in (8, 9, 10):
            vm.room(8)
            late += wdma(c + 5)
        if rnd == 1 and c == 15: late += fin
        if rnd == 1 and c == 6: late += pwrite(0)
        if rnd == 1 and c == 5: late += fin2
        m = mms(c, rnds)
        late += T.pump()
        gaps(e, m, front, late, per=3, late_from=0 if not front else 2)
        for r_ in rnds: T.free += T.where[(r_, c)]
    assert not T.todo
    vm.stamp(o, 7)
    e('s_nop 7'); e('s_nop 3')
    e.many(pwrite(1))
    e.lab('L_red')
    e('s_waitcnt lgkmcnt(0)')
    e('s_barrier')
    for i in range(2):
        for p in range(4):
            for hh in range(2):
                e(f'ds_read_b128 {vr(96+32*i+8*p+4*hh,4)}, v{RDA+2*i+hh} offset:{8192*p}')
    for i in range(2):
        b = 96 + 32 * i
        e(f's_waitcnt lgkmcnt({8*(1-i)})')
        for j in range(8):
            e(f'v_add_f32 v{b+j}, v{b+j}, v{b+8+j}')
            e(f'v_add_f32 v{b+16+j}, v{b+16+j}, v{b+24+j}')
        for j in range(8): e(f'v_add_f32 v{b+j}, v{b+j}, v{b+16+j}')
        for j in range(4): e(f'v_cvt_pk_bf16_f32 v{b+8+j}, v{b+2*j}, v{b+2*j+1}')
        if i: e(f's_add_u32 s{S_OO}, s{S_OO}, {8*2560}')
        e(f'buffer_store_dwordx4 {vr(b+8,4)}, v{VOUT}, {sr(S_OUT,4)}, s{S_OO} offen {o.out_flags}')
    ddump(e, o, 5)
    if o.stamps:
        e('s_waitcnt vmcnt(0)')
        stamp(e, o, 14)

KD = '''.amdhsa_kernel {n}
  .amdhsa_next_free_vgpr 512
  .amdhsa_next_free_sgpr 102
  .amdhsa_accum_offset 256
  .amdhsa_group_segment_fixed_size 0
  .amdhsa_kernarg_size 104
  .amdhsa_user_sgpr_count 2
  .amdhsa_user_sgpr_kernarg_segment_ptr 1
  .amdhsa_system_sgpr_workgroup_id_x 1
.end_amdhsa_kernel
'''

def gen(o):
    e = Em()
    k1 = NAME + '_kernel'
    e.raw('; @launch grid=(256,1,1) block=(256,1,1) lds=163840')
    e.raw('.amdgcn_target "amdgcn-amd-amdhsa--gfx950"')
    e.raw('.text')
    e.raw(f'.globl {k1}\n.p2align 8\n.type {k1},@function')
    e.lab(k1)
    prologue(e, o)
    e(f's_cmp_eq_u32 s{S_WAVE}, 3')
    e('s_cbranch_scc1 L_loader')
    phase_a(e, o)
    T = phase_b(e, o)
    n0 = T.vm.out()
    pre = T.pump(o.npre)
    npre = T.vm.out() - n0
    e.many(pre)
    e(f's_waitcnt vmcnt({npre}) lgkmcnt(0)')
    e('s_barrier')
    dmark(e, o, 3)
    if o.stamps:
        T.vm.stamp(o, 3)
    e('s_branch L_join')
    e.lab('L_loader')
    loader(e, o)
    if o.w3:
        if o.stamps: e.T3.vm.stamp(o, 3)
        tail(e, o, e.T3, w3=True)
    else:
        e.many(pre)
        if o.stamps: stamp(e, o, 3)
    e.lab('L_join')
    tail(e, o, T)
    e.lab('L_exit')
    e('s_endpgm')
    e.lab('L_end')
    e.raw('.section .rodata,"a"\n.p2align 6')
    e.raw(KD.format(n=k1))
    return e.text()

if __name__ == '__main__':
    o = Opt()
    out = sys.argv[1]
    for a in sys.argv[2:]:
        k, v = a.split('=', 1); v = v.replace('+', ' ')
        cur = getattr(o, k)
        setattr(o, k, (v == '1') if isinstance(cur, bool) else int(v) if isinstance(cur, int) else v)
    open(out, 'w').write(gen(o))
```

```python
import sys, math, struct
NAME = 'concat_heads__mha_block_cached__mha_block_cached__near_ridge'

class Opt:
    stamps = False
    kv_flags = 'nt'
    w_flags = ''
    wo_flags = ''
    ost_flags = 'sc1'
    old_flags = 'sc1'
    look = 7
    rot = 0
    arot = 3
    nun = 1
    tlbq = False
    tickst = 0
    no_w = False
    no_w3 = False
    t_now = False
    t_o1 = False
    t_noo = False
    c8late = True
    pf_kv = 0
    pf_wo = True
    pf_a = False
    pf_w = False
    pf_delay = 0
    pf_s0 = 2
    pf_mid = 0
    pf_flags = ''
    pf_tail = 0
    bal = 0
    bal_lag = 2
    bal_n = 1
    bal_sl = 0
    tagk = 1
    thr_end = 28
    k_first = False
    k_s0 = 0
    tlb = True
    aper = 4
    out_flags = ''
    tsched = 1
    park = True
    gran = 16
    a_skip = ''
    dbgt = False
    jit = 0
    lb = 4
    lb_hi = 35
    lb_pos = 0
    lb_t = 0
    lb_lo = 8
    lb_ld = 'sc1'
    lb_st = ''
    pfc = False
    w3 = False
    w3k = 23
    pl_at = 3
    fav = 0
    t15 = True
    nearly = 0
    npre = 3
    pk = True
    v1_late = True
    look_lo = 5
    look_k0 = 0
    look_k1 = 0
    krot = False
    early = True
    chk = 7
    bal_k1 = 30
    psleep = 4
    thr = 16
    blk = 0

WS_FLAGS = 12582912
WS_PROG = WS_FLAGS + 32768
WS_STAMP = 13631488
SLOT = 16384
STAGE = 40960
RND = 12 * 32 * 8192

S_X, S_K, S_V, S_WQ, S_WO, S_OUT, S_WS = 4, 8, 12, 16, 20, 24, 28
S_DBG = 32
S_WAVE, S_BR, S_H, S_BL = 34, 35, 36, 37
S_T0, S_T1, S_T2, S_T3 = 38, 39, 40, 41
S_KX, S_XB, S_XL, S_KVB, S_TICK = 42, 43, 44, 45, 46
S_KOFF, S_VOFF, S_THR, S_FLOOR, S_C, S_OB, S_WQB = 47, 48, 49, 50, 51, 52, 53
S_ST, S_STB, S_QT, S_NT = 54, 56, 57, 58
S_SAVE = 60
S_WN, S_FL = 62, 63
S_EV = 59
S_KARG = 64
S_WOB, S_O1, S_QB, S_CNT, S_RHO, S_WC, S_N, S_KR = 90, 91, 92, 93, 94, 95, 96, 97

V_LANE = 1
V_T0, V_T1, V_T2, V_T3 = 2, 3, 4, 5
V_L, V_MX, V_D = 6, 10, 11
V_DMA = 12
V_KA, V_VA, V_OST, V_WA = 16, 24, 28, 29
V_NEGM = 32
V_SA, V_SB, V_P, V_TMP = 48, 64, 80, 88
V_Q, V_KF, V_VF, V_Q2 = 96, 128, 160, 192

class Em:
    def __init__(self): self.L = []
    def __call__(self, s): self.L.append('    ' + s)
    def lab(self, s): self.L.append(s + ':')
    def raw(self, s): self.L.append(s)
    def many(self, l):
        for x in l: self(x)
    def text(self):
        if getattr(self, 'jit', 0):
            import random
            rnd = random.Random(self.jit); out = []; n = 0
            for l in self.L:
                out.append(l)
                t = l.strip()
                if (t == 's_barrier' or t.startswith('s_waitcnt vmcnt')) and rnd.random() < 0.35:
                    n += 1
                    bit = rnd.choice([0, 1, 2, 3, 4, 5])
                    src = rnd.choice(['s2', f's{S_WAVE}'])
                    if src != 's2': bit &= 1
                    out += [f'    s_cselect_b32 s3, 1, 0', f'    s_bitcmp1_b32 {src}, {bit}', f'    s_cbranch_scc0 L_j{n}', f'    s_sleep {rnd.choice([1, 4, 16, 40])}', f'L_j{n}:', '    s_cmp_eq_u32 s3, 1']
            self.L = out
        return '\n'.join(self.L) + '\n'

def vr(b, n=1): return f'v{b}' if n == 1 else f'v[{b}:{b+n-1}]'
def ar(b, n=1): return f'a{b}' if n == 1 else f'a[{b}:{b+n-1}]'
def sr(b, n=1): return f's{b}' if n == 1 else f's[{b}:{b+n-1}]'
def mfma(d, a, b, c): return f'v_mfma_f32_32x32x16_bf16 {d}, {a}, {b}, {c}'
def hold(ci, off, n):
    return ar(64 + 32 * ci + off, n) if ci < 6 else vr(192 + 32 * (ci - 6) + off, n)

def hold3(ci, off, n):
    return hold(ci, off, n) if ci < 8 else vr(64 + 32 * (ci - 8) + off, n)
def reg4(r): return ar(r - 1000, 4) if r >= 1000 else vr(r, 4)

def cost(i):
    if i.startswith('v_exp') or i.startswith('v_rcp'): return 8
    if i.startswith('s_'): return 2
    return 4

def interleave(e, mf, fill):
    total = sum(cost(f) for f in fill if not isinstance(f, tuple))
    per = total / len(mf)
    fi = 0; acc = 0.0
    deadline = {}; items = []
    for f in fill:
        if isinstance(f, tuple):
            if f[0] == 'M': deadline[f[1]] = len(items)
            else: items.append(f)
        else: items.append(f)
    for k, m in enumerate(mf):
        need = deadline.get(k, 0)
        while fi < need:
            it = items[fi]; fi += 1
            if isinstance(it, tuple):
                assert it[1] < k, (it, k)
                continue
            e(it); acc += cost(it)
        if isinstance(m, (list, tuple)): e.many(m)
        else: e(m)
        target = per * (k + 1)
        while fi < len(items) and (acc < target - 1.0 or k == len(mf) - 1):
            it = items[fi]
            if isinstance(it, tuple):
                if it[1] > k: break
                fi += 1; continue
            e(it); acc += cost(it); fi += 1
    assert fi == len(items)

def gaps(e, mf, front, late=(), per=2, late_from=5):
    g = [[] for _ in mf]
    for i, f in enumerate(front): g[min(i // per, len(mf) - 1)].append(f)
    n = len(mf) - late_from
    for i, f in enumerate(late): g[late_from + (i * n) // len(late)].append(f)
    for m, x in zip(mf, g):
        sk = getattr(e, 'skip', '')
        if 'm' not in sk: e(m)
        e.many([y for y in x if not (('r' in sk and y.startswith('ds_read')) or ('d' in sk and y.startswith('buffer_load_dwordx4 v') and ('s[4:7]' in y or 's[16:19]' in y)))])

def stamp(e, o, idx, clk=False):
    if not o.stamps: return 0
    e(f's_memtime {sr(S_ST,2)}' if clk else f's_memrealtime {sr(S_ST,2)}')
    e('s_waitcnt lgkmcnt(0)')
    e(f'v_mov_b32 v{V_T0}, s{S_ST}')
    e(f'v_mov_b32 v{V_T1}, s{S_STB}')
    e('s_mov_b64 exec, 1')
    e(f'buffer_store_dword v{V_T0}, v{V_T1}, {sr(S_WS,4)}, 0 offen offset:{4*idx}')
    e('s_mov_b64 exec, -1')
    return 1

LAZY = {0: 98, 1: 100}
for _i in range(2, 15): LAZY[_i] = 64 + 2 * (_i - 2)
def lazy(e, o, i):
    if o.stamps: e(f's_memrealtime s[{LAZY[i]}:{LAZY[i]+1}]')
def lazy_dump(e, o, ids):
    if not o.stamps: return 0
    e('s_waitcnt lgkmcnt(0)')
    e(f'v_mov_b32 v{V_T1}, s{S_STB}')
    e('s_mov_b64 exec, 1')
    for i in ids:
        e(f'v_mov_b32 v{V_T0}, s{LAZY[i]}')
        e(f'buffer_store_dword v{V_T0}, v{V_T1}, {sr(S_WS,4)}, 0 offen offset:{16 if i == 0 else 4*(16+i)}')
        e('s_nop 1')
    e('s_mov_b64 exec, -1')
    return len(ids)

def dmark(e, o, i):
    if o.dbgt: e(f's_memrealtime s[{64+2*i}:{65+2*i}]')
def ddump(e, o, n):
    if not o.dbgt: return
    e('s_waitcnt vmcnt(0)')
    dmark(e, o, n - 1)
    e('s_waitcnt lgkmcnt(0)')
    e(f's_cmp_lg_u32 s{S_WAVE}, 0')
    e('s_cbranch_scc1 L_exit')
    e('s_mov_b32 s3, 0')
    for j, w in enumerate((5, 130, 203)):
        e(f's_cmp_eq_u32 s2, {w}')
        e(f's_cselect_b32 s3, {4 + 20 * j}, s3')
    e('s_cmp_eq_u32 s3, 0')
    e('s_cbranch_scc1 L_exit')
    e('v_mov_b32 v2, s3')
    e('s_mov_b64 exec, 1')
    for i in range(n):
        e(f's_sub_u32 s{64+2*i}, s{64+2*i}, s98')
        e(f'v_mov_b32 v3, s{64+2*i}')
        e(f'global_store_dword v2, v3, {sr(S_DBG,2)} offset:{4*i}')
        e('s_nop 1')
    e('s_mov_b64 exec, -1')

class Vm:
    def __init__(self, e): self.e = e; self.q = []
    def out(self): return sum(c for _, c in self.q)
    def has(self, name): return name in [n for n, _ in self.q]
    def wait(self, name):
        names = [n for n, _ in self.q]
        if name not in names: return
        i = names.index(name)
        rest = sum(c for _, c in self.q[i + 1:])
        assert rest <= 63
        self.e(f's_waitcnt vmcnt({rest})')
        self.q = self.q[i + 1:]
    def room(self, c):
        while self.out() + c > 61: self.wait(self.q[0][0])
    def add(self, name, c):
        self.q.append((name, c)); assert self.out() <= 63, self.q
    def stamp(self, o, idx, clk=False):
        if o.stamps:
            self.room(1); stamp(self.e, o, idx, clk); self.add(f'st{idx}', 1)

def prologue(e, o):
    if o.stamps or o.dbgt: e('s_memrealtime s[98:99]')
    e('s_cmp_ge_u32 s2, 256')
    e('s_cbranch_scc1 L_exit')
    e(f's_load_dwordx16 {sr(S_KARG,16)}, s[0:1], 0')
    e(f's_load_dwordx8 {sr(S_KARG+16,8)}, s[0:1], 64')
    e(f's_load_dwordx2 {sr(S_KARG+24,2)}, s[0:1], 96')
    e(f'v_lshrrev_b32 v{V_T0}, 6, v0')
    e(f'v_and_b32 v{V_LANE}, 63, v0')
    e(f'v_readfirstlane_b32 s{S_WAVE}, v{V_T0}')
    e(f's_and_b32 s{S_T0}, s2, 7')
    e(f's_lshr_b32 s{S_T1}, s2, 3')
    e(f's_lshr_b32 s{S_BR}, s{S_T0}, 2')
    e(f's_and_b32 s{S_T2}, s{S_T0}, 3')
    e(f's_lshl_b32 s{S_H}, s{S_T2}, 3')
    e(f's_and_b32 s{S_T3}, s{S_T1}, 7')
    e(f's_add_u32 s{S_H}, s{S_H}, s{S_T3}')
    e(f's_lshr_b32 s{S_BL}, s{S_T1}, 3')
    e(f's_mul_i32 s{S_KX}, s{S_BL}, 5')
    e(f's_add_u32 s{S_KX}, s{S_KX}, 1')
    e(f's_lshr_b32 s{S_KX}, s{S_KX}, 1')
    if o.arot in (2, 3): e(f's_mov_b32 s{S_KX}, 0')
    if o.arot == 4: e(f's_lshr_b32 s{S_T3}, s{S_T3}, 2')
    if o.arot in (0, 3, 4): e(f's_add_u32 s{S_KX}, s{S_KX}, s{S_T3}')
    e(f's_cmp_ge_u32 s{S_KX}, 10')
    e(f's_cselect_b32 s{S_T3}, 10, 0')
    e(f's_sub_u32 s{S_KX}, s{S_KX}, s{S_T3}')
    if o.blk == 0:
        e(f's_mul_i32 s{S_QT}, s{S_T1}, 13')
        e(f's_lshr_b32 s{S_QT}, s{S_QT}, 6')
        e(f's_mul_i32 s{S_T3}, s{S_QT}, 5')
        e(f's_sub_u32 s{S_NT}, s{S_T1}, s{S_T3}')
        e(f's_and_b32 s{S_T3}, s{S_T2}, 1')
        e(f's_mul_i32 s{S_T3}, s{S_T3}, 5')
        e(f's_add_u32 s{S_NT}, s{S_NT}, s{S_T3}')
        e(f's_lshr_b32 s{S_T3}, s{S_T2}, 1')
        e(f's_mul_i32 s{S_T3}, s{S_T3}, 6')
        e(f's_add_u32 s{S_QT}, s{S_QT}, s{S_T3}')
    elif o.blk == 1:
        e(f's_mul_i32 s{S_QT}, s{S_T1}, 26')
        e(f's_lshr_b32 s{S_QT}, s{S_QT}, 8')
        e(f's_mul_i32 s{S_T3}, s{S_QT}, 10')
        e(f's_sub_u32 s{S_NT}, s{S_T1}, s{S_T3}')
        e(f's_mul_i32 s{S_T3}, s{S_T2}, 3')
        e(f's_add_u32 s{S_QT}, s{S_QT}, s{S_T3}')
    else:
        e(f's_mul_i32 s{S_T3}, s{S_T2}, 30')
        e(f's_add_u32 s{S_T3}, s{S_T3}, s{S_T1}')
        e(f's_mul_i32 s{S_NT}, s{S_T3}, 171')
        e(f's_lshr_b32 s{S_NT}, s{S_NT}, 11')
        e(f's_mul_i32 s{S_QT}, s{S_NT}, 12')
        e(f's_sub_u32 s{S_QT}, s{S_T3}, s{S_QT}')
    e(f's_cmp_ge_u32 s{S_T1}, 30')
    e(f's_cselect_b32 s{S_NT}, 15, s{S_NT}')
    e(f's_cselect_b32 s{S_QT}, 0, s{S_QT}')
    e(f's_mul_i32 s{S_QB}, s{S_QT}, 11')
    e(f's_lshr_b32 s{S_QB}, s{S_QB}, 5')
    e(f's_lshl_b32 s{S_STB}, s2, 2')
    e(f's_add_u32 s{S_STB}, s{S_STB}, s{S_WAVE}')
    e(f's_lshl_b32 s{S_STB}, s{S_STB}, 8')
    e(f's_add_u32 s{S_STB}, s{S_STB}, {WS_STAMP}')
    e(f's_lshl_b32 s{S_XL}, s{S_WAVE}, 13')
    e(f's_lshl_b32 s{S_WOB}, s{S_NT}, 7')
    e(f's_cmp_ge_u32 s{S_NT}, 5')
    e(f's_cselect_b32 s{S_T0}, {5 if o.blk == 0 else 0}, 0')
    e(f's_sub_u32 s{S_RHO}, s{S_NT}, s{S_T0}')
    e(f's_mul_i32 s{S_RHO}, s{S_RHO}, {o.rot}')
    e(f's_and_b32 s{S_RHO}, s{S_RHO}, 15')
    for srd, size in ((S_X, 983040), (S_K, 1 << 26), (S_V, 1 << 26), (S_WQ, 5242880), (S_WO, 5242880), (S_OUT, 1966080), (S_WS, 16777216)):
        e(f's_mov_b32 s{srd+2}, {size}')
        e(f's_mov_b32 s{srd+3}, 0x20000')

def srds(e, o):
    e('s_waitcnt lgkmcnt(0)')
    e(f's_cmp_eq_u32 s{S_BR}, 0')
    for srd, i in ((S_WQ, 3), (S_X, 0), (S_K, 1), (S_V, 2), (S_WO, 4)):
        e(f's_cselect_b64 {sr(srd,2)}, {sr(S_KARG+2*i,2)}, {sr(S_KARG+10+2*i,2)}')
    e(f's_mov_b64 {sr(S_OUT,2)}, {sr(S_KARG+20,2)}')
    e(f's_mov_b64 {sr(S_WS,2)}, {sr(S_KARG+24,2)}')
    e(f's_mov_b64 {sr(S_DBG,2)}, {sr(S_KARG+22,2)}')
    for srd in (S_WQ, S_X, S_K, S_V, S_WO, S_OUT, S_WS):
        e(f's_and_b32 s{srd+1}, s{srd+1}, 0xffff')
    lazy(e, o, 1)

def no_task_wo(e):
    e(f's_cmp_eq_u32 s{S_NT}, 15')
    e(f's_cselect_b32 s{S_WO+2}, 0, s{S_WO+2}')

RING = 32768
PF_TICKS = [0, 1, 6, 10, 15, 19, 22, 24, 25, 26, 27]
def reg_w(s): return (32768, 73728, 114688)[(s + 2) % 3]
def reg_x(s): return (49152, 90112, 0)[(s + 2) % 3]

SEQ = ['K0']
for k in range(32): SEQ += [f'K{k+1}', f'V{k}']
SEQ += [f'T{i}' for i in range(8)]
POS = {n: i for i, n in enumerate(SEQ)}
def slot(name): return (6 + POS[name]) % 8
def slot_addr(name): return RING + slot(name) * SLOT

def wo_dma(o, c, ldsbase_s, ldsoff, wob, vw, dyn=False):
    r = []
    if o.no_w and dyn: return ['s_nop 0']
    if dyn:
        r += [f's_mul_i32 s{S_T0}, s{S_WC}, {64*1280}', f's_add_u32 s{S_WC}, s{S_WC}, 1', f's_and_b32 s{S_WC}, s{S_WC}, 15']
    else:
        r += [f's_add_u32 s{S_T0}, s{S_RHO}, {c}', f's_and_b32 s{S_T0}, s{S_T0}, 15', f's_mul_i32 s{S_T0}, s{S_T0}, {64*1280}']
    r.append(f's_add_u32 s{S_T0}, s{S_T0}, {wob}')
    for g_ in range(2):
        r.append(f's_add_u32 m0, {ldsbase_s}, {ldsoff + 4096*g_}' if ldsbase_s else f's_mov_b32 m0, {ldsoff + 4096*g_}')
        r.append(f's_add_u32 s{S_T1}, s{S_T0}, {32*g_*1280}')
        for i in range(4):
            r.append(f'buffer_load_dwordx4 v{vw+i}, {sr(S_WO,4)}, s{S_T1} offen offset:{1024*i} {o.wo_flags} lds')
    return r

def wo_voffs(e, dst):
    L = V_LANE
    e(f'v_lshrrev_b32 v{V_T0}, 3, v{L}')
    e(f'v_mul_u32_u24 v{V_T0}, 1280, v{V_T0}')
    e(f'v_bfe_u32 v{V_T1}, v{L}, 4, 1')
    e(f'v_lshlrev_b32 v{V_T1}, 2, v{V_T1}')
    e(f'v_and_b32 v{V_T2}, 7, v{L}')
    e(f'v_xor_b32 v{V_T1}, v{V_T1}, v{V_T2}')
    e(f'v_lshl_add_u32 v{dst}, v{V_T1}, 4, v{V_T0}')
    for i in range(1, 4): e(f'v_add_u32 v{dst+i}, {(10240-1024)*i}, v{dst}')

def wo_lane_addr(e, dst):
    L = V_LANE
    e(f'v_lshrrev_b32 v{V_T0}, 5, v{L}')
    e(f'v_bfe_u32 v{V_T1}, v{L}, 2, 2')
    e(f'v_lshl_add_u32 v{dst}, v{V_T0}, 2, v{V_T1}')
    e(f'v_lshlrev_b32 v{dst}, 7, v{dst}')
    e(f'v_bfe_u32 v{V_T3}, v{L}, 3, 1')
    e(f'v_lshl_add_u32 v{dst}, v{V_T3}, 6, v{dst}')
    e(f'v_bfe_u32 v{V_T3}, v{L}, 4, 1')
    e(f'v_lshl_add_u32 v{dst}, v{V_T3}, 5, v{dst}')
    e(f'v_and_b32 v{V_T3}, 3, v{L}')
    e(f'v_lshl_add_u32 v{dst}, v{V_T3}, 3, v{dst}')

def wo_reads(dstf, a0, a1, off):
    r = []
    for s4 in range(4):
        for nt in range(2):
            for u in range(2):
                r.append(f'ds_read_b64_tr_b16 {dstf(8*s4+4*nt+2*u,2)}, v{(a0,a1)[nt]} offset:{off+(16*s4+8*u)*128}')
    return r

def poll(e, o, tag, load, test):
    e.many(test)
    e('s_cmp_eq_u64 vcc, -1')
    e(f's_cbranch_scc1 L_polled_{tag}')
    e(f's_mov_b32 s{S_CNT}, 0x20000')
    e.lab(f'L_poll_{tag}')
    e(f's_sleep {o.psleep}')
    e(load)
    e('s_waitcnt vmcnt(0)')
    e.many(test)
    e('s_cmp_eq_u64 vcc, -1')
    e(f's_cbranch_scc1 L_polled_{tag}')
    e(f's_sub_u32 s{S_CNT}, s{S_CNT}, 1')
    e(f's_cmp_lg_u32 s{S_CNT}, 0')
    e(f's_cbranch_scc1 L_poll_{tag}')
    e.lab(f'L_polled_{tag}')

def loader(e, o):
    L = V_LANE
    VK, VV, VW, VWO, VF, VP, VZ = 24, 16, 20, 12, 17, 18, 19
    VA, VB = 96, 100
    AF = [48, 56]; BF = [64, 80]; ACC = 128
    vm = Vm(e)
    e(f'v_lshrrev_b32 v{V_T0}, 4, v{L}')
    e(f'v_and_b32 v{V_T1}, 15, v{L}')
    e(f'v_lshlrev_b32 v{V_T3}, 2, v{V_T0}')
    e(f'v_xor_b32 v{V_T3}, v{V_T3}, v{V_T1}')
    e(f'v_lshlrev_b32 v{V_T2}, 8, v{V_T0}')
    e(f'v_lshl_add_u32 v{VV}, v{V_T3}, 4, v{V_T2}')
    for i in range(4):
        e(f'v_add_u32 v{V_T3}, {4*i}, v{V_T0}')
        e(f'v_xor_b32 v{V_T3}, v{V_T3}, v{V_T1}')
        e(f'v_lshl_add_u32 v{VK+i}, v{V_T3}, 4, v{V_T2}')
    e(f's_lshl_b32 s{S_KVB}, s{S_BL}, 5')
    e(f's_add_u32 s{S_KVB}, s{S_KVB}, s{S_H}')
    e(f's_lshl_b32 s{S_KVB}, s{S_KVB}, 18')
    e(f's_and_b32 s{S_KR}, s2, 7')
    e(f's_lshl_b32 s{S_KR}, s{S_KR}, 1')
    e(f's_lshr_b32 s{S_T0}, s2, 3')
    e(f's_add_u32 s{S_KR}, s{S_KR}, s{S_T0}')
    e(f's_and_b32 s{S_KR}, s{S_KR}, {15 if o.krot else 0}')
    e(f's_lshl_b32 s{S_KR}, s{S_KR}, 14')
    e(f'v_lshlrev_b32 v{VW}, 19, v{L}')
    e(f'v_lshlrev_b32 v{VW+1}, 25, v{L}')
    e(f'v_mov_b32 v{VZ}, 0')
    e(f'v_lshlrev_b32 v{VW+3}, 18, v{L}')
    e(f's_lshl_b32 s{S_T0}, s{S_BR}, 2')
    e(f's_add_u32 s{S_FL}, s{S_T0}, s{S_BL}')
    e(f's_lshl_b32 s{S_FL}, s{S_FL}, 5')
    e(f's_add_u32 s{S_FL}, s{S_FL}, s{S_H}')
    e(f's_lshl_b32 s{S_FL}, s{S_FL}, 7')
    e(f's_add_u32 s{S_FL}, s{S_FL}, {WS_FLAGS}')
    e(f's_mul_i32 s{S_T2}, s{S_BR}, 8')
    e(f's_add_u32 s{S_T2}, s{S_T2}, s{S_BL}')
    e(f's_mul_i32 s{S_T2}, s{S_T2}, 96')
    e(f's_add_u32 s{S_T2}, s{S_T2}, s{S_H}')
    e(f's_lshl_b32 s{S_T2}, s{S_T2}, 13')
    if o.pfc:
        e(f's_getpc_b64 {sr(S_ST,2)}')
        e.lab('L_pc')
        e(f's_sub_u32 s{S_ST}, s{S_ST}, L_pc-{NAME}_kernel')
        e(f's_subb_u32 s{S_ST+1}, s{S_ST+1}, 0')
        e(f's_lshr_b32 s{S_T0}, s2, 3')
        e(f's_lshl_b32 s{S_T0}, s{S_T0}, 11')
        e(f'v_lshlrev_b32 v{V_T0}, 7, v{L}')
        e(f'v_add_u32 v{V_T0}, s{S_T0}, v{V_T0}')
        e(f'v_min_u32 v{V_T0}, L_end-{NAME}_kernel-4, v{V_T0}')
        e('s_mov_b64 exec, 0xffff')
        e(f'global_load_dword v{VW+2}, v{V_T0}, {sr(S_ST,2)}')
        e('s_mov_b64 exec, -1')
        vm.add('pfc', 1)
    srds(e, o)
    if o.tlb:
        e('s_mov_b64 exec, 3')
        e(f'buffer_load_dword v{VW+2}, v{VW+1}, {sr(S_K,4)}, s{S_KVB} offen')
        e(f'buffer_load_dword v{VW+2}, v{VW+1}, {sr(S_V,4)}, s{S_KVB} offen')
        e('s_mov_b64 exec, 0x3ffffff')
        if o.tlbq: e(f'buffer_load_dword v{VW+2}, v{VW}, {sr(S_WQ,4)}, 0 offen')
        e(f'buffer_load_dword v{VW+2}, v{VW}, {sr(S_WO,4)}, 0 offen')
        e(f'buffer_load_dword v{VW+2}, v{VW}, {sr(S_OUT,4)}, 0 offen')
        e('s_mov_b64 exec, 0x7007')
        e(f'buffer_load_dword v{VW+2}, v{VW+3}, {sr(S_WS,4)}, s{S_T2} offen')
        e('s_mov_b64 exec, 1')
        e(f'buffer_load_dword v{VW+2}, v{VZ}, {sr(S_WS,4)}, s{S_FL} offen')
        e('s_mov_b64 exec, -1')
        vm.add('tlb', 7 if o.tlbq else 6)
    def issue_l(name):
        kind, t = name[0], int(name[1:])
        r = []
        if kind == 'K' and t > 31: return r
        base = slot_addr(name)
        if kind in 'KV':
            off = (t // 16) * (4 * 32 * 262144)
            r.append(f's_add_u32 s{S_T0}, s{S_KR}, {(t % 16) * SLOT}')
            r.append(f's_and_b32 s{S_T0}, s{S_T0}, {16 * SLOT - 1}')
            r.append(f's_add_u32 s{S_T0}, s{S_T0}, s{S_KVB}')
            for g in range(4):
                r.append(f's_mov_b32 m0, {base + 4096*g}')
                r.append(f's_add_u32 s{S_T1}, s{S_T0}, {off + 4096*g}')
                for i in range(4):
                    v = VK + i if kind == 'K' else VV
                    r.append(f'buffer_load_dwordx4 v{v}, {sr(S_K if kind == "K" else S_V,4)}, s{S_T1} offen offset:{1024*i} {o.kv_flags} lds')
        else:
            rr = slot(name); j, hi = 1 + (rr >> 1), rr & 1
            if j == 4: return r
            for p in range(2):
                r.append(f's_add_u32 s{S_T2}, s{S_WOB}, {1024*1280*(2*hi+p)}')
                r += wo_dma(o, (12 if (o.w3 and hi and p) else 8) + j, None, base + 8192 * p, f's{S_T2}', VWO)
        return r
    def issue(name):
        r = issue_l(name)
        if r:
            vm.room(16); e.many(r); vm.add(name, 16)
    def own_w(c):
        vm.room(8)
        e(f's_add_u32 s{S_T2}, s{S_WOB}, {1024*1280*3}')
        e.many(wo_dma(o, c, None, 3 * 8192, f's{S_T2}', VWO))
        vm.add(f'w{c}', 8)
    def wait_upto(n):
        for m in range(n, -1, -1):
            if vm.has(SEQ[m]): vm.wait(SEQ[m]); return
    def flag(val):
        return [f's_add_u32 s{S_T0}, s{S_N}, {val}', f'v_mov_b32 v{V_T2}, s{S_T0}', 's_mov_b64 exec, 1',
                f'buffer_store_dword v{V_T2}, v{VZ}, {sr(S_WS,4)}, s{S_FL} offen sc1', 's_mov_b64 exec, -1']
    if o.pf_a:
        if o.pf_delay: e(f's_sleep {o.pf_delay}')
        e(f'v_lshrrev_b32 v{VW}, 1, v{L}')
        e(f'v_lshlrev_b32 v{VW}, 13, v{VW}')
        e(f'v_and_b32 v{VW+1}, 1, v{L}')
        e(f'v_lshl_add_u32 v{VW}, v{VW+1}, 7, v{VW}')
        e(f's_mul_i32 s{S_T0}, s{S_BL}, {160*8192}')
        e(f's_lshl_b32 s{S_T1}, s{S_H}, 8')
        e(f's_add_u32 s{S_T0}, s{S_T0}, s{S_T1}')
        for i in range(5):
            e(f's_add_u32 s{S_T1}, s{S_T0}, {32*i*8192}')
            e(f'buffer_load_dword v{VW+2}, v{VW}, {sr(S_WQ,4)}, s{S_T1} offen {o.w_flags}')
        e(f'v_lshlrev_b32 v{VW+1}, 7, v{L}')
        e(f's_and_b32 s{S_T0}, s{S_H}, 7')
        e(f's_mul_i32 s{S_T0}, s{S_T0}, 15360')
        e(f's_mul_i32 s{S_T1}, s{S_BL}, 122880')
        e(f's_add_u32 s{S_T0}, s{S_T0}, s{S_T1}')
        for i in range(4):
            e(f's_add_u32 s{S_T1}, s{S_T0}, {(i >> 1) * 491520 + (i & 1) * 8192}')
            e(f'buffer_load_dword v{VW+2}, v{VW+1}, {sr(S_X,4)}, s{S_T1} offen {o.w_flags}')
        vm.add('pfa', 9)
    if o.k_first: issue('K0'); issue('K1')
    e('s_cmp_lg_u32 s2, 0')
    e('s_cbranch_scc1 L_notag')
    e(f's_memrealtime {sr(S_ST,2)}')
    e('s_waitcnt lgkmcnt(0)')
    e(f's_mul_i32 s{S_ST+1}, s{S_ST+1}, 0x9e3779b1')
    e(f's_add_u32 s{S_ST}, s{S_ST}, s{S_ST+1}')
    e(f's_or_b32 s{S_ST}, s{S_ST}, 4')
    e(f's_and_b32 s{S_ST}, s{S_ST}, -4')
    e(f'v_mov_b32 v{V_T2}, s{S_ST}')
    e('s_mov_b64 exec, 1')
    e(f'global_store_dword v{VZ}, v{V_T2}, {sr(S_DBG,2)} sc1')
    e('s_mov_b64 exec, -1')
    e.lab('L_notag')
    e(f's_lshl_b32 s{S_T0}, s{S_BR}, 2')
    e(f's_add_u32 s{S_T0}, s{S_T0}, s{S_QB}')
    e(f's_lshl_b32 s{S_T0}, s{S_T0}, 12')
    e(f's_add_u32 s{S_T0}, s{S_T0}, {WS_FLAGS}')
    e(f'v_and_b32 v{VP}, 31, v{L}')
    e(f'v_lshlrev_b32 v{VP}, 7, v{VP}')
    e(f'v_add_u32 v{VP}, s{S_T0}, v{VP}')
    a_addr(e, VA, VB, None)
    wo_voffs(e, VWO)
    wo_lane_addr(e, V_WA)
    e(f'v_lshlrev_b32 v{VW}, 7, v{L}')
    e(f'v_add_u32 v{V_WA}, {3*8192}, v{V_WA}')
    e(f'v_xor_b32 v{V_WA+1}, 64, v{V_WA}')
    e(f'v_lshlrev_b32 v{V_OST}, 4, v{L}')
    e(f's_mov_b32 s{S_C}, {SCALE}')
    pf = []
    for n in range(2, 2 + o.pf_kv):
        kind, t = SEQ[n][0], int(SEQ[n][1:])
        for hh in range(2):
            pf.append([f's_add_u32 s{S_T1}, s{S_KVB}, {t*SLOT + hh*8192}',
                       f'buffer_load_dword v{VW+1}, v{VW}, {sr(S_K if kind == "K" else S_V,4)}, s{S_T1} offen {o.pf_flags}'])
    if o.pf_wo:
        e(f's_lshl_b32 s{S_T2}, s{S_H}, 2')
        e(f's_add_u32 s{S_T2}, s{S_T2}, s{S_BL}')
        e(f's_mul_i32 s{S_T2}, s{S_T2}, 40960')
        for i in range(5):
            pf.append([f's_add_u32 s{S_T1}, s{S_T2}, {i*8192}',
                       f'buffer_load_dword v{VW+1}, v{VW}, {sr(S_WO,4)}, s{S_T1} offen {o.pf_flags}'])
    def reads(s4, buf):
        r = []
        for t in (2, 3):
            for u in range(2):
                r.append(f'ds_read_b64_tr_b16 {vr(AF[buf]+4*(t-2)+2*u,2)}, v{VA+t} offset:{(16*s4+4*u)*256}')
        r += [f'ds_read_b128 {vr(BF[buf]+4*j,4)}, v{VB+s4} offset:{8192*j + 4096}' for j in range(3)]
        return r
    def mf(buf, first):
        r = []
        for j in range(3):
            for t in range(2):
                d = vr(ACC + 32 * j + 16 * t, 16)
                r.append(mfma(d, vr(AF[buf] + 4 * t, 4), vr(BF[buf] + 4 * j, 4), '0' if first else d))
        return r
    extra = {}
    def ride(step, name, ins, cnt):
        extra.setdefault(step, []).append((name, ins, cnt))
    if not o.k_first:
        for i, nm in enumerate(('K0', 'K1')):
            ins = issue_l(nm)
            for q in range(4): ride(4 * o.k_s0 + 4 * i + q, nm if q == 3 else None, ins[(3 + 6 * q if q else 0):3 + 6 * q + 6], 4)
    npf = 4 * (7 - o.pf_s0)
    for i, x in enumerate(pf): ride(4 * o.pf_s0 + (i * npf) // max(len(pf), 1), 'pf', x, 1)
    for i, nm in enumerate(('V0', 'K2')):
        ins = issue_l(nm)
        for q in range(2): ride(31 + 2 * i + q, nm if q == 1 else None, ins[(15 if q else 0):3 + 12 * q + 12], 8)
    ins = issue_l('V1')
    for q in range(0 if o.v1_late else 2): ride(35 + q, 'V1' if q == 1 else None, ins[(15 if q else 0):3 + 12 * q + 12], 8)
    e('s_barrier')
    e.many(reads(0, 0))
    e.skip = o.a_skip
    for s in range(10):
        for s4 in range(4):
            step = 4 * s + s4; buf = step & 1
            e('s_waitcnt lgkmcnt(0)')
            if step == 31: no_task_wo(e)
            if s4 == 3:
                if s == 9: vm.wait('K1')
                e('s_barrier')
            late = []
            for name, ins, cnt in extra.get(step, []):
                vm.room(cnt); late += ins; vm.add(name or 'part', cnt)
            if s4 == 2 and s < 9: late += a_step(s, VA)
            front = reads((s4 + 1) & 3, buf ^ 1) if step < 39 else []
            gaps(e, mf(buf, step == 0), front, late, per=max(o.aper - 1, 3), late_from=(2 if s4 == 2 else 1))
    e.skip = ''
    if o.v1_late: issue('V1')
    e('s_nop 7'); e('s_nop 3')
    for j in range(3):
        for i in range(16): e.many(conv(i, ACC + 32 * j, ACC + 32 * j))
        for f in range(4): e(f'ds_write_b128 v{V_OST}, {vr(ACC+32*j+4*f,4)} offset:{8192*j + 1024*f}')
    e('s_waitcnt lgkmcnt(0)')
    issue('K3')
    issued = POS['K3']
    e(f's_lshr_b32 s{S_WC}, s2, 3')
    e(f's_mul_i32 s{S_KX}, s{S_WC}, 13')
    e(f's_lshr_b32 s{S_KX}, s{S_KX}, 6')
    vm.wait('pfa')
    e(f'v_mul_u32_u24 v{VW+2}, 1280, v{L}')
    vm_pg = [None]
    ld_own = f'buffer_load_dword v23, v22, {sr(S_WS,4)}, 0 offen sc1'
    T3 = Tail(e, o); T3.vm = vm
    T3.free = [1000 + r for r in range(32, 64, 4)]
    e.T3 = T3
    def shadow_mm(c, first):
        m = []
        af = (lambda off, n: hold3(c, off, n)) if c < 12 else (lambda off, n: vr(32 + off, n))
        for s4 in range(4):
            for nt in range(2):
                d = ar(16 * nt, 16)
                m.append(mfma(d, af(8 * s4 + 4 * nt, 4), reg4(T3.where[(0, c)][s4]), '0' if (first and s4 == 0) else d))
        return m
    ld_cnt = f'global_load_dword v23, v{VZ}, {sr(S_DBG,2)} sc1'
    ld_fl = f'buffer_load_dword v23, v{VP}, {sr(S_WS,4)}, 0 offen sc1'
    for k in range(32):
        wait_upto(POS[f'V{k}'])
        vm.stamp(o, 32 + k) if o.tickst == 1 else None
        e('s_barrier')
        vm.stamp(o, 32 + k) if o.tickst == 2 else None
        if k == (18 if o.t15 else 19):
            vm.room(1); e.many(flag(1)); vm.add('f1', 1)
        if o.pf_w and k in PF_TICKS:
            vm.room(1)
            e(f's_add_u32 s{S_T0}, s{S_KX}, {6 * PF_TICKS.index(k)}')
            e(f's_and_b32 s{S_T2}, s{S_T0}, 3')
            e(f's_lshl_b32 s{S_T2}, s{S_T2}, 4')
            e(f's_lshr_b32 s{S_T0}, s{S_T0}, 2')
            e(f's_add_u32 s{S_T0}, s{S_T0}, s{S_RHO}')
            e(f's_and_b32 s{S_T0}, s{S_T0}, 15')
            e(f's_add_u32 s{S_T0}, s{S_T0}, s{S_T2}')
            e(f's_mul_i32 s{S_T0}, s{S_T0}, {64*1280}')
            e(f's_add_u32 s{S_T0}, s{S_T0}, s{S_WOB}')
            e(f'buffer_load_dword v{VW+1}, v{VW+2}, {sr(S_WO,4)}, s{S_T0} offen {o.wo_flags}')
            vm.add('pft', 1)
        wper = 2 if o.w3 else 3
        wev = (k - 2) // wper if (k >= 2 and (k - 2) % wper == 0 and k <= 26) else None
        if wev:
            vm.wait(f'w{wev-1}')
            e.many(wo_reads(lambda off, n: hold3(wev - 1, off, n), V_WA, V_WA + 1, 0))
        if o.w3 and k == o.w3k - 1:
            e(f'v_and_b32 v22, 7, v{L}')
            e(f'v_lshlrev_b32 v22, 7, v22')
            e(f'v_readfirstlane_b32 s{S_T0}, v{VP}')
            e(f's_add_u32 s{S_T0}, s{S_T0}, {24*128}')
            e(f'v_add_u32 v22, s{S_T0}, v22')
            vm.room(1); e(ld_own); vm.add('po', 1)
        if o.lb and k == o.tagk + 1:
            e(f's_and_b32 s{S_T0}, s2, 7')
            e(f's_lshl_b32 s{S_T0}, s{S_T0}, 7')
            e(f's_add_u32 s{S_T0}, s{S_T0}, {WS_PROG}')
            e(f'v_and_b32 v33, 31, v{L}')
            e(f'v_lshlrev_b32 v33, 2, v33')
            e(f'v_add_u32 v33, s{S_T0}, v33')
            e(f's_lshr_b32 s{S_T2}, s2, 3')
            e(f's_lshl_b32 s{S_T2}, s{S_T2}, 2')
            e(f's_add_u32 s{S_T0}, s{S_T0}, s{S_T2}')
            e(f'v_mov_b32 v32, s{S_T0}')
            e(f's_mov_b32 s{S_WC}, 0')
            e(f's_mov_b32 s{S_KX}, 0')
        if o.lb and o.tagk + 1 <= k <= 28:
            vm.room(1)
            e(f's_add_u32 s{S_T0}, s{S_N}, {4 * k}')
            e(f'v_mov_b32 v35, s{S_T0}')
            e('s_mov_b64 exec, 1')
            e(f'buffer_store_dword v35, v32, {sr(S_WS,4)}, 0 offen {o.lb_st}')
            e('s_mov_b64 exec, -1')
            vm.add('ps', 1)
        if o.lb and vm_pg[0] is not None and vm_pg[0] + 1 == k:
            vm.wait('pg')
            e(f'v_subrev_u32 v34, s{S_N}, v34')
            if o.lb_t:
                e(f'v_cmp_ge_u32 vcc, {4 * (k - 2)}, v34')
                e(f's_bcnt1_i32_b32 s{S_KX}, vcc_lo')
            e(f'v_subrev_u32 v34, {4 * k}, v34')
            e(f'v_cmp_gt_u32 vcc, 64, v34')
            e(f's_bcnt1_i32_b32 s{S_WC}, vcc_lo')
        if k in (o.tagk, 28):
            vm.room(1); e(ld_cnt if k == o.tagk else ld_fl); vm.add('pl', 1)
        if k == 30 and not o.w3:
            tail_setup(e, o)
            vm.room(4 * o.nearly); e.many(e.early); vm.add('early', 4 * o.nearly)
        sh = []
        if o.w3 and o.w3k < k <= o.w3k + 6: sh = [2 * (k - o.w3k - 1), 2 * (k - o.w3k - 1) + 1]
        if o.w3 and k == o.w3k + 7: sh = [12]
        first = POS[f'K{k+1}']
        lk = o.look if o.look_k0 <= k < o.look_k1 else o.look_lo
        if k >= 28: lk = 7 if first + o.look_lo >= POS['V31'] else lk
        lim = min(first + lk, first + 7, POS['T6'])
        if k == 31: lim = POS['T6']
        if o.tsched == 1 and k in (29, 30): lim = min(lim, POS['T1'] + (k - 29))
        if o.tsched == 2 and k < 31: lim = min(lim, POS['V31'])
        if o.tsched == 3 and k == 29: lim = min(lim, POS['V31'])
        done_sh = False
        def do_shadow(fill):
            if sh == [12]:
                vm.wait('w12')
                e.many(wo_reads(lambda off, n: vr(32 + off, n), V_WA, V_WA + 1, 0))
                e('s_waitcnt lgkmcnt(0)')
            elif wev: e('s_waitcnt lgkmcnt(0)')
            for c in sh: vm.wait(f'o0_{c}')
            m = []
            for c in sh: m += shadow_mm(c, c == 0)
            gaps(e, m, fill(), per=3)
            for c in sh: T3.free += T3.where[(0, c)]
            vm.room(8); e.many(T3.pump(2))
        while issued < lim:
            issued += 1
            if o.lb and o.tagk + 1 <= k < 27 and issued == lim - 1 + o.lb_pos:
                vm.room(17)
                e(f'buffer_load_dword v34, v33, {sr(S_WS,4)}, 0 offen {o.lb_ld}')
                vm.add('pg', 1); vm_pg[0] = k
            if sh and issued == lim and issue_l(SEQ[issued]):
                def fill():
                    vm.room(16); vm.add(SEQ[issued], 16)
                    return issue_l(SEQ[issued])
                do_shadow(fill); done_sh = True
            elif o.gran < 16 and SEQ[issued][0] in 'KV' and k < o.thr_end and issue_l(SEQ[issued]):
                ins = issue_l(SEQ[issued]); ng = o.gran // 4
                for q in range(0, 4, ng):
                    vm.room(o.gran)
                    e.many(ins[(3 + 6 * q if q else 0):3 + 6 * (q + ng)])
                    vm.add(SEQ[issued] if q + ng == 4 else 'part', o.gran)
                    if q + ng == 4: break
                    if o.lb and o.tagk + 2 <= k:
                        while vm.out() > o.lb_hi: vm.wait(vm.q[0][0])
                        e(f's_cmp_ge_u32 s{S_WC}, {o.lb}')
                        e(f's_cbranch_scc1 L_deep{issued}_{q}')
                        e(f's_waitcnt vmcnt({o.thr})')
                        e.lab(f'L_deep{issued}_{q}')
                    else:
                        while vm.out() > o.thr: vm.wait(vm.q[0][0])
            else:
                issue(SEQ[issued])
            if o.lb and o.tagk + 2 <= k < o.thr_end:
                while vm.out() > o.lb_hi: vm.wait(vm.q[0][0])
                e(f's_cmp_ge_u32 s{S_WC}, {o.lb}')
                e(f's_cbranch_scc1 L_deep{issued}')
                e(f's_waitcnt vmcnt({o.thr})')
                if o.lb_t:
                    e(f's_cmp_lt_u32 s{S_KX}, {o.lb_t}')
                    e(f's_cbranch_scc1 L_deep{issued}')
                    e(f's_waitcnt vmcnt({o.lb_lo})')
                e.lab(f'L_deep{issued}')
            else:
                while vm.out() > o.thr + (8 if done_sh else 0) and k < o.thr_end: vm.wait(vm.q[0][0])
        if sh and not done_sh: do_shadow(lambda: [])
        if o.w3 and k == o.w3k:
            vm.wait('po')
            e(f's_add_u32 s{S_T3}, s{S_N}, 1')
            poll(e, o, 'r1o', ld_own, ['v_and_b32 v23, -3, v23', f'v_cmp_eq_u32 vcc, s{S_T3}, v23'])
            tail_setup(e, o)
            T3.todo = [(0, c) for c in range(16)]
            vm.room(8); e.many(T3.pump(2))
        if k == o.tagk:
            vm.wait('pl')
            poll(e, o, 'tag', ld_cnt, ['v_cmp_ne_u32 vcc, 0, v23'])
            e(f'v_readfirstlane_b32 s{S_N}, v23')
        if k == 28:
            vm.wait('pl')
            e(f's_add_u32 s{S_T3}, s{S_N}, 1')
            poll(e, o, 'r1', ld_fl, ['v_and_b32 v23, -3, v23', f'v_cmp_eq_u32 vcc, s{S_T3}, v23'])
        if wev is not None:
            e('s_waitcnt lgkmcnt(0)')
            own_w(wev)
    e('s_barrier')
    e.many(flag(3))
    e('s_waitcnt vmcnt(1)')
    vm.q = []

def a_addr(e, VA, VB, xl):
    L = V_LANE
    e(f'v_lshrrev_b32 v{V_T0}, 5, v{L}')
    e(f'v_bfe_u32 v{V_T1}, v{L}, 2, 2')
    e(f'v_lshl_add_u32 v{V_T2}, v{V_T0}, 3, v{V_T1}')
    e(f'v_lshlrev_b32 v{V_T2}, 8, v{V_T2}')
    e(f'v_lshl_add_u32 v{V_T2}, v{V_T1}, 6, v{V_T2}')
    e(f'v_bfe_u32 v{V_T3}, v{L}, 4, 1')
    e(f'v_lshl_add_u32 v{V_T2}, v{V_T3}, 5, v{V_T2}')
    e(f'v_and_b32 v{V_T3}, 1, v{L}')
    e(f'v_lshl_add_u32 v{V_T2}, v{V_T3}, 4, v{V_T2}')
    e(f'v_bfe_u32 v{V_T3}, v{L}, 1, 1')
    e(f'v_lshl_add_u32 v{V_T2}, v{V_T3}, 3, v{V_T2}')
    for t in range(4):
        e(f'v_xor_b32 v{VA+t}, {64*t}, v{V_T2}')
        e(f'v_add_u32 v{VA+t}, {reg_w(0)}, v{VA+t}')
    e(f'v_and_b32 v{V_T1}, 31, v{L}')
    e(f'v_bfe_u32 v{V_T2}, v{L}, 1, 3')
    e(f'v_xor_b32 v{V_T2}, v{V_T2}, v{V_T0}')
    e(f'v_lshlrev_b32 v{V_T2}, 4, v{V_T2}')
    e(f'v_lshl_add_u32 v{V_T2}, v{V_T1}, 7, v{V_T2}')
    if xl is not None:
        e(f's_add_u32 s{S_T0}, s{xl}, {reg_x(0)}')
    for s4 in range(4):
        e(f'v_xor_b32 v{VB+s4}, {32*s4}, v{V_T2}')
        e(f'v_add_u32 v{VB+s4}, s{S_T0}, v{VB+s4}' if xl is not None else f'v_add_u32 v{VB+s4}, {reg_x(0)}, v{VB+s4}')

def a_step(s, VA):
    r = []
    for i in range(8):
        d = reg_w(s + 1) - reg_w(s) if i < 4 else reg_x(s + 1) - reg_x(s)
        r.append(f'v_add_u32 v{VA+i}, {d}, v{VA+i}' if d > 0 else f'v_subrev_u32 v{VA+i}, {-d}, v{VA+i}')
    return r

SCALE = hex(struct.unpack("<I", struct.pack("<f", math.log2(math.e) / math.sqrt(128.0)))[0])
def conv(i, src, dst):
    a = src + 2 * i
    return [f'v_mul_f32 v{a}, s{S_C}, v{a}', f'v_mul_f32 v{a+1}, s{S_C}, v{a+1}', f'v_cvt_pk_bf16_f32 v{dst+i}, v{a}, v{a+1}']

def phase_a(e, o):
    L = V_LANE
    VA, VB = V_Q, V_Q + 4
    AF = [V_SA, V_SB]; BF = [V_P, V_TMP]; ACC = [128, 192]
    e(f'v_lshrrev_b32 v{V_T0}, 3, v{L}')
    e(f'v_mul_u32_u24 v{V_T0}, 1280, v{V_T0}')
    e(f'v_lshrrev_b32 v{V_T1}, 4, v{L}')
    e(f'v_and_b32 v{V_T2}, 7, v{L}')
    e(f'v_xor_b32 v{V_T1}, v{V_T1}, v{V_T2}')
    for i in range(4):
        e(f'v_xor_b32 v{V_T2}, {4*(i&1)}, v{V_T1}')
        e(f'v_lshl_add_u32 v{V_DMA+i}, v{V_T2}, 4, v{V_T0}')
        if i: e(f'v_add_u32 v{V_DMA+i}, {(10240-1024)*i}, v{V_DMA+i}')
    e(f's_mul_i32 s{S_XB}, s{S_BL}, 3')
    e(f's_add_u32 s{S_XB}, s{S_XB}, s{S_WAVE}')
    e(f's_mul_i32 s{S_OB}, s{S_BR}, 24')
    e(f's_add_u32 s{S_OB}, s{S_OB}, s{S_XB}')
    e(f's_mul_i32 s{S_XB}, s{S_XB}, 40960')
    def xload(s, it):
        r = []
        if it == 0:
            r.append(f's_lshl_b32 s{S_T0}, s{S_KX}, 7')
            r.append(f's_add_u32 s{S_T0}, s{S_T0}, s{S_XB}')
        r.append(f's_add_u32 m0, s{S_XL}, {reg_x(s) + 4096*it}')
        r.append(f's_add_u32 s{S_T1}, s{S_T0}, {491520*it}')
        for i in range(4):
            r.append(f'buffer_load_dwordx4 v{V_DMA+i}, {sr(S_X,4)}, s{S_T1} offen offset:{1024*i} {o.w_flags} lds')
        if it == 1:
            if s + 1 < o.nun: r.append(f's_mov_b32 s{S_KX}, {s + 1}')
            elif s + 1 == o.nun: r.append(f's_mov_b32 s{S_KX}, s{S_KR}')
            else:
                r.append(f's_add_u32 s{S_KX}, s{S_KX}, 1')
                r.append(f's_cmp_eq_u32 s{S_KX}, 10')
                r.append(f's_cselect_b32 s{S_KX}, {o.nun}, s{S_KX}')
        return r
    if o.nun:
        for _ in range(2):
            e(f's_cmp_ge_u32 s{S_KX}, {10 - o.nun}')
            e(f's_cselect_b32 s{S_T0}, {10 - o.nun}, 0')
            e(f's_sub_u32 s{S_KX}, s{S_KX}, s{S_T0}')
        e(f's_add_u32 s{S_KR}, s{S_KX}, {o.nun}')
        e(f's_mov_b32 s{S_KX}, 0')
    VWQ = V_Q + 8
    e(f'v_lshrrev_b32 v{V_T0}, 4, v{L}')
    e(f'v_and_b32 v{V_T1}, 15, v{L}')
    e(f'v_lshlrev_b32 v{V_T3}, 2, v{V_T0}')
    e(f'v_xor_b32 v{V_T3}, v{V_T3}, v{V_T1}')
    e(f'v_lshlrev_b32 v{V_T2}, 13, v{V_T0}')
    e(f'v_lshl_add_u32 v{VWQ}, v{V_T3}, 4, v{V_T2}')
    for i in range(1, 4): e(f'v_add_u32 v{VWQ+i}, {(32768-1024)*i}, v{VWQ}')
    e(f's_mul_i32 s{S_KVB}, s{S_WAVE}, {5*32768}')
    e(f's_lshl_b32 s{S_T0}, s{S_H}, 8')
    e(f's_add_u32 s{S_KVB}, s{S_KVB}, s{S_T0}')
    e(f's_mul_i32 s{S_FL}, s{S_WAVE}, {5*1024}')
    def wqload(s):
        r = [f's_lshl_b32 s{S_T2}, s{S_KX}, 19', f's_add_u32 s{S_T2}, s{S_T2}, s{S_KVB}']
        for t in range(6):
            if t % 4 == 0:
                r.append(f's_add_u32 m0, s{S_FL}, {reg_w(s) + 1024*t}')
                r.append(f's_add_u32 s{S_T1}, s{S_T2}, {32768*t}')
            r.append(f'buffer_load_dwordx4 v{VWQ+(t&3)}, {sr(S_WQ,4)}, s{S_T1} offen offset:{1024*(t&3)} {o.w_flags} lds')
        return r
    srds(e, o)
    e.many(wqload(0)); e.many(xload(0, 0)); e.many(xload(0, 1))
    lazy(e, o, 2)
    no_task_wo(e)
    e(f's_lshl_b32 s{S_OB}, s{S_OB}, 5')
    e(f's_add_u32 s{S_OB}, s{S_OB}, s{S_H}')
    e(f's_lshl_b32 s{S_OB}, s{S_OB}, 13')
    a_addr(e, VA, VB, S_XL)
    e(f'v_and_b32 v{V_T2}, 15, v{L}')
    e(f'v_xor_b32 v{V_T2}, v{V_T2}, v{V_T0}')
    e(f'v_lshlrev_b32 v{V_T2}, 4, v{V_T2}')
    e(f'v_lshl_add_u32 v{V_T2}, v{V_T1}, 8, v{V_T2}')
    for s in range(8):
        e(f'v_xor_b32 v{V_KA+s}, {32*s}, v{V_T2}')
        e(f'v_add_u32 v{V_KA+s}, {slot_addr("K0")}, v{V_KA+s}')
    e(f'v_bfe_u32 v{V_T1}, v{L}, 2, 2')
    e(f'v_lshl_add_u32 v{V_T2}, v{V_T0}, 2, v{V_T1}')
    e(f'v_lshlrev_b32 v{V_T2}, 8, v{V_T2}')
    e(f'v_lshl_add_u32 v{V_T2}, v{V_T1}, 6, v{V_T2}')
    e(f'v_bfe_u32 v{V_T3}, v{L}, 4, 1')
    e(f'v_lshl_add_u32 v{V_T2}, v{V_T3}, 5, v{V_T2}')
    e(f'v_and_b32 v{V_T3}, 3, v{L}')
    e(f'v_lshl_add_u32 v{V_T2}, v{V_T3}, 3, v{V_T2}')
    e(f'v_add_u32 v{V_T2}, {RING}, v{V_T2}')
    for t in range(4): e(f'v_xor_b32 v{V_VA+t}, {64*t}, v{V_T2}')
    e(f'v_lshlrev_b32 v{V_OST}, 4, v{L}')
    e(f'v_add_u32 v{V_OST+3}, s{S_XL}, v{V_OST}')
    wo_lane_addr(e, V_WA)
    e(f'v_add_u32 v{V_WA}, s{S_XL}, v{V_WA}')
    e(f'v_xor_b32 v{V_WA+1}, 64, v{V_WA}')
    e(f's_mul_i32 s{S_WQB}, s{S_WAVE}, {1024*1280}')
    e(f's_add_u32 s{S_WQB}, s{S_WQB}, s{S_WOB}')
    e(f's_mov_b32 s{S_WC}, s{S_RHO}')
    e(f's_add_u32 s{S_WN}, s{S_WAVE}, 4')
    e(f's_mov_b32 s{S_EV}, 0')
    for i in range(64): e(f'v_accvgpr_write_b32 a{i}, 0')
    for i in range(16): e(f'v_mov_b32 v{V_NEGM+i}, 0')
    for i in range(4): e(f'v_mov_b32 v{V_L+i}, 0')
    e(f's_mov_b32 s{S_C}, {SCALE}')
    e(f's_mov_b32 s{S_THR}, 0xff800000')
    e(f's_mov_b32 s{S_FLOOR}, 0xff800000')
    e(f's_mov_b32 s{S_TICK}, 0')
    e(f's_mov_b32 s{S_KOFF}, {7*SLOT}')
    e(f's_mov_b32 s{S_VOFF}, 0')
    nst = 0
    lazy(e, o, 5)
    e.many(wqload(1)); e.many(xload(1, 0)); e.many(xload(1, 1))
    lazy(e, o, 6)
    def reads(s4, buf):
        r = [f'ds_read_b128 {vr(BF[buf]+4*it,4)}, v{VB+s4} offset:{4096*it}' for it in range(2)]
        for t in range(4):
            for u in range(2):
                r.append(f'ds_read_b64_tr_b16 {vr(AF[buf]+4*t+2*u,2)}, v{VA+t} offset:{(16*s4+4*u)*256}')
        return r
    def mf(buf, first):
        r = []
        for t in range(4):
            for it in range(2):
                if it == 1 and t >= 2: continue
                d = vr(ACC[it] + 16 * t, 16)
                r.append(mfma(d, vr(AF[buf] + 4 * t, 4), vr(BF[buf] + 4 * it, 4), '0' if first else d))
        return r
    e(f's_waitcnt vmcnt({14 + nst})')
    lazy(e, o, 7)
    e('s_barrier')
    lazy(e, o, 8)
    dmark(e, o, 0)
    e.many(reads(0, 0))
    e.skip = o.a_skip
    for s in range(10):
        for s4 in range(4):
            step = 4 * s + s4; buf = step & 1
            if step in (8, 16, 24, 32, 39): lazy(e, o, 9 + (8, 16, 24, 32, 39).index(step))
            if o.stamps and step in (8, 32): e(f's_memtime s[{LAZY[3 if step == 8 else 4]}:{LAZY[3 if step == 8 else 4]+1}]')
            m = mf(buf, step == 0)
            late = []
            e('s_waitcnt lgkmcnt(0)')
            if s4 == 3:
                if s < 9:
                    e(f's_waitcnt vmcnt({(14 if s + 2 <= 9 else 0) + (nst if s < 2 else 0)})')
                e('s_barrier')
                if s + 3 <= 9: late = wqload(s + 3)
            if s4 == 0 and s + 2 <= 9: late = (wqload(2) if s == 0 else []) + xload(s + 2, 0)
            if s4 == 1 and s + 2 <= 9: late = xload(s + 2, 1)
            if s4 == 2 and s < 9: late = a_step(s, VA)
            front = reads((s4 + 1) & 3, buf ^ 1) if step < 39 else []
            gaps(e, m, front, late, per=o.aper, late_from=(3 if o.aper == 3 and s4 == 2 else 2 if o.aper >= 4 else 1))
    e.skip = ''
    wo_voffs(e, V_DMA)
    e('s_nop 4')
    for i in range(16): e.many(conv(i, ACC[0], V_Q))
    e.many(k_reads(0))
    for i in range(16, 32): e.many(conv(i, ACC[0], V_Q))

def k_reads(half):
    return [f'ds_read_b128 {vr(V_KF+4*s,4)}, v{V_KA+s} offset:{8192*half}' for s in range(8)]
def v_reads(half):
    r = []
    for jj in range(2):
        for t in range(4):
            for u in range(2):
                r.append(f'ds_read_b64_tr_b16 {vr(V_VF+16*jj+4*t+2*u,2)}, v{V_VA+t} offset:{(32*half+16*jj+8*u)*256}')
    return r
def qk(S):
    return [mfma(vr(S, 16), vr(V_KF + 4 * s, 4), vr(V_Q + 4 * s, 4), vr(V_NEGM, 16) if s == 0 else vr(S, 16)) for s in range(8)]
def pv():
    return [mfma(ar(16 * t, 16), vr(V_VF + 16 * jj + 4 * t, 4), vr(V_P + 4 * jj, 4), ar(16 * t, 16)) for jj in range(2) for t in range(4)]
def maxes(S):
    r = [f'v_max3_f32 v{V_MX}, v{S}, v{S+1}, v{S+2}', f'v_max3_f32 v{V_D}, v{S+3}, v{S+4}, v{S+5}']
    r += [f'v_max3_f32 v{V_MX}, v{V_MX}, v{S+6}, v{S+7}', f'v_max3_f32 v{V_D}, v{V_D}, v{S+8}, v{S+9}']
    r += [f'v_max3_f32 v{V_MX}, v{V_MX}, v{S+10}, v{S+11}', f'v_max3_f32 v{V_D}, v{V_D}, v{S+12}, v{S+13}']
    r += [f'v_max3_f32 v{V_MX}, v{V_MX}, v{S+14}, v{S+15}', f'v_max_f32 v{V_MX}, v{V_MX}, v{V_D}']
    r += [f'v_cmp_lt_f32 vcc, s{S_THR}, v{V_MX}']
    return r

def half_tick(e, Snew, Sold, vhalf, khalf, extra_v=(), extra_k=(), extra_8=()):
    ex = lambda i: f'v_exp_f32 v{Sold+i}, v{Sold+i}'
    cv = lambda i: f'v_cvt_pk_bf16_f32 v{V_P+i}, v{Sold+2*i}, v{Sold+2*i+1}'
    ad = lambda i: f'v_add_f32 v{V_L+(i&3)}, v{V_L+(i&3)}, v{Sold+i}'
    m = qk(Snew) + pv()
    m[8] = ['s_waitcnt lgkmcnt(0)', m[8]]
    fill = v_reads(vhalf) + [ex(i) for i in range(8)] + list(extra_v) + [cv(i) for i in range(4)] + [ex(i) for i in range(8, 12)]
    fill += [('M', 8), ('A', 8)] + (k_reads(khalf) if khalf is not None else []) + [ex(i) for i in range(12, 16)] + [ad(0)]
    fill += [cv(i) for i in range(4, 8)] + [ad(1), ad(2)]
    rest = [ad(i) for i in range(3, 16)]
    x8 = list(extra_8)
    fill += [('M', 12)]
    while rest or x8:
        if rest: fill.append(rest.pop(0))
        fill += x8[:3]; x8 = x8[3:]
    fill += list(extra_k) + maxes(Snew)
    e('s_waitcnt lgkmcnt(0)')
    interleave(e, m, fill)

def last_half(e, Sold, extra=()):
    ex = lambda i: f'v_exp_f32 v{Sold+i}, v{Sold+i}'
    cv = lambda i: f'v_cvt_pk_bf16_f32 v{V_P+i}, v{Sold+2*i}, v{Sold+2*i+1}'
    ad = lambda i: f'v_add_f32 v{V_L+(i&3)}, v{V_L+(i&3)}, v{Sold+i}'
    e.many(v_reads(1))
    e.many(extra)
    e.many([ex(i) for i in range(8)] + [cv(i) for i in range(4)] + [ex(8), ex(9)])
    e('s_waitcnt lgkmcnt(0)')
    fill = [ex(i) for i in range(10, 16)] + [ad(0)] + [cv(i) for i in range(4, 8)] + [ad(1), ad(2), ('M', 4)] + [ad(i) for i in range(3, 16)]
    interleave(e, pv(), fill)

def rare(e, S, back):
    e('s_nop 7')
    e(f'v_mov_b32 v{V_T0}, v{V_MX}')
    e('s_nop 1')
    e(f'v_permlane32_swap_b32 v{V_T0}, v{V_MX}')
    e('s_nop 1')
    e(f'v_max_f32 v{V_D}, v{V_T0}, v{V_MX}')
    e(f'v_max_f32 v{V_D}, s{S_FLOOR}, v{V_D}')
    for i in range(16): e(f'v_sub_f32 v{S+i}, v{S+i}, v{V_D}')
    for i in range(16): e(f'v_sub_f32 v{V_NEGM+i}, v{V_NEGM+i}, v{V_D}')
    e(f's_cmp_lg_u32 s{S_FLOOR}, 0')
    e(f's_mov_b32 s{S_THR}, 0x41000000')
    e(f's_mov_b32 s{S_FLOOR}, 0')
    e(f's_cbranch_scc1 {back}')
    e(f'v_sub_f32 v{V_T0}, 0, v{V_D}')
    e(f'v_exp_f32 v{V_T0}, v{V_T0}')
    e('s_nop 0')
    for i in range(4): e(f'v_mul_f32 v{V_L+i}, v{V_L+i}, v{V_T0}')
    for i in range(0, 64, 4):
        for j in range(4): e(f'v_accvgpr_read_b32 v{V_TMP+j}, a{i+j}')
        for j in range(4): e(f'v_mul_f32 v{V_TMP+j}, v{V_TMP+j}, v{V_T0}')
        for j in range(4): e(f'v_accvgpr_write_b32 a{i+j}, v{V_TMP+j}')
    e('s_nop 1')
    e(f's_branch {back}')

def epilogue(e, o):
    e(f'v_add_f32 v{V_L}, v{V_L}, v{V_L+1}')
    e(f'v_add_f32 v{V_L+2}, v{V_L+2}, v{V_L+3}')
    e(f'v_add_f32 v{V_L}, v{V_L}, v{V_L+2}')
    e(f'v_mov_b32 v{V_T0}, v{V_L}')
    e('s_nop 1')
    e(f'v_permlane32_swap_b32 v{V_T0}, v{V_L}')
    e('s_nop 1')
    e(f'v_add_f32 v{V_L}, v{V_L}, v{V_T0}')
    e(f'v_rcp_f32 v{V_T0}, v{V_L}')
    e('s_nop 4')
    for f in range(8):
        t = V_VF + 8 * (f & 3)
        for j in range(8): e(f'v_accvgpr_read_b32 v{t+j}, a{8*f+j}')
        if o.pk:
            for j in range(0, 8, 2): e(f'v_pk_mul_f32 {vr(t+j,2)}, {vr(t+j,2)}, {vr(V_T0,2)} op_sel_hi:[1,0]')
        else:
            for j in range(8): e(f'v_mul_f32 v{t+j}, v{t+j}, v{V_T0}')
        d = V_TMP + 4 * (f & 1)
        for j in range(4): e(f'v_cvt_pk_bf16_f32 v{d+j}, v{t+2*j}, v{t+2*j+1}')
        if f == 4: e(f's_add_u32 s{S_OB}, s{S_OB}, 4096')
        e(f'buffer_store_dwordx4 {vr(d,4)}, v{V_OST}, {sr(S_WS,4)}, s{S_OB} offen offset:{1024*(f&3)} {o.ost_flags}')

def w_snippets(e, o, ret):
    e('s_waitcnt vmcnt(0)')
    def tree(lo, n):
        if n == 1:
            if lo == 0:
                for f in range(4): e(f'ds_read_b128 {vr(224+4*f,4)}, v{V_OST+3} offset:{1024*f}')
                if o.t15:
                    for i in range(16): e.many(conv(i, V_Q2, V_Q2))
            else:
                e.many(wo_reads(lambda off, nn: hold(lo - 1, off, nn), V_WA, V_WA + 1, 0))
            e('s_branch L_sn_done')
            return
        h = (n + 1) // 2
        e(f's_cmp_ge_u32 s{S_EV}, {lo+h}')
        e(f's_cbranch_scc1 L_sn_{lo+h}')
        tree(lo, h)
        e.lab(f'L_sn_{lo+h}')
        tree(lo + h, n - h)
    tree(0, 9)
    e.lab('L_sn_done')
    e(f's_add_u32 s{S_EV}, s{S_EV}, 1')
    e(f's_cmp_eq_u32 s{S_EV}, 9')
    e(f's_cselect_b32 s{S_WN}, 64, 3')
    if o.t15:
        e(f's_cmp_eq_u32 s{S_TICK}, 13')
        e(f's_cselect_b32 s{S_WN}, 4, s{S_WN}')
    e('s_waitcnt lgkmcnt(0)')
    e.many(wo_dma(o, 0, f's{S_XL}', 0, f's{S_WQB}', V_DMA, dyn=True))
    e(f's_branch {ret}')

def phase_b(e, o):
    lazy(e, o, 14)
    dmark(e, o, 1)
    lazy_dump(e, o, range(15))
    stamp(e, o, 1)
    e('s_waitcnt lgkmcnt(0)')
    e.many(qk(V_SA))
    e.many(k_reads(1))
    for s in range(8): e(f'v_add_u32 v{V_KA+s}, {SLOT}, v{V_KA+s}')
    e('s_nop 3')
    e.many(maxes(V_SA))
    e('s_branch L_rare_a')
    def adv(soff, tmp, base, n):
        r = [f's_add_u32 s{tmp}, s{soff}, {2*SLOT}', f's_and_b32 s{tmp}, s{tmp}, {8*SLOT-1}',
             f's_sub_u32 s{S_T3}, s{tmp}, s{soff}', f's_mov_b32 s{soff}, s{tmp}']
        r += [f'v_add_u32 v{base+i}, s{S_T3}, v{base+i}' for i in range(n)]
        return r
    e.lab('L_tick')
    e('s_waitcnt lgkmcnt(0)')
    e('s_barrier')
    e(f's_cmp_eq_u32 s{S_TICK}, 31')
    e('s_cbranch_scc1 L_last')
    half_tick(e, V_SB, V_SA, 0, 0)
    e('s_cbranch_vccnz L_rare_b')
    e.lab('L_back_b')
    e(f's_cmp_eq_u32 s{S_TICK}, 15')
    e('s_cbranch_scc1 L_switch')
    e.lab('L_back_sw')
    half_tick(e, V_SA, V_SB, 1, 1, extra_v=adv(S_VOFF, S_T0, V_VA, 4), extra_k=adv(S_KOFF, S_T1, V_KA, 8))
    e(f's_add_u32 s{S_TICK}, s{S_TICK}, 1')
    e(f's_sub_u32 s{S_WN}, s{S_WN}, 1')
    e(f's_cmp_eq_u32 s{S_WN}, 0')
    e('s_cbranch_scc1 L_snip')
    e.lab('L_snip_ret')
    e(f's_cmp_eq_u32 s{S_TICK}, 16')
    e('s_cbranch_scc1 L_epi1')
    e('s_cbranch_vccz L_tick')
    e.lab('L_rare_a')
    rare(e, V_SA, 'L_tick')
    e.lab('L_snip')
    w_snippets(e, o, 'L_snip_ret')
    e.lab('L_rare_b')
    rare(e, V_SB, 'L_back_b')
    e.lab('L_switch')
    for i in range(16): e(f'v_mov_b32 v{V_Q+16+i}, v{224+i}')
    for i in range(16): e.many([f'v_mov_b32 v{V_Q+i}, v{V_Q2+i}'] if o.t15 else conv(i, V_Q2, V_Q))
    for i in range(16): e(f'v_mov_b32 v{V_NEGM+i}, 0')
    e('s_nop 1')
    e('s_branch L_back_sw')
    e.lab('L_epi1')
    epilogue(e, o)
    e(f's_add_u32 s{S_OB}, s{S_OB}, {RND - 4096}')
    if o.t15:
        for t in range(4): e(mfma(ar(16 * t, 16), vr(V_NEGM, 4), vr(V_NEGM, 4), '0'))
    else:
        for i in range(64): e(f'v_accvgpr_write_b32 a{i}, 0')
    for i in range(4): e(f'v_mov_b32 v{V_L+i}, 0')
    e(f's_mov_b32 s{S_FLOOR}, 0xff800000')
    stamp(e, o, 2)
    dmark(e, o, 2)
    e('s_branch L_rare_a')
    e.lab('L_rare_l')
    rare(e, V_SB, 'L_back_l')
    e.lab('L_last')
    T = tail_pre(e, o)
    e.early = T.pump(min(o.nearly, 4))
    half_tick(e, V_SB, V_SA, 0, None, extra_8=e.early)
    e('s_cbranch_vccnz L_rare_l')
    e.lab('L_back_l')
    x = T.pump(max(o.nearly - 4, 0))
    e.early += x
    last_half(e, V_SB, x)
    epilogue(e, o)
    return T

def tail_setup(e, o):
    e(f's_mul_i32 s{S_O1}, s{S_BR}, 24')
    e(f's_add_u32 s{S_O1}, s{S_O1}, s{S_QT}')
    e(f's_lshl_b32 s{S_O1}, s{S_O1}, 2')
    e(f's_add_u32 s{S_O1}, s{S_O1}, s{S_WAVE}')
    e(f's_lshl_b32 s{S_O1}, s{S_O1}, 16')

POOL = list(range(96, 160, 4)) + [32, 36, 40, 44, 16, 20, 24, 80, 84] + list(range(160, 192, 4)) + [88, 92]
ORDER1 = [0, 1, 2, 8, 3, 9, 4, 10, 5, 11, 6, 12, 7]
ORDER2 = [8, 0, 9, 1, 10, 2, 11, 3, 12, 4, 13, 14, 15, 5, 6, 7]

class Tail:
    def __init__(self, e, o):
        self.e, self.o = e, o
        self.vm = Vm(e)
        self.free = list(POOL)
        self.where = {}
        self.todo = []
    def oload(self, rnd, c):
        e = self.e
        regs = [self.free.pop(0) for _ in range(4)]
        self.where[(rnd, c)] = regs
        r = [f's_add_u32 s{S_T1}, s{S_RHO}, {c}', f's_and_b32 s{S_T1}, s{S_T1}, 15', f's_lshl_b32 s{S_T1}, s{S_T1}, 12',
             f's_add_u32 s{S_T1}, s{S_T1}, s{S_O1}']
        if rnd and not self.o.t_o1: r.append(f's_add_u32 s{S_T1}, s{S_T1}, {RND}')
        if rnd and self.o.t_noo: return []
        for s4 in range(4):
            r.append(f'buffer_load_dwordx4 {reg4(regs[s4])}, v{V_OST}, {sr(S_WS,4)}, s{S_T1} offen offset:{1024*s4} {self.o.old_flags}')
        self.vm.add(f'o{rnd}_{c}', 4)
        return r
    def pump(self, lim=99):
        r = []
        while self.todo and len(self.free) >= 4 and self.vm.out() + 4 <= 61 and lim > 0:
            lim -= 1
            r += self.oload(*self.todo.pop(0))
        return r

def tail_pre(e, o):
    T = Tail(e, o)
    tail_setup(e, o)
    T.todo = [(0, c) for c in ORDER1]
    return T

def tail(e, o, T, w3=False):
    L = V_LANE
    vm = T.vm
    sfx = '3' if w3 else ''
    RA = 6
    TEMP = 48
    e(f's_cmp_eq_u32 s{S_NT}, 15')
    e('s_cbranch_scc1 L_exit')
    e(f's_mul_i32 s{S_WQB}, s{S_WAVE}, {1024*1280}')
    e(f's_add_u32 s{S_WQB}, s{S_WQB}, s{S_WOB}')
    if w3:
        T.free += [12, 16, 20, 24]
        e('s_barrier')
    e.many(T.pump())
    if not w3:
        vm.room(8)
        e.many(wo_dma(o, 12, f's{S_XL}', 4 * 32768, f's{S_WQB}', V_DMA))
        vm.add('late', 8)
    for b in range(3):
        e(f'v_add_u32 v{RA+2*b}, {65536*b}, v{V_WA}')
        e(f'v_add_u32 v{RA+2*b+1}, {65536*b}, v{V_WA+1}')
    e(f's_lshl_b32 s{S_T0}, s{S_BR}, 2')
    e(f's_add_u32 s{S_T0}, s{S_T0}, s{S_QB}')
    e(f's_lshl_b32 s{S_T0}, s{S_T0}, 2')
    e(f's_add_u32 s{S_T0}, s{S_T0}, s{S_WAVE}')
    e(f's_lshl_b32 s{S_T0}, s{S_T0}, 10')
    e(f's_add_u32 s{S_T0}, s{S_T0}, {WS_FLAGS}')
    e(f'v_and_b32 v31, 7, v{L}')
    e(f'v_lshlrev_b32 v31, 7, v31')
    e(f'v_add_u32 v31, s{S_T0}, v31')
    e('v_mov_b32 v0, 0')
    piece = {8: 0, 9: 1, 10: 2, 11: 3, 12: 4, 13: 0, 14: 1, 15: 2}
    if w3: piece = {12: 0, 13: 1, 14: 2, 15: 3}
    tmp_of = {}
    def rd(c, dstf):
        j = piece[c]
        return wo_reads(dstf, RA + 2 * (j >> 1), RA + 2 * (j >> 1) + 1, 32768 * (j & 1))
    def afrag(c):
        if c < 8: return lambda off, n: hold(c, off, n)
        if c >= 13: return lambda off, n: hold(c - 13, off, n)
        return lambda off, n: vr(TEMP + off, n)
    first = {0: True, 1: True}
    def mms(c, rnds):
        m = []
        for s4 in range(4):
            for rnd in rnds:
                for nt in range(2):
                    d = ar(32 * rnd + 16 * nt, 16)
                    m.append(mfma(d, afrag(c)(8 * s4 + 4 * nt, 4), reg4(T.where[(rnd, c)][s4]), '0' if (first[rnd] and s4 == 0) else d))
        for rnd in rnds: first[rnd] = False
        return m
    def wdma(c):
        if o.t_now: return []
        vm.add(f'w{c}', 8)
        return wo_dma(o, c, f's{S_XL}', 32768 * piece[c], f's{S_WQB}', V_DMA)
    ld_fl = f'buffer_load_dword v{V_T2}, v31, {sr(S_WS,4)}, 0 offen sc1'
    WA, RDA, VOUT = 48, 56, 60
    S_OO = S_KOFF
    fin = [f'v_and_b32 v{V_T0}, 31, v{L}', f'v_lshrrev_b32 v{V_T1}, 5, v{L}', f'v_and_b32 v{V_T3}, 15, v{L}',
           f'v_xor_b32 v{V_T1}, v{V_T1}, v{V_T3}', f'v_lshlrev_b32 v{V_T1}, 4, v{V_T1}',
           f'v_lshl_add_u32 v{V_T0}, v{V_T0}, 8, v{V_T1}', f's_add_u32 s{S_T3}, s{S_XL}, {3*32768}',
           f'v_add_u32 v{V_T0}, s{S_T3}, v{V_T0}']
    fin += [f'v_xor_b32 v{WA+k}, {32*k}, v{V_T0}' for k in range(8)]
    fin2 = [f's_lshr_b32 s{S_VOFF}, s{S_WAVE}, 1', f's_and_b32 s{S_THR}, s{S_WAVE}, 1',
            f's_lshl_b32 s{S_T2}, s{S_VOFF}, 15', f's_lshl_b32 s{S_T3}, s{S_THR}, 12',
            f's_add_u32 s{S_T2}, s{S_T2}, s{S_T3}', f's_add_u32 s{S_T2}, s{S_T2}, {3*32768}',
            f'v_lshrrev_b32 v{V_T1}, 3, v{L}', f'v_and_b32 v{V_T3}, 7, v{L}', f'v_lshlrev_b32 v{V_T0}, 1, v{V_T3}',
            f'v_xor_b32 v{V_T0}, v{V_T0}, v{V_T1}', f'v_lshlrev_b32 v{V_T0}, 4, v{V_T0}',
            f'v_lshl_add_u32 v{V_T0}, v{V_T1}, 8, v{V_T0}', f'v_add_u32 v{RDA}, s{S_T2}, v{V_T0}',
            f'v_xor_b32 v{RDA+1}, 16, v{RDA}', f'v_xor_b32 v{RDA+2}, {2048+128}, v{RDA}', f'v_xor_b32 v{RDA+3}, 16, v{RDA+2}',
            f's_lshl_b32 s{S_OO}, s{S_QT}, 5', f's_mul_i32 s{S_VOFF}, s{S_VOFF}, 384', f's_add_u32 s{S_OO}, s{S_OO}, s{S_VOFF}',
            f's_lshl_b32 s{S_THR}, s{S_THR}, 4', f's_add_u32 s{S_OO}, s{S_OO}, s{S_THR}', f's_mul_i32 s{S_OO}, s{S_OO}, 2560',
            f's_mul_i32 s{S_T3}, s{S_BR}, 1280', f's_add_u32 s{S_OO}, s{S_OO}, s{S_T3}', f's_add_u32 s{S_OO}, s{S_OO}, s{S_WOB}',
            f'v_mul_u32_u24 v{V_T1}, 2560, v{V_T1}', f'v_lshl_add_u32 v{VOUT}, v{V_T3}, 4, v{V_T1}']
    def pwrite(rnd):
        return [f'ds_write_b128 v{WA+4*nt+g}, {ar(32*rnd+16*nt+4*g,4)} offset:{rnd*32768}' for nt in range(2) for g in range(4)]
    if w3:
        ld_tag = f'global_load_dword v30, v0, {sr(S_DBG,2)} sc1'
        first[0] = False
        def mm3(c, rnd, af):
            m = []
            for s4 in range(4):
                for nt in range(2):
                    d = ar(32 * rnd + 16 * nt, 16)
                    m.append(mfma(d, af(8 * s4 + 4 * nt, 4), reg4(T.where[(rnd, c)][s4]), '0' if (first[rnd] and s4 == 0) else d))
            first[rnd] = False
            return m
        t1 = lambda off, n: vr(32 + off, n)
        for c in (13, 14, 15):
            e.many(rd(c, t1))
            if c == 15:
                vm.room(2); e(ld_tag); e(ld_fl); vm.add('pl', 2)
            e('s_waitcnt lgkmcnt(0)')
            vm.wait(f'o0_{c}')
            gaps(e, mm3(c, 0, t1), T.pump(), per=2)
            T.free += T.where[(0, c)]
        assert not T.todo
        vm.wait('pl')
        e('v_add_u32 v30, 3, v30')
        poll(e, o, 'r23', ld_fl, [f'v_cmp_eq_u32 vcc, v30, v{V_T2}'])
        T.free = [48, 52, 56, 60, 12, 16, 20, 24, 32, 36, 40, 44]
        order = [8, 9, 15, 10, 14, 11, 13, 6, 12, 7, 0, 1, 2, 3, 4, 5]
        T.todo = [(1, c) for c in order]
        e.many(T.pump())
        t2 = lambda off, n: hold3(8, off, n)
        for i, c in enumerate(order):
            nxt = order[i + 1] if i + 1 < len(order) else None
            if c >= 12: e('s_waitcnt lgkmcnt(0)')
            vm.wait(f'o1_{c}')
            front = rd(nxt, t2) if (nxt is not None and nxt >= 12) else []
            late = []
            if c == 10: late += fin
            if c == 11: late += pwrite(0)
            if c == 0: late += fin2
            m = mm3(c, 1, t2 if c >= 12 else (lambda off, n: hold3(c, off, n)))
            late += T.pump()
            gaps(e, m, front, late, per=3, late_from=0 if not front else 2)
            if c != 8: T.free += T.where[(1, c)]
            if c in (9, 10, 11): T.free += list(range(64 + 32 * (c - 8), 64 + 32 * (c - 7), 4))
            if c in (6, 7): T.free += list(range(192 + 32 * (c - 6), 192 + 32 * (c - 5), 4))
        assert not T.todo
        e('s_nop 7'); e('s_nop 3')
        e.many(pwrite(1))
        e('s_branch L_red')
        return
    seq = [(0, c) for c in ORDER1] + [(1, c) for c in ORDER2]
    todo2 = []
    for c in ORDER2: todo2 += ([(0, c)] if (c >= 13 and not o.park) else []) + [(1, c)]
    for i, (rnd, c) in enumerate(seq):
        rnds = [0, 1] if c >= 13 else [rnd]
        nxt = seq[i + 1][1] if i + 1 < len(seq) else None
        if i == o.chk - o.pl_at:
            vm.room(2); e(f'global_load_dword v30, v0, {sr(S_DBG,2)} sc1'); e(ld_fl); vm.add('pl', 2)
            if o.park: T.todo += [(0, c) for c in (13, 14, 15)]
        if i == o.chk:
            vm.stamp(o, 5)
            vm.wait('pl')
            e('v_add_u32 v30, 3, v30')
            poll(e, o, 'r2', ld_fl, [f'v_cmp_eq_u32 vcc, v30, v{V_T2}'])
            T.todo += todo2
            e.many(T.pump())
            vm.stamp(o, 6)
        if c >= 8: e('s_waitcnt lgkmcnt(0)')
        for r_ in rnds: vm.wait(f'o{r_}_{c}')
        front = []; late = []
        if nxt is not None and nxt >= 8:
            assert not (8 <= c < 13 and nxt < 13)
            if rnd == 0 and nxt == 8 and i < 5: e('s_barrier')
            if nxt == 12 and vm.has('late'): vm.wait('late')
            if nxt >= 13: vm.wait(f'w{nxt}')
            front = rd(nxt, afrag(nxt))
        if rnd == 1 and c in (8, 9, 10):
            vm.room(8)
            late += wdma(c + 5)
        if rnd == 1 and c == 15: late += fin
        if rnd == 1 and c == 6: late += pwrite(0)
        if rnd == 1 and c == 5: late += fin2
        m = mms(c, rnds)
        late += T.pump()
        gaps(e, m, front, late, per=3, late_from=0 if not front else 2)
        for r_ in rnds: T.free += T.where[(r_, c)]
    assert not T.todo
    vm.stamp(o, 7)
    e('s_nop 7'); e('s_nop 3')
    e.many(pwrite(1))
    e.lab('L_red')
    e('s_waitcnt lgkmcnt(0)')
    e('s_barrier')
    for i in range(2):
        for p in range(4):
            for hh in range(2):
                e(f'ds_read_b128 {vr(96+32*i+8*p+4*hh,4)}, v{RDA+2*i+hh} offset:{8192*p}')
    for i in range(2):
        b = 96 + 32 * i
        e(f's_waitcnt lgkmcnt({8*(1-i)})')
        for j in range(8):
            e(f'v_add_f32 v{b+j}, v{b+j}, v{b+8+j}')
            e(f'v_add_f32 v{b+16+j}, v{b+16+j}, v{b+24+j}')
        for j in range(8): e(f'v_add_f32 v{b+j}, v{b+j}, v{b+16+j}')
        for j in range(4): e(f'v_cvt_pk_bf16_f32 v{b+8+j}, v{b+2*j}, v{b+2*j+1}')
        if i: e(f's_add_u32 s{S_OO}, s{S_OO}, {8*2560}')
        e(f'buffer_store_dwordx4 {vr(b+8,4)}, v{VOUT}, {sr(S_OUT,4)}, s{S_OO} offen {o.out_flags}')
    ddump(e, o, 5)
    if o.stamps:
        e('s_waitcnt vmcnt(0)')
        stamp(e, o, 14)

KD = '''.amdhsa_kernel {n}
  .amdhsa_next_free_vgpr 512
  .amdhsa_next_free_sgpr 102
  .amdhsa_accum_offset 256
  .amdhsa_group_segment_fixed_size 0
  .amdhsa_kernarg_size 104
  .amdhsa_user_sgpr_count 2
  .amdhsa_user_sgpr_kernarg_segment_ptr 1
  .amdhsa_system_sgpr_workgroup_id_x 1
.end_amdhsa_kernel
'''

HEADER = """
"""

def gen(o):
    e = Em()
    e.jit = o.jit
    k1 = NAME + '_kernel'
    for l in HEADER.strip().split('\n'): e.raw(l)
    e.raw('; @launch grid=(256,1,1) block=(256,1,1) lds=163840')
    e.raw('.amdgcn_target "amdgcn-amd-amdhsa--gfx950"')
    e.raw('.text')
    e.raw(f'.globl {k1}\n.p2align 8\n.type {k1},@function')
    e.lab(k1)
    prologue(e, o)
    e(f's_cmp_eq_u32 s{S_WAVE}, 3')
    e('s_cbranch_scc1 L_loader')
    phase_a(e, o)
    T = phase_b(e, o)
    n0 = T.vm.out()
    pre = T.pump(o.npre)
    npre = T.vm.out() - n0
    e.many(pre)
    e(f's_waitcnt vmcnt({npre}) lgkmcnt(0)')
    e('s_barrier')
    dmark(e, o, 3)
    if o.stamps:
        T.vm.stamp(o, 3)
    e('s_branch L_join')
    e.lab('L_loader')
    loader(e, o)
    if o.w3:
        if o.stamps: e.T3.vm.stamp(o, 3)
        tail(e, o, e.T3, w3=True)
    else:
        e.many(pre)
        if o.stamps: stamp(e, o, 3)
    e.lab('L_join')
    tail(e, o, T)
    e.lab('L_exit')
    e('s_endpgm')
    e.lab('L_end')
    e.raw('.section .rodata,"a"\n.p2align 6')
    e.raw(KD.format(n=k1))
    return e.text()

if __name__ == '__main__':
    o = Opt()
    out = sys.argv[1]
    for a in sys.argv[2:]:
        k, v = a.split('=', 1); v = v.replace('+', ' ')
        cur = getattr(o, k)
        setattr(o, k, (v == '1') if isinstance(cur, bool) else int(v) if isinstance(cur, int) else v)
    open(out, 'w').write(gen(o))
```

```python
import sys, math, struct
NAME = 'concat_heads__mha_block_cached__mha_block_cached__near_ridge'

class Opt:
    stamps = False
    kv_flags = 'nt'
    w_flags = ''
    wo_flags = ''
    ost_flags = 'sc1'
    old_flags = 'sc1'
    look = 7
    rot = 0
    arot = 3
    nun = 1
    tlbq = False
    tickst = 0
    no_w = False
    no_w3 = False
    t_now = False
    t_o1 = False
    t_noo = False
    c8late = True
    pf_kv = 0
    pf_wo = True
    pf_a = False
    pf_w = False
    pf_delay = 0
    pf_s0 = 2
    pf_mid = 0
    pf_flags = ''
    pf_tail = 0
    bal = 0
    bal_lag = 2
    bal_n = 1
    bal_sl = 0
    tagk = 1
    thr_end = 28
    k_first = False
    k_s0 = 0
    tlb = True
    aper = 4
    out_flags = ''
    tsched = 1
    park = True
    maxout = 61
    r1k = 28
    nodup = False
    al_t = -1
    al_l = -1
    al_j = -1
    al_a = -1
    pf2 = False
    pf2_p0 = 1
    pf2_s0 = 0
    pf2_gap = 2
    pf2_pre = 1
    wper = 3
    r1pack = False
    gran = 4
    tlbd = True
    tlbf = 0
    r6k = 9
    r6e = 3
    r6 = False
    a_skip = ''
    dbgt = False
    jit = 0
    light = False
    lb = 4
    lb_hi = 42
    lb_pos = 0
    lb_t = 0
    lb_lo = 8
    lb_ld = 'sc1'
    lb_st = ''
    pfc = False
    w3 = False
    w3k = 23
    pl_at = 3
    fav = 0
    t15 = True
    nearly = 0
    npre = 3
    pk = True
    v1_late = True
    look_lo = 5
    look_k0 = 0
    look_k1 = 0
    krot = False
    early = True
    chk = 7
    bal_k1 = 30
    psleep = 4
    thr = 20
    blk = 0

WS_FLAGS = 12582912
WS_PROG = WS_FLAGS + 32768
WS_STAMP = 13631488
SLOT = 16384
STAGE = 40960
RND = 12 * 32 * 8192

S_X, S_K, S_V, S_WQ, S_WO, S_OUT, S_WS = 4, 8, 12, 16, 20, 24, 28
S_DBG = 32
S_WAVE, S_BR, S_H, S_BL = 34, 35, 36, 37
S_T0, S_T1, S_T2, S_T3 = 38, 39, 40, 41
S_KX, S_XB, S_XL, S_KVB, S_TICK = 42, 43, 44, 45, 46
S_KOFF, S_VOFF, S_THR, S_FLOOR, S_C, S_OB, S_WQB = 47, 48, 49, 50, 51, 52, 53
S_ST, S_STB, S_QT, S_NT = 54, 56, 57, 58
S_SAVE = 60
S_WN, S_FL = 62, 63
S_EV = 59
S_KARG = 64
S_WOB, S_O1, S_QB, S_CNT, S_RHO, S_WC, S_N, S_KR = 90, 91, 92, 93, 94, 95, 96, 97

V_LANE = 1
V_T0, V_T1, V_T2, V_T3 = 2, 3, 4, 5
V_L, V_MX, V_D = 6, 10, 11
V_DMA = 12
V_KA, V_VA, V_OST, V_WA = 16, 24, 28, 29
V_NEGM = 32
V_SA, V_SB, V_P, V_TMP = 48, 64, 80, 88
V_Q, V_KF, V_VF, V_Q2 = 96, 128, 160, 192

class Em:
    def __init__(self): self.L = []
    def __call__(self, s): self.L.append('    ' + s)
    def lab(self, s): self.L.append(s + ':')
    def raw(self, s): self.L.append(s)
    def many(self, l):
        for x in l: self(x)
    def text(self):
        if getattr(self, 'jit', 0):
            import random
            rnd = random.Random(self.jit); out = []; n = 0
            for l in self.L:
                out.append(l)
                t = l.strip()
                if (t == 's_barrier' or t.startswith('s_waitcnt vmcnt')) and rnd.random() < 0.35:
                    n += 1
                    bit = rnd.choice([0, 1, 2, 3, 4, 5])
                    src = rnd.choice(['s2', f's{S_WAVE}'])
                    if src != 's2': bit &= 1
                    out += [f'    s_cselect_b32 s3, 1, 0', f'    s_bitcmp1_b32 {src}, {bit}', f'    s_cbranch_scc0 L_j{n}', f'    s_sleep {rnd.choice([1, 4, 16, 40])}', f'L_j{n}:', '    s_cmp_eq_u32 s3, 1']
            self.L = out
        return '\n'.join(self.L) + '\n'

def vr(b, n=1): return f'v{b}' if n == 1 else f'v[{b}:{b+n-1}]'
def ar(b, n=1): return f'a{b}' if n == 1 else f'a[{b}:{b+n-1}]'
def sr(b, n=1): return f's{b}' if n == 1 else f's[{b}:{b+n-1}]'
def mfma(d, a, b, c): return f'v_mfma_f32_32x32x16_bf16 {d}, {a}, {b}, {c}'
def hold(ci, off, n):
    return ar(64 + 32 * ci + off, n) if ci < 6 else vr(192 + 32 * (ci - 6) + off, n)

def hold3(ci, off, n):
    return hold(ci, off, n) if ci < 8 else vr(64 + 32 * (ci - 8) + off, n)
def reg4(r): return ar(r - 1000, 4) if r >= 1000 else vr(r, 4)

def cost(i):
    if i.startswith('v_exp') or i.startswith('v_rcp'): return 8
    if i.startswith('s_'): return 2
    return 4

def interleave(e, mf, fill):
    total = sum(cost(f) for f in fill if not isinstance(f, tuple))
    per = total / len(mf)
    fi = 0; acc = 0.0
    deadline = {}; items = []
    for f in fill:
        if isinstance(f, tuple):
            if f[0] == 'M': deadline[f[1]] = len(items)
            else: items.append(f)
        else: items.append(f)
    for k, m in enumerate(mf):
        need = deadline.get(k, 0)
        while fi < need:
            it = items[fi]; fi += 1
            if isinstance(it, tuple):
                assert it[1] < k, (it, k)
                continue
            e(it); acc += cost(it)
        if isinstance(m, (list, tuple)): e.many(m)
        else: e(m)
        target = per * (k + 1)
        while fi < len(items) and (acc < target - 1.0 or k == len(mf) - 1):
            it = items[fi]
            if isinstance(it, tuple):
                if it[1] > k: break
                fi += 1; continue
            e(it); acc += cost(it); fi += 1
    assert fi == len(items)

def gaps(e, mf, front, late=(), per=2, late_from=5):
    g = [[] for _ in mf]
    for i, f in enumerate(front): g[min(i // per, len(mf) - 1)].append(f)
    n = len(mf) - late_from
    for i, f in enumerate(late): g[late_from + (i * n) // len(late)].append(f)
    for m, x in zip(mf, g):
        sk = getattr(e, 'skip', '')
        if 'm' not in sk: e(m)
        e.many([y for y in x if not (('r' in sk and y.startswith('ds_read')) or ('d' in sk and y.startswith('buffer_load_dwordx4 v') and ('s[4:7]' in y or 's[16:19]' in y)))])

def stamp(e, o, idx, clk=False):
    if not o.stamps: return 0
    e(f's_memtime {sr(S_ST,2)}' if clk else f's_memrealtime {sr(S_ST,2)}')
    e('s_waitcnt lgkmcnt(0)')
    e(f'v_mov_b32 v{V_T0}, s{S_ST}')
    e(f'v_mov_b32 v{V_T1}, s{S_STB}')
    e('s_mov_b64 exec, 1')
    e(f'buffer_store_dword v{V_T0}, v{V_T1}, {sr(S_WS,4)}, 0 offen offset:{4*idx}')
    e('s_mov_b64 exec, -1')
    return 1

LAZY = {0: 98, 1: 100}
for _i in range(2, 15): LAZY[_i] = 64 + 2 * (_i - 2)
def lazy(e, o, i):
    if o.stamps: e(f's_memrealtime s[{LAZY[i]}:{LAZY[i]+1}]')
def lazy_dump(e, o, ids):
    if not o.stamps: return 0
    e('s_waitcnt lgkmcnt(0)')
    e(f'v_mov_b32 v{V_T1}, s{S_STB}')
    e('s_mov_b64 exec, 1')
    for i in ids:
        e(f'v_mov_b32 v{V_T0}, s{LAZY[i]}')
        e(f'buffer_store_dword v{V_T0}, v{V_T1}, {sr(S_WS,4)}, 0 offen offset:{16 if i == 0 else 4*(16+i)}')
        e('s_nop 1')
    e('s_mov_b64 exec, -1')
    return len(ids)

def dmark(e, o, i):
    if o.dbgt: e(f's_memrealtime s[{64+2*i}:{65+2*i}]')
def ddump(e, o, n):
    if not o.dbgt: return
    e('s_waitcnt vmcnt(0)')
    dmark(e, o, n - 1)
    e('s_waitcnt lgkmcnt(0)')
    e(f's_cmp_lg_u32 s{S_WAVE}, 0')
    e('s_cbranch_scc1 L_exit')
    e('s_mov_b32 s3, 0')
    for j, w in enumerate((5, 130, 203)):
        e(f's_cmp_eq_u32 s2, {w}')
        e(f's_cselect_b32 s3, {4 + 20 * j}, s3')
    e('s_cmp_eq_u32 s3, 0')
    e('s_cbranch_scc1 L_exit')
    e('v_mov_b32 v2, s3')
    e('s_mov_b64 exec, 1')
    for i in range(n):
        e(f's_sub_u32 s{64+2*i}, s{64+2*i}, s98')
        e(f'v_mov_b32 v3, s{64+2*i}')
        e(f'global_store_dword v2, v3, {sr(S_DBG,2)} offset:{4*i}')
        e('s_nop 1')
    e('s_mov_b64 exec, -1')

def align(e, ph):
    if ph < 0: return
    e.raw('.p2align 6')
    for _ in range(ph // 4): e('s_nop 0')

class Vm:
    def __init__(self, e): self.e = e; self.q = []
    def out(self): return sum(c for _, c in self.q)
    def has(self, name): return name in [n for n, _ in self.q]
    def wait(self, name):
        names = [n for n, _ in self.q]
        if name not in names: return
        i = names.index(name)
        rest = sum(c for _, c in self.q[i + 1:])
        assert rest <= 63
        self.e(f's_waitcnt vmcnt({rest})')
        self.q = self.q[i + 1:]
    def room(self, c):
        while self.out() + c > 61: self.wait(self.q[0][0])
    def add(self, name, c):
        self.q.append((name, c)); assert self.out() <= 63, self.q
    def stamp(self, o, idx, clk=False):
        if o.stamps:
            self.room(1); stamp(self.e, o, idx, clk); self.add(f'st{idx}', 1)

def prologue(e, o):
    if o.stamps or o.dbgt or o.light: e('s_memrealtime s[98:99]')
    e('s_cmp_ge_u32 s2, 256')
    e('s_cbranch_scc1 L_exit')
    e(f's_load_dwordx16 {sr(S_KARG,16)}, s[0:1], 0')
    e(f's_load_dwordx8 {sr(S_KARG+16,8)}, s[0:1], 64')
    e(f's_load_dwordx2 {sr(S_KARG+24,2)}, s[0:1], 96')
    e(f'v_lshrrev_b32 v{V_T0}, 6, v0')
    e(f'v_and_b32 v{V_LANE}, 63, v0')
    e(f'v_readfirstlane_b32 s{S_WAVE}, v{V_T0}')
    e(f's_and_b32 s{S_T0}, s2, 7')
    e(f's_lshr_b32 s{S_T1}, s2, 3')
    e(f's_lshr_b32 s{S_BR}, s{S_T0}, 2')
    e(f's_and_b32 s{S_T2}, s{S_T0}, 3')
    e(f's_lshl_b32 s{S_H}, s{S_T2}, 3')
    e(f's_and_b32 s{S_T3}, s{S_T1}, 7')
    e(f's_add_u32 s{S_H}, s{S_H}, s{S_T3}')
    e(f's_lshr_b32 s{S_BL}, s{S_T1}, 3')
    e(f's_mul_i32 s{S_KX}, s{S_BL}, 5')
    e(f's_add_u32 s{S_KX}, s{S_KX}, 1')
    e(f's_lshr_b32 s{S_KX}, s{S_KX}, 1')
    if o.arot in (2, 3): e(f's_mov_b32 s{S_KX}, 0')
    if o.arot == 4: e(f's_lshr_b32 s{S_T3}, s{S_T3}, 2')
    if o.arot in (0, 3, 4): e(f's_add_u32 s{S_KX}, s{S_KX}, s{S_T3}')
    e(f's_cmp_ge_u32 s{S_KX}, 10')
    e(f's_cselect_b32 s{S_T3}, 10, 0')
    e(f's_sub_u32 s{S_KX}, s{S_KX}, s{S_T3}')
    if o.blk == 0:
        e(f's_mul_i32 s{S_QT}, s{S_T1}, 13')
        e(f's_lshr_b32 s{S_QT}, s{S_QT}, 6')
        e(f's_mul_i32 s{S_T3}, s{S_QT}, 5')
        e(f's_sub_u32 s{S_NT}, s{S_T1}, s{S_T3}')
        e(f's_and_b32 s{S_T3}, s{S_T2}, 1')
        e(f's_mul_i32 s{S_T3}, s{S_T3}, 5')
        e(f's_add_u32 s{S_NT}, s{S_NT}, s{S_T3}')
        e(f's_lshr_b32 s{S_T3}, s{S_T2}, 1')
        e(f's_mul_i32 s{S_T3}, s{S_T3}, 6')
        e(f's_add_u32 s{S_QT}, s{S_QT}, s{S_T3}')
    elif o.blk == 1:
        e(f's_mul_i32 s{S_QT}, s{S_T1}, 26')
        e(f's_lshr_b32 s{S_QT}, s{S_QT}, 8')
        e(f's_mul_i32 s{S_T3}, s{S_QT}, 10')
        e(f's_sub_u32 s{S_NT}, s{S_T1}, s{S_T3}')
        e(f's_mul_i32 s{S_T3}, s{S_T2}, 3')
        e(f's_add_u32 s{S_QT}, s{S_QT}, s{S_T3}')
    else:
        e(f's_mul_i32 s{S_T3}, s{S_T2}, 30')
        e(f's_add_u32 s{S_T3}, s{S_T3}, s{S_T1}')
        e(f's_mul_i32 s{S_NT}, s{S_T3}, 171')
        e(f's_lshr_b32 s{S_NT}, s{S_NT}, 11')
        e(f's_mul_i32 s{S_QT}, s{S_NT}, 12')
        e(f's_sub_u32 s{S_QT}, s{S_T3}, s{S_QT}')
    e(f's_cmp_ge_u32 s{S_T1}, 30')
    e(f's_cselect_b32 s{S_NT}, 15, s{S_NT}')
    e(f's_cselect_b32 s{S_QT}, 0, s{S_QT}')
    e(f's_mul_i32 s{S_QB}, s{S_QT}, 11')
    e(f's_lshr_b32 s{S_QB}, s{S_QB}, 5')
    e(f's_lshl_b32 s{S_STB}, s2, 2')
    e(f's_add_u32 s{S_STB}, s{S_STB}, s{S_WAVE}')
    e(f's_lshl_b32 s{S_STB}, s{S_STB}, 8')
    e(f's_add_u32 s{S_STB}, s{S_STB}, {WS_STAMP}')
    e(f's_lshl_b32 s{S_XL}, s{S_WAVE}, 13')
    e(f's_lshl_b32 s{S_WOB}, s{S_NT}, 7')
    e(f's_cmp_ge_u32 s{S_NT}, 5')
    e(f's_cselect_b32 s{S_T0}, {5 if o.blk == 0 else 0}, 0')
    e(f's_sub_u32 s{S_RHO}, s{S_NT}, s{S_T0}')
    e(f's_mul_i32 s{S_RHO}, s{S_RHO}, {o.rot}')
    e(f's_and_b32 s{S_RHO}, s{S_RHO}, 15')
    for srd, size in ((S_X, 983040), (S_K, 1 << 26), (S_V, 1 << 26), (S_WQ, 5242880), (S_WO, 5242880), (S_OUT, 1966080), (S_WS, 16777216)):
        e(f's_mov_b32 s{srd+2}, {size}')
        e(f's_mov_b32 s{srd+3}, 0x20000')

def srds(e, o):
    e('s_waitcnt lgkmcnt(0)')
    e(f's_cmp_eq_u32 s{S_BR}, 0')
    for srd, i in ((S_WQ, 3), (S_X, 0), (S_K, 1), (S_V, 2), (S_WO, 4)):
        e(f's_cselect_b64 {sr(srd,2)}, {sr(S_KARG+2*i,2)}, {sr(S_KARG+10+2*i,2)}')
    e(f's_mov_b64 {sr(S_OUT,2)}, {sr(S_KARG+20,2)}')
    e(f's_mov_b64 {sr(S_WS,2)}, {sr(S_KARG+24,2)}')
    e(f's_mov_b64 {sr(S_DBG,2)}, {sr(S_KARG+22,2)}')
    for srd in (S_WQ, S_X, S_K, S_V, S_WO, S_OUT, S_WS):
        e(f's_and_b32 s{srd+1}, s{srd+1}, 0xffff')
    lazy(e, o, 1)

def no_task_wo(e):
    e(f's_cmp_eq_u32 s{S_NT}, 15')
    e(f's_cselect_b32 s{S_WO+2}, 0, s{S_WO+2}')

class C:
    NR = 8; RING = 32768; OFF = 6; J0 = 1; SCR = 3; TL = 'T6'
    W = (32768, 73728, 114688); X = (49152, 90112, 0)
    PIECE = {8: 0, 9: 1, 10: 2, 11: 3, 12: 4, 13: 0, 14: 1, 15: 2}
    TCH = (9, 10, 11)
def plan6():
    C.NR = 6; C.RING = 65536; C.OFF = 4; C.J0 = 2; C.SCR = 2; C.TL = 'T4'
    C.W = (65536, 106496, 24576); C.X = (81920, 0, 40960)
    C.PIECE = {8: 0, 9: 1, 10: 4, 11: 2, 12: 3, 13: 0, 14: 1, 15: 4}
    C.TCH = (10, 11)
PF_TICKS = [0, 1, 6, 10, 15, 19, 22, 24, 25, 26, 27]
def reg_w(s): return C.W[(s + 2) % 3]
def reg_x(s): return C.X[(s + 2) % 3]

SEQ = ['K0']
for k in range(32): SEQ += [f'K{k+1}', f'V{k}']
SEQ += [f'T{i}' for i in range(8)]
POS = {n: i for i, n in enumerate(SEQ)}
def slot(name): return (C.OFF + POS[name]) % C.NR
def slot_addr(name): return C.RING + slot(name) * SLOT

def wo_dma(o, c, ldsbase_s, ldsoff, wob, vw, dyn=False):
    r = []
    if o.no_w and dyn: return ['s_nop 0']
    if dyn:
        r += [f's_mul_i32 s{S_T0}, s{S_WC}, {64*1280}', f's_add_u32 s{S_WC}, s{S_WC}, 1', f's_and_b32 s{S_WC}, s{S_WC}, 15']
    else:
        r += [f's_add_u32 s{S_T0}, s{S_RHO}, {c}', f's_and_b32 s{S_T0}, s{S_T0}, 15', f's_mul_i32 s{S_T0}, s{S_T0}, {64*1280}']
    r.append(f's_add_u32 s{S_T0}, s{S_T0}, {wob}')
    for g_ in range(2):
        r.append(f's_add_u32 m0, {ldsbase_s}, {ldsoff + 4096*g_}' if ldsbase_s else f's_mov_b32 m0, {ldsoff + 4096*g_}')
        r.append(f's_add_u32 s{S_T1}, s{S_T0}, {32*g_*1280}')
        for i in range(4):
            r.append(f'buffer_load_dwordx4 v{vw+i}, {sr(S_WO,4)}, s{S_T1} offen offset:{1024*i} {o.wo_flags} lds')
    return r

def wo_voffs(e, dst):
    L = V_LANE
    e(f'v_lshrrev_b32 v{V_T0}, 3, v{L}')
    e(f'v_mul_u32_u24 v{V_T0}, 1280, v{V_T0}')
    e(f'v_bfe_u32 v{V_T1}, v{L}, 4, 1')
    e(f'v_lshlrev_b32 v{V_T1}, 2, v{V_T1}')
    e(f'v_and_b32 v{V_T2}, 7, v{L}')
    e(f'v_xor_b32 v{V_T1}, v{V_T1}, v{V_T2}')
    e(f'v_lshl_add_u32 v{dst}, v{V_T1}, 4, v{V_T0}')
    for i in range(1, 4): e(f'v_add_u32 v{dst+i}, {(10240-1024)*i}, v{dst}')

def wo_lane_addr(e, dst):
    L = V_LANE
    e(f'v_lshrrev_b32 v{V_T0}, 5, v{L}')
    e(f'v_bfe_u32 v{V_T1}, v{L}, 2, 2')
    e(f'v_lshl_add_u32 v{dst}, v{V_T0}, 2, v{V_T1}')
    e(f'v_lshlrev_b32 v{dst}, 7, v{dst}')
    e(f'v_bfe_u32 v{V_T3}, v{L}, 3, 1')
    e(f'v_lshl_add_u32 v{dst}, v{V_T3}, 6, v{dst}')
    e(f'v_bfe_u32 v{V_T3}, v{L}, 4, 1')
    e(f'v_lshl_add_u32 v{dst}, v{V_T3}, 5, v{dst}')
    e(f'v_and_b32 v{V_T3}, 3, v{L}')
    e(f'v_lshl_add_u32 v{dst}, v{V_T3}, 3, v{dst}')

def wo_reads(dstf, a0, a1, off):
    r = []
    for s4 in range(4):
        for nt in range(2):
            for u in range(2):
                r.append(f'ds_read_b64_tr_b16 {dstf(8*s4+4*nt+2*u,2)}, v{(a0,a1)[nt]} offset:{off+(16*s4+8*u)*128}')
    return r

def poll(e, o, tag, load, test):
    e.many(test)
    e('s_cmp_eq_u64 vcc, -1')
    e(f's_cbranch_scc1 L_polled_{tag}')
    e(f's_mov_b32 s{S_CNT}, 0x20000')
    e.lab(f'L_poll_{tag}')
    e(f's_sleep {o.psleep}')
    e(load)
    e('s_waitcnt vmcnt(0)')
    e.many(test)
    e('s_cmp_eq_u64 vcc, -1')
    e(f's_cbranch_scc1 L_polled_{tag}')
    e(f's_sub_u32 s{S_CNT}, s{S_CNT}, 1')
    e(f's_cmp_lg_u32 s{S_CNT}, 0')
    e(f's_cbranch_scc1 L_poll_{tag}')
    e.lab(f'L_polled_{tag}')

def loader(e, o):
    L = V_LANE
    VK, VV, VW, VWO, VF, VP, VZ = 24, 16, 20, 12, 17, 18, 19
    VA, VB = 96, 100
    AF = [48, 56]; BF = [64, 80]; ACC = 128
    vm = Vm(e)
    e(f'v_lshrrev_b32 v{V_T0}, 4, v{L}')
    e(f'v_and_b32 v{V_T1}, 15, v{L}')
    e(f'v_lshlrev_b32 v{V_T3}, 2, v{V_T0}')
    e(f'v_xor_b32 v{V_T3}, v{V_T3}, v{V_T1}')
    e(f'v_lshlrev_b32 v{V_T2}, 8, v{V_T0}')
    e(f'v_lshl_add_u32 v{VV}, v{V_T3}, 4, v{V_T2}')
    for i in range(4):
        e(f'v_add_u32 v{V_T3}, {4*i}, v{V_T0}')
        e(f'v_xor_b32 v{V_T3}, v{V_T3}, v{V_T1}')
        e(f'v_lshl_add_u32 v{VK+i}, v{V_T3}, 4, v{V_T2}')
    e(f's_lshl_b32 s{S_KVB}, s{S_BL}, 5')
    e(f's_add_u32 s{S_KVB}, s{S_KVB}, s{S_H}')
    e(f's_lshl_b32 s{S_KVB}, s{S_KVB}, 18')
    e(f's_and_b32 s{S_KR}, s2, 7')
    e(f's_lshl_b32 s{S_KR}, s{S_KR}, 1')
    e(f's_lshr_b32 s{S_T0}, s2, 3')
    e(f's_add_u32 s{S_KR}, s{S_KR}, s{S_T0}')
    e(f's_and_b32 s{S_KR}, s{S_KR}, {15 if o.krot else 0}')
    e(f's_lshl_b32 s{S_KR}, s{S_KR}, 14')
    e(f'v_lshlrev_b32 v{VW}, 19, v{L}')
    e(f'v_lshlrev_b32 v{VW+1}, 25, v{L}')
    e(f'v_mov_b32 v{VZ}, 0')
    e(f'v_lshlrev_b32 v{VW+3}, 18, v{L}')
    e(f's_lshl_b32 s{S_T0}, s{S_BR}, 2')
    e(f's_add_u32 s{S_FL}, s{S_T0}, s{S_BL}')
    e(f's_lshl_b32 s{S_FL}, s{S_FL}, 5')
    e(f's_add_u32 s{S_FL}, s{S_FL}, s{S_H}')
    e(f's_lshl_b32 s{S_FL}, s{S_FL}, 7')
    e(f's_add_u32 s{S_FL}, s{S_FL}, {WS_FLAGS}')
    e(f's_mul_i32 s{S_T2}, s{S_BR}, 8')
    e(f's_add_u32 s{S_T2}, s{S_T2}, s{S_BL}')
    e(f's_mul_i32 s{S_T2}, s{S_T2}, 96')
    e(f's_add_u32 s{S_T2}, s{S_T2}, s{S_H}')
    e(f's_lshl_b32 s{S_T2}, s{S_T2}, 13')
    if o.pfc:
        e(f's_getpc_b64 {sr(S_ST,2)}')
        e.lab('L_pc')
        e(f's_sub_u32 s{S_ST}, s{S_ST}, L_pc-{NAME}_kernel')
        e(f's_subb_u32 s{S_ST+1}, s{S_ST+1}, 0')
        e(f's_lshr_b32 s{S_T0}, s2, 3')
        e(f's_lshl_b32 s{S_T0}, s{S_T0}, 11')
        e(f'v_lshlrev_b32 v{V_T0}, 7, v{L}')
        e(f'v_add_u32 v{V_T0}, s{S_T0}, v{V_T0}')
        e(f'v_min_u32 v{V_T0}, L_end-{NAME}_kernel-4, v{V_T0}')
        e('s_mov_b64 exec, 0xffff')
        e(f'global_load_dword v{VW+2}, v{V_T0}, {sr(S_ST,2)}')
        e('s_mov_b64 exec, -1')
        vm.add('pfc', 1)
    srds(e, o)
    if o.tlb:
        e('s_mov_b64 exec, 3')
        e(f'buffer_load_dword v{VW+2}, v{VW+1}, {sr(S_K,4)}, s{S_KVB} offen')
        e(f'buffer_load_dword v{VW+2}, v{VW+1}, {sr(S_V,4)}, s{S_KVB} offen')
        e('s_mov_b64 exec, 0x3ffffff')
        if o.tlbq: e(f'buffer_load_dword v{VW+2}, v{VW}, {sr(S_WQ,4)}, 0 offen')
        e(f'buffer_load_dword v{VW+2}, v{VW}, {sr(S_WO,4)}, 0 offen')
        e(f'buffer_load_dword v{VW+2}, v{VW}, {sr(S_OUT,4)}, 0 offen')
        e('s_mov_b64 exec, 0x7007')
        e(f'buffer_load_dword v{VW+2}, v{VW+3}, {sr(S_WS,4)}, s{S_T2} offen')
        e('s_mov_b64 exec, 1')
        e(f'buffer_load_dword v{VW+2}, v{VZ}, {sr(S_WS,4)}, s{S_FL} offen')
        if o.tlbd: e(f'global_load_dword v{VW+2}, v{VZ}, {sr(S_DBG,2)} offset:128')
        if o.tlbf:
            e('s_mov_b64 exec, -1')
            e(f'v_and_b32 v{V_T0}, 3, v{L}')
            e(f'v_lshlrev_b32 v{V_T0}, 16, v{V_T0}')
            e(f'v_lshrrev_b32 v{V_T1}, 2, v{L}')
            e(f'v_lshl_add_u32 v{V_T0}, v{V_T1}, 25, v{V_T0}')
            e('s_mov_b64 exec, 0xee')
            e(f'buffer_load_dword v{VW+2}, v{V_T0}, {sr(S_K,4)}, s{S_KVB} offen')
            e(f'buffer_load_dword v{VW+2}, v{V_T0}, {sr(S_V,4)}, s{S_KVB} offen')
        e('s_mov_b64 exec, -1')
        vm.add('tlb', 6 + o.tlbq + o.tlbd + 2 * o.tlbf)
    def issue_l(name):
        kind, t = name[0], int(name[1:])
        r = []
        if kind == 'K' and t > 31: return r
        base = slot_addr(name)
        if kind in 'KV':
            off = (t // 16) * (4 * 32 * 262144)
            r.append(f's_add_u32 s{S_T0}, s{S_KR}, {(t % 16) * SLOT}')
            r.append(f's_and_b32 s{S_T0}, s{S_T0}, {16 * SLOT - 1}')
            r.append(f's_add_u32 s{S_T0}, s{S_T0}, s{S_KVB}')
            for g in range(4):
                r.append(f's_mov_b32 m0, {base + 4096*g}')
                r.append(f's_add_u32 s{S_T1}, s{S_T0}, {off + 4096*g}')
                for i in range(4):
                    v = VK + i if kind == 'K' else VV
                    r.append(f'buffer_load_dwordx4 v{v}, {sr(S_K if kind == "K" else S_V,4)}, s{S_T1} offen offset:{1024*i} {o.kv_flags} lds')
        else:
            rr = slot(name); j, hi = C.J0 + (rr >> 1), rr & 1
            if j == C.PIECE[12]: return r
            for p in range(2):
                r.append(f's_add_u32 s{S_T2}, s{S_WOB}, {1024*1280*(2*hi+p)}')
                r += wo_dma(o, [c for c in C.TCH if C.PIECE[c] == j][0], None, base + 8192 * p, f's{S_T2}', VWO)
        return r
    def issue(name):
        r = issue_l(name)
        if r:
            vm.room(16); e.many(r); vm.add(name, 16)
    def own_w(c, j=0):
        vm.room(8)
        e(f's_add_u32 s{S_T2}, s{S_WOB}, {1024*1280*3}')
        e.many(wo_dma(o, c, None, 3 * 8192 + 32768 * j, f's{S_T2}', VWO))
        vm.add(f'w{c}', 8)
    def wait_upto(n):
        for m in range(n, -1, -1):
            if vm.has(SEQ[m]): vm.wait(SEQ[m]); return
    def flag(val):
        pre = []; so = S_FL
        if val == 1 and o.r1pack:
            so = S_T2
            pre = [f's_sub_u32 s{S_T2}, s{S_FL}, {WS_FLAGS}', f's_lshr_b32 s{S_T2}, s{S_T2}, 5', f's_add_u32 s{S_T2}, s{S_T2}, {WS_PROG + 4096}']
        return pre + [f's_add_u32 s{S_T0}, s{S_N}, {val}', f'v_mov_b32 v{V_T2}, s{S_T0}', 's_mov_b64 exec, 1',
                f'buffer_store_dword v{V_T2}, v{VZ}, {sr(S_WS,4)}, s{so} offen sc1', 's_mov_b64 exec, -1']
    if o.pf_a:
        if o.pf_delay: e(f's_sleep {o.pf_delay}')
        e(f'v_lshrrev_b32 v{VW}, 1, v{L}')
        e(f'v_lshlrev_b32 v{VW}, 13, v{VW}')
        e(f'v_and_b32 v{VW+1}, 1, v{L}')
        e(f'v_lshl_add_u32 v{VW}, v{VW+1}, 7, v{VW}')
        e(f's_mul_i32 s{S_T0}, s{S_BL}, {160*8192}')
        e(f's_lshl_b32 s{S_T1}, s{S_H}, 8')
        e(f's_add_u32 s{S_T0}, s{S_T0}, s{S_T1}')
        for i in range(5):
            e(f's_add_u32 s{S_T1}, s{S_T0}, {32*i*8192}')
            e(f'buffer_load_dword v{VW+2}, v{VW}, {sr(S_WQ,4)}, s{S_T1} offen {o.w_flags}')
        e(f'v_lshlrev_b32 v{VW+1}, 7, v{L}')
        e(f's_and_b32 s{S_T0}, s{S_H}, 7')
        e(f's_mul_i32 s{S_T0}, s{S_T0}, 15360')
        e(f's_mul_i32 s{S_T1}, s{S_BL}, 122880')
        e(f's_add_u32 s{S_T0}, s{S_T0}, s{S_T1}')
        for i in range(4):
            e(f's_add_u32 s{S_T1}, s{S_T0}, {(i >> 1) * 491520 + (i & 1) * 8192}')
            e(f'buffer_load_dword v{VW+2}, v{VW+1}, {sr(S_X,4)}, s{S_T1} offen {o.w_flags}')
        vm.add('pfa', 9)
    if o.k_first: issue('K0'); issue('K1')
    e('s_cmp_lg_u32 s2, 0')
    e('s_cbranch_scc1 L_notag')
    e(f's_memrealtime {sr(S_ST,2)}')
    e('s_waitcnt lgkmcnt(0)')
    e(f's_mul_i32 s{S_ST+1}, s{S_ST+1}, 0x9e3779b1')
    e(f's_add_u32 s{S_ST}, s{S_ST}, s{S_ST+1}')
    e(f's_or_b32 s{S_ST}, s{S_ST}, 4')
    e(f's_and_b32 s{S_ST}, s{S_ST}, -4')
    e(f'v_mov_b32 v{V_T2}, s{S_ST}')
    e('s_mov_b64 exec, 1')
    e(f'global_store_dword v{VZ}, v{V_T2}, {sr(S_DBG,2)} sc1')
    e('s_mov_b64 exec, -1')
    e.lab('L_notag')
    e(f's_lshl_b32 s{S_T0}, s{S_BR}, 2')
    e(f's_add_u32 s{S_T0}, s{S_T0}, s{S_QB}')
    e(f's_lshl_b32 s{S_T0}, s{S_T0}, 12')
    e(f's_add_u32 s{S_T0}, s{S_T0}, {WS_FLAGS}')
    e(f'v_and_b32 v{VP}, 31, v{L}')
    e(f'v_lshlrev_b32 v{VP}, 7, v{VP}')
    e(f'v_add_u32 v{VP}, s{S_T0}, v{VP}')
    if o.r1pack:
        e(f'v_subrev_u32 v{VP}, {WS_FLAGS}, v{VP}')
        e(f'v_lshrrev_b32 v{VP}, 5, v{VP}')
        e(f'v_add_u32 v{VP}, {WS_PROG + 4096}, v{VP}')
    a_addr(e, VA, VB, None)
    wo_voffs(e, VWO)
    wo_lane_addr(e, V_WA)
    e(f'v_lshlrev_b32 v{VW}, 7, v{L}')
    e(f'v_add_u32 v{V_WA}, {3*8192}, v{V_WA}')
    e(f'v_xor_b32 v{V_WA+1}, 64, v{V_WA}')
    e(f'v_lshlrev_b32 v{V_OST}, 4, v{L}')
    e(f's_mov_b32 s{S_C}, {SCALE}')
    pf = []
    for n in range(2, 2 + o.pf_kv):
        kind, t = SEQ[n][0], int(SEQ[n][1:])
        for hh in range(2):
            pf.append([f's_add_u32 s{S_T1}, s{S_KVB}, {t*SLOT + hh*8192}',
                       f'buffer_load_dword v{VW+1}, v{VW}, {sr(S_K if kind == "K" else S_V,4)}, s{S_T1} offen {o.pf_flags}'])
    if o.pf_wo:
        e(f's_lshl_b32 s{S_T2}, s{S_H}, 2')
        e(f's_add_u32 s{S_T2}, s{S_T2}, s{S_BL}')
        e(f's_mul_i32 s{S_T2}, s{S_T2}, 40960')
        for i in range(5):
            pf.append([f's_add_u32 s{S_T1}, s{S_T2}, {i*8192}',
                       f'buffer_load_dword v{VW+1}, v{VW}, {sr(S_WO,4)}, s{S_T1} offen {o.pf_flags}'])
    def reads(s4, buf):
        r = []
        for t in (2, 3):
            for u in range(2):
                r.append(f'ds_read_b64_tr_b16 {vr(AF[buf]+4*(t-2)+2*u,2)}, v{VA+t} offset:{(16*s4+4*u)*256}')
        r += [f'ds_read_b128 {vr(BF[buf]+4*j,4)}, v{VB+s4} offset:{8192*j + 4096}' for j in range(3)]
        return r
    def mf(buf, first):
        r = []
        for j in range(3):
            for t in range(2):
                d = vr(ACC + 32 * j + 16 * t, 16)
                r.append(mfma(d, vr(AF[buf] + 4 * t, 4), vr(BF[buf] + 4 * j, 4), '0' if first else d))
        return r
    pf2 = []
    if o.pf2:
        e(f'v_and_b32 v36, 31, v{L}')
        e(f'v_lshrrev_b32 v36, 1, v36')
        e(f'v_lshrrev_b32 v37, 5, v{L}')
        e(f'v_lshl_add_u32 v36, v37, 6, v36')
        e(f'v_lshlrev_b32 v36, 13, v36')
        e(f'v_and_b32 v37, 1, v{L}')
        e(f'v_lshl_add_u32 v36, v37, 7, v36')
        e(f'v_lshrrev_b32 v38, 1, v{L}')
        e(f'v_min_u32 v38, 23, v38')
        e(f'v_mul_u32_u24 v38, 1280, v38')
        e(f'v_lshl_add_u32 v38, v37, 7, v38')
        e(f's_lshl_b32 s{S_XB}, s{S_BL}, 17')
        e(f's_lshl_b32 s{S_T0}, s{S_H}, 8')
        e(f's_add_u32 s{S_XB}, s{S_XB}, s{S_T0}')
        e(f's_bfe_u32 s{S_T0}, s{S_H}, 0x10002')
        e(f's_lshl_b32 s{S_T0}, s{S_T0}, 2')
        e(f's_add_u32 s{S_T0}, s{S_T0}, s{S_BL}')
        e(f's_mul_i32 s{S_OB}, s{S_T0}, 122880')
        e(f's_and_b32 s{S_T0}, s{S_H}, 3')
        e(f's_mul_i32 s{S_T0}, s{S_T0}, {24*1280}')
        e(f's_add_u32 s{S_OB}, s{S_OB}, s{S_T0}')
        for p in range(o.pf2_p0, 5):
            pf2.append([f's_add_u32 s{S_T1}, s{S_XB}, {128*p*8192}', f'buffer_load_dword v39, v36, {sr(S_WQ,4)}, s{S_T1} offen',
                        f's_add_u32 s{S_T1}, s{S_OB}, {256*p}', f'buffer_load_dword v39, v38, {sr(S_X,4)}, s{S_T1} offen'])
        for x in pf2[:o.pf2_pre]:
            e.many(x); vm.add('pf2', 2)
        pf2 = pf2[o.pf2_pre:]
    extra = {}
    def ride(step, name, ins, cnt):
        extra.setdefault(step, []).append((name, ins, cnt))
    for i, x in enumerate(pf2): ride(o.pf2_s0 + o.pf2_gap * i, 'pf2', x, 2)
    if not o.k_first:
        for i, nm in enumerate(('K0', 'K1')):
            ins = issue_l(nm)
            for q in range(4): ride(4 * o.k_s0 + 4 * i + q, nm if q == 3 else None, ins[(3 + 6 * q if q else 0):3 + 6 * q + 6], 4)
    npf = 4 * (7 - o.pf_s0)
    for i, x in enumerate(pf): ride(4 * o.pf_s0 + (i * npf) // max(len(pf), 1), 'pf', x, 1)
    for i, nm in enumerate(('V0', 'K2')):
        ins = issue_l(nm)
        for q in range(2): ride(31 + 2 * i + q, nm if q == 1 else None, ins[(15 if q else 0):3 + 12 * q + 12], 8)
    ins = issue_l('V1')
    for q in range(0 if o.v1_late else 2): ride(35 + q, 'V1' if q == 1 else None, ins[(15 if q else 0):3 + 12 * q + 12], 8)
    e('s_barrier')
    e.many(reads(0, 0))
    e.skip = o.a_skip
    for s in range(10):
        for s4 in range(4):
            step = 4 * s + s4; buf = step & 1
            e('s_waitcnt lgkmcnt(0)')
            if step == 31: no_task_wo(e)
            if s4 == 3:
                if s == 9: vm.wait('K1')
                e('s_barrier')
            late = []
            for name, ins, cnt in extra.get(step, []):
                vm.room(cnt); late += ins; vm.add(name or 'part', cnt)
            if s4 == 2 and s < 9: late += a_step(s, VA)
            front = reads((s4 + 1) & 3, buf ^ 1) if step < 39 else []
            gaps(e, mf(buf, step == 0), front, late, per=max(o.aper - 1, 3), late_from=(2 if s4 == 2 else 1))
    e.skip = ''
    if o.v1_late: issue('V1')
    e('s_nop 7'); e('s_nop 3')
    for j in range(3):
        for i in range(16): e.many(conv(i, ACC + 32 * j, ACC + 32 * j))
        for f in range(4): e(f'ds_write_b128 v{V_OST}, {vr(ACC+32*j+4*f,4)} offset:{8192*j + 1024*f}')
    e('s_waitcnt lgkmcnt(0)')
    issue('K3')
    issued = POS['K3']
    e(f's_lshr_b32 s{S_WC}, s2, 3')
    e(f's_mul_i32 s{S_KX}, s{S_WC}, 13')
    e(f's_lshr_b32 s{S_KX}, s{S_KX}, 6')
    vm.wait('pfa')
    e(f'v_mul_u32_u24 v{VW+2}, 1280, v{L}')
    vm_pg = [None]
    ld_own = f'buffer_load_dword v23, v22, {sr(S_WS,4)}, 0 offen sc1'
    T3 = Tail(e, o); T3.vm = vm
    T3.free = [1000 + r for r in range(32, 64, 4)]
    e.T3 = T3
    def shadow_mm(c, first):
        m = []
        af = (lambda off, n: hold3(c, off, n)) if c < 12 else (lambda off, n: vr(32 + off, n))
        for s4 in range(4):
            for nt in range(2):
                d = ar(16 * nt, 16)
                m.append(mfma(d, af(8 * s4 + 4 * nt, 4), reg4(T3.where[(0, c)][s4]), '0' if (first and s4 == 0) else d))
        return m
    ld_cnt = f'global_load_dword v23, v{VZ}, {sr(S_DBG,2)} sc1'
    ld_fl = f'buffer_load_dword v23, v{VP}, {sr(S_WS,4)}, 0 offen sc1'
    for k in range(32):
        wait_upto(POS[f'V{k}'])
        vm.stamp(o, 32 + k) if o.tickst == 1 else None
        e('s_barrier')
        vm.stamp(o, 32 + k) if o.tickst == 2 else None
        if k == (18 if o.t15 else 19):
            vm.room(1); e.many(flag(1)); vm.add('f1', 1)
        if o.pf_w and k in PF_TICKS:
            vm.room(1)
            e(f's_add_u32 s{S_T0}, s{S_KX}, {6 * PF_TICKS.index(k)}')
            e(f's_and_b32 s{S_T2}, s{S_T0}, 3')
            e(f's_lshl_b32 s{S_T2}, s{S_T2}, 4')
            e(f's_lshr_b32 s{S_T0}, s{S_T0}, 2')
            e(f's_add_u32 s{S_T0}, s{S_T0}, s{S_RHO}')
            e(f's_and_b32 s{S_T0}, s{S_T0}, 15')
            e(f's_add_u32 s{S_T0}, s{S_T0}, s{S_T2}')
            e(f's_mul_i32 s{S_T0}, s{S_T0}, {64*1280}')
            e(f's_add_u32 s{S_T0}, s{S_T0}, s{S_WOB}')
            e(f'buffer_load_dword v{VW+1}, v{VW+2}, {sr(S_WO,4)}, s{S_T0} offen {o.wo_flags}')
            vm.add('pft', 1)
        wper = 2 if o.w3 else 3
        wev = (k - 2) // wper if (k >= 2 and (k - 2) % wper == 0 and k <= 26) else None
        if wev:
            vm.wait(f'w{wev-1}')
            e.many(wo_reads(lambda off, n: hold3(wev - 1, off, n), V_WA, V_WA + 1, 0))
        if o.w3 and k == o.w3k - 1:
            e(f'v_and_b32 v22, 7, v{L}')
            e(f'v_lshlrev_b32 v22, 7, v22')
            e(f'v_readfirstlane_b32 s{S_T0}, v{VP}')
            e(f's_add_u32 s{S_T0}, s{S_T0}, {24*128}')
            e(f'v_add_u32 v22, s{S_T0}, v22')
            vm.room(1); e(ld_own); vm.add('po', 1)
        if o.lb and k == o.tagk + 1:
            e(f's_and_b32 s{S_T0}, s2, 7')
            e(f's_lshl_b32 s{S_T0}, s{S_T0}, 7')
            e(f's_add_u32 s{S_T0}, s{S_T0}, {WS_PROG}')
            e(f'v_and_b32 v33, 31, v{L}')
            e(f'v_lshlrev_b32 v33, 2, v33')
            e(f'v_add_u32 v33, s{S_T0}, v33')
            e(f's_lshr_b32 s{S_T2}, s2, 3')
            e(f's_lshl_b32 s{S_T2}, s{S_T2}, 2')
            e(f's_add_u32 s{S_T0}, s{S_T0}, s{S_T2}')
            e(f'v_mov_b32 v32, s{S_T0}')
            e(f's_mov_b32 s{S_WC}, 0')
            e(f's_mov_b32 s{S_KX}, 0')
        if o.lb and o.tagk + 1 <= k <= 28:
            vm.room(1)
            e(f's_add_u32 s{S_T0}, s{S_N}, {4 * k}')
            e(f'v_mov_b32 v35, s{S_T0}')
            e('s_mov_b64 exec, 1')
            e(f'buffer_store_dword v35, v32, {sr(S_WS,4)}, 0 offen {o.lb_st}')
            e('s_mov_b64 exec, -1')
            vm.add('ps', 1)
        if o.lb and vm_pg[0] is not None and vm_pg[0] + 1 == k:
            vm.wait('pg')
            e(f'v_subrev_u32 v34, s{S_N}, v34')
            if o.lb_t:
                e(f'v_cmp_ge_u32 vcc, {4 * (k - 2)}, v34')
                e(f's_bcnt1_i32_b32 s{S_KX}, vcc_lo')
            e(f'v_subrev_u32 v34, {4 * k}, v34')
            e(f'v_cmp_gt_u32 vcc, 64, v34')
            e(f's_bcnt1_i32_b32 s{S_WC}, vcc_lo')
        if o.r6 and k == o.r6k: own_w(9, 1)
        if k in (o.tagk, o.r1k):
            vm.room(1); e(ld_cnt if k == o.tagk else ld_fl); vm.add('pl', 1)
        if k == 30 and not o.w3:
            tail_setup(e, o)
            vm.room(4 * o.nearly); e.many(e.early); vm.add('early', 4 * o.nearly)
        sh = []
        if o.w3 and o.w3k < k <= o.w3k + 6: sh = [2 * (k - o.w3k - 1), 2 * (k - o.w3k - 1) + 1]
        if o.w3 and k == o.w3k + 7: sh = [12]
        first = POS[f'K{k+1}']
        lk = o.look if o.look_k0 <= k < o.look_k1 else o.look_lo
        if k >= 28: lk = 7 if first + o.look_lo >= POS['V31'] else lk
        lim = min(first + lk, first + C.NR - 1, POS[C.TL])
        if k == 31: lim = POS[C.TL]
        if o.tsched == 1 and k in (29, 30): lim = min(lim, POS['T1'] + (k - 29))
        if o.tsched == 2 and k < 31: lim = min(lim, POS['V31'])
        if o.tsched == 3 and k == 29: lim = min(lim, POS['V31'])
        done_sh = False
        def do_shadow(fill):
            if sh == [12]:
                vm.wait('w12')
                e.many(wo_reads(lambda off, n: vr(32 + off, n), V_WA, V_WA + 1, 0))
                e('s_waitcnt lgkmcnt(0)')
            elif wev: e('s_waitcnt lgkmcnt(0)')
            for c in sh: vm.wait(f'o0_{c}')
            m = []
            for c in sh: m += shadow_mm(c, c == 0)
            gaps(e, m, fill(), per=3)
            for c in sh: T3.free += T3.where[(0, c)]
            vm.room(8); e.many(T3.pump(2))
        while issued < lim:
            issued += 1
            if o.lb and o.tagk + 1 <= k < 27 and issued == lim - 1 + o.lb_pos:
                vm.room(17)
                e(f'buffer_load_dword v34, v33, {sr(S_WS,4)}, 0 offen {o.lb_ld}')
                vm.add('pg', 1); vm_pg[0] = k
            if sh and issued == lim and issue_l(SEQ[issued]):
                def fill():
                    vm.room(16); vm.add(SEQ[issued], 16)
                    return issue_l(SEQ[issued])
                do_shadow(fill); done_sh = True
            elif o.gran < 16 and SEQ[issued][0] in 'KV' and k < o.thr_end and issue_l(SEQ[issued]):
                ins = issue_l(SEQ[issued]); ng = o.gran // 4
                for q in range(0, 4, ng):
                    vm.room(o.gran)
                    e.many(ins[(3 + 6 * q if q else 0):3 + 6 * (q + ng)])
                    vm.add(SEQ[issued] if q + ng == 4 else 'part', o.gran)
                    if q + ng == 4: break
                    if o.lb and o.tagk + 2 <= k:
                        while vm.out() > o.lb_hi: vm.wait(vm.q[0][0])
                        e(f's_cmp_ge_u32 s{S_WC}, {o.lb}')
                        e(f's_cbranch_scc1 L_deep{issued}_{q}')
                        e(f's_waitcnt vmcnt({o.thr})')
                        e.lab(f'L_deep{issued}_{q}')
                    else:
                        while vm.out() > o.thr: vm.wait(vm.q[0][0])
            else:
                issue(SEQ[issued])
            if o.lb and o.tagk + 2 <= k < o.thr_end:
                while vm.out() > o.lb_hi: vm.wait(vm.q[0][0])
                e(f's_cmp_ge_u32 s{S_WC}, {o.lb}')
                e(f's_cbranch_scc1 L_deep{issued}')
                e(f's_waitcnt vmcnt({o.thr})')
                if o.lb_t:
                    e(f's_cmp_lt_u32 s{S_KX}, {o.lb_t}')
                    e(f's_cbranch_scc1 L_deep{issued}')
                    e(f's_waitcnt vmcnt({o.lb_lo})')
                e.lab(f'L_deep{issued}')
            else:
                while vm.out() > o.thr + (8 if done_sh else 0) and k < o.thr_end: vm.wait(vm.q[0][0])
        if sh and not done_sh: do_shadow(lambda: [])
        if o.w3 and k == o.w3k:
            vm.wait('po')
            e(f's_add_u32 s{S_T3}, s{S_N}, 1')
            poll(e, o, 'r1o', ld_own, ['v_and_b32 v23, -3, v23', f'v_cmp_eq_u32 vcc, s{S_T3}, v23'])
            tail_setup(e, o)
            T3.todo = [(0, c) for c in range(16)]
            vm.room(8); e.many(T3.pump(2))
        if k == o.tagk:
            vm.wait('pl')
            poll(e, o, 'tag', ld_cnt, ['v_cmp_ne_u32 vcc, 0, v23'])
            e(f'v_readfirstlane_b32 s{S_N}, v23')
        if k == o.r1k:
            vm.wait('pl')
            e(f's_add_u32 s{S_T3}, s{S_N}, 1')
            poll(e, o, 'r1', ld_fl, ['v_and_b32 v23, -3, v23', f'v_cmp_eq_u32 vcc, s{S_T3}, v23'])
        if wev is not None:
            e('s_waitcnt lgkmcnt(0)')
            own_w(wev)
    e('s_barrier')
    e.many(flag(3))
    e('s_waitcnt vmcnt(1)')
    vm.q = []

def a_addr(e, VA, VB, xl):
    L = V_LANE
    e(f'v_lshrrev_b32 v{V_T0}, 5, v{L}')
    e(f'v_bfe_u32 v{V_T1}, v{L}, 2, 2')
    e(f'v_lshl_add_u32 v{V_T2}, v{V_T0}, 3, v{V_T1}')
    e(f'v_lshlrev_b32 v{V_T2}, 8, v{V_T2}')
    e(f'v_lshl_add_u32 v{V_T2}, v{V_T1}, 6, v{V_T2}')
    e(f'v_bfe_u32 v{V_T3}, v{L}, 4, 1')
    e(f'v_lshl_add_u32 v{V_T2}, v{V_T3}, 5, v{V_T2}')
    e(f'v_and_b32 v{V_T3}, 1, v{L}')
    e(f'v_lshl_add_u32 v{V_T2}, v{V_T3}, 4, v{V_T2}')
    e(f'v_bfe_u32 v{V_T3}, v{L}, 1, 1')
    e(f'v_lshl_add_u32 v{V_T2}, v{V_T3}, 3, v{V_T2}')
    for t in range(4):
        e(f'v_xor_b32 v{VA+t}, {64*t}, v{V_T2}')
        e(f'v_add_u32 v{VA+t}, {reg_w(0)}, v{VA+t}')
    e(f'v_and_b32 v{V_T1}, 31, v{L}')
    e(f'v_bfe_u32 v{V_T2}, v{L}, 1, 3')
    e(f'v_xor_b32 v{V_T2}, v{V_T2}, v{V_T0}')
    e(f'v_lshlrev_b32 v{V_T2}, 4, v{V_T2}')
    e(f'v_lshl_add_u32 v{V_T2}, v{V_T1}, 7, v{V_T2}')
    if xl is not None:
        e(f's_add_u32 s{S_T0}, s{xl}, {reg_x(0)}')
    for s4 in range(4):
        e(f'v_xor_b32 v{VB+s4}, {32*s4}, v{V_T2}')
        e(f'v_add_u32 v{VB+s4}, s{S_T0}, v{VB+s4}' if xl is not None else f'v_add_u32 v{VB+s4}, {reg_x(0)}, v{VB+s4}')

def a_step(s, VA):
    r = []
    for i in range(8):
        d = reg_w(s + 1) - reg_w(s) if i < 4 else reg_x(s + 1) - reg_x(s)
        r.append(f'v_add_u32 v{VA+i}, {d}, v{VA+i}' if d > 0 else f'v_subrev_u32 v{VA+i}, {-d}, v{VA+i}')
    return r

SCALE = hex(struct.unpack("<I", struct.pack("<f", math.log2(math.e) / math.sqrt(128.0)))[0])
def conv(i, src, dst):
    a = src + 2 * i
    return [f'v_mul_f32 v{a}, s{S_C}, v{a}', f'v_mul_f32 v{a+1}, s{S_C}, v{a+1}', f'v_cvt_pk_bf16_f32 v{dst+i}, v{a}, v{a+1}']

def phase_a(e, o):
    L = V_LANE
    VA, VB = V_Q, V_Q + 4
    AF = [V_SA, V_SB]; BF = [V_P, V_TMP]; ACC = [128, 192]
    e(f'v_lshrrev_b32 v{V_T0}, 3, v{L}')
    e(f'v_mul_u32_u24 v{V_T0}, 1280, v{V_T0}')
    e(f'v_lshrrev_b32 v{V_T1}, 4, v{L}')
    e(f'v_and_b32 v{V_T2}, 7, v{L}')
    e(f'v_xor_b32 v{V_T1}, v{V_T1}, v{V_T2}')
    for i in range(4):
        e(f'v_xor_b32 v{V_T2}, {4*(i&1)}, v{V_T1}')
        e(f'v_lshl_add_u32 v{V_DMA+i}, v{V_T2}, 4, v{V_T0}')
        if i: e(f'v_add_u32 v{V_DMA+i}, {(10240-1024)*i}, v{V_DMA+i}')
    e(f's_mul_i32 s{S_XB}, s{S_BL}, 3')
    e(f's_add_u32 s{S_XB}, s{S_XB}, s{S_WAVE}')
    e(f's_mul_i32 s{S_OB}, s{S_BR}, 24')
    e(f's_add_u32 s{S_OB}, s{S_OB}, s{S_XB}')
    e(f's_mul_i32 s{S_XB}, s{S_XB}, 40960')
    def xload(s, it):
        r = []
        if it == 0:
            r.append(f's_lshl_b32 s{S_T0}, s{S_KX}, 7')
            r.append(f's_add_u32 s{S_T0}, s{S_T0}, s{S_XB}')
        r.append(f's_add_u32 m0, s{S_XL}, {reg_x(s) + 4096*it}')
        r.append(f's_add_u32 s{S_T1}, s{S_T0}, {491520*it}')
        for i in range(4):
            r.append(f'buffer_load_dwordx4 v{V_DMA+i}, {sr(S_X,4)}, s{S_T1} offen offset:{1024*i} {o.w_flags} lds')
        if it == 1:
            if s + 1 < o.nun: r.append(f's_mov_b32 s{S_KX}, {s + 1}')
            elif s + 1 == o.nun: r.append(f's_mov_b32 s{S_KX}, s{S_KR}')
            else:
                r.append(f's_add_u32 s{S_KX}, s{S_KX}, 1')
                r.append(f's_cmp_eq_u32 s{S_KX}, 10')
                r.append(f's_cselect_b32 s{S_KX}, {o.nun}, s{S_KX}')
        return r
    if o.nun:
        for _ in range(2):
            e(f's_cmp_ge_u32 s{S_KX}, {10 - o.nun}')
            e(f's_cselect_b32 s{S_T0}, {10 - o.nun}, 0')
            e(f's_sub_u32 s{S_KX}, s{S_KX}, s{S_T0}')
        e(f's_add_u32 s{S_KR}, s{S_KX}, {o.nun}')
        e(f's_mov_b32 s{S_KX}, 0')
    VWQ = V_Q + 8
    e(f'v_lshrrev_b32 v{V_T0}, 4, v{L}')
    e(f'v_and_b32 v{V_T1}, 15, v{L}')
    e(f'v_lshlrev_b32 v{V_T3}, 2, v{V_T0}')
    e(f'v_xor_b32 v{V_T3}, v{V_T3}, v{V_T1}')
    e(f'v_lshlrev_b32 v{V_T2}, 13, v{V_T0}')
    e(f'v_lshl_add_u32 v{VWQ}, v{V_T3}, 4, v{V_T2}')
    for i in range(1, 4): e(f'v_add_u32 v{VWQ+i}, {(32768-1024)*i}, v{VWQ}')
    e(f's_mul_i32 s{S_KVB}, s{S_WAVE}, {5*32768}')
    e(f's_lshl_b32 s{S_T0}, s{S_H}, 8')
    e(f's_add_u32 s{S_KVB}, s{S_KVB}, s{S_T0}')
    e(f's_mul_i32 s{S_FL}, s{S_WAVE}, {5*1024}')
    if o.nodup:
        e(f's_mul_i32 s{S_N}, s{S_WAVE}, {5*32768}')
        e(f's_sub_u32 s{S_N}, {15*32768}, s{S_N}')
        e(f's_mov_b64 {sr(S_SAVE,2)}, 0xffffff')
        e(f's_cmp_eq_u32 s{S_WAVE}, 1')
        e(f's_cselect_b32 s{S_SAVE}, 0xff000000, s{S_SAVE}')
        e(f's_cselect_b32 s{S_SAVE+1}, 0xfff, s{S_SAVE+1}')
        e(f's_cmp_eq_u32 s{S_WAVE}, 2')
        e(f's_cselect_b32 s{S_SAVE}, 0, s{S_SAVE}')
        e(f's_cselect_b32 s{S_SAVE+1}, 0xfffff000, s{S_SAVE+1}')
    def wqload(s):
        r = [f's_lshl_b32 s{S_T2}, s{S_KX}, 19', f's_add_u32 s{S_T2}, s{S_T2}, s{S_KVB}']
        for t in range(5 if o.nodup else 6):
            if t % 4 == 0:
                r.append(f's_add_u32 m0, s{S_FL}, {reg_w(s) + 1024*t}')
                r.append(f's_add_u32 s{S_T1}, s{S_T2}, {32768*t}')
            r.append(f'buffer_load_dwordx4 v{VWQ+(t&3)}, {sr(S_WQ,4)}, s{S_T1} offen offset:{1024*(t&3)} {o.w_flags} lds')
        if o.nodup:
            r.append(f's_mov_b32 m0, {reg_w(s) + 15*1024}')
            r.append(f's_add_u32 s{S_T1}, s{S_T2}, s{S_N}')
            r.append(f's_mov_b64 exec, {sr(S_SAVE,2)}\n    buffer_load_dwordx4 v{VWQ}, {sr(S_WQ,4)}, s{S_T1} offen {o.w_flags} lds\n    s_mov_b64 exec, -1')
        return r
    srds(e, o)
    e.many(wqload(0)); e.many(xload(0, 0)); e.many(xload(0, 1))
    lazy(e, o, 2)
    no_task_wo(e)
    e(f's_lshl_b32 s{S_OB}, s{S_OB}, 5')
    e(f's_add_u32 s{S_OB}, s{S_OB}, s{S_H}')
    e(f's_lshl_b32 s{S_OB}, s{S_OB}, 13')
    a_addr(e, VA, VB, S_XL)
    e(f'v_and_b32 v{V_T2}, 15, v{L}')
    e(f'v_xor_b32 v{V_T2}, v{V_T2}, v{V_T0}')
    e(f'v_lshlrev_b32 v{V_T2}, 4, v{V_T2}')
    e(f'v_lshl_add_u32 v{V_T2}, v{V_T1}, 8, v{V_T2}')
    for s in range(8):
        e(f'v_xor_b32 v{V_KA+s}, {32*s}, v{V_T2}')
        e(f'v_add_u32 v{V_KA+s}, {slot_addr("K0")}, v{V_KA+s}')
    e(f'v_bfe_u32 v{V_T1}, v{L}, 2, 2')
    e(f'v_lshl_add_u32 v{V_T2}, v{V_T0}, 2, v{V_T1}')
    e(f'v_lshlrev_b32 v{V_T2}, 8, v{V_T2}')
    e(f'v_lshl_add_u32 v{V_T2}, v{V_T1}, 6, v{V_T2}')
    e(f'v_bfe_u32 v{V_T3}, v{L}, 4, 1')
    e(f'v_lshl_add_u32 v{V_T2}, v{V_T3}, 5, v{V_T2}')
    e(f'v_and_b32 v{V_T3}, 3, v{L}')
    e(f'v_lshl_add_u32 v{V_T2}, v{V_T3}, 3, v{V_T2}')
    e(f'v_add_u32 v{V_T2}, {slot_addr("V0")}, v{V_T2}')
    for t in range(4): e(f'v_xor_b32 v{V_VA+t}, {64*t}, v{V_T2}')
    e(f'v_lshlrev_b32 v{V_OST}, 4, v{L}')
    e(f'v_add_u32 v{V_OST+3}, s{S_XL}, v{V_OST}')
    wo_lane_addr(e, V_WA)
    e(f'v_add_u32 v{V_WA}, s{S_XL}, v{V_WA}')
    e(f'v_xor_b32 v{V_WA+1}, 64, v{V_WA}')
    e(f's_mul_i32 s{S_WQB}, s{S_WAVE}, {1024*1280}')
    e(f's_add_u32 s{S_WQB}, s{S_WQB}, s{S_WOB}')
    e(f's_mov_b32 s{S_WC}, s{S_RHO}')
    e(f's_add_u32 s{S_WN}, s{S_WAVE}, 4')
    e(f's_mov_b32 s{S_EV}, 0')
    for i in range(64): e(f'v_accvgpr_write_b32 a{i}, 0')
    for i in range(16): e(f'v_mov_b32 v{V_NEGM+i}, 0')
    for i in range(4): e(f'v_mov_b32 v{V_L+i}, 0')
    e(f's_mov_b32 s{S_C}, {SCALE}')
    e(f's_mov_b32 s{S_THR}, 0xff800000')
    e(f's_mov_b32 s{S_FLOOR}, 0xff800000')
    e(f's_mov_b32 s{S_TICK}, 0')
    e(f's_mov_b32 s{S_KOFF}, {slot("K1")*SLOT}')
    e(f's_mov_b32 s{S_VOFF}, {slot("V0")*SLOT}')
    nst = 0
    lazy(e, o, 5)
    e.many(wqload(1)); e.many(xload(1, 0)); e.many(xload(1, 1))
    lazy(e, o, 6)
    def reads(s4, buf):
        r = [f'ds_read_b128 {vr(BF[buf]+4*it,4)}, v{VB+s4} offset:{4096*it}' for it in range(2)]
        for t in range(4):
            for u in range(2):
                r.append(f'ds_read_b64_tr_b16 {vr(AF[buf]+4*t+2*u,2)}, v{VA+t} offset:{(16*s4+4*u)*256}')
        return r
    def mf(buf, first):
        r = []
        for t in range(4):
            for it in range(2):
                if it == 1 and t >= 2: continue
                d = vr(ACC[it] + 16 * t, 16)
                r.append(mfma(d, vr(AF[buf] + 4 * t, 4), vr(BF[buf] + 4 * it, 4), '0' if first else d))
        return r
    e(f's_waitcnt vmcnt({14 + nst})')
    lazy(e, o, 7)
    e('s_barrier')
    lazy(e, o, 8)
    dmark(e, o, 0)
    e.many(reads(0, 0))
    e.skip = o.a_skip
    for s in range(10):
        for s4 in range(4):
            step = 4 * s + s4; buf = step & 1
            if step in (8, 16, 24, 32, 39): lazy(e, o, 9 + (8, 16, 24, 32, 39).index(step))
            if o.stamps and step in (8, 32): e(f's_memtime s[{LAZY[3 if step == 8 else 4]}:{LAZY[3 if step == 8 else 4]+1}]')
            m = mf(buf, step == 0)
            late = []
            e('s_waitcnt lgkmcnt(0)')
            if s4 == 3:
                if s < 9:
                    e(f's_waitcnt vmcnt({(14 if s + 2 <= 9 else 0) + (nst if s < 2 else 0)})')
                e('s_barrier')
                if s + 3 <= 9: late = wqload(s + 3)
            if s4 == 0 and s + 2 <= 9: late = (wqload(2) if s == 0 else []) + xload(s + 2, 0)
            if s4 == 1 and s + 2 <= 9: late = xload(s + 2, 1)
            if s4 == 2 and s < 9: late = a_step(s, VA)
            front = reads((s4 + 1) & 3, buf ^ 1) if step < 39 else []
            gaps(e, m, front, late, per=o.aper, late_from=(3 if o.aper == 3 and s4 == 2 else 2 if o.aper >= 4 else 1))
    e.skip = ''
    wo_voffs(e, V_DMA)
    e('s_nop 4')
    for i in range(16): e.many(conv(i, ACC[0], V_Q))
    e.many(k_reads(0))
    for i in range(16, 32): e.many(conv(i, ACC[0], V_Q))

def k_reads(half):
    return [f'ds_read_b128 {vr(V_KF+4*s,4)}, v{V_KA+s} offset:{8192*half}' for s in range(8)]
def v_reads(half):
    r = []
    for jj in range(2):
        for t in range(4):
            for u in range(2):
                r.append(f'ds_read_b64_tr_b16 {vr(V_VF+16*jj+4*t+2*u,2)}, v{V_VA+t} offset:{(32*half+16*jj+8*u)*256}')
    return r
def qk(S):
    return [mfma(vr(S, 16), vr(V_KF + 4 * s, 4), vr(V_Q + 4 * s, 4), vr(V_NEGM, 16) if s == 0 else vr(S, 16)) for s in range(8)]
def pv():
    return [mfma(ar(16 * t, 16), vr(V_VF + 16 * jj + 4 * t, 4), vr(V_P + 4 * jj, 4), ar(16 * t, 16)) for jj in range(2) for t in range(4)]
def maxes(S):
    r = [f'v_max3_f32 v{V_MX}, v{S}, v{S+1}, v{S+2}', f'v_max3_f32 v{V_D}, v{S+3}, v{S+4}, v{S+5}']
    r += [f'v_max3_f32 v{V_MX}, v{V_MX}, v{S+6}, v{S+7}', f'v_max3_f32 v{V_D}, v{V_D}, v{S+8}, v{S+9}']
    r += [f'v_max3_f32 v{V_MX}, v{V_MX}, v{S+10}, v{S+11}', f'v_max3_f32 v{V_D}, v{V_D}, v{S+12}, v{S+13}']
    r += [f'v_max3_f32 v{V_MX}, v{V_MX}, v{S+14}, v{S+15}', f'v_max_f32 v{V_MX}, v{V_MX}, v{V_D}']
    r += [f'v_cmp_lt_f32 vcc, s{S_THR}, v{V_MX}']
    return r

def half_tick(e, Snew, Sold, vhalf, khalf, extra_v=(), extra_k=(), extra_8=()):
    ex = lambda i: f'v_exp_f32 v{Sold+i}, v{Sold+i}'
    cv = lambda i: f'v_cvt_pk_bf16_f32 v{V_P+i}, v{Sold+2*i}, v{Sold+2*i+1}'
    ad = lambda i: f'v_add_f32 v{V_L+(i&3)}, v{V_L+(i&3)}, v{Sold+i}'
    m = qk(Snew) + pv()
    m[8] = ['s_waitcnt lgkmcnt(0)', m[8]]
    fill = v_reads(vhalf) + [ex(i) for i in range(8)] + list(extra_v) + [cv(i) for i in range(4)] + [ex(i) for i in range(8, 12)]
    fill += [('M', 8), ('A', 8)] + (k_reads(khalf) if khalf is not None else []) + [ex(i) for i in range(12, 16)] + [ad(0)]
    fill += [cv(i) for i in range(4, 8)] + [ad(1), ad(2)]
    rest = [ad(i) for i in range(3, 16)]
    x8 = list(extra_8)
    fill += [('M', 12)]
    while rest or x8:
        if rest: fill.append(rest.pop(0))
        fill += x8[:3]; x8 = x8[3:]
    fill += list(extra_k) + maxes(Snew)
    e('s_waitcnt lgkmcnt(0)')
    interleave(e, m, fill)

def last_half(e, Sold, extra=()):
    ex = lambda i: f'v_exp_f32 v{Sold+i}, v{Sold+i}'
    cv = lambda i: f'v_cvt_pk_bf16_f32 v{V_P+i}, v{Sold+2*i}, v{Sold+2*i+1}'
    ad = lambda i: f'v_add_f32 v{V_L+(i&3)}, v{V_L+(i&3)}, v{Sold+i}'
    e.many(v_reads(1))
    e.many(extra)
    e.many([ex(i) for i in range(8)] + [cv(i) for i in range(4)] + [ex(8), ex(9)])
    e('s_waitcnt lgkmcnt(0)')
    fill = [ex(i) for i in range(10, 16)] + [ad(0)] + [cv(i) for i in range(4, 8)] + [ad(1), ad(2), ('M', 4)] + [ad(i) for i in range(3, 16)]
    interleave(e, pv(), fill)

def rare(e, S, back):
    e('s_nop 7')
    e(f'v_mov_b32 v{V_T0}, v{V_MX}')
    e('s_nop 1')
    e(f'v_permlane32_swap_b32 v{V_T0}, v{V_MX}')
    e('s_nop 1')
    e(f'v_max_f32 v{V_D}, v{V_T0}, v{V_MX}')
    e(f'v_max_f32 v{V_D}, s{S_FLOOR}, v{V_D}')
    for i in range(16): e(f'v_sub_f32 v{S+i}, v{S+i}, v{V_D}')
    for i in range(16): e(f'v_sub_f32 v{V_NEGM+i}, v{V_NEGM+i}, v{V_D}')
    e(f's_cmp_lg_u32 s{S_FLOOR}, 0')
    e(f's_mov_b32 s{S_THR}, 0x41000000')
    e(f's_mov_b32 s{S_FLOOR}, 0')
    e(f's_cbranch_scc1 {back}')
    e(f'v_sub_f32 v{V_T0}, 0, v{V_D}')
    e(f'v_exp_f32 v{V_T0}, v{V_T0}')
    e('s_nop 0')
    for i in range(4): e(f'v_mul_f32 v{V_L+i}, v{V_L+i}, v{V_T0}')
    for i in range(0, 64, 4):
        for j in range(4): e(f'v_accvgpr_read_b32 v{V_TMP+j}, a{i+j}')
        for j in range(4): e(f'v_mul_f32 v{V_TMP+j}, v{V_TMP+j}, v{V_T0}')
        for j in range(4): e(f'v_accvgpr_write_b32 a{i+j}, v{V_TMP+j}')
    e('s_nop 1')
    e(f's_branch {back}')

def epilogue(e, o):
    e(f'v_add_f32 v{V_L}, v{V_L}, v{V_L+1}')
    e(f'v_add_f32 v{V_L+2}, v{V_L+2}, v{V_L+3}')
    e(f'v_add_f32 v{V_L}, v{V_L}, v{V_L+2}')
    e(f'v_mov_b32 v{V_T0}, v{V_L}')
    e('s_nop 1')
    e(f'v_permlane32_swap_b32 v{V_T0}, v{V_L}')
    e('s_nop 1')
    e(f'v_add_f32 v{V_L}, v{V_L}, v{V_T0}')
    e(f'v_rcp_f32 v{V_T0}, v{V_L}')
    e('s_nop 4')
    for f in range(8):
        t = V_VF + 8 * (f & 3)
        for j in range(8): e(f'v_accvgpr_read_b32 v{t+j}, a{8*f+j}')
        if o.pk:
            for j in range(0, 8, 2): e(f'v_pk_mul_f32 {vr(t+j,2)}, {vr(t+j,2)}, {vr(V_T0,2)} op_sel_hi:[1,0]')
        else:
            for j in range(8): e(f'v_mul_f32 v{t+j}, v{t+j}, v{V_T0}')
        d = V_TMP + 4 * (f & 1)
        for j in range(4): e(f'v_cvt_pk_bf16_f32 v{d+j}, v{t+2*j}, v{t+2*j+1}')
        if f == 4: e(f's_add_u32 s{S_OB}, s{S_OB}, 4096')
        e(f'buffer_store_dwordx4 {vr(d,4)}, v{V_OST}, {sr(S_WS,4)}, s{S_OB} offen offset:{1024*(f&3)} {o.ost_flags}')

def w_snippets(e, o, ret):
    e('s_waitcnt vmcnt(0)')
    def tree(lo, n):
        if n == 1:
            if lo == 0:
                for f in range(4): e(f'ds_read_b128 {vr(224+4*f,4)}, v{V_OST+3} offset:{1024*f}')
                if o.t15:
                    for i in range(16): e.many(conv(i, V_Q2, V_Q2))
            else:
                e.many(wo_reads(lambda off, nn: hold(lo - 1, off, nn), V_WA, V_WA + 1, 0))
                if o.r6 and lo == o.r6e: e.many(wo_dma(o, 9, f's{S_XL}', 32768, f's{S_WQB}', V_DMA))
            e('s_branch L_sn_done')
            return
        h = (n + 1) // 2
        e(f's_cmp_ge_u32 s{S_EV}, {lo+h}')
        e(f's_cbranch_scc1 L_sn_{lo+h}')
        tree(lo, h)
        e.lab(f'L_sn_{lo+h}')
        tree(lo + h, n - h)
    tree(0, 9)
    e.lab('L_sn_done')
    e(f's_add_u32 s{S_EV}, s{S_EV}, 1')
    e(f's_cmp_eq_u32 s{S_EV}, 9')
    e(f's_cselect_b32 s{S_WN}, 64, 3')
    if o.t15:
        e(f's_cmp_eq_u32 s{S_TICK}, 13')
        e(f's_cselect_b32 s{S_WN}, 4, s{S_WN}')
    e('s_waitcnt lgkmcnt(0)')
    e.many(wo_dma(o, 0, f's{S_XL}', 0, f's{S_WQB}', V_DMA, dyn=True))
    e(f's_branch {ret}')

def phase_b(e, o):
    lazy(e, o, 14)
    dmark(e, o, 1)
    lazy_dump(e, o, range(15))
    stamp(e, o, 1)
    e('s_waitcnt lgkmcnt(0)')
    e.many(qk(V_SA))
    e.many(k_reads(1))
    for s in range(8): e(f'v_add_u32 v{V_KA+s}, {SLOT}, v{V_KA+s}')
    e('s_nop 3')
    e.many(maxes(V_SA))
    e('s_branch L_rare_a')
    def adv(soff, tmp, base, n):
        r = [f's_cmp_ge_u32 s{soff}, {(C.NR-2)*SLOT}', f's_cselect_b32 s{S_T3}, {C.NR*SLOT}, 0',
             f's_sub_u32 s{S_T3}, {2*SLOT}, s{S_T3}', f's_add_u32 s{soff}, s{soff}, s{S_T3}']
        r += [f'v_add_u32 v{base+i}, s{S_T3}, v{base+i}' for i in range(n)]
        return r
    align(e, o.al_t)
    e.lab('L_tick')
    e('s_waitcnt lgkmcnt(0)')
    e('s_barrier')
    e(f's_cmp_eq_u32 s{S_TICK}, 31')
    e('s_cbranch_scc1 L_last')
    half_tick(e, V_SB, V_SA, 0, 0)
    e('s_cbranch_vccnz L_rare_b')
    e.lab('L_back_b')
    e(f's_cmp_eq_u32 s{S_TICK}, 15')
    e('s_cbranch_scc1 L_switch')
    e.lab('L_back_sw')
    half_tick(e, V_SA, V_SB, 1, 1, extra_v=adv(S_VOFF, S_T0, V_VA, 4), extra_k=adv(S_KOFF, S_T1, V_KA, 8))
    e(f's_add_u32 s{S_TICK}, s{S_TICK}, 1')
    e(f's_sub_u32 s{S_WN}, s{S_WN}, 1')
    e(f's_cmp_eq_u32 s{S_WN}, 0')
    e('s_cbranch_scc1 L_snip')
    e.lab('L_snip_ret')
    e(f's_cmp_eq_u32 s{S_TICK}, 16')
    e('s_cbranch_scc1 L_epi1')
    e('s_cbranch_vccz L_tick')
    e.lab('L_rare_a')
    rare(e, V_SA, 'L_tick')
    e.lab('L_snip')
    w_snippets(e, o, 'L_snip_ret')
    e.lab('L_rare_b')
    rare(e, V_SB, 'L_back_b')
    e.lab('L_switch')
    for i in range(16): e(f'v_mov_b32 v{V_Q+16+i}, v{224+i}')
    for i in range(16): e.many([f'v_mov_b32 v{V_Q+i}, v{V_Q2+i}'] if o.t15 else conv(i, V_Q2, V_Q))
    for i in range(16): e(f'v_mov_b32 v{V_NEGM+i}, 0')
    e('s_nop 1')
    e('s_branch L_back_sw')
    e.lab('L_epi1')
    epilogue(e, o)
    e(f's_add_u32 s{S_OB}, s{S_OB}, {RND - 4096}')
    if o.t15:
        for t in range(4): e(mfma(ar(16 * t, 16), vr(V_NEGM, 4), vr(V_NEGM, 4), '0'))
    else:
        for i in range(64): e(f'v_accvgpr_write_b32 a{i}, 0')
    for i in range(4): e(f'v_mov_b32 v{V_L+i}, 0')
    e(f's_mov_b32 s{S_FLOOR}, 0xff800000')
    stamp(e, o, 2)
    dmark(e, o, 2)
    e('s_branch L_rare_a')
    e.lab('L_rare_l')
    rare(e, V_SB, 'L_back_l')
    e.lab('L_last')
    T = tail_pre(e, o)
    e.early = T.pump(min(o.nearly, 4))
    half_tick(e, V_SB, V_SA, 0, None, extra_8=e.early)
    e('s_cbranch_vccnz L_rare_l')
    e.lab('L_back_l')
    x = T.pump(max(o.nearly - 4, 0))
    e.early += x
    last_half(e, V_SB, x)
    epilogue(e, o)
    return T

def tail_setup(e, o):
    e(f's_mul_i32 s{S_O1}, s{S_BR}, 24')
    e(f's_add_u32 s{S_O1}, s{S_O1}, s{S_QT}')
    e(f's_lshl_b32 s{S_O1}, s{S_O1}, 2')
    e(f's_add_u32 s{S_O1}, s{S_O1}, s{S_WAVE}')
    e(f's_lshl_b32 s{S_O1}, s{S_O1}, 16')

POOL = list(range(96, 160, 4)) + [32, 36, 40, 44, 16, 20, 24, 80, 84] + list(range(160, 192, 4)) + [88, 92]
ORDER1 = [0, 1, 2, 8, 3, 9, 4, 10, 5, 11, 6, 12, 7]
ORDER2 = [8, 0, 9, 1, 10, 2, 11, 3, 12, 4, 13, 14, 15, 5, 6, 7]

class Tail:
    def __init__(self, e, o):
        self.e, self.o = e, o
        self.vm = Vm(e)
        self.free = list(POOL)
        self.where = {}
        self.todo = []
    def oload(self, rnd, c):
        e = self.e
        regs = [self.free.pop(0) for _ in range(4)]
        self.where[(rnd, c)] = regs
        r = [f's_add_u32 s{S_T1}, s{S_RHO}, {c}', f's_and_b32 s{S_T1}, s{S_T1}, 15', f's_lshl_b32 s{S_T1}, s{S_T1}, 12',
             f's_add_u32 s{S_T1}, s{S_T1}, s{S_O1}']
        if rnd and not self.o.t_o1: r.append(f's_add_u32 s{S_T1}, s{S_T1}, {RND}')
        if rnd and self.o.t_noo: return []
        for s4 in range(4):
            r.append(f'buffer_load_dwordx4 {reg4(regs[s4])}, v{V_OST}, {sr(S_WS,4)}, s{S_T1} offen offset:{1024*s4} {self.o.old_flags}')
        self.vm.add(f'o{rnd}_{c}', 4)
        return r
    def pump(self, lim=99):
        r = []
        while self.todo and len(self.free) >= 4 and self.vm.out() + 4 <= self.o.maxout and lim > 0:
            lim -= 1
            r += self.oload(*self.todo.pop(0))
        return r

def tail_pre(e, o):
    T = Tail(e, o)
    tail_setup(e, o)
    T.todo = [(0, c) for c in ORDER1]
    return T

def tail(e, o, T, w3=False):
    L = V_LANE
    vm = T.vm
    sfx = '3' if w3 else ''
    RA = 6
    TEMP = 48
    e(f's_cmp_eq_u32 s{S_NT}, 15')
    e('s_cbranch_scc1 L_exit')
    e(f's_mul_i32 s{S_WQB}, s{S_WAVE}, {1024*1280}')
    e(f's_add_u32 s{S_WQB}, s{S_WQB}, s{S_WOB}')
    if w3:
        T.free += [12, 16, 20, 24]
        e('s_barrier')
    e.many(T.pump())
    if not w3:
        vm.room(8)
        e.many(wo_dma(o, 12, f's{S_XL}', C.PIECE[12] * 32768, f's{S_WQB}', V_DMA))
        vm.add('late', 8)
    for b in range(3):
        e(f'v_add_u32 v{RA+2*b}, {65536*b}, v{V_WA}')
        e(f'v_add_u32 v{RA+2*b+1}, {65536*b}, v{V_WA+1}')
    e(f's_lshl_b32 s{S_T0}, s{S_BR}, 2')
    e(f's_add_u32 s{S_T0}, s{S_T0}, s{S_QB}')
    e(f's_lshl_b32 s{S_T0}, s{S_T0}, 2')
    e(f's_add_u32 s{S_T0}, s{S_T0}, s{S_WAVE}')
    e(f's_lshl_b32 s{S_T0}, s{S_T0}, 10')
    e(f's_add_u32 s{S_T0}, s{S_T0}, {WS_FLAGS}')
    e(f'v_and_b32 v31, 7, v{L}')
    e(f'v_lshlrev_b32 v31, 7, v31')
    e(f'v_add_u32 v31, s{S_T0}, v31')
    e('v_mov_b32 v0, 0')
    piece = C.PIECE
    tmp_of = {}
    def rd(c, dstf):
        j = piece[c]
        return wo_reads(dstf, RA + 2 * (j >> 1), RA + 2 * (j >> 1) + 1, 32768 * (j & 1))
    def afrag(c):
        if c < 8: return lambda off, n: hold(c, off, n)
        if c >= 13: return lambda off, n: hold(c - 13, off, n)
        return lambda off, n: vr(TEMP + off, n)
    first = {0: True, 1: True}
    def mms(c, rnds):
        m = []
        for s4 in range(4):
            for rnd in rnds:
                for nt in range(2):
                    d = ar(32 * rnd + 16 * nt, 16)
                    m.append(mfma(d, afrag(c)(8 * s4 + 4 * nt, 4), reg4(T.where[(rnd, c)][s4]), '0' if (first[rnd] and s4 == 0) else d))
        for rnd in rnds: first[rnd] = False
        return m
    def wdma(c):
        if o.t_now: return []
        vm.add(f'w{c}', 8)
        return wo_dma(o, c, f's{S_XL}', 32768 * piece[c], f's{S_WQB}', V_DMA)
    ld_fl = f'buffer_load_dword v{V_T2}, v31, {sr(S_WS,4)}, 0 offen sc1'
    WA, RDA, VOUT = 48, 56, 60
    S_OO = S_KOFF
    fin = [f'v_and_b32 v{V_T0}, 31, v{L}', f'v_lshrrev_b32 v{V_T1}, 5, v{L}', f'v_and_b32 v{V_T3}, 15, v{L}',
           f'v_xor_b32 v{V_T1}, v{V_T1}, v{V_T3}', f'v_lshlrev_b32 v{V_T1}, 4, v{V_T1}',
           f'v_lshl_add_u32 v{V_T0}, v{V_T0}, 8, v{V_T1}', f's_add_u32 s{S_T3}, s{S_XL}, {C.SCR*32768}',
           f'v_add_u32 v{V_T0}, s{S_T3}, v{V_T0}']
    fin += [f'v_xor_b32 v{WA+k}, {32*k}, v{V_T0}' for k in range(8)]
    fin2 = [f's_lshr_b32 s{S_VOFF}, s{S_WAVE}, 1', f's_and_b32 s{S_THR}, s{S_WAVE}, 1',
            f's_lshl_b32 s{S_T2}, s{S_VOFF}, 15', f's_lshl_b32 s{S_T3}, s{S_THR}, 12',
            f's_add_u32 s{S_T2}, s{S_T2}, s{S_T3}', f's_add_u32 s{S_T2}, s{S_T2}, {C.SCR*32768}',
            f'v_lshrrev_b32 v{V_T1}, 3, v{L}', f'v_and_b32 v{V_T3}, 7, v{L}', f'v_lshlrev_b32 v{V_T0}, 1, v{V_T3}',
            f'v_xor_b32 v{V_T0}, v{V_T0}, v{V_T1}', f'v_lshlrev_b32 v{V_T0}, 4, v{V_T0}',
            f'v_lshl_add_u32 v{V_T0}, v{V_T1}, 8, v{V_T0}', f'v_add_u32 v{RDA}, s{S_T2}, v{V_T0}',
            f'v_xor_b32 v{RDA+1}, 16, v{RDA}', f'v_xor_b32 v{RDA+2}, {2048+128}, v{RDA}', f'v_xor_b32 v{RDA+3}, 16, v{RDA+2}',
            f's_lshl_b32 s{S_OO}, s{S_QT}, 5', f's_mul_i32 s{S_VOFF}, s{S_VOFF}, 384', f's_add_u32 s{S_OO}, s{S_OO}, s{S_VOFF}',
            f's_lshl_b32 s{S_THR}, s{S_THR}, 4', f's_add_u32 s{S_OO}, s{S_OO}, s{S_THR}', f's_mul_i32 s{S_OO}, s{S_OO}, 2560',
            f's_mul_i32 s{S_T3}, s{S_BR}, 1280', f's_add_u32 s{S_OO}, s{S_OO}, s{S_T3}', f's_add_u32 s{S_OO}, s{S_OO}, s{S_WOB}',
            f'v_mul_u32_u24 v{V_T1}, 2560, v{V_T1}', f'v_lshl_add_u32 v{VOUT}, v{V_T3}, 4, v{V_T1}']
    def pwrite(rnd):
        return [f'ds_write_b128 v{WA+4*nt+g}, {ar(32*rnd+16*nt+4*g,4)} offset:{rnd*32768}' for nt in range(2) for g in range(4)]
    if w3:
        ld_tag = f'global_load_dword v30, v0, {sr(S_DBG,2)} sc1'
        first[0] = False
        def mm3(c, rnd, af):
            m = []
            for s4 in range(4):
                for nt in range(2):
                    d = ar(32 * rnd + 16 * nt, 16)
                    m.append(mfma(d, af(8 * s4 + 4 * nt, 4), reg4(T.where[(rnd, c)][s4]), '0' if (first[rnd] and s4 == 0) else d))
            first[rnd] = False
            return m
        t1 = lambda off, n: vr(32 + off, n)
        for c in (13, 14, 15):
            e.many(rd(c, t1))
            if c == 15:
                vm.room(2); e(ld_tag); e(ld_fl); vm.add('pl', 2)
            e('s_waitcnt lgkmcnt(0)')
            vm.wait(f'o0_{c}')
            gaps(e, mm3(c, 0, t1), T.pump(), per=2)
            T.free += T.where[(0, c)]
        assert not T.todo
        vm.wait('pl')
        e('v_add_u32 v30, 3, v30')
        poll(e, o, 'r23', ld_fl, [f'v_cmp_eq_u32 vcc, v30, v{V_T2}'])
        T.free = [48, 52, 56, 60, 12, 16, 20, 24, 32, 36, 40, 44]
        order = [8, 9, 15, 10, 14, 11, 13, 6, 12, 7, 0, 1, 2, 3, 4, 5]
        T.todo = [(1, c) for c in order]
        e.many(T.pump())
        t2 = lambda off, n: hold3(8, off, n)
        for i, c in enumerate(order):
            nxt = order[i + 1] if i + 1 < len(order) else None
            if c >= 12: e('s_waitcnt lgkmcnt(0)')
            vm.wait(f'o1_{c}')
            front = rd(nxt, t2) if (nxt is not None and nxt >= 12) else []
            late = []
            if c == 10: late += fin
            if c == 11: late += pwrite(0)
            if c == 0: late += fin2
            m = mm3(c, 1, t2 if c >= 12 else (lambda off, n: hold3(c, off, n)))
            late += T.pump()
            gaps(e, m, front, late, per=3, late_from=0 if not front else 2)
            if c != 8: T.free += T.where[(1, c)]
            if c in (9, 10, 11): T.free += list(range(64 + 32 * (c - 8), 64 + 32 * (c - 7), 4))
            if c in (6, 7): T.free += list(range(192 + 32 * (c - 6), 192 + 32 * (c - 5), 4))
        assert not T.todo
        e('s_nop 7'); e('s_nop 3')
        e.many(pwrite(1))
        e('s_branch L_red')
        return
    seq = [(0, c) for c in ORDER1] + [(1, c) for c in ORDER2]
    todo2 = []
    for c in ORDER2: todo2 += ([(0, c)] if (c >= 13 and not o.park) else []) + [(1, c)]
    for i, (rnd, c) in enumerate(seq):
        rnds = [0, 1] if c >= 13 else [rnd]
        nxt = seq[i + 1][1] if i + 1 < len(seq) else None
        if i == o.chk - o.pl_at:
            vm.room(2); e(f'global_load_dword v30, v0, {sr(S_DBG,2)} sc1'); e(ld_fl); vm.add('pl', 2)
            if o.park: T.todo += [(0, c) for c in (13, 14, 15)]
        if i == o.chk:
            vm.stamp(o, 5)
            vm.wait('pl')
            e('v_add_u32 v30, 3, v30')
            poll(e, o, 'r2', ld_fl, [f'v_cmp_eq_u32 vcc, v30, v{V_T2}'])
            T.todo += todo2
            e.many(T.pump())
            vm.stamp(o, 6)
        if c >= 8: e('s_waitcnt lgkmcnt(0)')
        for r_ in rnds: vm.wait(f'o{r_}_{c}')
        front = []; late = []
        if nxt is not None and nxt >= 8:
            assert not (8 <= c < 13 and nxt < 13)
            if rnd == 0 and nxt == C.TCH[0] and i < 12: e('s_barrier')
            if nxt == 12 and vm.has('late'): vm.wait('late')
            if nxt >= 13: vm.wait(f'w{nxt}')
            front = rd(nxt, afrag(nxt))
        if rnd == 1 and c in (8, 9, 10):
            vm.room(8)
            late += wdma(c + 5)
        if rnd == 1 and c == 15: late += fin
        if rnd == 1 and c == 6: late += pwrite(0)
        if rnd == 1 and c == 5: late += fin2
        m = mms(c, rnds)
        late += T.pump()
        gaps(e, m, front, late, per=3, late_from=0 if not front else 2)
        for r_ in rnds: T.free += T.where[(r_, c)]
    assert not T.todo
    vm.stamp(o, 7)
    e('s_nop 7'); e('s_nop 3')
    e.many(pwrite(1))
    e.lab('L_red')
    e('s_waitcnt lgkmcnt(0)')
    e('s_barrier')
    for i in range(2):
        for p in range(4):
            for hh in range(2):
                e(f'ds_read_b128 {vr(96+32*i+8*p+4*hh,4)}, v{RDA+2*i+hh} offset:{8192*p}')
    for i in range(2):
        b = 96 + 32 * i
        e(f's_waitcnt lgkmcnt({8*(1-i)})')
        for j in range(8):
            e(f'v_add_f32 v{b+j}, v{b+j}, v{b+8+j}')
            e(f'v_add_f32 v{b+16+j}, v{b+16+j}, v{b+24+j}')
        for j in range(8): e(f'v_add_f32 v{b+j}, v{b+j}, v{b+16+j}')
        for j in range(4): e(f'v_cvt_pk_bf16_f32 v{b+8+j}, v{b+2*j}, v{b+2*j+1}')
        if i: e(f's_add_u32 s{S_OO}, s{S_OO}, {8*2560}')
        e(f'buffer_store_dwordx4 {vr(b+8,4)}, v{VOUT}, {sr(S_OUT,4)}, s{S_OO} offen {o.out_flags}')
    ddump(e, o, 5)
    if o.light:
        e('s_waitcnt vmcnt(0)')
        e(f's_memrealtime {sr(S_ST,2)}')
        e('s_waitcnt lgkmcnt(0)')
        e('v_mov_b32 v2, s98'); e(f'v_mov_b32 v3, s{S_ST}'); e(f'v_mov_b32 v4, s{S_STB}')
        e('s_mov_b64 exec, 1')
        e(f'buffer_store_dwordx2 v[2:3], v4, {sr(S_WS,4)}, 0 offen')
    if o.stamps:
        e('s_waitcnt vmcnt(0)')
        stamp(e, o, 14)

KD = '''.amdhsa_kernel {n}
  .amdhsa_next_free_vgpr 512
  .amdhsa_next_free_sgpr 102
  .amdhsa_accum_offset 256
  .amdhsa_group_segment_fixed_size 0
  .amdhsa_kernarg_size 104
  .amdhsa_user_sgpr_count 2
  .amdhsa_user_sgpr_kernarg_segment_ptr 1
  .amdhsa_system_sgpr_workgroup_id_x 1
.end_amdhsa_kernel
'''

HEADER = """
"""

def gen(o):
    assert not o.w3
    if o.r6: plan6()
    e = Em()
    e.jit = o.jit
    k1 = NAME + '_kernel'
    for l in HEADER.strip().split('\n'): e.raw(l)
    e.raw('; @launch grid=(256,1,1) block=(256,1,1) lds=163840')
    e.raw('.amdgcn_target "amdgcn-amd-amdhsa--gfx950"')
    e.raw('.text')
    e.raw(f'.globl {k1}\n.p2align 8\n.type {k1},@function')
    e.lab(k1)
    prologue(e, o)
    e(f's_cmp_eq_u32 s{S_WAVE}, 3')
    e('s_cbranch_scc1 L_loader')
    if o.al_a > 0:
        for _ in range(o.al_a // 4): e('s_nop 0')
    phase_a(e, o)
    T = phase_b(e, o)
    n0 = T.vm.out()
    pre = T.pump(o.npre)
    npre = T.vm.out() - n0
    e.many(pre)
    e(f's_waitcnt vmcnt({npre}) lgkmcnt(0)')
    e('s_barrier')
    dmark(e, o, 3)
    if o.stamps:
        T.vm.stamp(o, 3)
    e('s_branch L_join')
    align(e, o.al_l)
    e.lab('L_loader')
    loader(e, o)
    if o.w3:
        if o.stamps: e.T3.vm.stamp(o, 3)
        tail(e, o, e.T3, w3=True)
    else:
        e.many(pre)
        if o.stamps: stamp(e, o, 3)
    if o.al_j >= 0:
        e('s_branch L_join'); align(e, o.al_j)
    e.lab('L_join')
    tail(e, o, T)
    e.lab('L_exit')
    e('s_endpgm')
    e.lab('L_end')
    e.raw('.section .rodata,"a"\n.p2align 6')
    e.raw(KD.format(n=k1))
    return e.text()

if __name__ == '__main__':
    o = Opt()
    out = sys.argv[1]
    for a in sys.argv[2:]:
        k, v = a.split('=', 1); v = v.replace('+', ' ')
        cur = getattr(o, k)
        setattr(o, k, (v == '1') if isinstance(cur, bool) else int(v) if isinstance(cur, int) else v)
    open(out, 'w').write(gen(o))
```

```python
import sys, math, struct
NAME = 'concat_heads__mha_block_cached__mha_block_cached__near_ridge'

class Opt:
    stamps = False
    kv_flags = 'nt'
    w_flags = ''
    wo_flags = ''
    ost_flags = 'sc1'
    old_flags = 'sc1'
    look = 7
    rot = 0
    arot = 3
    nun = 1
    tlbq = False
    tickst = 0
    no_w = False
    no_w3 = False
    t_now = False
    t_o1 = False
    t_noo = False
    c8late = True
    pf_kv = 0
    pf_wo = True
    pf_a = False
    pf_w = False
    pf_delay = 0
    pf_s0 = 2
    pf_mid = 0
    pf_flags = ''
    pf_tail = 0
    bal = 0
    bal_lag = 2
    bal_n = 1
    bal_sl = 0
    tagk = 1
    thr_end = 28
    k_first = False
    k_s0 = 0
    tlb = True
    aper = 4
    out_flags = ''
    tsched = 1
    park = True
    maxout = 61
    r1k = 28
    nodup = True
    al_t = -1
    al_l = -1
    al_j = -1
    al_a = -1
    pf2 = False
    pf2_p0 = 1
    pf2_s0 = 0
    pf2_gap = 2
    pf2_pre = 1
    wper = 3
    pf_wi = 6
    mix = 0
    t_skip = ''
    t_no1 = False
    m16 = False
    tper = 2
    pre3 = 1
    wst = ''
    w0 = 3
    r1pack = False
    gran = 4
    tlbd = True
    tlbf = 0
    r6k = 9
    r6e = 3
    r6 = False
    a_skip = ''
    dbgt = False
    jit = 0
    light = False
    lb = 4
    lb_hi = 42
    lb_pos = 0
    lb_t = 0
    lb_lo = 8
    lb_ld = 'sc1'
    lb_st = ''
    pfc = True
    w3 = False
    w3k = 23
    pl_at = 7
    fav = 0
    t15 = True
    nearly = 0
    npre = 3
    pk = True
    v1_late = True
    look_lo = 5
    look_k0 = 0
    look_k1 = 0
    krot = False
    early = True
    chk = 11
    bal_k1 = 30
    psleep = 4
    thr = 20
    blk = 0

WS_FLAGS = 12582912
WS_PROG = WS_FLAGS + 32768
WS_STAMP = 13631488
SLOT = 16384
STAGE = 40960
RND = 12 * 32 * 8192

S_X, S_K, S_V, S_WQ, S_WO, S_OUT, S_WS = 4, 8, 12, 16, 20, 24, 28
S_DBG = 32
S_WAVE, S_BR, S_H, S_BL = 34, 35, 36, 37
S_T0, S_T1, S_T2, S_T3 = 38, 39, 40, 41
S_KX, S_XB, S_XL, S_KVB, S_TICK = 42, 43, 44, 45, 46
S_KOFF, S_VOFF, S_THR, S_FLOOR, S_C, S_OB, S_WQB = 47, 48, 49, 50, 51, 52, 53
S_ST, S_STB, S_QT, S_NT = 54, 56, 57, 58
S_SAVE = 60
S_WN, S_FL = 62, 63
S_EV = 59
S_KARG = 64
S_WOB, S_O1, S_QB, S_CNT, S_RHO, S_WC, S_N, S_KR = 90, 91, 92, 93, 94, 95, 96, 97

V_LANE = 1
V_T0, V_T1, V_T2, V_T3 = 2, 3, 4, 5
V_L, V_MX, V_D = 6, 10, 11
V_DMA = 12
V_KA, V_VA, V_OST, V_WA = 16, 24, 28, 29
V_NEGM = 32
V_SA, V_SB, V_P, V_TMP = 48, 64, 80, 88
V_Q, V_KF, V_VF, V_Q2 = 96, 128, 160, 192

class Em:
    def __init__(self): self.L = []
    def __call__(self, s): self.L.append('    ' + s)
    def lab(self, s): self.L.append(s + ':')
    def raw(self, s): self.L.append(s)
    def many(self, l):
        for x in l: self(x)
    def text(self):
        if getattr(self, 'jit', 0):
            import random
            rnd = random.Random(self.jit); out = []; n = 0
            for l in self.L:
                out.append(l)
                t = l.strip()
                if (t == 's_barrier' or t.startswith('s_waitcnt vmcnt')) and rnd.random() < 0.35:
                    n += 1
                    bit = rnd.choice([0, 1, 2, 3, 4, 5])
                    src = rnd.choice(['s2', f's{S_WAVE}'])
                    if src != 's2': bit &= 1
                    out += [f'    s_cselect_b32 s3, 1, 0', f'    s_bitcmp1_b32 {src}, {bit}', f'    s_cbranch_scc0 L_j{n}', f'    s_sleep {rnd.choice([1, 4, 16, 40])}', f'L_j{n}:', '    s_cmp_eq_u32 s3, 1']
            self.L = out
        return '\n'.join(self.L) + '\n'

def vr(b, n=1): return f'v{b}' if n == 1 else f'v[{b}:{b+n-1}]'
def ar(b, n=1): return f'a{b}' if n == 1 else f'a[{b}:{b+n-1}]'
def sr(b, n=1): return f's{b}' if n == 1 else f's[{b}:{b+n-1}]'
def mfma(d, a, b, c): return f'v_mfma_f32_32x32x16_bf16 {d}, {a}, {b}, {c}'
def hold(ci, off, n):
    return ar(64 + 32 * ci + off, n) if ci < 6 else vr(192 + 32 * (ci - 6) + off, n)

def hold3(ci, off, n):
    return hold(ci, off, n) if ci < 8 else vr(64 + 32 * (ci - 8) + off, n)
def reg4(r): return ar(r - 1000, 4) if r >= 1000 else vr(r, 4)

def cost(i):
    if i.startswith('v_exp') or i.startswith('v_rcp'): return 8
    if i.startswith('s_'): return 2
    return 4

def interleave(e, mf, fill):
    total = sum(cost(f) for f in fill if not isinstance(f, tuple))
    per = total / len(mf)
    fi = 0; acc = 0.0
    deadline = {}; items = []
    for f in fill:
        if isinstance(f, tuple):
            if f[0] == 'M': deadline[f[1]] = len(items)
            else: items.append(f)
        else: items.append(f)
    for k, m in enumerate(mf):
        need = deadline.get(k, 0)
        while fi < need:
            it = items[fi]; fi += 1
            if isinstance(it, tuple):
                assert it[1] < k, (it, k)
                continue
            e(it); acc += cost(it)
        if isinstance(m, (list, tuple)): e.many(m)
        else: e(m)
        target = per * (k + 1)
        while fi < len(items) and (acc < target - 1.0 or k == len(mf) - 1):
            it = items[fi]
            if isinstance(it, tuple):
                if it[1] > k: break
                fi += 1; continue
            e(it); acc += cost(it); fi += 1
    assert fi == len(items)

def gaps(e, mf, front, late=(), per=2, late_from=5):
    g = [[] for _ in mf]
    for i, f in enumerate(front): g[min(i // per, len(mf) - 1)].append(f)
    n = len(mf) - late_from
    for i, f in enumerate(late): g[late_from + (i * n) // len(late)].append(f)
    for m, x in zip(mf, g):
        sk = getattr(e, 'skip', '')
        if 'm' not in sk: e(m)
        e.many([y for y in x if not (('r' in sk and y.startswith('ds_read')) or ('d' in sk and y.startswith('buffer_load_dwordx4 v') and ('s[4:7]' in y or 's[16:19]' in y)))])

def stamp(e, o, idx, clk=False):
    if not o.stamps: return 0
    e(f's_memtime {sr(S_ST,2)}' if clk else f's_memrealtime {sr(S_ST,2)}')
    e('s_waitcnt lgkmcnt(0)')
    e(f'v_mov_b32 v{V_T0}, s{S_ST}')
    e(f'v_mov_b32 v{V_T1}, s{S_STB}')
    e('s_mov_b64 exec, 1')
    e(f'buffer_store_dword v{V_T0}, v{V_T1}, {sr(S_WS,4)}, 0 offen offset:{4*idx}')
    e('s_mov_b64 exec, -1')
    return 1

LAZY = {0: 98, 1: 100}
for _i in range(2, 15): LAZY[_i] = 64 + 2 * (_i - 2)
def lazy(e, o, i):
    if o.stamps: e(f's_memrealtime s[{LAZY[i]}:{LAZY[i]+1}]')
def lazy_dump(e, o, ids):
    if not o.stamps: return 0
    e('s_waitcnt lgkmcnt(0)')
    e(f'v_mov_b32 v{V_T1}, s{S_STB}')
    e('s_mov_b64 exec, 1')
    for i in ids:
        e(f'v_mov_b32 v{V_T0}, s{LAZY[i]}')
        e(f'buffer_store_dword v{V_T0}, v{V_T1}, {sr(S_WS,4)}, 0 offen offset:{16 if i == 0 else 4*(16+i)}')
        e('s_nop 1')
    e('s_mov_b64 exec, -1')
    return len(ids)

def dmark(e, o, i):
    if o.dbgt: e(f's_memrealtime s[{64+2*i}:{65+2*i}]')
def ddump(e, o, n):
    if not o.dbgt: return
    e('s_waitcnt vmcnt(0)')
    dmark(e, o, n - 1)
    e('s_waitcnt lgkmcnt(0)')
    e(f's_cmp_lg_u32 s{S_WAVE}, 0')
    e('s_cbranch_scc1 L_exit')
    e('s_mov_b32 s3, 0')
    for j, w in enumerate((5, 130, 203)):
        e(f's_cmp_eq_u32 s2, {w}')
        e(f's_cselect_b32 s3, {4 + 20 * j}, s3')
    e('s_cmp_eq_u32 s3, 0')
    e('s_cbranch_scc1 L_exit')
    e('v_mov_b32 v2, s3')
    e('s_mov_b64 exec, 1')
    for i in range(n):
        e(f's_sub_u32 s{64+2*i}, s{64+2*i}, s98')
        e(f'v_mov_b32 v3, s{64+2*i}')
        e(f'global_store_dword v2, v3, {sr(S_DBG,2)} offset:{4*i}')
        e('s_nop 1')
    e('s_mov_b64 exec, -1')

def align(e, ph):
    if ph < 0: return
    e.raw('.p2align 6')
    for _ in range(ph // 4): e('s_nop 0')

class Vm:
    def __init__(self, e): self.e = e; self.q = []
    def out(self): return sum(c for _, c in self.q)
    def has(self, name): return name in [n for n, _ in self.q]
    def wait(self, name):
        names = [n for n, _ in self.q]
        if name not in names: return
        i = names.index(name)
        rest = sum(c for _, c in self.q[i + 1:])
        assert rest <= 63
        self.e(f's_waitcnt vmcnt({rest})')
        self.q = self.q[i + 1:]
    def room(self, c):
        while self.out() + c > 61: self.wait(self.q[0][0])
    def add(self, name, c):
        self.q.append((name, c)); assert self.out() <= 63, self.q
    def stamp(self, o, idx, clk=False):
        if o.stamps:
            self.room(1); stamp(self.e, o, idx, clk); self.add(f'st{idx}', 1)

def prologue(e, o):
    if o.stamps or o.dbgt or o.light: e('s_memrealtime s[98:99]')
    e('s_cmp_ge_u32 s2, 256')
    e('s_cbranch_scc1 L_exit')
    e(f's_load_dwordx16 {sr(S_KARG,16)}, s[0:1], 0')
    e(f's_load_dwordx8 {sr(S_KARG+16,8)}, s[0:1], 64')
    e(f's_load_dwordx2 {sr(S_KARG+24,2)}, s[0:1], 96')
    e(f'v_lshrrev_b32 v{V_T0}, 6, v0')
    e(f'v_and_b32 v{V_LANE}, 63, v0')
    e(f'v_readfirstlane_b32 s{S_WAVE}, v{V_T0}')
    e(f's_and_b32 s{S_T0}, s2, 7')
    e(f's_lshr_b32 s{S_T1}, s2, 3')
    e(f's_lshr_b32 s{S_BR}, s{S_T0}, 2')
    e(f's_and_b32 s{S_T2}, s{S_T0}, 3')
    e(f's_lshl_b32 s{S_H}, s{S_T2}, 3')
    e(f's_and_b32 s{S_T3}, s{S_T1}, 7')
    e(f's_add_u32 s{S_H}, s{S_H}, s{S_T3}')
    e(f's_lshr_b32 s{S_BL}, s{S_T1}, 3')
    e(f's_mul_i32 s{S_KX}, s{S_BL}, 5')
    e(f's_add_u32 s{S_KX}, s{S_KX}, 1')
    e(f's_lshr_b32 s{S_KX}, s{S_KX}, 1')
    if o.arot in (2, 3): e(f's_mov_b32 s{S_KX}, 0')
    if o.arot == 4: e(f's_lshr_b32 s{S_T3}, s{S_T3}, 2')
    if o.arot in (0, 3, 4): e(f's_add_u32 s{S_KX}, s{S_KX}, s{S_T3}')
    e(f's_cmp_ge_u32 s{S_KX}, 10')
    e(f's_cselect_b32 s{S_T3}, 10, 0')
    e(f's_sub_u32 s{S_KX}, s{S_KX}, s{S_T3}')
    if o.blk == 0:
        e(f's_mul_i32 s{S_QT}, s{S_T1}, 13')
        e(f's_lshr_b32 s{S_QT}, s{S_QT}, 6')
        e(f's_mul_i32 s{S_T3}, s{S_QT}, 5')
        e(f's_sub_u32 s{S_NT}, s{S_T1}, s{S_T3}')
        e(f's_and_b32 s{S_T3}, s{S_T2}, 1')
        e(f's_mul_i32 s{S_T3}, s{S_T3}, 5')
        e(f's_add_u32 s{S_NT}, s{S_NT}, s{S_T3}')
        e(f's_lshr_b32 s{S_T3}, s{S_T2}, 1')
        e(f's_mul_i32 s{S_T3}, s{S_T3}, 6')
        e(f's_add_u32 s{S_QT}, s{S_QT}, s{S_T3}')
    elif o.blk == 1:
        e(f's_mul_i32 s{S_QT}, s{S_T1}, 26')
        e(f's_lshr_b32 s{S_QT}, s{S_QT}, 8')
        e(f's_mul_i32 s{S_T3}, s{S_QT}, 10')
        e(f's_sub_u32 s{S_NT}, s{S_T1}, s{S_T3}')
        e(f's_mul_i32 s{S_T3}, s{S_T2}, 3')
        e(f's_add_u32 s{S_QT}, s{S_QT}, s{S_T3}')
    else:
        e(f's_mul_i32 s{S_T3}, s{S_T2}, 30')
        e(f's_add_u32 s{S_T3}, s{S_T3}, s{S_T1}')
        e(f's_mul_i32 s{S_NT}, s{S_T3}, 171')
        e(f's_lshr_b32 s{S_NT}, s{S_NT}, 11')
        e(f's_mul_i32 s{S_QT}, s{S_NT}, 12')
        e(f's_sub_u32 s{S_QT}, s{S_T3}, s{S_QT}')
    e(f's_cmp_ge_u32 s{S_T1}, 30')
    e(f's_cselect_b32 s{S_NT}, 15, s{S_NT}')
    e(f's_cselect_b32 s{S_QT}, 0, s{S_QT}')
    e(f's_mul_i32 s{S_QB}, s{S_QT}, 11')
    e(f's_lshr_b32 s{S_QB}, s{S_QB}, 5')
    e(f's_lshl_b32 s{S_STB}, s2, 2')
    e(f's_add_u32 s{S_STB}, s{S_STB}, s{S_WAVE}')
    e(f's_lshl_b32 s{S_STB}, s{S_STB}, 8')
    e(f's_add_u32 s{S_STB}, s{S_STB}, {WS_STAMP}')
    e(f's_lshl_b32 s{S_XL}, s{S_WAVE}, 13')
    e(f's_lshl_b32 s{S_WOB}, s{S_NT}, 7')
    e(f's_cmp_ge_u32 s{S_NT}, 5')
    e(f's_cselect_b32 s{S_T0}, {5 if o.blk == 0 else 0}, 0')
    e(f's_sub_u32 s{S_RHO}, s{S_NT}, s{S_T0}')
    e(f's_mul_i32 s{S_RHO}, s{S_RHO}, {o.rot}')
    e(f's_and_b32 s{S_RHO}, s{S_RHO}, 15')
    for srd, size in ((S_X, 983040), (S_K, 1 << 26), (S_V, 1 << 26), (S_WQ, 5242880), (S_WO, 5242880), (S_OUT, 1966080), (S_WS, 16777216)):
        e(f's_mov_b32 s{srd+2}, {size}')
        e(f's_mov_b32 s{srd+3}, 0x20000')

def srds(e, o):
    e('s_waitcnt lgkmcnt(0)')
    e(f's_cmp_eq_u32 s{S_BR}, 0')
    for srd, i in ((S_WQ, 3), (S_X, 0), (S_K, 1), (S_V, 2), (S_WO, 4)):
        e(f's_cselect_b64 {sr(srd,2)}, {sr(S_KARG+2*i,2)}, {sr(S_KARG+10+2*i,2)}')
    e(f's_mov_b64 {sr(S_OUT,2)}, {sr(S_KARG+20,2)}')
    e(f's_mov_b64 {sr(S_WS,2)}, {sr(S_KARG+24,2)}')
    e(f's_mov_b64 {sr(S_DBG,2)}, {sr(S_KARG+22,2)}')
    for srd in (S_WQ, S_X, S_K, S_V, S_WO, S_OUT, S_WS):
        e(f's_and_b32 s{srd+1}, s{srd+1}, 0xffff')
    lazy(e, o, 1)

def no_task_wo(e):
    e(f's_cmp_eq_u32 s{S_NT}, 15')
    e(f's_cselect_b32 s{S_WO+2}, 0, s{S_WO+2}')

class C:
    M16 = False
    NR = 8; RING = 32768; OFF = 6; J0 = 1; SCR = 3; TL = 'T6'
    W = (32768, 73728, 114688); X = (49152, 90112, 0)
    PIECE = {8: 0, 9: 1, 10: 2, 11: 3, 12: 4, 13: 0, 14: 1, 15: 2}
    TCH = (9, 10, 11)
def plan6():
    C.NR = 6; C.RING = 65536; C.OFF = 4; C.J0 = 2; C.SCR = 2; C.TL = 'T4'
    C.W = (65536, 106496, 24576); C.X = (81920, 0, 40960)
    C.PIECE = {8: 0, 9: 1, 10: 4, 11: 2, 12: 3, 13: 0, 14: 1, 15: 4}
    C.TCH = (10, 11)
PF_TICKS = [0, 1, 6, 10, 15, 19, 22, 24, 25, 26, 27]
def reg_w(s): return C.W[(s + 2) % 3]
def reg_x(s): return C.X[(s + 2) % 3]

SEQ = ['K0']
for k in range(32): SEQ += [f'K{k+1}', f'V{k}']
SEQ += [f'T{i}' for i in range(8)]
POS = {n: i for i, n in enumerate(SEQ)}
def slot(name): return (C.OFF + POS[name]) % C.NR
def slot_addr(name): return C.RING + slot(name) * SLOT

def wo_dma(o, c, ldsbase_s, ldsoff, wob, vw, dyn=False):
    r = []
    if o.no_w and dyn: return ['s_nop 0']
    if dyn:
        r += [f's_mul_i32 s{S_T0}, s{S_WC}, {64*1280}', f's_add_u32 s{S_WC}, s{S_WC}, 1', f's_and_b32 s{S_WC}, s{S_WC}, 15']
    else:
        r += [f's_add_u32 s{S_T0}, s{S_RHO}, {c}', f's_and_b32 s{S_T0}, s{S_T0}, 15', f's_mul_i32 s{S_T0}, s{S_T0}, {64*1280}']
    r.append(f's_add_u32 s{S_T0}, s{S_T0}, {wob}')
    for g_ in range(2):
        r.append(f's_add_u32 m0, {ldsbase_s}, {ldsoff + 4096*g_}' if ldsbase_s else f's_mov_b32 m0, {ldsoff + 4096*g_}')
        r.append(f's_add_u32 s{S_T1}, s{S_T0}, {32*g_*1280}')
        for i in range(4):
            r.append(f'buffer_load_dwordx4 v{vw+i}, {sr(S_WO,4)}, s{S_T1} offen offset:{1024*i} {o.wo_flags} lds')
    return r

def wo_voffs(e, dst):
    L = V_LANE
    e(f'v_lshrrev_b32 v{V_T0}, 3, v{L}')
    e(f'v_mul_u32_u24 v{V_T0}, 1280, v{V_T0}')
    if C.M16:
        e(f'v_lshrrev_b32 v{V_T1}, 4, v{L}')
        e(f'v_lshlrev_b32 v{V_T1}, 1, v{V_T1}')
    else:
        e(f'v_bfe_u32 v{V_T1}, v{L}, 4, 1')
        e(f'v_lshlrev_b32 v{V_T1}, 2, v{V_T1}')
    e(f'v_and_b32 v{V_T2}, 7, v{L}')
    e(f'v_xor_b32 v{V_T1}, v{V_T1}, v{V_T2}')
    e(f'v_lshl_add_u32 v{dst}, v{V_T1}, 4, v{V_T0}')
    for i in range(1, 4): e(f'v_add_u32 v{dst+i}, {(10240-1024)*i}, v{dst}')

def wo_lane_addr(e, dst):
    L = V_LANE
    if C.M16:
        e(f'v_lshrrev_b32 v{V_T0}, 5, v{L}')
        e(f'v_bfe_u32 v{V_T1}, v{L}, 2, 3')
        e(f'v_lshl_add_u32 v{dst}, v{V_T0}, 4, v{V_T1}')
        e(f'v_lshlrev_b32 v{dst}, 7, v{dst}')
        e(f'v_bfe_u32 v{V_T3}, v{L}, 3, 2')
        e(f'v_lshl_add_u32 v{dst}, v{V_T3}, 5, v{dst}')
        e(f'v_and_b32 v{V_T3}, 3, v{L}')
        e(f'v_lshl_add_u32 v{dst}, v{V_T3}, 3, v{dst}')
        return
    e(f'v_lshrrev_b32 v{V_T0}, 5, v{L}')
    e(f'v_bfe_u32 v{V_T1}, v{L}, 2, 2')
    e(f'v_lshl_add_u32 v{dst}, v{V_T0}, 2, v{V_T1}')
    e(f'v_lshlrev_b32 v{dst}, 7, v{dst}')
    e(f'v_bfe_u32 v{V_T3}, v{L}, 3, 1')
    e(f'v_lshl_add_u32 v{dst}, v{V_T3}, 6, v{dst}')
    e(f'v_bfe_u32 v{V_T3}, v{L}, 4, 1')
    e(f'v_lshl_add_u32 v{dst}, v{V_T3}, 5, v{dst}')
    e(f'v_and_b32 v{V_T3}, 3, v{L}')
    e(f'v_lshl_add_u32 v{dst}, v{V_T3}, 3, v{dst}')

def wo_reads(dstf, a0, a1, off, tmp=(V_T0, V_T1, V_T3)):
    r = []
    if C.M16:
        ad = [a0] + list(tmp)
        r += [f'v_xor_b32 v{ad[n]}, {32*n}, v{a0}' for n in range(1, 4)]
        for F in range(2):
            for n in range(4):
                for u in range(2):
                    r.append(f'ds_read_b64_tr_b16 {dstf(16*F+4*n+2*u,2)}, v{ad[n]} offset:{off+(32*F+8*u)*128}')
        return r
    for s4 in range(4):
        for nt in range(2):
            for u in range(2):
                r.append(f'ds_read_b64_tr_b16 {dstf(8*s4+4*nt+2*u,2)}, v{(a0,a1)[nt]} offset:{off+(16*s4+8*u)*128}')
    return r

def poll(e, o, tag, load, test):
    e.many(test)
    e('s_cmp_eq_u64 vcc, -1')
    e(f's_cbranch_scc1 L_polled_{tag}')
    e(f's_mov_b32 s{S_CNT}, 0x20000')
    e.lab(f'L_poll_{tag}')
    e(f's_sleep {o.psleep}')
    e(load)
    e('s_waitcnt vmcnt(0)')
    e.many(test)
    e('s_cmp_eq_u64 vcc, -1')
    e(f's_cbranch_scc1 L_polled_{tag}')
    e(f's_sub_u32 s{S_CNT}, s{S_CNT}, 1')
    e(f's_cmp_lg_u32 s{S_CNT}, 0')
    e(f's_cbranch_scc1 L_poll_{tag}')
    e.lab(f'L_polled_{tag}')

def flag1_tick(o):
    last = 0
    for w in range(3):
        t = int(o.wst[w]) if o.wst else o.w0 + w; ev = []
        for i in range(9):
            ev.append(t)
            t += o.wper + (1 if (o.t15 and t + o.wper == 15) else 0)
        assert ev[0] <= 14 and ev[7] >= 16 and ev[8] <= 30, ev
        last = max(last, min(x for x in ev if x >= 16))
    return last + 1

def loader(e, o):
    L = V_LANE
    VK, VV, VW, VWO, VF, VP, VZ = 24, 16, 20, 12, 17, 18, 19
    VA, VB = 96, 100
    AF = [48, 56]; BF = [64, 80]; ACC = 128
    vm = Vm(e)
    e(f'v_lshrrev_b32 v{V_T0}, 4, v{L}')
    e(f'v_and_b32 v{V_T1}, 15, v{L}')
    e(f'v_lshlrev_b32 v{V_T3}, 2, v{V_T0}')
    e(f'v_xor_b32 v{V_T3}, v{V_T3}, v{V_T1}')
    e(f'v_lshlrev_b32 v{V_T2}, 8, v{V_T0}')
    e(f'v_lshl_add_u32 v{VV}, v{V_T3}, 4, v{V_T2}')
    for i in range(4):
        e(f'v_add_u32 v{V_T3}, {4*i}, v{V_T0}')
        e(f'v_xor_b32 v{V_T3}, v{V_T3}, v{V_T1}')
        e(f'v_lshl_add_u32 v{VK+i}, v{V_T3}, 4, v{V_T2}')
    e(f's_lshl_b32 s{S_KVB}, s{S_BL}, 5')
    e(f's_add_u32 s{S_KVB}, s{S_KVB}, s{S_H}')
    e(f's_lshl_b32 s{S_KVB}, s{S_KVB}, 18')
    e(f's_and_b32 s{S_KR}, s2, 7')
    e(f's_lshl_b32 s{S_KR}, s{S_KR}, 1')
    e(f's_lshr_b32 s{S_T0}, s2, 3')
    e(f's_add_u32 s{S_KR}, s{S_KR}, s{S_T0}')
    e(f's_and_b32 s{S_KR}, s{S_KR}, {15 if o.krot else 0}')
    e(f's_lshl_b32 s{S_KR}, s{S_KR}, 14')
    e(f'v_lshlrev_b32 v{VW}, 19, v{L}')
    e(f'v_lshlrev_b32 v{VW+1}, 25, v{L}')
    e(f'v_mov_b32 v{VZ}, 0')
    e(f'v_lshlrev_b32 v{VW+3}, 18, v{L}')
    e(f's_lshl_b32 s{S_T0}, s{S_BR}, 2')
    e(f's_add_u32 s{S_FL}, s{S_T0}, s{S_BL}')
    e(f's_lshl_b32 s{S_FL}, s{S_FL}, 5')
    e(f's_add_u32 s{S_FL}, s{S_FL}, s{S_H}')
    e(f's_lshl_b32 s{S_FL}, s{S_FL}, 7')
    e(f's_add_u32 s{S_FL}, s{S_FL}, {WS_FLAGS}')
    e(f's_mul_i32 s{S_T2}, s{S_BR}, 8')
    e(f's_add_u32 s{S_T2}, s{S_T2}, s{S_BL}')
    e(f's_mul_i32 s{S_T2}, s{S_T2}, 96')
    e(f's_add_u32 s{S_T2}, s{S_T2}, s{S_H}')
    e(f's_lshl_b32 s{S_T2}, s{S_T2}, 13')
    if o.pfc:
        e(f's_getpc_b64 {sr(S_ST,2)}')
        e.lab('L_pc')
        e(f's_sub_u32 s{S_ST}, s{S_ST}, L_pc-{NAME}_kernel')
        e(f's_subb_u32 s{S_ST+1}, s{S_ST+1}, 0')
        e(f's_lshr_b32 s{S_T0}, s2, 3')
        e(f's_lshl_b32 s{S_T0}, s{S_T0}, 11')
        e(f'v_lshlrev_b32 v{V_T0}, 7, v{L}')
        e(f'v_add_u32 v{V_T0}, s{S_T0}, v{V_T0}')
        e(f'v_min_u32 v{V_T0}, L_end-{NAME}_kernel-4, v{V_T0}')
        e('s_mov_b64 exec, 0xffff')
        e(f'global_load_dword v{VW+2}, v{V_T0}, {sr(S_ST,2)}')
        e('s_mov_b64 exec, -1')
        vm.add('pfc', 1)
    srds(e, o)
    if o.tlb:
        e('s_mov_b64 exec, 3')
        e(f'buffer_load_dword v{VW+2}, v{VW+1}, {sr(S_K,4)}, s{S_KVB} offen')
        e(f'buffer_load_dword v{VW+2}, v{VW+1}, {sr(S_V,4)}, s{S_KVB} offen')
        e('s_mov_b64 exec, 0x3ffffff')
        if o.tlbq: e(f'buffer_load_dword v{VW+2}, v{VW}, {sr(S_WQ,4)}, 0 offen')
        e(f'buffer_load_dword v{VW+2}, v{VW}, {sr(S_WO,4)}, 0 offen')
        e(f'buffer_load_dword v{VW+2}, v{VW}, {sr(S_OUT,4)}, 0 offen')
        e('s_mov_b64 exec, 0x7007')
        e(f'buffer_load_dword v{VW+2}, v{VW+3}, {sr(S_WS,4)}, s{S_T2} offen')
        e('s_mov_b64 exec, 1')
        e(f'buffer_load_dword v{VW+2}, v{VZ}, {sr(S_WS,4)}, s{S_FL} offen')
        if o.tlbd: e(f'global_load_dword v{VW+2}, v{VZ}, {sr(S_DBG,2)} offset:128')
        if o.tlbf:
            e('s_mov_b64 exec, -1')
            e(f'v_and_b32 v{V_T0}, 3, v{L}')
            e(f'v_lshlrev_b32 v{V_T0}, 16, v{V_T0}')
            e(f'v_lshrrev_b32 v{V_T1}, 2, v{L}')
            e(f'v_lshl_add_u32 v{V_T0}, v{V_T1}, 25, v{V_T0}')
            e('s_mov_b64 exec, 0xee')
            e(f'buffer_load_dword v{VW+2}, v{V_T0}, {sr(S_K,4)}, s{S_KVB} offen')
            e(f'buffer_load_dword v{VW+2}, v{V_T0}, {sr(S_V,4)}, s{S_KVB} offen')
        e('s_mov_b64 exec, -1')
        vm.add('tlb', 6 + o.tlbq + o.tlbd + 2 * o.tlbf)
    def issue_l(name):
        kind, t = name[0], int(name[1:])
        r = []
        if kind == 'K' and t > 31: return r
        base = slot_addr(name)
        if kind in 'KV':
            off = (t // 16) * (4 * 32 * 262144)
            r.append(f's_add_u32 s{S_T0}, s{S_KR}, {(t % 16) * SLOT}')
            r.append(f's_and_b32 s{S_T0}, s{S_T0}, {16 * SLOT - 1}')
            r.append(f's_add_u32 s{S_T0}, s{S_T0}, s{S_KVB}')
            for g in range(4):
                r.append(f's_mov_b32 m0, {base + 4096*g}')
                r.append(f's_add_u32 s{S_T1}, s{S_T0}, {off + 4096*g}')
                for i in range(4):
                    v = VK + i if kind == 'K' else VV
                    r.append(f'buffer_load_dwordx4 v{v}, {sr(S_K if kind == "K" else S_V,4)}, s{S_T1} offen offset:{1024*i} {o.kv_flags} lds')
        else:
            rr = slot(name); j, hi = C.J0 + (rr >> 1), rr & 1
            if j == C.PIECE[12]: return r
            for p in range(2):
                r.append(f's_add_u32 s{S_T2}, s{S_WOB}, {1024*1280*(2*hi+p)}')
                r += wo_dma(o, [c for c in C.TCH if C.PIECE[c] == j][0], None, base + 8192 * p, f's{S_T2}', VWO)
        return r
    def issue(name):
        r = issue_l(name)
        if r:
            vm.room(16); e.many(r); vm.add(name, 16)
    def own_w(c, j=0):
        vm.room(8)
        e(f's_add_u32 s{S_T2}, s{S_WOB}, {1024*1280*3}')
        e.many(wo_dma(o, c, None, 3 * 8192 + 32768 * j, f's{S_T2}', VWO))
        vm.add(f'w{c}', 8)
    def wait_upto(n):
        for m in range(n, -1, -1):
            if vm.has(SEQ[m]): vm.wait(SEQ[m]); return
    def flag(val):
        pre = []; so = S_FL
        if val == 1 and o.r1pack:
            so = S_T2
            pre = [f's_sub_u32 s{S_T2}, s{S_FL}, {WS_FLAGS}', f's_lshr_b32 s{S_T2}, s{S_T2}, 5', f's_add_u32 s{S_T2}, s{S_T2}, {WS_PROG + 4096}']
        return pre + [f's_add_u32 s{S_T0}, s{S_N}, {val}', f'v_mov_b32 v{V_T2}, s{S_T0}', 's_mov_b64 exec, 1',
                f'buffer_store_dword v{V_T2}, v{VZ}, {sr(S_WS,4)}, s{so} offen sc1', 's_mov_b64 exec, -1']
    if o.pf_a:
        if o.pf_delay: e(f's_sleep {o.pf_delay}')
        e(f'v_lshrrev_b32 v{VW}, 1, v{L}')
        e(f'v_lshlrev_b32 v{VW}, 13, v{VW}')
        e(f'v_and_b32 v{VW+1}, 1, v{L}')
        e(f'v_lshl_add_u32 v{VW}, v{VW+1}, 7, v{VW}')
        e(f's_mul_i32 s{S_T0}, s{S_BL}, {160*8192}')
        e(f's_lshl_b32 s{S_T1}, s{S_H}, 8')
        e(f's_add_u32 s{S_T0}, s{S_T0}, s{S_T1}')
        for i in range(5):
            e(f's_add_u32 s{S_T1}, s{S_T0}, {32*i*8192}')
            e(f'buffer_load_dword v{VW+2}, v{VW}, {sr(S_WQ,4)}, s{S_T1} offen {o.w_flags}')
        e(f'v_lshlrev_b32 v{VW+1}, 7, v{L}')
        e(f's_and_b32 s{S_T0}, s{S_H}, 7')
        e(f's_mul_i32 s{S_T0}, s{S_T0}, 15360')
        e(f's_mul_i32 s{S_T1}, s{S_BL}, 122880')
        e(f's_add_u32 s{S_T0}, s{S_T0}, s{S_T1}')
        for i in range(4):
            e(f's_add_u32 s{S_T1}, s{S_T0}, {(i >> 1) * 491520 + (i & 1) * 8192}')
            e(f'buffer_load_dword v{VW+2}, v{VW+1}, {sr(S_X,4)}, s{S_T1} offen {o.w_flags}')
        vm.add('pfa', 9)
    if o.k_first: issue('K0'); issue('K1')
    e('s_cmp_lg_u32 s2, 0')
    e('s_cbranch_scc1 L_notag')
    e(f's_memrealtime {sr(S_ST,2)}')
    e('s_waitcnt lgkmcnt(0)')
    e(f's_mul_i32 s{S_ST+1}, s{S_ST+1}, 0x9e3779b1')
    e(f's_add_u32 s{S_ST}, s{S_ST}, s{S_ST+1}')
    e(f's_or_b32 s{S_ST}, s{S_ST}, 4')
    e(f's_and_b32 s{S_ST}, s{S_ST}, -4')
    e(f'v_mov_b32 v{V_T2}, s{S_ST}')
    e('s_mov_b64 exec, 1')
    e(f'global_store_dword v{VZ}, v{V_T2}, {sr(S_DBG,2)} sc1')
    e('s_mov_b64 exec, -1')
    e.lab('L_notag')
    e(f's_lshl_b32 s{S_T0}, s{S_BR}, 2')
    e(f's_add_u32 s{S_T0}, s{S_T0}, s{S_QB}')
    e(f's_lshl_b32 s{S_T0}, s{S_T0}, 12')
    e(f's_add_u32 s{S_T0}, s{S_T0}, {WS_FLAGS}')
    e(f'v_and_b32 v{VP}, 31, v{L}')
    e(f'v_lshlrev_b32 v{VP}, 7, v{VP}')
    e(f'v_add_u32 v{VP}, s{S_T0}, v{VP}')
    if o.r1pack:
        e(f'v_subrev_u32 v{VP}, {WS_FLAGS}, v{VP}')
        e(f'v_lshrrev_b32 v{VP}, 5, v{VP}')
        e(f'v_add_u32 v{VP}, {WS_PROG + 4096}, v{VP}')
    a_addr(e, VA, VB, None)
    wo_voffs(e, VWO)
    wo_lane_addr(e, V_WA)
    e(f'v_lshlrev_b32 v{VW}, 7, v{L}')
    e(f'v_add_u32 v{V_WA}, {3*8192}, v{V_WA}')
    e(f'v_xor_b32 v{V_WA+1}, 64, v{V_WA}')
    e(f'v_lshlrev_b32 v{V_OST}, 4, v{L}')
    e(f's_mov_b32 s{S_C}, {SCALE}')
    pf = []
    for n in range(2, 2 + o.pf_kv):
        kind, t = SEQ[n][0], int(SEQ[n][1:])
        for hh in range(2):
            pf.append([f's_add_u32 s{S_T1}, s{S_KVB}, {t*SLOT + hh*8192}',
                       f'buffer_load_dword v{VW+1}, v{VW}, {sr(S_K if kind == "K" else S_V,4)}, s{S_T1} offen {o.pf_flags}'])
    if o.pf_wo:
        e(f's_lshl_b32 s{S_T2}, s{S_H}, 2')
        e(f's_add_u32 s{S_T2}, s{S_T2}, s{S_BL}')
        e(f's_mul_i32 s{S_T2}, s{S_T2}, 40960')
        for i in range(5):
            pf.append([f's_add_u32 s{S_T1}, s{S_T2}, {i*8192}',
                       f'buffer_load_dword v{VW+1}, v{VW}, {sr(S_WO,4)}, s{S_T1} offen {o.pf_flags}'])
    def reads(s4, buf):
        r = []
        for t in (2, 3):
            for u in range(2):
                r.append(f'ds_read_b64_tr_b16 {vr(AF[buf]+4*(t-2)+2*u,2)}, v{VA+t} offset:{(16*s4+4*u)*256}')
        r += [f'ds_read_b128 {vr(BF[buf]+4*j,4)}, v{VB+s4} offset:{8192*j + 4096}' for j in range(3)]
        return r
    def mf(buf, first):
        r = []
        for j in range(3):
            for t in range(2):
                d = vr(ACC + 32 * j + 16 * t, 16)
                r.append(mfma(d, vr(AF[buf] + 4 * t, 4), vr(BF[buf] + 4 * j, 4), '0' if first else d))
        return r
    pf2 = []
    if o.pf2:
        e(f'v_and_b32 v36, 31, v{L}')
        e(f'v_lshrrev_b32 v36, 1, v36')
        e(f'v_lshrrev_b32 v37, 5, v{L}')
        e(f'v_lshl_add_u32 v36, v37, 6, v36')
        e(f'v_lshlrev_b32 v36, 13, v36')
        e(f'v_and_b32 v37, 1, v{L}')
        e(f'v_lshl_add_u32 v36, v37, 7, v36')
        e(f'v_lshrrev_b32 v38, 1, v{L}')
        e(f'v_min_u32 v38, 23, v38')
        e(f'v_mul_u32_u24 v38, 1280, v38')
        e(f'v_lshl_add_u32 v38, v37, 7, v38')
        e(f's_lshl_b32 s{S_XB}, s{S_BL}, 17')
        e(f's_lshl_b32 s{S_T0}, s{S_H}, 8')
        e(f's_add_u32 s{S_XB}, s{S_XB}, s{S_T0}')
        e(f's_bfe_u32 s{S_T0}, s{S_H}, 0x10002')
        e(f's_lshl_b32 s{S_T0}, s{S_T0}, 2')
        e(f's_add_u32 s{S_T0}, s{S_T0}, s{S_BL}')
        e(f's_mul_i32 s{S_OB}, s{S_T0}, 122880')
        e(f's_and_b32 s{S_T0}, s{S_H}, 3')
        e(f's_mul_i32 s{S_T0}, s{S_T0}, {24*1280}')
        e(f's_add_u32 s{S_OB}, s{S_OB}, s{S_T0}')
        for p in range(o.pf2_p0, 5):
            pf2.append([f's_add_u32 s{S_T1}, s{S_XB}, {128*p*8192}', f'buffer_load_dword v39, v36, {sr(S_WQ,4)}, s{S_T1} offen',
                        f's_add_u32 s{S_T1}, s{S_OB}, {256*p}', f'buffer_load_dword v39, v38, {sr(S_X,4)}, s{S_T1} offen'])
        for x in pf2[:o.pf2_pre]:
            e.many(x); vm.add('pf2', 2)
        pf2 = pf2[o.pf2_pre:]
    extra = {}
    def ride(step, name, ins, cnt):
        extra.setdefault(step, []).append((name, ins, cnt))
    for i, x in enumerate(pf2): ride(o.pf2_s0 + o.pf2_gap * i, 'pf2', x, 2)
    if not o.k_first:
        for i, nm in enumerate(('K0', 'K1')):
            ins = issue_l(nm)
            for q in range(4): ride(4 * o.k_s0 + 4 * i + q, nm if q == 3 else None, ins[(3 + 6 * q if q else 0):3 + 6 * q + 6], 4)
    npf = 4 * (7 - o.pf_s0)
    for i, x in enumerate(pf): ride(4 * o.pf_s0 + (i * npf) // max(len(pf), 1), 'pf', x, 1)
    for i, nm in enumerate(('V0', 'K2')):
        ins = issue_l(nm)
        for q in range(2): ride(31 + 2 * i + q, nm if q == 1 else None, ins[(15 if q else 0):3 + 12 * q + 12], 8)
    ins = issue_l('V1')
    for q in range(0 if o.v1_late else 2): ride(35 + q, 'V1' if q == 1 else None, ins[(15 if q else 0):3 + 12 * q + 12], 8)
    e('s_barrier')
    e.many(reads(0, 0))
    e.skip = o.a_skip
    for s in range(10):
        for s4 in range(4):
            step = 4 * s + s4; buf = step & 1
            e('s_waitcnt lgkmcnt(0)')
            if step == 31: no_task_wo(e)
            if s4 == 3:
                if s == 9: vm.wait('K1')
                e('s_barrier')
            late = []
            for name, ins, cnt in extra.get(step, []):
                vm.room(cnt); late += ins; vm.add(name or 'part', cnt)
            if s4 == 2 and s < 9: late += a_step(s, VA)
            front = reads((s4 + 1) & 3, buf ^ 1) if step < 39 else []
            gaps(e, mf(buf, step == 0), front, late, per=max(o.aper - 1, 3), late_from=(2 if s4 == 2 else 1))
    e.skip = ''
    if o.v1_late: issue('V1')
    e('s_nop 7'); e('s_nop 3')
    for j in range(3):
        for i in range(16): e.many(conv(i, ACC + 32 * j, ACC + 32 * j))
        for f in range(4): e(f'ds_write_b128 v{V_OST}, {vr(ACC+32*j+4*f,4)} offset:{8192*j + 1024*f}')
    e('s_waitcnt lgkmcnt(0)')
    issue('K3')
    issued = POS['K3']
    e(f's_lshr_b32 s{S_WC}, s2, 3')
    e(f's_mul_i32 s{S_KX}, s{S_WC}, 13')
    e(f's_lshr_b32 s{S_KX}, s{S_KX}, 6')
    vm.wait('pfa')
    e(f'v_mul_u32_u24 v{VW+2}, 1280, v{L}')
    vm_pg = [None]
    ld_own = f'buffer_load_dword v23, v22, {sr(S_WS,4)}, 0 offen sc1'
    T3 = Tail(e, o); T3.vm = vm
    T3.free = [1000 + r for r in range(32, 64, 4)]
    e.T3 = T3
    def shadow_mm(c, first):
        m = []
        af = (lambda off, n: hold3(c, off, n)) if c < 12 else (lambda off, n: vr(32 + off, n))
        for s4 in range(4):
            for nt in range(2):
                d = ar(16 * nt, 16)
                m.append(mfma(d, af(8 * s4 + 4 * nt, 4), reg4(T3.where[(0, c)][s4]), '0' if (first and s4 == 0) else d))
        return m
    ld_cnt = f'global_load_dword v23, v{VZ}, {sr(S_DBG,2)} sc1'
    ld_fl = f'buffer_load_dword v23, v{VP}, {sr(S_WS,4)}, 0 offen sc1'
    for k in range(32):
        wait_upto(POS[f'V{k}'])
        vm.stamp(o, 32 + k) if o.tickst == 1 else None
        e('s_barrier')
        vm.stamp(o, 32 + k) if o.tickst == 2 else None
        if k == flag1_tick(o):
            vm.room(1); e.many(flag(1)); vm.add('f1', 1)
        if o.pf_w and k in PF_TICKS and PF_TICKS.index(k) >= o.pf_wi:
            vm.room(1)
            e(f's_add_u32 s{S_T0}, s{S_KX}, {6 * PF_TICKS.index(k)}')
            e(f's_and_b32 s{S_T2}, s{S_T0}, 3')
            e(f's_lshl_b32 s{S_T2}, s{S_T2}, 4')
            e(f's_lshr_b32 s{S_T0}, s{S_T0}, 2')
            e(f's_add_u32 s{S_T0}, s{S_T0}, s{S_RHO}')
            e(f's_and_b32 s{S_T0}, s{S_T0}, 15')
            e(f's_add_u32 s{S_T0}, s{S_T0}, s{S_T2}')
            e(f's_mul_i32 s{S_T0}, s{S_T0}, {64*1280}')
            e(f's_add_u32 s{S_T0}, s{S_T0}, s{S_WOB}')
            e(f'buffer_load_dword v{VW+1}, v{VW+2}, {sr(S_WO,4)}, s{S_T0} offen {o.wo_flags}')
            vm.add('pft', 1)
        wper = o.wper; ws = int(o.wst[3]) if o.wst else o.w0 - 1 if wper == 3 else o.w0 + 1
        wev = (k - ws) // wper if (k >= ws and (k - ws) % wper == 0 and k <= ws + 8 * wper) else None
        if wev:
            vm.wait(f'w{wev-1}')
            e.many(wo_reads(lambda off, n: hold3(wev - 1, off, n), V_WA, V_WA + 1, 0))
        if o.w3 and k == o.w3k - 1:
            e(f'v_and_b32 v22, 7, v{L}')
            e(f'v_lshlrev_b32 v22, 7, v22')
            e(f'v_readfirstlane_b32 s{S_T0}, v{VP}')
            e(f's_add_u32 s{S_T0}, s{S_T0}, {24*128}')
            e(f'v_add_u32 v22, s{S_T0}, v22')
            vm.room(1); e(ld_own); vm.add('po', 1)
        if o.lb and k == o.tagk + 1:
            e(f's_and_b32 s{S_T0}, s2, 7')
            e(f's_lshl_b32 s{S_T0}, s{S_T0}, 7')
            e(f's_add_u32 s{S_T0}, s{S_T0}, {WS_PROG}')
            e(f'v_and_b32 v33, 31, v{L}')
            e(f'v_lshlrev_b32 v33, 2, v33')
            e(f'v_add_u32 v33, s{S_T0}, v33')
            e(f's_lshr_b32 s{S_T2}, s2, 3')
            e(f's_lshl_b32 s{S_T2}, s{S_T2}, 2')
            e(f's_add_u32 s{S_T0}, s{S_T0}, s{S_T2}')
            e(f'v_mov_b32 v32, s{S_T0}')
            e(f's_mov_b32 s{S_WC}, 0')
            if o.lb_t: e(f's_mov_b32 s{S_KX}, 0')
        if o.lb and o.tagk + 1 <= k <= 28:
            vm.room(1)
            e(f's_add_u32 s{S_T0}, s{S_N}, {4 * k}')
            e(f'v_mov_b32 v35, s{S_T0}')
            e('s_mov_b64 exec, 1')
            e(f'buffer_store_dword v35, v32, {sr(S_WS,4)}, 0 offen {o.lb_st}')
            e('s_mov_b64 exec, -1')
            vm.add('ps', 1)
        if o.lb and vm_pg[0] is not None and vm_pg[0] + 1 == k:
            vm.wait('pg')
            e(f'v_subrev_u32 v34, s{S_N}, v34')
            if o.lb_t:
                e(f'v_cmp_ge_u32 vcc, {4 * (k - 2)}, v34')
                e(f's_bcnt1_i32_b32 s{S_KX}, vcc_lo')
            e(f'v_subrev_u32 v34, {4 * k}, v34')
            e(f'v_cmp_gt_u32 vcc, 64, v34')
            e(f's_bcnt1_i32_b32 s{S_WC}, vcc_lo')
        if o.r6 and k == o.r6k: own_w(9, 1)
        if k in (o.tagk, o.r1k):
            vm.room(1); e(ld_cnt if k == o.tagk else ld_fl); vm.add('pl', 1)
        if k == 30 and not o.w3:
            tail_setup(e, o)
            vm.room(4 * o.nearly); e.many(e.early); vm.add('early', 4 * o.nearly)
        sh = []
        if o.w3 and o.w3k < k <= o.w3k + 6: sh = [2 * (k - o.w3k - 1), 2 * (k - o.w3k - 1) + 1]
        if o.w3 and k == o.w3k + 7: sh = [12]
        first = POS[f'K{k+1}']
        lk = o.look if o.look_k0 <= k < o.look_k1 else o.look_lo
        if k >= 28: lk = 7 if first + o.look_lo >= POS['V31'] else lk
        lim = min(first + lk, first + C.NR - 1, POS[C.TL])
        if k == 31: lim = POS[C.TL]
        if o.tsched == 1 and k in (29, 30): lim = min(lim, POS['T1'] + (k - 29))
        if o.tsched == 2 and k < 31: lim = min(lim, POS['V31'])
        if o.tsched == 3 and k == 29: lim = min(lim, POS['V31'])
        done_sh = False
        def do_shadow(fill):
            if sh == [12]:
                vm.wait('w12')
                e.many(wo_reads(lambda off, n: vr(32 + off, n), V_WA, V_WA + 1, 0))
                e('s_waitcnt lgkmcnt(0)')
            elif wev: e('s_waitcnt lgkmcnt(0)')
            for c in sh: vm.wait(f'o0_{c}')
            m = []
            for c in sh: m += shadow_mm(c, c == 0)
            gaps(e, m, fill(), per=3)
            for c in sh: T3.free += T3.where[(0, c)]
            vm.room(8); e.many(T3.pump(2))
        while issued < lim:
            issued += 1
            if o.lb and o.tagk + 1 <= k < 27 and issued == lim - 1 + o.lb_pos:
                vm.room(17)
                e(f'buffer_load_dword v34, v33, {sr(S_WS,4)}, 0 offen {o.lb_ld}')
                vm.add('pg', 1); vm_pg[0] = k
            if sh and issued == lim and issue_l(SEQ[issued]):
                def fill():
                    vm.room(16); vm.add(SEQ[issued], 16)
                    return issue_l(SEQ[issued])
                do_shadow(fill); done_sh = True
            elif o.gran < 16 and SEQ[issued][0] in 'KV' and k < o.thr_end and issue_l(SEQ[issued]):
                ins = issue_l(SEQ[issued]); ng = o.gran // 4
                for q in range(0, 4, ng):
                    vm.room(o.gran)
                    e.many(ins[(3 + 6 * q if q else 0):3 + 6 * (q + ng)])
                    vm.add(SEQ[issued] if q + ng == 4 else 'part', o.gran)
                    if q + ng == 4: break
                    if o.lb and o.tagk + 2 <= k:
                        while vm.out() > o.lb_hi: vm.wait(vm.q[0][0])
                        e(f's_cmp_ge_u32 s{S_WC}, {o.lb}')
                        e(f's_cbranch_scc1 L_deep{issued}_{q}')
                        e(f's_waitcnt vmcnt({o.thr})')
                        e.lab(f'L_deep{issued}_{q}')
                    else:
                        while vm.out() > o.thr: vm.wait(vm.q[0][0])
            else:
                issue(SEQ[issued])
            if o.lb and o.tagk + 2 <= k < o.thr_end:
                while vm.out() > o.lb_hi: vm.wait(vm.q[0][0])
                e(f's_cmp_ge_u32 s{S_WC}, {o.lb}')
                e(f's_cbranch_scc1 L_deep{issued}')
                e(f's_waitcnt vmcnt({o.thr})')
                if o.lb_t:
                    e(f's_cmp_lt_u32 s{S_KX}, {o.lb_t}')
                    e(f's_cbranch_scc1 L_deep{issued}')
                    e(f's_waitcnt vmcnt({o.lb_lo})')
                e.lab(f'L_deep{issued}')
            else:
                while vm.out() > o.thr + (8 if done_sh else 0) and k < o.thr_end: vm.wait(vm.q[0][0])
        if sh and not done_sh: do_shadow(lambda: [])
        if o.w3 and k == o.w3k:
            vm.wait('po')
            e(f's_add_u32 s{S_T3}, s{S_N}, 1')
            poll(e, o, 'r1o', ld_own, ['v_and_b32 v23, -3, v23', f'v_cmp_eq_u32 vcc, s{S_T3}, v23'])
            tail_setup(e, o)
            T3.todo = [(0, c) for c in range(16)]
            vm.room(8); e.many(T3.pump(2))
        if k == o.tagk:
            vm.wait('pl')
            poll(e, o, 'tag', ld_cnt, ['v_cmp_ne_u32 vcc, 0, v23'])
            e(f'v_readfirstlane_b32 s{S_N}, v23')
        if k == o.r1k:
            vm.wait('pl')
            e(f's_add_u32 s{S_T3}, s{S_N}, 1')
            poll(e, o, 'r1', ld_fl, ['v_and_b32 v23, -3, v23', f'v_cmp_eq_u32 vcc, s{S_T3}, v23'])
        if wev is not None:
            e('s_waitcnt lgkmcnt(0)')
            own_w(wev)
    npre = 4 * o.npre
    if o.pre3 == 2:
        vm.room(npre + 1); e.many(e.pre)
    e('s_barrier')
    if o.pre3 == 1: vm.room(npre + 1)
    e.many(flag(3))
    if o.pre3 == 1: e.many(e.pre)
    e(f's_waitcnt vmcnt({npre if o.pre3 == 1 else npre + 1 if o.pre3 == 2 else 1})')
    if o.pre3 == 0: e.many(e.pre)
    vm.q = []

def a_addr(e, VA, VB, xl):
    L = V_LANE
    e(f'v_lshrrev_b32 v{V_T0}, 5, v{L}')
    e(f'v_bfe_u32 v{V_T1}, v{L}, 2, 2')
    e(f'v_lshl_add_u32 v{V_T2}, v{V_T0}, 3, v{V_T1}')
    e(f'v_lshlrev_b32 v{V_T2}, 8, v{V_T2}')
    e(f'v_lshl_add_u32 v{V_T2}, v{V_T1}, 6, v{V_T2}')
    e(f'v_bfe_u32 v{V_T3}, v{L}, 4, 1')
    e(f'v_lshl_add_u32 v{V_T2}, v{V_T3}, 5, v{V_T2}')
    e(f'v_and_b32 v{V_T3}, 1, v{L}')
    e(f'v_lshl_add_u32 v{V_T2}, v{V_T3}, 4, v{V_T2}')
    e(f'v_bfe_u32 v{V_T3}, v{L}, 1, 1')
    e(f'v_lshl_add_u32 v{V_T2}, v{V_T3}, 3, v{V_T2}')
    for t in range(4):
        e(f'v_xor_b32 v{VA+t}, {64*t}, v{V_T2}')
        e(f'v_add_u32 v{VA+t}, {reg_w(0)}, v{VA+t}')
    e(f'v_and_b32 v{V_T1}, 31, v{L}')
    e(f'v_bfe_u32 v{V_T2}, v{L}, 1, 3')
    e(f'v_xor_b32 v{V_T2}, v{V_T2}, v{V_T0}')
    e(f'v_lshlrev_b32 v{V_T2}, 4, v{V_T2}')
    e(f'v_lshl_add_u32 v{V_T2}, v{V_T1}, 7, v{V_T2}')
    if xl is not None:
        e(f's_add_u32 s{S_T0}, s{xl}, {reg_x(0)}')
    for s4 in range(4):
        e(f'v_xor_b32 v{VB+s4}, {32*s4}, v{V_T2}')
        e(f'v_add_u32 v{VB+s4}, s{S_T0}, v{VB+s4}' if xl is not None else f'v_add_u32 v{VB+s4}, {reg_x(0)}, v{VB+s4}')

def a_step(s, VA):
    r = []
    for i in range(8):
        d = reg_w(s + 1) - reg_w(s) if i < 4 else reg_x(s + 1) - reg_x(s)
        r.append(f'v_add_u32 v{VA+i}, {d}, v{VA+i}' if d > 0 else f'v_subrev_u32 v{VA+i}, {-d}, v{VA+i}')
    return r

SCALE = hex(struct.unpack("<I", struct.pack("<f", math.log2(math.e) / math.sqrt(128.0)))[0])
def conv(i, src, dst):
    a = src + 2 * i
    return [f'v_mul_f32 v{a}, s{S_C}, v{a}', f'v_mul_f32 v{a+1}, s{S_C}, v{a+1}', f'v_cvt_pk_bf16_f32 v{dst+i}, v{a}, v{a+1}']

def phase_a(e, o):
    L = V_LANE
    VA, VB = V_Q, V_Q + 4
    AF = [V_SA, V_SB]; BF = [V_P, V_TMP]; ACC = [128, 192]
    e(f'v_lshrrev_b32 v{V_T0}, 3, v{L}')
    e(f'v_mul_u32_u24 v{V_T0}, 1280, v{V_T0}')
    e(f'v_lshrrev_b32 v{V_T1}, 4, v{L}')
    e(f'v_and_b32 v{V_T2}, 7, v{L}')
    e(f'v_xor_b32 v{V_T1}, v{V_T1}, v{V_T2}')
    for i in range(4):
        e(f'v_xor_b32 v{V_T2}, {4*(i&1)}, v{V_T1}')
        e(f'v_lshl_add_u32 v{V_DMA+i}, v{V_T2}, 4, v{V_T0}')
        if i: e(f'v_add_u32 v{V_DMA+i}, {(10240-1024)*i}, v{V_DMA+i}')
    e(f's_mul_i32 s{S_XB}, s{S_BL}, 3')
    e(f's_add_u32 s{S_XB}, s{S_XB}, s{S_WAVE}')
    e(f's_mul_i32 s{S_OB}, s{S_BR}, 24')
    e(f's_add_u32 s{S_OB}, s{S_OB}, s{S_XB}')
    e(f's_mul_i32 s{S_XB}, s{S_XB}, 40960')
    def xload(s, it):
        r = []
        if it == 0:
            r.append(f's_lshl_b32 s{S_T0}, s{S_KX}, 7')
            r.append(f's_add_u32 s{S_T0}, s{S_T0}, s{S_XB}')
        r.append(f's_add_u32 m0, s{S_XL}, {reg_x(s) + 4096*it}')
        r.append(f's_add_u32 s{S_T1}, s{S_T0}, {491520*it}')
        for i in range(4):
            r.append(f'buffer_load_dwordx4 v{V_DMA+i}, {sr(S_X,4)}, s{S_T1} offen offset:{1024*i} {o.w_flags} lds')
        if it == 1:
            if s + 1 < o.nun: r.append(f's_mov_b32 s{S_KX}, {s + 1}')
            elif s + 1 == o.nun: r.append(f's_mov_b32 s{S_KX}, s{S_KR}')
            else:
                r.append(f's_add_u32 s{S_KX}, s{S_KX}, 1')
                r.append(f's_cmp_eq_u32 s{S_KX}, 10')
                r.append(f's_cselect_b32 s{S_KX}, {o.nun}, s{S_KX}')
        return r
    if o.nun:
        for _ in range(2):
            e(f's_cmp_ge_u32 s{S_KX}, {10 - o.nun}')
            e(f's_cselect_b32 s{S_T0}, {10 - o.nun}, 0')
            e(f's_sub_u32 s{S_KX}, s{S_KX}, s{S_T0}')
        e(f's_add_u32 s{S_KR}, s{S_KX}, {o.nun}')
        e(f's_mov_b32 s{S_KX}, 0')
    VWQ = V_Q + 8
    e(f'v_lshrrev_b32 v{V_T0}, 4, v{L}')
    e(f'v_and_b32 v{V_T1}, 15, v{L}')
    e(f'v_lshlrev_b32 v{V_T3}, 2, v{V_T0}')
    e(f'v_xor_b32 v{V_T3}, v{V_T3}, v{V_T1}')
    e(f'v_lshlrev_b32 v{V_T2}, 13, v{V_T0}')
    e(f'v_lshl_add_u32 v{VWQ}, v{V_T3}, 4, v{V_T2}')
    for i in range(1, 4): e(f'v_add_u32 v{VWQ+i}, {(32768-1024)*i}, v{VWQ}')
    e(f's_mul_i32 s{S_KVB}, s{S_WAVE}, {5*32768}')
    e(f's_lshl_b32 s{S_T0}, s{S_H}, 8')
    e(f's_add_u32 s{S_KVB}, s{S_KVB}, s{S_T0}')
    e(f's_mul_i32 s{S_FL}, s{S_WAVE}, {5*1024}')
    if o.nodup:
        e(f's_mul_i32 s{S_N}, s{S_WAVE}, {5*32768}')
        e(f's_sub_u32 s{S_N}, {15*32768}, s{S_N}')
        e(f's_mov_b64 {sr(S_SAVE,2)}, 0xffffff')
        e(f's_cmp_eq_u32 s{S_WAVE}, 1')
        e(f's_cselect_b32 s{S_SAVE}, 0xff000000, s{S_SAVE}')
        e(f's_cselect_b32 s{S_SAVE+1}, 0xfff, s{S_SAVE+1}')
        e(f's_cmp_eq_u32 s{S_WAVE}, 2')
        e(f's_cselect_b32 s{S_SAVE}, 0, s{S_SAVE}')
        e(f's_cselect_b32 s{S_SAVE+1}, 0xfffff000, s{S_SAVE+1}')
    def wqload(s):
        r = [f's_lshl_b32 s{S_T2}, s{S_KX}, 19', f's_add_u32 s{S_T2}, s{S_T2}, s{S_KVB}']
        for t in range(5 if o.nodup else 6):
            if t % 4 == 0:
                r.append(f's_add_u32 m0, s{S_FL}, {reg_w(s) + 1024*t}')
                r.append(f's_add_u32 s{S_T1}, s{S_T2}, {32768*t}')
            r.append(f'buffer_load_dwordx4 v{VWQ+(t&3)}, {sr(S_WQ,4)}, s{S_T1} offen offset:{1024*(t&3)} {o.w_flags} lds')
        if o.nodup:
            r.append(f's_mov_b32 m0, {reg_w(s) + 15*1024}')
            r.append(f's_add_u32 s{S_T1}, s{S_T2}, s{S_N}')
            r.append(f's_mov_b64 exec, {sr(S_SAVE,2)}\n    buffer_load_dwordx4 v{VWQ}, {sr(S_WQ,4)}, s{S_T1} offen {o.w_flags} lds\n    s_mov_b64 exec, -1')
        return r
    srds(e, o)
    e.many(wqload(0)); e.many(xload(0, 0)); e.many(xload(0, 1))
    lazy(e, o, 2)
    no_task_wo(e)
    e(f's_lshl_b32 s{S_OB}, s{S_OB}, 5')
    e(f's_add_u32 s{S_OB}, s{S_OB}, s{S_H}')
    e(f's_lshl_b32 s{S_OB}, s{S_OB}, 13')
    a_addr(e, VA, VB, S_XL)
    e(f'v_and_b32 v{V_T2}, 15, v{L}')
    e(f'v_xor_b32 v{V_T2}, v{V_T2}, v{V_T0}')
    e(f'v_lshlrev_b32 v{V_T2}, 4, v{V_T2}')
    e(f'v_lshl_add_u32 v{V_T2}, v{V_T1}, 8, v{V_T2}')
    for s in range(8):
        e(f'v_xor_b32 v{V_KA+s}, {32*s}, v{V_T2}')
        e(f'v_add_u32 v{V_KA+s}, {slot_addr("K0")}, v{V_KA+s}')
    e(f'v_bfe_u32 v{V_T1}, v{L}, 2, 2')
    e(f'v_lshl_add_u32 v{V_T2}, v{V_T0}, 2, v{V_T1}')
    e(f'v_lshlrev_b32 v{V_T2}, 8, v{V_T2}')
    e(f'v_lshl_add_u32 v{V_T2}, v{V_T1}, 6, v{V_T2}')
    e(f'v_bfe_u32 v{V_T3}, v{L}, 4, 1')
    e(f'v_lshl_add_u32 v{V_T2}, v{V_T3}, 5, v{V_T2}')
    e(f'v_and_b32 v{V_T3}, 3, v{L}')
    e(f'v_lshl_add_u32 v{V_T2}, v{V_T3}, 3, v{V_T2}')
    e(f'v_add_u32 v{V_T2}, {slot_addr("V0")}, v{V_T2}')
    for t in range(4): e(f'v_xor_b32 v{V_VA+t}, {64*t}, v{V_T2}')
    e(f'v_lshlrev_b32 v{V_OST}, 4, v{L}')
    e(f'v_add_u32 v{V_OST+3}, s{S_XL}, v{V_OST}')
    wo_lane_addr(e, V_WA)
    e(f'v_add_u32 v{V_WA}, s{S_XL}, v{V_WA}')
    if C.M16:
        e(f'v_and_b32 v{V_T0}, 15, v{L}')
        e(f'v_lshlrev_b32 v{V_WA+1}, 4, v{V_T0}')
        e(f'v_bfe_u32 v{V_T0}, v{L}, 4, 1')
        e(f'v_lshl_add_u32 v{V_WA+1}, v{V_T0}, 10, v{V_WA+1}')
        e(f'v_lshrrev_b32 v{V_T0}, 5, v{L}')
        e(f'v_lshl_add_u32 v{V_WA+1}, v{V_T0}, 8, v{V_WA+1}')
    else:
        e(f'v_xor_b32 v{V_WA+1}, 64, v{V_WA}')
    e(f's_mul_i32 s{S_WQB}, s{S_WAVE}, {1024*1280}')
    e(f's_add_u32 s{S_WQB}, s{S_WQB}, s{S_WOB}')
    e(f's_mov_b32 s{S_WC}, s{S_RHO}')
    if o.wst:
        e(f's_mov_b32 s{S_WN}, {int(o.wst[0]) + 1}')
        for w in (1, 2):
            e(f's_cmp_eq_u32 s{S_WAVE}, {w}')
            e(f's_cselect_b32 s{S_WN}, {int(o.wst[w]) + 1}, s{S_WN}')
    else:
        e(f's_add_u32 s{S_WN}, s{S_WAVE}, {o.w0 + 1}')
    e(f's_mov_b32 s{S_EV}, 0')
    for i in range(64): e(f'v_accvgpr_write_b32 a{i}, 0')
    for i in range(16): e(f'v_mov_b32 v{V_NEGM+i}, 0')
    for i in range(4): e(f'v_mov_b32 v{V_L+i}, 0')
    e(f's_mov_b32 s{S_C}, {SCALE}')
    e(f's_mov_b32 s{S_THR}, 0xff800000')
    e(f's_mov_b32 s{S_FLOOR}, 0xff800000')
    e(f's_mov_b32 s{S_TICK}, 0')
    e(f's_mov_b32 s{S_KOFF}, {slot("K1")*SLOT}')
    e(f's_mov_b32 s{S_VOFF}, {slot("V0")*SLOT}')
    nst = 0
    lazy(e, o, 5)
    e.many(wqload(1)); e.many(xload(1, 0)); e.many(xload(1, 1))
    lazy(e, o, 6)
    def reads(s4, buf):
        r = [f'ds_read_b128 {vr(BF[buf]+4*it,4)}, v{VB+s4} offset:{4096*it}' for it in range(2)]
        for t in range(4):
            for u in range(2):
                r.append(f'ds_read_b64_tr_b16 {vr(AF[buf]+4*t+2*u,2)}, v{VA+t} offset:{(16*s4+4*u)*256}')
        return r
    def mf(buf, first):
        r = []
        for t in range(4):
            for it in range(2):
                if it == 1 and t >= 2: continue
                d = vr(ACC[it] + 16 * t, 16)
                r.append(mfma(d, vr(AF[buf] + 4 * t, 4), vr(BF[buf] + 4 * it, 4), '0' if first else d))
        return r
    e(f's_waitcnt vmcnt({14 + nst})')
    lazy(e, o, 7)
    e('s_barrier')
    lazy(e, o, 8)
    dmark(e, o, 0)
    e.many(reads(0, 0))
    e.skip = o.a_skip
    for s in range(10):
        for s4 in range(4):
            step = 4 * s + s4; buf = step & 1
            if step in (8, 16, 24, 32, 39): lazy(e, o, 9 + (8, 16, 24, 32, 39).index(step))
            if o.stamps and step in (8, 32): e(f's_memtime s[{LAZY[3 if step == 8 else 4]}:{LAZY[3 if step == 8 else 4]+1}]')
            m = mf(buf, step == 0)
            late = []
            e('s_waitcnt lgkmcnt(0)')
            if s4 == 3:
                if s < 9:
                    e(f's_waitcnt vmcnt({(14 if s + 2 <= 9 else 0) + (nst if s < 2 else 0)})')
                e('s_barrier')
                if s + 3 <= 9: late = wqload(s + 3)
            if s4 == 0 and s + 2 <= 9: late = (wqload(2) if s == 0 else []) + xload(s + 2, 0)
            if s4 == 1 and s + 2 <= 9: late = xload(s + 2, 1)
            if s4 == 2 and s < 9: late = a_step(s, VA)
            front = reads((s4 + 1) & 3, buf ^ 1) if step < 39 else []
            gaps(e, m, front, late, per=o.aper, late_from=(3 if o.aper == 3 and s4 == 2 else 2 if o.aper >= 4 else 1))
    e.skip = ''
    wo_voffs(e, V_DMA)
    e('s_nop 4')
    for i in range(16): e.many(conv(i, ACC[0], V_Q))
    e.many(k_reads(0))
    for i in range(16, 32): e.many(conv(i, ACC[0], V_Q))

def k_reads(half):
    return [f'ds_read_b128 {vr(V_KF+4*s,4)}, v{V_KA+s} offset:{8192*half}' for s in range(8)]
def v_reads(half):
    r = []
    for jj in range(2):
        for t in range(4):
            for u in range(2):
                r.append(f'ds_read_b64_tr_b16 {vr(V_VF+16*jj+4*t+2*u,2)}, v{V_VA+t} offset:{(32*half+16*jj+8*u)*256}')
    return r
def qk(S):
    return [mfma(vr(S, 16), vr(V_KF + 4 * s, 4), vr(V_Q + 4 * s, 4), vr(V_NEGM, 16) if s == 0 else vr(S, 16)) for s in range(8)]
def pv():
    return [mfma(ar(16 * t, 16), vr(V_VF + 16 * jj + 4 * t, 4), vr(V_P + 4 * jj, 4), ar(16 * t, 16)) for jj in range(2) for t in range(4)]
def maxes(S):
    r = [f'v_max3_f32 v{V_MX}, v{S}, v{S+1}, v{S+2}', f'v_max3_f32 v{V_D}, v{S+3}, v{S+4}, v{S+5}']
    r += [f'v_max3_f32 v{V_MX}, v{V_MX}, v{S+6}, v{S+7}', f'v_max3_f32 v{V_D}, v{V_D}, v{S+8}, v{S+9}']
    r += [f'v_max3_f32 v{V_MX}, v{V_MX}, v{S+10}, v{S+11}', f'v_max3_f32 v{V_D}, v{V_D}, v{S+12}, v{S+13}']
    r += [f'v_max3_f32 v{V_MX}, v{V_MX}, v{S+14}, v{S+15}', f'v_max_f32 v{V_MX}, v{V_MX}, v{V_D}']
    r += [f'v_cmp_lt_f32 vcc, s{S_THR}, v{V_MX}']
    return r

def half_tick(e, Snew, Sold, vhalf, khalf, extra_v=(), extra_k=(), extra_8=()):
    ex = lambda i: f'v_exp_f32 v{Sold+i}, v{Sold+i}'
    cv = lambda i: f'v_cvt_pk_bf16_f32 v{V_P+i}, v{Sold+2*i}, v{Sold+2*i+1}'
    ad = lambda i: f'v_add_f32 v{V_L+(i&3)}, v{V_L+(i&3)}, v{Sold+i}'
    m = qk(Snew) + pv()
    m[8] = ['s_waitcnt lgkmcnt(0)', m[8]]
    if e.mix:
        vr_ = v_reads(vhalf); fill = []
        for i in range(8):
            fill += vr_[:e.mix] + [ex(i)]; vr_ = vr_[e.mix:]
        fill += vr_ + list(extra_v) + [cv(i) for i in range(4)] + [ex(i) for i in range(8, 12)]
    else:
        fill = v_reads(vhalf) + [ex(i) for i in range(8)] + list(extra_v) + [cv(i) for i in range(4)] + [ex(i) for i in range(8, 12)]
    fill += [('M', 8), ('A', 8)] + (k_reads(khalf) if khalf is not None else []) + [ex(i) for i in range(12, 16)] + [ad(0)]
    fill += [cv(i) for i in range(4, 8)] + [ad(1), ad(2)]
    rest = [ad(i) for i in range(3, 16)]
    x8 = list(extra_8)
    fill += [('M', 12)]
    while rest or x8:
        if rest: fill.append(rest.pop(0))
        fill += x8[:3]; x8 = x8[3:]
    fill += list(extra_k) + maxes(Snew)
    e('s_waitcnt lgkmcnt(0)')
    interleave(e, m, fill)

def last_half(e, Sold, extra=()):
    ex = lambda i: f'v_exp_f32 v{Sold+i}, v{Sold+i}'
    cv = lambda i: f'v_cvt_pk_bf16_f32 v{V_P+i}, v{Sold+2*i}, v{Sold+2*i+1}'
    ad = lambda i: f'v_add_f32 v{V_L+(i&3)}, v{V_L+(i&3)}, v{Sold+i}'
    e.many(v_reads(1))
    e.many(extra)
    e.many([ex(i) for i in range(8)] + [cv(i) for i in range(4)] + [ex(8), ex(9)])
    e('s_waitcnt lgkmcnt(0)')
    fill = [ex(i) for i in range(10, 16)] + [ad(0)] + [cv(i) for i in range(4, 8)] + [ad(1), ad(2), ('M', 4)] + [ad(i) for i in range(3, 16)]
    interleave(e, pv(), fill)

def rare(e, S, back):
    e('s_nop 7')
    e(f'v_mov_b32 v{V_T0}, v{V_MX}')
    e('s_nop 1')
    e(f'v_permlane32_swap_b32 v{V_T0}, v{V_MX}')
    e('s_nop 1')
    e(f'v_max_f32 v{V_D}, v{V_T0}, v{V_MX}')
    e(f'v_max_f32 v{V_D}, s{S_FLOOR}, v{V_D}')
    for i in range(16): e(f'v_sub_f32 v{S+i}, v{S+i}, v{V_D}')
    for i in range(16): e(f'v_sub_f32 v{V_NEGM+i}, v{V_NEGM+i}, v{V_D}')
    e(f's_cmp_lg_u32 s{S_FLOOR}, 0')
    e(f's_mov_b32 s{S_THR}, 0x41000000')
    e(f's_mov_b32 s{S_FLOOR}, 0')
    e(f's_cbranch_scc1 {back}')
    e(f'v_sub_f32 v{V_T0}, 0, v{V_D}')
    e(f'v_exp_f32 v{V_T0}, v{V_T0}')
    e('s_nop 0')
    for i in range(4): e(f'v_mul_f32 v{V_L+i}, v{V_L+i}, v{V_T0}')
    for i in range(0, 64, 4):
        for j in range(4): e(f'v_accvgpr_read_b32 v{V_TMP+j}, a{i+j}')
        for j in range(4): e(f'v_mul_f32 v{V_TMP+j}, v{V_TMP+j}, v{V_T0}')
        for j in range(4): e(f'v_accvgpr_write_b32 a{i+j}, v{V_TMP+j}')
    e('s_nop 1')
    e(f's_branch {back}')

def epilogue(e, o):
    e(f'v_add_f32 v{V_L}, v{V_L}, v{V_L+1}')
    e(f'v_add_f32 v{V_L+2}, v{V_L+2}, v{V_L+3}')
    e(f'v_add_f32 v{V_L}, v{V_L}, v{V_L+2}')
    e(f'v_mov_b32 v{V_T0}, v{V_L}')
    e('s_nop 1')
    e(f'v_permlane32_swap_b32 v{V_T0}, v{V_L}')
    e('s_nop 1')
    e(f'v_add_f32 v{V_L}, v{V_L}, v{V_T0}')
    e(f'v_rcp_f32 v{V_T0}, v{V_L}')
    e('s_nop 4')
    for f in range(8):
        t = V_VF + 8 * (f & 3)
        for j in range(8): e(f'v_accvgpr_read_b32 v{t+j}, a{8*f+j}')
        if o.pk:
            for j in range(0, 8, 2): e(f'v_pk_mul_f32 {vr(t+j,2)}, {vr(t+j,2)}, {vr(V_T0,2)} op_sel_hi:[1,0]')
        else:
            for j in range(8): e(f'v_mul_f32 v{t+j}, v{t+j}, v{V_T0}')
        d = V_TMP + 4 * (f & 1)
        for j in range(4): e(f'v_cvt_pk_bf16_f32 v{d+j}, v{t+2*j}, v{t+2*j+1}')
        if f == 4: e(f's_add_u32 s{S_OB}, s{S_OB}, 4096')
        if C.M16: e(f'buffer_store_dwordx4 {vr(d,4)}, v{V_WA+1}, {sr(S_WS,4)}, s{S_OB} offen offset:{2048*((f>>1)&1) + 512*(f&1)} {o.ost_flags}')
        else: e(f'buffer_store_dwordx4 {vr(d,4)}, v{V_OST}, {sr(S_WS,4)}, s{S_OB} offen offset:{1024*(f&3)} {o.ost_flags}')

def w_snippets(e, o, ret):
    e('s_waitcnt vmcnt(0)')
    def tree(lo, n):
        if n == 1:
            if lo == 0:
                for f in range(4): e(f'ds_read_b128 {vr(224+4*f,4)}, v{V_OST+3} offset:{1024*f}')
                if o.t15:
                    for i in range(16): e.many(conv(i, V_Q2, V_Q2))
            else:
                e.many(wo_reads(lambda off, nn: hold(lo - 1, off, nn), V_WA, V_WA + 1, 0))
                if o.r6 and lo == o.r6e: e.many(wo_dma(o, 9, f's{S_XL}', 32768, f's{S_WQB}', V_DMA))
            e('s_branch L_sn_done')
            return
        h = (n + 1) // 2
        e(f's_cmp_ge_u32 s{S_EV}, {lo+h}')
        e(f's_cbranch_scc1 L_sn_{lo+h}')
        tree(lo, h)
        e.lab(f'L_sn_{lo+h}')
        tree(lo + h, n - h)
    tree(0, 9)
    e.lab('L_sn_done')
    e(f's_add_u32 s{S_EV}, s{S_EV}, 1')
    e(f's_cmp_eq_u32 s{S_EV}, 9')
    e(f's_cselect_b32 s{S_WN}, 64, {o.wper}')
    if o.t15:
        e(f's_cmp_eq_u32 s{S_TICK}, {16 - o.wper}')
        e(f's_cselect_b32 s{S_WN}, {o.wper + 1}, s{S_WN}')
    e('s_waitcnt lgkmcnt(0)')
    e.many(wo_dma(o, 0, f's{S_XL}', 0, f's{S_WQB}', V_DMA, dyn=True))
    e(f's_branch {ret}')

def phase_b(e, o):
    lazy(e, o, 14)
    dmark(e, o, 1)
    lazy_dump(e, o, range(15))
    stamp(e, o, 1)
    e('s_waitcnt lgkmcnt(0)')
    e.many(qk(V_SA))
    e.many(k_reads(1))
    for s in range(8): e(f'v_add_u32 v{V_KA+s}, {SLOT}, v{V_KA+s}')
    e('s_nop 3')
    e.many(maxes(V_SA))
    e('s_branch L_rare_a')
    def adv(soff, tmp, base, n):
        r = [f's_cmp_ge_u32 s{soff}, {(C.NR-2)*SLOT}', f's_cselect_b32 s{S_T3}, {C.NR*SLOT}, 0',
             f's_sub_u32 s{S_T3}, {2*SLOT}, s{S_T3}', f's_add_u32 s{soff}, s{soff}, s{S_T3}']
        r += [f'v_add_u32 v{base+i}, s{S_T3}, v{base+i}' for i in range(n)]
        return r
    align(e, o.al_t)
    e.lab('L_tick')
    e('s_waitcnt lgkmcnt(0)')
    e('s_barrier')
    e(f's_cmp_eq_u32 s{S_TICK}, 31')
    e('s_cbranch_scc1 L_last')
    half_tick(e, V_SB, V_SA, 0, 0)
    e('s_cbranch_vccnz L_rare_b')
    e.lab('L_back_b')
    e(f's_cmp_eq_u32 s{S_TICK}, 15')
    e('s_cbranch_scc1 L_switch')
    e.lab('L_back_sw')
    half_tick(e, V_SA, V_SB, 1, 1, extra_v=adv(S_VOFF, S_T0, V_VA, 4), extra_k=adv(S_KOFF, S_T1, V_KA, 8))
    e(f's_add_u32 s{S_TICK}, s{S_TICK}, 1')
    e(f's_sub_u32 s{S_WN}, s{S_WN}, 1')
    e(f's_cmp_eq_u32 s{S_WN}, 0')
    e('s_cbranch_scc1 L_snip')
    e.lab('L_snip_ret')
    e(f's_cmp_eq_u32 s{S_TICK}, 16')
    e('s_cbranch_scc1 L_epi1')
    e('s_cbranch_vccz L_tick')
    e.lab('L_rare_a')
    rare(e, V_SA, 'L_tick')
    e.lab('L_snip')
    w_snippets(e, o, 'L_snip_ret')
    e.lab('L_rare_b')
    rare(e, V_SB, 'L_back_b')
    e.lab('L_switch')
    for i in range(16): e(f'v_mov_b32 v{V_Q+16+i}, v{224+i}')
    for i in range(16): e.many([f'v_mov_b32 v{V_Q+i}, v{V_Q2+i}'] if o.t15 else conv(i, V_Q2, V_Q))
    for i in range(16): e(f'v_mov_b32 v{V_NEGM+i}, 0')
    e('s_nop 1')
    e('s_branch L_back_sw')
    e.lab('L_epi1')
    epilogue(e, o)
    e(f's_add_u32 s{S_OB}, s{S_OB}, {RND - 4096}')
    if o.t15:
        for t in range(4): e(mfma(ar(16 * t, 16), vr(V_NEGM, 4), vr(V_NEGM, 4), '0'))
    else:
        for i in range(64): e(f'v_accvgpr_write_b32 a{i}, 0')
    for i in range(4): e(f'v_mov_b32 v{V_L+i}, 0')
    e(f's_mov_b32 s{S_FLOOR}, 0xff800000')
    stamp(e, o, 2)
    dmark(e, o, 2)
    e('s_branch L_rare_a')
    e.lab('L_rare_l')
    rare(e, V_SB, 'L_back_l')
    e.lab('L_last')
    T = tail_pre(e, o)
    e.early = T.pump(min(o.nearly, 4))
    half_tick(e, V_SB, V_SA, 0, None, extra_8=e.early)
    e('s_cbranch_vccnz L_rare_l')
    e.lab('L_back_l')
    x = T.pump(max(o.nearly - 4, 0))
    e.early += x
    last_half(e, V_SB, x)
    epilogue(e, o)
    return T

def tail_setup(e, o):
    e(f's_mul_i32 s{S_O1}, s{S_BR}, 24')
    e(f's_add_u32 s{S_O1}, s{S_O1}, s{S_QT}')
    e(f's_lshl_b32 s{S_O1}, s{S_O1}, 2')
    e(f's_add_u32 s{S_O1}, s{S_O1}, s{S_WAVE}')
    e(f's_lshl_b32 s{S_O1}, s{S_O1}, 16')

POOL = list(range(96, 160, 4)) + [32, 36, 40, 44, 16, 20, 24, 80, 84] + list(range(160, 192, 4)) + [88, 92]
ORDER1 = [0, 1, 2, 8, 3, 9, 4, 10, 5, 11, 6, 12, 7]
ORDER2 = [8, 0, 9, 1, 10, 2, 11, 3, 12, 4, 13, 14, 15, 5, 6, 7]

class Tail:
    def __init__(self, e, o):
        self.e, self.o = e, o
        self.vm = Vm(e)
        self.free = list(POOL)
        self.where = {}
        self.todo = []
    def oload(self, rnd, c):
        e = self.e
        regs = [self.free.pop(0) for _ in range(4)]
        self.where[(rnd, c)] = regs
        r = [f's_add_u32 s{S_T1}, s{S_RHO}, {c}', f's_and_b32 s{S_T1}, s{S_T1}, 15', f's_lshl_b32 s{S_T1}, s{S_T1}, 12',
             f's_add_u32 s{S_T1}, s{S_T1}, s{S_O1}']
        if rnd and not self.o.t_o1: r.append(f's_add_u32 s{S_T1}, s{S_T1}, {RND}')
        if rnd and self.o.t_noo: return []
        if not rnd and self.o.t_no1: return []
        for s4 in range(4):
            r.append(f'buffer_load_dwordx4 {reg4(regs[s4])}, v{V_OST}, {sr(S_WS,4)}, s{S_T1} offen offset:{1024*s4} {self.o.old_flags}')
        self.vm.add(f'o{rnd}_{c}', 4)
        return r
    def pump(self, lim=99):
        r = []
        while self.todo and len(self.free) >= 4 and self.vm.out() + 4 <= self.o.maxout and lim > 0:
            lim -= 1
            r += self.oload(*self.todo.pop(0))
        return r

def tail_pre(e, o):
    T = Tail(e, o)
    tail_setup(e, o)
    T.todo = [(0, c) for c in ORDER1]
    return T

def tail(e, o, T, w3=False):
    L = V_LANE
    vm = T.vm
    sfx = '3' if w3 else ''
    RA = 6
    TEMP = 48
    e(f's_cmp_eq_u32 s{S_NT}, 15')
    e('s_cbranch_scc1 L_exit')
    e(f's_mul_i32 s{S_WQB}, s{S_WAVE}, {1024*1280}')
    e(f's_add_u32 s{S_WQB}, s{S_WQB}, s{S_WOB}')
    if w3:
        T.free += [12, 16, 20, 24]
        e('s_barrier')
    e.many(T.pump())
    if not w3:
        vm.room(8)
        e.many(wo_dma(o, 12, f's{S_XL}', C.PIECE[12] * 32768, f's{S_WQB}', V_DMA))
        vm.add('late', 8)
    for b in range(3):
        e(f'v_add_u32 v{RA+2*b}, {65536*b}, v{V_WA}')
        if not C.M16: e(f'v_add_u32 v{RA+2*b+1}, {65536*b}, v{V_WA+1}')
    e(f's_lshl_b32 s{S_T0}, s{S_BR}, 2')
    e(f's_add_u32 s{S_T0}, s{S_T0}, s{S_QB}')
    e(f's_lshl_b32 s{S_T0}, s{S_T0}, 2')
    e(f's_add_u32 s{S_T0}, s{S_T0}, s{S_WAVE}')
    e(f's_lshl_b32 s{S_T0}, s{S_T0}, 10')
    e(f's_add_u32 s{S_T0}, s{S_T0}, {WS_FLAGS}')
    e(f'v_and_b32 v31, 7, v{L}')
    e(f'v_lshlrev_b32 v31, 7, v31')
    e(f'v_add_u32 v31, s{S_T0}, v31')
    e('v_mov_b32 v0, 0')
    piece = C.PIECE
    tmp_of = {}
    def rd(c, dstf):
        j = piece[c]
        return wo_reads(dstf, RA + 2 * (j >> 1), RA + 2 * (j >> 1) + 1, 32768 * (j & 1), tmp=(RA + 1, RA + 3, RA + 5))
    def afrag(c):
        if c < 8: return lambda off, n: hold(c, off, n)
        if c >= 13: return lambda off, n: hold(c - 13, off, n)
        return lambda off, n: vr(TEMP + off, n)
    first = {0: True, 1: True}
    def mms(c, rnds):
        m = []
        if C.M16:
            for F in range(2):
                for rnd in rnds:
                    for n in range(4):
                        for qh in range(2):
                            d = ar(32 * rnd + 8 * n + 4 * qh, 4)
                            m.append(f'v_mfma_f32_16x16x32_bf16 {d}, {afrag(c)(16 * F + 4 * n, 4)}, {reg4(T.where[(rnd, c)][2 * F + qh])}, ' + ('0' if (first[rnd] and F == 0) else d))
            for rnd in rnds: first[rnd] = False
            return m
        for s4 in range(4):
            for rnd in rnds:
                for nt in range(2):
                    d = ar(32 * rnd + 16 * nt, 16)
                    m.append(mfma(d, afrag(c)(8 * s4 + 4 * nt, 4), reg4(T.where[(rnd, c)][s4]), '0' if (first[rnd] and s4 == 0) else d))
        for rnd in rnds: first[rnd] = False
        return m
    def wdma(c):
        if o.t_now: return []
        vm.add(f'w{c}', 8)
        return wo_dma(o, c, f's{S_XL}', 32768 * piece[c], f's{S_WQB}', V_DMA)
    ld_fl = f'buffer_load_dword v{V_T2}, v31, {sr(S_WS,4)}, 0 offen sc1'
    WA, RDA, VOUT = 48, 56, 60
    S_OO = S_KOFF
    fin = [f'v_and_b32 v{V_T0}, 31, v{L}', f'v_lshrrev_b32 v{V_T1}, 5, v{L}', f'v_and_b32 v{V_T3}, 15, v{L}',
           f'v_xor_b32 v{V_T1}, v{V_T1}, v{V_T3}', f'v_lshlrev_b32 v{V_T1}, 4, v{V_T1}',
           f'v_lshl_add_u32 v{V_T0}, v{V_T0}, 8, v{V_T1}', f's_add_u32 s{S_T3}, s{S_XL}, {C.SCR*32768}',
           f'v_add_u32 v{V_T0}, s{S_T3}, v{V_T0}']
    fin += [f'v_xor_b32 v{WA+k}, {32*k}, v{V_T0}' for k in range(8)]
    if C.M16:
        fin = [f'v_and_b32 v{V_T0}, 15, v{L}', f'v_lshrrev_b32 v{V_T1}, 4, v{L}', f'v_xor_b32 v{V_T1}, v{V_T1}, v{V_T0}',
               f'v_lshlrev_b32 v{V_T1}, 4, v{V_T1}', f'v_lshl_add_u32 v{V_T0}, v{V_T0}, 8, v{V_T1}',
               f's_add_u32 s{S_T3}, s{S_XL}, {C.SCR*32768}', f'v_add_u32 v{V_T0}, s{S_T3}, v{V_T0}']
        fin += [f'v_xor_b32 v{WA+k}, {64*k}, v{V_T0}' for k in range(4)]
    fin2 = [f's_lshr_b32 s{S_VOFF}, s{S_WAVE}, 1', f's_and_b32 s{S_THR}, s{S_WAVE}, 1',
            f's_lshl_b32 s{S_T2}, s{S_VOFF}, 15', f's_lshl_b32 s{S_T3}, s{S_THR}, 12',
            f's_add_u32 s{S_T2}, s{S_T2}, s{S_T3}', f's_add_u32 s{S_T2}, s{S_T2}, {C.SCR*32768}',
            f'v_lshrrev_b32 v{V_T1}, 3, v{L}', f'v_and_b32 v{V_T3}, 7, v{L}', f'v_lshlrev_b32 v{V_T0}, 1, v{V_T3}',
            f'v_xor_b32 v{V_T0}, v{V_T0}, v{V_T1}', f'v_lshlrev_b32 v{V_T0}, 4, v{V_T0}',
            f'v_lshl_add_u32 v{V_T0}, v{V_T1}, 8, v{V_T0}', f'v_add_u32 v{RDA}, s{S_T2}, v{V_T0}',
            f'v_xor_b32 v{RDA+1}, 16, v{RDA}', f'v_xor_b32 v{RDA+2}, {2048+128}, v{RDA}', f'v_xor_b32 v{RDA+3}, 16, v{RDA+2}',
            f's_lshl_b32 s{S_OO}, s{S_QT}, 5', f's_mul_i32 s{S_VOFF}, s{S_VOFF}, 384', f's_add_u32 s{S_OO}, s{S_OO}, s{S_VOFF}',
            f's_lshl_b32 s{S_THR}, s{S_THR}, 4', f's_add_u32 s{S_OO}, s{S_OO}, s{S_THR}', f's_mul_i32 s{S_OO}, s{S_OO}, 2560',
            f's_mul_i32 s{S_T3}, s{S_BR}, 1280', f's_add_u32 s{S_OO}, s{S_OO}, s{S_T3}', f's_add_u32 s{S_OO}, s{S_OO}, s{S_WOB}',
            f'v_mul_u32_u24 v{V_T1}, 2560, v{V_T1}', f'v_lshl_add_u32 v{VOUT}, v{V_T3}, 4, v{V_T1}']
    def pwrite(rnd):
        if C.M16:
            return [f'ds_write_b128 v{WA+n}, {ar(32*rnd+8*n+4*qh,4)} offset:{rnd*32768 + 4096*qh}' for n in range(4) for qh in range(2)]
        return [f'ds_write_b128 v{WA+4*nt+g}, {ar(32*rnd+16*nt+4*g,4)} offset:{rnd*32768}' for nt in range(2) for g in range(4)]
    if w3:
        ld_tag = f'global_load_dword v30, v0, {sr(S_DBG,2)} sc1'
        first[0] = False
        def mm3(c, rnd, af):
            m = []
            for s4 in range(4):
                for nt in range(2):
                    d = ar(32 * rnd + 16 * nt, 16)
                    m.append(mfma(d, af(8 * s4 + 4 * nt, 4), reg4(T.where[(rnd, c)][s4]), '0' if (first[rnd] and s4 == 0) else d))
            first[rnd] = False
            return m
        t1 = lambda off, n: vr(32 + off, n)
        for c in (13, 14, 15):
            e.many(rd(c, t1))
            if c == 15:
                vm.room(2); e(ld_tag); e(ld_fl); vm.add('pl', 2)
            e('s_waitcnt lgkmcnt(0)')
            vm.wait(f'o0_{c}')
            gaps(e, mm3(c, 0, t1), T.pump(), per=2)
            T.free += T.where[(0, c)]
        assert not T.todo
        vm.wait('pl')
        e('v_add_u32 v30, 3, v30')
        poll(e, o, 'r23', ld_fl, [f'v_cmp_eq_u32 vcc, v30, v{V_T2}'])
        T.free = [48, 52, 56, 60, 12, 16, 20, 24, 32, 36, 40, 44]
        order = [8, 9, 15, 10, 14, 11, 13, 6, 12, 7, 0, 1, 2, 3, 4, 5]
        T.todo = [(1, c) for c in order]
        e.many(T.pump())
        t2 = lambda off, n: hold3(8, off, n)
        for i, c in enumerate(order):
            nxt = order[i + 1] if i + 1 < len(order) else None
            if c >= 12: e('s_waitcnt lgkmcnt(0)')
            vm.wait(f'o1_{c}')
            front = rd(nxt, t2) if (nxt is not None and nxt >= 12) else []
            late = []
            if c == 10: late += fin
            if c == 11: late += pwrite(0)
            if c == 0: late += fin2
            m = mm3(c, 1, t2 if c >= 12 else (lambda off, n: hold3(c, off, n)))
            late += T.pump()
            gaps(e, m, front, late, per=3, late_from=0 if not front else 2)
            if c != 8: T.free += T.where[(1, c)]
            if c in (9, 10, 11): T.free += list(range(64 + 32 * (c - 8), 64 + 32 * (c - 7), 4))
            if c in (6, 7): T.free += list(range(192 + 32 * (c - 6), 192 + 32 * (c - 5), 4))
        assert not T.todo
        e('s_nop 7'); e('s_nop 3')
        e.many(pwrite(1))
        e('s_branch L_red')
        return
    e.skip = o.t_skip
    seq = [(0, c) for c in ORDER1] + [(1, c) for c in ORDER2]
    todo2 = []
    for c in ORDER2: todo2 += ([(0, c)] if (c >= 13 and not o.park) else []) + [(1, c)]
    for i, (rnd, c) in enumerate(seq):
        rnds = [0, 1] if c >= 13 else [rnd]
        nxt = seq[i + 1][1] if i + 1 < len(seq) else None
        if i == o.chk - o.pl_at:
            vm.room(2); e(f'global_load_dword v30, v0, {sr(S_DBG,2)} sc1'); e(ld_fl); vm.add('pl', 2)
            if o.park: T.todo += [(0, c) for c in (13, 14, 15)]
        if i == o.chk:
            vm.stamp(o, 5)
            vm.wait('pl')
            e('v_add_u32 v30, 3, v30')
            poll(e, o, 'r2', ld_fl, [f'v_cmp_eq_u32 vcc, v30, v{V_T2}'])
            T.todo += todo2
            e.many(T.pump())
            vm.stamp(o, 6)
        if c >= 8: e('s_waitcnt lgkmcnt(0)')
        for r_ in rnds: vm.wait(f'o{r_}_{c}')
        front = []; late = []
        if nxt is not None and nxt >= 8:
            assert not (8 <= c < 13 and nxt < 13)
            if rnd == 0 and nxt == C.TCH[0] and i < 12: e('s_barrier')
            if nxt == 12 and vm.has('late'): vm.wait('late')
            if nxt >= 13: vm.wait(f'w{nxt}')
            front = rd(nxt, afrag(nxt))
        if rnd == 1 and c in (8, 9, 10):
            vm.room(8)
            late += wdma(c + 5)
        if rnd == 1 and c == 15: late += fin
        if rnd == 1 and c == 6: late += pwrite(0)
        if rnd == 1 and c == 5: late += fin2
        m = mms(c, rnds)
        late += T.pump()
        if C.M16: gaps(e, m, front, late, per=o.tper, late_from=0 if not front else min(len(m) - 4, (len(front) + o.tper - 1) // o.tper))
        else: gaps(e, m, front, late, per=3, late_from=0 if not front else 2)
        for r_ in rnds: T.free += T.where[(r_, c)]
    assert not T.todo
    vm.stamp(o, 7)
    e('s_nop 7'); e('s_nop 3')
    e.many(pwrite(1))
    e.lab('L_red')
    e('s_waitcnt lgkmcnt(0)')
    e('s_barrier')
    for i in range(2):
        for p in range(4):
            for hh in range(2):
                e(f'ds_read_b128 {vr(96+32*i+8*p+4*hh,4)}, v{RDA+2*i+hh} offset:{8192*p}')
    for i in range(2):
        b = 96 + 32 * i
        e(f's_waitcnt lgkmcnt({8*(1-i)})')
        for j in range(8):
            e(f'v_add_f32 v{b+j}, v{b+j}, v{b+8+j}')
            e(f'v_add_f32 v{b+16+j}, v{b+16+j}, v{b+24+j}')
        for j in range(8): e(f'v_add_f32 v{b+j}, v{b+j}, v{b+16+j}')
        for j in range(4): e(f'v_cvt_pk_bf16_f32 v{b+8+j}, v{b+2*j}, v{b+2*j+1}')
        if i: e(f's_add_u32 s{S_OO}, s{S_OO}, {8*2560}')
        e(f'buffer_store_dwordx4 {vr(b+8,4)}, v{VOUT}, {sr(S_OUT,4)}, s{S_OO} offen {o.out_flags}')
    ddump(e, o, 5)
    if o.light:
        e('s_waitcnt vmcnt(0)')
        e(f's_memrealtime {sr(S_ST,2)}')
        e('s_waitcnt lgkmcnt(0)')
        e('v_mov_b32 v2, s98'); e(f'v_mov_b32 v3, s{S_ST}'); e(f'v_mov_b32 v4, s{S_STB}')
        e('s_mov_b64 exec, 1')
        e(f'buffer_store_dwordx2 v[2:3], v4, {sr(S_WS,4)}, 0 offen')
    if o.stamps:
        e('s_waitcnt vmcnt(0)')
        stamp(e, o, 14)

KD = '''.amdhsa_kernel {n}
  .amdhsa_next_free_vgpr 512
  .amdhsa_next_free_sgpr 102
  .amdhsa_accum_offset 256
  .amdhsa_group_segment_fixed_size 0
  .amdhsa_kernarg_size 104
  .amdhsa_user_sgpr_count 2
  .amdhsa_user_sgpr_kernarg_segment_ptr 1
  .amdhsa_system_sgpr_workgroup_id_x 1
.end_amdhsa_kernel
'''

HEADER = """
"""

def gen(o):
    assert not o.w3
    if o.r6: plan6()
    C.M16 = o.m16
    e = Em()
    e.jit = o.jit
    e.mix = o.mix
    k1 = NAME + '_kernel'
    for l in HEADER.strip().split('\n'): e.raw(l)
    e.raw('; @launch grid=(256,1,1) block=(256,1,1) lds=163840')
    e.raw('.amdgcn_target "amdgcn-amd-amdhsa--gfx950"')
    e.raw('.text')
    e.raw(f'.globl {k1}\n.p2align 8\n.type {k1},@function')
    e.lab(k1)
    prologue(e, o)
    e(f's_cmp_eq_u32 s{S_WAVE}, 3')
    e('s_cbranch_scc1 L_loader')
    if o.al_a > 0:
        for _ in range(o.al_a // 4): e('s_nop 0')
    phase_a(e, o)
    T = phase_b(e, o)
    n0 = T.vm.out()
    pre = T.pump(o.npre)
    npre = T.vm.out() - n0
    e.many(pre)
    e.pre = pre
    e(f's_waitcnt vmcnt({npre}) lgkmcnt(0)')
    e('s_barrier')
    dmark(e, o, 3)
    if o.stamps:
        T.vm.stamp(o, 3)
    e('s_branch L_join')
    align(e, o.al_l)
    e.lab('L_loader')
    loader(e, o)
    if o.w3:
        if o.stamps: e.T3.vm.stamp(o, 3)
        tail(e, o, e.T3, w3=True)
    else:
        if o.stamps: stamp(e, o, 3)
    if o.al_j >= 0:
        e('s_branch L_join'); align(e, o.al_j)
    e.lab('L_join')
    tail(e, o, T)
    e.lab('L_exit')
    e('s_endpgm')
    e.lab('L_end')
    e.raw('.section .rodata,"a"\n.p2align 6')
    e.raw(KD.format(n=k1))
    return e.text()

if __name__ == '__main__':
    o = Opt()
    out = sys.argv[1]
    for a in sys.argv[2:]:
        k, v = a.split('=', 1); v = v.replace('+', ' ')
        cur = getattr(o, k)
        setattr(o, k, (v == '1') if isinstance(cur, bool) else int(v) if isinstance(cur, int) else v)
    open(out, 'w').write(gen(o))
```

```python
import sys, math, struct
NAME = 'concat_heads__mha_block_cached__mha_block_cached__near_ridge'

class Opt:
    stamps = False
    kv_flags = 'nt'
    w_flags = ''
    wo_flags = ''
    ost_flags = 'sc1'
    old_flags = 'sc1'
    look = 7
    rot = 0
    arot = 3
    nun = 1
    tlbq = False
    tickst = 0
    no_w = False
    no_w3 = False
    t_now = False
    t_o1 = False
    t_noo = False
    c8late = True
    pf_kv = 0
    pf_wo = True
    pf_a = False
    pf_w = False
    pf_delay = 0
    pf_s0 = 2
    pf_mid = 0
    pf_flags = ''
    pf_tail = 0
    bal = 0
    bal_lag = 2
    bal_n = 1
    bal_sl = 0
    tagk = 1
    thr_end = 28
    k_first = False
    k_s0 = 0
    tlb = True
    aper = 4
    out_flags = ''
    tsched = 1
    park = True
    maxout = 61
    r1k = 28
    nodup = True
    al_t = -1
    al_l = -1
    al_j = -1
    al_a = -1
    pf2 = False
    pf2_p0 = 1
    pf2_s0 = 0
    pf2_gap = 2
    pf2_pre = 1
    wper = 3
    pf_wi = 6
    mix = 0
    dq2 = False
    pwf = False
    npre0 = 1
    don = 0
    don_lag = 1
    t_skip = ''
    t_no1 = False
    m16 = False
    tper = 2
    pre3 = 1
    wst = ''
    w0 = 3
    r1pack = False
    gran = 4
    tlbd = True
    tlbf = 0
    r6k = 9
    r6e = 3
    r6 = False
    a_skip = ''
    dbgt = False
    jit = 0
    light = False
    lb = 4
    lb_hi = 42
    lb_pos = 0
    lb_t = 0
    lb_lo = 8
    lb_ld = 'sc1'
    lb_st = ''
    pfc = True
    w3 = False
    w3k = 23
    pl_at = 5
    fav = 0
    t15 = True
    nearly = 0
    npre = 3
    pk = True
    v1_late = True
    look_lo = 5
    look_k0 = 0
    look_k1 = 0
    krot = False
    early = True
    chk = 9
    bal_k1 = 30
    psleep = 4
    thr = 20
    blk = 0

WS_FLAGS = 12582912
WS_PROG = WS_FLAGS + 32768
WS_FLAG2 = WS_FLAGS + 65536
WS_STAMP = 13631488
SLOT = 16384
STAGE = 40960
RND = 12 * 32 * 8192

S_X, S_K, S_V, S_WQ, S_WO, S_OUT, S_WS = 4, 8, 12, 16, 20, 24, 28
S_DBG = 32
S_WAVE, S_BR, S_H, S_BL = 34, 35, 36, 37
S_T0, S_T1, S_T2, S_T3 = 38, 39, 40, 41
S_KX, S_XB, S_XL, S_KVB, S_TICK = 42, 43, 44, 45, 46
S_KOFF, S_VOFF, S_THR, S_FLOOR, S_C, S_OB, S_WQB = 47, 48, 49, 50, 51, 52, 53
S_ST, S_STB, S_QT, S_NT = 54, 56, 57, 58
S_SAVE = 60
S_WN, S_FL = 62, 63
S_EV = 59
S_KARG = 64
S_WOB, S_O1, S_QB, S_CNT, S_RHO, S_WC, S_N, S_KR = 90, 91, 92, 93, 94, 95, 96, 97

V_LANE = 1
V_T0, V_T1, V_T2, V_T3 = 2, 3, 4, 5
V_L, V_MX, V_D = 6, 10, 11
V_DMA = 12
V_KA, V_VA, V_OST, V_WA = 16, 24, 28, 29
V_NEGM = 32
V_SA, V_SB, V_P, V_TMP = 48, 64, 80, 88
V_Q, V_KF, V_VF, V_Q2 = 96, 128, 160, 192

class Em:
    def __init__(self): self.L = []
    def __call__(self, s): self.L.append('    ' + s)
    def lab(self, s): self.L.append(s + ':')
    def raw(self, s): self.L.append(s)
    def many(self, l):
        for x in l: self(x)
    def text(self):
        if getattr(self, 'jit', 0):
            import random
            rnd = random.Random(self.jit); out = []; n = 0
            for l in self.L:
                out.append(l)
                t = l.strip()
                if (t == 's_barrier' or t.startswith('s_waitcnt vmcnt')) and rnd.random() < 0.35:
                    n += 1
                    bit = rnd.choice([0, 1, 2, 3, 4, 5])
                    src = rnd.choice(['s2', f's{S_WAVE}'])
                    if src != 's2': bit &= 1
                    out += [f'    s_cselect_b32 s3, 1, 0', f'    s_bitcmp1_b32 {src}, {bit}', f'    s_cbranch_scc0 L_j{n}', f'    s_sleep {rnd.choice([1, 4, 16, 40])}', f'L_j{n}:', '    s_cmp_eq_u32 s3, 1']
            self.L = out
        return '\n'.join(self.L) + '\n'

def vr(b, n=1): return f'v{b}' if n == 1 else f'v[{b}:{b+n-1}]'
def ar(b, n=1): return f'a{b}' if n == 1 else f'a[{b}:{b+n-1}]'
def sr(b, n=1): return f's{b}' if n == 1 else f's[{b}:{b+n-1}]'
def mfma(d, a, b, c): return f'v_mfma_f32_32x32x16_bf16 {d}, {a}, {b}, {c}'
def hold(ci, off, n):
    return ar(64 + 32 * ci + off, n) if ci < 6 else vr(192 + 32 * (ci - 6) + off, n)

def hold3(ci, off, n):
    return hold(ci, off, n) if ci < 8 else vr(64 + 32 * (ci - 8) + off, n)
def reg4(r): return ar(r - 1000, 4) if r >= 1000 else vr(r, 4)

def cost(i):
    if i.startswith('v_exp') or i.startswith('v_rcp'): return 8
    if i.startswith('s_'): return 2
    return 4

def interleave(e, mf, fill):
    total = sum(cost(f) for f in fill if not isinstance(f, tuple))
    per = total / len(mf)
    fi = 0; acc = 0.0
    deadline = {}; items = []
    for f in fill:
        if isinstance(f, tuple):
            if f[0] == 'M': deadline[f[1]] = len(items)
            else: items.append(f)
        else: items.append(f)
    for k, m in enumerate(mf):
        need = deadline.get(k, 0)
        while fi < need:
            it = items[fi]; fi += 1
            if isinstance(it, tuple):
                assert it[1] < k, (it, k)
                continue
            e(it); acc += cost(it)
        if isinstance(m, (list, tuple)): e.many(m)
        else: e(m)
        target = per * (k + 1)
        while fi < len(items) and (acc < target - 1.0 or k == len(mf) - 1):
            it = items[fi]
            if isinstance(it, tuple):
                if it[1] > k: break
                fi += 1; continue
            e(it); acc += cost(it); fi += 1
    assert fi == len(items)

def gaps(e, mf, front, late=(), per=2, late_from=5):
    g = [[] for _ in mf]
    for i, f in enumerate(front): g[min(i // per, len(mf) - 1)].append(f)
    n = len(mf) - late_from
    for i, f in enumerate(late): g[late_from + (i * n) // len(late)].append(f)
    for m, x in zip(mf, g):
        sk = getattr(e, 'skip', '')
        if 'm' not in sk: e(m)
        e.many([y for y in x if not (('r' in sk and y.startswith('ds_read')) or ('d' in sk and y.startswith('buffer_load_dwordx4 v') and ('s[4:7]' in y or 's[16:19]' in y)))])

def stamp(e, o, idx, clk=False):
    if not o.stamps: return 0
    e(f's_memtime {sr(S_ST,2)}' if clk else f's_memrealtime {sr(S_ST,2)}')
    e('s_waitcnt lgkmcnt(0)')
    e(f'v_mov_b32 v{V_T0}, s{S_ST}')
    e(f'v_mov_b32 v{V_T1}, s{S_STB}')
    e('s_mov_b64 exec, 1')
    e(f'buffer_store_dword v{V_T0}, v{V_T1}, {sr(S_WS,4)}, 0 offen offset:{4*idx}')
    e('s_mov_b64 exec, -1')
    return 1

LAZY = {0: 98, 1: 100}
for _i in range(2, 15): LAZY[_i] = 64 + 2 * (_i - 2)
def lazy(e, o, i):
    if o.stamps: e(f's_memrealtime s[{LAZY[i]}:{LAZY[i]+1}]')
def lazy_dump(e, o, ids):
    if not o.stamps: return 0
    e('s_waitcnt lgkmcnt(0)')
    e(f'v_mov_b32 v{V_T1}, s{S_STB}')
    e('s_mov_b64 exec, 1')
    for i in ids:
        e(f'v_mov_b32 v{V_T0}, s{LAZY[i]}')
        e(f'buffer_store_dword v{V_T0}, v{V_T1}, {sr(S_WS,4)}, 0 offen offset:{16 if i == 0 else 4*(16+i)}')
        e('s_nop 1')
    e('s_mov_b64 exec, -1')
    return len(ids)

def dmark(e, o, i):
    if o.dbgt: e(f's_memrealtime s[{64+2*i}:{65+2*i}]')
def ddump(e, o, n):
    if not o.dbgt: return
    e('s_waitcnt vmcnt(0)')
    dmark(e, o, n - 1)
    e('s_waitcnt lgkmcnt(0)')
    e(f's_cmp_lg_u32 s{S_WAVE}, 0')
    e('s_cbranch_scc1 L_exit')
    e('s_mov_b32 s3, 0')
    for j, w in enumerate((5, 130, 203)):
        e(f's_cmp_eq_u32 s2, {w}')
        e(f's_cselect_b32 s3, {4 + 20 * j}, s3')
    e('s_cmp_eq_u32 s3, 0')
    e('s_cbranch_scc1 L_exit')
    e('v_mov_b32 v2, s3')
    e('s_mov_b64 exec, 1')
    for i in range(n):
        e(f's_sub_u32 s{64+2*i}, s{64+2*i}, s98')
        e(f'v_mov_b32 v3, s{64+2*i}')
        e(f'global_store_dword v2, v3, {sr(S_DBG,2)} offset:{4*i}')
        e('s_nop 1')
    e('s_mov_b64 exec, -1')

def align(e, ph):
    if ph < 0: return
    e.raw('.p2align 6')
    for _ in range(ph // 4): e('s_nop 0')

class Vm:
    def __init__(self, e): self.e = e; self.q = []
    def out(self): return sum(c for _, c in self.q)
    def has(self, name): return name in [n for n, _ in self.q]
    def wait(self, name):
        names = [n for n, _ in self.q]
        if name not in names: return
        i = names.index(name)
        rest = sum(c for _, c in self.q[i + 1:])
        assert rest <= 63
        self.e(f's_waitcnt vmcnt({rest})')
        self.q = self.q[i + 1:]
    def room(self, c):
        while self.out() + c > 61: self.wait(self.q[0][0])
    def add(self, name, c):
        self.q.append((name, c)); assert self.out() <= 63, self.q
    def stamp(self, o, idx, clk=False):
        if o.stamps:
            self.room(1); stamp(self.e, o, idx, clk); self.add(f'st{idx}', 1)

def prologue(e, o):
    if o.stamps or o.dbgt or o.light: e('s_memrealtime s[98:99]')
    e('s_cmp_ge_u32 s2, 256')
    e('s_cbranch_scc1 L_exit')
    e(f's_load_dwordx16 {sr(S_KARG,16)}, s[0:1], 0')
    e(f's_load_dwordx8 {sr(S_KARG+16,8)}, s[0:1], 64')
    e(f's_load_dwordx2 {sr(S_KARG+24,2)}, s[0:1], 96')
    e(f'v_lshrrev_b32 v{V_T0}, 6, v0')
    e(f'v_and_b32 v{V_LANE}, 63, v0')
    e(f'v_readfirstlane_b32 s{S_WAVE}, v{V_T0}')
    e(f's_and_b32 s{S_T0}, s2, 7')
    e(f's_lshr_b32 s{S_T1}, s2, 3')
    e(f's_lshr_b32 s{S_BR}, s{S_T0}, 2')
    e(f's_and_b32 s{S_T2}, s{S_T0}, 3')
    e(f's_lshl_b32 s{S_H}, s{S_T2}, 3')
    e(f's_and_b32 s{S_T3}, s{S_T1}, 7')
    e(f's_add_u32 s{S_H}, s{S_H}, s{S_T3}')
    e(f's_lshr_b32 s{S_BL}, s{S_T1}, 3')
    e(f's_mul_i32 s{S_KX}, s{S_BL}, 5')
    e(f's_add_u32 s{S_KX}, s{S_KX}, 1')
    e(f's_lshr_b32 s{S_KX}, s{S_KX}, 1')
    if o.arot in (2, 3): e(f's_mov_b32 s{S_KX}, 0')
    if o.arot == 4: e(f's_lshr_b32 s{S_T3}, s{S_T3}, 2')
    if o.arot in (0, 3, 4): e(f's_add_u32 s{S_KX}, s{S_KX}, s{S_T3}')
    e(f's_cmp_ge_u32 s{S_KX}, 10')
    e(f's_cselect_b32 s{S_T3}, 10, 0')
    e(f's_sub_u32 s{S_KX}, s{S_KX}, s{S_T3}')
    if o.blk == 0:
        e(f's_mul_i32 s{S_QT}, s{S_T1}, 13')
        e(f's_lshr_b32 s{S_QT}, s{S_QT}, 6')
        e(f's_mul_i32 s{S_T3}, s{S_QT}, 5')
        e(f's_sub_u32 s{S_NT}, s{S_T1}, s{S_T3}')
        e(f's_and_b32 s{S_T3}, s{S_T2}, 1')
        e(f's_mul_i32 s{S_T3}, s{S_T3}, 5')
        e(f's_add_u32 s{S_NT}, s{S_NT}, s{S_T3}')
        e(f's_lshr_b32 s{S_T3}, s{S_T2}, 1')
        e(f's_mul_i32 s{S_T3}, s{S_T3}, 6')
        e(f's_add_u32 s{S_QT}, s{S_QT}, s{S_T3}')
    elif o.blk == 1:
        e(f's_mul_i32 s{S_QT}, s{S_T1}, 26')
        e(f's_lshr_b32 s{S_QT}, s{S_QT}, 8')
        e(f's_mul_i32 s{S_T3}, s{S_QT}, 10')
        e(f's_sub_u32 s{S_NT}, s{S_T1}, s{S_T3}')
        e(f's_mul_i32 s{S_T3}, s{S_T2}, 3')
        e(f's_add_u32 s{S_QT}, s{S_QT}, s{S_T3}')
    else:
        e(f's_mul_i32 s{S_T3}, s{S_T2}, 30')
        e(f's_add_u32 s{S_T3}, s{S_T3}, s{S_T1}')
        e(f's_mul_i32 s{S_NT}, s{S_T3}, 171')
        e(f's_lshr_b32 s{S_NT}, s{S_NT}, 11')
        e(f's_mul_i32 s{S_QT}, s{S_NT}, 12')
        e(f's_sub_u32 s{S_QT}, s{S_T3}, s{S_QT}')
    e(f's_cmp_ge_u32 s{S_T1}, 30')
    e(f's_cselect_b32 s{S_NT}, 15, s{S_NT}')
    e(f's_cselect_b32 s{S_QT}, 0, s{S_QT}')
    e(f's_mul_i32 s{S_QB}, s{S_QT}, 11')
    e(f's_lshr_b32 s{S_QB}, s{S_QB}, 5')
    e(f's_lshl_b32 s{S_STB}, s2, 2')
    e(f's_add_u32 s{S_STB}, s{S_STB}, s{S_WAVE}')
    e(f's_lshl_b32 s{S_STB}, s{S_STB}, 8')
    e(f's_add_u32 s{S_STB}, s{S_STB}, {WS_STAMP}')
    e(f's_lshl_b32 s{S_XL}, s{S_WAVE}, 13')
    e(f's_lshl_b32 s{S_WOB}, s{S_NT}, 7')
    e(f's_cmp_ge_u32 s{S_NT}, 5')
    e(f's_cselect_b32 s{S_T0}, {5 if o.blk == 0 else 0}, 0')
    e(f's_sub_u32 s{S_RHO}, s{S_NT}, s{S_T0}')
    e(f's_mul_i32 s{S_RHO}, s{S_RHO}, {o.rot}')
    e(f's_and_b32 s{S_RHO}, s{S_RHO}, 15')
    for srd, size in ((S_X, 983040), (S_K, 1 << 26), (S_V, 1 << 26), (S_WQ, 5242880), (S_WO, 5242880), (S_OUT, 1966080), (S_WS, 16777216)):
        e(f's_mov_b32 s{srd+2}, {size}')
        e(f's_mov_b32 s{srd+3}, 0x20000')

def srds(e, o):
    e('s_waitcnt lgkmcnt(0)')
    e(f's_cmp_eq_u32 s{S_BR}, 0')
    for srd, i in ((S_WQ, 3), (S_X, 0), (S_K, 1), (S_V, 2), (S_WO, 4)):
        e(f's_cselect_b64 {sr(srd,2)}, {sr(S_KARG+2*i,2)}, {sr(S_KARG+10+2*i,2)}')
    e(f's_mov_b64 {sr(S_OUT,2)}, {sr(S_KARG+20,2)}')
    e(f's_mov_b64 {sr(S_WS,2)}, {sr(S_KARG+24,2)}')
    e(f's_mov_b64 {sr(S_DBG,2)}, {sr(S_KARG+22,2)}')
    for srd in (S_WQ, S_X, S_K, S_V, S_WO, S_OUT, S_WS):
        e(f's_and_b32 s{srd+1}, s{srd+1}, 0xffff')
    lazy(e, o, 1)

def no_task_wo(e):
    e(f's_cmp_eq_u32 s{S_NT}, 15')
    e(f's_cselect_b32 s{S_WO+2}, 0, s{S_WO+2}')

class C:
    M16 = False
    NR = 8; RING = 32768; OFF = 6; J0 = 1; SCR = 3; TL = 'T6'
    W = (32768, 73728, 114688); X = (49152, 90112, 0)
    PIECE = {8: 0, 9: 1, 10: 2, 11: 3, 12: 4, 13: 0, 14: 1, 15: 2}
    TCH = (9, 10, 11)
def plan6():
    C.NR = 6; C.RING = 65536; C.OFF = 4; C.J0 = 2; C.SCR = 2; C.TL = 'T4'
    C.W = (65536, 106496, 24576); C.X = (81920, 0, 40960)
    C.PIECE = {8: 0, 9: 1, 10: 4, 11: 2, 12: 3, 13: 0, 14: 1, 15: 4}
    C.TCH = (10, 11)
PF_TICKS = [0, 1, 6, 10, 15, 19, 22, 24, 25, 26, 27]
def reg_w(s): return C.W[(s + 2) % 3]
def reg_x(s): return C.X[(s + 2) % 3]

SEQ = ['K0']
for k in range(32): SEQ += [f'K{k+1}', f'V{k}']
SEQ += [f'T{i}' for i in range(8)]
POS = {n: i for i, n in enumerate(SEQ)}
def slot(name): return (C.OFF + POS[name]) % C.NR
def slot_addr(name): return C.RING + slot(name) * SLOT

def wo_dma(o, c, ldsbase_s, ldsoff, wob, vw, dyn=False):
    r = []
    if o.no_w and dyn: return ['s_nop 0']
    if dyn:
        r += [f's_mul_i32 s{S_T0}, s{S_WC}, {64*1280}', f's_add_u32 s{S_WC}, s{S_WC}, 1', f's_and_b32 s{S_WC}, s{S_WC}, 15']
    else:
        r += [f's_add_u32 s{S_T0}, s{S_RHO}, {c}', f's_and_b32 s{S_T0}, s{S_T0}, 15', f's_mul_i32 s{S_T0}, s{S_T0}, {64*1280}']
    r.append(f's_add_u32 s{S_T0}, s{S_T0}, {wob}')
    for g_ in range(2):
        r.append(f's_add_u32 m0, {ldsbase_s}, {ldsoff + 4096*g_}' if ldsbase_s else f's_mov_b32 m0, {ldsoff + 4096*g_}')
        r.append(f's_add_u32 s{S_T1}, s{S_T0}, {32*g_*1280}')
        for i in range(4):
            r.append(f'buffer_load_dwordx4 v{vw+i}, {sr(S_WO,4)}, s{S_T1} offen offset:{1024*i} {o.wo_flags} lds')
    return r

def wo_voffs(e, dst):
    L = V_LANE
    e(f'v_lshrrev_b32 v{V_T0}, 3, v{L}')
    e(f'v_mul_u32_u24 v{V_T0}, 1280, v{V_T0}')
    if C.M16:
        e(f'v_lshrrev_b32 v{V_T1}, 4, v{L}')
        e(f'v_lshlrev_b32 v{V_T1}, 1, v{V_T1}')
    else:
        e(f'v_bfe_u32 v{V_T1}, v{L}, 4, 1')
        e(f'v_lshlrev_b32 v{V_T1}, 2, v{V_T1}')
    e(f'v_and_b32 v{V_T2}, 7, v{L}')
    e(f'v_xor_b32 v{V_T1}, v{V_T1}, v{V_T2}')
    e(f'v_lshl_add_u32 v{dst}, v{V_T1}, 4, v{V_T0}')
    for i in range(1, 4): e(f'v_add_u32 v{dst+i}, {(10240-1024)*i}, v{dst}')

def wo_lane_addr(e, dst):
    L = V_LANE
    if C.M16:
        e(f'v_lshrrev_b32 v{V_T0}, 5, v{L}')
        e(f'v_bfe_u32 v{V_T1}, v{L}, 2, 3')
        e(f'v_lshl_add_u32 v{dst}, v{V_T0}, 4, v{V_T1}')
        e(f'v_lshlrev_b32 v{dst}, 7, v{dst}')
        e(f'v_bfe_u32 v{V_T3}, v{L}, 3, 2')
        e(f'v_lshl_add_u32 v{dst}, v{V_T3}, 5, v{dst}')
        e(f'v_and_b32 v{V_T3}, 3, v{L}')
        e(f'v_lshl_add_u32 v{dst}, v{V_T3}, 3, v{dst}')
        return
    e(f'v_lshrrev_b32 v{V_T0}, 5, v{L}')
    e(f'v_bfe_u32 v{V_T1}, v{L}, 2, 2')
    e(f'v_lshl_add_u32 v{dst}, v{V_T0}, 2, v{V_T1}')
    e(f'v_lshlrev_b32 v{dst}, 7, v{dst}')
    e(f'v_bfe_u32 v{V_T3}, v{L}, 3, 1')
    e(f'v_lshl_add_u32 v{dst}, v{V_T3}, 6, v{dst}')
    e(f'v_bfe_u32 v{V_T3}, v{L}, 4, 1')
    e(f'v_lshl_add_u32 v{dst}, v{V_T3}, 5, v{dst}')
    e(f'v_and_b32 v{V_T3}, 3, v{L}')
    e(f'v_lshl_add_u32 v{dst}, v{V_T3}, 3, v{dst}')

def wo_reads(dstf, a0, a1, off, tmp=(V_T0, V_T1, V_T3)):
    r = []
    if C.M16:
        ad = [a0] + list(tmp)
        r += [f'v_xor_b32 v{ad[n]}, {32*n}, v{a0}' for n in range(1, 4)]
        for F in range(2):
            for n in range(4):
                for u in range(2):
                    r.append(f'ds_read_b64_tr_b16 {dstf(16*F+4*n+2*u,2)}, v{ad[n]} offset:{off+(32*F+8*u)*128}')
        return r
    for s4 in range(4):
        for nt in range(2):
            for u in range(2):
                r.append(f'ds_read_b64_tr_b16 {dstf(8*s4+4*nt+2*u,2)}, v{(a0,a1)[nt]} offset:{off+(16*s4+8*u)*128}')
    return r

def poll(e, o, tag, load, test):
    e.many(test)
    e('s_cmp_eq_u64 vcc, -1')
    e(f's_cbranch_scc1 L_polled_{tag}')
    e(f's_mov_b32 s{S_CNT}, 0x20000')
    e.lab(f'L_poll_{tag}')
    e(f's_sleep {o.psleep}')
    e(load)
    e('s_waitcnt vmcnt(0)')
    e.many(test)
    e('s_cmp_eq_u64 vcc, -1')
    e(f's_cbranch_scc1 L_polled_{tag}')
    e(f's_sub_u32 s{S_CNT}, s{S_CNT}, 1')
    e(f's_cmp_lg_u32 s{S_CNT}, 0')
    e(f's_cbranch_scc1 L_poll_{tag}')
    e.lab(f'L_polled_{tag}')

def flag1_tick(o):
    last = 0
    for w in range(3):
        t = int(o.wst[w]) if o.wst else o.w0 + w; ev = []
        for i in range(9):
            ev.append(t)
            t += o.wper + (1 if (o.t15 and t + o.wper == 15) else 0)
        assert ev[0] <= 14 and ev[7] >= 16 and ev[8] <= 30, ev
        last = max(last, min(x for x in ev if x >= 16))
    return last + 1

def loader(e, o):
    L = V_LANE
    VK, VV, VW, VWO, VF, VP, VZ = 24, 16, 20, 12, 17, 18, 19
    VA, VB = 96, 100
    AF = [48, 56]; BF = [64, 80]; ACC = 128
    vm = Vm(e)
    e(f'v_lshrrev_b32 v{V_T0}, 4, v{L}')
    e(f'v_and_b32 v{V_T1}, 15, v{L}')
    e(f'v_lshlrev_b32 v{V_T3}, 2, v{V_T0}')
    e(f'v_xor_b32 v{V_T3}, v{V_T3}, v{V_T1}')
    e(f'v_lshlrev_b32 v{V_T2}, 8, v{V_T0}')
    e(f'v_lshl_add_u32 v{VV}, v{V_T3}, 4, v{V_T2}')
    for i in range(4):
        e(f'v_add_u32 v{V_T3}, {4*i}, v{V_T0}')
        e(f'v_xor_b32 v{V_T3}, v{V_T3}, v{V_T1}')
        e(f'v_lshl_add_u32 v{VK+i}, v{V_T3}, 4, v{V_T2}')
    e(f's_lshl_b32 s{S_KVB}, s{S_BL}, 5')
    e(f's_add_u32 s{S_KVB}, s{S_KVB}, s{S_H}')
    e(f's_lshl_b32 s{S_KVB}, s{S_KVB}, 18')
    e(f's_and_b32 s{S_KR}, s2, 7')
    e(f's_lshl_b32 s{S_KR}, s{S_KR}, 1')
    e(f's_lshr_b32 s{S_T0}, s2, 3')
    e(f's_add_u32 s{S_KR}, s{S_KR}, s{S_T0}')
    e(f's_and_b32 s{S_KR}, s{S_KR}, {15 if o.krot else 0}')
    e(f's_lshl_b32 s{S_KR}, s{S_KR}, 14')
    e(f'v_lshlrev_b32 v{VW}, 19, v{L}')
    e(f'v_lshlrev_b32 v{VW+1}, 25, v{L}')
    e(f'v_mov_b32 v{VZ}, 0')
    e(f'v_lshlrev_b32 v{VW+3}, 18, v{L}')
    e(f's_lshl_b32 s{S_T0}, s{S_BR}, 2')
    e(f's_add_u32 s{S_FL}, s{S_T0}, s{S_BL}')
    e(f's_lshl_b32 s{S_FL}, s{S_FL}, 5')
    e(f's_add_u32 s{S_FL}, s{S_FL}, s{S_H}')
    e(f's_lshl_b32 s{S_FL}, s{S_FL}, 7')
    e(f's_add_u32 s{S_FL}, s{S_FL}, {WS_FLAGS}')
    e(f's_mul_i32 s{S_T2}, s{S_BR}, 8')
    e(f's_add_u32 s{S_T2}, s{S_T2}, s{S_BL}')
    e(f's_mul_i32 s{S_T2}, s{S_T2}, 96')
    e(f's_add_u32 s{S_T2}, s{S_T2}, s{S_H}')
    e(f's_lshl_b32 s{S_T2}, s{S_T2}, 13')
    if o.pfc:
        e(f's_getpc_b64 {sr(S_ST,2)}')
        e.lab('L_pc')
        e(f's_sub_u32 s{S_ST}, s{S_ST}, L_pc-{NAME}_kernel')
        e(f's_subb_u32 s{S_ST+1}, s{S_ST+1}, 0')
        e(f's_lshr_b32 s{S_T0}, s2, 3')
        e(f's_lshl_b32 s{S_T0}, s{S_T0}, 11')
        e(f'v_lshlrev_b32 v{V_T0}, 7, v{L}')
        e(f'v_add_u32 v{V_T0}, s{S_T0}, v{V_T0}')
        e(f'v_min_u32 v{V_T0}, L_end-{NAME}_kernel-4, v{V_T0}')
        e('s_mov_b64 exec, 0xffff')
        e(f'global_load_dword v{VW+2}, v{V_T0}, {sr(S_ST,2)}')
        e('s_mov_b64 exec, -1')
        vm.add('pfc', 1)
    srds(e, o)
    if o.tlb:
        e('s_mov_b64 exec, 3')
        e(f'buffer_load_dword v{VW+2}, v{VW+1}, {sr(S_K,4)}, s{S_KVB} offen')
        e(f'buffer_load_dword v{VW+2}, v{VW+1}, {sr(S_V,4)}, s{S_KVB} offen')
        e('s_mov_b64 exec, 0x3ffffff')
        if o.tlbq: e(f'buffer_load_dword v{VW+2}, v{VW}, {sr(S_WQ,4)}, 0 offen')
        e(f'buffer_load_dword v{VW+2}, v{VW}, {sr(S_WO,4)}, 0 offen')
        e(f'buffer_load_dword v{VW+2}, v{VW}, {sr(S_OUT,4)}, 0 offen')
        e('s_mov_b64 exec, 0x7007')
        e(f'buffer_load_dword v{VW+2}, v{VW+3}, {sr(S_WS,4)}, s{S_T2} offen')
        e('s_mov_b64 exec, 1')
        e(f'buffer_load_dword v{VW+2}, v{VZ}, {sr(S_WS,4)}, s{S_FL} offen')
        if o.tlbd: e(f'global_load_dword v{VW+2}, v{VZ}, {sr(S_DBG,2)} offset:128')
        if o.tlbf:
            e('s_mov_b64 exec, -1')
            e(f'v_and_b32 v{V_T0}, 3, v{L}')
            e(f'v_lshlrev_b32 v{V_T0}, 16, v{V_T0}')
            e(f'v_lshrrev_b32 v{V_T1}, 2, v{L}')
            e(f'v_lshl_add_u32 v{V_T0}, v{V_T1}, 25, v{V_T0}')
            e('s_mov_b64 exec, 0xee')
            e(f'buffer_load_dword v{VW+2}, v{V_T0}, {sr(S_K,4)}, s{S_KVB} offen')
            e(f'buffer_load_dword v{VW+2}, v{V_T0}, {sr(S_V,4)}, s{S_KVB} offen')
        e('s_mov_b64 exec, -1')
        vm.add('tlb', 6 + o.tlbq + o.tlbd + 2 * o.tlbf)
    def issue_l(name):
        kind, t = name[0], int(name[1:])
        r = []
        if kind == 'K' and t > 31: return r
        base = slot_addr(name)
        if kind in 'KV':
            off = (t // 16) * (4 * 32 * 262144)
            r.append(f's_add_u32 s{S_T0}, s{S_KR}, {(t % 16) * SLOT}')
            r.append(f's_and_b32 s{S_T0}, s{S_T0}, {16 * SLOT - 1}')
            r.append(f's_add_u32 s{S_T0}, s{S_T0}, s{S_KVB}')
            for g in range(4):
                r.append(f's_mov_b32 m0, {base + 4096*g}')
                r.append(f's_add_u32 s{S_T1}, s{S_T0}, {off + 4096*g}')
                for i in range(4):
                    v = VK + i if kind == 'K' else VV
                    r.append(f'buffer_load_dwordx4 v{v}, {sr(S_K if kind == "K" else S_V,4)}, s{S_T1} offen offset:{1024*i} {o.kv_flags} lds')
        else:
            rr = slot(name); j, hi = C.J0 + (rr >> 1), rr & 1
            if j == C.PIECE[12]: return r
            for p in range(2):
                r.append(f's_add_u32 s{S_T2}, s{S_WOB}, {1024*1280*(2*hi+p)}')
                r += wo_dma(o, [c for c in C.TCH if C.PIECE[c] == j][0], None, base + 8192 * p, f's{S_T2}', VWO)
        return r
    def issue(name):
        r = issue_l(name)
        if r:
            vm.room(16); e.many(r); vm.add(name, 16)
    def own_w(c, j=0):
        vm.room(8)
        e(f's_add_u32 s{S_T2}, s{S_WOB}, {1024*1280*3}')
        e.many(wo_dma(o, c, None, 3 * 8192 + 32768 * j, f's{S_T2}', VWO))
        vm.add(f'w{c}', 8)
    def wait_upto(n):
        for m in range(n, -1, -1):
            if vm.has(SEQ[m]): vm.wait(SEQ[m]); return
    def flag(val):
        pre = []; so = S_FL
        if val == 1 and o.r1pack:
            so = S_T2
            pre = [f's_sub_u32 s{S_T2}, s{S_FL}, {WS_FLAGS}', f's_lshr_b32 s{S_T2}, s{S_T2}, 5', f's_add_u32 s{S_T2}, s{S_T2}, {WS_PROG + 4096}']
        return pre + [f's_add_u32 s{S_T0}, s{S_N}, {val}', f'v_mov_b32 v{V_T2}, s{S_T0}', 's_mov_b64 exec, 1',
                f'buffer_store_dword v{V_T2}, v{VZ}, {sr(S_WS,4)}, s{so} offen sc1', 's_mov_b64 exec, -1']
    if o.pf_a:
        if o.pf_delay: e(f's_sleep {o.pf_delay}')
        e(f'v_lshrrev_b32 v{VW}, 1, v{L}')
        e(f'v_lshlrev_b32 v{VW}, 13, v{VW}')
        e(f'v_and_b32 v{VW+1}, 1, v{L}')
        e(f'v_lshl_add_u32 v{VW}, v{VW+1}, 7, v{VW}')
        e(f's_mul_i32 s{S_T0}, s{S_BL}, {160*8192}')
        e(f's_lshl_b32 s{S_T1}, s{S_H}, 8')
        e(f's_add_u32 s{S_T0}, s{S_T0}, s{S_T1}')
        for i in range(5):
            e(f's_add_u32 s{S_T1}, s{S_T0}, {32*i*8192}')
            e(f'buffer_load_dword v{VW+2}, v{VW}, {sr(S_WQ,4)}, s{S_T1} offen {o.w_flags}')
        e(f'v_lshlrev_b32 v{VW+1}, 7, v{L}')
        e(f's_and_b32 s{S_T0}, s{S_H}, 7')
        e(f's_mul_i32 s{S_T0}, s{S_T0}, 15360')
        e(f's_mul_i32 s{S_T1}, s{S_BL}, 122880')
        e(f's_add_u32 s{S_T0}, s{S_T0}, s{S_T1}')
        for i in range(4):
            e(f's_add_u32 s{S_T1}, s{S_T0}, {(i >> 1) * 491520 + (i & 1) * 8192}')
            e(f'buffer_load_dword v{VW+2}, v{VW+1}, {sr(S_X,4)}, s{S_T1} offen {o.w_flags}')
        vm.add('pfa', 9)
    if o.k_first: issue('K0'); issue('K1')
    e('s_cmp_lg_u32 s2, 0')
    e('s_cbranch_scc1 L_notag')
    e(f's_memrealtime {sr(S_ST,2)}')
    e('s_waitcnt lgkmcnt(0)')
    e(f's_mul_i32 s{S_ST+1}, s{S_ST+1}, 0x9e3779b1')
    e(f's_add_u32 s{S_ST}, s{S_ST}, s{S_ST+1}')
    e(f's_or_b32 s{S_ST}, s{S_ST}, 4')
    e(f's_and_b32 s{S_ST}, s{S_ST}, -4')
    e(f'v_mov_b32 v{V_T2}, s{S_ST}')
    e('s_mov_b64 exec, 1')
    e(f'global_store_dword v{VZ}, v{V_T2}, {sr(S_DBG,2)} sc1')
    e('s_mov_b64 exec, -1')
    e.lab('L_notag')
    e(f's_lshl_b32 s{S_T0}, s{S_BR}, 2')
    e(f's_add_u32 s{S_T0}, s{S_T0}, s{S_QB}')
    e(f's_lshl_b32 s{S_T0}, s{S_T0}, 12')
    e(f's_add_u32 s{S_T0}, s{S_T0}, {WS_FLAGS}')
    e(f'v_and_b32 v{VP}, 31, v{L}')
    e(f'v_lshlrev_b32 v{VP}, 7, v{VP}')
    e(f'v_add_u32 v{VP}, s{S_T0}, v{VP}')
    if o.r1pack:
        e(f'v_subrev_u32 v{VP}, {WS_FLAGS}, v{VP}')
        e(f'v_lshrrev_b32 v{VP}, 5, v{VP}')
        e(f'v_add_u32 v{VP}, {WS_PROG + 4096}, v{VP}')
    a_addr(e, VA, VB, None)
    wo_voffs(e, VWO)
    wo_lane_addr(e, V_WA)
    e(f'v_lshlrev_b32 v{VW}, 7, v{L}')
    e(f'v_add_u32 v{V_WA}, {3*8192}, v{V_WA}')
    e(f'v_xor_b32 v{V_WA+1}, 64, v{V_WA}')
    e(f'v_lshlrev_b32 v{V_OST}, 4, v{L}')
    e(f's_mov_b32 s{S_C}, {SCALE}')
    pf = []
    for n in range(2, 2 + o.pf_kv):
        kind, t = SEQ[n][0], int(SEQ[n][1:])
        for hh in range(2):
            pf.append([f's_add_u32 s{S_T1}, s{S_KVB}, {t*SLOT + hh*8192}',
                       f'buffer_load_dword v{VW+1}, v{VW}, {sr(S_K if kind == "K" else S_V,4)}, s{S_T1} offen {o.pf_flags}'])
    if o.pf_wo:
        e(f's_lshl_b32 s{S_T2}, s{S_H}, 2')
        e(f's_add_u32 s{S_T2}, s{S_T2}, s{S_BL}')
        e(f's_mul_i32 s{S_T2}, s{S_T2}, 40960')
        for i in range(5):
            pf.append([f's_add_u32 s{S_T1}, s{S_T2}, {i*8192}',
                       f'buffer_load_dword v{VW+1}, v{VW}, {sr(S_WO,4)}, s{S_T1} offen {o.pf_flags}'])
    def reads(s4, buf):
        r = []
        for t in (2, 3):
            for u in range(2):
                r.append(f'ds_read_b64_tr_b16 {vr(AF[buf]+4*(t-2)+2*u,2)}, v{VA+t} offset:{(16*s4+4*u)*256}')
        r += [f'ds_read_b128 {vr(BF[buf]+4*j,4)}, v{VB+s4} offset:{8192*j + 4096}' for j in range(3)]
        return r
    def mf(buf, first):
        r = []
        for j in range(3):
            for t in range(2):
                d = vr(ACC + 32 * j + 16 * t, 16)
                r.append(mfma(d, vr(AF[buf] + 4 * t, 4), vr(BF[buf] + 4 * j, 4), '0' if first else d))
        return r
    pf2 = []
    if o.pf2:
        e(f'v_and_b32 v36, 31, v{L}')
        e(f'v_lshrrev_b32 v36, 1, v36')
        e(f'v_lshrrev_b32 v37, 5, v{L}')
        e(f'v_lshl_add_u32 v36, v37, 6, v36')
        e(f'v_lshlrev_b32 v36, 13, v36')
        e(f'v_and_b32 v37, 1, v{L}')
        e(f'v_lshl_add_u32 v36, v37, 7, v36')
        e(f'v_lshrrev_b32 v38, 1, v{L}')
        e(f'v_min_u32 v38, 23, v38')
        e(f'v_mul_u32_u24 v38, 1280, v38')
        e(f'v_lshl_add_u32 v38, v37, 7, v38')
        e(f's_lshl_b32 s{S_XB}, s{S_BL}, 17')
        e(f's_lshl_b32 s{S_T0}, s{S_H}, 8')
        e(f's_add_u32 s{S_XB}, s{S_XB}, s{S_T0}')
        e(f's_bfe_u32 s{S_T0}, s{S_H}, 0x10002')
        e(f's_lshl_b32 s{S_T0}, s{S_T0}, 2')
        e(f's_add_u32 s{S_T0}, s{S_T0}, s{S_BL}')
        e(f's_mul_i32 s{S_OB}, s{S_T0}, 122880')
        e(f's_and_b32 s{S_T0}, s{S_H}, 3')
        e(f's_mul_i32 s{S_T0}, s{S_T0}, {24*1280}')
        e(f's_add_u32 s{S_OB}, s{S_OB}, s{S_T0}')
        for p in range(o.pf2_p0, 5):
            pf2.append([f's_add_u32 s{S_T1}, s{S_XB}, {128*p*8192}', f'buffer_load_dword v39, v36, {sr(S_WQ,4)}, s{S_T1} offen',
                        f's_add_u32 s{S_T1}, s{S_OB}, {256*p}', f'buffer_load_dword v39, v38, {sr(S_X,4)}, s{S_T1} offen'])
        for x in pf2[:o.pf2_pre]:
            e.many(x); vm.add('pf2', 2)
        pf2 = pf2[o.pf2_pre:]
    extra = {}
    def ride(step, name, ins, cnt):
        extra.setdefault(step, []).append((name, ins, cnt))
    for i, x in enumerate(pf2): ride(o.pf2_s0 + o.pf2_gap * i, 'pf2', x, 2)
    if not o.k_first:
        for i, nm in enumerate(('K0', 'K1')):
            ins = issue_l(nm)
            for q in range(4): ride(4 * o.k_s0 + 4 * i + q, nm if q == 3 else None, ins[(3 + 6 * q if q else 0):3 + 6 * q + 6], 4)
    npf = 4 * (7 - o.pf_s0)
    for i, x in enumerate(pf): ride(4 * o.pf_s0 + (i * npf) // max(len(pf), 1), 'pf', x, 1)
    for i, nm in enumerate(('V0', 'K2')):
        ins = issue_l(nm)
        for q in range(2): ride(31 + 2 * i + q, nm if q == 1 else None, ins[(15 if q else 0):3 + 12 * q + 12], 8)
    ins = issue_l('V1')
    for q in range(0 if o.v1_late else 2): ride(35 + q, 'V1' if q == 1 else None, ins[(15 if q else 0):3 + 12 * q + 12], 8)
    e('s_barrier')
    e.many(reads(0, 0))
    e.skip = o.a_skip + ('mr' if o.dq2 else '')
    for s in range(10):
        for s4 in range(4):
            step = 4 * s + s4; buf = step & 1
            e('s_waitcnt lgkmcnt(0)')
            if step == 31: no_task_wo(e)
            if s4 == 3:
                if s == 9: vm.wait('K1')
                e('s_barrier')
            late = []
            for name, ins, cnt in extra.get(step, []):
                vm.room(cnt); late += ins; vm.add(name or 'part', cnt)
            if s4 == 2 and s < 9: late += a_step(s, VA)
            front = reads((s4 + 1) & 3, buf ^ 1) if step < 39 else []
            gaps(e, mf(buf, step == 0), front, late, per=max(o.aper - 1, 3), late_from=(2 if s4 == 2 else 1))
    e.skip = ''
    if o.v1_late: issue('V1')
    e('s_nop 7'); e('s_nop 3')
    for j in range(3):
        for i in range(16): e.many(conv(i, ACC + 32 * j, ACC + 32 * j))
        for f in range(4): e(f'ds_write_b128 v{V_OST}, {vr(ACC+32*j+4*f,4)} offset:{8192*j + 1024*f}')
    e('s_waitcnt lgkmcnt(0)')
    issue('K3')
    issued = POS['K3']
    e(f's_lshr_b32 s{S_WC}, s2, 3')
    e(f's_mul_i32 s{S_KX}, s{S_WC}, 13')
    e(f's_lshr_b32 s{S_KX}, s{S_KX}, 6')
    vm.wait('pfa')
    e(f'v_mul_u32_u24 v{VW+2}, 1280, v{L}')
    vm_pg = [None]
    ld_own = f'buffer_load_dword v23, v22, {sr(S_WS,4)}, 0 offen sc1'
    T3 = Tail(e, o); T3.vm = vm
    T3.free = [1000 + r for r in range(32, 64, 4)]
    e.T3 = T3
    def shadow_mm(c, first):
        m = []
        af = (lambda off, n: hold3(c, off, n)) if c < 12 else (lambda off, n: vr(32 + off, n))
        for s4 in range(4):
            for nt in range(2):
                d = ar(16 * nt, 16)
                m.append(mfma(d, af(8 * s4 + 4 * nt, 4), reg4(T3.where[(0, c)][s4]), '0' if (first and s4 == 0) else d))
        return m
    ld_cnt = f'global_load_dword v23, v{VZ}, {sr(S_DBG,2)} sc1'
    ld_fl = f'buffer_load_dword v23, v{VP}, {sr(S_WS,4)}, 0 offen sc1'
    for k in range(32):
        wait_upto(POS[f'V{k}'])
        vm.stamp(o, 32 + k) if o.tickst == 1 else None
        e('s_barrier')
        vm.stamp(o, 32 + k) if o.tickst == 2 else None
        if k == flag1_tick(o):
            vm.room(1); e.many(flag(1)); vm.add('f1', 1)
        if o.pf_w and k in PF_TICKS and PF_TICKS.index(k) >= o.pf_wi:
            vm.room(1)
            e(f's_add_u32 s{S_T0}, s{S_KX}, {6 * PF_TICKS.index(k)}')
            e(f's_and_b32 s{S_T2}, s{S_T0}, 3')
            e(f's_lshl_b32 s{S_T2}, s{S_T2}, 4')
            e(f's_lshr_b32 s{S_T0}, s{S_T0}, 2')
            e(f's_add_u32 s{S_T0}, s{S_T0}, s{S_RHO}')
            e(f's_and_b32 s{S_T0}, s{S_T0}, 15')
            e(f's_add_u32 s{S_T0}, s{S_T0}, s{S_T2}')
            e(f's_mul_i32 s{S_T0}, s{S_T0}, {64*1280}')
            e(f's_add_u32 s{S_T0}, s{S_T0}, s{S_WOB}')
            e(f'buffer_load_dword v{VW+1}, v{VW+2}, {sr(S_WO,4)}, s{S_T0} offen {o.wo_flags}')
            vm.add('pft', 1)
        wper = o.wper; ws = int(o.wst[3]) if o.wst else o.w0 - 1 if wper == 3 else o.w0 + 1
        wev = (k - ws) // wper if (k >= ws and (k - ws) % wper == 0 and k <= ws + 8 * wper) else None
        if wev:
            vm.wait(f'w{wev-1}')
            e.many(wo_reads(lambda off, n: hold3(wev - 1, off, n), V_WA, V_WA + 1, 0))
        if o.w3 and k == o.w3k - 1:
            e(f'v_and_b32 v22, 7, v{L}')
            e(f'v_lshlrev_b32 v22, 7, v22')
            e(f'v_readfirstlane_b32 s{S_T0}, v{VP}')
            e(f's_add_u32 s{S_T0}, s{S_T0}, {24*128}')
            e(f'v_add_u32 v22, s{S_T0}, v22')
            vm.room(1); e(ld_own); vm.add('po', 1)
        if o.lb and k == o.tagk + 1:
            e(f's_and_b32 s{S_T0}, s2, 7')
            e(f's_lshl_b32 s{S_T0}, s{S_T0}, 7')
            e(f's_add_u32 s{S_T0}, s{S_T0}, {WS_PROG}')
            e(f'v_and_b32 v33, 31, v{L}')
            e(f'v_lshlrev_b32 v33, 2, v33')
            e(f'v_add_u32 v33, s{S_T0}, v33')
            e(f's_lshr_b32 s{S_T2}, s2, 3')
            e(f's_lshl_b32 s{S_T2}, s{S_T2}, 2')
            e(f's_add_u32 s{S_T0}, s{S_T0}, s{S_T2}')
            e(f'v_mov_b32 v32, s{S_T0}')
            e(f's_mov_b32 s{S_WC}, 0')
            if o.lb_t: e(f's_mov_b32 s{S_KX}, 0')
            if o.don:
                e(f's_cmp_eq_u32 s{S_NT}, 15')
                e(f's_cselect_b32 s{S_KX}, {4 * o.don_lag}, 0')
        if o.lb and o.tagk + 1 <= k <= 28:
            vm.room(1)
            e(f's_add_u32 s{S_T0}, s{S_N}, {4 * k}')
            e(f'v_mov_b32 v35, s{S_T0}')
            e('s_mov_b64 exec, 1')
            e(f'buffer_store_dword v35, v32, {sr(S_WS,4)}, 0 offen {o.lb_st}')
            e('s_mov_b64 exec, -1')
            vm.add('ps', 1)
        if o.lb and vm_pg[0] is not None and vm_pg[0] + 1 == k:
            vm.wait('pg')
            e(f'v_subrev_u32 v34, s{S_N}, v34')
            if o.lb_t:
                e(f'v_cmp_ge_u32 vcc, {4 * (k - 2)}, v34')
                e(f's_bcnt1_i32_b32 s{S_KX}, vcc_lo')
            e(f'v_subrev_u32 v34, {4 * k}, v34')
            if o.don: e(f'v_subrev_u32 v34, s{S_KX}, v34')
            e(f'v_cmp_gt_u32 vcc, 64, v34')
            e(f's_bcnt1_i32_b32 s{S_WC}, vcc_lo')
        if o.r6 and k == o.r6k: own_w(9, 1)
        if k in (o.tagk, o.r1k):
            vm.room(1); e(ld_cnt if k == o.tagk else ld_fl); vm.add('pl', 1)
        if k == 30 and not o.w3:
            tail_setup(e, o)
            vm.room(4 * o.nearly); e.many(e.early); vm.add('early', 4 * o.nearly)
        sh = []
        if o.w3 and o.w3k < k <= o.w3k + 6: sh = [2 * (k - o.w3k - 1), 2 * (k - o.w3k - 1) + 1]
        if o.w3 and k == o.w3k + 7: sh = [12]
        first = POS[f'K{k+1}']
        lk = o.look if o.look_k0 <= k < o.look_k1 else o.look_lo
        if k >= 28: lk = 7 if first + o.look_lo >= POS['V31'] else lk
        lim = min(first + lk, first + C.NR - 1, POS[C.TL])
        if k == 31: lim = POS[C.TL]
        if o.tsched == 1 and k in (29, 30): lim = min(lim, POS['T1'] + (k - 29))
        if o.tsched == 2 and k < 31: lim = min(lim, POS['V31'])
        if o.tsched == 3 and k == 29: lim = min(lim, POS['V31'])
        done_sh = False
        def do_shadow(fill):
            if sh == [12]:
                vm.wait('w12')
                e.many(wo_reads(lambda off, n: vr(32 + off, n), V_WA, V_WA + 1, 0))
                e('s_waitcnt lgkmcnt(0)')
            elif wev: e('s_waitcnt lgkmcnt(0)')
            for c in sh: vm.wait(f'o0_{c}')
            m = []
            for c in sh: m += shadow_mm(c, c == 0)
            gaps(e, m, fill(), per=3)
            for c in sh: T3.free += T3.where[(0, c)]
            vm.room(8); e.many(T3.pump(2))
        while issued < lim:
            issued += 1
            if o.lb and o.tagk + 1 <= k < 27 and issued == lim - 1 + o.lb_pos:
                vm.room(17)
                e(f'buffer_load_dword v34, v33, {sr(S_WS,4)}, 0 offen {o.lb_ld}')
                vm.add('pg', 1); vm_pg[0] = k
            if sh and issued == lim and issue_l(SEQ[issued]):
                def fill():
                    vm.room(16); vm.add(SEQ[issued], 16)
                    return issue_l(SEQ[issued])
                do_shadow(fill); done_sh = True
            elif o.gran < 16 and SEQ[issued][0] in 'KV' and k < o.thr_end and issue_l(SEQ[issued]):
                ins = issue_l(SEQ[issued]); ng = o.gran // 4
                for q in range(0, 4, ng):
                    vm.room(o.gran)
                    e.many(ins[(3 + 6 * q if q else 0):3 + 6 * (q + ng)])
                    vm.add(SEQ[issued] if q + ng == 4 else 'part', o.gran)
                    if q + ng == 4: break
                    if o.lb and o.tagk + 2 <= k:
                        while vm.out() > o.lb_hi: vm.wait(vm.q[0][0])
                        e(f's_cmp_ge_u32 s{S_WC}, {o.lb}')
                        e(f's_cbranch_scc1 L_deep{issued}_{q}')
                        e(f's_waitcnt vmcnt({o.thr})')
                        if o.don:
                            e(f's_cmp_lg_u32 s{S_NT}, 15')
                            e(f's_cbranch_scc1 L_deep{issued}_{q}')
                            e(f's_waitcnt vmcnt({o.don})')
                        e.lab(f'L_deep{issued}_{q}')
                    else:
                        while vm.out() > o.thr: vm.wait(vm.q[0][0])
            else:
                issue(SEQ[issued])
            if o.lb and o.tagk + 2 <= k < o.thr_end:
                while vm.out() > o.lb_hi: vm.wait(vm.q[0][0])
                e(f's_cmp_ge_u32 s{S_WC}, {o.lb}')
                e(f's_cbranch_scc1 L_deep{issued}')
                e(f's_waitcnt vmcnt({o.thr})')
                if o.lb_t:
                    e(f's_cmp_lt_u32 s{S_KX}, {o.lb_t}')
                    e(f's_cbranch_scc1 L_deep{issued}')
                    e(f's_waitcnt vmcnt({o.lb_lo})')
                e.lab(f'L_deep{issued}')
            else:
                while vm.out() > o.thr + (8 if done_sh else 0) and k < o.thr_end: vm.wait(vm.q[0][0])
        if sh and not done_sh: do_shadow(lambda: [])
        if o.w3 and k == o.w3k:
            vm.wait('po')
            e(f's_add_u32 s{S_T3}, s{S_N}, 1')
            poll(e, o, 'r1o', ld_own, ['v_and_b32 v23, -3, v23', f'v_cmp_eq_u32 vcc, s{S_T3}, v23'])
            tail_setup(e, o)
            T3.todo = [(0, c) for c in range(16)]
            vm.room(8); e.many(T3.pump(2))
        if k == o.tagk:
            vm.wait('pl')
            poll(e, o, 'tag', ld_cnt, ['v_cmp_ne_u32 vcc, 0, v23'])
            e(f'v_readfirstlane_b32 s{S_N}, v23')
        if k == o.r1k:
            vm.wait('pl')
            e(f's_add_u32 s{S_T3}, s{S_N}, 1')
            poll(e, o, 'r1', ld_fl, ['v_and_b32 v23, -3, v23', f'v_cmp_eq_u32 vcc, s{S_T3}, v23'])
        if wev is not None:
            e('s_waitcnt lgkmcnt(0)')
            own_w(wev)
    npre = 4 * o.npre
    if o.pre3 == 2:
        vm.room(npre + 1); e.many(e.pre)
    e('s_barrier')
    if o.pre3 == 1: vm.room(npre + 1)
    if o.pwf:
        assert o.pre3 == 1
        e(f'v_mov_b32 v0, s{S_N}')
    else: e.many(flag(3))
    if o.pre3 == 1: e.many(e.pre)
    e(f's_waitcnt vmcnt({npre if o.pre3 == 1 else npre + 1 if o.pre3 == 2 else 1})')
    if o.pre3 == 0: e.many(e.pre)
    vm.q = []

def a_addr(e, VA, VB, xl):
    L = V_LANE
    e(f'v_lshrrev_b32 v{V_T0}, 5, v{L}')
    e(f'v_bfe_u32 v{V_T1}, v{L}, 2, 2')
    e(f'v_lshl_add_u32 v{V_T2}, v{V_T0}, 3, v{V_T1}')
    e(f'v_lshlrev_b32 v{V_T2}, 8, v{V_T2}')
    e(f'v_lshl_add_u32 v{V_T2}, v{V_T1}, 6, v{V_T2}')
    e(f'v_bfe_u32 v{V_T3}, v{L}, 4, 1')
    e(f'v_lshl_add_u32 v{V_T2}, v{V_T3}, 5, v{V_T2}')
    e(f'v_and_b32 v{V_T3}, 1, v{L}')
    e(f'v_lshl_add_u32 v{V_T2}, v{V_T3}, 4, v{V_T2}')
    e(f'v_bfe_u32 v{V_T3}, v{L}, 1, 1')
    e(f'v_lshl_add_u32 v{V_T2}, v{V_T3}, 3, v{V_T2}')
    for t in range(4):
        e(f'v_xor_b32 v{VA+t}, {64*t}, v{V_T2}')
        e(f'v_add_u32 v{VA+t}, {reg_w(0)}, v{VA+t}')
    e(f'v_and_b32 v{V_T1}, 31, v{L}')
    e(f'v_bfe_u32 v{V_T2}, v{L}, 1, 3')
    e(f'v_xor_b32 v{V_T2}, v{V_T2}, v{V_T0}')
    e(f'v_lshlrev_b32 v{V_T2}, 4, v{V_T2}')
    e(f'v_lshl_add_u32 v{V_T2}, v{V_T1}, 7, v{V_T2}')
    if xl is not None:
        e(f's_add_u32 s{S_T0}, s{xl}, {reg_x(0)}')
    for s4 in range(4):
        e(f'v_xor_b32 v{VB+s4}, {32*s4}, v{V_T2}')
        e(f'v_add_u32 v{VB+s4}, s{S_T0}, v{VB+s4}' if xl is not None else f'v_add_u32 v{VB+s4}, {reg_x(0)}, v{VB+s4}')

def a_step(s, VA):
    r = []
    for i in range(8):
        d = reg_w(s + 1) - reg_w(s) if i < 4 else reg_x(s + 1) - reg_x(s)
        r.append(f'v_add_u32 v{VA+i}, {d}, v{VA+i}' if d > 0 else f'v_subrev_u32 v{VA+i}, {-d}, v{VA+i}')
    return r

SCALE = hex(struct.unpack("<I", struct.pack("<f", math.log2(math.e) / math.sqrt(128.0)))[0])
def conv(i, src, dst):
    a = src + 2 * i
    return [f'v_mul_f32 v{a}, s{S_C}, v{a}', f'v_mul_f32 v{a+1}, s{S_C}, v{a+1}', f'v_cvt_pk_bf16_f32 v{dst+i}, v{a}, v{a+1}']

def phase_a(e, o):
    L = V_LANE
    VA, VB = V_Q, V_Q + 4
    AF = [V_SA, V_SB]; BF = [V_P, V_TMP]; ACC = [128, 192]
    e(f'v_lshrrev_b32 v{V_T0}, 3, v{L}')
    e(f'v_mul_u32_u24 v{V_T0}, 1280, v{V_T0}')
    e(f'v_lshrrev_b32 v{V_T1}, 4, v{L}')
    e(f'v_and_b32 v{V_T2}, 7, v{L}')
    e(f'v_xor_b32 v{V_T1}, v{V_T1}, v{V_T2}')
    for i in range(4):
        e(f'v_xor_b32 v{V_T2}, {4*(i&1)}, v{V_T1}')
        e(f'v_lshl_add_u32 v{V_DMA+i}, v{V_T2}, 4, v{V_T0}')
        if i: e(f'v_add_u32 v{V_DMA+i}, {(10240-1024)*i}, v{V_DMA+i}')
    e(f's_mul_i32 s{S_XB}, s{S_BL}, 3')
    e(f's_add_u32 s{S_XB}, s{S_XB}, s{S_WAVE}')
    e(f's_mul_i32 s{S_OB}, s{S_BR}, 24')
    e(f's_add_u32 s{S_OB}, s{S_OB}, s{S_XB}')
    e(f's_mul_i32 s{S_XB}, s{S_XB}, 40960')
    def xload(s, it):
        r = []
        if it == 0:
            r.append(f's_lshl_b32 s{S_T0}, s{S_KX}, 7')
            r.append(f's_add_u32 s{S_T0}, s{S_T0}, s{S_XB}')
        r.append(f's_add_u32 m0, s{S_XL}, {reg_x(s) + 4096*it}')
        r.append(f's_add_u32 s{S_T1}, s{S_T0}, {491520*it}')
        for i in range(4):
            ld = f'buffer_load_dwordx4 v{V_DMA+i}, {sr(S_X,4)}, s{S_T1} offen offset:{1024*i} {o.w_flags} lds'
            if o.dq2 and it == 1: ld = f's_mov_b64 exec, 1\n    buffer_load_dwordx4 v{V_DMA}, {sr(S_X,4)}, s{S_T1} offen lds\n    s_mov_b64 exec, -1'
            r.append(ld)
        if it == 1:
            if s + 1 < o.nun: r.append(f's_mov_b32 s{S_KX}, {s + 1}')
            elif s + 1 == o.nun: r.append(f's_mov_b32 s{S_KX}, s{S_KR}')
            else:
                r.append(f's_add_u32 s{S_KX}, s{S_KX}, 1')
                r.append(f's_cmp_eq_u32 s{S_KX}, 10')
                r.append(f's_cselect_b32 s{S_KX}, {o.nun}, s{S_KX}')
        return r
    if o.nun:
        for _ in range(2):
            e(f's_cmp_ge_u32 s{S_KX}, {10 - o.nun}')
            e(f's_cselect_b32 s{S_T0}, {10 - o.nun}, 0')
            e(f's_sub_u32 s{S_KX}, s{S_KX}, s{S_T0}')
        e(f's_add_u32 s{S_KR}, s{S_KX}, {o.nun}')
        e(f's_mov_b32 s{S_KX}, 0')
    VWQ = V_Q + 8
    e(f'v_lshrrev_b32 v{V_T0}, 4, v{L}')
    e(f'v_and_b32 v{V_T1}, 15, v{L}')
    e(f'v_lshlrev_b32 v{V_T3}, 2, v{V_T0}')
    e(f'v_xor_b32 v{V_T3}, v{V_T3}, v{V_T1}')
    e(f'v_lshlrev_b32 v{V_T2}, 13, v{V_T0}')
    e(f'v_lshl_add_u32 v{VWQ}, v{V_T3}, 4, v{V_T2}')
    for i in range(1, 4): e(f'v_add_u32 v{VWQ+i}, {(32768-1024)*i}, v{VWQ}')
    e(f's_mul_i32 s{S_KVB}, s{S_WAVE}, {5*32768}')
    e(f's_lshl_b32 s{S_T0}, s{S_H}, 8')
    e(f's_add_u32 s{S_KVB}, s{S_KVB}, s{S_T0}')
    e(f's_mul_i32 s{S_FL}, s{S_WAVE}, {5*1024}')
    if o.nodup:
        e(f's_mul_i32 s{S_N}, s{S_WAVE}, {5*32768}')
        e(f's_sub_u32 s{S_N}, {15*32768}, s{S_N}')
        e(f's_mov_b64 {sr(S_SAVE,2)}, 0xffffff')
        e(f's_cmp_eq_u32 s{S_WAVE}, 1')
        e(f's_cselect_b32 s{S_SAVE}, 0xff000000, s{S_SAVE}')
        e(f's_cselect_b32 s{S_SAVE+1}, 0xfff, s{S_SAVE+1}')
        e(f's_cmp_eq_u32 s{S_WAVE}, 2')
        e(f's_cselect_b32 s{S_SAVE}, 0, s{S_SAVE}')
        e(f's_cselect_b32 s{S_SAVE+1}, 0xfffff000, s{S_SAVE+1}')
    def wqload(s):
        r = [f's_lshl_b32 s{S_T2}, s{S_KX}, 19', f's_add_u32 s{S_T2}, s{S_T2}, s{S_KVB}']
        for t in range(5 if o.nodup else 6):
            if t % 4 == 0:
                r.append(f's_add_u32 m0, s{S_FL}, {reg_w(s) + 1024*t}')
                r.append(f's_add_u32 s{S_T1}, s{S_T2}, {32768*t}')
            r.append(f'buffer_load_dwordx4 v{VWQ+(t&3)}, {sr(S_WQ,4)}, s{S_T1} offen offset:{1024*(t&3)} {o.w_flags} lds')
        if o.nodup:
            r.append(f's_mov_b32 m0, {reg_w(s) + 15*1024}')
            r.append(f's_add_u32 s{S_T1}, s{S_T2}, s{S_N}')
            r.append(f's_mov_b64 exec, {sr(S_SAVE,2)}\n    buffer_load_dwordx4 v{VWQ}, {sr(S_WQ,4)}, s{S_T1} offen {o.w_flags} lds\n    s_mov_b64 exec, -1')
        return r
    srds(e, o)
    e.many(wqload(0)); e.many(xload(0, 0)); e.many(xload(0, 1))
    lazy(e, o, 2)
    no_task_wo(e)
    e(f's_lshl_b32 s{S_OB}, s{S_OB}, 5')
    e(f's_add_u32 s{S_OB}, s{S_OB}, s{S_H}')
    e(f's_lshl_b32 s{S_OB}, s{S_OB}, 13')
    a_addr(e, VA, VB, S_XL)
    e(f'v_and_b32 v{V_T2}, 15, v{L}')
    e(f'v_xor_b32 v{V_T2}, v{V_T2}, v{V_T0}')
    e(f'v_lshlrev_b32 v{V_T2}, 4, v{V_T2}')
    e(f'v_lshl_add_u32 v{V_T2}, v{V_T1}, 8, v{V_T2}')
    for s in range(8):
        e(f'v_xor_b32 v{V_KA+s}, {32*s}, v{V_T2}')
        e(f'v_add_u32 v{V_KA+s}, {slot_addr("K0")}, v{V_KA+s}')
    e(f'v_bfe_u32 v{V_T1}, v{L}, 2, 2')
    e(f'v_lshl_add_u32 v{V_T2}, v{V_T0}, 2, v{V_T1}')
    e(f'v_lshlrev_b32 v{V_T2}, 8, v{V_T2}')
    e(f'v_lshl_add_u32 v{V_T2}, v{V_T1}, 6, v{V_T2}')
    e(f'v_bfe_u32 v{V_T3}, v{L}, 4, 1')
    e(f'v_lshl_add_u32 v{V_T2}, v{V_T3}, 5, v{V_T2}')
    e(f'v_and_b32 v{V_T3}, 3, v{L}')
    e(f'v_lshl_add_u32 v{V_T2}, v{V_T3}, 3, v{V_T2}')
    e(f'v_add_u32 v{V_T2}, {slot_addr("V0")}, v{V_T2}')
    for t in range(4): e(f'v_xor_b32 v{V_VA+t}, {64*t}, v{V_T2}')
    e(f'v_lshlrev_b32 v{V_OST}, 4, v{L}')
    e(f'v_add_u32 v{V_OST+3}, s{S_XL}, v{V_OST}')
    wo_lane_addr(e, V_WA)
    e(f'v_add_u32 v{V_WA}, s{S_XL}, v{V_WA}')
    if C.M16:
        e(f'v_and_b32 v{V_T0}, 15, v{L}')
        e(f'v_lshlrev_b32 v{V_WA+1}, 4, v{V_T0}')
        e(f'v_bfe_u32 v{V_T0}, v{L}, 4, 1')
        e(f'v_lshl_add_u32 v{V_WA+1}, v{V_T0}, 10, v{V_WA+1}')
        e(f'v_lshrrev_b32 v{V_T0}, 5, v{L}')
        e(f'v_lshl_add_u32 v{V_WA+1}, v{V_T0}, 8, v{V_WA+1}')
    else:
        e(f'v_xor_b32 v{V_WA+1}, 64, v{V_WA}')
    e(f's_mul_i32 s{S_WQB}, s{S_WAVE}, {1024*1280}')
    e(f's_add_u32 s{S_WQB}, s{S_WQB}, s{S_WOB}')
    e(f's_mov_b32 s{S_WC}, s{S_RHO}')
    if o.wst:
        e(f's_mov_b32 s{S_WN}, {int(o.wst[0]) + 1}')
        for w in (1, 2):
            e(f's_cmp_eq_u32 s{S_WAVE}, {w}')
            e(f's_cselect_b32 s{S_WN}, {int(o.wst[w]) + 1}, s{S_WN}')
    else:
        e(f's_add_u32 s{S_WN}, s{S_WAVE}, {o.w0 + 1}')
    e(f's_mov_b32 s{S_EV}, 0')
    for i in range(64): e(f'v_accvgpr_write_b32 a{i}, 0')
    for i in range(16): e(f'v_mov_b32 v{V_NEGM+i}, 0')
    for i in range(4): e(f'v_mov_b32 v{V_L+i}, 0')
    e(f's_mov_b32 s{S_C}, {SCALE}')
    e(f's_mov_b32 s{S_THR}, 0xff800000')
    e(f's_mov_b32 s{S_FLOOR}, 0xff800000')
    e(f's_mov_b32 s{S_TICK}, 0')
    e(f's_mov_b32 s{S_KOFF}, {slot("K1")*SLOT}')
    e(f's_mov_b32 s{S_VOFF}, {slot("V0")*SLOT}')
    nst = 0
    lazy(e, o, 5)
    e.many(wqload(1)); e.many(xload(1, 0)); e.many(xload(1, 1))
    lazy(e, o, 6)
    def reads(s4, buf):
        r = [f'ds_read_b128 {vr(BF[buf]+4*it,4)}, v{VB+s4} offset:{4096*it}' for it in range(1 if o.dq2 else 2)]
        for t in range(4):
            for u in range(2):
                r.append(f'ds_read_b64_tr_b16 {vr(AF[buf]+4*t+2*u,2)}, v{VA+t} offset:{(16*s4+4*u)*256}')
        return r
    def mf(buf, first):
        r = []
        for t in range(4):
            for it in range(2):
                if it == 1 and (t >= 2 or o.dq2): continue
                d = vr(ACC[it] + 16 * t, 16)
                r.append(mfma(d, vr(AF[buf] + 4 * t, 4), vr(BF[buf] + 4 * it, 4), '0' if first else d))
        return r
    e(f's_waitcnt vmcnt({14 + nst})')
    lazy(e, o, 7)
    e('s_barrier')
    lazy(e, o, 8)
    dmark(e, o, 0)
    e.many(reads(0, 0))
    e.skip = o.a_skip
    for s in range(10):
        for s4 in range(4):
            step = 4 * s + s4; buf = step & 1
            if step in (8, 16, 24, 32, 39): lazy(e, o, 9 + (8, 16, 24, 32, 39).index(step))
            if o.stamps and step in (8, 32): e(f's_memtime s[{LAZY[3 if step == 8 else 4]}:{LAZY[3 if step == 8 else 4]+1}]')
            m = mf(buf, step == 0)
            late = []
            e('s_waitcnt lgkmcnt(0)')
            if s4 == 3:
                if s < 9:
                    e(f's_waitcnt vmcnt({(14 if s + 2 <= 9 else 0) + (nst if s < 2 else 0)})')
                e('s_barrier')
                if s + 3 <= 9: late = wqload(s + 3)
            if s4 == 0 and s + 2 <= 9: late = (wqload(2) if s == 0 else []) + xload(s + 2, 0)
            if s4 == 1 and s + 2 <= 9: late = xload(s + 2, 1)
            if s4 == 2 and s < 9: late = a_step(s, VA)
            front = reads((s4 + 1) & 3, buf ^ 1) if step < 39 else []
            gaps(e, m, front, late, per=(5 if o.dq2 else o.aper), late_from=(3 if o.aper == 3 and s4 == 2 else 2 if o.aper >= 4 else 1))
    e.skip = ''
    wo_voffs(e, V_DMA)
    e('s_nop 4')
    for i in range(16): e.many(conv(i, ACC[0], V_Q))
    e.many(k_reads(0))
    for i in range(16, 32): e.many(conv(i, ACC[0], V_Q))

def k_reads(half):
    return [f'ds_read_b128 {vr(V_KF+4*s,4)}, v{V_KA+s} offset:{8192*half}' for s in range(8)]
def v_reads(half):
    r = []
    for jj in range(2):
        for t in range(4):
            for u in range(2):
                r.append(f'ds_read_b64_tr_b16 {vr(V_VF+16*jj+4*t+2*u,2)}, v{V_VA+t} offset:{(32*half+16*jj+8*u)*256}')
    return r
def qk(S):
    return [mfma(vr(S, 16), vr(V_KF + 4 * s, 4), vr(V_Q + 4 * s, 4), vr(V_NEGM, 16) if s == 0 else vr(S, 16)) for s in range(8)]
def pv():
    return [mfma(ar(16 * t, 16), vr(V_VF + 16 * jj + 4 * t, 4), vr(V_P + 4 * jj, 4), ar(16 * t, 16)) for jj in range(2) for t in range(4)]
def maxes(S):
    r = [f'v_max3_f32 v{V_MX}, v{S}, v{S+1}, v{S+2}', f'v_max3_f32 v{V_D}, v{S+3}, v{S+4}, v{S+5}']
    r += [f'v_max3_f32 v{V_MX}, v{V_MX}, v{S+6}, v{S+7}', f'v_max3_f32 v{V_D}, v{V_D}, v{S+8}, v{S+9}']
    r += [f'v_max3_f32 v{V_MX}, v{V_MX}, v{S+10}, v{S+11}', f'v_max3_f32 v{V_D}, v{V_D}, v{S+12}, v{S+13}']
    r += [f'v_max3_f32 v{V_MX}, v{V_MX}, v{S+14}, v{S+15}', f'v_max_f32 v{V_MX}, v{V_MX}, v{V_D}']
    r += [f'v_cmp_lt_f32 vcc, s{S_THR}, v{V_MX}']
    return r

def half_tick(e, Snew, Sold, vhalf, khalf, extra_v=(), extra_k=(), extra_8=()):
    ex = lambda i: f'v_exp_f32 v{Sold+i}, v{Sold+i}'
    cv = lambda i: f'v_cvt_pk_bf16_f32 v{V_P+i}, v{Sold+2*i}, v{Sold+2*i+1}'
    ad = lambda i: f'v_add_f32 v{V_L+(i&3)}, v{V_L+(i&3)}, v{Sold+i}'
    m = qk(Snew) + pv()
    m[8] = ['s_waitcnt lgkmcnt(0)', m[8]]
    if e.mix:
        vr_ = v_reads(vhalf); fill = []
        for i in range(8):
            fill += vr_[:e.mix] + [ex(i)]; vr_ = vr_[e.mix:]
        fill += vr_ + list(extra_v) + [cv(i) for i in range(4)] + [ex(i) for i in range(8, 12)]
    else:
        fill = v_reads(vhalf) + [ex(i) for i in range(8)] + list(extra_v) + [cv(i) for i in range(4)] + [ex(i) for i in range(8, 12)]
    fill += [('M', 8), ('A', 8)] + (k_reads(khalf) if khalf is not None else []) + [ex(i) for i in range(12, 16)] + [ad(0)]
    fill += [cv(i) for i in range(4, 8)] + [ad(1), ad(2)]
    rest = [ad(i) for i in range(3, 16)]
    x8 = list(extra_8)
    fill += [('M', 12)]
    while rest or x8:
        if rest: fill.append(rest.pop(0))
        fill += x8[:3]; x8 = x8[3:]
    fill += list(extra_k) + maxes(Snew)
    e('s_waitcnt lgkmcnt(0)')
    interleave(e, m, fill)

def last_half(e, Sold, extra=()):
    ex = lambda i: f'v_exp_f32 v{Sold+i}, v{Sold+i}'
    cv = lambda i: f'v_cvt_pk_bf16_f32 v{V_P+i}, v{Sold+2*i}, v{Sold+2*i+1}'
    ad = lambda i: f'v_add_f32 v{V_L+(i&3)}, v{V_L+(i&3)}, v{Sold+i}'
    e.many(v_reads(1))
    e.many(extra)
    e.many([ex(i) for i in range(8)] + [cv(i) for i in range(4)] + [ex(8), ex(9)])
    e('s_waitcnt lgkmcnt(0)')
    fill = [ex(i) for i in range(10, 16)] + [ad(0)] + [cv(i) for i in range(4, 8)] + [ad(1), ad(2), ('M', 4)] + [ad(i) for i in range(3, 16)]
    interleave(e, pv(), fill)

def rare(e, S, back):
    e('s_nop 7')
    e(f'v_mov_b32 v{V_T0}, v{V_MX}')
    e('s_nop 1')
    e(f'v_permlane32_swap_b32 v{V_T0}, v{V_MX}')
    e('s_nop 1')
    e(f'v_max_f32 v{V_D}, v{V_T0}, v{V_MX}')
    e(f'v_max_f32 v{V_D}, s{S_FLOOR}, v{V_D}')
    for i in range(16): e(f'v_sub_f32 v{S+i}, v{S+i}, v{V_D}')
    for i in range(16): e(f'v_sub_f32 v{V_NEGM+i}, v{V_NEGM+i}, v{V_D}')
    e(f's_cmp_lg_u32 s{S_FLOOR}, 0')
    e(f's_mov_b32 s{S_THR}, 0x41000000')
    e(f's_mov_b32 s{S_FLOOR}, 0')
    e(f's_cbranch_scc1 {back}')
    e(f'v_sub_f32 v{V_T0}, 0, v{V_D}')
    e(f'v_exp_f32 v{V_T0}, v{V_T0}')
    e('s_nop 0')
    for i in range(4): e(f'v_mul_f32 v{V_L+i}, v{V_L+i}, v{V_T0}')
    for i in range(0, 64, 4):
        for j in range(4): e(f'v_accvgpr_read_b32 v{V_TMP+j}, a{i+j}')
        for j in range(4): e(f'v_mul_f32 v{V_TMP+j}, v{V_TMP+j}, v{V_T0}')
        for j in range(4): e(f'v_accvgpr_write_b32 a{i+j}, v{V_TMP+j}')
    e('s_nop 1')
    e(f's_branch {back}')

def epilogue(e, o):
    e(f'v_add_f32 v{V_L}, v{V_L}, v{V_L+1}')
    e(f'v_add_f32 v{V_L+2}, v{V_L+2}, v{V_L+3}')
    e(f'v_add_f32 v{V_L}, v{V_L}, v{V_L+2}')
    e(f'v_mov_b32 v{V_T0}, v{V_L}')
    e('s_nop 1')
    e(f'v_permlane32_swap_b32 v{V_T0}, v{V_L}')
    e('s_nop 1')
    e(f'v_add_f32 v{V_L}, v{V_L}, v{V_T0}')
    e(f'v_rcp_f32 v{V_T0}, v{V_L}')
    e('s_nop 4')
    for f in range(8):
        t = V_VF + 8 * (f & 3)
        for j in range(8): e(f'v_accvgpr_read_b32 v{t+j}, a{8*f+j}')
        if o.pk:
            for j in range(0, 8, 2): e(f'v_pk_mul_f32 {vr(t+j,2)}, {vr(t+j,2)}, {vr(V_T0,2)} op_sel_hi:[1,0]')
        else:
            for j in range(8): e(f'v_mul_f32 v{t+j}, v{t+j}, v{V_T0}')
        d = V_TMP + 4 * (f & 1)
        for j in range(4): e(f'v_cvt_pk_bf16_f32 v{d+j}, v{t+2*j}, v{t+2*j+1}')
        if f == 4: e(f's_add_u32 s{S_OB}, s{S_OB}, 4096')
        if C.M16: e(f'buffer_store_dwordx4 {vr(d,4)}, v{V_WA+1}, {sr(S_WS,4)}, s{S_OB} offen offset:{2048*((f>>1)&1) + 512*(f&1)} {o.ost_flags}')
        else: e(f'buffer_store_dwordx4 {vr(d,4)}, v{V_OST}, {sr(S_WS,4)}, s{S_OB} offen offset:{1024*(f&3)} {o.ost_flags}')

def w_snippets(e, o, ret):
    e('s_waitcnt vmcnt(0)')
    def tree(lo, n):
        if n == 1:
            if lo == 0:
                for f in range(4): e(f'ds_read_b128 {vr(224+4*f,4)}, v{V_OST+3} offset:{1024*f}')
                if o.t15:
                    for i in range(16): e.many(conv(i, V_Q2, V_Q2))
            else:
                e.many(wo_reads(lambda off, nn: hold(lo - 1, off, nn), V_WA, V_WA + 1, 0))
                if o.pwf and lo == 2:
                    e('v_mov_b32 v0, 0')
                    e(f'global_load_dword v0, v0, {sr(S_DBG,2)} sc1')
                if o.r6 and lo == o.r6e: e.many(wo_dma(o, 9, f's{S_XL}', 32768, f's{S_WQB}', V_DMA))
            e('s_branch L_sn_done')
            return
        h = (n + 1) // 2
        e(f's_cmp_ge_u32 s{S_EV}, {lo+h}')
        e(f's_cbranch_scc1 L_sn_{lo+h}')
        tree(lo, h)
        e.lab(f'L_sn_{lo+h}')
        tree(lo + h, n - h)
    tree(0, 9)
    e.lab('L_sn_done')
    e(f's_add_u32 s{S_EV}, s{S_EV}, 1')
    e(f's_cmp_eq_u32 s{S_EV}, 9')
    e(f's_cselect_b32 s{S_WN}, 64, {o.wper}')
    if o.t15:
        e(f's_cmp_eq_u32 s{S_TICK}, {16 - o.wper}')
        e(f's_cselect_b32 s{S_WN}, {o.wper + 1}, s{S_WN}')
    e('s_waitcnt lgkmcnt(0)')
    e.many(wo_dma(o, 0, f's{S_XL}', 0, f's{S_WQB}', V_DMA, dyn=True))
    e(f's_branch {ret}')

def phase_b(e, o):
    lazy(e, o, 14)
    dmark(e, o, 1)
    lazy_dump(e, o, range(15))
    stamp(e, o, 1)
    e('s_waitcnt lgkmcnt(0)')
    e.many(qk(V_SA))
    e.many(k_reads(1))
    for s in range(8): e(f'v_add_u32 v{V_KA+s}, {SLOT}, v{V_KA+s}')
    e('s_nop 3')
    e.many(maxes(V_SA))
    e('s_branch L_rare_a')
    def adv(soff, tmp, base, n):
        r = [f's_cmp_ge_u32 s{soff}, {(C.NR-2)*SLOT}', f's_cselect_b32 s{S_T3}, {C.NR*SLOT}, 0',
             f's_sub_u32 s{S_T3}, {2*SLOT}, s{S_T3}', f's_add_u32 s{soff}, s{soff}, s{S_T3}']
        r += [f'v_add_u32 v{base+i}, s{S_T3}, v{base+i}' for i in range(n)]
        return r
    align(e, o.al_t)
    e.lab('L_tick')
    e('s_waitcnt lgkmcnt(0)')
    e('s_barrier')
    e(f's_cmp_eq_u32 s{S_TICK}, 31')
    e('s_cbranch_scc1 L_last')
    half_tick(e, V_SB, V_SA, 0, 0)
    e('s_cbranch_vccnz L_rare_b')
    e.lab('L_back_b')
    e(f's_cmp_eq_u32 s{S_TICK}, 15')
    e('s_cbranch_scc1 L_switch')
    e.lab('L_back_sw')
    half_tick(e, V_SA, V_SB, 1, 1, extra_v=adv(S_VOFF, S_T0, V_VA, 4), extra_k=adv(S_KOFF, S_T1, V_KA, 8))
    e(f's_add_u32 s{S_TICK}, s{S_TICK}, 1')
    e(f's_sub_u32 s{S_WN}, s{S_WN}, 1')
    e(f's_cmp_eq_u32 s{S_WN}, 0')
    e('s_cbranch_scc1 L_snip')
    e.lab('L_snip_ret')
    e(f's_cmp_eq_u32 s{S_TICK}, 16')
    e('s_cbranch_scc1 L_epi1')
    e('s_cbranch_vccz L_tick')
    e.lab('L_rare_a')
    rare(e, V_SA, 'L_tick')
    e.lab('L_snip')
    w_snippets(e, o, 'L_snip_ret')
    e.lab('L_rare_b')
    rare(e, V_SB, 'L_back_b')
    e.lab('L_switch')
    for i in range(16): e(f'v_mov_b32 v{V_Q+16+i}, v{224+i}')
    for i in range(16): e.many([f'v_mov_b32 v{V_Q+i}, v{V_Q2+i}'] if o.t15 else conv(i, V_Q2, V_Q))
    for i in range(16): e(f'v_mov_b32 v{V_NEGM+i}, 0')
    e('s_nop 1')
    e('s_branch L_back_sw')
    e.lab('L_epi1')
    epilogue(e, o)
    e(f's_add_u32 s{S_OB}, s{S_OB}, {RND - 4096}')
    if o.t15:
        for t in range(4): e(mfma(ar(16 * t, 16), vr(V_NEGM, 4), vr(V_NEGM, 4), '0'))
    else:
        for i in range(64): e(f'v_accvgpr_write_b32 a{i}, 0')
    for i in range(4): e(f'v_mov_b32 v{V_L+i}, 0')
    e(f's_mov_b32 s{S_FLOOR}, 0xff800000')
    stamp(e, o, 2)
    dmark(e, o, 2)
    e('s_branch L_rare_a')
    e.lab('L_rare_l')
    rare(e, V_SB, 'L_back_l')
    e.lab('L_last')
    T = tail_pre(e, o)
    e.early = T.pump(min(o.nearly, 4))
    half_tick(e, V_SB, V_SA, 0, None, extra_8=e.early)
    e('s_cbranch_vccnz L_rare_l')
    e.lab('L_back_l')
    x = T.pump(max(o.nearly - 4, 0))
    e.early += x
    last_half(e, V_SB, x)
    epilogue(e, o)
    return T

def tail_setup(e, o):
    e(f's_mul_i32 s{S_O1}, s{S_BR}, 24')
    e(f's_add_u32 s{S_O1}, s{S_O1}, s{S_QT}')
    e(f's_lshl_b32 s{S_O1}, s{S_O1}, 2')
    e(f's_add_u32 s{S_O1}, s{S_O1}, s{S_WAVE}')
    e(f's_lshl_b32 s{S_O1}, s{S_O1}, 16')

POOL = list(range(96, 160, 4)) + [32, 36, 40, 44, 16, 20, 24, 80, 84] + list(range(160, 192, 4)) + [88, 92]
ORDER1 = [0, 1, 2, 8, 3, 9, 4, 10, 5, 11, 6, 12, 7]
ORDER2 = [8, 0, 9, 1, 10, 2, 11, 3, 12, 4, 13, 14, 15, 5, 6, 7]

class Tail:
    def __init__(self, e, o):
        self.e, self.o = e, o
        self.vm = Vm(e)
        self.free = list(POOL)
        self.where = {}
        self.todo = []
    def oload(self, rnd, c):
        e = self.e
        regs = [self.free.pop(0) for _ in range(4)]
        self.where[(rnd, c)] = regs
        r = [f's_add_u32 s{S_T1}, s{S_RHO}, {c}', f's_and_b32 s{S_T1}, s{S_T1}, 15', f's_lshl_b32 s{S_T1}, s{S_T1}, 12',
             f's_add_u32 s{S_T1}, s{S_T1}, s{S_O1}']
        if rnd and not self.o.t_o1: r.append(f's_add_u32 s{S_T1}, s{S_T1}, {RND}')
        if rnd and self.o.t_noo: return []
        if not rnd and self.o.t_no1: return []
        for s4 in range(4):
            r.append(f'buffer_load_dwordx4 {reg4(regs[s4])}, v{V_OST}, {sr(S_WS,4)}, s{S_T1} offen offset:{1024*s4} {self.o.old_flags}')
        self.vm.add(f'o{rnd}_{c}', 4)
        return r
    def pump(self, lim=99):
        r = []
        while self.todo and len(self.free) >= 4 and self.vm.out() + 4 <= self.o.maxout and lim > 0:
            lim -= 1
            r += self.oload(*self.todo.pop(0))
        return r

def tail_pre(e, o):
    T = Tail(e, o)
    tail_setup(e, o)
    T.todo = [(0, c) for c in ORDER1]
    return T

def tail(e, o, T, w3=False):
    L = V_LANE
    vm = T.vm
    sfx = '3' if w3 else ''
    RA = 6
    TEMP = 48
    e(f's_cmp_eq_u32 s{S_NT}, 15')
    e('s_cbranch_scc1 L_exit')
    e(f's_mul_i32 s{S_WQB}, s{S_WAVE}, {1024*1280}')
    e(f's_add_u32 s{S_WQB}, s{S_WQB}, s{S_WOB}')
    if w3:
        T.free += [12, 16, 20, 24]
        e('s_barrier')
    e.many(T.pump())
    if not w3:
        vm.room(8)
        e.many(wo_dma(o, 12, f's{S_XL}', C.PIECE[12] * 32768, f's{S_WQB}', V_DMA))
        vm.add('late', 8)
    for b in range(3):
        e(f'v_add_u32 v{RA+2*b}, {65536*b}, v{V_WA}')
        if not C.M16: e(f'v_add_u32 v{RA+2*b+1}, {65536*b}, v{V_WA+1}')
    if o.pwf:
        e(f's_mul_i32 s{S_T0}, s{S_BR}, 12')
        e(f's_add_u32 s{S_T0}, s{S_T0}, s{S_QT}')
    else:
        e(f's_lshl_b32 s{S_T0}, s{S_BR}, 2')
        e(f's_add_u32 s{S_T0}, s{S_T0}, s{S_QB}')
    e(f's_lshl_b32 s{S_T0}, s{S_T0}, 2')
    e(f's_add_u32 s{S_T0}, s{S_T0}, s{S_WAVE}')
    e(f's_lshl_b32 s{S_T0}, s{S_T0}, 10')
    e(f's_add_u32 s{S_T0}, s{S_T0}, {WS_FLAG2 if o.pwf else WS_FLAGS}')
    e(f'v_and_b32 v31, 7, v{L}')
    e(f'v_lshlrev_b32 v31, 7, v31')
    e(f'v_add_u32 v31, s{S_T0}, v31')
    if not o.pwf: e('v_mov_b32 v0, 0')
    piece = C.PIECE
    tmp_of = {}
    def rd(c, dstf):
        j = piece[c]
        return wo_reads(dstf, RA + 2 * (j >> 1), RA + 2 * (j >> 1) + 1, 32768 * (j & 1), tmp=(RA + 1, RA + 3, RA + 5))
    def afrag(c):
        if c < 8: return lambda off, n: hold(c, off, n)
        if c >= 13: return lambda off, n: hold(c - 13, off, n)
        return lambda off, n: vr(TEMP + off, n)
    first = {0: True, 1: True}
    def mms(c, rnds):
        m = []
        if C.M16:
            for F in range(2):
                for rnd in rnds:
                    for n in range(4):
                        for qh in range(2):
                            d = ar(32 * rnd + 8 * n + 4 * qh, 4)
                            m.append(f'v_mfma_f32_16x16x32_bf16 {d}, {afrag(c)(16 * F + 4 * n, 4)}, {reg4(T.where[(rnd, c)][2 * F + qh])}, ' + ('0' if (first[rnd] and F == 0) else d))
            for rnd in rnds: first[rnd] = False
            return m
        for s4 in range(4):
            for rnd in rnds:
                for nt in range(2):
                    d = ar(32 * rnd + 16 * nt, 16)
                    m.append(mfma(d, afrag(c)(8 * s4 + 4 * nt, 4), reg4(T.where[(rnd, c)][s4]), '0' if (first[rnd] and s4 == 0) else d))
        for rnd in rnds: first[rnd] = False
        return m
    def wdma(c):
        if o.t_now: return []
        vm.add(f'w{c}', 8)
        return wo_dma(o, c, f's{S_XL}', 32768 * piece[c], f's{S_WQB}', V_DMA)
    ld_fl = f'buffer_load_dword v{V_T2}, v31, {sr(S_WS,4)}, 0 offen sc1'
    WA, RDA, VOUT = 48, 56, 60
    S_OO = S_KOFF
    fin = [f'v_and_b32 v{V_T0}, 31, v{L}', f'v_lshrrev_b32 v{V_T1}, 5, v{L}', f'v_and_b32 v{V_T3}, 15, v{L}',
           f'v_xor_b32 v{V_T1}, v{V_T1}, v{V_T3}', f'v_lshlrev_b32 v{V_T1}, 4, v{V_T1}',
           f'v_lshl_add_u32 v{V_T0}, v{V_T0}, 8, v{V_T1}', f's_add_u32 s{S_T3}, s{S_XL}, {C.SCR*32768}',
           f'v_add_u32 v{V_T0}, s{S_T3}, v{V_T0}']
    fin += [f'v_xor_b32 v{WA+k}, {32*k}, v{V_T0}' for k in range(8)]
    if C.M16:
        fin = [f'v_and_b32 v{V_T0}, 15, v{L}', f'v_lshrrev_b32 v{V_T1}, 4, v{L}', f'v_xor_b32 v{V_T1}, v{V_T1}, v{V_T0}',
               f'v_lshlrev_b32 v{V_T1}, 4, v{V_T1}', f'v_lshl_add_u32 v{V_T0}, v{V_T0}, 8, v{V_T1}',
               f's_add_u32 s{S_T3}, s{S_XL}, {C.SCR*32768}', f'v_add_u32 v{V_T0}, s{S_T3}, v{V_T0}']
        fin += [f'v_xor_b32 v{WA+k}, {64*k}, v{V_T0}' for k in range(4)]
    fin2 = [f's_lshr_b32 s{S_VOFF}, s{S_WAVE}, 1', f's_and_b32 s{S_THR}, s{S_WAVE}, 1',
            f's_lshl_b32 s{S_T2}, s{S_VOFF}, 15', f's_lshl_b32 s{S_T3}, s{S_THR}, 12',
            f's_add_u32 s{S_T2}, s{S_T2}, s{S_T3}', f's_add_u32 s{S_T2}, s{S_T2}, {C.SCR*32768}',
            f'v_lshrrev_b32 v{V_T1}, 3, v{L}', f'v_and_b32 v{V_T3}, 7, v{L}', f'v_lshlrev_b32 v{V_T0}, 1, v{V_T3}',
            f'v_xor_b32 v{V_T0}, v{V_T0}, v{V_T1}', f'v_lshlrev_b32 v{V_T0}, 4, v{V_T0}',
            f'v_lshl_add_u32 v{V_T0}, v{V_T1}, 8, v{V_T0}', f'v_add_u32 v{RDA}, s{S_T2}, v{V_T0}',
            f'v_xor_b32 v{RDA+1}, 16, v{RDA}', f'v_xor_b32 v{RDA+2}, {2048+128}, v{RDA}', f'v_xor_b32 v{RDA+3}, 16, v{RDA+2}',
            f's_lshl_b32 s{S_OO}, s{S_QT}, 5', f's_mul_i32 s{S_VOFF}, s{S_VOFF}, 384', f's_add_u32 s{S_OO}, s{S_OO}, s{S_VOFF}',
            f's_lshl_b32 s{S_THR}, s{S_THR}, 4', f's_add_u32 s{S_OO}, s{S_OO}, s{S_THR}', f's_mul_i32 s{S_OO}, s{S_OO}, 2560',
            f's_mul_i32 s{S_T3}, s{S_BR}, 1280', f's_add_u32 s{S_OO}, s{S_OO}, s{S_T3}', f's_add_u32 s{S_OO}, s{S_OO}, s{S_WOB}',
            f'v_mul_u32_u24 v{V_T1}, 2560, v{V_T1}', f'v_lshl_add_u32 v{VOUT}, v{V_T3}, 4, v{V_T1}']
    def pwrite(rnd):
        if C.M16:
            return [f'ds_write_b128 v{WA+n}, {ar(32*rnd+8*n+4*qh,4)} offset:{rnd*32768 + 4096*qh}' for n in range(4) for qh in range(2)]
        return [f'ds_write_b128 v{WA+4*nt+g}, {ar(32*rnd+16*nt+4*g,4)} offset:{rnd*32768}' for nt in range(2) for g in range(4)]
    if w3:
        ld_tag = f'global_load_dword v30, v0, {sr(S_DBG,2)} sc1'
        first[0] = False
        def mm3(c, rnd, af):
            m = []
            for s4 in range(4):
                for nt in range(2):
                    d = ar(32 * rnd + 16 * nt, 16)
                    m.append(mfma(d, af(8 * s4 + 4 * nt, 4), reg4(T.where[(rnd, c)][s4]), '0' if (first[rnd] and s4 == 0) else d))
            first[rnd] = False
            return m
        t1 = lambda off, n: vr(32 + off, n)
        for c in (13, 14, 15):
            e.many(rd(c, t1))
            if c == 15:
                vm.room(2); e(ld_tag); e(ld_fl); vm.add('pl', 2)
            e('s_waitcnt lgkmcnt(0)')
            vm.wait(f'o0_{c}')
            gaps(e, mm3(c, 0, t1), T.pump(), per=2)
            T.free += T.where[(0, c)]
        assert not T.todo
        vm.wait('pl')
        e('v_add_u32 v30, 3, v30')
        poll(e, o, 'r23', ld_fl, [f'v_cmp_eq_u32 vcc, v30, v{V_T2}'])
        T.free = [48, 52, 56, 60, 12, 16, 20, 24, 32, 36, 40, 44]
        order = [8, 9, 15, 10, 14, 11, 13, 6, 12, 7, 0, 1, 2, 3, 4, 5]
        T.todo = [(1, c) for c in order]
        e.many(T.pump())
        t2 = lambda off, n: hold3(8, off, n)
        for i, c in enumerate(order):
            nxt = order[i + 1] if i + 1 < len(order) else None
            if c >= 12: e('s_waitcnt lgkmcnt(0)')
            vm.wait(f'o1_{c}')
            front = rd(nxt, t2) if (nxt is not None and nxt >= 12) else []
            late = []
            if c == 10: late += fin
            if c == 11: late += pwrite(0)
            if c == 0: late += fin2
            m = mm3(c, 1, t2 if c >= 12 else (lambda off, n: hold3(c, off, n)))
            late += T.pump()
            gaps(e, m, front, late, per=3, late_from=0 if not front else 2)
            if c != 8: T.free += T.where[(1, c)]
            if c in (9, 10, 11): T.free += list(range(64 + 32 * (c - 8), 64 + 32 * (c - 7), 4))
            if c in (6, 7): T.free += list(range(192 + 32 * (c - 6), 192 + 32 * (c - 5), 4))
        assert not T.todo
        e('s_nop 7'); e('s_nop 3')
        e.many(pwrite(1))
        e('s_branch L_red')
        return
    e.skip = o.t_skip
    seq = [(0, c) for c in ORDER1] + [(1, c) for c in ORDER2]
    todo2 = []
    for c in ORDER2: todo2 += ([(0, c)] if (c >= 13 and not o.park) else []) + [(1, c)]
    for i, (rnd, c) in enumerate(seq):
        rnds = [0, 1] if c >= 13 else [rnd]
        nxt = seq[i + 1][1] if i + 1 < len(seq) else None
        if i == o.chk - o.pl_at:
            if o.pwf:
                vm.room(1); e(ld_fl); vm.add('pl', 1)
            else:
                vm.room(2); e(f'global_load_dword v30, v0, {sr(S_DBG,2)} sc1'); e(ld_fl); vm.add('pl', 2)
            if o.park: T.todo += [(0, c) for c in (13, 14, 15)]
        if i == o.chk:
            vm.stamp(o, 5)
            vm.wait('pl')
            e('v_add_u32 v30, 3, v0' if o.pwf else 'v_add_u32 v30, 3, v30')
            poll(e, o, 'r2', ld_fl, [f'v_cmp_eq_u32 vcc, v30, v{V_T2}'])
            T.todo += todo2
            e.many(T.pump())
            vm.stamp(o, 6)
        if c >= 8: e('s_waitcnt lgkmcnt(0)')
        for r_ in rnds: vm.wait(f'o{r_}_{c}')
        front = []; late = []
        if nxt is not None and nxt >= 8:
            assert not (8 <= c < 13 and nxt < 13)
            if rnd == 0 and nxt == C.TCH[0] and i < 12: e('s_barrier')
            if nxt == 12 and vm.has('late'): vm.wait('late')
            if nxt >= 13: vm.wait(f'w{nxt}')
            front = rd(nxt, afrag(nxt))
        if rnd == 1 and c in (8, 9, 10):
            vm.room(8)
            late += wdma(c + 5)
        if rnd == 1 and c == 15: late += fin
        if rnd == 1 and c == 6: late += pwrite(0)
        if rnd == 1 and c == 5: late += fin2
        m = mms(c, rnds)
        late += T.pump()
        if C.M16: gaps(e, m, front, late, per=o.tper, late_from=0 if not front else min(len(m) - 4, (len(front) + o.tper - 1) // o.tper))
        else: gaps(e, m, front, late, per=3, late_from=0 if not front else 2)
        for r_ in rnds: T.free += T.where[(r_, c)]
    assert not T.todo
    vm.stamp(o, 7)
    e('s_nop 7'); e('s_nop 3')
    e.many(pwrite(1))
    e.lab('L_red')
    e('s_waitcnt lgkmcnt(0)')
    e('s_barrier')
    for i in range(2):
        for p in range(4):
            for hh in range(2):
                e(f'ds_read_b128 {vr(96+32*i+8*p+4*hh,4)}, v{RDA+2*i+hh} offset:{8192*p}')
    for i in range(2):
        b = 96 + 32 * i
        e(f's_waitcnt lgkmcnt({8*(1-i)})')
        for j in range(8):
            e(f'v_add_f32 v{b+j}, v{b+j}, v{b+8+j}')
            e(f'v_add_f32 v{b+16+j}, v{b+16+j}, v{b+24+j}')
        for j in range(8): e(f'v_add_f32 v{b+j}, v{b+j}, v{b+16+j}')
        for j in range(4): e(f'v_cvt_pk_bf16_f32 v{b+8+j}, v{b+2*j}, v{b+2*j+1}')
        if i: e(f's_add_u32 s{S_OO}, s{S_OO}, {8*2560}')
        e(f'buffer_store_dwordx4 {vr(b+8,4)}, v{VOUT}, {sr(S_OUT,4)}, s{S_OO} offen {o.out_flags}')
    ddump(e, o, 5)
    if o.light:
        e('s_waitcnt vmcnt(0)')
        e(f's_memrealtime {sr(S_ST,2)}')
        e('s_waitcnt lgkmcnt(0)')
        e('v_mov_b32 v2, s98'); e(f'v_mov_b32 v3, s{S_ST}'); e(f'v_mov_b32 v4, s{S_STB}')
        e('s_mov_b64 exec, 1')
        e(f'buffer_store_dwordx2 v[2:3], v4, {sr(S_WS,4)}, 0 offen')
    if o.stamps:
        e('s_waitcnt vmcnt(0)')
        stamp(e, o, 14)

KD = '''.amdhsa_kernel {n}
  .amdhsa_next_free_vgpr 512
  .amdhsa_next_free_sgpr 102
  .amdhsa_accum_offset 256
  .amdhsa_group_segment_fixed_size 0
  .amdhsa_kernarg_size 104
  .amdhsa_user_sgpr_count 2
  .amdhsa_user_sgpr_kernarg_segment_ptr 1
  .amdhsa_system_sgpr_workgroup_id_x 1
.end_amdhsa_kernel
'''

HEADER = """
"""

def gen(o):
    assert not o.w3
    if o.r6: plan6()
    C.M16 = o.m16
    e = Em()
    e.jit = o.jit
    e.mix = o.mix
    k1 = NAME + '_kernel'
    for l in HEADER.strip().split('\n'): e.raw(l)
    e.raw('; @launch grid=(256,1,1) block=(256,1,1) lds=163840')
    e.raw('.amdgcn_target "amdgcn-amd-amdhsa--gfx950"')
    e.raw('.text')
    e.raw(f'.globl {k1}\n.p2align 8\n.type {k1},@function')
    e.lab(k1)
    prologue(e, o)
    e(f's_cmp_eq_u32 s{S_WAVE}, 3')
    e('s_cbranch_scc1 L_loader')
    if o.al_a > 0:
        for _ in range(o.al_a // 4): e('s_nop 0')
    phase_a(e, o)
    T = phase_b(e, o)
    n0 = T.vm.out()
    pre = T.pump(o.npre)
    npre = T.vm.out() - n0
    e.pre = pre
    if o.pwf:
        per = len(pre) // max(o.npre, 1)
        e.many(pre[:per * o.npre0])
        e(f's_sub_u32 s{S_T0}, s{S_OB}, {RND + 4096}')
        e(f's_lshr_b32 s{S_T0}, s{S_T0}, 6')
        e(f's_mul_i32 s{S_T2}, s{S_BR}, {12*32*128}')
        e(f's_sub_u32 s{S_T0}, s{S_T0}, s{S_T2}')
        e(f's_add_u32 s{S_T0}, s{S_T0}, {WS_FLAG2}')
        e(f'v_add_u32 v{V_T2}, 3, v0')
        e(f'v_mov_b32 v{V_T3}, 0')
        e(f's_waitcnt vmcnt({4 * o.npre0})')
        e('s_mov_b64 exec, 1')
        e(f'buffer_store_dword v{V_T2}, v{V_T3}, {sr(S_WS,4)}, s{S_T0} offen sc1')
        e('s_mov_b64 exec, -1')
        e.many(pre[per * o.npre0:])
        e('s_waitcnt lgkmcnt(0)')
    else:
        e.many(pre)
        e(f's_waitcnt vmcnt({npre}) lgkmcnt(0)')
    e('s_barrier')
    dmark(e, o, 3)
    if o.stamps:
        T.vm.stamp(o, 3)
    e('s_branch L_join')
    align(e, o.al_l)
    e.lab('L_loader')
    loader(e, o)
    if o.w3:
        if o.stamps: e.T3.vm.stamp(o, 3)
        tail(e, o, e.T3, w3=True)
    else:
        if o.stamps: stamp(e, o, 3)
    if o.al_j >= 0:
        e('s_branch L_join'); align(e, o.al_j)
    e.lab('L_join')
    tail(e, o, T)
    e.lab('L_exit')
    e('s_endpgm')
    e.lab('L_end')
    e.raw('.section .rodata,"a"\n.p2align 6')
    e.raw(KD.format(n=k1))
    return e.text()

if __name__ == '__main__':
    o = Opt()
    out = sys.argv[1]
    for a in sys.argv[2:]:
        k, v = a.split('=', 1); v = v.replace('+', ' ')
        cur = getattr(o, k)
        setattr(o, k, (v == '1') if isinstance(cur, bool) else int(v) if isinstance(cur, int) else v)
    open(out, 'w').write(gen(o))
```

```python
import sys, math, struct
NAME = 'concat_heads__mha_block_cached__mha_block_cached__near_ridge'

class Opt:
    stamps = False
    kv_flags = 'nt'
    w_flags = ''
    wo_flags = ''
    ost_flags = 'sc1'
    old_flags = 'sc1'
    look = 7
    rot = 0
    arot = 3
    nun = 1
    tlbq = False
    tickst = 0
    no_w = False
    no_w3 = False
    t_now = False
    t_o1 = False
    t_noo = False
    c8late = True
    pf_kv = 0
    pf_wo = True
    pf_a = False
    pf_w = False
    pf_delay = 0
    pf_s0 = 2
    pf_mid = 0
    pf_flags = ''
    pf_tail = 0
    bal = 0
    bal_lag = 2
    bal_n = 1
    bal_sl = 0
    tagk = 1
    thr_end = 28
    k_first = False
    k_s0 = 0
    tlb = True
    aper = 4
    out_flags = ''
    tsched = 1
    park = True
    maxout = 61
    r1k = 28
    nodup = True
    al_t = -1
    al_l = -1
    al_j = -1
    al_a = -1
    pf2 = False
    pf2_p0 = 1
    pf2_s0 = 0
    pf2_gap = 2
    pf2_pre = 1
    wper = 3
    pf_wi = 6
    mix = 0
    head3 = 1
    dq2 = False
    pwf = False
    npre0 = 1
    don = 0
    don_lag = 1
    t_skip = ''
    t_no1 = False
    m16 = False
    tper = 2
    pre3 = 1
    wst = ''
    w0 = 3
    r1pack = False
    gran = 4
    tlbd = True
    tlbf = 0
    r6k = 9
    r6e = 3
    r6 = False
    a_skip = ''
    dbgt = False
    jit = 0
    light = False
    lb = 4
    lb_hi = 42
    lb_pos = 0
    lb_t = 0
    lb_lo = 8
    lb_ld = 'sc1'
    lb_st = ''
    pfc = True
    w3 = False
    w3k = 23
    pl_at = 5
    fav = 0
    t15 = True
    nearly = 0
    npre = 3
    pk = True
    v1_late = True
    look_lo = 5
    look_k0 = 0
    look_k1 = 0
    krot = False
    early = True
    chk = 9
    bal_k1 = 30
    psleep = 4
    thr = 20
    blk = 0

WS_FLAGS = 12582912
WS_PROG = WS_FLAGS + 32768
WS_FLAG2 = WS_FLAGS + 65536
WS_STAMP = 13631488
SLOT = 16384
STAGE = 40960
RND = 12 * 32 * 8192

S_X, S_K, S_V, S_WQ, S_WO, S_OUT, S_WS = 4, 8, 12, 16, 20, 24, 28
S_DBG = 32
S_WAVE, S_BR, S_H, S_BL = 34, 35, 36, 37
S_T0, S_T1, S_T2, S_T3 = 38, 39, 40, 41
S_KX, S_XB, S_XL, S_KVB, S_TICK = 42, 43, 44, 45, 46
S_KOFF, S_VOFF, S_THR, S_FLOOR, S_C, S_OB, S_WQB = 47, 48, 49, 50, 51, 52, 53
S_ST, S_STB, S_QT, S_NT = 54, 56, 57, 58
S_SAVE = 60
S_WN, S_FL = 62, 63
S_EV = 59
S_KARG = 64
S_WOB, S_O1, S_QB, S_CNT, S_RHO, S_WC, S_N, S_KR = 90, 91, 92, 93, 94, 95, 96, 97

V_LANE = 1
V_T0, V_T1, V_T2, V_T3 = 2, 3, 4, 5
V_L, V_MX, V_D = 6, 10, 11
V_DMA = 12
V_KA, V_VA, V_OST, V_WA = 16, 24, 28, 29
V_NEGM = 32
V_SA, V_SB, V_P, V_TMP = 48, 64, 80, 88
V_Q, V_KF, V_VF, V_Q2 = 96, 128, 160, 192

class Em:
    def __init__(self): self.L = []
    def __call__(self, s): self.L.append('    ' + s)
    def lab(self, s): self.L.append(s + ':')
    def raw(self, s): self.L.append(s)
    def many(self, l):
        for x in l: self(x)
    def text(self):
        if getattr(self, 'jit', 0):
            import random
            rnd = random.Random(self.jit); out = []; n = 0
            for l in self.L:
                out.append(l)
                t = l.strip()
                if (t == 's_barrier' or t.startswith('s_waitcnt vmcnt')) and rnd.random() < 0.35:
                    n += 1
                    bit = rnd.choice([0, 1, 2, 3, 4, 5])
                    src = rnd.choice(['s2', f's{S_WAVE}'])
                    if src != 's2': bit &= 1
                    out += [f'    s_cselect_b32 s3, 1, 0', f'    s_bitcmp1_b32 {src}, {bit}', f'    s_cbranch_scc0 L_j{n}', f'    s_sleep {rnd.choice([1, 4, 16, 40])}', f'L_j{n}:', '    s_cmp_eq_u32 s3, 1']
            self.L = out
        return '\n'.join(self.L) + '\n'

def vr(b, n=1): return f'v{b}' if n == 1 else f'v[{b}:{b+n-1}]'
def ar(b, n=1): return f'a{b}' if n == 1 else f'a[{b}:{b+n-1}]'
def sr(b, n=1): return f's{b}' if n == 1 else f's[{b}:{b+n-1}]'
def mfma(d, a, b, c): return f'v_mfma_f32_32x32x16_bf16 {d}, {a}, {b}, {c}'
def hold(ci, off, n):
    return ar(64 + 32 * ci + off, n) if ci < 6 else vr(192 + 32 * (ci - 6) + off, n)

def hold3(ci, off, n):
    return hold(ci, off, n) if ci < 8 else vr(64 + 32 * (ci - 8) + off, n)
def reg4(r): return ar(r - 1000, 4) if r >= 1000 else vr(r, 4)

def cost(i):
    if i.startswith('v_exp') or i.startswith('v_rcp'): return 8
    if i.startswith('s_'): return 2
    return 4

def interleave(e, mf, fill):
    total = sum(cost(f) for f in fill if not isinstance(f, tuple))
    per = total / len(mf)
    fi = 0; acc = 0.0
    deadline = {}; items = []
    for f in fill:
        if isinstance(f, tuple):
            if f[0] == 'M': deadline[f[1]] = len(items)
            else: items.append(f)
        else: items.append(f)
    for k, m in enumerate(mf):
        need = deadline.get(k, 0)
        while fi < need:
            it = items[fi]; fi += 1
            if isinstance(it, tuple):
                assert it[1] < k, (it, k)
                continue
            e(it); acc += cost(it)
        if isinstance(m, (list, tuple)): e.many(m)
        else: e(m)
        target = per * (k + 1)
        while fi < len(items) and (acc < target - 1.0 or k == len(mf) - 1):
            it = items[fi]
            if isinstance(it, tuple):
                if it[1] > k: break
                fi += 1; continue
            e(it); acc += cost(it); fi += 1
    assert fi == len(items)

def gaps(e, mf, front, late=(), per=2, late_from=5):
    g = [[] for _ in mf]
    for i, f in enumerate(front): g[min(i // per, len(mf) - 1)].append(f)
    n = len(mf) - late_from
    for i, f in enumerate(late): g[late_from + (i * n) // len(late)].append(f)
    for m, x in zip(mf, g):
        sk = getattr(e, 'skip', '')
        if 'm' not in sk: e(m)
        e.many([y for y in x if not (('r' in sk and y.startswith('ds_read')) or ('d' in sk and y.startswith('buffer_load_dwordx4 v') and ('s[4:7]' in y or 's[16:19]' in y)))])

def stamp(e, o, idx, clk=False):
    if not o.stamps: return 0
    e(f's_memtime {sr(S_ST,2)}' if clk else f's_memrealtime {sr(S_ST,2)}')
    e('s_waitcnt lgkmcnt(0)')
    e(f'v_mov_b32 v{V_T0}, s{S_ST}')
    e(f'v_mov_b32 v{V_T1}, s{S_STB}')
    e('s_mov_b64 exec, 1')
    e(f'buffer_store_dword v{V_T0}, v{V_T1}, {sr(S_WS,4)}, 0 offen offset:{4*idx}')
    e('s_mov_b64 exec, -1')
    return 1

LAZY = {0: 98, 1: 100}
for _i in range(2, 15): LAZY[_i] = 64 + 2 * (_i - 2)
def lazy(e, o, i):
    if o.stamps: e(f's_memrealtime s[{LAZY[i]}:{LAZY[i]+1}]')
def lazy_dump(e, o, ids):
    if not o.stamps: return 0
    e('s_waitcnt lgkmcnt(0)')
    e(f'v_mov_b32 v{V_T1}, s{S_STB}')
    e('s_mov_b64 exec, 1')
    for i in ids:
        e(f'v_mov_b32 v{V_T0}, s{LAZY[i]}')
        e(f'buffer_store_dword v{V_T0}, v{V_T1}, {sr(S_WS,4)}, 0 offen offset:{16 if i == 0 else 4*(16+i)}')
        e('s_nop 1')
    e('s_mov_b64 exec, -1')
    return len(ids)

def dmark(e, o, i):
    if o.dbgt: e(f's_memrealtime s[{64+2*i}:{65+2*i}]')
def ddump(e, o, n):
    if not o.dbgt: return
    e('s_waitcnt vmcnt(0)')
    dmark(e, o, n - 1)
    e('s_waitcnt lgkmcnt(0)')
    e(f's_cmp_lg_u32 s{S_WAVE}, 0')
    e('s_cbranch_scc1 L_exit')
    e('s_mov_b32 s3, 0')
    for j, w in enumerate((5, 130, 203)):
        e(f's_cmp_eq_u32 s2, {w}')
        e(f's_cselect_b32 s3, {4 + 20 * j}, s3')
    e('s_cmp_eq_u32 s3, 0')
    e('s_cbranch_scc1 L_exit')
    e('v_mov_b32 v2, s3')
    e('s_mov_b64 exec, 1')
    for i in range(n):
        e(f's_sub_u32 s{64+2*i}, s{64+2*i}, s98')
        e(f'v_mov_b32 v3, s{64+2*i}')
        e(f'global_store_dword v2, v3, {sr(S_DBG,2)} offset:{4*i}')
        e('s_nop 1')
    e('s_mov_b64 exec, -1')

def align(e, ph):
    if ph < 0: return
    e.raw('.p2align 6')
    for _ in range(ph // 4): e('s_nop 0')

class Vm:
    def __init__(self, e): self.e = e; self.q = []
    def out(self): return sum(c for _, c in self.q)
    def has(self, name): return name in [n for n, _ in self.q]
    def wait(self, name):
        names = [n for n, _ in self.q]
        if name not in names: return
        i = names.index(name)
        rest = sum(c for _, c in self.q[i + 1:])
        assert rest <= 63
        self.e(f's_waitcnt vmcnt({rest})')
        self.q = self.q[i + 1:]
    def room(self, c):
        while self.out() + c > 61: self.wait(self.q[0][0])
    def add(self, name, c):
        self.q.append((name, c)); assert self.out() <= 63, self.q
    def stamp(self, o, idx, clk=False):
        if o.stamps:
            self.room(1); stamp(self.e, o, idx, clk); self.add(f'st{idx}', 1)

def prologue(e, o):
    if o.stamps or o.dbgt or o.light: e('s_memrealtime s[98:99]')
    e(f's_load_dwordx16 {sr(S_KARG,16)}, s[0:1], 0')
    e(f's_load_dwordx8 {sr(S_KARG+16,8)}, s[0:1], 64')
    e(f's_load_dwordx2 {sr(S_KARG+24,2)}, s[0:1], 96')
    e('s_cmp_ge_u32 s2, 256')
    e('s_cbranch_scc1 L_exit')
    e(f'v_lshrrev_b32 v{V_T0}, 6, v0')
    e(f'v_and_b32 v{V_LANE}, 63, v0')
    e(f'v_readfirstlane_b32 s{S_WAVE}, v{V_T0}')
    e(f's_and_b32 s{S_T0}, s2, 7')
    e(f's_lshr_b32 s{S_T1}, s2, 3')
    e(f's_lshr_b32 s{S_BR}, s{S_T0}, 2')
    e(f's_and_b32 s{S_T2}, s{S_T0}, 3')
    e(f's_lshl_b32 s{S_H}, s{S_T2}, 3')
    e(f's_and_b32 s{S_T3}, s{S_T1}, 7')
    e(f's_add_u32 s{S_H}, s{S_H}, s{S_T3}')
    e(f's_lshr_b32 s{S_BL}, s{S_T1}, 3')
    e(f's_mul_i32 s{S_KX}, s{S_BL}, 5')
    e(f's_add_u32 s{S_KX}, s{S_KX}, 1')
    e(f's_lshr_b32 s{S_KX}, s{S_KX}, 1')
    if o.arot in (2, 3): e(f's_mov_b32 s{S_KX}, 0')
    if o.arot == 4: e(f's_lshr_b32 s{S_T3}, s{S_T3}, 2')
    if o.arot in (0, 3, 4): e(f's_add_u32 s{S_KX}, s{S_KX}, s{S_T3}')
    e(f's_cmp_ge_u32 s{S_KX}, 10')
    e(f's_cselect_b32 s{S_T3}, 10, 0')
    e(f's_sub_u32 s{S_KX}, s{S_KX}, s{S_T3}')
    if o.blk == 0:
        e(f's_mul_i32 s{S_QT}, s{S_T1}, 13')
        e(f's_lshr_b32 s{S_QT}, s{S_QT}, 6')
        e(f's_mul_i32 s{S_T3}, s{S_QT}, 5')
        e(f's_sub_u32 s{S_NT}, s{S_T1}, s{S_T3}')
        e(f's_and_b32 s{S_T3}, s{S_T2}, 1')
        e(f's_mul_i32 s{S_T3}, s{S_T3}, 5')
        e(f's_add_u32 s{S_NT}, s{S_NT}, s{S_T3}')
        e(f's_lshr_b32 s{S_T3}, s{S_T2}, 1')
        e(f's_mul_i32 s{S_T3}, s{S_T3}, 6')
        e(f's_add_u32 s{S_QT}, s{S_QT}, s{S_T3}')
    elif o.blk == 1:
        e(f's_mul_i32 s{S_QT}, s{S_T1}, 26')
        e(f's_lshr_b32 s{S_QT}, s{S_QT}, 8')
        e(f's_mul_i32 s{S_T3}, s{S_QT}, 10')
        e(f's_sub_u32 s{S_NT}, s{S_T1}, s{S_T3}')
        e(f's_mul_i32 s{S_T3}, s{S_T2}, 3')
        e(f's_add_u32 s{S_QT}, s{S_QT}, s{S_T3}')
    else:
        e(f's_mul_i32 s{S_T3}, s{S_T2}, 30')
        e(f's_add_u32 s{S_T3}, s{S_T3}, s{S_T1}')
        e(f's_mul_i32 s{S_NT}, s{S_T3}, 171')
        e(f's_lshr_b32 s{S_NT}, s{S_NT}, 11')
        e(f's_mul_i32 s{S_QT}, s{S_NT}, 12')
        e(f's_sub_u32 s{S_QT}, s{S_T3}, s{S_QT}')
    e(f's_cmp_ge_u32 s{S_T1}, 30')
    e(f's_cselect_b32 s{S_NT}, 15, s{S_NT}')
    e(f's_cselect_b32 s{S_QT}, 0, s{S_QT}')
    e(f's_mul_i32 s{S_QB}, s{S_QT}, 11')
    e(f's_lshr_b32 s{S_QB}, s{S_QB}, 5')
    e(f's_lshl_b32 s{S_STB}, s2, 2')
    e(f's_add_u32 s{S_STB}, s{S_STB}, s{S_WAVE}')
    e(f's_lshl_b32 s{S_STB}, s{S_STB}, 8')
    e(f's_add_u32 s{S_STB}, s{S_STB}, {WS_STAMP}')
    e(f's_lshl_b32 s{S_XL}, s{S_WAVE}, 13')
    e(f's_lshl_b32 s{S_WOB}, s{S_NT}, 7')
    e(f's_cmp_ge_u32 s{S_NT}, 5')
    e(f's_cselect_b32 s{S_T0}, {5 if o.blk == 0 else 0}, 0')
    e(f's_sub_u32 s{S_RHO}, s{S_NT}, s{S_T0}')
    e(f's_mul_i32 s{S_RHO}, s{S_RHO}, {o.rot}')
    e(f's_and_b32 s{S_RHO}, s{S_RHO}, 15')
    for srd, size in ((S_X, 983040), (S_K, 1 << 26), (S_V, 1 << 26), (S_WQ, 5242880), (S_WO, 5242880), (S_OUT, 1966080), (S_WS, 16777216)):
        e(f's_mov_b32 s{srd+2}, {size}')
        e(f's_mov_b32 s{srd+3}, 0x20000')

def srds(e, o):
    e('s_waitcnt lgkmcnt(0)')
    e(f's_cmp_eq_u32 s{S_BR}, 0')
    for srd, i in ((S_WQ, 3), (S_X, 0), (S_K, 1), (S_V, 2), (S_WO, 4)):
        e(f's_cselect_b64 {sr(srd,2)}, {sr(S_KARG+2*i,2)}, {sr(S_KARG+10+2*i,2)}')
    e(f's_mov_b64 {sr(S_OUT,2)}, {sr(S_KARG+20,2)}')
    e(f's_mov_b64 {sr(S_WS,2)}, {sr(S_KARG+24,2)}')
    e(f's_mov_b64 {sr(S_DBG,2)}, {sr(S_KARG+22,2)}')
    for srd in (S_WQ, S_X, S_K, S_V, S_WO, S_OUT, S_WS):
        e(f's_and_b32 s{srd+1}, s{srd+1}, 0xffff')
    lazy(e, o, 1)

def no_task_wo(e):
    e(f's_cmp_eq_u32 s{S_NT}, 15')
    e(f's_cselect_b32 s{S_WO+2}, 0, s{S_WO+2}')

class C:
    M16 = False
    NR = 8; RING = 32768; OFF = 6; J0 = 1; SCR = 3; TL = 'T6'
    W = (32768, 73728, 114688); X = (49152, 90112, 0)
    PIECE = {8: 0, 9: 1, 10: 2, 11: 3, 12: 4, 13: 0, 14: 1, 15: 2}
    TCH = (9, 10, 11)
def plan6():
    C.NR = 6; C.RING = 65536; C.OFF = 4; C.J0 = 2; C.SCR = 2; C.TL = 'T4'
    C.W = (65536, 106496, 24576); C.X = (81920, 0, 40960)
    C.PIECE = {8: 0, 9: 1, 10: 4, 11: 2, 12: 3, 13: 0, 14: 1, 15: 4}
    C.TCH = (10, 11)
PF_TICKS = [0, 1, 6, 10, 15, 19, 22, 24, 25, 26, 27]
def reg_w(s): return C.W[(s + 2) % 3]
def reg_x(s): return C.X[(s + 2) % 3]

SEQ = ['K0']
for k in range(32): SEQ += [f'K{k+1}', f'V{k}']
SEQ += [f'T{i}' for i in range(8)]
POS = {n: i for i, n in enumerate(SEQ)}
def slot(name): return (C.OFF + POS[name]) % C.NR
def slot_addr(name): return C.RING + slot(name) * SLOT

def wo_dma(o, c, ldsbase_s, ldsoff, wob, vw, dyn=False):
    r = []
    if o.no_w and dyn: return ['s_nop 0']
    if dyn:
        r += [f's_mul_i32 s{S_T0}, s{S_WC}, {64*1280}', f's_add_u32 s{S_WC}, s{S_WC}, 1', f's_and_b32 s{S_WC}, s{S_WC}, 15']
    else:
        r += [f's_add_u32 s{S_T0}, s{S_RHO}, {c}', f's_and_b32 s{S_T0}, s{S_T0}, 15', f's_mul_i32 s{S_T0}, s{S_T0}, {64*1280}']
    r.append(f's_add_u32 s{S_T0}, s{S_T0}, {wob}')
    for g_ in range(2):
        r.append(f's_add_u32 m0, {ldsbase_s}, {ldsoff + 4096*g_}' if ldsbase_s else f's_mov_b32 m0, {ldsoff + 4096*g_}')
        r.append(f's_add_u32 s{S_T1}, s{S_T0}, {32*g_*1280}')
        for i in range(4):
            r.append(f'buffer_load_dwordx4 v{vw+i}, {sr(S_WO,4)}, s{S_T1} offen offset:{1024*i} {o.wo_flags} lds')
    return r

def wo_voffs(e, dst):
    L = V_LANE
    e(f'v_lshrrev_b32 v{V_T0}, 3, v{L}')
    e(f'v_mul_u32_u24 v{V_T0}, 1280, v{V_T0}')
    if C.M16:
        e(f'v_lshrrev_b32 v{V_T1}, 4, v{L}')
        e(f'v_lshlrev_b32 v{V_T1}, 1, v{V_T1}')
    else:
        e(f'v_bfe_u32 v{V_T1}, v{L}, 4, 1')
        e(f'v_lshlrev_b32 v{V_T1}, 2, v{V_T1}')
    e(f'v_and_b32 v{V_T2}, 7, v{L}')
    e(f'v_xor_b32 v{V_T1}, v{V_T1}, v{V_T2}')
    e(f'v_lshl_add_u32 v{dst}, v{V_T1}, 4, v{V_T0}')
    for i in range(1, 4): e(f'v_add_u32 v{dst+i}, {(10240-1024)*i}, v{dst}')

def wo_lane_addr(e, dst):
    L = V_LANE
    if C.M16:
        e(f'v_lshrrev_b32 v{V_T0}, 5, v{L}')
        e(f'v_bfe_u32 v{V_T1}, v{L}, 2, 3')
        e(f'v_lshl_add_u32 v{dst}, v{V_T0}, 4, v{V_T1}')
        e(f'v_lshlrev_b32 v{dst}, 7, v{dst}')
        e(f'v_bfe_u32 v{V_T3}, v{L}, 3, 2')
        e(f'v_lshl_add_u32 v{dst}, v{V_T3}, 5, v{dst}')
        e(f'v_and_b32 v{V_T3}, 3, v{L}')
        e(f'v_lshl_add_u32 v{dst}, v{V_T3}, 3, v{dst}')
        return
    e(f'v_lshrrev_b32 v{V_T0}, 5, v{L}')
    e(f'v_bfe_u32 v{V_T1}, v{L}, 2, 2')
    e(f'v_lshl_add_u32 v{dst}, v{V_T0}, 2, v{V_T1}')
    e(f'v_lshlrev_b32 v{dst}, 7, v{dst}')
    e(f'v_bfe_u32 v{V_T3}, v{L}, 3, 1')
    e(f'v_lshl_add_u32 v{dst}, v{V_T3}, 6, v{dst}')
    e(f'v_bfe_u32 v{V_T3}, v{L}, 4, 1')
    e(f'v_lshl_add_u32 v{dst}, v{V_T3}, 5, v{dst}')
    e(f'v_and_b32 v{V_T3}, 3, v{L}')
    e(f'v_lshl_add_u32 v{dst}, v{V_T3}, 3, v{dst}')

def wo_reads(dstf, a0, a1, off, tmp=(V_T0, V_T1, V_T3)):
    r = []
    if C.M16:
        ad = [a0] + list(tmp)
        r += [f'v_xor_b32 v{ad[n]}, {32*n}, v{a0}' for n in range(1, 4)]
        for F in range(2):
            for n in range(4):
                for u in range(2):
                    r.append(f'ds_read_b64_tr_b16 {dstf(16*F+4*n+2*u,2)}, v{ad[n]} offset:{off+(32*F+8*u)*128}')
        return r
    for s4 in range(4):
        for nt in range(2):
            for u in range(2):
                r.append(f'ds_read_b64_tr_b16 {dstf(8*s4+4*nt+2*u,2)}, v{(a0,a1)[nt]} offset:{off+(16*s4+8*u)*128}')
    return r

def poll(e, o, tag, load, test):
    e.many(test)
    e('s_cmp_eq_u64 vcc, -1')
    e(f's_cbranch_scc1 L_polled_{tag}')
    e(f's_mov_b32 s{S_CNT}, 0x20000')
    e.lab(f'L_poll_{tag}')
    e(f's_sleep {o.psleep}')
    e(load)
    e('s_waitcnt vmcnt(0)')
    e.many(test)
    e('s_cmp_eq_u64 vcc, -1')
    e(f's_cbranch_scc1 L_polled_{tag}')
    e(f's_sub_u32 s{S_CNT}, s{S_CNT}, 1')
    e(f's_cmp_lg_u32 s{S_CNT}, 0')
    e(f's_cbranch_scc1 L_poll_{tag}')
    e.lab(f'L_polled_{tag}')

def flag1_tick(o):
    last = 0
    for w in range(3):
        t = int(o.wst[w]) if o.wst else o.w0 + w; ev = []
        for i in range(9):
            ev.append(t)
            t += o.wper + (1 if (o.t15 and t + o.wper == 15) else 0)
        assert ev[0] <= 14 and ev[7] >= 16 and ev[8] <= 30, ev
        last = max(last, min(x for x in ev if x >= 16))
    return last + 1

def loader(e, o):
    L = V_LANE
    VK, VV, VW, VWO, VF, VP, VZ = 24, 16, 20, 12, 17, 18, 19
    VA, VB = 96, 100
    AF = [48, 56]; BF = [64, 80]; ACC = 128
    vm = Vm(e)
    e(f'v_lshrrev_b32 v{V_T0}, 4, v{L}')
    e(f'v_and_b32 v{V_T1}, 15, v{L}')
    e(f'v_lshlrev_b32 v{V_T3}, 2, v{V_T0}')
    e(f'v_xor_b32 v{V_T3}, v{V_T3}, v{V_T1}')
    e(f'v_lshlrev_b32 v{V_T2}, 8, v{V_T0}')
    e(f'v_lshl_add_u32 v{VV}, v{V_T3}, 4, v{V_T2}')
    for i in range(4):
        e(f'v_add_u32 v{V_T3}, {4*i}, v{V_T0}')
        e(f'v_xor_b32 v{V_T3}, v{V_T3}, v{V_T1}')
        e(f'v_lshl_add_u32 v{VK+i}, v{V_T3}, 4, v{V_T2}')
    e(f's_lshl_b32 s{S_KVB}, s{S_BL}, 5')
    e(f's_add_u32 s{S_KVB}, s{S_KVB}, s{S_H}')
    e(f's_lshl_b32 s{S_KVB}, s{S_KVB}, 18')
    e(f's_and_b32 s{S_KR}, s2, 7')
    e(f's_lshl_b32 s{S_KR}, s{S_KR}, 1')
    e(f's_lshr_b32 s{S_T0}, s2, 3')
    e(f's_add_u32 s{S_KR}, s{S_KR}, s{S_T0}')
    e(f's_and_b32 s{S_KR}, s{S_KR}, {15 if o.krot else 0}')
    e(f's_lshl_b32 s{S_KR}, s{S_KR}, 14')
    e(f'v_lshlrev_b32 v{VW}, 19, v{L}')
    e(f'v_lshlrev_b32 v{VW+1}, 25, v{L}')
    e(f'v_mov_b32 v{VZ}, 0')
    e(f'v_lshlrev_b32 v{VW+3}, 18, v{L}')
    e(f's_lshl_b32 s{S_T0}, s{S_BR}, 2')
    e(f's_add_u32 s{S_FL}, s{S_T0}, s{S_BL}')
    e(f's_lshl_b32 s{S_FL}, s{S_FL}, 5')
    e(f's_add_u32 s{S_FL}, s{S_FL}, s{S_H}')
    e(f's_lshl_b32 s{S_FL}, s{S_FL}, 7')
    e(f's_add_u32 s{S_FL}, s{S_FL}, {WS_FLAGS}')
    e(f's_mul_i32 s{S_T2}, s{S_BR}, 8')
    e(f's_add_u32 s{S_T2}, s{S_T2}, s{S_BL}')
    e(f's_mul_i32 s{S_T2}, s{S_T2}, 96')
    e(f's_add_u32 s{S_T2}, s{S_T2}, s{S_H}')
    e(f's_lshl_b32 s{S_T2}, s{S_T2}, 13')
    if o.pfc:
        e(f's_getpc_b64 {sr(S_ST,2)}')
        e.lab('L_pc')
        e(f's_sub_u32 s{S_ST}, s{S_ST}, L_pc-{NAME}_kernel')
        e(f's_subb_u32 s{S_ST+1}, s{S_ST+1}, 0')
        e(f's_lshr_b32 s{S_T0}, s2, 3')
        e(f's_lshl_b32 s{S_T0}, s{S_T0}, 11')
        e(f'v_lshlrev_b32 v{V_T0}, 7, v{L}')
        e(f'v_add_u32 v{V_T0}, s{S_T0}, v{V_T0}')
        e(f'v_min_u32 v{V_T0}, L_end-{NAME}_kernel-4, v{V_T0}')
        e('s_mov_b64 exec, 0xffff')
        e(f'global_load_dword v{VW+2}, v{V_T0}, {sr(S_ST,2)}')
        e('s_mov_b64 exec, -1')
        vm.add('pfc', 1)
    srds(e, o)
    if o.tlb:
        e('s_mov_b64 exec, 3')
        e(f'buffer_load_dword v{VW+2}, v{VW+1}, {sr(S_K,4)}, s{S_KVB} offen')
        e(f'buffer_load_dword v{VW+2}, v{VW+1}, {sr(S_V,4)}, s{S_KVB} offen')
        e('s_mov_b64 exec, 0x3ffffff')
        if o.tlbq: e(f'buffer_load_dword v{VW+2}, v{VW}, {sr(S_WQ,4)}, 0 offen')
        e(f'buffer_load_dword v{VW+2}, v{VW}, {sr(S_WO,4)}, 0 offen')
        e(f'buffer_load_dword v{VW+2}, v{VW}, {sr(S_OUT,4)}, 0 offen')
        e('s_mov_b64 exec, 0x7007')
        e(f'buffer_load_dword v{VW+2}, v{VW+3}, {sr(S_WS,4)}, s{S_T2} offen')
        e('s_mov_b64 exec, 1')
        e(f'buffer_load_dword v{VW+2}, v{VZ}, {sr(S_WS,4)}, s{S_FL} offen')
        if o.tlbd: e(f'global_load_dword v{VW+2}, v{VZ}, {sr(S_DBG,2)} offset:128')
        if o.tlbf:
            e('s_mov_b64 exec, -1')
            e(f'v_and_b32 v{V_T0}, 3, v{L}')
            e(f'v_lshlrev_b32 v{V_T0}, 16, v{V_T0}')
            e(f'v_lshrrev_b32 v{V_T1}, 2, v{L}')
            e(f'v_lshl_add_u32 v{V_T0}, v{V_T1}, 25, v{V_T0}')
            e('s_mov_b64 exec, 0xee')
            e(f'buffer_load_dword v{VW+2}, v{V_T0}, {sr(S_K,4)}, s{S_KVB} offen')
            e(f'buffer_load_dword v{VW+2}, v{V_T0}, {sr(S_V,4)}, s{S_KVB} offen')
        e('s_mov_b64 exec, -1')
        vm.add('tlb', 6 + o.tlbq + o.tlbd + 2 * o.tlbf)
    def issue_l(name):
        kind, t = name[0], int(name[1:])
        r = []
        if kind == 'K' and t > 31: return r
        base = slot_addr(name)
        if kind in 'KV':
            off = (t // 16) * (4 * 32 * 262144)
            r.append(f's_add_u32 s{S_T0}, s{S_KR}, {(t % 16) * SLOT}')
            r.append(f's_and_b32 s{S_T0}, s{S_T0}, {16 * SLOT - 1}')
            r.append(f's_add_u32 s{S_T0}, s{S_T0}, s{S_KVB}')
            for g in range(4):
                r.append(f's_mov_b32 m0, {base + 4096*g}')
                r.append(f's_add_u32 s{S_T1}, s{S_T0}, {off + 4096*g}')
                for i in range(4):
                    v = VK + i if kind == 'K' else VV
                    r.append(f'buffer_load_dwordx4 v{v}, {sr(S_K if kind == "K" else S_V,4)}, s{S_T1} offen offset:{1024*i} {o.kv_flags} lds')
        else:
            rr = slot(name); j, hi = C.J0 + (rr >> 1), rr & 1
            if j == C.PIECE[12]: return r
            for p in range(2):
                r.append(f's_add_u32 s{S_T2}, s{S_WOB}, {1024*1280*(2*hi+p)}')
                r += wo_dma(o, [c for c in C.TCH if C.PIECE[c] == j][0], None, base + 8192 * p, f's{S_T2}', VWO)
        return r
    def issue(name):
        r = issue_l(name)
        if r:
            vm.room(16); e.many(r); vm.add(name, 16)
    def own_w(c, j=0):
        vm.room(8)
        e(f's_add_u32 s{S_T2}, s{S_WOB}, {1024*1280*3}')
        e.many(wo_dma(o, c, None, 3 * 8192 + 32768 * j, f's{S_T2}', VWO))
        vm.add(f'w{c}', 8)
    def wait_upto(n):
        for m in range(n, -1, -1):
            if vm.has(SEQ[m]): vm.wait(SEQ[m]); return
    def flag(val):
        pre = []; so = S_FL
        if val == 1 and o.r1pack:
            so = S_T2
            pre = [f's_sub_u32 s{S_T2}, s{S_FL}, {WS_FLAGS}', f's_lshr_b32 s{S_T2}, s{S_T2}, 5', f's_add_u32 s{S_T2}, s{S_T2}, {WS_PROG + 4096}']
        return pre + [f's_add_u32 s{S_T0}, s{S_N}, {val}', f'v_mov_b32 v{V_T2}, s{S_T0}', 's_mov_b64 exec, 1',
                f'buffer_store_dword v{V_T2}, v{VZ}, {sr(S_WS,4)}, s{so} offen sc1', 's_mov_b64 exec, -1']
    if o.pf_a:
        if o.pf_delay: e(f's_sleep {o.pf_delay}')
        e(f'v_lshrrev_b32 v{VW}, 1, v{L}')
        e(f'v_lshlrev_b32 v{VW}, 13, v{VW}')
        e(f'v_and_b32 v{VW+1}, 1, v{L}')
        e(f'v_lshl_add_u32 v{VW}, v{VW+1}, 7, v{VW}')
        e(f's_mul_i32 s{S_T0}, s{S_BL}, {160*8192}')
        e(f's_lshl_b32 s{S_T1}, s{S_H}, 8')
        e(f's_add_u32 s{S_T0}, s{S_T0}, s{S_T1}')
        for i in range(5):
            e(f's_add_u32 s{S_T1}, s{S_T0}, {32*i*8192}')
            e(f'buffer_load_dword v{VW+2}, v{VW}, {sr(S_WQ,4)}, s{S_T1} offen {o.w_flags}')
        e(f'v_lshlrev_b32 v{VW+1}, 7, v{L}')
        e(f's_and_b32 s{S_T0}, s{S_H}, 7')
        e(f's_mul_i32 s{S_T0}, s{S_T0}, 15360')
        e(f's_mul_i32 s{S_T1}, s{S_BL}, 122880')
        e(f's_add_u32 s{S_T0}, s{S_T0}, s{S_T1}')
        for i in range(4):
            e(f's_add_u32 s{S_T1}, s{S_T0}, {(i >> 1) * 491520 + (i & 1) * 8192}')
            e(f'buffer_load_dword v{VW+2}, v{VW+1}, {sr(S_X,4)}, s{S_T1} offen {o.w_flags}')
        vm.add('pfa', 9)
    if o.k_first: issue('K0'); issue('K1')
    e('s_cmp_lg_u32 s2, 0')
    e('s_cbranch_scc1 L_notag')
    e(f's_memrealtime {sr(S_ST,2)}')
    e('s_waitcnt lgkmcnt(0)')
    e(f's_mul_i32 s{S_ST+1}, s{S_ST+1}, 0x9e3779b1')
    e(f's_add_u32 s{S_ST}, s{S_ST}, s{S_ST+1}')
    e(f's_or_b32 s{S_ST}, s{S_ST}, 4')
    e(f's_and_b32 s{S_ST}, s{S_ST}, -4')
    e(f'v_mov_b32 v{V_T2}, s{S_ST}')
    e('s_mov_b64 exec, 1')
    e(f'global_store_dword v{VZ}, v{V_T2}, {sr(S_DBG,2)} sc1')
    e('s_mov_b64 exec, -1')
    e.lab('L_notag')
    e.head_end = len(e.L)
    e(f's_lshl_b32 s{S_T0}, s{S_BR}, 2')
    e(f's_add_u32 s{S_T0}, s{S_T0}, s{S_QB}')
    e(f's_lshl_b32 s{S_T0}, s{S_T0}, 12')
    e(f's_add_u32 s{S_T0}, s{S_T0}, {WS_FLAGS}')
    e(f'v_and_b32 v{VP}, 31, v{L}')
    e(f'v_lshlrev_b32 v{VP}, 7, v{VP}')
    e(f'v_add_u32 v{VP}, s{S_T0}, v{VP}')
    if o.r1pack:
        e(f'v_subrev_u32 v{VP}, {WS_FLAGS}, v{VP}')
        e(f'v_lshrrev_b32 v{VP}, 5, v{VP}')
        e(f'v_add_u32 v{VP}, {WS_PROG + 4096}, v{VP}')
    a_addr(e, VA, VB, None)
    wo_voffs(e, VWO)
    wo_lane_addr(e, V_WA)
    e(f'v_lshlrev_b32 v{VW}, 7, v{L}')
    e(f'v_add_u32 v{V_WA}, {3*8192}, v{V_WA}')
    e(f'v_xor_b32 v{V_WA+1}, 64, v{V_WA}')
    e(f'v_lshlrev_b32 v{V_OST}, 4, v{L}')
    e(f's_mov_b32 s{S_C}, {SCALE}')
    pf = []
    for n in range(2, 2 + o.pf_kv):
        kind, t = SEQ[n][0], int(SEQ[n][1:])
        for hh in range(2):
            pf.append([f's_add_u32 s{S_T1}, s{S_KVB}, {t*SLOT + hh*8192}',
                       f'buffer_load_dword v{VW+1}, v{VW}, {sr(S_K if kind == "K" else S_V,4)}, s{S_T1} offen {o.pf_flags}'])
    if o.pf_wo:
        e(f's_lshl_b32 s{S_T2}, s{S_H}, 2')
        e(f's_add_u32 s{S_T2}, s{S_T2}, s{S_BL}')
        e(f's_mul_i32 s{S_T2}, s{S_T2}, 40960')
        for i in range(5):
            pf.append([f's_add_u32 s{S_T1}, s{S_T2}, {i*8192}',
                       f'buffer_load_dword v{VW+1}, v{VW}, {sr(S_WO,4)}, s{S_T1} offen {o.pf_flags}'])
    def reads(s4, buf):
        r = []
        for t in (2, 3):
            for u in range(2):
                r.append(f'ds_read_b64_tr_b16 {vr(AF[buf]+4*(t-2)+2*u,2)}, v{VA+t} offset:{(16*s4+4*u)*256}')
        r += [f'ds_read_b128 {vr(BF[buf]+4*j,4)}, v{VB+s4} offset:{8192*j + 4096}' for j in range(3)]
        return r
    def mf(buf, first):
        r = []
        for j in range(3):
            for t in range(2):
                d = vr(ACC + 32 * j + 16 * t, 16)
                r.append(mfma(d, vr(AF[buf] + 4 * t, 4), vr(BF[buf] + 4 * j, 4), '0' if first else d))
        return r
    pf2 = []
    if o.pf2:
        e(f'v_and_b32 v36, 31, v{L}')
        e(f'v_lshrrev_b32 v36, 1, v36')
        e(f'v_lshrrev_b32 v37, 5, v{L}')
        e(f'v_lshl_add_u32 v36, v37, 6, v36')
        e(f'v_lshlrev_b32 v36, 13, v36')
        e(f'v_and_b32 v37, 1, v{L}')
        e(f'v_lshl_add_u32 v36, v37, 7, v36')
        e(f'v_lshrrev_b32 v38, 1, v{L}')
        e(f'v_min_u32 v38, 23, v38')
        e(f'v_mul_u32_u24 v38, 1280, v38')
        e(f'v_lshl_add_u32 v38, v37, 7, v38')
        e(f's_lshl_b32 s{S_XB}, s{S_BL}, 17')
        e(f's_lshl_b32 s{S_T0}, s{S_H}, 8')
        e(f's_add_u32 s{S_XB}, s{S_XB}, s{S_T0}')
        e(f's_bfe_u32 s{S_T0}, s{S_H}, 0x10002')
        e(f's_lshl_b32 s{S_T0}, s{S_T0}, 2')
        e(f's_add_u32 s{S_T0}, s{S_T0}, s{S_BL}')
        e(f's_mul_i32 s{S_OB}, s{S_T0}, 122880')
        e(f's_and_b32 s{S_T0}, s{S_H}, 3')
        e(f's_mul_i32 s{S_T0}, s{S_T0}, {24*1280}')
        e(f's_add_u32 s{S_OB}, s{S_OB}, s{S_T0}')
        for p in range(o.pf2_p0, 5):
            pf2.append([f's_add_u32 s{S_T1}, s{S_XB}, {128*p*8192}', f'buffer_load_dword v39, v36, {sr(S_WQ,4)}, s{S_T1} offen',
                        f's_add_u32 s{S_T1}, s{S_OB}, {256*p}', f'buffer_load_dword v39, v38, {sr(S_X,4)}, s{S_T1} offen'])
        for x in pf2[:o.pf2_pre]:
            e.many(x); vm.add('pf2', 2)
        pf2 = pf2[o.pf2_pre:]
    extra = {}
    def ride(step, name, ins, cnt):
        extra.setdefault(step, []).append((name, ins, cnt))
    for i, x in enumerate(pf2): ride(o.pf2_s0 + o.pf2_gap * i, 'pf2', x, 2)
    if not o.k_first:
        for i, nm in enumerate(('K0', 'K1')):
            ins = issue_l(nm)
            for q in range(4): ride(4 * o.k_s0 + 4 * i + q, nm if q == 3 else None, ins[(3 + 6 * q if q else 0):3 + 6 * q + 6], 4)
    npf = 4 * (7 - o.pf_s0)
    for i, x in enumerate(pf): ride(4 * o.pf_s0 + (i * npf) // max(len(pf), 1), 'pf', x, 1)
    for i, nm in enumerate(('V0', 'K2')):
        ins = issue_l(nm)
        for q in range(2): ride(31 + 2 * i + q, nm if q == 1 else None, ins[(15 if q else 0):3 + 12 * q + 12], 8)
    ins = issue_l('V1')
    for q in range(0 if o.v1_late else 2): ride(35 + q, 'V1' if q == 1 else None, ins[(15 if q else 0):3 + 12 * q + 12], 8)
    e('s_barrier')
    e.many(reads(0, 0))
    e.skip = o.a_skip + ('mr' if o.dq2 else '')
    for s in range(10):
        for s4 in range(4):
            step = 4 * s + s4; buf = step & 1
            e('s_waitcnt lgkmcnt(0)')
            if step == 31: no_task_wo(e)
            if s4 == 3:
                if s == 9: vm.wait('K1')
                e('s_barrier')
            late = []
            for name, ins, cnt in extra.get(step, []):
                vm.room(cnt); late += ins; vm.add(name or 'part', cnt)
            if s4 == 2 and s < 9: late += a_step(s, VA)
            front = reads((s4 + 1) & 3, buf ^ 1) if step < 39 else []
            gaps(e, mf(buf, step == 0), front, late, per=max(o.aper - 1, 3), late_from=(2 if s4 == 2 else 1))
    e.skip = ''
    if o.v1_late: issue('V1')
    e('s_nop 7'); e('s_nop 3')
    for j in range(3):
        for i in range(16): e.many(conv(i, ACC + 32 * j, ACC + 32 * j))
        for f in range(4): e(f'ds_write_b128 v{V_OST}, {vr(ACC+32*j+4*f,4)} offset:{8192*j + 1024*f}')
    e('s_waitcnt lgkmcnt(0)')
    issue('K3')
    issued = POS['K3']
    e(f's_lshr_b32 s{S_WC}, s2, 3')
    e(f's_mul_i32 s{S_KX}, s{S_WC}, 13')
    e(f's_lshr_b32 s{S_KX}, s{S_KX}, 6')
    vm.wait('pfa')
    e(f'v_mul_u32_u24 v{VW+2}, 1280, v{L}')
    vm_pg = [None]
    ld_own = f'buffer_load_dword v23, v22, {sr(S_WS,4)}, 0 offen sc1'
    T3 = Tail(e, o); T3.vm = vm
    T3.free = [1000 + r for r in range(32, 64, 4)]
    e.T3 = T3
    def shadow_mm(c, first):
        m = []
        af = (lambda off, n: hold3(c, off, n)) if c < 12 else (lambda off, n: vr(32 + off, n))
        for s4 in range(4):
            for nt in range(2):
                d = ar(16 * nt, 16)
                m.append(mfma(d, af(8 * s4 + 4 * nt, 4), reg4(T3.where[(0, c)][s4]), '0' if (first and s4 == 0) else d))
        return m
    ld_cnt = f'global_load_dword v23, v{VZ}, {sr(S_DBG,2)} sc1'
    ld_fl = f'buffer_load_dword v23, v{VP}, {sr(S_WS,4)}, 0 offen sc1'
    for k in range(32):
        wait_upto(POS[f'V{k}'])
        vm.stamp(o, 32 + k) if o.tickst == 1 else None
        e('s_barrier')
        vm.stamp(o, 32 + k) if o.tickst == 2 else None
        if k == flag1_tick(o):
            vm.room(1); e.many(flag(1)); vm.add('f1', 1)
        if o.pf_w and k in PF_TICKS and PF_TICKS.index(k) >= o.pf_wi:
            vm.room(1)
            e(f's_add_u32 s{S_T0}, s{S_KX}, {6 * PF_TICKS.index(k)}')
            e(f's_and_b32 s{S_T2}, s{S_T0}, 3')
            e(f's_lshl_b32 s{S_T2}, s{S_T2}, 4')
            e(f's_lshr_b32 s{S_T0}, s{S_T0}, 2')
            e(f's_add_u32 s{S_T0}, s{S_T0}, s{S_RHO}')
            e(f's_and_b32 s{S_T0}, s{S_T0}, 15')
            e(f's_add_u32 s{S_T0}, s{S_T0}, s{S_T2}')
            e(f's_mul_i32 s{S_T0}, s{S_T0}, {64*1280}')
            e(f's_add_u32 s{S_T0}, s{S_T0}, s{S_WOB}')
            e(f'buffer_load_dword v{VW+1}, v{VW+2}, {sr(S_WO,4)}, s{S_T0} offen {o.wo_flags}')
            vm.add('pft', 1)
        wper = o.wper; ws = int(o.wst[3]) if o.wst else o.w0 - 1 if wper == 3 else o.w0 + 1
        wev = (k - ws) // wper if (k >= ws and (k - ws) % wper == 0 and k <= ws + 8 * wper) else None
        if wev:
            vm.wait(f'w{wev-1}')
            e.many(wo_reads(lambda off, n: hold3(wev - 1, off, n), V_WA, V_WA + 1, 0))
        if o.w3 and k == o.w3k - 1:
            e(f'v_and_b32 v22, 7, v{L}')
            e(f'v_lshlrev_b32 v22, 7, v22')
            e(f'v_readfirstlane_b32 s{S_T0}, v{VP}')
            e(f's_add_u32 s{S_T0}, s{S_T0}, {24*128}')
            e(f'v_add_u32 v22, s{S_T0}, v22')
            vm.room(1); e(ld_own); vm.add('po', 1)
        if o.lb and k == o.tagk + 1:
            e(f's_and_b32 s{S_T0}, s2, 7')
            e(f's_lshl_b32 s{S_T0}, s{S_T0}, 7')
            e(f's_add_u32 s{S_T0}, s{S_T0}, {WS_PROG}')
            e(f'v_and_b32 v33, 31, v{L}')
            e(f'v_lshlrev_b32 v33, 2, v33')
            e(f'v_add_u32 v33, s{S_T0}, v33')
            e(f's_lshr_b32 s{S_T2}, s2, 3')
            e(f's_lshl_b32 s{S_T2}, s{S_T2}, 2')
            e(f's_add_u32 s{S_T0}, s{S_T0}, s{S_T2}')
            e(f'v_mov_b32 v32, s{S_T0}')
            e(f's_mov_b32 s{S_WC}, 0')
            if o.lb_t: e(f's_mov_b32 s{S_KX}, 0')
            if o.don:
                e(f's_cmp_eq_u32 s{S_NT}, 15')
                e(f's_cselect_b32 s{S_KX}, {4 * o.don_lag}, 0')
        if o.lb and o.tagk + 1 <= k <= 28:
            vm.room(1)
            e(f's_add_u32 s{S_T0}, s{S_N}, {4 * k}')
            e(f'v_mov_b32 v35, s{S_T0}')
            e('s_mov_b64 exec, 1')
            e(f'buffer_store_dword v35, v32, {sr(S_WS,4)}, 0 offen {o.lb_st}')
            e('s_mov_b64 exec, -1')
            vm.add('ps', 1)
        if o.lb and vm_pg[0] is not None and vm_pg[0] + 1 == k:
            vm.wait('pg')
            e(f'v_subrev_u32 v34, s{S_N}, v34')
            if o.lb_t:
                e(f'v_cmp_ge_u32 vcc, {4 * (k - 2)}, v34')
                e(f's_bcnt1_i32_b32 s{S_KX}, vcc_lo')
            e(f'v_subrev_u32 v34, {4 * k}, v34')
            if o.don: e(f'v_subrev_u32 v34, s{S_KX}, v34')
            e(f'v_cmp_gt_u32 vcc, 64, v34')
            e(f's_bcnt1_i32_b32 s{S_WC}, vcc_lo')
        if o.r6 and k == o.r6k: own_w(9, 1)
        if k in (o.tagk, o.r1k):
            vm.room(1); e(ld_cnt if k == o.tagk else ld_fl); vm.add('pl', 1)
        if k == 30 and not o.w3:
            tail_setup(e, o)
            vm.room(4 * o.nearly); e.many(e.early); vm.add('early', 4 * o.nearly)
        sh = []
        if o.w3 and o.w3k < k <= o.w3k + 6: sh = [2 * (k - o.w3k - 1), 2 * (k - o.w3k - 1) + 1]
        if o.w3 and k == o.w3k + 7: sh = [12]
        first = POS[f'K{k+1}']
        lk = o.look if o.look_k0 <= k < o.look_k1 else o.look_lo
        if k >= 28: lk = 7 if first + o.look_lo >= POS['V31'] else lk
        lim = min(first + lk, first + C.NR - 1, POS[C.TL])
        if k == 31: lim = POS[C.TL]
        if o.tsched == 1 and k in (29, 30): lim = min(lim, POS['T1'] + (k - 29))
        if o.tsched == 2 and k < 31: lim = min(lim, POS['V31'])
        if o.tsched == 3 and k == 29: lim = min(lim, POS['V31'])
        done_sh = False
        def do_shadow(fill):
            if sh == [12]:
                vm.wait('w12')
                e.many(wo_reads(lambda off, n: vr(32 + off, n), V_WA, V_WA + 1, 0))
                e('s_waitcnt lgkmcnt(0)')
            elif wev: e('s_waitcnt lgkmcnt(0)')
            for c in sh: vm.wait(f'o0_{c}')
            m = []
            for c in sh: m += shadow_mm(c, c == 0)
            gaps(e, m, fill(), per=3)
            for c in sh: T3.free += T3.where[(0, c)]
            vm.room(8); e.many(T3.pump(2))
        while issued < lim:
            issued += 1
            if o.lb and o.tagk + 1 <= k < 27 and issued == lim - 1 + o.lb_pos:
                vm.room(17)
                e(f'buffer_load_dword v34, v33, {sr(S_WS,4)}, 0 offen {o.lb_ld}')
                vm.add('pg', 1); vm_pg[0] = k
            if sh and issued == lim and issue_l(SEQ[issued]):
                def fill():
                    vm.room(16); vm.add(SEQ[issued], 16)
                    return issue_l(SEQ[issued])
                do_shadow(fill); done_sh = True
            elif o.gran < 16 and SEQ[issued][0] in 'KV' and k < o.thr_end and issue_l(SEQ[issued]):
                ins = issue_l(SEQ[issued]); ng = o.gran // 4
                for q in range(0, 4, ng):
                    vm.room(o.gran)
                    e.many(ins[(3 + 6 * q if q else 0):3 + 6 * (q + ng)])
                    vm.add(SEQ[issued] if q + ng == 4 else 'part', o.gran)
                    if q + ng == 4: break
                    if o.lb and o.tagk + 2 <= k:
                        while vm.out() > o.lb_hi: vm.wait(vm.q[0][0])
                        e(f's_cmp_ge_u32 s{S_WC}, {o.lb}')
                        e(f's_cbranch_scc1 L_deep{issued}_{q}')
                        e(f's_waitcnt vmcnt({o.thr})')
                        if o.don:
                            e(f's_cmp_lg_u32 s{S_NT}, 15')
                            e(f's_cbranch_scc1 L_deep{issued}_{q}')
                            e(f's_waitcnt vmcnt({o.don})')
                        e.lab(f'L_deep{issued}_{q}')
                    else:
                        while vm.out() > o.thr: vm.wait(vm.q[0][0])
            else:
                issue(SEQ[issued])
            if o.lb and o.tagk + 2 <= k < o.thr_end:
                while vm.out() > o.lb_hi: vm.wait(vm.q[0][0])
                e(f's_cmp_ge_u32 s{S_WC}, {o.lb}')
                e(f's_cbranch_scc1 L_deep{issued}')
                e(f's_waitcnt vmcnt({o.thr})')
                if o.lb_t:
                    e(f's_cmp_lt_u32 s{S_KX}, {o.lb_t}')
                    e(f's_cbranch_scc1 L_deep{issued}')
                    e(f's_waitcnt vmcnt({o.lb_lo})')
                e.lab(f'L_deep{issued}')
            else:
                while vm.out() > o.thr + (8 if done_sh else 0) and k < o.thr_end: vm.wait(vm.q[0][0])
        if sh and not done_sh: do_shadow(lambda: [])
        if o.w3 and k == o.w3k:
            vm.wait('po')
            e(f's_add_u32 s{S_T3}, s{S_N}, 1')
            poll(e, o, 'r1o', ld_own, ['v_and_b32 v23, -3, v23', f'v_cmp_eq_u32 vcc, s{S_T3}, v23'])
            tail_setup(e, o)
            T3.todo = [(0, c) for c in range(16)]
            vm.room(8); e.many(T3.pump(2))
        if k == o.tagk:
            vm.wait('pl')
            poll(e, o, 'tag', ld_cnt, ['v_cmp_ne_u32 vcc, 0, v23'])
            e(f'v_readfirstlane_b32 s{S_N}, v23')
        if k == o.r1k:
            vm.wait('pl')
            e(f's_add_u32 s{S_T3}, s{S_N}, 1')
            poll(e, o, 'r1', ld_fl, ['v_and_b32 v23, -3, v23', f'v_cmp_eq_u32 vcc, s{S_T3}, v23'])
        if wev is not None:
            e('s_waitcnt lgkmcnt(0)')
            own_w(wev)
    npre = 4 * o.npre
    if o.pre3 == 2:
        vm.room(npre + 1); e.many(e.pre)
    e('s_barrier')
    if o.pre3 == 1: vm.room(npre + 1)
    if o.pwf:
        assert o.pre3 == 1
        e(f'v_mov_b32 v0, s{S_N}')
    else: e.many(flag(3))
    if o.pre3 == 1: e.many(e.pre)
    e(f's_waitcnt vmcnt({npre if o.pre3 == 1 else npre + 1 if o.pre3 == 2 else 1})')
    if o.pre3 == 0: e.many(e.pre)
    vm.q = []

def a_addr(e, VA, VB, xl):
    L = V_LANE
    e(f'v_lshrrev_b32 v{V_T0}, 5, v{L}')
    e(f'v_bfe_u32 v{V_T1}, v{L}, 2, 2')
    e(f'v_lshl_add_u32 v{V_T2}, v{V_T0}, 3, v{V_T1}')
    e(f'v_lshlrev_b32 v{V_T2}, 8, v{V_T2}')
    e(f'v_lshl_add_u32 v{V_T2}, v{V_T1}, 6, v{V_T2}')
    e(f'v_bfe_u32 v{V_T3}, v{L}, 4, 1')
    e(f'v_lshl_add_u32 v{V_T2}, v{V_T3}, 5, v{V_T2}')
    e(f'v_and_b32 v{V_T3}, 1, v{L}')
    e(f'v_lshl_add_u32 v{V_T2}, v{V_T3}, 4, v{V_T2}')
    e(f'v_bfe_u32 v{V_T3}, v{L}, 1, 1')
    e(f'v_lshl_add_u32 v{V_T2}, v{V_T3}, 3, v{V_T2}')
    for t in range(4):
        e(f'v_xor_b32 v{VA+t}, {64*t}, v{V_T2}')
        e(f'v_add_u32 v{VA+t}, {reg_w(0)}, v{VA+t}')
    e(f'v_and_b32 v{V_T1}, 31, v{L}')
    e(f'v_bfe_u32 v{V_T2}, v{L}, 1, 3')
    e(f'v_xor_b32 v{V_T2}, v{V_T2}, v{V_T0}')
    e(f'v_lshlrev_b32 v{V_T2}, 4, v{V_T2}')
    e(f'v_lshl_add_u32 v{V_T2}, v{V_T1}, 7, v{V_T2}')
    if xl is not None:
        e(f's_add_u32 s{S_T0}, s{xl}, {reg_x(0)}')
    for s4 in range(4):
        e(f'v_xor_b32 v{VB+s4}, {32*s4}, v{V_T2}')
        e(f'v_add_u32 v{VB+s4}, s{S_T0}, v{VB+s4}' if xl is not None else f'v_add_u32 v{VB+s4}, {reg_x(0)}, v{VB+s4}')

def a_step(s, VA):
    r = []
    for i in range(8):
        d = reg_w(s + 1) - reg_w(s) if i < 4 else reg_x(s + 1) - reg_x(s)
        r.append(f'v_add_u32 v{VA+i}, {d}, v{VA+i}' if d > 0 else f'v_subrev_u32 v{VA+i}, {-d}, v{VA+i}')
    return r

SCALE = hex(struct.unpack("<I", struct.pack("<f", math.log2(math.e) / math.sqrt(128.0)))[0])
def conv(i, src, dst):
    a = src + 2 * i
    return [f'v_mul_f32 v{a}, s{S_C}, v{a}', f'v_mul_f32 v{a+1}, s{S_C}, v{a+1}', f'v_cvt_pk_bf16_f32 v{dst+i}, v{a}, v{a+1}']

def phase_a(e, o):
    L = V_LANE
    VA, VB = V_Q, V_Q + 4
    AF = [V_SA, V_SB]; BF = [V_P, V_TMP]; ACC = [128, 192]
    e(f'v_lshrrev_b32 v{V_T0}, 3, v{L}')
    e(f'v_mul_u32_u24 v{V_T0}, 1280, v{V_T0}')
    e(f'v_lshrrev_b32 v{V_T1}, 4, v{L}')
    e(f'v_and_b32 v{V_T2}, 7, v{L}')
    e(f'v_xor_b32 v{V_T1}, v{V_T1}, v{V_T2}')
    for i in range(4):
        e(f'v_xor_b32 v{V_T2}, {4*(i&1)}, v{V_T1}')
        e(f'v_lshl_add_u32 v{V_DMA+i}, v{V_T2}, 4, v{V_T0}')
        if i: e(f'v_add_u32 v{V_DMA+i}, {(10240-1024)*i}, v{V_DMA+i}')
    e(f's_mul_i32 s{S_XB}, s{S_BL}, 3')
    e(f's_add_u32 s{S_XB}, s{S_XB}, s{S_WAVE}')
    e(f's_mul_i32 s{S_OB}, s{S_BR}, 24')
    e(f's_add_u32 s{S_OB}, s{S_OB}, s{S_XB}')
    e(f's_mul_i32 s{S_XB}, s{S_XB}, 40960')
    def xload(s, it):
        r = []
        if it == 0:
            r.append(f's_lshl_b32 s{S_T0}, s{S_KX}, 7')
            r.append(f's_add_u32 s{S_T0}, s{S_T0}, s{S_XB}')
        r.append(f's_add_u32 m0, s{S_XL}, {reg_x(s) + 4096*it}')
        r.append(f's_add_u32 s{S_T1}, s{S_T0}, {491520*it}')
        for i in range(4):
            ld = f'buffer_load_dwordx4 v{V_DMA+i}, {sr(S_X,4)}, s{S_T1} offen offset:{1024*i} {o.w_flags} lds'
            if o.dq2 and it == 1: ld = f's_mov_b64 exec, 1\n    buffer_load_dwordx4 v{V_DMA}, {sr(S_X,4)}, s{S_T1} offen lds\n    s_mov_b64 exec, -1'
            r.append(ld)
        if it == 1:
            if s + 1 < o.nun: r.append(f's_mov_b32 s{S_KX}, {s + 1}')
            elif s + 1 == o.nun: r.append(f's_mov_b32 s{S_KX}, s{S_KR}')
            else:
                r.append(f's_add_u32 s{S_KX}, s{S_KX}, 1')
                r.append(f's_cmp_eq_u32 s{S_KX}, 10')
                r.append(f's_cselect_b32 s{S_KX}, {o.nun}, s{S_KX}')
        return r
    if o.nun:
        for _ in range(2):
            e(f's_cmp_ge_u32 s{S_KX}, {10 - o.nun}')
            e(f's_cselect_b32 s{S_T0}, {10 - o.nun}, 0')
            e(f's_sub_u32 s{S_KX}, s{S_KX}, s{S_T0}')
        e(f's_add_u32 s{S_KR}, s{S_KX}, {o.nun}')
        e(f's_mov_b32 s{S_KX}, 0')
    VWQ = V_Q + 8
    e(f'v_lshrrev_b32 v{V_T0}, 4, v{L}')
    e(f'v_and_b32 v{V_T1}, 15, v{L}')
    e(f'v_lshlrev_b32 v{V_T3}, 2, v{V_T0}')
    e(f'v_xor_b32 v{V_T3}, v{V_T3}, v{V_T1}')
    e(f'v_lshlrev_b32 v{V_T2}, 13, v{V_T0}')
    e(f'v_lshl_add_u32 v{VWQ}, v{V_T3}, 4, v{V_T2}')
    for i in range(1, 4): e(f'v_add_u32 v{VWQ+i}, {(32768-1024)*i}, v{VWQ}')
    e(f's_mul_i32 s{S_KVB}, s{S_WAVE}, {5*32768}')
    e(f's_lshl_b32 s{S_T0}, s{S_H}, 8')
    e(f's_add_u32 s{S_KVB}, s{S_KVB}, s{S_T0}')
    e(f's_mul_i32 s{S_FL}, s{S_WAVE}, {5*1024}')
    if o.nodup:
        e(f's_mul_i32 s{S_N}, s{S_WAVE}, {5*32768}')
        e(f's_sub_u32 s{S_N}, {15*32768}, s{S_N}')
        e(f's_mov_b64 {sr(S_SAVE,2)}, 0xffffff')
        e(f's_cmp_eq_u32 s{S_WAVE}, 1')
        e(f's_cselect_b32 s{S_SAVE}, 0xff000000, s{S_SAVE}')
        e(f's_cselect_b32 s{S_SAVE+1}, 0xfff, s{S_SAVE+1}')
        e(f's_cmp_eq_u32 s{S_WAVE}, 2')
        e(f's_cselect_b32 s{S_SAVE}, 0, s{S_SAVE}')
        e(f's_cselect_b32 s{S_SAVE+1}, 0xfffff000, s{S_SAVE+1}')
    def wqload(s):
        r = [f's_lshl_b32 s{S_T2}, s{S_KX}, 19', f's_add_u32 s{S_T2}, s{S_T2}, s{S_KVB}']
        for t in range(5 if o.nodup else 6):
            if t % 4 == 0:
                r.append(f's_add_u32 m0, s{S_FL}, {reg_w(s) + 1024*t}')
                r.append(f's_add_u32 s{S_T1}, s{S_T2}, {32768*t}')
            r.append(f'buffer_load_dwordx4 v{VWQ+(t&3)}, {sr(S_WQ,4)}, s{S_T1} offen offset:{1024*(t&3)} {o.w_flags} lds')
        if o.nodup:
            r.append(f's_mov_b32 m0, {reg_w(s) + 15*1024}')
            r.append(f's_add_u32 s{S_T1}, s{S_T2}, s{S_N}')
            r.append(f's_mov_b64 exec, {sr(S_SAVE,2)}\n    buffer_load_dwordx4 v{VWQ}, {sr(S_WQ,4)}, s{S_T1} offen {o.w_flags} lds\n    s_mov_b64 exec, -1')
        return r
    srds(e, o)
    e.many(wqload(0)); e.many(xload(0, 0)); e.many(xload(0, 1))
    e.first_loads = len(e.L)
    lazy(e, o, 2)
    no_task_wo(e)
    e(f's_lshl_b32 s{S_OB}, s{S_OB}, 5')
    e(f's_add_u32 s{S_OB}, s{S_OB}, s{S_H}')
    e(f's_lshl_b32 s{S_OB}, s{S_OB}, 13')
    a_addr(e, VA, VB, S_XL)
    e(f'v_and_b32 v{V_T2}, 15, v{L}')
    e(f'v_xor_b32 v{V_T2}, v{V_T2}, v{V_T0}')
    e(f'v_lshlrev_b32 v{V_T2}, 4, v{V_T2}')
    e(f'v_lshl_add_u32 v{V_T2}, v{V_T1}, 8, v{V_T2}')
    for s in range(8):
        e(f'v_xor_b32 v{V_KA+s}, {32*s}, v{V_T2}')
        e(f'v_add_u32 v{V_KA+s}, {slot_addr("K0")}, v{V_KA+s}')
    e(f'v_bfe_u32 v{V_T1}, v{L}, 2, 2')
    e(f'v_lshl_add_u32 v{V_T2}, v{V_T0}, 2, v{V_T1}')
    e(f'v_lshlrev_b32 v{V_T2}, 8, v{V_T2}')
    e(f'v_lshl_add_u32 v{V_T2}, v{V_T1}, 6, v{V_T2}')
    e(f'v_bfe_u32 v{V_T3}, v{L}, 4, 1')
    e(f'v_lshl_add_u32 v{V_T2}, v{V_T3}, 5, v{V_T2}')
    e(f'v_and_b32 v{V_T3}, 3, v{L}')
    e(f'v_lshl_add_u32 v{V_T2}, v{V_T3}, 3, v{V_T2}')
    e(f'v_add_u32 v{V_T2}, {slot_addr("V0")}, v{V_T2}')
    for t in range(4): e(f'v_xor_b32 v{V_VA+t}, {64*t}, v{V_T2}')
    e(f'v_lshlrev_b32 v{V_OST}, 4, v{L}')
    e(f'v_add_u32 v{V_OST+3}, s{S_XL}, v{V_OST}')
    wo_lane_addr(e, V_WA)
    e(f'v_add_u32 v{V_WA}, s{S_XL}, v{V_WA}')
    if C.M16:
        e(f'v_and_b32 v{V_T0}, 15, v{L}')
        e(f'v_lshlrev_b32 v{V_WA+1}, 4, v{V_T0}')
        e(f'v_bfe_u32 v{V_T0}, v{L}, 4, 1')
        e(f'v_lshl_add_u32 v{V_WA+1}, v{V_T0}, 10, v{V_WA+1}')
        e(f'v_lshrrev_b32 v{V_T0}, 5, v{L}')
        e(f'v_lshl_add_u32 v{V_WA+1}, v{V_T0}, 8, v{V_WA+1}')
    else:
        e(f'v_xor_b32 v{V_WA+1}, 64, v{V_WA}')
    e(f's_mul_i32 s{S_WQB}, s{S_WAVE}, {1024*1280}')
    e(f's_add_u32 s{S_WQB}, s{S_WQB}, s{S_WOB}')
    e(f's_mov_b32 s{S_WC}, s{S_RHO}')
    if o.wst:
        e(f's_mov_b32 s{S_WN}, {int(o.wst[0]) + 1}')
        for w in (1, 2):
            e(f's_cmp_eq_u32 s{S_WAVE}, {w}')
            e(f's_cselect_b32 s{S_WN}, {int(o.wst[w]) + 1}, s{S_WN}')
    else:
        e(f's_add_u32 s{S_WN}, s{S_WAVE}, {o.w0 + 1}')
    e(f's_mov_b32 s{S_EV}, 0')
    for i in range(64): e(f'v_accvgpr_write_b32 a{i}, 0')
    for i in range(16): e(f'v_mov_b32 v{V_NEGM+i}, 0')
    for i in range(4): e(f'v_mov_b32 v{V_L+i}, 0')
    e(f's_mov_b32 s{S_C}, {SCALE}')
    e(f's_mov_b32 s{S_THR}, 0xff800000')
    e(f's_mov_b32 s{S_FLOOR}, 0xff800000')
    e(f's_mov_b32 s{S_TICK}, 0')
    e(f's_mov_b32 s{S_KOFF}, {slot("K1")*SLOT}')
    e(f's_mov_b32 s{S_VOFF}, {slot("V0")*SLOT}')
    nst = 0
    lazy(e, o, 5)
    e.many(wqload(1)); e.many(xload(1, 0)); e.many(xload(1, 1))
    lazy(e, o, 6)
    def reads(s4, buf):
        r = [f'ds_read_b128 {vr(BF[buf]+4*it,4)}, v{VB+s4} offset:{4096*it}' for it in range(1 if o.dq2 else 2)]
        for t in range(4):
            for u in range(2):
                r.append(f'ds_read_b64_tr_b16 {vr(AF[buf]+4*t+2*u,2)}, v{VA+t} offset:{(16*s4+4*u)*256}')
        return r
    def mf(buf, first):
        r = []
        for t in range(4):
            for it in range(2):
                if it == 1 and (t >= 2 or o.dq2): continue
                d = vr(ACC[it] + 16 * t, 16)
                r.append(mfma(d, vr(AF[buf] + 4 * t, 4), vr(BF[buf] + 4 * it, 4), '0' if first else d))
        return r
    e(f's_waitcnt vmcnt({14 + nst})')
    lazy(e, o, 7)
    e('s_barrier')
    lazy(e, o, 8)
    dmark(e, o, 0)
    e.many(reads(0, 0))
    e.skip = o.a_skip
    for s in range(10):
        for s4 in range(4):
            step = 4 * s + s4; buf = step & 1
            if step in (8, 16, 24, 32, 39): lazy(e, o, 9 + (8, 16, 24, 32, 39).index(step))
            if o.stamps and step in (8, 32): e(f's_memtime s[{LAZY[3 if step == 8 else 4]}:{LAZY[3 if step == 8 else 4]+1}]')
            m = mf(buf, step == 0)
            late = []
            e('s_waitcnt lgkmcnt(0)')
            if s4 == 3:
                if s < 9:
                    e(f's_waitcnt vmcnt({(14 if s + 2 <= 9 else 0) + (nst if s < 2 else 0)})')
                e('s_barrier')
                if s + 3 <= 9: late = wqload(s + 3)
            if s4 == 0 and s + 2 <= 9: late = (wqload(2) if s == 0 else []) + xload(s + 2, 0)
            if s4 == 1 and s + 2 <= 9: late = xload(s + 2, 1)
            if s4 == 2 and s < 9: late = a_step(s, VA)
            front = reads((s4 + 1) & 3, buf ^ 1) if step < 39 else []
            gaps(e, m, front, late, per=(5 if o.dq2 else o.aper), late_from=(3 if o.aper == 3 and s4 == 2 else 2 if o.aper >= 4 else 1))
    e.skip = ''
    wo_voffs(e, V_DMA)
    e('s_nop 4')
    for i in range(16): e.many(conv(i, ACC[0], V_Q))
    e.many(k_reads(0))
    for i in range(16, 32): e.many(conv(i, ACC[0], V_Q))

def k_reads(half):
    return [f'ds_read_b128 {vr(V_KF+4*s,4)}, v{V_KA+s} offset:{8192*half}' for s in range(8)]
def v_reads(half):
    r = []
    for jj in range(2):
        for t in range(4):
            for u in range(2):
                r.append(f'ds_read_b64_tr_b16 {vr(V_VF+16*jj+4*t+2*u,2)}, v{V_VA+t} offset:{(32*half+16*jj+8*u)*256}')
    return r
def qk(S):
    return [mfma(vr(S, 16), vr(V_KF + 4 * s, 4), vr(V_Q + 4 * s, 4), vr(V_NEGM, 16) if s == 0 else vr(S, 16)) for s in range(8)]
def pv():
    return [mfma(ar(16 * t, 16), vr(V_VF + 16 * jj + 4 * t, 4), vr(V_P + 4 * jj, 4), ar(16 * t, 16)) for jj in range(2) for t in range(4)]
def maxes(S):
    r = [f'v_max3_f32 v{V_MX}, v{S}, v{S+1}, v{S+2}', f'v_max3_f32 v{V_D}, v{S+3}, v{S+4}, v{S+5}']
    r += [f'v_max3_f32 v{V_MX}, v{V_MX}, v{S+6}, v{S+7}', f'v_max3_f32 v{V_D}, v{V_D}, v{S+8}, v{S+9}']
    r += [f'v_max3_f32 v{V_MX}, v{V_MX}, v{S+10}, v{S+11}', f'v_max3_f32 v{V_D}, v{V_D}, v{S+12}, v{S+13}']
    r += [f'v_max3_f32 v{V_MX}, v{V_MX}, v{S+14}, v{S+15}', f'v_max_f32 v{V_MX}, v{V_MX}, v{V_D}']
    r += [f'v_cmp_lt_f32 vcc, s{S_THR}, v{V_MX}']
    return r

def half_tick(e, Snew, Sold, vhalf, khalf, extra_v=(), extra_k=(), extra_8=()):
    ex = lambda i: f'v_exp_f32 v{Sold+i}, v{Sold+i}'
    cv = lambda i: f'v_cvt_pk_bf16_f32 v{V_P+i}, v{Sold+2*i}, v{Sold+2*i+1}'
    ad = lambda i: f'v_add_f32 v{V_L+(i&3)}, v{V_L+(i&3)}, v{Sold+i}'
    m = qk(Snew) + pv()
    m[8] = ['s_waitcnt lgkmcnt(0)', m[8]]
    if e.mix:
        vr_ = v_reads(vhalf); fill = []
        for i in range(8):
            fill += vr_[:e.mix] + [ex(i)]; vr_ = vr_[e.mix:]
        fill += vr_ + list(extra_v) + [cv(i) for i in range(4)] + [ex(i) for i in range(8, 12)]
    else:
        fill = v_reads(vhalf) + [ex(i) for i in range(8)] + list(extra_v) + [cv(i) for i in range(4)] + [ex(i) for i in range(8, 12)]
    fill += [('M', 8), ('A', 8)] + (k_reads(khalf) if khalf is not None else []) + [ex(i) for i in range(12, 16)] + [ad(0)]
    fill += [cv(i) for i in range(4, 8)] + [ad(1), ad(2)]
    rest = [ad(i) for i in range(3, 16)]
    x8 = list(extra_8)
    fill += [('M', 12)]
    while rest or x8:
        if rest: fill.append(rest.pop(0))
        fill += x8[:3]; x8 = x8[3:]
    fill += list(extra_k) + maxes(Snew)
    e('s_waitcnt lgkmcnt(0)')
    interleave(e, m, fill)

def last_half(e, Sold, extra=()):
    ex = lambda i: f'v_exp_f32 v{Sold+i}, v{Sold+i}'
    cv = lambda i: f'v_cvt_pk_bf16_f32 v{V_P+i}, v{Sold+2*i}, v{Sold+2*i+1}'
    ad = lambda i: f'v_add_f32 v{V_L+(i&3)}, v{V_L+(i&3)}, v{Sold+i}'
    e.many(v_reads(1))
    e.many(extra)
    e.many([ex(i) for i in range(8)] + [cv(i) for i in range(4)] + [ex(8), ex(9)])
    e('s_waitcnt lgkmcnt(0)')
    fill = [ex(i) for i in range(10, 16)] + [ad(0)] + [cv(i) for i in range(4, 8)] + [ad(1), ad(2), ('M', 4)] + [ad(i) for i in range(3, 16)]
    interleave(e, pv(), fill)

def rare(e, S, back):
    e('s_nop 7')
    e(f'v_mov_b32 v{V_T0}, v{V_MX}')
    e('s_nop 1')
    e(f'v_permlane32_swap_b32 v{V_T0}, v{V_MX}')
    e('s_nop 1')
    e(f'v_max_f32 v{V_D}, v{V_T0}, v{V_MX}')
    e(f'v_max_f32 v{V_D}, s{S_FLOOR}, v{V_D}')
    for i in range(16): e(f'v_sub_f32 v{S+i}, v{S+i}, v{V_D}')
    for i in range(16): e(f'v_sub_f32 v{V_NEGM+i}, v{V_NEGM+i}, v{V_D}')
    e(f's_cmp_lg_u32 s{S_FLOOR}, 0')
    e(f's_mov_b32 s{S_THR}, 0x41000000')
    e(f's_mov_b32 s{S_FLOOR}, 0')
    e(f's_cbranch_scc1 {back}')
    e(f'v_sub_f32 v{V_T0}, 0, v{V_D}')
    e(f'v_exp_f32 v{V_T0}, v{V_T0}')
    e('s_nop 0')
    for i in range(4): e(f'v_mul_f32 v{V_L+i}, v{V_L+i}, v{V_T0}')
    for i in range(0, 64, 4):
        for j in range(4): e(f'v_accvgpr_read_b32 v{V_TMP+j}, a{i+j}')
        for j in range(4): e(f'v_mul_f32 v{V_TMP+j}, v{V_TMP+j}, v{V_T0}')
        for j in range(4): e(f'v_accvgpr_write_b32 a{i+j}, v{V_TMP+j}')
    e('s_nop 1')
    e(f's_branch {back}')

def epilogue(e, o):
    e(f'v_add_f32 v{V_L}, v{V_L}, v{V_L+1}')
    e(f'v_add_f32 v{V_L+2}, v{V_L+2}, v{V_L+3}')
    e(f'v_add_f32 v{V_L}, v{V_L}, v{V_L+2}')
    e(f'v_mov_b32 v{V_T0}, v{V_L}')
    e('s_nop 1')
    e(f'v_permlane32_swap_b32 v{V_T0}, v{V_L}')
    e('s_nop 1')
    e(f'v_add_f32 v{V_L}, v{V_L}, v{V_T0}')
    e(f'v_rcp_f32 v{V_T0}, v{V_L}')
    e('s_nop 4')
    for f in range(8):
        t = V_VF + 8 * (f & 3)
        for j in range(8): e(f'v_accvgpr_read_b32 v{t+j}, a{8*f+j}')
        if o.pk:
            for j in range(0, 8, 2): e(f'v_pk_mul_f32 {vr(t+j,2)}, {vr(t+j,2)}, {vr(V_T0,2)} op_sel_hi:[1,0]')
        else:
            for j in range(8): e(f'v_mul_f32 v{t+j}, v{t+j}, v{V_T0}')
        d = V_TMP + 4 * (f & 1)
        for j in range(4): e(f'v_cvt_pk_bf16_f32 v{d+j}, v{t+2*j}, v{t+2*j+1}')
        if f == 4: e(f's_add_u32 s{S_OB}, s{S_OB}, 4096')
        if C.M16: e(f'buffer_store_dwordx4 {vr(d,4)}, v{V_WA+1}, {sr(S_WS,4)}, s{S_OB} offen offset:{2048*((f>>1)&1) + 512*(f&1)} {o.ost_flags}')
        else: e(f'buffer_store_dwordx4 {vr(d,4)}, v{V_OST}, {sr(S_WS,4)}, s{S_OB} offen offset:{1024*(f&3)} {o.ost_flags}')

def w_snippets(e, o, ret):
    e('s_waitcnt vmcnt(0)')
    def tree(lo, n):
        if n == 1:
            if lo == 0:
                for f in range(4): e(f'ds_read_b128 {vr(224+4*f,4)}, v{V_OST+3} offset:{1024*f}')
                if o.t15:
                    for i in range(16): e.many(conv(i, V_Q2, V_Q2))
            else:
                e.many(wo_reads(lambda off, nn: hold(lo - 1, off, nn), V_WA, V_WA + 1, 0))
                if o.pwf and lo == 2:
                    e('v_mov_b32 v0, 0')
                    e(f'global_load_dword v0, v0, {sr(S_DBG,2)} sc1')
                if o.r6 and lo == o.r6e: e.many(wo_dma(o, 9, f's{S_XL}', 32768, f's{S_WQB}', V_DMA))
            e('s_branch L_sn_done')
            return
        h = (n + 1) // 2
        e(f's_cmp_ge_u32 s{S_EV}, {lo+h}')
        e(f's_cbranch_scc1 L_sn_{lo+h}')
        tree(lo, h)
        e.lab(f'L_sn_{lo+h}')
        tree(lo + h, n - h)
    tree(0, 9)
    e.lab('L_sn_done')
    e(f's_add_u32 s{S_EV}, s{S_EV}, 1')
    e(f's_cmp_eq_u32 s{S_EV}, 9')
    e(f's_cselect_b32 s{S_WN}, 64, {o.wper}')
    if o.t15:
        e(f's_cmp_eq_u32 s{S_TICK}, {16 - o.wper}')
        e(f's_cselect_b32 s{S_WN}, {o.wper + 1}, s{S_WN}')
    e('s_waitcnt lgkmcnt(0)')
    e.many(wo_dma(o, 0, f's{S_XL}', 0, f's{S_WQB}', V_DMA, dyn=True))
    e(f's_branch {ret}')

def phase_b(e, o):
    lazy(e, o, 14)
    dmark(e, o, 1)
    lazy_dump(e, o, range(15))
    stamp(e, o, 1)
    e('s_waitcnt lgkmcnt(0)')
    e.many(qk(V_SA))
    e.many(k_reads(1))
    for s in range(8): e(f'v_add_u32 v{V_KA+s}, {SLOT}, v{V_KA+s}')
    e('s_nop 3')
    e.many(maxes(V_SA))
    e('s_branch L_rare_a')
    def adv(soff, tmp, base, n):
        r = [f's_cmp_ge_u32 s{soff}, {(C.NR-2)*SLOT}', f's_cselect_b32 s{S_T3}, {C.NR*SLOT}, 0',
             f's_sub_u32 s{S_T3}, {2*SLOT}, s{S_T3}', f's_add_u32 s{soff}, s{soff}, s{S_T3}']
        r += [f'v_add_u32 v{base+i}, s{S_T3}, v{base+i}' for i in range(n)]
        return r
    align(e, o.al_t)
    e.lab('L_tick')
    e('s_waitcnt lgkmcnt(0)')
    e('s_barrier')
    e(f's_cmp_eq_u32 s{S_TICK}, 31')
    e('s_cbranch_scc1 L_last')
    half_tick(e, V_SB, V_SA, 0, 0)
    e('s_cbranch_vccnz L_rare_b')
    e.lab('L_back_b')
    e(f's_cmp_eq_u32 s{S_TICK}, 15')
    e('s_cbranch_scc1 L_switch')
    e.lab('L_back_sw')
    half_tick(e, V_SA, V_SB, 1, 1, extra_v=adv(S_VOFF, S_T0, V_VA, 4), extra_k=adv(S_KOFF, S_T1, V_KA, 8))
    e(f's_add_u32 s{S_TICK}, s{S_TICK}, 1')
    e(f's_sub_u32 s{S_WN}, s{S_WN}, 1')
    e(f's_cmp_eq_u32 s{S_WN}, 0')
    e('s_cbranch_scc1 L_snip')
    e.lab('L_snip_ret')
    e(f's_cmp_eq_u32 s{S_TICK}, 16')
    e('s_cbranch_scc1 L_epi1')
    e('s_cbranch_vccz L_tick')
    e.lab('L_rare_a')
    rare(e, V_SA, 'L_tick')
    e.lab('L_snip')
    w_snippets(e, o, 'L_snip_ret')
    e.lab('L_rare_b')
    rare(e, V_SB, 'L_back_b')
    e.lab('L_switch')
    for i in range(16): e(f'v_mov_b32 v{V_Q+16+i}, v{224+i}')
    for i in range(16): e.many([f'v_mov_b32 v{V_Q+i}, v{V_Q2+i}'] if o.t15 else conv(i, V_Q2, V_Q))
    for i in range(16): e(f'v_mov_b32 v{V_NEGM+i}, 0')
    e('s_nop 1')
    e('s_branch L_back_sw')
    e.lab('L_epi1')
    epilogue(e, o)
    e(f's_add_u32 s{S_OB}, s{S_OB}, {RND - 4096}')
    if o.t15:
        for t in range(4): e(mfma(ar(16 * t, 16), vr(V_NEGM, 4), vr(V_NEGM, 4), '0'))
    else:
        for i in range(64): e(f'v_accvgpr_write_b32 a{i}, 0')
    for i in range(4): e(f'v_mov_b32 v{V_L+i}, 0')
    e(f's_mov_b32 s{S_FLOOR}, 0xff800000')
    stamp(e, o, 2)
    dmark(e, o, 2)
    e('s_branch L_rare_a')
    e.lab('L_rare_l')
    rare(e, V_SB, 'L_back_l')
    e.lab('L_last')
    T = tail_pre(e, o)
    e.early = T.pump(min(o.nearly, 4))
    half_tick(e, V_SB, V_SA, 0, None, extra_8=e.early)
    e('s_cbranch_vccnz L_rare_l')
    e.lab('L_back_l')
    x = T.pump(max(o.nearly - 4, 0))
    e.early += x
    last_half(e, V_SB, x)
    epilogue(e, o)
    return T

def tail_setup(e, o):
    e(f's_mul_i32 s{S_O1}, s{S_BR}, 24')
    e(f's_add_u32 s{S_O1}, s{S_O1}, s{S_QT}')
    e(f's_lshl_b32 s{S_O1}, s{S_O1}, 2')
    e(f's_add_u32 s{S_O1}, s{S_O1}, s{S_WAVE}')
    e(f's_lshl_b32 s{S_O1}, s{S_O1}, 16')

POOL = list(range(96, 160, 4)) + [32, 36, 40, 44, 16, 20, 24, 80, 84] + list(range(160, 192, 4)) + [88, 92]
ORDER1 = [0, 1, 2, 8, 3, 9, 4, 10, 5, 11, 6, 12, 7]
ORDER2 = [8, 0, 9, 1, 10, 2, 11, 3, 12, 4, 13, 14, 15, 5, 6, 7]

class Tail:
    def __init__(self, e, o):
        self.e, self.o = e, o
        self.vm = Vm(e)
        self.free = list(POOL)
        self.where = {}
        self.todo = []
    def oload(self, rnd, c):
        e = self.e
        regs = [self.free.pop(0) for _ in range(4)]
        self.where[(rnd, c)] = regs
        r = [f's_add_u32 s{S_T1}, s{S_RHO}, {c}', f's_and_b32 s{S_T1}, s{S_T1}, 15', f's_lshl_b32 s{S_T1}, s{S_T1}, 12',
             f's_add_u32 s{S_T1}, s{S_T1}, s{S_O1}']
        if rnd and not self.o.t_o1: r.append(f's_add_u32 s{S_T1}, s{S_T1}, {RND}')
        if rnd and self.o.t_noo: return []
        if not rnd and self.o.t_no1: return []
        for s4 in range(4):
            r.append(f'buffer_load_dwordx4 {reg4(regs[s4])}, v{V_OST}, {sr(S_WS,4)}, s{S_T1} offen offset:{1024*s4} {self.o.old_flags}')
        self.vm.add(f'o{rnd}_{c}', 4)
        return r
    def pump(self, lim=99):
        r = []
        while self.todo and len(self.free) >= 4 and self.vm.out() + 4 <= self.o.maxout and lim > 0:
            lim -= 1
            r += self.oload(*self.todo.pop(0))
        return r

def tail_pre(e, o):
    T = Tail(e, o)
    tail_setup(e, o)
    T.todo = [(0, c) for c in ORDER1]
    return T

def tail(e, o, T, w3=False):
    L = V_LANE
    vm = T.vm
    sfx = '3' if w3 else ''
    RA = 6
    TEMP = 48
    e(f's_cmp_eq_u32 s{S_NT}, 15')
    e('s_cbranch_scc1 L_exit')
    e(f's_mul_i32 s{S_WQB}, s{S_WAVE}, {1024*1280}')
    e(f's_add_u32 s{S_WQB}, s{S_WQB}, s{S_WOB}')
    if w3:
        T.free += [12, 16, 20, 24]
        e('s_barrier')
    e.many(T.pump())
    if not w3:
        vm.room(8)
        e.many(wo_dma(o, 12, f's{S_XL}', C.PIECE[12] * 32768, f's{S_WQB}', V_DMA))
        vm.add('late', 8)
    for b in range(3):
        e(f'v_add_u32 v{RA+2*b}, {65536*b}, v{V_WA}')
        if not C.M16: e(f'v_add_u32 v{RA+2*b+1}, {65536*b}, v{V_WA+1}')
    if o.pwf:
        e(f's_mul_i32 s{S_T0}, s{S_BR}, 12')
        e(f's_add_u32 s{S_T0}, s{S_T0}, s{S_QT}')
    else:
        e(f's_lshl_b32 s{S_T0}, s{S_BR}, 2')
        e(f's_add_u32 s{S_T0}, s{S_T0}, s{S_QB}')
    e(f's_lshl_b32 s{S_T0}, s{S_T0}, 2')
    e(f's_add_u32 s{S_T0}, s{S_T0}, s{S_WAVE}')
    e(f's_lshl_b32 s{S_T0}, s{S_T0}, 10')
    e(f's_add_u32 s{S_T0}, s{S_T0}, {WS_FLAG2 if o.pwf else WS_FLAGS}')
    e(f'v_and_b32 v31, 7, v{L}')
    e(f'v_lshlrev_b32 v31, 7, v31')
    e(f'v_add_u32 v31, s{S_T0}, v31')
    if not o.pwf: e('v_mov_b32 v0, 0')
    piece = C.PIECE
    tmp_of = {}
    def rd(c, dstf):
        j = piece[c]
        return wo_reads(dstf, RA + 2 * (j >> 1), RA + 2 * (j >> 1) + 1, 32768 * (j & 1), tmp=(RA + 1, RA + 3, RA + 5))
    def afrag(c):
        if c < 8: return lambda off, n: hold(c, off, n)
        if c >= 13: return lambda off, n: hold(c - 13, off, n)
        return lambda off, n: vr(TEMP + off, n)
    first = {0: True, 1: True}
    def mms(c, rnds):
        m = []
        if C.M16:
            for F in range(2):
                for rnd in rnds:
                    for n in range(4):
                        for qh in range(2):
                            d = ar(32 * rnd + 8 * n + 4 * qh, 4)
                            m.append(f'v_mfma_f32_16x16x32_bf16 {d}, {afrag(c)(16 * F + 4 * n, 4)}, {reg4(T.where[(rnd, c)][2 * F + qh])}, ' + ('0' if (first[rnd] and F == 0) else d))
            for rnd in rnds: first[rnd] = False
            return m
        for s4 in range(4):
            for rnd in rnds:
                for nt in range(2):
                    d = ar(32 * rnd + 16 * nt, 16)
                    m.append(mfma(d, afrag(c)(8 * s4 + 4 * nt, 4), reg4(T.where[(rnd, c)][s4]), '0' if (first[rnd] and s4 == 0) else d))
        for rnd in rnds: first[rnd] = False
        return m
    def wdma(c):
        if o.t_now: return []
        vm.add(f'w{c}', 8)
        return wo_dma(o, c, f's{S_XL}', 32768 * piece[c], f's{S_WQB}', V_DMA)
    ld_fl = f'buffer_load_dword v{V_T2}, v31, {sr(S_WS,4)}, 0 offen sc1'
    WA, RDA, VOUT = 48, 56, 60
    S_OO = S_KOFF
    fin = [f'v_and_b32 v{V_T0}, 31, v{L}', f'v_lshrrev_b32 v{V_T1}, 5, v{L}', f'v_and_b32 v{V_T3}, 15, v{L}',
           f'v_xor_b32 v{V_T1}, v{V_T1}, v{V_T3}', f'v_lshlrev_b32 v{V_T1}, 4, v{V_T1}',
           f'v_lshl_add_u32 v{V_T0}, v{V_T0}, 8, v{V_T1}', f's_add_u32 s{S_T3}, s{S_XL}, {C.SCR*32768}',
           f'v_add_u32 v{V_T0}, s{S_T3}, v{V_T0}']
    fin += [f'v_xor_b32 v{WA+k}, {32*k}, v{V_T0}' for k in range(8)]
    if C.M16:
        fin = [f'v_and_b32 v{V_T0}, 15, v{L}', f'v_lshrrev_b32 v{V_T1}, 4, v{L}', f'v_xor_b32 v{V_T1}, v{V_T1}, v{V_T0}',
               f'v_lshlrev_b32 v{V_T1}, 4, v{V_T1}', f'v_lshl_add_u32 v{V_T0}, v{V_T0}, 8, v{V_T1}',
               f's_add_u32 s{S_T3}, s{S_XL}, {C.SCR*32768}', f'v_add_u32 v{V_T0}, s{S_T3}, v{V_T0}']
        fin += [f'v_xor_b32 v{WA+k}, {64*k}, v{V_T0}' for k in range(4)]
    fin2 = [f's_lshr_b32 s{S_VOFF}, s{S_WAVE}, 1', f's_and_b32 s{S_THR}, s{S_WAVE}, 1',
            f's_lshl_b32 s{S_T2}, s{S_VOFF}, 15', f's_lshl_b32 s{S_T3}, s{S_THR}, 12',
            f's_add_u32 s{S_T2}, s{S_T2}, s{S_T3}', f's_add_u32 s{S_T2}, s{S_T2}, {C.SCR*32768}',
            f'v_lshrrev_b32 v{V_T1}, 3, v{L}', f'v_and_b32 v{V_T3}, 7, v{L}', f'v_lshlrev_b32 v{V_T0}, 1, v{V_T3}',
            f'v_xor_b32 v{V_T0}, v{V_T0}, v{V_T1}', f'v_lshlrev_b32 v{V_T0}, 4, v{V_T0}',
            f'v_lshl_add_u32 v{V_T0}, v{V_T1}, 8, v{V_T0}', f'v_add_u32 v{RDA}, s{S_T2}, v{V_T0}',
            f'v_xor_b32 v{RDA+1}, 16, v{RDA}', f'v_xor_b32 v{RDA+2}, {2048+128}, v{RDA}', f'v_xor_b32 v{RDA+3}, 16, v{RDA+2}',
            f's_lshl_b32 s{S_OO}, s{S_QT}, 5', f's_mul_i32 s{S_VOFF}, s{S_VOFF}, 384', f's_add_u32 s{S_OO}, s{S_OO}, s{S_VOFF}',
            f's_lshl_b32 s{S_THR}, s{S_THR}, 4', f's_add_u32 s{S_OO}, s{S_OO}, s{S_THR}', f's_mul_i32 s{S_OO}, s{S_OO}, 2560',
            f's_mul_i32 s{S_T3}, s{S_BR}, 1280', f's_add_u32 s{S_OO}, s{S_OO}, s{S_T3}', f's_add_u32 s{S_OO}, s{S_OO}, s{S_WOB}',
            f'v_mul_u32_u24 v{V_T1}, 2560, v{V_T1}', f'v_lshl_add_u32 v{VOUT}, v{V_T3}, 4, v{V_T1}']
    def pwrite(rnd):
        if C.M16:
            return [f'ds_write_b128 v{WA+n}, {ar(32*rnd+8*n+4*qh,4)} offset:{rnd*32768 + 4096*qh}' for n in range(4) for qh in range(2)]
        return [f'ds_write_b128 v{WA+4*nt+g}, {ar(32*rnd+16*nt+4*g,4)} offset:{rnd*32768}' for nt in range(2) for g in range(4)]
    if w3:
        ld_tag = f'global_load_dword v30, v0, {sr(S_DBG,2)} sc1'
        first[0] = False
        def mm3(c, rnd, af):
            m = []
            for s4 in range(4):
                for nt in range(2):
                    d = ar(32 * rnd + 16 * nt, 16)
                    m.append(mfma(d, af(8 * s4 + 4 * nt, 4), reg4(T.where[(rnd, c)][s4]), '0' if (first[rnd] and s4 == 0) else d))
            first[rnd] = False
            return m
        t1 = lambda off, n: vr(32 + off, n)
        for c in (13, 14, 15):
            e.many(rd(c, t1))
            if c == 15:
                vm.room(2); e(ld_tag); e(ld_fl); vm.add('pl', 2)
            e('s_waitcnt lgkmcnt(0)')
            vm.wait(f'o0_{c}')
            gaps(e, mm3(c, 0, t1), T.pump(), per=2)
            T.free += T.where[(0, c)]
        assert not T.todo
        vm.wait('pl')
        e('v_add_u32 v30, 3, v30')
        poll(e, o, 'r23', ld_fl, [f'v_cmp_eq_u32 vcc, v30, v{V_T2}'])
        T.free = [48, 52, 56, 60, 12, 16, 20, 24, 32, 36, 40, 44]
        order = [8, 9, 15, 10, 14, 11, 13, 6, 12, 7, 0, 1, 2, 3, 4, 5]
        T.todo = [(1, c) for c in order]
        e.many(T.pump())
        t2 = lambda off, n: hold3(8, off, n)
        for i, c in enumerate(order):
            nxt = order[i + 1] if i + 1 < len(order) else None
            if c >= 12: e('s_waitcnt lgkmcnt(0)')
            vm.wait(f'o1_{c}')
            front = rd(nxt, t2) if (nxt is not None and nxt >= 12) else []
            late = []
            if c == 10: late += fin
            if c == 11: late += pwrite(0)
            if c == 0: late += fin2
            m = mm3(c, 1, t2 if c >= 12 else (lambda off, n: hold3(c, off, n)))
            late += T.pump()
            gaps(e, m, front, late, per=3, late_from=0 if not front else 2)
            if c != 8: T.free += T.where[(1, c)]
            if c in (9, 10, 11): T.free += list(range(64 + 32 * (c - 8), 64 + 32 * (c - 7), 4))
            if c in (6, 7): T.free += list(range(192 + 32 * (c - 6), 192 + 32 * (c - 5), 4))
        assert not T.todo
        e('s_nop 7'); e('s_nop 3')
        e.many(pwrite(1))
        e('s_branch L_red')
        return
    e.skip = o.t_skip
    seq = [(0, c) for c in ORDER1] + [(1, c) for c in ORDER2]
    todo2 = []
    for c in ORDER2: todo2 += ([(0, c)] if (c >= 13 and not o.park) else []) + [(1, c)]
    for i, (rnd, c) in enumerate(seq):
        rnds = [0, 1] if c >= 13 else [rnd]
        nxt = seq[i + 1][1] if i + 1 < len(seq) else None
        if i == o.chk - o.pl_at:
            if o.pwf:
                vm.room(1); e(ld_fl); vm.add('pl', 1)
            else:
                vm.room(2); e(f'global_load_dword v30, v0, {sr(S_DBG,2)} sc1'); e(ld_fl); vm.add('pl', 2)
            if o.park: T.todo += [(0, c) for c in (13, 14, 15)]
        if i == o.chk:
            vm.stamp(o, 5)
            vm.wait('pl')
            e('v_add_u32 v30, 3, v0' if o.pwf else 'v_add_u32 v30, 3, v30')
            poll(e, o, 'r2', ld_fl, [f'v_cmp_eq_u32 vcc, v30, v{V_T2}'])
            T.todo += todo2
            e.many(T.pump())
            vm.stamp(o, 6)
        if c >= 8: e('s_waitcnt lgkmcnt(0)')
        for r_ in rnds: vm.wait(f'o{r_}_{c}')
        front = []; late = []
        if nxt is not None and nxt >= 8:
            assert not (8 <= c < 13 and nxt < 13)
            if rnd == 0 and nxt == C.TCH[0] and i < 12: e('s_barrier')
            if nxt == 12 and vm.has('late'): vm.wait('late')
            if nxt >= 13: vm.wait(f'w{nxt}')
            front = rd(nxt, afrag(nxt))
        if rnd == 1 and c in (8, 9, 10):
            vm.room(8)
            late += wdma(c + 5)
        if rnd == 1 and c == 15: late += fin
        if rnd == 1 and c == 6: late += pwrite(0)
        if rnd == 1 and c == 5: late += fin2
        m = mms(c, rnds)
        late += T.pump()
        if C.M16: gaps(e, m, front, late, per=o.tper, late_from=0 if not front else min(len(m) - 4, (len(front) + o.tper - 1) // o.tper))
        else: gaps(e, m, front, late, per=3, late_from=0 if not front else 2)
        for r_ in rnds: T.free += T.where[(r_, c)]
    assert not T.todo
    vm.stamp(o, 7)
    e('s_nop 7'); e('s_nop 3')
    e.many(pwrite(1))
    e.lab('L_red')
    e('s_waitcnt lgkmcnt(0)')
    e('s_barrier')
    for i in range(2):
        for p in range(4):
            for hh in range(2):
                e(f'ds_read_b128 {vr(96+32*i+8*p+4*hh,4)}, v{RDA+2*i+hh} offset:{8192*p}')
    for i in range(2):
        b = 96 + 32 * i
        e(f's_waitcnt lgkmcnt({8*(1-i)})')
        for j in range(8):
            e(f'v_add_f32 v{b+j}, v{b+j}, v{b+8+j}')
            e(f'v_add_f32 v{b+16+j}, v{b+16+j}, v{b+24+j}')
        for j in range(8): e(f'v_add_f32 v{b+j}, v{b+j}, v{b+16+j}')
        for j in range(4): e(f'v_cvt_pk_bf16_f32 v{b+8+j}, v{b+2*j}, v{b+2*j+1}')
        if i: e(f's_add_u32 s{S_OO}, s{S_OO}, {8*2560}')
        e(f'buffer_store_dwordx4 {vr(b+8,4)}, v{VOUT}, {sr(S_OUT,4)}, s{S_OO} offen {o.out_flags}')
    ddump(e, o, 5)
    if o.light:
        e('s_waitcnt vmcnt(0)')
        e(f's_memrealtime {sr(S_ST,2)}')
        e('s_waitcnt lgkmcnt(0)')
        e('v_mov_b32 v2, s98'); e(f'v_mov_b32 v3, s{S_ST}'); e(f'v_mov_b32 v4, s{S_STB}')
        e('s_mov_b64 exec, 1')
        e(f'buffer_store_dwordx2 v[2:3], v4, {sr(S_WS,4)}, 0 offen')
    if o.stamps:
        e('s_waitcnt vmcnt(0)')
        stamp(e, o, 14)

KD = '''.amdhsa_kernel {n}
  .amdhsa_next_free_vgpr 512
  .amdhsa_next_free_sgpr 102
  .amdhsa_accum_offset 256
  .amdhsa_group_segment_fixed_size 0
  .amdhsa_kernarg_size 104
  .amdhsa_user_sgpr_count 2
  .amdhsa_user_sgpr_kernarg_segment_ptr 1
  .amdhsa_system_sgpr_workgroup_id_x 1
.end_amdhsa_kernel
'''

HEADER = """
"""

def gen(o):
    assert not o.w3
    if o.r6: plan6()
    C.M16 = o.m16
    e = Em()
    e.jit = o.jit
    e.mix = o.mix
    k1 = NAME + '_kernel'
    for l in HEADER.strip().split('\n'): e.raw(l)
    e.raw('; @launch grid=(256,1,1) block=(256,1,1) lds=163840')
    e.raw('.amdgcn_target "amdgcn-amd-amdhsa--gfx950"')
    e.raw('.text')
    e.raw(f'.globl {k1}\n.p2align 8\n.type {k1},@function')
    e.lab(k1)
    prologue(e, o)
    e(f's_cmp_eq_u32 s{S_WAVE}, 3')
    e('s_cbranch_scc1 L_loader')
    if o.al_a > 0:
        for _ in range(o.al_a // 4): e('s_nop 0')
    phase_a(e, o)
    T = phase_b(e, o)
    n0 = T.vm.out()
    pre = T.pump(o.npre)
    npre = T.vm.out() - n0
    e.pre = pre
    if o.pwf:
        per = len(pre) // max(o.npre, 1)
        e.many(pre[:per * o.npre0])
        e(f's_sub_u32 s{S_T0}, s{S_OB}, {RND + 4096}')
        e(f's_lshr_b32 s{S_T0}, s{S_T0}, 6')
        e(f's_mul_i32 s{S_T2}, s{S_BR}, {12*32*128}')
        e(f's_sub_u32 s{S_T0}, s{S_T0}, s{S_T2}')
        e(f's_add_u32 s{S_T0}, s{S_T0}, {WS_FLAG2}')
        e(f'v_add_u32 v{V_T2}, 3, v0')
        e(f'v_mov_b32 v{V_T3}, 0')
        e(f's_waitcnt vmcnt({4 * o.npre0})')
        e('s_mov_b64 exec, 1')
        e(f'buffer_store_dword v{V_T2}, v{V_T3}, {sr(S_WS,4)}, s{S_T0} offen sc1')
        e('s_mov_b64 exec, -1')
        e.many(pre[per * o.npre0:])
        e('s_waitcnt lgkmcnt(0)')
    else:
        e.many(pre)
        e(f's_waitcnt vmcnt({npre}) lgkmcnt(0)')
    e('s_barrier')
    dmark(e, o, 3)
    if o.stamps:
        T.vm.stamp(o, 3)
    e('s_branch L_join')
    align(e, o.al_l)
    e.lab('L_loader')
    h0 = len(e.L)
    loader(e, o)
    if o.head3:
        head = e.L[h0 - 1:e.head_end] + ['    s_branch L_loader2']
        e.L[h0 - 1:e.head_end] = ['L_loader2:']
        if o.head3 == 1:
            i = e.L.index('    s_cbranch_scc1 L_loader')
            e.L[i:i + 1] = ['    s_cbranch_scc0 L_cpre'] + head + ['L_cpre:']
        else:
            i = e.first_loads
            e.L[i:i] = ['    s_branch L_cgo'] + head + ['L_cgo:']
    if o.w3:
        if o.stamps: e.T3.vm.stamp(o, 3)
        tail(e, o, e.T3, w3=True)
    else:
        if o.stamps: stamp(e, o, 3)
    if o.al_j >= 0:
        e('s_branch L_join'); align(e, o.al_j)
    e.lab('L_join')
    tail(e, o, T)
    e.lab('L_exit')
    e('s_endpgm')
    e.lab('L_end')
    e.raw('.section .rodata,"a"\n.p2align 6')
    e.raw(KD.format(n=k1))
    return e.text()

if __name__ == '__main__':
    o = Opt()
    out = sys.argv[1]
    for a in sys.argv[2:]:
        k, v = a.split('=', 1); v = v.replace('+', ' ')
        cur = getattr(o, k)
        setattr(o, k, (v == '1') if isinstance(cur, bool) else int(v) if isinstance(cur, int) else v)
    open(out, 'w').write(gen(o))
```

```python
import sys, math, struct
NAME = 'concat_heads__mha_block_cached__mha_block_cached__near_ridge'

class Opt:
    stamps = False
    kv_flags = 'nt'
    w_flags = ''
    wo_flags = ''
    ost_flags = 'sc1'
    old_flags = 'sc1'
    look = 7
    rot = 0
    arot = 3
    nun = 1
    tlbq = False
    tickst = 0
    no_w = False
    no_w3 = False
    t_now = False
    t_o1 = False
    t_noo = False
    c8late = True
    pf_kv = 0
    pf_wo = True
    pf_a = False
    pf_w = False
    pf_delay = 0
    pf_s0 = 2
    pf_mid = 0
    pf_flags = ''
    pf_tail = 0
    bal = 0
    bal_lag = 2
    bal_n = 1
    bal_sl = 0
    tagk = 1
    thr_end = 28
    k_first = False
    k_s0 = 0
    tlb = True
    aper = 4
    out_flags = ''
    tsched = 1
    park = True
    maxout = 61
    r1k = 28
    nodup = True
    al_t = -1
    al_l = -1
    al_j = -1
    al_a = -1
    pf2 = False
    pf2_p0 = 1
    pf2_s0 = 0
    pf2_gap = 2
    pf2_pre = 1
    wper = 3
    pf_wi = 6
    mix = 0
    prio = 0
    head3 = 1
    dq2 = False
    pwf = False
    npre0 = 1
    don = 0
    don_lag = 1
    t_skip = ''
    t_no1 = False
    m16 = False
    tper = 2
    pre3 = 1
    wst = ''
    w0 = 3
    r1pack = False
    gran = 4
    tlbd = True
    tlbf = 0
    r6k = 9
    r6e = 3
    r6 = False
    a_skip = ''
    dbgt = False
    jit = 0
    light = False
    lb = 4
    lb_hi = 42
    lb_pos = 0
    lb_t = 0
    lb_lo = 8
    lb_ld = 'sc1'
    lb_st = ''
    pfc = True
    w3 = False
    w3k = 23
    pl_at = 5
    fav = 0
    t15 = True
    nearly = 0
    npre = 3
    pk = True
    v1_late = True
    look_lo = 5
    look_k0 = 0
    look_k1 = 0
    krot = False
    early = True
    chk = 9
    bal_k1 = 30
    psleep = 4
    thr = 20
    blk = 0

WS_FLAGS = 12582912
WS_PROG = WS_FLAGS + 32768
WS_FLAG2 = WS_FLAGS + 65536
WS_STAMP = 13631488
SLOT = 16384
STAGE = 40960
RND = 12 * 32 * 8192

S_X, S_K, S_V, S_WQ, S_WO, S_OUT, S_WS = 4, 8, 12, 16, 20, 24, 28
S_DBG = 32
S_WAVE, S_BR, S_H, S_BL = 34, 35, 36, 37
S_T0, S_T1, S_T2, S_T3 = 38, 39, 40, 41
S_KX, S_XB, S_XL, S_KVB, S_TICK = 42, 43, 44, 45, 46
S_KOFF, S_VOFF, S_THR, S_FLOOR, S_C, S_OB, S_WQB = 47, 48, 49, 50, 51, 52, 53
S_ST, S_STB, S_QT, S_NT = 54, 56, 57, 58
S_SAVE = 60
S_WN, S_FL = 62, 63
S_EV = 59
S_KARG = 64
S_WOB, S_O1, S_QB, S_CNT, S_RHO, S_WC, S_N, S_KR = 90, 91, 92, 93, 94, 95, 96, 97

V_LANE = 1
V_T0, V_T1, V_T2, V_T3 = 2, 3, 4, 5
V_L, V_MX, V_D = 6, 10, 11
V_DMA = 12
V_KA, V_VA, V_OST, V_WA = 16, 24, 28, 29
V_NEGM = 32
V_SA, V_SB, V_P, V_TMP = 48, 64, 80, 88
V_Q, V_KF, V_VF, V_Q2 = 96, 128, 160, 192

class Em:
    def __init__(self): self.L = []
    def __call__(self, s): self.L.append('    ' + s)
    def lab(self, s): self.L.append(s + ':')
    def raw(self, s): self.L.append(s)
    def many(self, l):
        for x in l: self(x)
    def text(self):
        if getattr(self, 'jit', 0):
            import random
            rnd = random.Random(self.jit); out = []; n = 0
            for l in self.L:
                out.append(l)
                t = l.strip()
                if (t == 's_barrier' or t.startswith('s_waitcnt vmcnt')) and rnd.random() < 0.35:
                    n += 1
                    bit = rnd.choice([0, 1, 2, 3, 4, 5])
                    src = rnd.choice(['s2', f's{S_WAVE}'])
                    if src != 's2': bit &= 1
                    out += [f'    s_cselect_b32 s3, 1, 0', f'    s_bitcmp1_b32 {src}, {bit}', f'    s_cbranch_scc0 L_j{n}', f'    s_sleep {rnd.choice([1, 4, 16, 40])}', f'L_j{n}:', '    s_cmp_eq_u32 s3, 1']
            self.L = out
        return '\n'.join(self.L) + '\n'

def vr(b, n=1): return f'v{b}' if n == 1 else f'v[{b}:{b+n-1}]'
def ar(b, n=1): return f'a{b}' if n == 1 else f'a[{b}:{b+n-1}]'
def sr(b, n=1): return f's{b}' if n == 1 else f's[{b}:{b+n-1}]'
def mfma(d, a, b, c): return f'v_mfma_f32_32x32x16_bf16 {d}, {a}, {b}, {c}'
def hold(ci, off, n):
    return ar(64 + 32 * ci + off, n) if ci < 6 else vr(192 + 32 * (ci - 6) + off, n)

def hold3(ci, off, n):
    return hold(ci, off, n) if ci < 8 else vr(64 + 32 * (ci - 8) + off, n)
def reg4(r): return ar(r - 1000, 4) if r >= 1000 else vr(r, 4)

def cost(i):
    if i.startswith('v_exp') or i.startswith('v_rcp'): return 8
    if i.startswith('s_'): return 2
    return 4

def interleave(e, mf, fill):
    total = sum(cost(f) for f in fill if not isinstance(f, tuple))
    per = total / len(mf)
    fi = 0; acc = 0.0
    deadline = {}; items = []
    for f in fill:
        if isinstance(f, tuple):
            if f[0] == 'M': deadline[f[1]] = len(items)
            else: items.append(f)
        else: items.append(f)
    for k, m in enumerate(mf):
        need = deadline.get(k, 0)
        while fi < need:
            it = items[fi]; fi += 1
            if isinstance(it, tuple):
                assert it[1] < k, (it, k)
                continue
            e(it); acc += cost(it)
        if isinstance(m, (list, tuple)): e.many(m)
        else: e(m)
        target = per * (k + 1)
        while fi < len(items) and (acc < target - 1.0 or k == len(mf) - 1):
            it = items[fi]
            if isinstance(it, tuple):
                if it[1] > k: break
                fi += 1; continue
            e(it); acc += cost(it); fi += 1
    assert fi == len(items)

def gaps(e, mf, front, late=(), per=2, late_from=5):
    g = [[] for _ in mf]
    for i, f in enumerate(front): g[min(i // per, len(mf) - 1)].append(f)
    n = len(mf) - late_from
    for i, f in enumerate(late): g[late_from + (i * n) // len(late)].append(f)
    for m, x in zip(mf, g):
        sk = getattr(e, 'skip', '')
        if 'm' not in sk: e(m)
        e.many([y for y in x if not (('r' in sk and y.startswith('ds_read')) or ('d' in sk and y.startswith('buffer_load_dwordx4 v') and ('s[4:7]' in y or 's[16:19]' in y)))])

def stamp(e, o, idx, clk=False):
    if not o.stamps: return 0
    e(f's_memtime {sr(S_ST,2)}' if clk else f's_memrealtime {sr(S_ST,2)}')
    e('s_waitcnt lgkmcnt(0)')
    e(f'v_mov_b32 v{V_T0}, s{S_ST}')
    e(f'v_mov_b32 v{V_T1}, s{S_STB}')
    e('s_mov_b64 exec, 1')
    e(f'buffer_store_dword v{V_T0}, v{V_T1}, {sr(S_WS,4)}, 0 offen offset:{4*idx}')
    e('s_mov_b64 exec, -1')
    return 1

LAZY = {0: 98, 1: 100}
for _i in range(2, 15): LAZY[_i] = 64 + 2 * (_i - 2)
def lazy(e, o, i):
    if o.stamps: e(f's_memrealtime s[{LAZY[i]}:{LAZY[i]+1}]')
def lazy_dump(e, o, ids):
    if not o.stamps: return 0
    e('s_waitcnt lgkmcnt(0)')
    e(f'v_mov_b32 v{V_T1}, s{S_STB}')
    e('s_mov_b64 exec, 1')
    for i in ids:
        e(f'v_mov_b32 v{V_T0}, s{LAZY[i]}')
        e(f'buffer_store_dword v{V_T0}, v{V_T1}, {sr(S_WS,4)}, 0 offen offset:{16 if i == 0 else 4*(16+i)}')
        e('s_nop 1')
    e('s_mov_b64 exec, -1')
    return len(ids)

def dmark(e, o, i):
    if o.dbgt: e(f's_memrealtime s[{64+2*i}:{65+2*i}]')
def ddump(e, o, n):
    if not o.dbgt: return
    e('s_waitcnt vmcnt(0)')
    dmark(e, o, n - 1)
    e('s_waitcnt lgkmcnt(0)')
    e(f's_cmp_lg_u32 s{S_WAVE}, 0')
    e('s_cbranch_scc1 L_exit')
    e('s_mov_b32 s3, 0')
    for j, w in enumerate((5, 130, 203)):
        e(f's_cmp_eq_u32 s2, {w}')
        e(f's_cselect_b32 s3, {4 + 20 * j}, s3')
    e('s_cmp_eq_u32 s3, 0')
    e('s_cbranch_scc1 L_exit')
    e('v_mov_b32 v2, s3')
    e('s_mov_b64 exec, 1')
    for i in range(n):
        e(f's_sub_u32 s{64+2*i}, s{64+2*i}, s98')
        e(f'v_mov_b32 v3, s{64+2*i}')
        e(f'global_store_dword v2, v3, {sr(S_DBG,2)} offset:{4*i}')
        e('s_nop 1')
    e('s_mov_b64 exec, -1')

def align(e, ph):
    if ph < 0: return
    e.raw('.p2align 6')
    for _ in range(ph // 4): e('s_nop 0')

class Vm:
    def __init__(self, e): self.e = e; self.q = []
    def out(self): return sum(c for _, c in self.q)
    def has(self, name): return name in [n for n, _ in self.q]
    def wait(self, name):
        names = [n for n, _ in self.q]
        if name not in names: return
        i = names.index(name)
        rest = sum(c for _, c in self.q[i + 1:])
        assert rest <= 63
        self.e(f's_waitcnt vmcnt({rest})')
        self.q = self.q[i + 1:]
    def room(self, c):
        while self.out() + c > 61: self.wait(self.q[0][0])
    def add(self, name, c):
        self.q.append((name, c)); assert self.out() <= 63, self.q
    def stamp(self, o, idx, clk=False):
        if o.stamps:
            self.room(1); stamp(self.e, o, idx, clk); self.add(f'st{idx}', 1)

def prologue(e, o):
    if o.stamps or o.dbgt or o.light: e('s_memrealtime s[98:99]')
    e(f's_load_dwordx16 {sr(S_KARG,16)}, s[0:1], 0')
    e(f's_load_dwordx8 {sr(S_KARG+16,8)}, s[0:1], 64')
    e(f's_load_dwordx2 {sr(S_KARG+24,2)}, s[0:1], 96')
    e('s_cmp_ge_u32 s2, 256')
    e('s_cbranch_scc1 L_exit')
    e(f'v_lshrrev_b32 v{V_T0}, 6, v0')
    e(f'v_and_b32 v{V_LANE}, 63, v0')
    e(f'v_readfirstlane_b32 s{S_WAVE}, v{V_T0}')
    e(f's_and_b32 s{S_T0}, s2, 7')
    e(f's_lshr_b32 s{S_T1}, s2, 3')
    e(f's_lshr_b32 s{S_BR}, s{S_T0}, 2')
    e(f's_and_b32 s{S_T2}, s{S_T0}, 3')
    e(f's_lshl_b32 s{S_H}, s{S_T2}, 3')
    e(f's_and_b32 s{S_T3}, s{S_T1}, 7')
    e(f's_add_u32 s{S_H}, s{S_H}, s{S_T3}')
    e(f's_lshr_b32 s{S_BL}, s{S_T1}, 3')
    e(f's_mul_i32 s{S_KX}, s{S_BL}, 5')
    e(f's_add_u32 s{S_KX}, s{S_KX}, 1')
    e(f's_lshr_b32 s{S_KX}, s{S_KX}, 1')
    if o.arot in (2, 3): e(f's_mov_b32 s{S_KX}, 0')
    if o.arot == 4: e(f's_lshr_b32 s{S_T3}, s{S_T3}, 2')
    if o.arot in (0, 3, 4): e(f's_add_u32 s{S_KX}, s{S_KX}, s{S_T3}')
    e(f's_cmp_ge_u32 s{S_KX}, 10')
    e(f's_cselect_b32 s{S_T3}, 10, 0')
    e(f's_sub_u32 s{S_KX}, s{S_KX}, s{S_T3}')
    if o.blk == 0:
        e(f's_mul_i32 s{S_QT}, s{S_T1}, 13')
        e(f's_lshr_b32 s{S_QT}, s{S_QT}, 6')
        e(f's_mul_i32 s{S_T3}, s{S_QT}, 5')
        e(f's_sub_u32 s{S_NT}, s{S_T1}, s{S_T3}')
        e(f's_and_b32 s{S_T3}, s{S_T2}, 1')
        e(f's_mul_i32 s{S_T3}, s{S_T3}, 5')
        e(f's_add_u32 s{S_NT}, s{S_NT}, s{S_T3}')
        e(f's_lshr_b32 s{S_T3}, s{S_T2}, 1')
        e(f's_mul_i32 s{S_T3}, s{S_T3}, 6')
        e(f's_add_u32 s{S_QT}, s{S_QT}, s{S_T3}')
    elif o.blk == 1:
        e(f's_mul_i32 s{S_QT}, s{S_T1}, 26')
        e(f's_lshr_b32 s{S_QT}, s{S_QT}, 8')
        e(f's_mul_i32 s{S_T3}, s{S_QT}, 10')
        e(f's_sub_u32 s{S_NT}, s{S_T1}, s{S_T3}')
        e(f's_mul_i32 s{S_T3}, s{S_T2}, 3')
        e(f's_add_u32 s{S_QT}, s{S_QT}, s{S_T3}')
    else:
        e(f's_mul_i32 s{S_T3}, s{S_T2}, 30')
        e(f's_add_u32 s{S_T3}, s{S_T3}, s{S_T1}')
        e(f's_mul_i32 s{S_NT}, s{S_T3}, 171')
        e(f's_lshr_b32 s{S_NT}, s{S_NT}, 11')
        e(f's_mul_i32 s{S_QT}, s{S_NT}, 12')
        e(f's_sub_u32 s{S_QT}, s{S_T3}, s{S_QT}')
    e(f's_cmp_ge_u32 s{S_T1}, 30')
    e(f's_cselect_b32 s{S_NT}, 15, s{S_NT}')
    e(f's_cselect_b32 s{S_QT}, 0, s{S_QT}')
    e(f's_mul_i32 s{S_QB}, s{S_QT}, 11')
    e(f's_lshr_b32 s{S_QB}, s{S_QB}, 5')
    e(f's_lshl_b32 s{S_STB}, s2, 2')
    e(f's_add_u32 s{S_STB}, s{S_STB}, s{S_WAVE}')
    e(f's_lshl_b32 s{S_STB}, s{S_STB}, 8')
    e(f's_add_u32 s{S_STB}, s{S_STB}, {WS_STAMP}')
    e(f's_lshl_b32 s{S_XL}, s{S_WAVE}, 13')
    e(f's_lshl_b32 s{S_WOB}, s{S_NT}, 7')
    e(f's_cmp_ge_u32 s{S_NT}, 5')
    e(f's_cselect_b32 s{S_T0}, {5 if o.blk == 0 else 0}, 0')
    e(f's_sub_u32 s{S_RHO}, s{S_NT}, s{S_T0}')
    e(f's_mul_i32 s{S_RHO}, s{S_RHO}, {o.rot}')
    e(f's_and_b32 s{S_RHO}, s{S_RHO}, 15')
    for srd, size in ((S_X, 983040), (S_K, 1 << 26), (S_V, 1 << 26), (S_WQ, 5242880), (S_WO, 5242880), (S_OUT, 1966080), (S_WS, 16777216)):
        e(f's_mov_b32 s{srd+2}, {size}')
        e(f's_mov_b32 s{srd+3}, 0x20000')

def srds(e, o):
    e('s_waitcnt lgkmcnt(0)')
    e(f's_cmp_eq_u32 s{S_BR}, 0')
    for srd, i in ((S_WQ, 3), (S_X, 0), (S_K, 1), (S_V, 2), (S_WO, 4)):
        e(f's_cselect_b64 {sr(srd,2)}, {sr(S_KARG+2*i,2)}, {sr(S_KARG+10+2*i,2)}')
    e(f's_mov_b64 {sr(S_OUT,2)}, {sr(S_KARG+20,2)}')
    e(f's_mov_b64 {sr(S_WS,2)}, {sr(S_KARG+24,2)}')
    e(f's_mov_b64 {sr(S_DBG,2)}, {sr(S_KARG+22,2)}')
    for srd in (S_WQ, S_X, S_K, S_V, S_WO, S_OUT, S_WS):
        e(f's_and_b32 s{srd+1}, s{srd+1}, 0xffff')
    lazy(e, o, 1)

def no_task_wo(e):
    e(f's_cmp_eq_u32 s{S_NT}, 15')
    e(f's_cselect_b32 s{S_WO+2}, 0, s{S_WO+2}')

class C:
    M16 = False
    NR = 8; RING = 32768; OFF = 6; J0 = 1; SCR = 3; TL = 'T6'
    W = (32768, 73728, 114688); X = (49152, 90112, 0)
    PIECE = {8: 0, 9: 1, 10: 2, 11: 3, 12: 4, 13: 0, 14: 1, 15: 2}
    TCH = (9, 10, 11)
def plan6():
    C.NR = 6; C.RING = 65536; C.OFF = 4; C.J0 = 2; C.SCR = 2; C.TL = 'T4'
    C.W = (65536, 106496, 24576); C.X = (81920, 0, 40960)
    C.PIECE = {8: 0, 9: 1, 10: 4, 11: 2, 12: 3, 13: 0, 14: 1, 15: 4}
    C.TCH = (10, 11)
PF_TICKS = [0, 1, 6, 10, 15, 19, 22, 24, 25, 26, 27]
def reg_w(s): return C.W[(s + 2) % 3]
def reg_x(s): return C.X[(s + 2) % 3]

SEQ = ['K0']
for k in range(32): SEQ += [f'K{k+1}', f'V{k}']
SEQ += [f'T{i}' for i in range(8)]
POS = {n: i for i, n in enumerate(SEQ)}
def slot(name): return (C.OFF + POS[name]) % C.NR
def slot_addr(name): return C.RING + slot(name) * SLOT

def wo_dma(o, c, ldsbase_s, ldsoff, wob, vw, dyn=False):
    r = []
    if o.no_w and dyn: return ['s_nop 0']
    if dyn:
        r += [f's_mul_i32 s{S_T0}, s{S_WC}, {64*1280}', f's_add_u32 s{S_WC}, s{S_WC}, 1', f's_and_b32 s{S_WC}, s{S_WC}, 15']
    else:
        r += [f's_add_u32 s{S_T0}, s{S_RHO}, {c}', f's_and_b32 s{S_T0}, s{S_T0}, 15', f's_mul_i32 s{S_T0}, s{S_T0}, {64*1280}']
    r.append(f's_add_u32 s{S_T0}, s{S_T0}, {wob}')
    for g_ in range(2):
        r.append(f's_add_u32 m0, {ldsbase_s}, {ldsoff + 4096*g_}' if ldsbase_s else f's_mov_b32 m0, {ldsoff + 4096*g_}')
        r.append(f's_add_u32 s{S_T1}, s{S_T0}, {32*g_*1280}')
        for i in range(4):
            r.append(f'buffer_load_dwordx4 v{vw+i}, {sr(S_WO,4)}, s{S_T1} offen offset:{1024*i} {o.wo_flags} lds')
    return r

def wo_voffs(e, dst):
    L = V_LANE
    e(f'v_lshrrev_b32 v{V_T0}, 3, v{L}')
    e(f'v_mul_u32_u24 v{V_T0}, 1280, v{V_T0}')
    if C.M16:
        e(f'v_lshrrev_b32 v{V_T1}, 4, v{L}')
        e(f'v_lshlrev_b32 v{V_T1}, 1, v{V_T1}')
    else:
        e(f'v_bfe_u32 v{V_T1}, v{L}, 4, 1')
        e(f'v_lshlrev_b32 v{V_T1}, 2, v{V_T1}')
    e(f'v_and_b32 v{V_T2}, 7, v{L}')
    e(f'v_xor_b32 v{V_T1}, v{V_T1}, v{V_T2}')
    e(f'v_lshl_add_u32 v{dst}, v{V_T1}, 4, v{V_T0}')
    for i in range(1, 4): e(f'v_add_u32 v{dst+i}, {(10240-1024)*i}, v{dst}')

def wo_lane_addr(e, dst):
    L = V_LANE
    if C.M16:
        e(f'v_lshrrev_b32 v{V_T0}, 5, v{L}')
        e(f'v_bfe_u32 v{V_T1}, v{L}, 2, 3')
        e(f'v_lshl_add_u32 v{dst}, v{V_T0}, 4, v{V_T1}')
        e(f'v_lshlrev_b32 v{dst}, 7, v{dst}')
        e(f'v_bfe_u32 v{V_T3}, v{L}, 3, 2')
        e(f'v_lshl_add_u32 v{dst}, v{V_T3}, 5, v{dst}')
        e(f'v_and_b32 v{V_T3}, 3, v{L}')
        e(f'v_lshl_add_u32 v{dst}, v{V_T3}, 3, v{dst}')
        return
    e(f'v_lshrrev_b32 v{V_T0}, 5, v{L}')
    e(f'v_bfe_u32 v{V_T1}, v{L}, 2, 2')
    e(f'v_lshl_add_u32 v{dst}, v{V_T0}, 2, v{V_T1}')
    e(f'v_lshlrev_b32 v{dst}, 7, v{dst}')
    e(f'v_bfe_u32 v{V_T3}, v{L}, 3, 1')
    e(f'v_lshl_add_u32 v{dst}, v{V_T3}, 6, v{dst}')
    e(f'v_bfe_u32 v{V_T3}, v{L}, 4, 1')
    e(f'v_lshl_add_u32 v{dst}, v{V_T3}, 5, v{dst}')
    e(f'v_and_b32 v{V_T3}, 3, v{L}')
    e(f'v_lshl_add_u32 v{dst}, v{V_T3}, 3, v{dst}')

def wo_reads(dstf, a0, a1, off, tmp=(V_T0, V_T1, V_T3)):
    r = []
    if C.M16:
        ad = [a0] + list(tmp)
        r += [f'v_xor_b32 v{ad[n]}, {32*n}, v{a0}' for n in range(1, 4)]
        for F in range(2):
            for n in range(4):
                for u in range(2):
                    r.append(f'ds_read_b64_tr_b16 {dstf(16*F+4*n+2*u,2)}, v{ad[n]} offset:{off+(32*F+8*u)*128}')
        return r
    for s4 in range(4):
        for nt in range(2):
            for u in range(2):
                r.append(f'ds_read_b64_tr_b16 {dstf(8*s4+4*nt+2*u,2)}, v{(a0,a1)[nt]} offset:{off+(16*s4+8*u)*128}')
    return r

def poll(e, o, tag, load, test):
    e.many(test)
    e('s_cmp_eq_u64 vcc, -1')
    e(f's_cbranch_scc1 L_polled_{tag}')
    e(f's_mov_b32 s{S_CNT}, 0x20000')
    e.lab(f'L_poll_{tag}')
    e(f's_sleep {o.psleep}')
    e(load)
    e('s_waitcnt vmcnt(0)')
    e.many(test)
    e('s_cmp_eq_u64 vcc, -1')
    e(f's_cbranch_scc1 L_polled_{tag}')
    e(f's_sub_u32 s{S_CNT}, s{S_CNT}, 1')
    e(f's_cmp_lg_u32 s{S_CNT}, 0')
    e(f's_cbranch_scc1 L_poll_{tag}')
    e.lab(f'L_polled_{tag}')

def flag1_tick(o):
    last = 0
    for w in range(3):
        t = int(o.wst[w]) if o.wst else o.w0 + w; ev = []
        for i in range(9):
            ev.append(t)
            t += o.wper + (1 if (o.t15 and t + o.wper == 15) else 0)
        assert ev[0] <= 14 and ev[7] >= 16 and ev[8] <= 30, ev
        last = max(last, min(x for x in ev if x >= 16))
    return last + 1

def loader(e, o):
    L = V_LANE
    VK, VV, VW, VWO, VF, VP, VZ = 24, 16, 20, 12, 17, 18, 19
    VA, VB = 96, 100
    AF = [48, 56]; BF = [64, 80]; ACC = 128
    vm = Vm(e)
    e(f'v_lshrrev_b32 v{V_T0}, 4, v{L}')
    e(f'v_and_b32 v{V_T1}, 15, v{L}')
    e(f'v_lshlrev_b32 v{V_T3}, 2, v{V_T0}')
    e(f'v_xor_b32 v{V_T3}, v{V_T3}, v{V_T1}')
    e(f'v_lshlrev_b32 v{V_T2}, 8, v{V_T0}')
    e(f'v_lshl_add_u32 v{VV}, v{V_T3}, 4, v{V_T2}')
    for i in range(4):
        e(f'v_add_u32 v{V_T3}, {4*i}, v{V_T0}')
        e(f'v_xor_b32 v{V_T3}, v{V_T3}, v{V_T1}')
        e(f'v_lshl_add_u32 v{VK+i}, v{V_T3}, 4, v{V_T2}')
    e(f's_lshl_b32 s{S_KVB}, s{S_BL}, 5')
    e(f's_add_u32 s{S_KVB}, s{S_KVB}, s{S_H}')
    e(f's_lshl_b32 s{S_KVB}, s{S_KVB}, 18')
    e(f's_and_b32 s{S_KR}, s2, 7')
    e(f's_lshl_b32 s{S_KR}, s{S_KR}, 1')
    e(f's_lshr_b32 s{S_T0}, s2, 3')
    e(f's_add_u32 s{S_KR}, s{S_KR}, s{S_T0}')
    e(f's_and_b32 s{S_KR}, s{S_KR}, {15 if o.krot else 0}')
    e(f's_lshl_b32 s{S_KR}, s{S_KR}, 14')
    e(f'v_lshlrev_b32 v{VW}, 19, v{L}')
    e(f'v_lshlrev_b32 v{VW+1}, 25, v{L}')
    e(f'v_mov_b32 v{VZ}, 0')
    e(f'v_lshlrev_b32 v{VW+3}, 18, v{L}')
    e(f's_lshl_b32 s{S_T0}, s{S_BR}, 2')
    e(f's_add_u32 s{S_FL}, s{S_T0}, s{S_BL}')
    e(f's_lshl_b32 s{S_FL}, s{S_FL}, 5')
    e(f's_add_u32 s{S_FL}, s{S_FL}, s{S_H}')
    e(f's_lshl_b32 s{S_FL}, s{S_FL}, 7')
    e(f's_add_u32 s{S_FL}, s{S_FL}, {WS_FLAGS}')
    e(f's_mul_i32 s{S_T2}, s{S_BR}, 8')
    e(f's_add_u32 s{S_T2}, s{S_T2}, s{S_BL}')
    e(f's_mul_i32 s{S_T2}, s{S_T2}, 96')
    e(f's_add_u32 s{S_T2}, s{S_T2}, s{S_H}')
    e(f's_lshl_b32 s{S_T2}, s{S_T2}, 13')
    if o.pfc:
        e(f's_getpc_b64 {sr(S_ST,2)}')
        e.lab('L_pc')
        e(f's_sub_u32 s{S_ST}, s{S_ST}, L_pc-{NAME}_kernel')
        e(f's_subb_u32 s{S_ST+1}, s{S_ST+1}, 0')
        e(f's_lshr_b32 s{S_T0}, s2, 3')
        e(f's_lshl_b32 s{S_T0}, s{S_T0}, 11')
        e(f'v_lshlrev_b32 v{V_T0}, 7, v{L}')
        e(f'v_add_u32 v{V_T0}, s{S_T0}, v{V_T0}')
        e(f'v_min_u32 v{V_T0}, L_end-{NAME}_kernel-4, v{V_T0}')
        e('s_mov_b64 exec, 0xffff')
        e(f'global_load_dword v{VW+2}, v{V_T0}, {sr(S_ST,2)}')
        e('s_mov_b64 exec, -1')
        vm.add('pfc', 1)
    srds(e, o)
    if o.tlb:
        e('s_mov_b64 exec, 3')
        e(f'buffer_load_dword v{VW+2}, v{VW+1}, {sr(S_K,4)}, s{S_KVB} offen')
        e(f'buffer_load_dword v{VW+2}, v{VW+1}, {sr(S_V,4)}, s{S_KVB} offen')
        e('s_mov_b64 exec, 0x3ffffff')
        if o.tlbq: e(f'buffer_load_dword v{VW+2}, v{VW}, {sr(S_WQ,4)}, 0 offen')
        e(f'buffer_load_dword v{VW+2}, v{VW}, {sr(S_WO,4)}, 0 offen')
        e(f'buffer_load_dword v{VW+2}, v{VW}, {sr(S_OUT,4)}, 0 offen')
        e('s_mov_b64 exec, 0x7007')
        e(f'buffer_load_dword v{VW+2}, v{VW+3}, {sr(S_WS,4)}, s{S_T2} offen')
        e('s_mov_b64 exec, 1')
        e(f'buffer_load_dword v{VW+2}, v{VZ}, {sr(S_WS,4)}, s{S_FL} offen')
        if o.tlbd: e(f'global_load_dword v{VW+2}, v{VZ}, {sr(S_DBG,2)} offset:128')
        if o.tlbf:
            e('s_mov_b64 exec, -1')
            e(f'v_and_b32 v{V_T0}, 3, v{L}')
            e(f'v_lshlrev_b32 v{V_T0}, 16, v{V_T0}')
            e(f'v_lshrrev_b32 v{V_T1}, 2, v{L}')
            e(f'v_lshl_add_u32 v{V_T0}, v{V_T1}, 25, v{V_T0}')
            e('s_mov_b64 exec, 0xee')
            e(f'buffer_load_dword v{VW+2}, v{V_T0}, {sr(S_K,4)}, s{S_KVB} offen')
            e(f'buffer_load_dword v{VW+2}, v{V_T0}, {sr(S_V,4)}, s{S_KVB} offen')
        e('s_mov_b64 exec, -1')
        vm.add('tlb', 6 + o.tlbq + o.tlbd + 2 * o.tlbf)
    def issue_l(name):
        kind, t = name[0], int(name[1:])
        r = []
        if kind == 'K' and t > 31: return r
        base = slot_addr(name)
        if kind in 'KV':
            off = (t // 16) * (4 * 32 * 262144)
            r.append(f's_add_u32 s{S_T0}, s{S_KR}, {(t % 16) * SLOT}')
            r.append(f's_and_b32 s{S_T0}, s{S_T0}, {16 * SLOT - 1}')
            r.append(f's_add_u32 s{S_T0}, s{S_T0}, s{S_KVB}')
            for g in range(4):
                r.append(f's_mov_b32 m0, {base + 4096*g}')
                r.append(f's_add_u32 s{S_T1}, s{S_T0}, {off + 4096*g}')
                for i in range(4):
                    v = VK + i if kind == 'K' else VV
                    r.append(f'buffer_load_dwordx4 v{v}, {sr(S_K if kind == "K" else S_V,4)}, s{S_T1} offen offset:{1024*i} {o.kv_flags} lds')
        else:
            rr = slot(name); j, hi = C.J0 + (rr >> 1), rr & 1
            if j == C.PIECE[12]: return r
            for p in range(2):
                r.append(f's_add_u32 s{S_T2}, s{S_WOB}, {1024*1280*(2*hi+p)}')
                r += wo_dma(o, [c for c in C.TCH if C.PIECE[c] == j][0], None, base + 8192 * p, f's{S_T2}', VWO)
        return r
    def issue(name):
        r = issue_l(name)
        if r:
            vm.room(16); e.many(r); vm.add(name, 16)
    def own_w(c, j=0):
        vm.room(8)
        e(f's_add_u32 s{S_T2}, s{S_WOB}, {1024*1280*3}')
        e.many(wo_dma(o, c, None, 3 * 8192 + 32768 * j, f's{S_T2}', VWO))
        vm.add(f'w{c}', 8)
    def wait_upto(n):
        for m in range(n, -1, -1):
            if vm.has(SEQ[m]): vm.wait(SEQ[m]); return
    def flag(val):
        pre = []; so = S_FL
        if val == 1 and o.r1pack:
            so = S_T2
            pre = [f's_sub_u32 s{S_T2}, s{S_FL}, {WS_FLAGS}', f's_lshr_b32 s{S_T2}, s{S_T2}, 5', f's_add_u32 s{S_T2}, s{S_T2}, {WS_PROG + 4096}']
        return pre + [f's_add_u32 s{S_T0}, s{S_N}, {val}', f'v_mov_b32 v{V_T2}, s{S_T0}', 's_mov_b64 exec, 1',
                f'buffer_store_dword v{V_T2}, v{VZ}, {sr(S_WS,4)}, s{so} offen sc1', 's_mov_b64 exec, -1']
    if o.pf_a:
        if o.pf_delay: e(f's_sleep {o.pf_delay}')
        e(f'v_lshrrev_b32 v{VW}, 1, v{L}')
        e(f'v_lshlrev_b32 v{VW}, 13, v{VW}')
        e(f'v_and_b32 v{VW+1}, 1, v{L}')
        e(f'v_lshl_add_u32 v{VW}, v{VW+1}, 7, v{VW}')
        e(f's_mul_i32 s{S_T0}, s{S_BL}, {160*8192}')
        e(f's_lshl_b32 s{S_T1}, s{S_H}, 8')
        e(f's_add_u32 s{S_T0}, s{S_T0}, s{S_T1}')
        for i in range(5):
            e(f's_add_u32 s{S_T1}, s{S_T0}, {32*i*8192}')
            e(f'buffer_load_dword v{VW+2}, v{VW}, {sr(S_WQ,4)}, s{S_T1} offen {o.w_flags}')
        e(f'v_lshlrev_b32 v{VW+1}, 7, v{L}')
        e(f's_and_b32 s{S_T0}, s{S_H}, 7')
        e(f's_mul_i32 s{S_T0}, s{S_T0}, 15360')
        e(f's_mul_i32 s{S_T1}, s{S_BL}, 122880')
        e(f's_add_u32 s{S_T0}, s{S_T0}, s{S_T1}')
        for i in range(4):
            e(f's_add_u32 s{S_T1}, s{S_T0}, {(i >> 1) * 491520 + (i & 1) * 8192}')
            e(f'buffer_load_dword v{VW+2}, v{VW+1}, {sr(S_X,4)}, s{S_T1} offen {o.w_flags}')
        vm.add('pfa', 9)
    if o.k_first: issue('K0'); issue('K1')
    e('s_cmp_lg_u32 s2, 0')
    e('s_cbranch_scc1 L_notag')
    e(f's_memrealtime {sr(S_ST,2)}')
    e('s_waitcnt lgkmcnt(0)')
    e(f's_mul_i32 s{S_ST+1}, s{S_ST+1}, 0x9e3779b1')
    e(f's_add_u32 s{S_ST}, s{S_ST}, s{S_ST+1}')
    e(f's_or_b32 s{S_ST}, s{S_ST}, 4')
    e(f's_and_b32 s{S_ST}, s{S_ST}, -4')
    e(f'v_mov_b32 v{V_T2}, s{S_ST}')
    e('s_mov_b64 exec, 1')
    e(f'global_store_dword v{VZ}, v{V_T2}, {sr(S_DBG,2)} sc1')
    e('s_mov_b64 exec, -1')
    e.lab('L_notag')
    e.head_end = len(e.L)
    e(f's_lshl_b32 s{S_T0}, s{S_BR}, 2')
    e(f's_add_u32 s{S_T0}, s{S_T0}, s{S_QB}')
    e(f's_lshl_b32 s{S_T0}, s{S_T0}, 12')
    e(f's_add_u32 s{S_T0}, s{S_T0}, {WS_FLAGS}')
    e(f'v_and_b32 v{VP}, 31, v{L}')
    e(f'v_lshlrev_b32 v{VP}, 7, v{VP}')
    e(f'v_add_u32 v{VP}, s{S_T0}, v{VP}')
    if o.r1pack:
        e(f'v_subrev_u32 v{VP}, {WS_FLAGS}, v{VP}')
        e(f'v_lshrrev_b32 v{VP}, 5, v{VP}')
        e(f'v_add_u32 v{VP}, {WS_PROG + 4096}, v{VP}')
    a_addr(e, VA, VB, None)
    wo_voffs(e, VWO)
    wo_lane_addr(e, V_WA)
    e(f'v_lshlrev_b32 v{VW}, 7, v{L}')
    e(f'v_add_u32 v{V_WA}, {3*8192}, v{V_WA}')
    e(f'v_xor_b32 v{V_WA+1}, 64, v{V_WA}')
    e(f'v_lshlrev_b32 v{V_OST}, 4, v{L}')
    e(f's_mov_b32 s{S_C}, {SCALE}')
    pf = []
    for n in range(2, 2 + o.pf_kv):
        kind, t = SEQ[n][0], int(SEQ[n][1:])
        for hh in range(2):
            pf.append([f's_add_u32 s{S_T1}, s{S_KVB}, {t*SLOT + hh*8192}',
                       f'buffer_load_dword v{VW+1}, v{VW}, {sr(S_K if kind == "K" else S_V,4)}, s{S_T1} offen {o.pf_flags}'])
    if o.pf_wo:
        e(f's_lshl_b32 s{S_T2}, s{S_H}, 2')
        e(f's_add_u32 s{S_T2}, s{S_T2}, s{S_BL}')
        e(f's_mul_i32 s{S_T2}, s{S_T2}, 40960')
        for i in range(5):
            pf.append([f's_add_u32 s{S_T1}, s{S_T2}, {i*8192}',
                       f'buffer_load_dword v{VW+1}, v{VW}, {sr(S_WO,4)}, s{S_T1} offen {o.pf_flags}'])
    def reads(s4, buf):
        r = []
        for t in (2, 3):
            for u in range(2):
                r.append(f'ds_read_b64_tr_b16 {vr(AF[buf]+4*(t-2)+2*u,2)}, v{VA+t} offset:{(16*s4+4*u)*256}')
        r += [f'ds_read_b128 {vr(BF[buf]+4*j,4)}, v{VB+s4} offset:{8192*j + 4096}' for j in range(3)]
        return r
    def mf(buf, first):
        r = []
        for j in range(3):
            for t in range(2):
                d = vr(ACC + 32 * j + 16 * t, 16)
                r.append(mfma(d, vr(AF[buf] + 4 * t, 4), vr(BF[buf] + 4 * j, 4), '0' if first else d))
        return r
    pf2 = []
    if o.pf2:
        e(f'v_and_b32 v36, 31, v{L}')
        e(f'v_lshrrev_b32 v36, 1, v36')
        e(f'v_lshrrev_b32 v37, 5, v{L}')
        e(f'v_lshl_add_u32 v36, v37, 6, v36')
        e(f'v_lshlrev_b32 v36, 13, v36')
        e(f'v_and_b32 v37, 1, v{L}')
        e(f'v_lshl_add_u32 v36, v37, 7, v36')
        e(f'v_lshrrev_b32 v38, 1, v{L}')
        e(f'v_min_u32 v38, 23, v38')
        e(f'v_mul_u32_u24 v38, 1280, v38')
        e(f'v_lshl_add_u32 v38, v37, 7, v38')
        e(f's_lshl_b32 s{S_XB}, s{S_BL}, 17')
        e(f's_lshl_b32 s{S_T0}, s{S_H}, 8')
        e(f's_add_u32 s{S_XB}, s{S_XB}, s{S_T0}')
        e(f's_bfe_u32 s{S_T0}, s{S_H}, 0x10002')
        e(f's_lshl_b32 s{S_T0}, s{S_T0}, 2')
        e(f's_add_u32 s{S_T0}, s{S_T0}, s{S_BL}')
        e(f's_mul_i32 s{S_OB}, s{S_T0}, 122880')
        e(f's_and_b32 s{S_T0}, s{S_H}, 3')
        e(f's_mul_i32 s{S_T0}, s{S_T0}, {24*1280}')
        e(f's_add_u32 s{S_OB}, s{S_OB}, s{S_T0}')
        for p in range(o.pf2_p0, 5):
            pf2.append([f's_add_u32 s{S_T1}, s{S_XB}, {128*p*8192}', f'buffer_load_dword v39, v36, {sr(S_WQ,4)}, s{S_T1} offen',
                        f's_add_u32 s{S_T1}, s{S_OB}, {256*p}', f'buffer_load_dword v39, v38, {sr(S_X,4)}, s{S_T1} offen'])
        for x in pf2[:o.pf2_pre]:
            e.many(x); vm.add('pf2', 2)
        pf2 = pf2[o.pf2_pre:]
    extra = {}
    def ride(step, name, ins, cnt):
        extra.setdefault(step, []).append((name, ins, cnt))
    for i, x in enumerate(pf2): ride(o.pf2_s0 + o.pf2_gap * i, 'pf2', x, 2)
    if not o.k_first:
        for i, nm in enumerate(('K0', 'K1')):
            ins = issue_l(nm)
            for q in range(4): ride(4 * o.k_s0 + 4 * i + q, nm if q == 3 else None, ins[(3 + 6 * q if q else 0):3 + 6 * q + 6], 4)
    npf = 4 * (7 - o.pf_s0)
    for i, x in enumerate(pf): ride(4 * o.pf_s0 + (i * npf) // max(len(pf), 1), 'pf', x, 1)
    for i, nm in enumerate(('V0', 'K2')):
        ins = issue_l(nm)
        for q in range(2): ride(31 + 2 * i + q, nm if q == 1 else None, ins[(15 if q else 0):3 + 12 * q + 12], 8)
    ins = issue_l('V1')
    for q in range(0 if o.v1_late else 2): ride(35 + q, 'V1' if q == 1 else None, ins[(15 if q else 0):3 + 12 * q + 12], 8)
    e('s_barrier')
    e.many(reads(0, 0))
    e.skip = o.a_skip + ('mr' if o.dq2 else '')
    for s in range(10):
        for s4 in range(4):
            step = 4 * s + s4; buf = step & 1
            e('s_waitcnt lgkmcnt(0)')
            if step == 31: no_task_wo(e)
            if s4 == 3:
                if s == 9: vm.wait('K1')
                e('s_barrier')
            late = []
            for name, ins, cnt in extra.get(step, []):
                vm.room(cnt); late += ins; vm.add(name or 'part', cnt)
            if s4 == 2 and s < 9: late += a_step(s, VA)
            front = reads((s4 + 1) & 3, buf ^ 1) if step < 39 else []
            gaps(e, mf(buf, step == 0), front, late, per=max(o.aper - 1, 3), late_from=(2 if s4 == 2 else 1))
    e.skip = ''
    if o.v1_late: issue('V1')
    e('s_nop 7'); e('s_nop 3')
    for j in range(3):
        for i in range(16): e.many(conv(i, ACC + 32 * j, ACC + 32 * j))
        for f in range(4): e(f'ds_write_b128 v{V_OST}, {vr(ACC+32*j+4*f,4)} offset:{8192*j + 1024*f}')
    e('s_waitcnt lgkmcnt(0)')
    if o.prio == 1: e('s_setprio 3')
    issue('K3')
    issued = POS['K3']
    e(f's_lshr_b32 s{S_WC}, s2, 3')
    e(f's_mul_i32 s{S_KX}, s{S_WC}, 13')
    e(f's_lshr_b32 s{S_KX}, s{S_KX}, 6')
    vm.wait('pfa')
    e(f'v_mul_u32_u24 v{VW+2}, 1280, v{L}')
    vm_pg = [None]
    ld_own = f'buffer_load_dword v23, v22, {sr(S_WS,4)}, 0 offen sc1'
    T3 = Tail(e, o); T3.vm = vm
    T3.free = [1000 + r for r in range(32, 64, 4)]
    e.T3 = T3
    def shadow_mm(c, first):
        m = []
        af = (lambda off, n: hold3(c, off, n)) if c < 12 else (lambda off, n: vr(32 + off, n))
        for s4 in range(4):
            for nt in range(2):
                d = ar(16 * nt, 16)
                m.append(mfma(d, af(8 * s4 + 4 * nt, 4), reg4(T3.where[(0, c)][s4]), '0' if (first and s4 == 0) else d))
        return m
    ld_cnt = f'global_load_dword v23, v{VZ}, {sr(S_DBG,2)} sc1'
    ld_fl = f'buffer_load_dword v23, v{VP}, {sr(S_WS,4)}, 0 offen sc1'
    for k in range(32):
        wait_upto(POS[f'V{k}'])
        vm.stamp(o, 32 + k) if o.tickst == 1 else None
        e('s_barrier')
        vm.stamp(o, 32 + k) if o.tickst == 2 else None
        if k == flag1_tick(o):
            vm.room(1); e.many(flag(1)); vm.add('f1', 1)
        if o.pf_w and k in PF_TICKS and PF_TICKS.index(k) >= o.pf_wi:
            vm.room(1)
            e(f's_add_u32 s{S_T0}, s{S_KX}, {6 * PF_TICKS.index(k)}')
            e(f's_and_b32 s{S_T2}, s{S_T0}, 3')
            e(f's_lshl_b32 s{S_T2}, s{S_T2}, 4')
            e(f's_lshr_b32 s{S_T0}, s{S_T0}, 2')
            e(f's_add_u32 s{S_T0}, s{S_T0}, s{S_RHO}')
            e(f's_and_b32 s{S_T0}, s{S_T0}, 15')
            e(f's_add_u32 s{S_T0}, s{S_T0}, s{S_T2}')
            e(f's_mul_i32 s{S_T0}, s{S_T0}, {64*1280}')
            e(f's_add_u32 s{S_T0}, s{S_T0}, s{S_WOB}')
            e(f'buffer_load_dword v{VW+1}, v{VW+2}, {sr(S_WO,4)}, s{S_T0} offen {o.wo_flags}')
            vm.add('pft', 1)
        wper = o.wper; ws = int(o.wst[3]) if o.wst else o.w0 - 1 if wper == 3 else o.w0 + 1
        wev = (k - ws) // wper if (k >= ws and (k - ws) % wper == 0 and k <= ws + 8 * wper) else None
        if wev:
            vm.wait(f'w{wev-1}')
            e.many(wo_reads(lambda off, n: hold3(wev - 1, off, n), V_WA, V_WA + 1, 0))
        if o.w3 and k == o.w3k - 1:
            e(f'v_and_b32 v22, 7, v{L}')
            e(f'v_lshlrev_b32 v22, 7, v22')
            e(f'v_readfirstlane_b32 s{S_T0}, v{VP}')
            e(f's_add_u32 s{S_T0}, s{S_T0}, {24*128}')
            e(f'v_add_u32 v22, s{S_T0}, v22')
            vm.room(1); e(ld_own); vm.add('po', 1)
        if o.lb and k == o.tagk + 1:
            e(f's_and_b32 s{S_T0}, s2, 7')
            e(f's_lshl_b32 s{S_T0}, s{S_T0}, 7')
            e(f's_add_u32 s{S_T0}, s{S_T0}, {WS_PROG}')
            e(f'v_and_b32 v33, 31, v{L}')
            e(f'v_lshlrev_b32 v33, 2, v33')
            e(f'v_add_u32 v33, s{S_T0}, v33')
            e(f's_lshr_b32 s{S_T2}, s2, 3')
            e(f's_lshl_b32 s{S_T2}, s{S_T2}, 2')
            e(f's_add_u32 s{S_T0}, s{S_T0}, s{S_T2}')
            e(f'v_mov_b32 v32, s{S_T0}')
            e(f's_mov_b32 s{S_WC}, 0')
            if o.lb_t: e(f's_mov_b32 s{S_KX}, 0')
            if o.don:
                e(f's_cmp_eq_u32 s{S_NT}, 15')
                e(f's_cselect_b32 s{S_KX}, {4 * o.don_lag}, 0')
        if o.lb and o.tagk + 1 <= k <= 28:
            vm.room(1)
            e(f's_add_u32 s{S_T0}, s{S_N}, {4 * k}')
            e(f'v_mov_b32 v35, s{S_T0}')
            e('s_mov_b64 exec, 1')
            e(f'buffer_store_dword v35, v32, {sr(S_WS,4)}, 0 offen {o.lb_st}')
            e('s_mov_b64 exec, -1')
            vm.add('ps', 1)
        if o.lb and vm_pg[0] is not None and vm_pg[0] + 1 == k:
            vm.wait('pg')
            e(f'v_subrev_u32 v34, s{S_N}, v34')
            if o.lb_t:
                e(f'v_cmp_ge_u32 vcc, {4 * (k - 2)}, v34')
                e(f's_bcnt1_i32_b32 s{S_KX}, vcc_lo')
            e(f'v_subrev_u32 v34, {4 * k}, v34')
            if o.don: e(f'v_subrev_u32 v34, s{S_KX}, v34')
            e(f'v_cmp_gt_u32 vcc, 64, v34')
            e(f's_bcnt1_i32_b32 s{S_WC}, vcc_lo')
        if o.r6 and k == o.r6k: own_w(9, 1)
        if k in (o.tagk, o.r1k):
            vm.room(1); e(ld_cnt if k == o.tagk else ld_fl); vm.add('pl', 1)
        if k == 30 and not o.w3:
            tail_setup(e, o)
            vm.room(4 * o.nearly); e.many(e.early); vm.add('early', 4 * o.nearly)
        sh = []
        if o.w3 and o.w3k < k <= o.w3k + 6: sh = [2 * (k - o.w3k - 1), 2 * (k - o.w3k - 1) + 1]
        if o.w3 and k == o.w3k + 7: sh = [12]
        first = POS[f'K{k+1}']
        lk = o.look if o.look_k0 <= k < o.look_k1 else o.look_lo
        if k >= 28: lk = 7 if first + o.look_lo >= POS['V31'] else lk
        lim = min(first + lk, first + C.NR - 1, POS[C.TL])
        if k == 31: lim = POS[C.TL]
        if o.tsched == 1 and k in (29, 30): lim = min(lim, POS['T1'] + (k - 29))
        if o.tsched == 2 and k < 31: lim = min(lim, POS['V31'])
        if o.tsched == 3 and k == 29: lim = min(lim, POS['V31'])
        done_sh = False
        def do_shadow(fill):
            if sh == [12]:
                vm.wait('w12')
                e.many(wo_reads(lambda off, n: vr(32 + off, n), V_WA, V_WA + 1, 0))
                e('s_waitcnt lgkmcnt(0)')
            elif wev: e('s_waitcnt lgkmcnt(0)')
            for c in sh: vm.wait(f'o0_{c}')
            m = []
            for c in sh: m += shadow_mm(c, c == 0)
            gaps(e, m, fill(), per=3)
            for c in sh: T3.free += T3.where[(0, c)]
            vm.room(8); e.many(T3.pump(2))
        while issued < lim:
            issued += 1
            if o.lb and o.tagk + 1 <= k < 27 and issued == lim - 1 + o.lb_pos:
                vm.room(17)
                e(f'buffer_load_dword v34, v33, {sr(S_WS,4)}, 0 offen {o.lb_ld}')
                vm.add('pg', 1); vm_pg[0] = k
            if sh and issued == lim and issue_l(SEQ[issued]):
                def fill():
                    vm.room(16); vm.add(SEQ[issued], 16)
                    return issue_l(SEQ[issued])
                do_shadow(fill); done_sh = True
            elif o.gran < 16 and SEQ[issued][0] in 'KV' and k < o.thr_end and issue_l(SEQ[issued]):
                ins = issue_l(SEQ[issued]); ng = o.gran // 4
                for q in range(0, 4, ng):
                    vm.room(o.gran)
                    e.many(ins[(3 + 6 * q if q else 0):3 + 6 * (q + ng)])
                    vm.add(SEQ[issued] if q + ng == 4 else 'part', o.gran)
                    if q + ng == 4: break
                    if o.lb and o.tagk + 2 <= k:
                        while vm.out() > o.lb_hi: vm.wait(vm.q[0][0])
                        e(f's_cmp_ge_u32 s{S_WC}, {o.lb}')
                        e(f's_cbranch_scc1 L_deep{issued}_{q}')
                        e(f's_waitcnt vmcnt({o.thr})')
                        if o.don:
                            e(f's_cmp_lg_u32 s{S_NT}, 15')
                            e(f's_cbranch_scc1 L_deep{issued}_{q}')
                            e(f's_waitcnt vmcnt({o.don})')
                        e.lab(f'L_deep{issued}_{q}')
                    else:
                        while vm.out() > o.thr: vm.wait(vm.q[0][0])
            else:
                issue(SEQ[issued])
            if o.lb and o.tagk + 2 <= k < o.thr_end:
                while vm.out() > o.lb_hi: vm.wait(vm.q[0][0])
                e(f's_cmp_ge_u32 s{S_WC}, {o.lb}')
                e(f's_cbranch_scc1 L_deep{issued}')
                e(f's_waitcnt vmcnt({o.thr})')
                if o.lb_t:
                    e(f's_cmp_lt_u32 s{S_KX}, {o.lb_t}')
                    e(f's_cbranch_scc1 L_deep{issued}')
                    e(f's_waitcnt vmcnt({o.lb_lo})')
                e.lab(f'L_deep{issued}')
            else:
                while vm.out() > o.thr + (8 if done_sh else 0) and k < o.thr_end: vm.wait(vm.q[0][0])
        if sh and not done_sh: do_shadow(lambda: [])
        if o.w3 and k == o.w3k:
            vm.wait('po')
            e(f's_add_u32 s{S_T3}, s{S_N}, 1')
            poll(e, o, 'r1o', ld_own, ['v_and_b32 v23, -3, v23', f'v_cmp_eq_u32 vcc, s{S_T3}, v23'])
            tail_setup(e, o)
            T3.todo = [(0, c) for c in range(16)]
            vm.room(8); e.many(T3.pump(2))
        if k == o.tagk:
            vm.wait('pl')
            poll(e, o, 'tag', ld_cnt, ['v_cmp_ne_u32 vcc, 0, v23'])
            e(f'v_readfirstlane_b32 s{S_N}, v23')
        if k == o.r1k:
            vm.wait('pl')
            e(f's_add_u32 s{S_T3}, s{S_N}, 1')
            poll(e, o, 'r1', ld_fl, ['v_and_b32 v23, -3, v23', f'v_cmp_eq_u32 vcc, s{S_T3}, v23'])
        if wev is not None:
            e('s_waitcnt lgkmcnt(0)')
            own_w(wev)
    npre = 4 * o.npre
    if o.pre3 == 2:
        vm.room(npre + 1); e.many(e.pre)
    e('s_barrier')
    if o.pre3 == 1: vm.room(npre + 1)
    if o.pwf:
        assert o.pre3 == 1
        e(f'v_mov_b32 v0, s{S_N}')
    else: e.many(flag(3))
    if o.pre3 == 1: e.many(e.pre)
    e(f's_waitcnt vmcnt({npre if o.pre3 == 1 else npre + 1 if o.pre3 == 2 else 1})')
    if o.pre3 == 0: e.many(e.pre)
    vm.q = []

def a_addr(e, VA, VB, xl):
    L = V_LANE
    e(f'v_lshrrev_b32 v{V_T0}, 5, v{L}')
    e(f'v_bfe_u32 v{V_T1}, v{L}, 2, 2')
    e(f'v_lshl_add_u32 v{V_T2}, v{V_T0}, 3, v{V_T1}')
    e(f'v_lshlrev_b32 v{V_T2}, 8, v{V_T2}')
    e(f'v_lshl_add_u32 v{V_T2}, v{V_T1}, 6, v{V_T2}')
    e(f'v_bfe_u32 v{V_T3}, v{L}, 4, 1')
    e(f'v_lshl_add_u32 v{V_T2}, v{V_T3}, 5, v{V_T2}')
    e(f'v_and_b32 v{V_T3}, 1, v{L}')
    e(f'v_lshl_add_u32 v{V_T2}, v{V_T3}, 4, v{V_T2}')
    e(f'v_bfe_u32 v{V_T3}, v{L}, 1, 1')
    e(f'v_lshl_add_u32 v{V_T2}, v{V_T3}, 3, v{V_T2}')
    for t in range(4):
        e(f'v_xor_b32 v{VA+t}, {64*t}, v{V_T2}')
        e(f'v_add_u32 v{VA+t}, {reg_w(0)}, v{VA+t}')
    e(f'v_and_b32 v{V_T1}, 31, v{L}')
    e(f'v_bfe_u32 v{V_T2}, v{L}, 1, 3')
    e(f'v_xor_b32 v{V_T2}, v{V_T2}, v{V_T0}')
    e(f'v_lshlrev_b32 v{V_T2}, 4, v{V_T2}')
    e(f'v_lshl_add_u32 v{V_T2}, v{V_T1}, 7, v{V_T2}')
    if xl is not None:
        e(f's_add_u32 s{S_T0}, s{xl}, {reg_x(0)}')
    for s4 in range(4):
        e(f'v_xor_b32 v{VB+s4}, {32*s4}, v{V_T2}')
        e(f'v_add_u32 v{VB+s4}, s{S_T0}, v{VB+s4}' if xl is not None else f'v_add_u32 v{VB+s4}, {reg_x(0)}, v{VB+s4}')

def a_step(s, VA):
    r = []
    for i in range(8):
        d = reg_w(s + 1) - reg_w(s) if i < 4 else reg_x(s + 1) - reg_x(s)
        r.append(f'v_add_u32 v{VA+i}, {d}, v{VA+i}' if d > 0 else f'v_subrev_u32 v{VA+i}, {-d}, v{VA+i}')
    return r

SCALE = hex(struct.unpack("<I", struct.pack("<f", math.log2(math.e) / math.sqrt(128.0)))[0])
def conv(i, src, dst):
    a = src + 2 * i
    return [f'v_mul_f32 v{a}, s{S_C}, v{a}', f'v_mul_f32 v{a+1}, s{S_C}, v{a+1}', f'v_cvt_pk_bf16_f32 v{dst+i}, v{a}, v{a+1}']

def phase_a(e, o):
    L = V_LANE
    VA, VB = V_Q, V_Q + 4
    AF = [V_SA, V_SB]; BF = [V_P, V_TMP]; ACC = [128, 192]
    e(f'v_lshrrev_b32 v{V_T0}, 3, v{L}')
    e(f'v_mul_u32_u24 v{V_T0}, 1280, v{V_T0}')
    e(f'v_lshrrev_b32 v{V_T1}, 4, v{L}')
    e(f'v_and_b32 v{V_T2}, 7, v{L}')
    e(f'v_xor_b32 v{V_T1}, v{V_T1}, v{V_T2}')
    for i in range(4):
        e(f'v_xor_b32 v{V_T2}, {4*(i&1)}, v{V_T1}')
        e(f'v_lshl_add_u32 v{V_DMA+i}, v{V_T2}, 4, v{V_T0}')
        if i: e(f'v_add_u32 v{V_DMA+i}, {(10240-1024)*i}, v{V_DMA+i}')
    e(f's_mul_i32 s{S_XB}, s{S_BL}, 3')
    e(f's_add_u32 s{S_XB}, s{S_XB}, s{S_WAVE}')
    e(f's_mul_i32 s{S_OB}, s{S_BR}, 24')
    e(f's_add_u32 s{S_OB}, s{S_OB}, s{S_XB}')
    e(f's_mul_i32 s{S_XB}, s{S_XB}, 40960')
    def xload(s, it):
        r = []
        if it == 0:
            r.append(f's_lshl_b32 s{S_T0}, s{S_KX}, 7')
            r.append(f's_add_u32 s{S_T0}, s{S_T0}, s{S_XB}')
        r.append(f's_add_u32 m0, s{S_XL}, {reg_x(s) + 4096*it}')
        r.append(f's_add_u32 s{S_T1}, s{S_T0}, {491520*it}')
        for i in range(4):
            ld = f'buffer_load_dwordx4 v{V_DMA+i}, {sr(S_X,4)}, s{S_T1} offen offset:{1024*i} {o.w_flags} lds'
            if o.dq2 and it == 1: ld = f's_mov_b64 exec, 1\n    buffer_load_dwordx4 v{V_DMA}, {sr(S_X,4)}, s{S_T1} offen lds\n    s_mov_b64 exec, -1'
            r.append(ld)
        if it == 1:
            if s + 1 < o.nun: r.append(f's_mov_b32 s{S_KX}, {s + 1}')
            elif s + 1 == o.nun: r.append(f's_mov_b32 s{S_KX}, s{S_KR}')
            else:
                r.append(f's_add_u32 s{S_KX}, s{S_KX}, 1')
                r.append(f's_cmp_eq_u32 s{S_KX}, 10')
                r.append(f's_cselect_b32 s{S_KX}, {o.nun}, s{S_KX}')
        return r
    if o.nun:
        for _ in range(2):
            e(f's_cmp_ge_u32 s{S_KX}, {10 - o.nun}')
            e(f's_cselect_b32 s{S_T0}, {10 - o.nun}, 0')
            e(f's_sub_u32 s{S_KX}, s{S_KX}, s{S_T0}')
        e(f's_add_u32 s{S_KR}, s{S_KX}, {o.nun}')
        e(f's_mov_b32 s{S_KX}, 0')
    VWQ = V_Q + 8
    e(f'v_lshrrev_b32 v{V_T0}, 4, v{L}')
    e(f'v_and_b32 v{V_T1}, 15, v{L}')
    e(f'v_lshlrev_b32 v{V_T3}, 2, v{V_T0}')
    e(f'v_xor_b32 v{V_T3}, v{V_T3}, v{V_T1}')
    e(f'v_lshlrev_b32 v{V_T2}, 13, v{V_T0}')
    e(f'v_lshl_add_u32 v{VWQ}, v{V_T3}, 4, v{V_T2}')
    for i in range(1, 4): e(f'v_add_u32 v{VWQ+i}, {(32768-1024)*i}, v{VWQ}')
    e(f's_mul_i32 s{S_KVB}, s{S_WAVE}, {5*32768}')
    e(f's_lshl_b32 s{S_T0}, s{S_H}, 8')
    e(f's_add_u32 s{S_KVB}, s{S_KVB}, s{S_T0}')
    e(f's_mul_i32 s{S_FL}, s{S_WAVE}, {5*1024}')
    if o.nodup:
        e(f's_mul_i32 s{S_N}, s{S_WAVE}, {5*32768}')
        e(f's_sub_u32 s{S_N}, {15*32768}, s{S_N}')
        e(f's_mov_b64 {sr(S_SAVE,2)}, 0xffffff')
        e(f's_cmp_eq_u32 s{S_WAVE}, 1')
        e(f's_cselect_b32 s{S_SAVE}, 0xff000000, s{S_SAVE}')
        e(f's_cselect_b32 s{S_SAVE+1}, 0xfff, s{S_SAVE+1}')
        e(f's_cmp_eq_u32 s{S_WAVE}, 2')
        e(f's_cselect_b32 s{S_SAVE}, 0, s{S_SAVE}')
        e(f's_cselect_b32 s{S_SAVE+1}, 0xfffff000, s{S_SAVE+1}')
    def wqload(s):
        r = [f's_lshl_b32 s{S_T2}, s{S_KX}, 19', f's_add_u32 s{S_T2}, s{S_T2}, s{S_KVB}']
        for t in range(5 if o.nodup else 6):
            if t % 4 == 0:
                r.append(f's_add_u32 m0, s{S_FL}, {reg_w(s) + 1024*t}')
                r.append(f's_add_u32 s{S_T1}, s{S_T2}, {32768*t}')
            r.append(f'buffer_load_dwordx4 v{VWQ+(t&3)}, {sr(S_WQ,4)}, s{S_T1} offen offset:{1024*(t&3)} {o.w_flags} lds')
        if o.nodup:
            r.append(f's_mov_b32 m0, {reg_w(s) + 15*1024}')
            r.append(f's_add_u32 s{S_T1}, s{S_T2}, s{S_N}')
            r.append(f's_mov_b64 exec, {sr(S_SAVE,2)}\n    buffer_load_dwordx4 v{VWQ}, {sr(S_WQ,4)}, s{S_T1} offen {o.w_flags} lds\n    s_mov_b64 exec, -1')
        return r
    srds(e, o)
    e.many(wqload(0)); e.many(xload(0, 0)); e.many(xload(0, 1))
    e.first_loads = len(e.L)
    lazy(e, o, 2)
    no_task_wo(e)
    e(f's_lshl_b32 s{S_OB}, s{S_OB}, 5')
    e(f's_add_u32 s{S_OB}, s{S_OB}, s{S_H}')
    e(f's_lshl_b32 s{S_OB}, s{S_OB}, 13')
    a_addr(e, VA, VB, S_XL)
    e(f'v_and_b32 v{V_T2}, 15, v{L}')
    e(f'v_xor_b32 v{V_T2}, v{V_T2}, v{V_T0}')
    e(f'v_lshlrev_b32 v{V_T2}, 4, v{V_T2}')
    e(f'v_lshl_add_u32 v{V_T2}, v{V_T1}, 8, v{V_T2}')
    for s in range(8):
        e(f'v_xor_b32 v{V_KA+s}, {32*s}, v{V_T2}')
        e(f'v_add_u32 v{V_KA+s}, {slot_addr("K0")}, v{V_KA+s}')
    e(f'v_bfe_u32 v{V_T1}, v{L}, 2, 2')
    e(f'v_lshl_add_u32 v{V_T2}, v{V_T0}, 2, v{V_T1}')
    e(f'v_lshlrev_b32 v{V_T2}, 8, v{V_T2}')
    e(f'v_lshl_add_u32 v{V_T2}, v{V_T1}, 6, v{V_T2}')
    e(f'v_bfe_u32 v{V_T3}, v{L}, 4, 1')
    e(f'v_lshl_add_u32 v{V_T2}, v{V_T3}, 5, v{V_T2}')
    e(f'v_and_b32 v{V_T3}, 3, v{L}')
    e(f'v_lshl_add_u32 v{V_T2}, v{V_T3}, 3, v{V_T2}')
    e(f'v_add_u32 v{V_T2}, {slot_addr("V0")}, v{V_T2}')
    for t in range(4): e(f'v_xor_b32 v{V_VA+t}, {64*t}, v{V_T2}')
    e(f'v_lshlrev_b32 v{V_OST}, 4, v{L}')
    e(f'v_add_u32 v{V_OST+3}, s{S_XL}, v{V_OST}')
    wo_lane_addr(e, V_WA)
    e(f'v_add_u32 v{V_WA}, s{S_XL}, v{V_WA}')
    if C.M16:
        e(f'v_and_b32 v{V_T0}, 15, v{L}')
        e(f'v_lshlrev_b32 v{V_WA+1}, 4, v{V_T0}')
        e(f'v_bfe_u32 v{V_T0}, v{L}, 4, 1')
        e(f'v_lshl_add_u32 v{V_WA+1}, v{V_T0}, 10, v{V_WA+1}')
        e(f'v_lshrrev_b32 v{V_T0}, 5, v{L}')
        e(f'v_lshl_add_u32 v{V_WA+1}, v{V_T0}, 8, v{V_WA+1}')
    else:
        e(f'v_xor_b32 v{V_WA+1}, 64, v{V_WA}')
    e(f's_mul_i32 s{S_WQB}, s{S_WAVE}, {1024*1280}')
    e(f's_add_u32 s{S_WQB}, s{S_WQB}, s{S_WOB}')
    e(f's_mov_b32 s{S_WC}, s{S_RHO}')
    if o.wst:
        e(f's_mov_b32 s{S_WN}, {int(o.wst[0]) + 1}')
        for w in (1, 2):
            e(f's_cmp_eq_u32 s{S_WAVE}, {w}')
            e(f's_cselect_b32 s{S_WN}, {int(o.wst[w]) + 1}, s{S_WN}')
    else:
        e(f's_add_u32 s{S_WN}, s{S_WAVE}, {o.w0 + 1}')
    e(f's_mov_b32 s{S_EV}, 0')
    for i in range(64): e(f'v_accvgpr_write_b32 a{i}, 0')
    for i in range(16): e(f'v_mov_b32 v{V_NEGM+i}, 0')
    for i in range(4): e(f'v_mov_b32 v{V_L+i}, 0')
    e(f's_mov_b32 s{S_C}, {SCALE}')
    e(f's_mov_b32 s{S_THR}, 0xff800000')
    e(f's_mov_b32 s{S_FLOOR}, 0xff800000')
    e(f's_mov_b32 s{S_TICK}, 0')
    e(f's_mov_b32 s{S_KOFF}, {slot("K1")*SLOT}')
    e(f's_mov_b32 s{S_VOFF}, {slot("V0")*SLOT}')
    nst = 0
    lazy(e, o, 5)
    e.many(wqload(1)); e.many(xload(1, 0)); e.many(xload(1, 1))
    lazy(e, o, 6)
    def reads(s4, buf):
        r = [f'ds_read_b128 {vr(BF[buf]+4*it,4)}, v{VB+s4} offset:{4096*it}' for it in range(1 if o.dq2 else 2)]
        for t in range(4):
            for u in range(2):
                r.append(f'ds_read_b64_tr_b16 {vr(AF[buf]+4*t+2*u,2)}, v{VA+t} offset:{(16*s4+4*u)*256}')
        return r
    def mf(buf, first):
        r = []
        for t in range(4):
            for it in range(2):
                if it == 1 and (t >= 2 or o.dq2): continue
                d = vr(ACC[it] + 16 * t, 16)
                r.append(mfma(d, vr(AF[buf] + 4 * t, 4), vr(BF[buf] + 4 * it, 4), '0' if first else d))
        return r
    e(f's_waitcnt vmcnt({14 + nst})')
    lazy(e, o, 7)
    e('s_barrier')
    lazy(e, o, 8)
    dmark(e, o, 0)
    e.many(reads(0, 0))
    e.skip = o.a_skip
    for s in range(10):
        for s4 in range(4):
            step = 4 * s + s4; buf = step & 1
            if step in (8, 16, 24, 32, 39): lazy(e, o, 9 + (8, 16, 24, 32, 39).index(step))
            if o.stamps and step in (8, 32): e(f's_memtime s[{LAZY[3 if step == 8 else 4]}:{LAZY[3 if step == 8 else 4]+1}]')
            m = mf(buf, step == 0)
            late = []
            e('s_waitcnt lgkmcnt(0)')
            if s4 == 3:
                if s < 9:
                    e(f's_waitcnt vmcnt({(14 if s + 2 <= 9 else 0) + (nst if s < 2 else 0)})')
                e('s_barrier')
                if s + 3 <= 9: late = wqload(s + 3)
            if s4 == 0 and s + 2 <= 9: late = (wqload(2) if s == 0 else []) + xload(s + 2, 0)
            if s4 == 1 and s + 2 <= 9: late = xload(s + 2, 1)
            if s4 == 2 and s < 9: late = a_step(s, VA)
            front = reads((s4 + 1) & 3, buf ^ 1) if step < 39 else []
            gaps(e, m, front, late, per=(5 if o.dq2 else o.aper), late_from=(3 if o.aper == 3 and s4 == 2 else 2 if o.aper >= 4 else 1))
    e.skip = ''
    wo_voffs(e, V_DMA)
    e('s_nop 4')
    for i in range(16): e.many(conv(i, ACC[0], V_Q))
    e.many(k_reads(0))
    for i in range(16, 32): e.many(conv(i, ACC[0], V_Q))

def k_reads(half):
    return [f'ds_read_b128 {vr(V_KF+4*s,4)}, v{V_KA+s} offset:{8192*half}' for s in range(8)]
def v_reads(half):
    r = []
    for jj in range(2):
        for t in range(4):
            for u in range(2):
                r.append(f'ds_read_b64_tr_b16 {vr(V_VF+16*jj+4*t+2*u,2)}, v{V_VA+t} offset:{(32*half+16*jj+8*u)*256}')
    return r
def qk(S):
    return [mfma(vr(S, 16), vr(V_KF + 4 * s, 4), vr(V_Q + 4 * s, 4), vr(V_NEGM, 16) if s == 0 else vr(S, 16)) for s in range(8)]
def pv():
    return [mfma(ar(16 * t, 16), vr(V_VF + 16 * jj + 4 * t, 4), vr(V_P + 4 * jj, 4), ar(16 * t, 16)) for jj in range(2) for t in range(4)]
def maxes(S):
    r = [f'v_max3_f32 v{V_MX}, v{S}, v{S+1}, v{S+2}', f'v_max3_f32 v{V_D}, v{S+3}, v{S+4}, v{S+5}']
    r += [f'v_max3_f32 v{V_MX}, v{V_MX}, v{S+6}, v{S+7}', f'v_max3_f32 v{V_D}, v{V_D}, v{S+8}, v{S+9}']
    r += [f'v_max3_f32 v{V_MX}, v{V_MX}, v{S+10}, v{S+11}', f'v_max3_f32 v{V_D}, v{V_D}, v{S+12}, v{S+13}']
    r += [f'v_max3_f32 v{V_MX}, v{V_MX}, v{S+14}, v{S+15}', f'v_max_f32 v{V_MX}, v{V_MX}, v{V_D}']
    r += [f'v_cmp_lt_f32 vcc, s{S_THR}, v{V_MX}']
    return r

def half_tick(e, Snew, Sold, vhalf, khalf, extra_v=(), extra_k=(), extra_8=()):
    ex = lambda i: f'v_exp_f32 v{Sold+i}, v{Sold+i}'
    cv = lambda i: f'v_cvt_pk_bf16_f32 v{V_P+i}, v{Sold+2*i}, v{Sold+2*i+1}'
    ad = lambda i: f'v_add_f32 v{V_L+(i&3)}, v{V_L+(i&3)}, v{Sold+i}'
    m = qk(Snew) + pv()
    m[8] = ['s_waitcnt lgkmcnt(0)', m[8]]
    if e.mix:
        vr_ = v_reads(vhalf); fill = []
        for i in range(8):
            fill += vr_[:e.mix] + [ex(i)]; vr_ = vr_[e.mix:]
        fill += vr_ + list(extra_v) + [cv(i) for i in range(4)] + [ex(i) for i in range(8, 12)]
    else:
        fill = v_reads(vhalf) + [ex(i) for i in range(8)] + list(extra_v) + [cv(i) for i in range(4)] + [ex(i) for i in range(8, 12)]
    fill += [('M', 8), ('A', 8)] + (k_reads(khalf) if khalf is not None else []) + [ex(i) for i in range(12, 16)] + [ad(0)]
    fill += [cv(i) for i in range(4, 8)] + [ad(1), ad(2)]
    rest = [ad(i) for i in range(3, 16)]
    x8 = list(extra_8)
    fill += [('M', 12)]
    while rest or x8:
        if rest: fill.append(rest.pop(0))
        fill += x8[:3]; x8 = x8[3:]
    fill += list(extra_k) + maxes(Snew)
    e('s_waitcnt lgkmcnt(0)')
    interleave(e, m, fill)

def last_half(e, Sold, extra=()):
    ex = lambda i: f'v_exp_f32 v{Sold+i}, v{Sold+i}'
    cv = lambda i: f'v_cvt_pk_bf16_f32 v{V_P+i}, v{Sold+2*i}, v{Sold+2*i+1}'
    ad = lambda i: f'v_add_f32 v{V_L+(i&3)}, v{V_L+(i&3)}, v{Sold+i}'
    e.many(v_reads(1))
    e.many(extra)
    e.many([ex(i) for i in range(8)] + [cv(i) for i in range(4)] + [ex(8), ex(9)])
    e('s_waitcnt lgkmcnt(0)')
    fill = [ex(i) for i in range(10, 16)] + [ad(0)] + [cv(i) for i in range(4, 8)] + [ad(1), ad(2), ('M', 4)] + [ad(i) for i in range(3, 16)]
    interleave(e, pv(), fill)

def rare(e, S, back):
    e('s_nop 7')
    e(f'v_mov_b32 v{V_T0}, v{V_MX}')
    e('s_nop 1')
    e(f'v_permlane32_swap_b32 v{V_T0}, v{V_MX}')
    e('s_nop 1')
    e(f'v_max_f32 v{V_D}, v{V_T0}, v{V_MX}')
    e(f'v_max_f32 v{V_D}, s{S_FLOOR}, v{V_D}')
    for i in range(16): e(f'v_sub_f32 v{S+i}, v{S+i}, v{V_D}')
    for i in range(16): e(f'v_sub_f32 v{V_NEGM+i}, v{V_NEGM+i}, v{V_D}')
    e(f's_cmp_lg_u32 s{S_FLOOR}, 0')
    e(f's_mov_b32 s{S_THR}, 0x41000000')
    e(f's_mov_b32 s{S_FLOOR}, 0')
    e(f's_cbranch_scc1 {back}')
    e(f'v_sub_f32 v{V_T0}, 0, v{V_D}')
    e(f'v_exp_f32 v{V_T0}, v{V_T0}')
    e('s_nop 0')
    for i in range(4): e(f'v_mul_f32 v{V_L+i}, v{V_L+i}, v{V_T0}')
    for i in range(0, 64, 4):
        for j in range(4): e(f'v_accvgpr_read_b32 v{V_TMP+j}, a{i+j}')
        for j in range(4): e(f'v_mul_f32 v{V_TMP+j}, v{V_TMP+j}, v{V_T0}')
        for j in range(4): e(f'v_accvgpr_write_b32 a{i+j}, v{V_TMP+j}')
    e('s_nop 1')
    e(f's_branch {back}')

def epilogue(e, o):
    e(f'v_add_f32 v{V_L}, v{V_L}, v{V_L+1}')
    e(f'v_add_f32 v{V_L+2}, v{V_L+2}, v{V_L+3}')
    e(f'v_add_f32 v{V_L}, v{V_L}, v{V_L+2}')
    e(f'v_mov_b32 v{V_T0}, v{V_L}')
    e('s_nop 1')
    e(f'v_permlane32_swap_b32 v{V_T0}, v{V_L}')
    e('s_nop 1')
    e(f'v_add_f32 v{V_L}, v{V_L}, v{V_T0}')
    e(f'v_rcp_f32 v{V_T0}, v{V_L}')
    e('s_nop 4')
    for f in range(8):
        t = V_VF + 8 * (f & 3)
        for j in range(8): e(f'v_accvgpr_read_b32 v{t+j}, a{8*f+j}')
        if o.pk:
            for j in range(0, 8, 2): e(f'v_pk_mul_f32 {vr(t+j,2)}, {vr(t+j,2)}, {vr(V_T0,2)} op_sel_hi:[1,0]')
        else:
            for j in range(8): e(f'v_mul_f32 v{t+j}, v{t+j}, v{V_T0}')
        d = V_TMP + 4 * (f & 1)
        for j in range(4): e(f'v_cvt_pk_bf16_f32 v{d+j}, v{t+2*j}, v{t+2*j+1}')
        if f == 4: e(f's_add_u32 s{S_OB}, s{S_OB}, 4096')
        if C.M16: e(f'buffer_store_dwordx4 {vr(d,4)}, v{V_WA+1}, {sr(S_WS,4)}, s{S_OB} offen offset:{2048*((f>>1)&1) + 512*(f&1)} {o.ost_flags}')
        else: e(f'buffer_store_dwordx4 {vr(d,4)}, v{V_OST}, {sr(S_WS,4)}, s{S_OB} offen offset:{1024*(f&3)} {o.ost_flags}')

def w_snippets(e, o, ret):
    e('s_waitcnt vmcnt(0)')
    def tree(lo, n):
        if n == 1:
            if lo == 0:
                for f in range(4): e(f'ds_read_b128 {vr(224+4*f,4)}, v{V_OST+3} offset:{1024*f}')
                if o.t15:
                    for i in range(16): e.many(conv(i, V_Q2, V_Q2))
            else:
                e.many(wo_reads(lambda off, nn: hold(lo - 1, off, nn), V_WA, V_WA + 1, 0))
                if o.pwf and lo == 2:
                    e('v_mov_b32 v0, 0')
                    e(f'global_load_dword v0, v0, {sr(S_DBG,2)} sc1')
                if o.r6 and lo == o.r6e: e.many(wo_dma(o, 9, f's{S_XL}', 32768, f's{S_WQB}', V_DMA))
            e('s_branch L_sn_done')
            return
        h = (n + 1) // 2
        e(f's_cmp_ge_u32 s{S_EV}, {lo+h}')
        e(f's_cbranch_scc1 L_sn_{lo+h}')
        tree(lo, h)
        e.lab(f'L_sn_{lo+h}')
        tree(lo + h, n - h)
    tree(0, 9)
    e.lab('L_sn_done')
    e(f's_add_u32 s{S_EV}, s{S_EV}, 1')
    e(f's_cmp_eq_u32 s{S_EV}, 9')
    e(f's_cselect_b32 s{S_WN}, 64, {o.wper}')
    if o.t15:
        e(f's_cmp_eq_u32 s{S_TICK}, {16 - o.wper}')
        e(f's_cselect_b32 s{S_WN}, {o.wper + 1}, s{S_WN}')
    e('s_waitcnt lgkmcnt(0)')
    e.many(wo_dma(o, 0, f's{S_XL}', 0, f's{S_WQB}', V_DMA, dyn=True))
    e(f's_branch {ret}')

def phase_b(e, o):
    lazy(e, o, 14)
    if o.prio == 2: e('s_setprio 3')
    dmark(e, o, 1)
    lazy_dump(e, o, range(15))
    stamp(e, o, 1)
    e('s_waitcnt lgkmcnt(0)')
    e.many(qk(V_SA))
    e.many(k_reads(1))
    for s in range(8): e(f'v_add_u32 v{V_KA+s}, {SLOT}, v{V_KA+s}')
    e('s_nop 3')
    e.many(maxes(V_SA))
    e('s_branch L_rare_a')
    def adv(soff, tmp, base, n):
        r = [f's_cmp_ge_u32 s{soff}, {(C.NR-2)*SLOT}', f's_cselect_b32 s{S_T3}, {C.NR*SLOT}, 0',
             f's_sub_u32 s{S_T3}, {2*SLOT}, s{S_T3}', f's_add_u32 s{soff}, s{soff}, s{S_T3}']
        r += [f'v_add_u32 v{base+i}, s{S_T3}, v{base+i}' for i in range(n)]
        return r
    align(e, o.al_t)
    e.lab('L_tick')
    e('s_waitcnt lgkmcnt(0)')
    e('s_barrier')
    e(f's_cmp_eq_u32 s{S_TICK}, 31')
    e('s_cbranch_scc1 L_last')
    half_tick(e, V_SB, V_SA, 0, 0)
    e('s_cbranch_vccnz L_rare_b')
    e.lab('L_back_b')
    e(f's_cmp_eq_u32 s{S_TICK}, 15')
    e('s_cbranch_scc1 L_switch')
    e.lab('L_back_sw')
    half_tick(e, V_SA, V_SB, 1, 1, extra_v=adv(S_VOFF, S_T0, V_VA, 4), extra_k=adv(S_KOFF, S_T1, V_KA, 8))
    e(f's_add_u32 s{S_TICK}, s{S_TICK}, 1')
    e(f's_sub_u32 s{S_WN}, s{S_WN}, 1')
    e(f's_cmp_eq_u32 s{S_WN}, 0')
    e('s_cbranch_scc1 L_snip')
    e.lab('L_snip_ret')
    e(f's_cmp_eq_u32 s{S_TICK}, 16')
    e('s_cbranch_scc1 L_epi1')
    e('s_cbranch_vccz L_tick')
    e.lab('L_rare_a')
    rare(e, V_SA, 'L_tick')
    e.lab('L_snip')
    w_snippets(e, o, 'L_snip_ret')
    e.lab('L_rare_b')
    rare(e, V_SB, 'L_back_b')
    e.lab('L_switch')
    for i in range(16): e(f'v_mov_b32 v{V_Q+16+i}, v{224+i}')
    for i in range(16): e.many([f'v_mov_b32 v{V_Q+i}, v{V_Q2+i}'] if o.t15 else conv(i, V_Q2, V_Q))
    for i in range(16): e(f'v_mov_b32 v{V_NEGM+i}, 0')
    e('s_nop 1')
    e('s_branch L_back_sw')
    e.lab('L_epi1')
    epilogue(e, o)
    e(f's_add_u32 s{S_OB}, s{S_OB}, {RND - 4096}')
    if o.t15:
        for t in range(4): e(mfma(ar(16 * t, 16), vr(V_NEGM, 4), vr(V_NEGM, 4), '0'))
    else:
        for i in range(64): e(f'v_accvgpr_write_b32 a{i}, 0')
    for i in range(4): e(f'v_mov_b32 v{V_L+i}, 0')
    e(f's_mov_b32 s{S_FLOOR}, 0xff800000')
    stamp(e, o, 2)
    dmark(e, o, 2)
    e('s_branch L_rare_a')
    e.lab('L_rare_l')
    rare(e, V_SB, 'L_back_l')
    e.lab('L_last')
    T = tail_pre(e, o)
    e.early = T.pump(min(o.nearly, 4))
    half_tick(e, V_SB, V_SA, 0, None, extra_8=e.early)
    e('s_cbranch_vccnz L_rare_l')
    e.lab('L_back_l')
    x = T.pump(max(o.nearly - 4, 0))
    e.early += x
    last_half(e, V_SB, x)
    epilogue(e, o)
    return T

def tail_setup(e, o):
    e(f's_mul_i32 s{S_O1}, s{S_BR}, 24')
    e(f's_add_u32 s{S_O1}, s{S_O1}, s{S_QT}')
    e(f's_lshl_b32 s{S_O1}, s{S_O1}, 2')
    e(f's_add_u32 s{S_O1}, s{S_O1}, s{S_WAVE}')
    e(f's_lshl_b32 s{S_O1}, s{S_O1}, 16')

POOL = list(range(96, 160, 4)) + [32, 36, 40, 44, 16, 20, 24, 80, 84] + list(range(160, 192, 4)) + [88, 92]
ORDER1 = [0, 1, 2, 8, 3, 9, 4, 10, 5, 11, 6, 12, 7]
ORDER2 = [8, 0, 9, 1, 10, 2, 11, 3, 12, 4, 13, 14, 15, 5, 6, 7]

class Tail:
    def __init__(self, e, o):
        self.e, self.o = e, o
        self.vm = Vm(e)
        self.free = list(POOL)
        self.where = {}
        self.todo = []
    def oload(self, rnd, c):
        e = self.e
        regs = [self.free.pop(0) for _ in range(4)]
        self.where[(rnd, c)] = regs
        r = [f's_add_u32 s{S_T1}, s{S_RHO}, {c}', f's_and_b32 s{S_T1}, s{S_T1}, 15', f's_lshl_b32 s{S_T1}, s{S_T1}, 12',
             f's_add_u32 s{S_T1}, s{S_T1}, s{S_O1}']
        if rnd and not self.o.t_o1: r.append(f's_add_u32 s{S_T1}, s{S_T1}, {RND}')
        if rnd and self.o.t_noo: return []
        if not rnd and self.o.t_no1: return []
        for s4 in range(4):
            r.append(f'buffer_load_dwordx4 {reg4(regs[s4])}, v{V_OST}, {sr(S_WS,4)}, s{S_T1} offen offset:{1024*s4} {self.o.old_flags}')
        self.vm.add(f'o{rnd}_{c}', 4)
        return r
    def pump(self, lim=99):
        r = []
        while self.todo and len(self.free) >= 4 and self.vm.out() + 4 <= self.o.maxout and lim > 0:
            lim -= 1
            r += self.oload(*self.todo.pop(0))
        return r

def tail_pre(e, o):
    T = Tail(e, o)
    tail_setup(e, o)
    T.todo = [(0, c) for c in ORDER1]
    return T

def tail(e, o, T, w3=False):
    L = V_LANE
    vm = T.vm
    sfx = '3' if w3 else ''
    RA = 6
    TEMP = 48
    e(f's_cmp_eq_u32 s{S_NT}, 15')
    e('s_cbranch_scc1 L_exit')
    e(f's_mul_i32 s{S_WQB}, s{S_WAVE}, {1024*1280}')
    e(f's_add_u32 s{S_WQB}, s{S_WQB}, s{S_WOB}')
    if w3:
        T.free += [12, 16, 20, 24]
        e('s_barrier')
    e.many(T.pump())
    if not w3:
        vm.room(8)
        e.many(wo_dma(o, 12, f's{S_XL}', C.PIECE[12] * 32768, f's{S_WQB}', V_DMA))
        vm.add('late', 8)
    for b in range(3):
        e(f'v_add_u32 v{RA+2*b}, {65536*b}, v{V_WA}')
        if not C.M16: e(f'v_add_u32 v{RA+2*b+1}, {65536*b}, v{V_WA+1}')
    if o.pwf:
        e(f's_mul_i32 s{S_T0}, s{S_BR}, 12')
        e(f's_add_u32 s{S_T0}, s{S_T0}, s{S_QT}')
    else:
        e(f's_lshl_b32 s{S_T0}, s{S_BR}, 2')
        e(f's_add_u32 s{S_T0}, s{S_T0}, s{S_QB}')
    e(f's_lshl_b32 s{S_T0}, s{S_T0}, 2')
    e(f's_add_u32 s{S_T0}, s{S_T0}, s{S_WAVE}')
    e(f's_lshl_b32 s{S_T0}, s{S_T0}, 10')
    e(f's_add_u32 s{S_T0}, s{S_T0}, {WS_FLAG2 if o.pwf else WS_FLAGS}')
    e(f'v_and_b32 v31, 7, v{L}')
    e(f'v_lshlrev_b32 v31, 7, v31')
    e(f'v_add_u32 v31, s{S_T0}, v31')
    if not o.pwf: e('v_mov_b32 v0, 0')
    piece = C.PIECE
    tmp_of = {}
    def rd(c, dstf):
        j = piece[c]
        return wo_reads(dstf, RA + 2 * (j >> 1), RA + 2 * (j >> 1) + 1, 32768 * (j & 1), tmp=(RA + 1, RA + 3, RA + 5))
    def afrag(c):
        if c < 8: return lambda off, n: hold(c, off, n)
        if c >= 13: return lambda off, n: hold(c - 13, off, n)
        return lambda off, n: vr(TEMP + off, n)
    first = {0: True, 1: True}
    def mms(c, rnds):
        m = []
        if C.M16:
            for F in range(2):
                for rnd in rnds:
                    for n in range(4):
                        for qh in range(2):
                            d = ar(32 * rnd + 8 * n + 4 * qh, 4)
                            m.append(f'v_mfma_f32_16x16x32_bf16 {d}, {afrag(c)(16 * F + 4 * n, 4)}, {reg4(T.where[(rnd, c)][2 * F + qh])}, ' + ('0' if (first[rnd] and F == 0) else d))
            for rnd in rnds: first[rnd] = False
            return m
        for s4 in range(4):
            for rnd in rnds:
                for nt in range(2):
                    d = ar(32 * rnd + 16 * nt, 16)
                    m.append(mfma(d, afrag(c)(8 * s4 + 4 * nt, 4), reg4(T.where[(rnd, c)][s4]), '0' if (first[rnd] and s4 == 0) else d))
        for rnd in rnds: first[rnd] = False
        return m
    def wdma(c):
        if o.t_now: return []
        vm.add(f'w{c}', 8)
        return wo_dma(o, c, f's{S_XL}', 32768 * piece[c], f's{S_WQB}', V_DMA)
    ld_fl = f'buffer_load_dword v{V_T2}, v31, {sr(S_WS,4)}, 0 offen sc1'
    WA, RDA, VOUT = 48, 56, 60
    S_OO = S_KOFF
    fin = [f'v_and_b32 v{V_T0}, 31, v{L}', f'v_lshrrev_b32 v{V_T1}, 5, v{L}', f'v_and_b32 v{V_T3}, 15, v{L}',
           f'v_xor_b32 v{V_T1}, v{V_T1}, v{V_T3}', f'v_lshlrev_b32 v{V_T1}, 4, v{V_T1}',
           f'v_lshl_add_u32 v{V_T0}, v{V_T0}, 8, v{V_T1}', f's_add_u32 s{S_T3}, s{S_XL}, {C.SCR*32768}',
           f'v_add_u32 v{V_T0}, s{S_T3}, v{V_T0}']
    fin += [f'v_xor_b32 v{WA+k}, {32*k}, v{V_T0}' for k in range(8)]
    if C.M16:
        fin = [f'v_and_b32 v{V_T0}, 15, v{L}', f'v_lshrrev_b32 v{V_T1}, 4, v{L}', f'v_xor_b32 v{V_T1}, v{V_T1}, v{V_T0}',
               f'v_lshlrev_b32 v{V_T1}, 4, v{V_T1}', f'v_lshl_add_u32 v{V_T0}, v{V_T0}, 8, v{V_T1}',
               f's_add_u32 s{S_T3}, s{S_XL}, {C.SCR*32768}', f'v_add_u32 v{V_T0}, s{S_T3}, v{V_T0}']
        fin += [f'v_xor_b32 v{WA+k}, {64*k}, v{V_T0}' for k in range(4)]
    fin2 = [f's_lshr_b32 s{S_VOFF}, s{S_WAVE}, 1', f's_and_b32 s{S_THR}, s{S_WAVE}, 1',
            f's_lshl_b32 s{S_T2}, s{S_VOFF}, 15', f's_lshl_b32 s{S_T3}, s{S_THR}, 12',
            f's_add_u32 s{S_T2}, s{S_T2}, s{S_T3}', f's_add_u32 s{S_T2}, s{S_T2}, {C.SCR*32768}',
            f'v_lshrrev_b32 v{V_T1}, 3, v{L}', f'v_and_b32 v{V_T3}, 7, v{L}', f'v_lshlrev_b32 v{V_T0}, 1, v{V_T3}',
            f'v_xor_b32 v{V_T0}, v{V_T0}, v{V_T1}', f'v_lshlrev_b32 v{V_T0}, 4, v{V_T0}',
            f'v_lshl_add_u32 v{V_T0}, v{V_T1}, 8, v{V_T0}', f'v_add_u32 v{RDA}, s{S_T2}, v{V_T0}',
            f'v_xor_b32 v{RDA+1}, 16, v{RDA}', f'v_xor_b32 v{RDA+2}, {2048+128}, v{RDA}', f'v_xor_b32 v{RDA+3}, 16, v{RDA+2}',
            f's_lshl_b32 s{S_OO}, s{S_QT}, 5', f's_mul_i32 s{S_VOFF}, s{S_VOFF}, 384', f's_add_u32 s{S_OO}, s{S_OO}, s{S_VOFF}',
            f's_lshl_b32 s{S_THR}, s{S_THR}, 4', f's_add_u32 s{S_OO}, s{S_OO}, s{S_THR}', f's_mul_i32 s{S_OO}, s{S_OO}, 2560',
            f's_mul_i32 s{S_T3}, s{S_BR}, 1280', f's_add_u32 s{S_OO}, s{S_OO}, s{S_T3}', f's_add_u32 s{S_OO}, s{S_OO}, s{S_WOB}',
            f'v_mul_u32_u24 v{V_T1}, 2560, v{V_T1}', f'v_lshl_add_u32 v{VOUT}, v{V_T3}, 4, v{V_T1}']
    def pwrite(rnd):
        if C.M16:
            return [f'ds_write_b128 v{WA+n}, {ar(32*rnd+8*n+4*qh,4)} offset:{rnd*32768 + 4096*qh}' for n in range(4) for qh in range(2)]
        return [f'ds_write_b128 v{WA+4*nt+g}, {ar(32*rnd+16*nt+4*g,4)} offset:{rnd*32768}' for nt in range(2) for g in range(4)]
    if w3:
        ld_tag = f'global_load_dword v30, v0, {sr(S_DBG,2)} sc1'
        first[0] = False
        def mm3(c, rnd, af):
            m = []
            for s4 in range(4):
                for nt in range(2):
                    d = ar(32 * rnd + 16 * nt, 16)
                    m.append(mfma(d, af(8 * s4 + 4 * nt, 4), reg4(T.where[(rnd, c)][s4]), '0' if (first[rnd] and s4 == 0) else d))
            first[rnd] = False
            return m
        t1 = lambda off, n: vr(32 + off, n)
        for c in (13, 14, 15):
            e.many(rd(c, t1))
            if c == 15:
                vm.room(2); e(ld_tag); e(ld_fl); vm.add('pl', 2)
            e('s_waitcnt lgkmcnt(0)')
            vm.wait(f'o0_{c}')
            gaps(e, mm3(c, 0, t1), T.pump(), per=2)
            T.free += T.where[(0, c)]
        assert not T.todo
        vm.wait('pl')
        e('v_add_u32 v30, 3, v30')
        poll(e, o, 'r23', ld_fl, [f'v_cmp_eq_u32 vcc, v30, v{V_T2}'])
        T.free = [48, 52, 56, 60, 12, 16, 20, 24, 32, 36, 40, 44]
        order = [8, 9, 15, 10, 14, 11, 13, 6, 12, 7, 0, 1, 2, 3, 4, 5]
        T.todo = [(1, c) for c in order]
        e.many(T.pump())
        t2 = lambda off, n: hold3(8, off, n)
        for i, c in enumerate(order):
            nxt = order[i + 1] if i + 1 < len(order) else None
            if c >= 12: e('s_waitcnt lgkmcnt(0)')
            vm.wait(f'o1_{c}')
            front = rd(nxt, t2) if (nxt is not None and nxt >= 12) else []
            late = []
            if c == 10: late += fin
            if c == 11: late += pwrite(0)
            if c == 0: late += fin2
            m = mm3(c, 1, t2 if c >= 12 else (lambda off, n: hold3(c, off, n)))
            late += T.pump()
            gaps(e, m, front, late, per=3, late_from=0 if not front else 2)
            if c != 8: T.free += T.where[(1, c)]
            if c in (9, 10, 11): T.free += list(range(64 + 32 * (c - 8), 64 + 32 * (c - 7), 4))
            if c in (6, 7): T.free += list(range(192 + 32 * (c - 6), 192 + 32 * (c - 5), 4))
        assert not T.todo
        e('s_nop 7'); e('s_nop 3')
        e.many(pwrite(1))
        e('s_branch L_red')
        return
    e.skip = o.t_skip
    seq = [(0, c) for c in ORDER1] + [(1, c) for c in ORDER2]
    todo2 = []
    for c in ORDER2: todo2 += ([(0, c)] if (c >= 13 and not o.park) else []) + [(1, c)]
    for i, (rnd, c) in enumerate(seq):
        rnds = [0, 1] if c >= 13 else [rnd]
        nxt = seq[i + 1][1] if i + 1 < len(seq) else None
        if i == o.chk - o.pl_at:
            if o.pwf:
                vm.room(1); e(ld_fl); vm.add('pl', 1)
            else:
                vm.room(2); e(f'global_load_dword v30, v0, {sr(S_DBG,2)} sc1'); e(ld_fl); vm.add('pl', 2)
            if o.park: T.todo += [(0, c) for c in (13, 14, 15)]
        if i == o.chk:
            vm.stamp(o, 5)
            vm.wait('pl')
            e('v_add_u32 v30, 3, v0' if o.pwf else 'v_add_u32 v30, 3, v30')
            poll(e, o, 'r2', ld_fl, [f'v_cmp_eq_u32 vcc, v30, v{V_T2}'])
            T.todo += todo2
            e.many(T.pump())
            vm.stamp(o, 6)
        if c >= 8: e('s_waitcnt lgkmcnt(0)')
        for r_ in rnds: vm.wait(f'o{r_}_{c}')
        front = []; late = []
        if nxt is not None and nxt >= 8:
            assert not (8 <= c < 13 and nxt < 13)
            if rnd == 0 and nxt == C.TCH[0] and i < 12: e('s_barrier')
            if nxt == 12 and vm.has('late'): vm.wait('late')
            if nxt >= 13: vm.wait(f'w{nxt}')
            front = rd(nxt, afrag(nxt))
        if rnd == 1 and c in (8, 9, 10):
            vm.room(8)
            late += wdma(c + 5)
        if rnd == 1 and c == 15: late += fin
        if rnd == 1 and c == 6: late += pwrite(0)
        if rnd == 1 and c == 5: late += fin2
        m = mms(c, rnds)
        late += T.pump()
        if C.M16: gaps(e, m, front, late, per=o.tper, late_from=0 if not front else min(len(m) - 4, (len(front) + o.tper - 1) // o.tper))
        else: gaps(e, m, front, late, per=3, late_from=0 if not front else 2)
        for r_ in rnds: T.free += T.where[(r_, c)]
    assert not T.todo
    vm.stamp(o, 7)
    e('s_nop 7'); e('s_nop 3')
    e.many(pwrite(1))
    e.lab('L_red')
    e('s_waitcnt lgkmcnt(0)')
    e('s_barrier')
    for i in range(2):
        for p in range(4):
            for hh in range(2):
                e(f'ds_read_b128 {vr(96+32*i+8*p+4*hh,4)}, v{RDA+2*i+hh} offset:{8192*p}')
    for i in range(2):
        b = 96 + 32 * i
        e(f's_waitcnt lgkmcnt({8*(1-i)})')
        for j in range(8):
            e(f'v_add_f32 v{b+j}, v{b+j}, v{b+8+j}')
            e(f'v_add_f32 v{b+16+j}, v{b+16+j}, v{b+24+j}')
        for j in range(8): e(f'v_add_f32 v{b+j}, v{b+j}, v{b+16+j}')
        for j in range(4): e(f'v_cvt_pk_bf16_f32 v{b+8+j}, v{b+2*j}, v{b+2*j+1}')
        if i: e(f's_add_u32 s{S_OO}, s{S_OO}, {8*2560}')
        e(f'buffer_store_dwordx4 {vr(b+8,4)}, v{VOUT}, {sr(S_OUT,4)}, s{S_OO} offen {o.out_flags}')
    ddump(e, o, 5)
    if o.light:
        e('s_waitcnt vmcnt(0)')
        e(f's_memrealtime {sr(S_ST,2)}')
        e('s_waitcnt lgkmcnt(0)')
        e('v_mov_b32 v2, s98'); e(f'v_mov_b32 v3, s{S_ST}'); e(f'v_mov_b32 v4, s{S_STB}')
        e('s_mov_b64 exec, 1')
        e(f'buffer_store_dwordx2 v[2:3], v4, {sr(S_WS,4)}, 0 offen')
    if o.stamps:
        e('s_waitcnt vmcnt(0)')
        stamp(e, o, 14)

KD = '''.amdhsa_kernel {n}
  .amdhsa_next_free_vgpr 512
  .amdhsa_next_free_sgpr 102
  .amdhsa_accum_offset 256
  .amdhsa_group_segment_fixed_size 0
  .amdhsa_kernarg_size 104
  .amdhsa_user_sgpr_count 2
  .amdhsa_user_sgpr_kernarg_segment_ptr 1
  .amdhsa_system_sgpr_workgroup_id_x 1
.end_amdhsa_kernel
'''

HEADER = """
"""

def gen(o):
    assert not o.w3
    if o.r6: plan6()
    C.M16 = o.m16
    e = Em()
    e.jit = o.jit
    e.mix = o.mix
    k1 = NAME + '_kernel'
    for l in HEADER.strip().split('\n'): e.raw(l)
    e.raw('; @launch grid=(256,1,1) block=(256,1,1) lds=163840')
    e.raw('.amdgcn_target "amdgcn-amd-amdhsa--gfx950"')
    e.raw('.text')
    e.raw(f'.globl {k1}\n.p2align 8\n.type {k1},@function')
    e.lab(k1)
    prologue(e, o)
    e(f's_cmp_eq_u32 s{S_WAVE}, 3')
    e('s_cbranch_scc1 L_loader')
    if o.al_a > 0:
        for _ in range(o.al_a // 4): e('s_nop 0')
    phase_a(e, o)
    T = phase_b(e, o)
    n0 = T.vm.out()
    pre = T.pump(o.npre)
    npre = T.vm.out() - n0
    e.pre = pre
    if o.pwf:
        per = len(pre) // max(o.npre, 1)
        e.many(pre[:per * o.npre0])
        e(f's_sub_u32 s{S_T0}, s{S_OB}, {RND + 4096}')
        e(f's_lshr_b32 s{S_T0}, s{S_T0}, 6')
        e(f's_mul_i32 s{S_T2}, s{S_BR}, {12*32*128}')
        e(f's_sub_u32 s{S_T0}, s{S_T0}, s{S_T2}')
        e(f's_add_u32 s{S_T0}, s{S_T0}, {WS_FLAG2}')
        e(f'v_add_u32 v{V_T2}, 3, v0')
        e(f'v_mov_b32 v{V_T3}, 0')
        e(f's_waitcnt vmcnt({4 * o.npre0})')
        e('s_mov_b64 exec, 1')
        e(f'buffer_store_dword v{V_T2}, v{V_T3}, {sr(S_WS,4)}, s{S_T0} offen sc1')
        e('s_mov_b64 exec, -1')
        e.many(pre[per * o.npre0:])
        e('s_waitcnt lgkmcnt(0)')
    else:
        e.many(pre)
        e(f's_waitcnt vmcnt({npre}) lgkmcnt(0)')
    e('s_barrier')
    dmark(e, o, 3)
    if o.stamps:
        T.vm.stamp(o, 3)
    e('s_branch L_join')
    align(e, o.al_l)
    e.lab('L_loader')
    h0 = len(e.L)
    loader(e, o)
    if o.head3:
        head = e.L[h0 - 1:e.head_end] + ['    s_branch L_loader2']
        e.L[h0 - 1:e.head_end] = ['L_loader2:']
        if o.head3 == 1:
            i = e.L.index('    s_cbranch_scc1 L_loader')
            e.L[i:i + 1] = ['    s_cbranch_scc0 L_cpre'] + head + ['L_cpre:']
        else:
            i = e.first_loads
            e.L[i:i] = ['    s_branch L_cgo'] + head + ['L_cgo:']
    if o.w3:
        if o.stamps: e.T3.vm.stamp(o, 3)
        tail(e, o, e.T3, w3=True)
    else:
        if o.stamps: stamp(e, o, 3)
    if o.al_j >= 0:
        e('s_branch L_join'); align(e, o.al_j)
    e.lab('L_join')
    if o.prio: e('s_setprio 0')
    tail(e, o, T)
    e.lab('L_exit')
    e('s_endpgm')
    e.lab('L_end')
    e.raw('.section .rodata,"a"\n.p2align 6')
    e.raw(KD.format(n=k1))
    return e.text()

if __name__ == '__main__':
    o = Opt()
    out = sys.argv[1]
    for a in sys.argv[2:]:
        k, v = a.split('=', 1); v = v.replace('+', ' ')
        cur = getattr(o, k)
        setattr(o, k, (v == '1') if isinstance(cur, bool) else int(v) if isinstance(cur, int) else v)
    open(out, 'w').write(gen(o))
```

```python
import sys, math, struct
NAME = 'concat_heads__mha_block_cached__mha_block_cached__near_ridge'

class Opt:
    stamps = False
    kv_flags = 'sc1 nt'
    w_flags = 'sc1'
    wo_flags = 'sc1'
    ost_flags = 'sc1'
    old_flags = 'sc1'
    look = 7
    rot = 0
    arot = 3
    nun = 1
    tlbq = False
    tickst = 0
    no_w = False
    no_w3 = False
    t_now = False
    t_o1 = False
    t_noo = False
    c8late = True
    pf_kv = 0
    pf_wo = True
    pf_a = False
    pf_w = False
    pf_delay = 0
    pf_s0 = 2
    pf_mid = 0
    pf_flags = ''
    pf_tail = 0
    bal = 0
    bal_lag = 2
    bal_n = 1
    bal_sl = 0
    tagk = 1
    thr_end = 28
    k_first = False
    k_s0 = 0
    tlb = True
    aper = 4
    out_flags = ''
    tsched = 1
    park = True
    maxout = 61
    r1k = 28
    nodup = True
    al_t = -1
    al_l = -1
    al_j = -1
    al_a = -1
    pf2 = False
    pf2_p0 = 1
    pf2_s0 = 0
    pf2_gap = 2
    pf2_pre = 1
    wper = 3
    pf_wi = 6
    mix = 0
    wl = 0
    kvx = True
    prio = 0
    head3 = 1
    dq2 = False
    pwf = False
    npre0 = 1
    don = 0
    don_lag = 1
    t_skip = ''
    t_no1 = False
    m16 = False
    tper = 2
    pre3 = 1
    wst = ''
    w0 = 3
    r1pack = False
    gran = 4
    tlbd = True
    tlbf = 0
    r6k = 9
    r6e = 3
    r6 = False
    a_skip = ''
    dbgt = False
    jit = 0
    light = False
    lb = 4
    lb_hi = 42
    lb_pos = 0
    lb_t = 0
    lb_lo = 8
    lb_ld = 'sc1'
    lb_st = ''
    pfc = True
    w3 = False
    w3k = 23
    pl_at = 5
    fav = 0
    t15 = True
    nearly = 0
    npre = 3
    pk = True
    v1_late = True
    look_lo = 5
    look_k0 = 0
    look_k1 = 0
    krot = False
    early = True
    chk = 9
    bal_k1 = 30
    psleep = 4
    thr = 18
    blk = 0

WS_FLAGS = 12582912
WS_PROG = WS_FLAGS + 32768
WS_FLAG2 = WS_FLAGS + 65536
WS_STAMP = 13631488
SLOT = 16384
STAGE = 40960
RND = 12 * 32 * 8192

S_X, S_K, S_V, S_WQ, S_WO, S_OUT, S_WS = 4, 8, 12, 16, 20, 24, 28
S_DBG = 32
S_WAVE, S_BR, S_H, S_BL = 34, 35, 36, 37
S_T0, S_T1, S_T2, S_T3 = 38, 39, 40, 41
S_KX, S_XB, S_XL, S_KVB, S_TICK = 42, 43, 44, 45, 46
S_KOFF, S_VOFF, S_THR, S_FLOOR, S_C, S_OB, S_WQB = 47, 48, 49, 50, 51, 52, 53
S_ST, S_STB, S_QT, S_NT = 54, 56, 57, 58
S_SAVE = 60
S_WN, S_FL = 62, 63
S_EV = 59
S_KARG = 64
S_WOB, S_O1, S_QB, S_CNT, S_RHO, S_WC, S_N, S_KR = 90, 91, 92, 93, 94, 95, 96, 97

V_LANE = 1
V_T0, V_T1, V_T2, V_T3 = 2, 3, 4, 5
V_L, V_MX, V_D = 6, 10, 11
V_DMA = 12
V_KA, V_VA, V_OST, V_WA = 16, 24, 28, 29
V_NEGM = 32
V_SA, V_SB, V_P, V_TMP = 48, 64, 80, 88
V_Q, V_KF, V_VF, V_Q2 = 96, 128, 160, 192

class Em:
    def __init__(self): self.L = []
    def __call__(self, s): self.L.append('    ' + s)
    def lab(self, s): self.L.append(s + ':')
    def raw(self, s): self.L.append(s)
    def many(self, l):
        for x in l: self(x)
    def text(self):
        if getattr(self, 'jit', 0):
            import random
            rnd = random.Random(self.jit); out = []; n = 0
            for l in self.L:
                out.append(l)
                t = l.strip()
                if (t == 's_barrier' or t.startswith('s_waitcnt vmcnt')) and rnd.random() < 0.35:
                    n += 1
                    bit = rnd.choice([0, 1, 2, 3, 4, 5])
                    src = rnd.choice(['s2', f's{S_WAVE}'])
                    if src != 's2': bit &= 1
                    out += [f'    s_cselect_b32 s3, 1, 0', f'    s_bitcmp1_b32 {src}, {bit}', f'    s_cbranch_scc0 L_j{n}', f'    s_sleep {rnd.choice([1, 4, 16, 40])}', f'L_j{n}:', '    s_cmp_eq_u32 s3, 1']
            self.L = out
        return '\n'.join(self.L) + '\n'

def vr(b, n=1): return f'v{b}' if n == 1 else f'v[{b}:{b+n-1}]'
def ar(b, n=1): return f'a{b}' if n == 1 else f'a[{b}:{b+n-1}]'
def sr(b, n=1): return f's{b}' if n == 1 else f's[{b}:{b+n-1}]'
def mfma(d, a, b, c): return f'v_mfma_f32_32x32x16_bf16 {d}, {a}, {b}, {c}'
def hold(ci, off, n):
    return ar(64 + 32 * ci + off, n) if ci < 6 else vr(192 + 32 * (ci - 6) + off, n)

def hold3(ci, off, n):
    return hold(ci, off, n) if ci < 8 else vr(64 + 32 * (ci - 8) + off, n)
def reg4(r): return ar(r - 1000, 4) if r >= 1000 else vr(r, 4)

def cost(i):
    if i.startswith('v_exp') or i.startswith('v_rcp'): return 8
    if i.startswith('s_'): return 2
    return 4

def interleave(e, mf, fill):
    total = sum(cost(f) for f in fill if not isinstance(f, tuple))
    per = total / len(mf)
    fi = 0; acc = 0.0
    deadline = {}; items = []
    for f in fill:
        if isinstance(f, tuple):
            if f[0] == 'M': deadline[f[1]] = len(items)
            else: items.append(f)
        else: items.append(f)
    for k, m in enumerate(mf):
        need = deadline.get(k, 0)
        while fi < need:
            it = items[fi]; fi += 1
            if isinstance(it, tuple):
                assert it[1] < k, (it, k)
                continue
            e(it); acc += cost(it)
        if isinstance(m, (list, tuple)): e.many(m)
        else: e(m)
        target = per * (k + 1)
        while fi < len(items) and (acc < target - 1.0 or k == len(mf) - 1):
            it = items[fi]
            if isinstance(it, tuple):
                if it[1] > k: break
                fi += 1; continue
            e(it); acc += cost(it); fi += 1
    assert fi == len(items)

def gaps(e, mf, front, late=(), per=2, late_from=5):
    g = [[] for _ in mf]
    for i, f in enumerate(front): g[min(i // per, len(mf) - 1)].append(f)
    n = len(mf) - late_from
    for i, f in enumerate(late): g[late_from + (i * n) // len(late)].append(f)
    for m, x in zip(mf, g):
        sk = getattr(e, 'skip', '')
        if 'm' not in sk: e(m)
        e.many([y for y in x if not (('r' in sk and y.startswith('ds_read')) or ('d' in sk and y.startswith('buffer_load_dwordx4 v') and ('s[4:7]' in y or 's[16:19]' in y)))])

def stamp(e, o, idx, clk=False):
    if not o.stamps: return 0
    e(f's_memtime {sr(S_ST,2)}' if clk else f's_memrealtime {sr(S_ST,2)}')
    e('s_waitcnt lgkmcnt(0)')
    e(f'v_mov_b32 v{V_T0}, s{S_ST}')
    e(f'v_mov_b32 v{V_T1}, s{S_STB}')
    e('s_mov_b64 exec, 1')
    e(f'buffer_store_dword v{V_T0}, v{V_T1}, {sr(S_WS,4)}, 0 offen offset:{4*idx}')
    e('s_mov_b64 exec, -1')
    return 1

LAZY = {0: 98, 1: 100}
for _i in range(2, 15): LAZY[_i] = 64 + 2 * (_i - 2)
def lazy(e, o, i):
    if o.stamps: e(f's_memrealtime s[{LAZY[i]}:{LAZY[i]+1}]')
def lazy_dump(e, o, ids):
    if not o.stamps: return 0
    e('s_waitcnt lgkmcnt(0)')
    e(f'v_mov_b32 v{V_T1}, s{S_STB}')
    e('s_mov_b64 exec, 1')
    for i in ids:
        e(f'v_mov_b32 v{V_T0}, s{LAZY[i]}')
        e(f'buffer_store_dword v{V_T0}, v{V_T1}, {sr(S_WS,4)}, 0 offen offset:{16 if i == 0 else 4*(16+i)}')
        e('s_nop 1')
    e('s_mov_b64 exec, -1')
    return len(ids)

def dmark(e, o, i):
    if o.dbgt: e(f's_memrealtime s[{64+2*i}:{65+2*i}]')
def ddump(e, o, n):
    if not o.dbgt: return
    e('s_waitcnt vmcnt(0)')
    dmark(e, o, n - 1)
    e('s_waitcnt lgkmcnt(0)')
    e(f's_cmp_lg_u32 s{S_WAVE}, 0')
    e('s_cbranch_scc1 L_exit')
    e('s_mov_b32 s3, 0')
    for j, w in enumerate((5, 130, 203)):
        e(f's_cmp_eq_u32 s2, {w}')
        e(f's_cselect_b32 s3, {4 + 20 * j}, s3')
    e('s_cmp_eq_u32 s3, 0')
    e('s_cbranch_scc1 L_exit')
    e('v_mov_b32 v2, s3')
    e('s_mov_b64 exec, 1')
    for i in range(n):
        e(f's_sub_u32 s{64+2*i}, s{64+2*i}, s98')
        e(f'v_mov_b32 v3, s{64+2*i}')
        e(f'global_store_dword v2, v3, {sr(S_DBG,2)} offset:{4*i}')
        e('s_nop 1')
    e('s_mov_b64 exec, -1')

def align(e, ph):
    if ph < 0: return
    e.raw('.p2align 6')
    for _ in range(ph // 4): e('s_nop 0')

class Vm:
    def __init__(self, e): self.e = e; self.q = []
    def out(self): return sum(c for _, c in self.q)
    def has(self, name): return name in [n for n, _ in self.q]
    def wait(self, name):
        names = [n for n, _ in self.q]
        if name not in names: return
        i = names.index(name)
        rest = sum(c for _, c in self.q[i + 1:])
        assert rest <= 63
        self.e(f's_waitcnt vmcnt({rest})')
        self.q = self.q[i + 1:]
    def room(self, c):
        while self.out() + c > 61: self.wait(self.q[0][0])
    def add(self, name, c):
        self.q.append((name, c)); assert self.out() <= 63, self.q
    def kv_limit(self, thr):
        n = kv = 0
        for name, c in reversed(self.q):
            if name == 'part' or name[0] in 'KV':
                if kv + c >= thr: return n + thr - kv
                kv += c
            n += c
        return n + thr - kv
    def stamp(self, o, idx, clk=False):
        if o.stamps:
            self.room(1); stamp(self.e, o, idx, clk); self.add(f'st{idx}', 1)

def prologue(e, o):
    if o.stamps or o.dbgt or o.light: e('s_memrealtime s[98:99]')
    e(f's_load_dwordx16 {sr(S_KARG,16)}, s[0:1], 0')
    e(f's_load_dwordx8 {sr(S_KARG+16,8)}, s[0:1], 64')
    e(f's_load_dwordx2 {sr(S_KARG+24,2)}, s[0:1], 96')
    e('s_cmp_ge_u32 s2, 256')
    e('s_cbranch_scc1 L_exit')
    e(f'v_lshrrev_b32 v{V_T0}, 6, v0')
    e(f'v_and_b32 v{V_LANE}, 63, v0')
    e(f'v_readfirstlane_b32 s{S_WAVE}, v{V_T0}')
    e(f's_and_b32 s{S_T0}, s2, 7')
    e(f's_lshr_b32 s{S_T1}, s2, 3')
    e(f's_lshr_b32 s{S_BR}, s{S_T0}, 2')
    e(f's_and_b32 s{S_T2}, s{S_T0}, 3')
    e(f's_lshl_b32 s{S_H}, s{S_T2}, 3')
    e(f's_and_b32 s{S_T3}, s{S_T1}, 7')
    e(f's_add_u32 s{S_H}, s{S_H}, s{S_T3}')
    e(f's_lshr_b32 s{S_BL}, s{S_T1}, 3')
    e(f's_mul_i32 s{S_KX}, s{S_BL}, 5')
    e(f's_add_u32 s{S_KX}, s{S_KX}, 1')
    e(f's_lshr_b32 s{S_KX}, s{S_KX}, 1')
    if o.arot in (2, 3): e(f's_mov_b32 s{S_KX}, 0')
    if o.arot == 4: e(f's_lshr_b32 s{S_T3}, s{S_T3}, 2')
    if o.arot in (0, 3, 4): e(f's_add_u32 s{S_KX}, s{S_KX}, s{S_T3}')
    e(f's_cmp_ge_u32 s{S_KX}, 10')
    e(f's_cselect_b32 s{S_T3}, 10, 0')
    e(f's_sub_u32 s{S_KX}, s{S_KX}, s{S_T3}')
    if o.blk == 0:
        e(f's_mul_i32 s{S_QT}, s{S_T1}, 13')
        e(f's_lshr_b32 s{S_QT}, s{S_QT}, 6')
        e(f's_mul_i32 s{S_T3}, s{S_QT}, 5')
        e(f's_sub_u32 s{S_NT}, s{S_T1}, s{S_T3}')
        e(f's_and_b32 s{S_T3}, s{S_T2}, 1')
        e(f's_mul_i32 s{S_T3}, s{S_T3}, 5')
        e(f's_add_u32 s{S_NT}, s{S_NT}, s{S_T3}')
        e(f's_lshr_b32 s{S_T3}, s{S_T2}, 1')
        e(f's_mul_i32 s{S_T3}, s{S_T3}, 6')
        e(f's_add_u32 s{S_QT}, s{S_QT}, s{S_T3}')
    elif o.blk == 1:
        e(f's_mul_i32 s{S_QT}, s{S_T1}, 26')
        e(f's_lshr_b32 s{S_QT}, s{S_QT}, 8')
        e(f's_mul_i32 s{S_T3}, s{S_QT}, 10')
        e(f's_sub_u32 s{S_NT}, s{S_T1}, s{S_T3}')
        e(f's_mul_i32 s{S_T3}, s{S_T2}, 3')
        e(f's_add_u32 s{S_QT}, s{S_QT}, s{S_T3}')
    else:
        e(f's_mul_i32 s{S_T3}, s{S_T2}, 30')
        e(f's_add_u32 s{S_T3}, s{S_T3}, s{S_T1}')
        e(f's_mul_i32 s{S_NT}, s{S_T3}, 171')
        e(f's_lshr_b32 s{S_NT}, s{S_NT}, 11')
        e(f's_mul_i32 s{S_QT}, s{S_NT}, 12')
        e(f's_sub_u32 s{S_QT}, s{S_T3}, s{S_QT}')
    e(f's_cmp_ge_u32 s{S_T1}, 30')
    e(f's_cselect_b32 s{S_NT}, 15, s{S_NT}')
    e(f's_cselect_b32 s{S_QT}, 0, s{S_QT}')
    e(f's_mul_i32 s{S_QB}, s{S_QT}, 11')
    e(f's_lshr_b32 s{S_QB}, s{S_QB}, 5')
    e(f's_lshl_b32 s{S_STB}, s2, 2')
    e(f's_add_u32 s{S_STB}, s{S_STB}, s{S_WAVE}')
    e(f's_lshl_b32 s{S_STB}, s{S_STB}, 8')
    e(f's_add_u32 s{S_STB}, s{S_STB}, {WS_STAMP}')
    e(f's_lshl_b32 s{S_XL}, s{S_WAVE}, 13')
    e(f's_lshl_b32 s{S_WOB}, s{S_NT}, 7')
    e(f's_cmp_ge_u32 s{S_NT}, 5')
    e(f's_cselect_b32 s{S_T0}, {5 if o.blk == 0 else 0}, 0')
    e(f's_sub_u32 s{S_RHO}, s{S_NT}, s{S_T0}')
    e(f's_mul_i32 s{S_RHO}, s{S_RHO}, {o.rot}')
    e(f's_and_b32 s{S_RHO}, s{S_RHO}, 15')
    for srd, size in ((S_X, 983040), (S_K, 1 << 26), (S_V, 1 << 26), (S_WQ, 5242880), (S_WO, 5242880), (S_OUT, 1966080), (S_WS, 16777216)):
        e(f's_mov_b32 s{srd+2}, {size}')
        e(f's_mov_b32 s{srd+3}, 0x20000')

def srds(e, o):
    e('s_waitcnt lgkmcnt(0)')
    e(f's_cmp_eq_u32 s{S_BR}, 0')
    for srd, i in ((S_WQ, 3), (S_X, 0), (S_K, 1), (S_V, 2), (S_WO, 4)):
        e(f's_cselect_b64 {sr(srd,2)}, {sr(S_KARG+2*i,2)}, {sr(S_KARG+10+2*i,2)}')
    e(f's_mov_b64 {sr(S_OUT,2)}, {sr(S_KARG+20,2)}')
    e(f's_mov_b64 {sr(S_WS,2)}, {sr(S_KARG+24,2)}')
    e(f's_mov_b64 {sr(S_DBG,2)}, {sr(S_KARG+22,2)}')
    for srd in (S_WQ, S_X, S_K, S_V, S_WO, S_OUT, S_WS):
        e(f's_and_b32 s{srd+1}, s{srd+1}, 0xffff')
    lazy(e, o, 1)

def no_task_wo(e):
    e(f's_cmp_eq_u32 s{S_NT}, 15')
    e(f's_cselect_b32 s{S_WO+2}, 0, s{S_WO+2}')

class C:
    M16 = False
    NR = 8; RING = 32768; OFF = 6; J0 = 1; SCR = 3; TL = 'T6'
    W = (32768, 73728, 114688); X = (49152, 90112, 0)
    PIECE = {8: 0, 9: 1, 10: 2, 11: 3, 12: 4, 13: 0, 14: 1, 15: 2}
    TCH = (9, 10, 11)
def plan6():
    C.NR = 6; C.RING = 65536; C.OFF = 4; C.J0 = 2; C.SCR = 2; C.TL = 'T4'
    C.W = (65536, 106496, 24576); C.X = (81920, 0, 40960)
    C.PIECE = {8: 0, 9: 1, 10: 4, 11: 2, 12: 3, 13: 0, 14: 1, 15: 4}
    C.TCH = (10, 11)
PF_TICKS = [0, 1, 6, 10, 15, 19, 22, 24, 25, 26, 27]
def reg_w(s): return C.W[(s + 2) % 3]
def reg_x(s): return C.X[(s + 2) % 3]

SEQ = ['K0']
for k in range(32): SEQ += [f'K{k+1}', f'V{k}']
SEQ += [f'T{i}' for i in range(8)]
POS = {n: i for i, n in enumerate(SEQ)}
def slot(name): return (C.OFF + POS[name]) % C.NR
def slot_addr(name): return C.RING + slot(name) * SLOT

def wo_dma(o, c, ldsbase_s, ldsoff, wob, vw, dyn=False):
    r = []
    if o.no_w and dyn: return ['s_nop 0']
    if dyn:
        r += [f's_mul_i32 s{S_T0}, s{S_WC}, {64*1280}', f's_add_u32 s{S_WC}, s{S_WC}, 1', f's_and_b32 s{S_WC}, s{S_WC}, 15']
    else:
        r += [f's_add_u32 s{S_T0}, s{S_RHO}, {c}', f's_and_b32 s{S_T0}, s{S_T0}, 15', f's_mul_i32 s{S_T0}, s{S_T0}, {64*1280}']
    r.append(f's_add_u32 s{S_T0}, s{S_T0}, {wob}')
    for g_ in range(2):
        r.append(f's_add_u32 m0, {ldsbase_s}, {ldsoff + 4096*g_}' if ldsbase_s else f's_mov_b32 m0, {ldsoff + 4096*g_}')
        r.append(f's_add_u32 s{S_T1}, s{S_T0}, {32*g_*1280}')
        for i in range(4):
            r.append(f'buffer_load_dwordx4 v{vw+i}, {sr(S_WO,4)}, s{S_T1} offen offset:{1024*i} {o.wo_flags} lds')
    return r

def wo_voffs(e, dst):
    L = V_LANE
    e(f'v_lshrrev_b32 v{V_T0}, 3, v{L}')
    e(f'v_mul_u32_u24 v{V_T0}, 1280, v{V_T0}')
    if C.M16:
        e(f'v_lshrrev_b32 v{V_T1}, 4, v{L}')
        e(f'v_lshlrev_b32 v{V_T1}, 1, v{V_T1}')
    else:
        e(f'v_bfe_u32 v{V_T1}, v{L}, 4, 1')
        e(f'v_lshlrev_b32 v{V_T1}, 2, v{V_T1}')
    e(f'v_and_b32 v{V_T2}, 7, v{L}')
    e(f'v_xor_b32 v{V_T1}, v{V_T1}, v{V_T2}')
    e(f'v_lshl_add_u32 v{dst}, v{V_T1}, 4, v{V_T0}')
    for i in range(1, 4): e(f'v_add_u32 v{dst+i}, {(10240-1024)*i}, v{dst}')

def wo_lane_addr(e, dst):
    L = V_LANE
    if C.M16:
        e(f'v_lshrrev_b32 v{V_T0}, 5, v{L}')
        e(f'v_bfe_u32 v{V_T1}, v{L}, 2, 3')
        e(f'v_lshl_add_u32 v{dst}, v{V_T0}, 4, v{V_T1}')
        e(f'v_lshlrev_b32 v{dst}, 7, v{dst}')
        e(f'v_bfe_u32 v{V_T3}, v{L}, 3, 2')
        e(f'v_lshl_add_u32 v{dst}, v{V_T3}, 5, v{dst}')
        e(f'v_and_b32 v{V_T3}, 3, v{L}')
        e(f'v_lshl_add_u32 v{dst}, v{V_T3}, 3, v{dst}')
        return
    e(f'v_lshrrev_b32 v{V_T0}, 5, v{L}')
    e(f'v_bfe_u32 v{V_T1}, v{L}, 2, 2')
    e(f'v_lshl_add_u32 v{dst}, v{V_T0}, 2, v{V_T1}')
    e(f'v_lshlrev_b32 v{dst}, 7, v{dst}')
    e(f'v_bfe_u32 v{V_T3}, v{L}, 3, 1')
    e(f'v_lshl_add_u32 v{dst}, v{V_T3}, 6, v{dst}')
    e(f'v_bfe_u32 v{V_T3}, v{L}, 4, 1')
    e(f'v_lshl_add_u32 v{dst}, v{V_T3}, 5, v{dst}')
    e(f'v_and_b32 v{V_T3}, 3, v{L}')
    e(f'v_lshl_add_u32 v{dst}, v{V_T3}, 3, v{dst}')

def wo_reads(dstf, a0, a1, off, tmp=(V_T0, V_T1, V_T3)):
    r = []
    if C.M16:
        ad = [a0] + list(tmp)
        r += [f'v_xor_b32 v{ad[n]}, {32*n}, v{a0}' for n in range(1, 4)]
        for F in range(2):
            for n in range(4):
                for u in range(2):
                    r.append(f'ds_read_b64_tr_b16 {dstf(16*F+4*n+2*u,2)}, v{ad[n]} offset:{off+(32*F+8*u)*128}')
        return r
    for s4 in range(4):
        for nt in range(2):
            for u in range(2):
                r.append(f'ds_read_b64_tr_b16 {dstf(8*s4+4*nt+2*u,2)}, v{(a0,a1)[nt]} offset:{off+(16*s4+8*u)*128}')
    return r

def poll(e, o, tag, load, test):
    e.many(test)
    e('s_cmp_eq_u64 vcc, -1')
    e(f's_cbranch_scc1 L_polled_{tag}')
    e(f's_mov_b32 s{S_CNT}, 0x20000')
    e.lab(f'L_poll_{tag}')
    e(f's_sleep {o.psleep}')
    e(load)
    e('s_waitcnt vmcnt(0)')
    e.many(test)
    e('s_cmp_eq_u64 vcc, -1')
    e(f's_cbranch_scc1 L_polled_{tag}')
    e(f's_sub_u32 s{S_CNT}, s{S_CNT}, 1')
    e(f's_cmp_lg_u32 s{S_CNT}, 0')
    e(f's_cbranch_scc1 L_poll_{tag}')
    e.lab(f'L_polled_{tag}')

def ev_ticks(o, w):
    t = int(o.wst[w]) if o.wst else o.w0 + w; ev = []
    for i in range(9):
        ev.append(t)
        t += o.wper + (1 if (o.t15 and t + o.wper == 15) else 0)
    return ev

def flag1_tick(o):
    last = 0
    for w in range(3):
        t = int(o.wst[w]) if o.wst else o.w0 + w; ev = []
        for i in range(9):
            ev.append(t)
            t += o.wper + (1 if (o.t15 and t + o.wper == 15) else 0)
        assert ev[0] <= 14 and ev[7] >= 16 and ev[8] <= 30, ev
        last = max(last, min(x for x in ev if x >= 16))
    return last + 1

def loader(e, o):
    L = V_LANE
    VK, VV, VW, VWO, VF, VP, VZ = 24, 16, 20, 12, 17, 18, 19
    VA, VB = 96, 100
    AF = [48, 56]; BF = [64, 80]; ACC = 128
    vm = Vm(e)
    e(f'v_lshrrev_b32 v{V_T0}, 4, v{L}')
    e(f'v_and_b32 v{V_T1}, 15, v{L}')
    e(f'v_lshlrev_b32 v{V_T3}, 2, v{V_T0}')
    e(f'v_xor_b32 v{V_T3}, v{V_T3}, v{V_T1}')
    e(f'v_lshlrev_b32 v{V_T2}, 8, v{V_T0}')
    e(f'v_lshl_add_u32 v{VV}, v{V_T3}, 4, v{V_T2}')
    for i in range(4):
        e(f'v_add_u32 v{V_T3}, {4*i}, v{V_T0}')
        e(f'v_xor_b32 v{V_T3}, v{V_T3}, v{V_T1}')
        e(f'v_lshl_add_u32 v{VK+i}, v{V_T3}, 4, v{V_T2}')
    e(f's_lshl_b32 s{S_KVB}, s{S_BL}, 5')
    e(f's_add_u32 s{S_KVB}, s{S_KVB}, s{S_H}')
    e(f's_lshl_b32 s{S_KVB}, s{S_KVB}, 18')
    e(f's_and_b32 s{S_KR}, s2, 7')
    e(f's_lshl_b32 s{S_KR}, s{S_KR}, 1')
    e(f's_lshr_b32 s{S_T0}, s2, 3')
    e(f's_add_u32 s{S_KR}, s{S_KR}, s{S_T0}')
    e(f's_and_b32 s{S_KR}, s{S_KR}, {15 if o.krot else 0}')
    e(f's_lshl_b32 s{S_KR}, s{S_KR}, 14')
    e(f'v_lshlrev_b32 v{VW}, 19, v{L}')
    e(f'v_lshlrev_b32 v{VW+1}, 25, v{L}')
    e(f'v_mov_b32 v{VZ}, 0')
    e(f'v_lshlrev_b32 v{VW+3}, 18, v{L}')
    e(f's_lshl_b32 s{S_T0}, s{S_BR}, 2')
    e(f's_add_u32 s{S_FL}, s{S_T0}, s{S_BL}')
    e(f's_lshl_b32 s{S_FL}, s{S_FL}, 5')
    e(f's_add_u32 s{S_FL}, s{S_FL}, s{S_H}')
    e(f's_lshl_b32 s{S_FL}, s{S_FL}, 7')
    e(f's_add_u32 s{S_FL}, s{S_FL}, {WS_FLAGS}')
    e(f's_mul_i32 s{S_T2}, s{S_BR}, 8')
    e(f's_add_u32 s{S_T2}, s{S_T2}, s{S_BL}')
    e(f's_mul_i32 s{S_T2}, s{S_T2}, 96')
    e(f's_add_u32 s{S_T2}, s{S_T2}, s{S_H}')
    e(f's_lshl_b32 s{S_T2}, s{S_T2}, 13')
    if o.pfc:
        e(f's_getpc_b64 {sr(S_ST,2)}')
        e.lab('L_pc')
        e(f's_sub_u32 s{S_ST}, s{S_ST}, L_pc-{NAME}_kernel')
        e(f's_subb_u32 s{S_ST+1}, s{S_ST+1}, 0')
        e(f's_lshr_b32 s{S_T0}, s2, 3')
        e(f's_lshl_b32 s{S_T0}, s{S_T0}, 11')
        e(f'v_lshlrev_b32 v{V_T0}, 7, v{L}')
        e(f'v_add_u32 v{V_T0}, s{S_T0}, v{V_T0}')
        e(f'v_min_u32 v{V_T0}, L_end-{NAME}_kernel-4, v{V_T0}')
        e('s_mov_b64 exec, 0xffff')
        e(f'global_load_dword v{VW+2}, v{V_T0}, {sr(S_ST,2)}')
        e('s_mov_b64 exec, -1')
        vm.add('pfc', 1)
    srds(e, o)
    if o.tlb:
        e('s_mov_b64 exec, 3')
        e(f'buffer_load_dword v{VW+2}, v{VW+1}, {sr(S_K,4)}, s{S_KVB} offen')
        e(f'buffer_load_dword v{VW+2}, v{VW+1}, {sr(S_V,4)}, s{S_KVB} offen')
        e('s_mov_b64 exec, 0x3ffffff')
        if o.tlbq: e(f'buffer_load_dword v{VW+2}, v{VW}, {sr(S_WQ,4)}, 0 offen')
        e(f'buffer_load_dword v{VW+2}, v{VW}, {sr(S_WO,4)}, 0 offen')
        e(f'buffer_load_dword v{VW+2}, v{VW}, {sr(S_OUT,4)}, 0 offen')
        e('s_mov_b64 exec, 0x7007')
        e(f'buffer_load_dword v{VW+2}, v{VW+3}, {sr(S_WS,4)}, s{S_T2} offen')
        e('s_mov_b64 exec, 1')
        e(f'buffer_load_dword v{VW+2}, v{VZ}, {sr(S_WS,4)}, s{S_FL} offen')
        if o.tlbd: e(f'global_load_dword v{VW+2}, v{VZ}, {sr(S_DBG,2)} offset:128')
        if o.tlbf:
            e('s_mov_b64 exec, -1')
            e(f'v_and_b32 v{V_T0}, 3, v{L}')
            e(f'v_lshlrev_b32 v{V_T0}, 16, v{V_T0}')
            e(f'v_lshrrev_b32 v{V_T1}, 2, v{L}')
            e(f'v_lshl_add_u32 v{V_T0}, v{V_T1}, 25, v{V_T0}')
            e('s_mov_b64 exec, 0xee')
            e(f'buffer_load_dword v{VW+2}, v{V_T0}, {sr(S_K,4)}, s{S_KVB} offen')
            e(f'buffer_load_dword v{VW+2}, v{V_T0}, {sr(S_V,4)}, s{S_KVB} offen')
        e('s_mov_b64 exec, -1')
        vm.add('tlb', 6 + o.tlbq + o.tlbd + 2 * o.tlbf)
    def issue_l(name):
        kind, t = name[0], int(name[1:])
        r = []
        if kind == 'K' and t > 31: return r
        base = slot_addr(name)
        if kind in 'KV':
            off = (t // 16) * (4 * 32 * 262144)
            r.append(f's_add_u32 s{S_T0}, s{S_KR}, {(t % 16) * SLOT}')
            r.append(f's_and_b32 s{S_T0}, s{S_T0}, {16 * SLOT - 1}')
            r.append(f's_add_u32 s{S_T0}, s{S_T0}, s{S_KVB}')
            for g in range(4):
                r.append(f's_mov_b32 m0, {base + 4096*g}')
                r.append(f's_add_u32 s{S_T1}, s{S_T0}, {off + 4096*g}')
                for i in range(4):
                    v = VK + i if kind == 'K' else VV
                    r.append(f'buffer_load_dwordx4 v{v}, {sr(S_K if kind == "K" else S_V,4)}, s{S_T1} offen offset:{1024*i} {o.kv_flags} lds')
        else:
            rr = slot(name); j, hi = C.J0 + (rr >> 1), rr & 1
            if j == C.PIECE[12]: return r
            for p in range(2):
                r.append(f's_add_u32 s{S_T2}, s{S_WOB}, {1024*1280*(2*hi+p)}')
                r += wo_dma(o, [c for c in C.TCH if C.PIECE[c] == j][0], None, base + 8192 * p, f's{S_T2}', VWO)
        return r
    def issue(name):
        r = issue_l(name)
        if r:
            vm.room(16); e.many(r); vm.add(name, 16)
    def own_w(c, j=0):
        vm.room(8)
        e(f's_add_u32 s{S_T2}, s{S_WOB}, {1024*1280*3}')
        e.many(wo_dma(o, c, None, 3 * 8192 + 32768 * j, f's{S_T2}', VWO))
        vm.add(f'w{c}', 8)
    def wait_upto(n):
        for m in range(n, -1, -1):
            if vm.has(SEQ[m]): vm.wait(SEQ[m]); return
    def flag(val):
        pre = []; so = S_FL
        if val == 1 and o.r1pack:
            so = S_T2
            pre = [f's_sub_u32 s{S_T2}, s{S_FL}, {WS_FLAGS}', f's_lshr_b32 s{S_T2}, s{S_T2}, 5', f's_add_u32 s{S_T2}, s{S_T2}, {WS_PROG + 4096}']
        return pre + [f's_add_u32 s{S_T0}, s{S_N}, {val}', f'v_mov_b32 v{V_T2}, s{S_T0}', 's_mov_b64 exec, 1',
                f'buffer_store_dword v{V_T2}, v{VZ}, {sr(S_WS,4)}, s{so} offen sc1', 's_mov_b64 exec, -1']
    if o.pf_a:
        if o.pf_delay: e(f's_sleep {o.pf_delay}')
        e(f'v_lshrrev_b32 v{VW}, 1, v{L}')
        e(f'v_lshlrev_b32 v{VW}, 13, v{VW}')
        e(f'v_and_b32 v{VW+1}, 1, v{L}')
        e(f'v_lshl_add_u32 v{VW}, v{VW+1}, 7, v{VW}')
        e(f's_mul_i32 s{S_T0}, s{S_BL}, {160*8192}')
        e(f's_lshl_b32 s{S_T1}, s{S_H}, 8')
        e(f's_add_u32 s{S_T0}, s{S_T0}, s{S_T1}')
        for i in range(5):
            e(f's_add_u32 s{S_T1}, s{S_T0}, {32*i*8192}')
            e(f'buffer_load_dword v{VW+2}, v{VW}, {sr(S_WQ,4)}, s{S_T1} offen {o.w_flags}')
        e(f'v_lshlrev_b32 v{VW+1}, 7, v{L}')
        e(f's_and_b32 s{S_T0}, s{S_H}, 7')
        e(f's_mul_i32 s{S_T0}, s{S_T0}, 15360')
        e(f's_mul_i32 s{S_T1}, s{S_BL}, 122880')
        e(f's_add_u32 s{S_T0}, s{S_T0}, s{S_T1}')
        for i in range(4):
            e(f's_add_u32 s{S_T1}, s{S_T0}, {(i >> 1) * 491520 + (i & 1) * 8192}')
            e(f'buffer_load_dword v{VW+2}, v{VW+1}, {sr(S_X,4)}, s{S_T1} offen {o.w_flags}')
        vm.add('pfa', 9)
    if o.k_first: issue('K0'); issue('K1')
    e('s_cmp_lg_u32 s2, 0')
    e('s_cbranch_scc1 L_notag')
    e(f's_memrealtime {sr(S_ST,2)}')
    e('s_waitcnt lgkmcnt(0)')
    e(f's_mul_i32 s{S_ST+1}, s{S_ST+1}, 0x9e3779b1')
    e(f's_add_u32 s{S_ST}, s{S_ST}, s{S_ST+1}')
    e(f's_or_b32 s{S_ST}, s{S_ST}, 4')
    e(f's_and_b32 s{S_ST}, s{S_ST}, -4')
    e(f'v_mov_b32 v{V_T2}, s{S_ST}')
    e('s_mov_b64 exec, 1')
    e(f'global_store_dword v{VZ}, v{V_T2}, {sr(S_DBG,2)} sc1')
    e('s_mov_b64 exec, -1')
    e.lab('L_notag')
    e.head_end = len(e.L)
    e(f's_lshl_b32 s{S_T0}, s{S_BR}, 2')
    e(f's_add_u32 s{S_T0}, s{S_T0}, s{S_QB}')
    e(f's_lshl_b32 s{S_T0}, s{S_T0}, 12')
    e(f's_add_u32 s{S_T0}, s{S_T0}, {WS_FLAGS}')
    e(f'v_and_b32 v{VP}, 31, v{L}')
    e(f'v_lshlrev_b32 v{VP}, 7, v{VP}')
    e(f'v_add_u32 v{VP}, s{S_T0}, v{VP}')
    if o.r1pack:
        e(f'v_subrev_u32 v{VP}, {WS_FLAGS}, v{VP}')
        e(f'v_lshrrev_b32 v{VP}, 5, v{VP}')
        e(f'v_add_u32 v{VP}, {WS_PROG + 4096}, v{VP}')
    a_addr(e, VA, VB, None)
    wo_voffs(e, VWO)
    wo_lane_addr(e, V_WA)
    e(f'v_lshlrev_b32 v{VW}, 7, v{L}')
    e(f'v_add_u32 v{V_WA}, {3*8192}, v{V_WA}')
    e(f'v_xor_b32 v{V_WA+1}, 64, v{V_WA}')
    e(f'v_lshlrev_b32 v{V_OST}, 4, v{L}')
    e(f's_mov_b32 s{S_C}, {SCALE}')
    pf = []
    for n in range(2, 2 + o.pf_kv):
        kind, t = SEQ[n][0], int(SEQ[n][1:])
        for hh in range(2):
            pf.append([f's_add_u32 s{S_T1}, s{S_KVB}, {t*SLOT + hh*8192}',
                       f'buffer_load_dword v{VW+1}, v{VW}, {sr(S_K if kind == "K" else S_V,4)}, s{S_T1} offen {o.pf_flags}'])
    if o.pf_wo:
        e(f's_lshl_b32 s{S_T2}, s{S_H}, 2')
        e(f's_add_u32 s{S_T2}, s{S_T2}, s{S_BL}')
        e(f's_mul_i32 s{S_T2}, s{S_T2}, 40960')
        for i in range(5):
            pf.append([f's_add_u32 s{S_T1}, s{S_T2}, {i*8192}',
                       f'buffer_load_dword v{VW+1}, v{VW}, {sr(S_WO,4)}, s{S_T1} offen {o.pf_flags}'])
    def reads(s4, buf):
        r = []
        for t in (2, 3):
            for u in range(2):
                r.append(f'ds_read_b64_tr_b16 {vr(AF[buf]+4*(t-2)+2*u,2)}, v{VA+t} offset:{(16*s4+4*u)*256}')
        r += [f'ds_read_b128 {vr(BF[buf]+4*j,4)}, v{VB+s4} offset:{8192*j + 4096}' for j in range(3)]
        return r
    def mf(buf, first):
        r = []
        for j in range(3):
            for t in range(2):
                d = vr(ACC + 32 * j + 16 * t, 16)
                r.append(mfma(d, vr(AF[buf] + 4 * t, 4), vr(BF[buf] + 4 * j, 4), '0' if first else d))
        return r
    pf2 = []
    if o.pf2:
        e(f'v_and_b32 v36, 31, v{L}')
        e(f'v_lshrrev_b32 v36, 1, v36')
        e(f'v_lshrrev_b32 v37, 5, v{L}')
        e(f'v_lshl_add_u32 v36, v37, 6, v36')
        e(f'v_lshlrev_b32 v36, 13, v36')
        e(f'v_and_b32 v37, 1, v{L}')
        e(f'v_lshl_add_u32 v36, v37, 7, v36')
        e(f'v_lshrrev_b32 v38, 1, v{L}')
        e(f'v_min_u32 v38, 23, v38')
        e(f'v_mul_u32_u24 v38, 1280, v38')
        e(f'v_lshl_add_u32 v38, v37, 7, v38')
        e(f's_lshl_b32 s{S_XB}, s{S_BL}, 17')
        e(f's_lshl_b32 s{S_T0}, s{S_H}, 8')
        e(f's_add_u32 s{S_XB}, s{S_XB}, s{S_T0}')
        e(f's_bfe_u32 s{S_T0}, s{S_H}, 0x10002')
        e(f's_lshl_b32 s{S_T0}, s{S_T0}, 2')
        e(f's_add_u32 s{S_T0}, s{S_T0}, s{S_BL}')
        e(f's_mul_i32 s{S_OB}, s{S_T0}, 122880')
        e(f's_and_b32 s{S_T0}, s{S_H}, 3')
        e(f's_mul_i32 s{S_T0}, s{S_T0}, {24*1280}')
        e(f's_add_u32 s{S_OB}, s{S_OB}, s{S_T0}')
        for p in range(o.pf2_p0, 5):
            pf2.append([f's_add_u32 s{S_T1}, s{S_XB}, {128*p*8192}', f'buffer_load_dword v39, v36, {sr(S_WQ,4)}, s{S_T1} offen',
                        f's_add_u32 s{S_T1}, s{S_OB}, {256*p}', f'buffer_load_dword v39, v38, {sr(S_X,4)}, s{S_T1} offen'])
        for x in pf2[:o.pf2_pre]:
            e.many(x); vm.add('pf2', 2)
        pf2 = pf2[o.pf2_pre:]
    extra = {}
    def ride(step, name, ins, cnt):
        extra.setdefault(step, []).append((name, ins, cnt))
    for i, x in enumerate(pf2): ride(o.pf2_s0 + o.pf2_gap * i, 'pf2', x, 2)
    if not o.k_first:
        for i, nm in enumerate(('K0', 'K1')):
            ins = issue_l(nm)
            for q in range(4): ride(4 * o.k_s0 + 4 * i + q, nm if q == 3 else None, ins[(3 + 6 * q if q else 0):3 + 6 * q + 6], 4)
    npf = 4 * (7 - o.pf_s0)
    for i, x in enumerate(pf): ride(4 * o.pf_s0 + (i * npf) // max(len(pf), 1), 'pf', x, 1)
    for i, nm in enumerate(('V0', 'K2')):
        ins = issue_l(nm)
        for q in range(2): ride(31 + 2 * i + q, nm if q == 1 else None, ins[(15 if q else 0):3 + 12 * q + 12], 8)
    ins = issue_l('V1')
    for q in range(0 if o.v1_late else 2): ride(35 + q, 'V1' if q == 1 else None, ins[(15 if q else 0):3 + 12 * q + 12], 8)
    e('s_barrier')
    e.many(reads(0, 0))
    e.skip = o.a_skip + ('mr' if o.dq2 else '')
    for s in range(10):
        for s4 in range(4):
            step = 4 * s + s4; buf = step & 1
            e('s_waitcnt lgkmcnt(0)')
            if step == 31: no_task_wo(e)
            if s4 == 3:
                if s == 9: vm.wait('K1')
                e('s_barrier')
            late = []
            for name, ins, cnt in extra.get(step, []):
                vm.room(cnt); late += ins; vm.add(name or 'part', cnt)
            if s4 == 2 and s < 9: late += a_step(s, VA)
            front = reads((s4 + 1) & 3, buf ^ 1) if step < 39 else []
            gaps(e, mf(buf, step == 0), front, late, per=max(o.aper - 1, 3), late_from=(2 if s4 == 2 else 1))
    e.skip = ''
    if o.v1_late: issue('V1')
    e('s_nop 7'); e('s_nop 3')
    for j in range(3):
        for i in range(16): e.many(conv(i, ACC + 32 * j, ACC + 32 * j))
        for f in range(4): e(f'ds_write_b128 v{V_OST}, {vr(ACC+32*j+4*f,4)} offset:{8192*j + 1024*f}')
    e('s_waitcnt lgkmcnt(0)')
    if o.prio == 1: e('s_setprio 3')
    issue('K3')
    issued = POS['K3']
    e(f's_lshr_b32 s{S_WC}, s2, 3')
    e(f's_mul_i32 s{S_KX}, s{S_WC}, 13')
    e(f's_lshr_b32 s{S_KX}, s{S_KX}, 6')
    vm.wait('pfa')
    e(f'v_mul_u32_u24 v{VW+2}, 1280, v{L}')
    vm_pg = [None]
    ld_own = f'buffer_load_dword v23, v22, {sr(S_WS,4)}, 0 offen sc1'
    T3 = Tail(e, o); T3.vm = vm
    T3.free = [1000 + r for r in range(32, 64, 4)]
    e.T3 = T3
    def shadow_mm(c, first):
        m = []
        af = (lambda off, n: hold3(c, off, n)) if c < 12 else (lambda off, n: vr(32 + off, n))
        for s4 in range(4):
            for nt in range(2):
                d = ar(16 * nt, 16)
                m.append(mfma(d, af(8 * s4 + 4 * nt, 4), reg4(T3.where[(0, c)][s4]), '0' if (first and s4 == 0) else d))
        return m
    ld_cnt = f'global_load_dword v23, v{VZ}, {sr(S_DBG,2)} sc1'
    ld_fl = f'buffer_load_dword v23, v{VP}, {sr(S_WS,4)}, 0 offen sc1'
    for k in range(32):
        wait_upto(POS[f'V{k}'])
        if o.wl:
            for w in range(3):
                ev = ev_ticks(o, w)
                if k in ev and ev.index(k) > 0: vm.wait(f'W{w}_{ev.index(k) - 1}')
        vm.stamp(o, 32 + k) if o.tickst == 1 else None
        e('s_barrier')
        vm.stamp(o, 32 + k) if o.tickst == 2 else None
        if k == flag1_tick(o):
            vm.room(1); e.many(flag(1)); vm.add('f1', 1)
        if o.pf_w and k in PF_TICKS and PF_TICKS.index(k) >= o.pf_wi:
            vm.room(1)
            e(f's_add_u32 s{S_T0}, s{S_KX}, {6 * PF_TICKS.index(k)}')
            e(f's_and_b32 s{S_T2}, s{S_T0}, 3')
            e(f's_lshl_b32 s{S_T2}, s{S_T2}, 4')
            e(f's_lshr_b32 s{S_T0}, s{S_T0}, 2')
            e(f's_add_u32 s{S_T0}, s{S_T0}, s{S_RHO}')
            e(f's_and_b32 s{S_T0}, s{S_T0}, 15')
            e(f's_add_u32 s{S_T0}, s{S_T0}, s{S_T2}')
            e(f's_mul_i32 s{S_T0}, s{S_T0}, {64*1280}')
            e(f's_add_u32 s{S_T0}, s{S_T0}, s{S_WOB}')
            e(f'buffer_load_dword v{VW+1}, v{VW+2}, {sr(S_WO,4)}, s{S_T0} offen {o.wo_flags}')
            vm.add('pft', 1)
        wper = o.wper; ws = int(o.wst[3]) if o.wst else o.w0 - 1 if wper == 3 else o.w0 + 1
        wev = (k - ws) // wper if (k >= ws and (k - ws) % wper == 0 and k <= ws + 8 * wper) else None
        if wev:
            vm.wait(f'w{wev-1}')
            e.many(wo_reads(lambda off, n: hold3(wev - 1, off, n), V_WA, V_WA + 1, 0))
        if o.w3 and k == o.w3k - 1:
            e(f'v_and_b32 v22, 7, v{L}')
            e(f'v_lshlrev_b32 v22, 7, v22')
            e(f'v_readfirstlane_b32 s{S_T0}, v{VP}')
            e(f's_add_u32 s{S_T0}, s{S_T0}, {24*128}')
            e(f'v_add_u32 v22, s{S_T0}, v22')
            vm.room(1); e(ld_own); vm.add('po', 1)
        if o.lb and k == o.tagk + 1:
            e(f's_and_b32 s{S_T0}, s2, 7')
            e(f's_lshl_b32 s{S_T0}, s{S_T0}, 7')
            e(f's_add_u32 s{S_T0}, s{S_T0}, {WS_PROG}')
            e(f'v_and_b32 v33, 31, v{L}')
            e(f'v_lshlrev_b32 v33, 2, v33')
            e(f'v_add_u32 v33, s{S_T0}, v33')
            e(f's_lshr_b32 s{S_T2}, s2, 3')
            e(f's_lshl_b32 s{S_T2}, s{S_T2}, 2')
            e(f's_add_u32 s{S_T0}, s{S_T0}, s{S_T2}')
            e(f'v_mov_b32 v32, s{S_T0}')
            e(f's_mov_b32 s{S_WC}, 0')
            if o.lb_t: e(f's_mov_b32 s{S_KX}, 0')
            if o.don:
                e(f's_cmp_eq_u32 s{S_NT}, 15')
                e(f's_cselect_b32 s{S_KX}, {4 * o.don_lag}, 0')
        if o.lb and o.tagk + 1 <= k <= 28:
            vm.room(1)
            e(f's_add_u32 s{S_T0}, s{S_N}, {4 * k}')
            e(f'v_mov_b32 v35, s{S_T0}')
            e('s_mov_b64 exec, 1')
            e(f'buffer_store_dword v35, v32, {sr(S_WS,4)}, 0 offen {o.lb_st}')
            e('s_mov_b64 exec, -1')
            vm.add('ps', 1)
        if o.lb and vm_pg[0] is not None and vm_pg[0] + 1 == k:
            vm.wait('pg')
            e(f'v_subrev_u32 v34, s{S_N}, v34')
            if o.lb_t:
                e(f'v_cmp_ge_u32 vcc, {4 * (k - 2)}, v34')
                e(f's_bcnt1_i32_b32 s{S_KX}, vcc_lo')
            e(f'v_subrev_u32 v34, {4 * k}, v34')
            if o.don: e(f'v_subrev_u32 v34, s{S_KX}, v34')
            e(f'v_cmp_gt_u32 vcc, 64, v34')
            e(f's_bcnt1_i32_b32 s{S_WC}, vcc_lo')
        if o.r6 and k == o.r6k: own_w(9, 1)
        wq_ = []
        if o.wl:
            for w in range(3):
                ev = ev_ticks(o, w)
                if k - 1 in ev:
                    c = ev.index(k - 1)
                    if o.wl == 1 or k >= o.thr_end or k < o.tagk + 2:
                        vm.room(8)
                        e(f's_add_u32 s{S_T2}, s{S_WOB}, {1024*1280*w}')
                        e.many(wo_dma(o, c, None, w * 8192, f's{S_T2}', VWO))
                        vm.add(f'W{w}_{c}', 8)
                    else:
                        for pr in range(4):
                            row = 1024 * w + 64 * c + 16 * pr
                            i0 = (2 * pr) & 3
                            base = (row - 8 * i0) * 1280
                            wq_.append((f'W{w}_{c}' if pr == 3 else 'Wp',
                                        [f's_mov_b32 m0, {w * 8192 + 4096 * (pr >> 1)}', f's_add_u32 s{S_T2}, s{S_WOB}, {base}'] +
                                        [f'buffer_load_dwordx4 v{VWO+i}, {sr(S_WO,4)}, s{S_T2} offen offset:{1024*i} {o.wo_flags} lds' for i in (i0, i0 + 1)]))
        if k in (o.tagk, o.r1k):
            vm.room(1); e(ld_cnt if k == o.tagk else ld_fl); vm.add('pl', 1)
        if k == 30 and not o.w3:
            tail_setup(e, o)
            vm.room(4 * o.nearly); e.many(e.early); vm.add('early', 4 * o.nearly)
        sh = []
        if o.w3 and o.w3k < k <= o.w3k + 6: sh = [2 * (k - o.w3k - 1), 2 * (k - o.w3k - 1) + 1]
        if o.w3 and k == o.w3k + 7: sh = [12]
        first = POS[f'K{k+1}']
        lk = o.look if o.look_k0 <= k < o.look_k1 else o.look_lo
        if k >= 28: lk = 7 if first + o.look_lo >= POS['V31'] else lk
        lim = min(first + lk, first + C.NR - 1, POS[C.TL])
        if k == 31: lim = POS[C.TL]
        if o.tsched == 1 and k in (29, 30): lim = min(lim, POS['T1'] + (k - 29))
        if o.tsched == 2 and k < 31: lim = min(lim, POS['V31'])
        if o.tsched == 3 and k == 29: lim = min(lim, POS['V31'])
        done_sh = False
        def do_shadow(fill):
            if sh == [12]:
                vm.wait('w12')
                e.many(wo_reads(lambda off, n: vr(32 + off, n), V_WA, V_WA + 1, 0))
                e('s_waitcnt lgkmcnt(0)')
            elif wev: e('s_waitcnt lgkmcnt(0)')
            for c in sh: vm.wait(f'o0_{c}')
            m = []
            for c in sh: m += shadow_mm(c, c == 0)
            gaps(e, m, fill(), per=3)
            for c in sh: T3.free += T3.where[(0, c)]
            vm.room(8); e.many(T3.pump(2))
        while issued < lim:
            issued += 1
            if o.lb and o.tagk + 1 <= k < 27 and issued == lim - 1 + o.lb_pos:
                vm.room(17)
                e(f'buffer_load_dword v34, v33, {sr(S_WS,4)}, 0 offen {o.lb_ld}')
                vm.add('pg', 1); vm_pg[0] = k
            if sh and issued == lim and issue_l(SEQ[issued]):
                def fill():
                    vm.room(16); vm.add(SEQ[issued], 16)
                    return issue_l(SEQ[issued])
                do_shadow(fill); done_sh = True
            elif o.gran < 16 and SEQ[issued][0] in 'KV' and k < o.thr_end and issue_l(SEQ[issued]):
                ins = issue_l(SEQ[issued]); nl = 0
                for x in ins:
                    isld = x.startswith('buffer_load')
                    if isld and nl % o.gran == 0: vm.room(o.gran)
                    e(x)
                    if not isld: continue
                    nl += 1
                    if nl % o.gran: continue
                    vm.add(SEQ[issued] if nl == 16 else 'part', o.gran)
                    if nl == 16: break
                    q = nl
                    if wq_ and nl % 4 == 0:
                        nm, wi = wq_.pop(0); vm.room(2); e.many(wi); vm.add(nm, 2)
                    if o.lb and o.tagk + 2 <= k:
                        while vm.out() > o.lb_hi: vm.wait(vm.q[0][0])
                        e(f's_cmp_ge_u32 s{S_WC}, {o.lb}')
                        e(f's_cbranch_scc1 L_deep{issued}_{q}')
                        e(f's_waitcnt vmcnt({min(63, vm.kv_limit(o.thr)) if o.kvx else o.thr})')
                        e.lab(f'L_deep{issued}_{q}')
                    else:
                        while vm.out() > o.thr: vm.wait(vm.q[0][0])
            else:
                issue(SEQ[issued])
            if o.lb and o.tagk + 2 <= k < o.thr_end:
                while vm.out() > o.lb_hi: vm.wait(vm.q[0][0])
                e(f's_cmp_ge_u32 s{S_WC}, {o.lb}')
                e(f's_cbranch_scc1 L_deep{issued}')
                e(f's_waitcnt vmcnt({min(63, vm.kv_limit(o.thr)) if o.kvx else o.thr})')
                if o.lb_t:
                    e(f's_cmp_lt_u32 s{S_KX}, {o.lb_t}')
                    e(f's_cbranch_scc1 L_deep{issued}')
                    e(f's_waitcnt vmcnt({o.lb_lo})')
                e.lab(f'L_deep{issued}')
            else:
                while vm.out() > o.thr + (8 if done_sh else 0) and k < o.thr_end: vm.wait(vm.q[0][0])
        for nm, wi in wq_:
            vm.room(2); e.many(wi); vm.add(nm, 2)
        if sh and not done_sh: do_shadow(lambda: [])
        if o.w3 and k == o.w3k:
            vm.wait('po')
            e(f's_add_u32 s{S_T3}, s{S_N}, 1')
            poll(e, o, 'r1o', ld_own, ['v_and_b32 v23, -3, v23', f'v_cmp_eq_u32 vcc, s{S_T3}, v23'])
            tail_setup(e, o)
            T3.todo = [(0, c) for c in range(16)]
            vm.room(8); e.many(T3.pump(2))
        if k == o.tagk:
            vm.wait('pl')
            poll(e, o, 'tag', ld_cnt, ['v_cmp_ne_u32 vcc, 0, v23'])
            e(f'v_readfirstlane_b32 s{S_N}, v23')
        if k == o.r1k:
            vm.wait('pl')
            e(f's_add_u32 s{S_T3}, s{S_N}, 1')
            poll(e, o, 'r1', ld_fl, ['v_and_b32 v23, -3, v23', f'v_cmp_eq_u32 vcc, s{S_T3}, v23'])
        if wev is not None:
            e('s_waitcnt lgkmcnt(0)')
            own_w(wev)
    npre = 4 * o.npre
    if o.pre3 == 2:
        vm.room(npre + 1); e.many(e.pre)
    e('s_barrier')
    if o.pre3 == 1: vm.room(npre + 1)
    if o.pwf:
        assert o.pre3 == 1
        e(f'v_mov_b32 v0, s{S_N}')
    else: e.many(flag(3))
    if o.pre3 == 1: e.many(e.pre)
    e(f's_waitcnt vmcnt({npre if o.pre3 == 1 else npre + 1 if o.pre3 == 2 else 1})')
    if o.pre3 == 0: e.many(e.pre)
    vm.q = []

def a_addr(e, VA, VB, xl):
    L = V_LANE
    e(f'v_lshrrev_b32 v{V_T0}, 5, v{L}')
    e(f'v_bfe_u32 v{V_T1}, v{L}, 2, 2')
    e(f'v_lshl_add_u32 v{V_T2}, v{V_T0}, 3, v{V_T1}')
    e(f'v_lshlrev_b32 v{V_T2}, 8, v{V_T2}')
    e(f'v_lshl_add_u32 v{V_T2}, v{V_T1}, 6, v{V_T2}')
    e(f'v_bfe_u32 v{V_T3}, v{L}, 4, 1')
    e(f'v_lshl_add_u32 v{V_T2}, v{V_T3}, 5, v{V_T2}')
    e(f'v_and_b32 v{V_T3}, 1, v{L}')
    e(f'v_lshl_add_u32 v{V_T2}, v{V_T3}, 4, v{V_T2}')
    e(f'v_bfe_u32 v{V_T3}, v{L}, 1, 1')
    e(f'v_lshl_add_u32 v{V_T2}, v{V_T3}, 3, v{V_T2}')
    for t in range(4):
        e(f'v_xor_b32 v{VA+t}, {64*t}, v{V_T2}')
        e(f'v_add_u32 v{VA+t}, {reg_w(0)}, v{VA+t}')
    e(f'v_and_b32 v{V_T1}, 31, v{L}')
    e(f'v_bfe_u32 v{V_T2}, v{L}, 1, 3')
    e(f'v_xor_b32 v{V_T2}, v{V_T2}, v{V_T0}')
    e(f'v_lshlrev_b32 v{V_T2}, 4, v{V_T2}')
    e(f'v_lshl_add_u32 v{V_T2}, v{V_T1}, 7, v{V_T2}')
    if xl is not None:
        e(f's_add_u32 s{S_T0}, s{xl}, {reg_x(0)}')
    for s4 in range(4):
        e(f'v_xor_b32 v{VB+s4}, {32*s4}, v{V_T2}')
        e(f'v_add_u32 v{VB+s4}, s{S_T0}, v{VB+s4}' if xl is not None else f'v_add_u32 v{VB+s4}, {reg_x(0)}, v{VB+s4}')

def a_step(s, VA):
    r = []
    for i in range(8):
        d = reg_w(s + 1) - reg_w(s) if i < 4 else reg_x(s + 1) - reg_x(s)
        r.append(f'v_add_u32 v{VA+i}, {d}, v{VA+i}' if d > 0 else f'v_subrev_u32 v{VA+i}, {-d}, v{VA+i}')
    return r

SCALE = hex(struct.unpack("<I", struct.pack("<f", math.log2(math.e) / math.sqrt(128.0)))[0])
def conv(i, src, dst):
    a = src + 2 * i
    return [f'v_mul_f32 v{a}, s{S_C}, v{a}', f'v_mul_f32 v{a+1}, s{S_C}, v{a+1}', f'v_cvt_pk_bf16_f32 v{dst+i}, v{a}, v{a+1}']

def phase_a(e, o):
    L = V_LANE
    VA, VB = V_Q, V_Q + 4
    AF = [V_SA, V_SB]; BF = [V_P, V_TMP]; ACC = [128, 192]
    e(f'v_lshrrev_b32 v{V_T0}, 3, v{L}')
    e(f'v_mul_u32_u24 v{V_T0}, 1280, v{V_T0}')
    e(f'v_lshrrev_b32 v{V_T1}, 4, v{L}')
    e(f'v_and_b32 v{V_T2}, 7, v{L}')
    e(f'v_xor_b32 v{V_T1}, v{V_T1}, v{V_T2}')
    for i in range(4):
        e(f'v_xor_b32 v{V_T2}, {4*(i&1)}, v{V_T1}')
        e(f'v_lshl_add_u32 v{V_DMA+i}, v{V_T2}, 4, v{V_T0}')
        if i: e(f'v_add_u32 v{V_DMA+i}, {(10240-1024)*i}, v{V_DMA+i}')
    e(f's_mul_i32 s{S_XB}, s{S_BL}, 3')
    e(f's_add_u32 s{S_XB}, s{S_XB}, s{S_WAVE}')
    e(f's_mul_i32 s{S_OB}, s{S_BR}, 24')
    e(f's_add_u32 s{S_OB}, s{S_OB}, s{S_XB}')
    e(f's_mul_i32 s{S_XB}, s{S_XB}, 40960')
    def xload(s, it):
        r = []
        if it == 0:
            r.append(f's_lshl_b32 s{S_T0}, s{S_KX}, 7')
            r.append(f's_add_u32 s{S_T0}, s{S_T0}, s{S_XB}')
        r.append(f's_add_u32 m0, s{S_XL}, {reg_x(s) + 4096*it}')
        r.append(f's_add_u32 s{S_T1}, s{S_T0}, {491520*it}')
        for i in range(4):
            ld = f'buffer_load_dwordx4 v{V_DMA+i}, {sr(S_X,4)}, s{S_T1} offen offset:{1024*i} {o.w_flags} lds'
            if o.dq2 and it == 1: ld = f's_mov_b64 exec, 1\n    buffer_load_dwordx4 v{V_DMA}, {sr(S_X,4)}, s{S_T1} offen lds\n    s_mov_b64 exec, -1'
            r.append(ld)
        if it == 1:
            if s + 1 < o.nun: r.append(f's_mov_b32 s{S_KX}, {s + 1}')
            elif s + 1 == o.nun: r.append(f's_mov_b32 s{S_KX}, s{S_KR}')
            else:
                r.append(f's_add_u32 s{S_KX}, s{S_KX}, 1')
                r.append(f's_cmp_eq_u32 s{S_KX}, 10')
                r.append(f's_cselect_b32 s{S_KX}, {o.nun}, s{S_KX}')
        return r
    if o.nun:
        for _ in range(2):
            e(f's_cmp_ge_u32 s{S_KX}, {10 - o.nun}')
            e(f's_cselect_b32 s{S_T0}, {10 - o.nun}, 0')
            e(f's_sub_u32 s{S_KX}, s{S_KX}, s{S_T0}')
        e(f's_add_u32 s{S_KR}, s{S_KX}, {o.nun}')
        e(f's_mov_b32 s{S_KX}, 0')
    VWQ = V_Q + 8
    e(f'v_lshrrev_b32 v{V_T0}, 4, v{L}')
    e(f'v_and_b32 v{V_T1}, 15, v{L}')
    e(f'v_lshlrev_b32 v{V_T3}, 2, v{V_T0}')
    e(f'v_xor_b32 v{V_T3}, v{V_T3}, v{V_T1}')
    e(f'v_lshlrev_b32 v{V_T2}, 13, v{V_T0}')
    e(f'v_lshl_add_u32 v{VWQ}, v{V_T3}, 4, v{V_T2}')
    for i in range(1, 4): e(f'v_add_u32 v{VWQ+i}, {(32768-1024)*i}, v{VWQ}')
    e(f's_mul_i32 s{S_KVB}, s{S_WAVE}, {5*32768}')
    e(f's_lshl_b32 s{S_T0}, s{S_H}, 8')
    e(f's_add_u32 s{S_KVB}, s{S_KVB}, s{S_T0}')
    e(f's_mul_i32 s{S_FL}, s{S_WAVE}, {5*1024}')
    if o.nodup:
        e(f's_mul_i32 s{S_N}, s{S_WAVE}, {5*32768}')
        e(f's_sub_u32 s{S_N}, {15*32768}, s{S_N}')
        e(f's_mov_b64 {sr(S_SAVE,2)}, 0xffffff')
        e(f's_cmp_eq_u32 s{S_WAVE}, 1')
        e(f's_cselect_b32 s{S_SAVE}, 0xff000000, s{S_SAVE}')
        e(f's_cselect_b32 s{S_SAVE+1}, 0xfff, s{S_SAVE+1}')
        e(f's_cmp_eq_u32 s{S_WAVE}, 2')
        e(f's_cselect_b32 s{S_SAVE}, 0, s{S_SAVE}')
        e(f's_cselect_b32 s{S_SAVE+1}, 0xfffff000, s{S_SAVE+1}')
    def wqload(s):
        r = [f's_lshl_b32 s{S_T2}, s{S_KX}, 19', f's_add_u32 s{S_T2}, s{S_T2}, s{S_KVB}']
        for t in range(5 if o.nodup else 6):
            if t % 4 == 0:
                r.append(f's_add_u32 m0, s{S_FL}, {reg_w(s) + 1024*t}')
                r.append(f's_add_u32 s{S_T1}, s{S_T2}, {32768*t}')
            r.append(f'buffer_load_dwordx4 v{VWQ+(t&3)}, {sr(S_WQ,4)}, s{S_T1} offen offset:{1024*(t&3)} {o.w_flags} lds')
        if o.nodup:
            r.append(f's_mov_b32 m0, {reg_w(s) + 15*1024}')
            r.append(f's_add_u32 s{S_T1}, s{S_T2}, s{S_N}')
            r.append(f's_mov_b64 exec, {sr(S_SAVE,2)}\n    buffer_load_dwordx4 v{VWQ}, {sr(S_WQ,4)}, s{S_T1} offen {o.w_flags} lds\n    s_mov_b64 exec, -1')
        return r
    srds(e, o)
    e.many(wqload(0)); e.many(xload(0, 0)); e.many(xload(0, 1))
    e.first_loads = len(e.L)
    lazy(e, o, 2)
    no_task_wo(e)
    e(f's_lshl_b32 s{S_OB}, s{S_OB}, 5')
    e(f's_add_u32 s{S_OB}, s{S_OB}, s{S_H}')
    e(f's_lshl_b32 s{S_OB}, s{S_OB}, 13')
    a_addr(e, VA, VB, S_XL)
    e(f'v_and_b32 v{V_T2}, 15, v{L}')
    e(f'v_xor_b32 v{V_T2}, v{V_T2}, v{V_T0}')
    e(f'v_lshlrev_b32 v{V_T2}, 4, v{V_T2}')
    e(f'v_lshl_add_u32 v{V_T2}, v{V_T1}, 8, v{V_T2}')
    for s in range(8):
        e(f'v_xor_b32 v{V_KA+s}, {32*s}, v{V_T2}')
        e(f'v_add_u32 v{V_KA+s}, {slot_addr("K0")}, v{V_KA+s}')
    e(f'v_bfe_u32 v{V_T1}, v{L}, 2, 2')
    e(f'v_lshl_add_u32 v{V_T2}, v{V_T0}, 2, v{V_T1}')
    e(f'v_lshlrev_b32 v{V_T2}, 8, v{V_T2}')
    e(f'v_lshl_add_u32 v{V_T2}, v{V_T1}, 6, v{V_T2}')
    e(f'v_bfe_u32 v{V_T3}, v{L}, 4, 1')
    e(f'v_lshl_add_u32 v{V_T2}, v{V_T3}, 5, v{V_T2}')
    e(f'v_and_b32 v{V_T3}, 3, v{L}')
    e(f'v_lshl_add_u32 v{V_T2}, v{V_T3}, 3, v{V_T2}')
    e(f'v_add_u32 v{V_T2}, {slot_addr("V0")}, v{V_T2}')
    for t in range(4): e(f'v_xor_b32 v{V_VA+t}, {64*t}, v{V_T2}')
    e(f'v_lshlrev_b32 v{V_OST}, 4, v{L}')
    e(f'v_add_u32 v{V_OST+3}, s{S_XL}, v{V_OST}')
    wo_lane_addr(e, V_WA)
    e(f'v_add_u32 v{V_WA}, s{S_XL}, v{V_WA}')
    if C.M16:
        e(f'v_and_b32 v{V_T0}, 15, v{L}')
        e(f'v_lshlrev_b32 v{V_WA+1}, 4, v{V_T0}')
        e(f'v_bfe_u32 v{V_T0}, v{L}, 4, 1')
        e(f'v_lshl_add_u32 v{V_WA+1}, v{V_T0}, 10, v{V_WA+1}')
        e(f'v_lshrrev_b32 v{V_T0}, 5, v{L}')
        e(f'v_lshl_add_u32 v{V_WA+1}, v{V_T0}, 8, v{V_WA+1}')
    else:
        e(f'v_xor_b32 v{V_WA+1}, 64, v{V_WA}')
    e(f's_mul_i32 s{S_WQB}, s{S_WAVE}, {1024*1280}')
    e(f's_add_u32 s{S_WQB}, s{S_WQB}, s{S_WOB}')
    e(f's_mov_b32 s{S_WC}, s{S_RHO}')
    if o.wst:
        e(f's_mov_b32 s{S_WN}, {int(o.wst[0]) + 1}')
        for w in (1, 2):
            e(f's_cmp_eq_u32 s{S_WAVE}, {w}')
            e(f's_cselect_b32 s{S_WN}, {int(o.wst[w]) + 1}, s{S_WN}')
    else:
        e(f's_add_u32 s{S_WN}, s{S_WAVE}, {o.w0 + 1}')
    e(f's_mov_b32 s{S_EV}, 0')
    for i in range(64): e(f'v_accvgpr_write_b32 a{i}, 0')
    for i in range(16): e(f'v_mov_b32 v{V_NEGM+i}, 0')
    for i in range(4): e(f'v_mov_b32 v{V_L+i}, 0')
    e(f's_mov_b32 s{S_C}, {SCALE}')
    e(f's_mov_b32 s{S_THR}, 0xff800000')
    e(f's_mov_b32 s{S_FLOOR}, 0xff800000')
    e(f's_mov_b32 s{S_TICK}, 0')
    e(f's_mov_b32 s{S_KOFF}, {slot("K1")*SLOT}')
    e(f's_mov_b32 s{S_VOFF}, {slot("V0")*SLOT}')
    nst = 0
    lazy(e, o, 5)
    e.many(wqload(1)); e.many(xload(1, 0)); e.many(xload(1, 1))
    lazy(e, o, 6)
    def reads(s4, buf):
        r = [f'ds_read_b128 {vr(BF[buf]+4*it,4)}, v{VB+s4} offset:{4096*it}' for it in range(1 if o.dq2 else 2)]
        for t in range(4):
            for u in range(2):
                r.append(f'ds_read_b64_tr_b16 {vr(AF[buf]+4*t+2*u,2)}, v{VA+t} offset:{(16*s4+4*u)*256}')
        return r
    def mf(buf, first):
        r = []
        for t in range(4):
            for it in range(2):
                if it == 1 and (t >= 2 or o.dq2): continue
                d = vr(ACC[it] + 16 * t, 16)
                r.append(mfma(d, vr(AF[buf] + 4 * t, 4), vr(BF[buf] + 4 * it, 4), '0' if first else d))
        return r
    e(f's_waitcnt vmcnt({14 + nst})')
    lazy(e, o, 7)
    e('s_barrier')
    lazy(e, o, 8)
    dmark(e, o, 0)
    e.many(reads(0, 0))
    e.skip = o.a_skip
    for s in range(10):
        for s4 in range(4):
            step = 4 * s + s4; buf = step & 1
            if step in (8, 16, 24, 32, 39): lazy(e, o, 9 + (8, 16, 24, 32, 39).index(step))
            if o.stamps and step in (8, 32): e(f's_memtime s[{LAZY[3 if step == 8 else 4]}:{LAZY[3 if step == 8 else 4]+1}]')
            m = mf(buf, step == 0)
            late = []
            e('s_waitcnt lgkmcnt(0)')
            if s4 == 3:
                if s < 9:
                    e(f's_waitcnt vmcnt({(14 if s + 2 <= 9 else 0) + (nst if s < 2 else 0)})')
                e('s_barrier')
                if s + 3 <= 9: late = wqload(s + 3)
            if s4 == 0 and s + 2 <= 9: late = (wqload(2) if s == 0 else []) + xload(s + 2, 0)
            if s4 == 1 and s + 2 <= 9: late = xload(s + 2, 1)
            if s4 == 2 and s < 9: late = a_step(s, VA)
            front = reads((s4 + 1) & 3, buf ^ 1) if step < 39 else []
            gaps(e, m, front, late, per=(5 if o.dq2 else o.aper), late_from=(3 if o.aper == 3 and s4 == 2 else 2 if o.aper >= 4 else 1))
    e.skip = ''
    wo_voffs(e, V_DMA)
    e('s_nop 4')
    for i in range(16): e.many(conv(i, ACC[0], V_Q))
    e.many(k_reads(0))
    for i in range(16, 32): e.many(conv(i, ACC[0], V_Q))

def k_reads(half):
    return [f'ds_read_b128 {vr(V_KF+4*s,4)}, v{V_KA+s} offset:{8192*half}' for s in range(8)]
def v_reads(half):
    r = []
    for jj in range(2):
        for t in range(4):
            for u in range(2):
                r.append(f'ds_read_b64_tr_b16 {vr(V_VF+16*jj+4*t+2*u,2)}, v{V_VA+t} offset:{(32*half+16*jj+8*u)*256}')
    return r
def qk(S):
    return [mfma(vr(S, 16), vr(V_KF + 4 * s, 4), vr(V_Q + 4 * s, 4), vr(V_NEGM, 16) if s == 0 else vr(S, 16)) for s in range(8)]
def pv():
    return [mfma(ar(16 * t, 16), vr(V_VF + 16 * jj + 4 * t, 4), vr(V_P + 4 * jj, 4), ar(16 * t, 16)) for jj in range(2) for t in range(4)]
def maxes(S):
    r = [f'v_max3_f32 v{V_MX}, v{S}, v{S+1}, v{S+2}', f'v_max3_f32 v{V_D}, v{S+3}, v{S+4}, v{S+5}']
    r += [f'v_max3_f32 v{V_MX}, v{V_MX}, v{S+6}, v{S+7}', f'v_max3_f32 v{V_D}, v{V_D}, v{S+8}, v{S+9}']
    r += [f'v_max3_f32 v{V_MX}, v{V_MX}, v{S+10}, v{S+11}', f'v_max3_f32 v{V_D}, v{V_D}, v{S+12}, v{S+13}']
    r += [f'v_max3_f32 v{V_MX}, v{V_MX}, v{S+14}, v{S+15}', f'v_max_f32 v{V_MX}, v{V_MX}, v{V_D}']
    r += [f'v_cmp_lt_f32 vcc, s{S_THR}, v{V_MX}']
    return r

def half_tick(e, Snew, Sold, vhalf, khalf, extra_v=(), extra_k=(), extra_8=()):
    ex = lambda i: f'v_exp_f32 v{Sold+i}, v{Sold+i}'
    cv = lambda i: f'v_cvt_pk_bf16_f32 v{V_P+i}, v{Sold+2*i}, v{Sold+2*i+1}'
    ad = lambda i: f'v_add_f32 v{V_L+(i&3)}, v{V_L+(i&3)}, v{Sold+i}'
    m = qk(Snew) + pv()
    m[8] = ['s_waitcnt lgkmcnt(0)', m[8]]
    if e.mix:
        vr_ = v_reads(vhalf); fill = []
        for i in range(8):
            fill += vr_[:e.mix] + [ex(i)]; vr_ = vr_[e.mix:]
        fill += vr_ + list(extra_v) + [cv(i) for i in range(4)] + [ex(i) for i in range(8, 12)]
    else:
        fill = v_reads(vhalf) + [ex(i) for i in range(8)] + list(extra_v) + [cv(i) for i in range(4)] + [ex(i) for i in range(8, 12)]
    fill += [('M', 8), ('A', 8)] + (k_reads(khalf) if khalf is not None else []) + [ex(i) for i in range(12, 16)] + [ad(0)]
    fill += [cv(i) for i in range(4, 8)] + [ad(1), ad(2)]
    rest = [ad(i) for i in range(3, 16)]
    x8 = list(extra_8)
    fill += [('M', 12)]
    while rest or x8:
        if rest: fill.append(rest.pop(0))
        fill += x8[:3]; x8 = x8[3:]
    fill += list(extra_k) + maxes(Snew)
    e('s_waitcnt lgkmcnt(0)')
    interleave(e, m, fill)

def last_half(e, Sold, extra=()):
    ex = lambda i: f'v_exp_f32 v{Sold+i}, v{Sold+i}'
    cv = lambda i: f'v_cvt_pk_bf16_f32 v{V_P+i}, v{Sold+2*i}, v{Sold+2*i+1}'
    ad = lambda i: f'v_add_f32 v{V_L+(i&3)}, v{V_L+(i&3)}, v{Sold+i}'
    e.many(v_reads(1))
    e.many(extra)
    e.many([ex(i) for i in range(8)] + [cv(i) for i in range(4)] + [ex(8), ex(9)])
    e('s_waitcnt lgkmcnt(0)')
    fill = [ex(i) for i in range(10, 16)] + [ad(0)] + [cv(i) for i in range(4, 8)] + [ad(1), ad(2), ('M', 4)] + [ad(i) for i in range(3, 16)]
    interleave(e, pv(), fill)

def rare(e, S, back):
    e('s_nop 7')
    e(f'v_mov_b32 v{V_T0}, v{V_MX}')
    e('s_nop 1')
    e(f'v_permlane32_swap_b32 v{V_T0}, v{V_MX}')
    e('s_nop 1')
    e(f'v_max_f32 v{V_D}, v{V_T0}, v{V_MX}')
    e(f'v_max_f32 v{V_D}, s{S_FLOOR}, v{V_D}')
    for i in range(16): e(f'v_sub_f32 v{S+i}, v{S+i}, v{V_D}')
    for i in range(16): e(f'v_sub_f32 v{V_NEGM+i}, v{V_NEGM+i}, v{V_D}')
    e(f's_cmp_lg_u32 s{S_FLOOR}, 0')
    e(f's_mov_b32 s{S_THR}, 0x41000000')
    e(f's_mov_b32 s{S_FLOOR}, 0')
    e(f's_cbranch_scc1 {back}')
    e(f'v_sub_f32 v{V_T0}, 0, v{V_D}')
    e(f'v_exp_f32 v{V_T0}, v{V_T0}')
    e('s_nop 0')
    for i in range(4): e(f'v_mul_f32 v{V_L+i}, v{V_L+i}, v{V_T0}')
    for i in range(0, 64, 4):
        for j in range(4): e(f'v_accvgpr_read_b32 v{V_TMP+j}, a{i+j}')
        for j in range(4): e(f'v_mul_f32 v{V_TMP+j}, v{V_TMP+j}, v{V_T0}')
        for j in range(4): e(f'v_accvgpr_write_b32 a{i+j}, v{V_TMP+j}')
    e('s_nop 1')
    e(f's_branch {back}')

def epilogue(e, o):
    e(f'v_add_f32 v{V_L}, v{V_L}, v{V_L+1}')
    e(f'v_add_f32 v{V_L+2}, v{V_L+2}, v{V_L+3}')
    e(f'v_add_f32 v{V_L}, v{V_L}, v{V_L+2}')
    e(f'v_mov_b32 v{V_T0}, v{V_L}')
    e('s_nop 1')
    e(f'v_permlane32_swap_b32 v{V_T0}, v{V_L}')
    e('s_nop 1')
    e(f'v_add_f32 v{V_L}, v{V_L}, v{V_T0}')
    e(f'v_rcp_f32 v{V_T0}, v{V_L}')
    e('s_nop 4')
    for f in range(8):
        t = V_VF + 8 * (f & 3)
        for j in range(8): e(f'v_accvgpr_read_b32 v{t+j}, a{8*f+j}')
        if o.pk:
            for j in range(0, 8, 2): e(f'v_pk_mul_f32 {vr(t+j,2)}, {vr(t+j,2)}, {vr(V_T0,2)} op_sel_hi:[1,0]')
        else:
            for j in range(8): e(f'v_mul_f32 v{t+j}, v{t+j}, v{V_T0}')
        d = V_TMP + 4 * (f & 1)
        for j in range(4): e(f'v_cvt_pk_bf16_f32 v{d+j}, v{t+2*j}, v{t+2*j+1}')
        if f == 4: e(f's_add_u32 s{S_OB}, s{S_OB}, 4096')
        if C.M16: e(f'buffer_store_dwordx4 {vr(d,4)}, v{V_WA+1}, {sr(S_WS,4)}, s{S_OB} offen offset:{2048*((f>>1)&1) + 512*(f&1)} {o.ost_flags}')
        else: e(f'buffer_store_dwordx4 {vr(d,4)}, v{V_OST}, {sr(S_WS,4)}, s{S_OB} offen offset:{1024*(f&3)} {o.ost_flags}')

def w_snippets(e, o, ret):
    e('s_waitcnt vmcnt(0)')
    def tree(lo, n):
        if n == 1:
            if lo == 0:
                for f in range(4): e(f'ds_read_b128 {vr(224+4*f,4)}, v{V_OST+3} offset:{1024*f}')
                if o.t15:
                    for i in range(16): e.many(conv(i, V_Q2, V_Q2))
            else:
                e.many(wo_reads(lambda off, nn: hold(lo - 1, off, nn), V_WA, V_WA + 1, 0))
                if o.pwf and lo == 2:
                    e('v_mov_b32 v0, 0')
                    e(f'global_load_dword v0, v0, {sr(S_DBG,2)} sc1')
                if o.r6 and lo == o.r6e: e.many(wo_dma(o, 9, f's{S_XL}', 32768, f's{S_WQB}', V_DMA))
            e('s_branch L_sn_done')
            return
        h = (n + 1) // 2
        e(f's_cmp_ge_u32 s{S_EV}, {lo+h}')
        e(f's_cbranch_scc1 L_sn_{lo+h}')
        tree(lo, h)
        e.lab(f'L_sn_{lo+h}')
        tree(lo + h, n - h)
    tree(0, 9)
    e.lab('L_sn_done')
    e(f's_add_u32 s{S_EV}, s{S_EV}, 1')
    e(f's_cmp_eq_u32 s{S_EV}, 9')
    e(f's_cselect_b32 s{S_WN}, 64, {o.wper}')
    if o.t15:
        e(f's_cmp_eq_u32 s{S_TICK}, {16 - o.wper}')
        e(f's_cselect_b32 s{S_WN}, {o.wper + 1}, s{S_WN}')
    if not o.wl:
        e('s_waitcnt lgkmcnt(0)')
        e.many(wo_dma(o, 0, f's{S_XL}', 0, f's{S_WQB}', V_DMA, dyn=True))
    e(f's_branch {ret}')

def phase_b(e, o):
    lazy(e, o, 14)
    if o.prio == 2: e('s_setprio 3')
    dmark(e, o, 1)
    lazy_dump(e, o, range(15))
    stamp(e, o, 1)
    e('s_waitcnt lgkmcnt(0)')
    e.many(qk(V_SA))
    e.many(k_reads(1))
    for s in range(8): e(f'v_add_u32 v{V_KA+s}, {SLOT}, v{V_KA+s}')
    e('s_nop 3')
    e.many(maxes(V_SA))
    e('s_branch L_rare_a')
    def adv(soff, tmp, base, n):
        r = [f's_cmp_ge_u32 s{soff}, {(C.NR-2)*SLOT}', f's_cselect_b32 s{S_T3}, {C.NR*SLOT}, 0',
             f's_sub_u32 s{S_T3}, {2*SLOT}, s{S_T3}', f's_add_u32 s{soff}, s{soff}, s{S_T3}']
        r += [f'v_add_u32 v{base+i}, s{S_T3}, v{base+i}' for i in range(n)]
        return r
    align(e, o.al_t)
    e.lab('L_tick')
    e('s_waitcnt lgkmcnt(0)')
    e('s_barrier')
    e(f's_cmp_eq_u32 s{S_TICK}, 31')
    e('s_cbranch_scc1 L_last')
    half_tick(e, V_SB, V_SA, 0, 0)
    e('s_cbranch_vccnz L_rare_b')
    e.lab('L_back_b')
    e(f's_cmp_eq_u32 s{S_TICK}, 15')
    e('s_cbranch_scc1 L_switch')
    e.lab('L_back_sw')
    half_tick(e, V_SA, V_SB, 1, 1, extra_v=adv(S_VOFF, S_T0, V_VA, 4), extra_k=adv(S_KOFF, S_T1, V_KA, 8))
    e(f's_add_u32 s{S_TICK}, s{S_TICK}, 1')
    e(f's_sub_u32 s{S_WN}, s{S_WN}, 1')
    e(f's_cmp_eq_u32 s{S_WN}, 0')
    e('s_cbranch_scc1 L_snip')
    e.lab('L_snip_ret')
    e(f's_cmp_eq_u32 s{S_TICK}, 16')
    e('s_cbranch_scc1 L_epi1')
    e('s_cbranch_vccz L_tick')
    e.lab('L_rare_a')
    rare(e, V_SA, 'L_tick')
    e.lab('L_snip')
    w_snippets(e, o, 'L_snip_ret')
    e.lab('L_rare_b')
    rare(e, V_SB, 'L_back_b')
    e.lab('L_switch')
    for i in range(16): e(f'v_mov_b32 v{V_Q+16+i}, v{224+i}')
    for i in range(16): e.many([f'v_mov_b32 v{V_Q+i}, v{V_Q2+i}'] if o.t15 else conv(i, V_Q2, V_Q))
    for i in range(16): e(f'v_mov_b32 v{V_NEGM+i}, 0')
    e('s_nop 1')
    e('s_branch L_back_sw')
    e.lab('L_epi1')
    epilogue(e, o)
    e(f's_add_u32 s{S_OB}, s{S_OB}, {RND - 4096}')
    if o.t15:
        for t in range(4): e(mfma(ar(16 * t, 16), vr(V_NEGM, 4), vr(V_NEGM, 4), '0'))
    else:
        for i in range(64): e(f'v_accvgpr_write_b32 a{i}, 0')
    for i in range(4): e(f'v_mov_b32 v{V_L+i}, 0')
    e(f's_mov_b32 s{S_FLOOR}, 0xff800000')
    stamp(e, o, 2)
    dmark(e, o, 2)
    e('s_branch L_rare_a')
    e.lab('L_rare_l')
    rare(e, V_SB, 'L_back_l')
    e.lab('L_last')
    T = tail_pre(e, o)
    e.early = T.pump(min(o.nearly, 4))
    half_tick(e, V_SB, V_SA, 0, None, extra_8=e.early)
    e('s_cbranch_vccnz L_rare_l')
    e.lab('L_back_l')
    x = T.pump(max(o.nearly - 4, 0))
    e.early += x
    last_half(e, V_SB, x)
    epilogue(e, o)
    return T

def tail_setup(e, o):
    e(f's_mul_i32 s{S_O1}, s{S_BR}, 24')
    e(f's_add_u32 s{S_O1}, s{S_O1}, s{S_QT}')
    e(f's_lshl_b32 s{S_O1}, s{S_O1}, 2')
    e(f's_add_u32 s{S_O1}, s{S_O1}, s{S_WAVE}')
    e(f's_lshl_b32 s{S_O1}, s{S_O1}, 16')

POOL = list(range(96, 160, 4)) + [32, 36, 40, 44, 16, 20, 24, 80, 84] + list(range(160, 192, 4)) + [88, 92]
ORDER1 = [0, 1, 2, 8, 3, 9, 4, 10, 5, 11, 6, 12, 7]
ORDER2 = [8, 0, 9, 1, 10, 2, 11, 3, 12, 4, 13, 14, 15, 5, 6, 7]

class Tail:
    def __init__(self, e, o):
        self.e, self.o = e, o
        self.vm = Vm(e)
        self.free = list(POOL)
        self.where = {}
        self.todo = []
    def oload(self, rnd, c):
        e = self.e
        regs = [self.free.pop(0) for _ in range(4)]
        self.where[(rnd, c)] = regs
        r = [f's_add_u32 s{S_T1}, s{S_RHO}, {c}', f's_and_b32 s{S_T1}, s{S_T1}, 15', f's_lshl_b32 s{S_T1}, s{S_T1}, 12',
             f's_add_u32 s{S_T1}, s{S_T1}, s{S_O1}']
        if rnd and not self.o.t_o1: r.append(f's_add_u32 s{S_T1}, s{S_T1}, {RND}')
        if rnd and self.o.t_noo: return []
        if not rnd and self.o.t_no1: return []
        for s4 in range(4):
            r.append(f'buffer_load_dwordx4 {reg4(regs[s4])}, v{V_OST}, {sr(S_WS,4)}, s{S_T1} offen offset:{1024*s4} {self.o.old_flags}')
        self.vm.add(f'o{rnd}_{c}', 4)
        return r
    def pump(self, lim=99):
        r = []
        while self.todo and len(self.free) >= 4 and self.vm.out() + 4 <= self.o.maxout and lim > 0:
            lim -= 1
            r += self.oload(*self.todo.pop(0))
        return r

def tail_pre(e, o):
    T = Tail(e, o)
    tail_setup(e, o)
    T.todo = [(0, c) for c in ORDER1]
    return T

def tail(e, o, T, w3=False):
    L = V_LANE
    vm = T.vm
    sfx = '3' if w3 else ''
    RA = 6
    TEMP = 48
    e(f's_cmp_eq_u32 s{S_NT}, 15')
    e('s_cbranch_scc1 L_exit')
    e(f's_mul_i32 s{S_WQB}, s{S_WAVE}, {1024*1280}')
    e(f's_add_u32 s{S_WQB}, s{S_WQB}, s{S_WOB}')
    if w3:
        T.free += [12, 16, 20, 24]
        e('s_barrier')
    e.many(T.pump())
    if not w3:
        vm.room(8)
        e.many(wo_dma(o, 12, f's{S_XL}', C.PIECE[12] * 32768, f's{S_WQB}', V_DMA))
        vm.add('late', 8)
    for b in range(3):
        e(f'v_add_u32 v{RA+2*b}, {65536*b}, v{V_WA}')
        if not C.M16: e(f'v_add_u32 v{RA+2*b+1}, {65536*b}, v{V_WA+1}')
    if o.pwf:
        e(f's_mul_i32 s{S_T0}, s{S_BR}, 12')
        e(f's_add_u32 s{S_T0}, s{S_T0}, s{S_QT}')
    else:
        e(f's_lshl_b32 s{S_T0}, s{S_BR}, 2')
        e(f's_add_u32 s{S_T0}, s{S_T0}, s{S_QB}')
    e(f's_lshl_b32 s{S_T0}, s{S_T0}, 2')
    e(f's_add_u32 s{S_T0}, s{S_T0}, s{S_WAVE}')
    e(f's_lshl_b32 s{S_T0}, s{S_T0}, 10')
    e(f's_add_u32 s{S_T0}, s{S_T0}, {WS_FLAG2 if o.pwf else WS_FLAGS}')
    e(f'v_and_b32 v31, 7, v{L}')
    e(f'v_lshlrev_b32 v31, 7, v31')
    e(f'v_add_u32 v31, s{S_T0}, v31')
    if not o.pwf: e('v_mov_b32 v0, 0')
    piece = C.PIECE
    tmp_of = {}
    def rd(c, dstf):
        j = piece[c]
        return wo_reads(dstf, RA + 2 * (j >> 1), RA + 2 * (j >> 1) + 1, 32768 * (j & 1), tmp=(RA + 1, RA + 3, RA + 5))
    def afrag(c):
        if c < 8: return lambda off, n: hold(c, off, n)
        if c >= 13: return lambda off, n: hold(c - 13, off, n)
        return lambda off, n: vr(TEMP + off, n)
    first = {0: True, 1: True}
    def mms(c, rnds):
        m = []
        if C.M16:
            for F in range(2):
                for rnd in rnds:
                    for n in range(4):
                        for qh in range(2):
                            d = ar(32 * rnd + 8 * n + 4 * qh, 4)
                            m.append(f'v_mfma_f32_16x16x32_bf16 {d}, {afrag(c)(16 * F + 4 * n, 4)}, {reg4(T.where[(rnd, c)][2 * F + qh])}, ' + ('0' if (first[rnd] and F == 0) else d))
            for rnd in rnds: first[rnd] = False
            return m
        for s4 in range(4):
            for rnd in rnds:
                for nt in range(2):
                    d = ar(32 * rnd + 16 * nt, 16)
                    m.append(mfma(d, afrag(c)(8 * s4 + 4 * nt, 4), reg4(T.where[(rnd, c)][s4]), '0' if (first[rnd] and s4 == 0) else d))
        for rnd in rnds: first[rnd] = False
        return m
    def wdma(c):
        if o.t_now: return []
        vm.add(f'w{c}', 8)
        return wo_dma(o, c, f's{S_XL}', 32768 * piece[c], f's{S_WQB}', V_DMA)
    ld_fl = f'buffer_load_dword v{V_T2}, v31, {sr(S_WS,4)}, 0 offen sc1'
    WA, RDA, VOUT = 48, 56, 60
    S_OO = S_KOFF
    fin = [f'v_and_b32 v{V_T0}, 31, v{L}', f'v_lshrrev_b32 v{V_T1}, 5, v{L}', f'v_and_b32 v{V_T3}, 15, v{L}',
           f'v_xor_b32 v{V_T1}, v{V_T1}, v{V_T3}', f'v_lshlrev_b32 v{V_T1}, 4, v{V_T1}',
           f'v_lshl_add_u32 v{V_T0}, v{V_T0}, 8, v{V_T1}', f's_add_u32 s{S_T3}, s{S_XL}, {C.SCR*32768}',
           f'v_add_u32 v{V_T0}, s{S_T3}, v{V_T0}']
    fin += [f'v_xor_b32 v{WA+k}, {32*k}, v{V_T0}' for k in range(8)]
    if C.M16:
        fin = [f'v_and_b32 v{V_T0}, 15, v{L}', f'v_lshrrev_b32 v{V_T1}, 4, v{L}', f'v_xor_b32 v{V_T1}, v{V_T1}, v{V_T0}',
               f'v_lshlrev_b32 v{V_T1}, 4, v{V_T1}', f'v_lshl_add_u32 v{V_T0}, v{V_T0}, 8, v{V_T1}',
               f's_add_u32 s{S_T3}, s{S_XL}, {C.SCR*32768}', f'v_add_u32 v{V_T0}, s{S_T3}, v{V_T0}']
        fin += [f'v_xor_b32 v{WA+k}, {64*k}, v{V_T0}' for k in range(4)]
    fin2 = [f's_lshr_b32 s{S_VOFF}, s{S_WAVE}, 1', f's_and_b32 s{S_THR}, s{S_WAVE}, 1',
            f's_lshl_b32 s{S_T2}, s{S_VOFF}, 15', f's_lshl_b32 s{S_T3}, s{S_THR}, 12',
            f's_add_u32 s{S_T2}, s{S_T2}, s{S_T3}', f's_add_u32 s{S_T2}, s{S_T2}, {C.SCR*32768}',
            f'v_lshrrev_b32 v{V_T1}, 3, v{L}', f'v_and_b32 v{V_T3}, 7, v{L}', f'v_lshlrev_b32 v{V_T0}, 1, v{V_T3}',
            f'v_xor_b32 v{V_T0}, v{V_T0}, v{V_T1}', f'v_lshlrev_b32 v{V_T0}, 4, v{V_T0}',
            f'v_lshl_add_u32 v{V_T0}, v{V_T1}, 8, v{V_T0}', f'v_add_u32 v{RDA}, s{S_T2}, v{V_T0}',
            f'v_xor_b32 v{RDA+1}, 16, v{RDA}', f'v_xor_b32 v{RDA+2}, {2048+128}, v{RDA}', f'v_xor_b32 v{RDA+3}, 16, v{RDA+2}',
            f's_lshl_b32 s{S_OO}, s{S_QT}, 5', f's_mul_i32 s{S_VOFF}, s{S_VOFF}, 384', f's_add_u32 s{S_OO}, s{S_OO}, s{S_VOFF}',
            f's_lshl_b32 s{S_THR}, s{S_THR}, 4', f's_add_u32 s{S_OO}, s{S_OO}, s{S_THR}', f's_mul_i32 s{S_OO}, s{S_OO}, 2560',
            f's_mul_i32 s{S_T3}, s{S_BR}, 1280', f's_add_u32 s{S_OO}, s{S_OO}, s{S_T3}', f's_add_u32 s{S_OO}, s{S_OO}, s{S_WOB}',
            f'v_mul_u32_u24 v{V_T1}, 2560, v{V_T1}', f'v_lshl_add_u32 v{VOUT}, v{V_T3}, 4, v{V_T1}']
    def pwrite(rnd):
        if C.M16:
            return [f'ds_write_b128 v{WA+n}, {ar(32*rnd+8*n+4*qh,4)} offset:{rnd*32768 + 4096*qh}' for n in range(4) for qh in range(2)]
        return [f'ds_write_b128 v{WA+4*nt+g}, {ar(32*rnd+16*nt+4*g,4)} offset:{rnd*32768}' for nt in range(2) for g in range(4)]
    if w3:
        ld_tag = f'global_load_dword v30, v0, {sr(S_DBG,2)} sc1'
        first[0] = False
        def mm3(c, rnd, af):
            m = []
            for s4 in range(4):
                for nt in range(2):
                    d = ar(32 * rnd + 16 * nt, 16)
                    m.append(mfma(d, af(8 * s4 + 4 * nt, 4), reg4(T.where[(rnd, c)][s4]), '0' if (first[rnd] and s4 == 0) else d))
            first[rnd] = False
            return m
        t1 = lambda off, n: vr(32 + off, n)
        for c in (13, 14, 15):
            e.many(rd(c, t1))
            if c == 15:
                vm.room(2); e(ld_tag); e(ld_fl); vm.add('pl', 2)
            e('s_waitcnt lgkmcnt(0)')
            vm.wait(f'o0_{c}')
            gaps(e, mm3(c, 0, t1), T.pump(), per=2)
            T.free += T.where[(0, c)]
        assert not T.todo
        vm.wait('pl')
        e('v_add_u32 v30, 3, v30')
        poll(e, o, 'r23', ld_fl, [f'v_cmp_eq_u32 vcc, v30, v{V_T2}'])
        T.free = [48, 52, 56, 60, 12, 16, 20, 24, 32, 36, 40, 44]
        order = [8, 9, 15, 10, 14, 11, 13, 6, 12, 7, 0, 1, 2, 3, 4, 5]
        T.todo = [(1, c) for c in order]
        e.many(T.pump())
        t2 = lambda off, n: hold3(8, off, n)
        for i, c in enumerate(order):
            nxt = order[i + 1] if i + 1 < len(order) else None
            if c >= 12: e('s_waitcnt lgkmcnt(0)')
            vm.wait(f'o1_{c}')
            front = rd(nxt, t2) if (nxt is not None and nxt >= 12) else []
            late = []
            if c == 10: late += fin
            if c == 11: late += pwrite(0)
            if c == 0: late += fin2
            m = mm3(c, 1, t2 if c >= 12 else (lambda off, n: hold3(c, off, n)))
            late += T.pump()
            gaps(e, m, front, late, per=3, late_from=0 if not front else 2)
            if c != 8: T.free += T.where[(1, c)]
            if c in (9, 10, 11): T.free += list(range(64 + 32 * (c - 8), 64 + 32 * (c - 7), 4))
            if c in (6, 7): T.free += list(range(192 + 32 * (c - 6), 192 + 32 * (c - 5), 4))
        assert not T.todo
        e('s_nop 7'); e('s_nop 3')
        e.many(pwrite(1))
        e('s_branch L_red')
        return
    e.skip = o.t_skip
    seq = [(0, c) for c in ORDER1] + [(1, c) for c in ORDER2]
    todo2 = []
    for c in ORDER2: todo2 += ([(0, c)] if (c >= 13 and not o.park) else []) + [(1, c)]
    for i, (rnd, c) in enumerate(seq):
        rnds = [0, 1] if c >= 13 else [rnd]
        nxt = seq[i + 1][1] if i + 1 < len(seq) else None
        if i == o.chk - o.pl_at:
            if o.pwf:
                vm.room(1); e(ld_fl); vm.add('pl', 1)
            else:
                vm.room(2); e(f'global_load_dword v30, v0, {sr(S_DBG,2)} sc1'); e(ld_fl); vm.add('pl', 2)
            if o.park: T.todo += [(0, c) for c in (13, 14, 15)]
        if i == o.chk:
            vm.stamp(o, 5)
            vm.wait('pl')
            e('v_add_u32 v30, 3, v0' if o.pwf else 'v_add_u32 v30, 3, v30')
            poll(e, o, 'r2', ld_fl, [f'v_cmp_eq_u32 vcc, v30, v{V_T2}'])
            T.todo += todo2
            e.many(T.pump())
            vm.stamp(o, 6)
        if c >= 8: e('s_waitcnt lgkmcnt(0)')
        for r_ in rnds: vm.wait(f'o{r_}_{c}')
        front = []; late = []
        if nxt is not None and nxt >= 8:
            assert not (8 <= c < 13 and nxt < 13)
            if rnd == 0 and nxt == (8 if o.wl else C.TCH[0]) and i < 12: e('s_barrier')
            if nxt == 12 and vm.has('late'): vm.wait('late')
            if nxt >= 13: vm.wait(f'w{nxt}')
            front = rd(nxt, afrag(nxt))
        if rnd == 1 and c in (8, 9, 10):
            vm.room(8)
            late += wdma(c + 5)
        if rnd == 1 and c == 15: late += fin
        if rnd == 1 and c == 6: late += pwrite(0)
        if rnd == 1 and c == 5: late += fin2
        m = mms(c, rnds)
        late += T.pump()
        if C.M16: gaps(e, m, front, late, per=o.tper, late_from=0 if not front else min(len(m) - 4, (len(front) + o.tper - 1) // o.tper))
        else: gaps(e, m, front, late, per=3, late_from=0 if not front else 2)
        for r_ in rnds: T.free += T.where[(r_, c)]
    assert not T.todo
    vm.stamp(o, 7)
    e('s_nop 7'); e('s_nop 3')
    e.many(pwrite(1))
    e.lab('L_red')
    e('s_waitcnt lgkmcnt(0)')
    e('s_barrier')
    for i in range(2):
        for p in range(4):
            for hh in range(2):
                e(f'ds_read_b128 {vr(96+32*i+8*p+4*hh,4)}, v{RDA+2*i+hh} offset:{8192*p}')
    for i in range(2):
        b = 96 + 32 * i
        e(f's_waitcnt lgkmcnt({8*(1-i)})')
        for j in range(8):
            e(f'v_add_f32 v{b+j}, v{b+j}, v{b+8+j}')
            e(f'v_add_f32 v{b+16+j}, v{b+16+j}, v{b+24+j}')
        for j in range(8): e(f'v_add_f32 v{b+j}, v{b+j}, v{b+16+j}')
        for j in range(4): e(f'v_cvt_pk_bf16_f32 v{b+8+j}, v{b+2*j}, v{b+2*j+1}')
        if i: e(f's_add_u32 s{S_OO}, s{S_OO}, {8*2560}')
        e(f'buffer_store_dwordx4 {vr(b+8,4)}, v{VOUT}, {sr(S_OUT,4)}, s{S_OO} offen {o.out_flags}')
    ddump(e, o, 5)
    if o.light:
        e('s_waitcnt vmcnt(0)')
        e(f's_memrealtime {sr(S_ST,2)}')
        e('s_waitcnt lgkmcnt(0)')
        e('v_mov_b32 v2, s98'); e(f'v_mov_b32 v3, s{S_ST}'); e(f'v_mov_b32 v4, s{S_STB}')
        e('s_mov_b64 exec, 1')
        e(f'buffer_store_dwordx2 v[2:3], v4, {sr(S_WS,4)}, 0 offen')
    if o.stamps:
        e('s_waitcnt vmcnt(0)')
        stamp(e, o, 14)

KD = '''.amdhsa_kernel {n}
  .amdhsa_next_free_vgpr 512
  .amdhsa_next_free_sgpr 102
  .amdhsa_accum_offset 256
  .amdhsa_group_segment_fixed_size 0
  .amdhsa_kernarg_size 104
  .amdhsa_user_sgpr_count 2
  .amdhsa_user_sgpr_kernarg_segment_ptr 1
  .amdhsa_system_sgpr_workgroup_id_x 1
.end_amdhsa_kernel
'''

HEADER = """
"""

def gen(o):
    assert not o.w3 and (o.rot == 0 or o.wl < 2) and o.gran in (4, 8, 16)
    if o.r6: plan6()
    C.M16 = o.m16
    e = Em()
    e.jit = o.jit
    e.mix = o.mix
    k1 = NAME + '_kernel'
    for l in HEADER.strip().split('\n'): e.raw(l)
    e.raw('; @launch grid=(256,1,1) block=(256,1,1) lds=163840')
    e.raw('.amdgcn_target "amdgcn-amd-amdhsa--gfx950"')
    e.raw('.text')
    e.raw(f'.globl {k1}\n.p2align 8\n.type {k1},@function')
    e.lab(k1)
    prologue(e, o)
    e(f's_cmp_eq_u32 s{S_WAVE}, 3')
    e('s_cbranch_scc1 L_loader')
    if o.al_a > 0:
        for _ in range(o.al_a // 4): e('s_nop 0')
    phase_a(e, o)
    T = phase_b(e, o)
    n0 = T.vm.out()
    pre = T.pump(o.npre)
    npre = T.vm.out() - n0
    e.pre = pre
    if o.pwf:
        per = len(pre) // max(o.npre, 1)
        e.many(pre[:per * o.npre0])
        e(f's_sub_u32 s{S_T0}, s{S_OB}, {RND + 4096}')
        e(f's_lshr_b32 s{S_T0}, s{S_T0}, 6')
        e(f's_mul_i32 s{S_T2}, s{S_BR}, {12*32*128}')
        e(f's_sub_u32 s{S_T0}, s{S_T0}, s{S_T2}')
        e(f's_add_u32 s{S_T0}, s{S_T0}, {WS_FLAG2}')
        e(f'v_add_u32 v{V_T2}, 3, v0')
        e(f'v_mov_b32 v{V_T3}, 0')
        e(f's_waitcnt vmcnt({4 * o.npre0})')
        e('s_mov_b64 exec, 1')
        e(f'buffer_store_dword v{V_T2}, v{V_T3}, {sr(S_WS,4)}, s{S_T0} offen sc1')
        e('s_mov_b64 exec, -1')
        e.many(pre[per * o.npre0:])
        e('s_waitcnt lgkmcnt(0)')
    else:
        e.many(pre)
        e(f's_waitcnt vmcnt({npre}) lgkmcnt(0)')
    e('s_barrier')
    dmark(e, o, 3)
    if o.stamps:
        T.vm.stamp(o, 3)
    e('s_branch L_join')
    align(e, o.al_l)
    e.lab('L_loader')
    h0 = len(e.L)
    loader(e, o)
    if o.head3:
        head = e.L[h0 - 1:e.head_end] + ['    s_branch L_loader2']
        e.L[h0 - 1:e.head_end] = ['L_loader2:']
        if o.head3 == 1:
            i = e.L.index('    s_cbranch_scc1 L_loader')
            e.L[i:i + 1] = ['    s_cbranch_scc0 L_cpre'] + head + ['L_cpre:']
        else:
            i = e.first_loads
            e.L[i:i] = ['    s_branch L_cgo'] + head + ['L_cgo:']
    if o.w3:
        if o.stamps: e.T3.vm.stamp(o, 3)
        tail(e, o, e.T3, w3=True)
    else:
        if o.stamps: stamp(e, o, 3)
    if o.al_j >= 0:
        e('s_branch L_join'); align(e, o.al_j)
    e.lab('L_join')
    if o.prio: e('s_setprio 0')
    tail(e, o, T)
    e.lab('L_exit')
    e('s_endpgm')
    e.lab('L_end')
    e.raw('.section .rodata,"a"\n.p2align 6')
    e.raw(KD.format(n=k1))
    return e.text()

if __name__ == '__main__':
    o = Opt()
    out = sys.argv[1]
    for a in sys.argv[2:]:
        k, v = a.split('=', 1); v = v.replace('+', ' ')
        cur = getattr(o, k)
        setattr(o, k, (v == '1') if isinstance(cur, bool) else int(v) if isinstance(cur, int) else v)
    open(out, 'w').write(gen(o))
```
